```python
import torch

def _softmax(x, axis=-1):
    return torch.softmax(x, dim=axis)
def _gelu(x):
    return torch.nn.functional.gelu(x, approximate="tanh")
def _silu(x):
    return torch.nn.functional.silu(x)
def _sigmoid(x):
    return torch.sigmoid(x)
def _layernorm(x, axis=-1, eps=1e-5):
    m = x.mean(dim=axis, keepdim=True)
    v = x.var(dim=axis, keepdim=True, unbiased=False)
    return (x - m) / torch.sqrt(v + eps)
def _scatter_add(tgt, idx, src, axis=0):
    return tgt.clone().index_add_(axis, idx, src)
def _segment_sum(src, seg, n):
    out = torch.zeros((n,) + src.shape[1:], dtype=src.dtype)
    return out.index_add_(0, seg, src)
def _pad(x, pw):
    flat = tuple(v for pair in reversed(pw) for v in pair)
    return torch.nn.functional.pad(x, flat)

kernel_name = 'parallel_sum__sliding_local_dilated__dense_activation_relu__prompt'

def setup_inputs():

    _w = (lambda a: (lambda t: t.to(torch.bfloat16) if t.is_floating_point() else t)(torch.as_tensor(a)))
    def _A_setup():
        B, S, D = 1, 2048, 1024
        return {
            "x": _w((lambda *s: torch.randn(*s, dtype=torch.bfloat16) * 0.05)(B, S, D)),
            "wqkv": _w((lambda *s: torch.randn(*s, dtype=torch.bfloat16) * 0.05)(D, 3 * D)),
            "wo": _w((lambda *s: torch.randn(*s, dtype=torch.bfloat16) * 0.05)(D, D)),
        }
    _A_in = _A_setup()

    def _B_setup():
        B, S, D, Dff = 1, 2048, 1024, 3584
        return {
            "x": _w((lambda *s: torch.randn(*s, dtype=torch.bfloat16) * 0.05)(B, S, D)),
            "w1": _w((lambda *s: torch.randn(*s, dtype=torch.bfloat16) * 0.05)(D, Dff)),
            "w2": _w((lambda *s: torch.randn(*s, dtype=torch.bfloat16) * 0.05)(Dff, D)),
        }
    _B_in = _B_setup()

    return {
        "A_x": _A_in["x"],
        "A_wqkv": _A_in["wqkv"],
        "A_wo": _A_in["wo"],
        "B_x": _B_in["x"],
        "B_w1": _B_in["w1"],
        "B_w2": _B_in["w2"],
    }

def reference(A_x, A_wqkv, A_wo, B_x, B_w1, B_w2):
    def _A_ref(x, wqkv, wo):
        B, S, D = x.shape
        H = 32; Dh = D // H
        W, dil = 8, 2
        qkv = (lambda x, *d: x.permute(*d))((x @ wqkv).reshape(B, S, 3, H, Dh), 2, 0, 3, 1, 4)
        q, k, v = qkv[0], qkv[1], qkv[2]
        scale = Dh ** -0.5
        pos = torch.arange(S)
        off = torch.arange(W) * dil
        idx = pos[:, None] - off[None, :]
        mask = idx >= 0
        idx_c = torch.where(mask, idx, 0).reshape(-1)
        kg = k[:, :, idx_c, :].reshape(B, H, S, W, Dh)
        vg = v[:, :, idx_c, :].reshape(B, H, S, W, Dh)
        logits = torch.einsum("bhsd,bhswd->bhsw", q, kg) * scale
        logits = torch.where(mask[None, None, :, :], logits, -1e9)
        attn = _softmax(logits, axis=-1)
        o = torch.einsum("bhsw,bhswd->bhsd", attn, vg)
        return (lambda x, *d: x.permute(*d))(o, 0, 2, 1, 3).reshape(B, S, D) @ wo

    def _B_ref(x, w1, w2):
        h = torch.einsum("bsd,df->bsf", x, w1)
        zero = torch.zeros_like(h)
        h = torch.maximum(h, zero)
        return torch.einsum("bsf,fd->bsd", h, w2)

    x = A_x
    xn = _layernorm(x, axis=-1)
    return x + _A_ref(xn, A_wqkv, A_wo) + _B_ref(xn, B_w1, B_w2)
```

```python
import sys

OUT = "parallel_sum__sliding_local_dilated__dense_activation_relu__prompt.s"

class Asm:
    def __init__(self):
        self.L = []
    def __call__(self, s):
        for line in s.strip("\n").split("\n"):
            line = line.strip()
            if line:
                self.L.append("    " + line)
    def label(self, n):
        self.L.append(n + ":")
    def raw(self, s):
        self.L.append(s)
    def text(self):
        return "\n".join(self.L) + "\n"

def vr(b, n=4):
    return "v[%d:%d]" % (b, b + n - 1)
def sr(b, n=2):
    return "s[%d:%d]" % (b, b + n - 1)

A2_BYTES = 2048 * 4608 * 2
MBLK_PITCH = 144 * 1024

G1_ASLOT = 16384
G1_BBASE = 65536
G1_BSLOT = 28672
G1_HALO = 24576
G1_STAT = G1_BBASE + 3 * G1_BSLOT
G1_CS = G1_STAT + 272 * 8
G1_LDS = G1_CS + 224 * 4
AT_PITCH = 400

V_ACC = 0
V_HACC = 96
V_XF = 112
V_WF = 144
V_HF = 200
V_S1 = 208
V_S2 = 210
V_SH = 212
V_CS = 214
V_RA = 217
V_RB = 221
V_RH = 228
V_DA = 230
V_DB = 231
V_DH = 235
V_T = 236
V_LANE = 250
V_TT = 251
V_GG = 252

S_X = 4; S_W = 6; S_WS = 8; S_W1 = 10
SRD_X = 12; SRD_W = 16; SRD_O = 20
S_WAVE = 24; S_MW = 26; S_NW = 27; S_WQ = 28; S_MT = 29; S_JT = 30; S_J = 31
S_KA = 32; S_KB = 33; S_MA = 34; S_MB = 35; S_BD = 36; S_BSL = 37; S_RSL = 38; S_TMP = 39
S_ONES = 40; S_KH = 41; S_TMP2 = 42; S_TMP3 = 43
S_BLK = 44
S_TB = 52
S_PO = 56
S_MASK = 64
S_BSC = 60

def acc(s, i): return V_ACC + (s * 4 + i) * 4
def xf(i, kk): return V_XF + (i * 2 + kk) * 4
def wf(s, kk): return V_WF + (s * 2 + kk) * 4
def hf(kk): return V_HF + kk * 4

def xlane_sum(a, v, t):
    a(f"""
    v_mov_b32 v{t}, v{v}
    s_nop 1
    v_permlane16_swap_b32 v{v}, v{t}
    s_nop 1
    v_add_f32 v{v}, v{v}, v{t}
    v_mov_b32 v{t}, v{v}
    s_nop 1
    v_permlane32_swap_b32 v{v}, v{t}
    s_nop 1
    v_add_f32 v{v}, v{v}, v{t}
    """)

def xlane_max(a, v, t):
    a(f"""
    v_mov_b32 v{t}, v{v}
    s_nop 1
    v_permlane16_swap_b32 v{v}, v{t}
    s_nop 1
    v_max_f32 v{v}, v{v}, v{t}
    v_mov_b32 v{t}, v{v}
    s_nop 1
    v_permlane32_swap_b32 v{v}, v{t}
    s_nop 1
    v_max_f32 v{v}, v{v}, v{t}
    """)

def g1_path(a, typ, G):
    qkv = (typ == 0)
    NB = 6 if qkv else 7
    PB = 384 if qkv else 448
    CH = PB // 16
    WP = 6144 if qkv else 7168
    halo = qkv and G == 0
    if qkv:
        nB = 3
        p0 = 0 if G == 0 else 12
    else:
        nB = 4 if G == 0 else 3
        p0 = 0 if G == 0 else 16
    nIss = 4 + nB + (1 if halo else 0)
    nBiss = nB + (1 if halo else 0)
    cs_slots = [0, 1] if (qkv or G == 0) else [0, 1, 6]
    P = f"g1_{typ}{G}"
    T = V_T
    a.label(P)
    if qkv:
        a(f"""
        s_mov_b32 s{SRD_W}, s{S_W}
        s_and_b32 s{SRD_W+1}, s{S_W+1}, 0xffff
        s_mov_b32 s{SRD_W+2}, {1024*6144}
        s_mov_b32 s{SRD_W+3}, 0x20000
        """)
    else:
        a(f"""
        s_mov_b32 s{SRD_W}, s{S_W1}
        s_and_b32 s{SRD_W+1}, s{S_W1+1}, 0xffff
        s_mov_b32 s{SRD_W+2}, {1024*7168}
        s_mov_b32 s{SRD_W+3}, 0x20000
        """)
    Go = 1 - G
    a(f"""
    v_lshrrev_b32 v{T}, 3, v{V_LANE}                 ; l>>3
    v_and_b32 v{T+1}, 7, v{V_LANE}
    v_xor_b32 v{T+1}, v{T+1}, v{T}                   ; chunk
    s_lshl_b32 s{S_TMP}, s{S_MT}, 8
    s_lshl_b32 s{S_TMP2}, s{S_WQ}, 5
    s_add_u32 s{S_TMP}, s{S_TMP}, s{S_TMP2}
    s_add_u32 s{S_TMP}, s{S_TMP}, {128*Go}
    v_add_u32 v{T+2}, s{S_TMP}, v{T}
    v_lshlrev_b32 v{T+2}, 11, v{T+2}
    v_lshl_add_u32 v{V_DA}, v{T+1}, 4, v{T+2}
    """)
    if halo:
        a(f"""
        s_lshl_b32 s{S_TMP2}, s{S_WQ}, 2
        v_add_u32 v{T+2}, s{S_TMP2}, v{T}
        v_and_b32 v{T+3}, 7, v{T+2}
        v_and_b32 v{T+1}, 7, v{V_LANE}
        v_xor_b32 v{T+1}, v{T+1}, v{T+3}
        s_lshl_b32 s{S_TMP}, s{S_MT}, 8
        s_sub_u32 s{S_TMP}, s{S_TMP}, 16
        v_add_u32 v{T+2}, s{S_TMP}, v{T+2}
        v_max_i32 v{T+2}, 0, v{T+2}
        v_lshlrev_b32 v{T+2}, 11, v{T+2}
        v_lshl_add_u32 v{V_DH}, v{T+1}, 4, v{T+2}
        """)
    magic = (65536 + CH - 1) // CH
    for q in range(64 * CH):
        assert (q * magic) >> 16 == q // CH
    a(f"s_mul_i32 s{S_TMP3}, s{S_WQ}, {nB*64}")
    for i in range(nB):
        a(f"""
        s_add_u32 s{S_TMP}, s{S_TMP3}, {(p0+i)*64}
        v_add_u32 v{T}, s{S_TMP}, v{V_LANE}          ; q
        v_mul_u32_u24 v{T+1}, {magic}, v{T}
        v_lshrrev_b32 v{T+1}, 16, v{T+1}             ; k
        v_mul_u32_u24 v{T+2}, {CH}, v{T+1}
        v_sub_u32 v{T+2}, v{T}, v{T+2}               ; c'
        """)
        if qkv:
            a(f"""
            v_bfe_u32 v{T+3}, v{T+1}, 1, 1
            v_bfe_u32 v{T+4}, v{T+1}, 3, 1
            v_lshl_or_b32 v{T+3}, v{T+4}, 1, v{T+3}  ; f
            v_lshrrev_b32 v{T+4}, 1, v{T+2}
            v_xor_b32 v{T+4}, v{T+4}, v{T+3}         ; unit (0..11)
            v_cmp_le_u32 vcc, 6, v{T+4}
            s_nop 1
            v_cndmask_b32 v{T+5}, 0, 1, vcc          ; hh
            v_mul_u32_u24 v{T+6}, 6, v{T+5}
            v_sub_u32 v{T+6}, v{T+4}, v{T+6}         ; unit % 6
            v_lshrrev_b32 v{T+7}, 1, v{T+6}          ; part
            v_and_b32 v{T+6}, 1, v{T+6}              ; half32
            v_lshlrev_b32 v{T+7}, 11, v{T+7}         ; part*2048
            v_lshl_add_u32 v{T+7}, v{T+5}, 6, v{T+7} ; + hh*64
            v_lshl_add_u32 v{T+7}, v{T+6}, 5, v{T+7} ; + half32*32
            v_and_b32 v{T+6}, 1, v{T+2}
            v_lshl_add_u32 v{T+7}, v{T+6}, 4, v{T+7} ; + (c'&1)*16
            s_lshl_b32 s{S_TMP}, s{S_JT}, 7          ; 2 jt * 64
            v_add_u32 v{T+7}, s{S_TMP}, v{T+7}
            v_mul_u32_u24 v{T+1}, {WP}, v{T+1}
            v_add_u32 v{V_DB+i}, v{T+1}, v{T+7}
            """)
        else:
            a(f"""
            v_bfe_u32 v{T+3}, v{T+1}, 3, 1
            v_lshlrev_b32 v{T+3}, 1, v{T+3}
            v_xor_b32 v{T+2}, v{T+2}, v{T+3}         ; c = c' ^ (2*bit3(k))
            v_lshlrev_b32 v{T+2}, 4, v{T+2}
            s_mul_i32 s{S_TMP}, s{S_JT}, 448
            v_add_u32 v{T+2}, s{S_TMP}, v{T+2}
            v_mul_u32_u24 v{T+1}, {WP}, v{T+1}
            v_add_u32 v{V_DB+i}, v{T+1}, v{T+2}
            """)
    a(f"""
    s_mov_b32 s{S_KA}, 0
    s_mov_b32 s{S_KB}, 0
    s_mov_b32 s{S_KH}, 0
    s_lshl_b32 s{S_MA}, s{S_WQ}, 12
    s_add_u32 s{S_MA}, s{S_MA}, {Go*2*G1_ASLOT}
    s_mul_i32 s{S_MB}, s{S_WQ}, {nB*1024}
    s_add_u32 s{S_MB}, s{S_MB}, {G1_BBASE + p0*1024}
    s_mov_b32 s{S_BSL}, 0
    """)
    def dma_A():
        for i in range(4):
            a(f"""
            s_add_u32 m0, s{S_MA}, {i*1024}
            s_add_u32 s{S_TMP}, s{S_KA}, {i*16384}
            buffer_load_dwordx4 v{V_DA}, {sr(SRD_X,4)}, s{S_TMP} offen lds
            """)
        a(f"""
        s_add_u32 s{S_KA}, s{S_KA}, 128
        s_xor_b32 s{S_MA}, s{S_MA}, {G1_ASLOT}
        """)
    def dma_B():
        for i in range(nB):
            a(f"""
            s_add_u32 m0, s{S_MB}, {i*1024}
            s_nop 0
            buffer_load_dwordx4 v{V_DB+i}, {sr(SRD_W,4)}, s{S_KB} offen lds
            """)
        if halo:
            a(f"""
            s_mul_i32 s{S_TMP}, s{S_WQ}, {nB*1024 - 512}
            s_sub_u32 s{S_TMP}, s{S_MB}, s{S_TMP}
            s_add_u32 m0, s{S_TMP}, {G1_HALO - p0*1024}
            s_mov_b32 exec_hi, 0
            buffer_load_dwordx4 v{V_DH}, {sr(SRD_X,4)}, s{S_KH} offen lds
            s_mov_b32 exec_hi, -1
            s_add_u32 s{S_KH}, s{S_KH}, 128
            """)
        a(f"""
        s_add_u32 s{S_KB}, s{S_KB}, {64*WP}
        s_add_u32 s{S_BSL}, s{S_BSL}, 1
        s_add_u32 s{S_MB}, s{S_MB}, {G1_BSLOT}
        s_cmp_eq_u32 s{S_BSL}, 3
        s_cselect_b32 s{S_TMP}, {3*G1_BSLOT}, 0
        s_cselect_b32 s{S_BSL}, 0, s{S_BSL}
        s_sub_u32 s{S_MB}, s{S_MB}, s{S_TMP}
        """)
    if G == 0:
        dma_B(); dma_A(); dma_B()
        pro_wait = 4 + nBiss
    else:
        dma_A(); dma_B(); dma_A(); dma_B()
        pro_wait = 4 + nBiss
    if qkv:
        if G == 0:
            a(f"""
            s_mul_i32 s{S_TMP}, s{S_NW}, 6
            s_lshl_b32 s{S_TMP2}, s{S_MW}, 1
            s_add_u32 s{S_BLK+0}, s{S_TMP}, s{S_TMP2}
            s_add_u32 s{S_BLK+0}, s{S_BLK+0}, 2
            s_add_u32 s{S_BLK+1}, s{S_BLK+0}, 1
            s_mov_b32 s{S_BLK+2}, s{S_TMP}
            s_add_u32 s{S_BLK+3}, s{S_TMP}, 1
            s_sub_u32 s{S_BLK+4}, s{S_TMP}, s{S_TMP2}
            s_add_u32 s{S_BLK+4}, s{S_BLK+4}, 4
            s_add_u32 s{S_BLK+5}, s{S_BLK+4}, 1
            """)
        else:
            a(f"s_mul_i32 s{S_TMP}, s{S_NW}, 6")
            for s in range(6):
                a(f"s_add_u32 s{S_BLK+s}, s{S_TMP}, {s}")
    else:
        a(f"s_lshl_b32 s{S_TMP2}, s{S_NW}, 3")
        for ps in range(3):
            a(f"""
            s_add_u32 s{S_TMP}, s{S_MW}, {(ps + 2*G) % 3}
            s_cmp_ge_u32 s{S_TMP}, 3
            s_cselect_b32 s{S_TMP3}, 3, 0
            s_sub_u32 s{S_TMP}, s{S_TMP}, s{S_TMP3}
            s_lshl_b32 s{S_TMP}, s{S_TMP}, 1
            s_add_u32 s{S_BLK+2*ps}, s{S_TMP}, s{S_TMP2}
            s_add_u32 s{S_BLK+2*ps+1}, s{S_BLK+2*ps}, 1
            """)
        a(f"s_add_u32 s{S_BLK+6}, s{S_NW}, 6")
    a(f"""
    v_and_b32 v{T}, 7, v{V_TT}
    v_xor_b32 v{T}, v{V_GG}, v{T}                    ; g ^ (t&7)
    v_lshlrev_b32 v{T}, 4, v{T}
    v_lshl_add_u32 v{T}, v{V_TT}, 7, v{T}
    s_lshl_b32 s{S_TMP}, s{S_MW}, 13
    s_add_u32 s{S_TMP}, s{S_TMP}, {G*2*G1_ASLOT}
    s_lshl_b32 s{S_TMP2}, s{S_NW}, 12
    s_add_u32 s{S_TMP3}, s{S_TMP}, s{S_TMP2}
    v_add_u32 v{V_RA+0}, s{S_TMP3}, v{T}
    v_xor_b32 v{V_RA+1}, 64, v{V_RA+0}
    s_xor_b32 s{S_TMP2}, s{S_TMP2}, 4096
    s_add_u32 s{S_TMP3}, s{S_TMP}, s{S_TMP2}         ; sp=1
    v_add_u32 v{V_RA+2}, s{S_TMP3}, v{T}
    v_xor_b32 v{V_RA+3}, 64, v{V_RA+2}
    """)
    if halo:
        a(f"""
        v_add_u32 v{V_RH+0}, {G1_BBASE + G1_HALO}, v{T}
        v_xor_b32 v{V_RH+1}, 64, v{V_RH+0}
        """)
    a(f"""
    v_lshrrev_b32 v{T}, 2, v{V_TT}                   ; r
    v_lshl_add_u32 v{T+1}, v{V_GG}, 3, v{T}          ; 8g + r
    v_mul_u32_u24 v{T+1}, {PB}, v{T+1}
    v_and_b32 v{T+2}, 3, v{V_LANE}
    v_lshl_add_u32 v{T+1}, v{T+2}, 3, v{T+1}         ; + c*8
    v_add_u32 v{T+1}, {G1_BBASE}, v{T+1}
    v_and_b32 v{T+2}, 1, v{V_GG}                     ; g&1
    """)
    if qkv:
        a(f"""
        v_lshrrev_b32 v{T+3}, 1, v{T}                ; bit1(r)
        v_lshl_or_b32 v{T+2}, v{T+2}, 1, v{T+3}      ; f
        """)
    for s in range(NB):
        a(f"""
        v_xor_b32 v{T+3}, s{S_BLK+s}, v{T+2}
        v_lshl_add_u32 v{V_RB+s}, v{T+3}, 5, v{T+1}
        """)
    nacc = (NB * 4) * 4
    for r in range(V_ACC, V_ACC + nacc):
        a(f"v_mov_b32 v{r}, 0")
    if halo:
        for r in range(V_HACC, V_HACC + 8):
            a(f"v_mov_b32 v{r}, 0")
    for r in list(range(V_XF, V_WF + NB * 8)) + list(range(V_HF, V_CS + 3)):
        a(f"v_mov_b32 v{r}, 0")
    a(f"""
    s_mov_b32 s{S_ONES}, 0x3f803f80
    s_mov_b32 s{S_BSC}, {G1_BSLOT}
    s_mov_b32 s{S_J}, 0
    s_mov_b32 s{S_RSL}, 0
    s_waitcnt vmcnt({pro_wait})
    s_barrier
    """)
    if G == 1:
        a("s_barrier")

    def rd_x(i):
        sp, e = i >> 1, i & 1
        for kk in range(2):
            a(f"ds_read_b128 {vr(xf(i,kk))}, v{V_RA+sp*2+kk} offset:{e*2048}")
    def rd_w(s):
        for kk in range(2):
            for h in range(2):
                a(f"ds_read_b64_tr_b16 {vr(wf(s,kk)+2*h,2)}, v{V_RB+s} offset:{(32*kk+4*h)*PB}")
    def dots():
        seqs = []
        for i in range(2):
            seqs.append([f"v_dot2c_f32_bf16 v{V_S1+i}, s{S_ONES}, v{xf(i,kk)+r}" for kk in range(2) for r in range(4)])
            seqs.append([f"v_dot2c_f32_bf16 v{V_S2+i}, v{xf(i,kk)+r}, v{xf(i,kk)+r}" for kk in range(2) for r in range(4)])
        if halo:
            seqs.append([f"v_dot2c_f32_bf16 v{V_SH}, s{S_ONES}, v{hf(kk)+r}" for kk in range(2) for r in range(4)])
            seqs.append([f"v_dot2c_f32_bf16 v{V_SH+1}, v{hf(kk)+r}, v{hf(kk)+r}" for kk in range(2) for r in range(4)])
        for ci, s in enumerate(cs_slots):
            seqs.append([f"v_dot2c_f32_bf16 v{V_CS+ci}, s{S_ONES}, v{wf(s,kk)+r}" for kk in range(2) for r in range(4)])
        for n in range(8):
            for q in seqs:
                a(q[n])

    a.raw(".p2align 6")
    a.label(P + "_loop")
    rd_x(2); rd_x(3)
    for s in range(NB):
        if s not in cs_slots:
            rd_w(s)
    if G == 0:
        a(f"""
        s_cmp_ge_u32 s{S_J}, 15
        s_cbranch_scc1 {P}_nodma
        """)
        dma_A()
        a(f"""
        s_cmp_ge_u32 s{S_J}, 14
        s_cbranch_scc1 {P}_nodma
        """)
        dma_B()
    else:
        a(f"""
        s_cmp_ge_u32 s{S_J}, 14
        s_cbranch_scc1 {P}_nodma
        """)
        dma_A(); dma_B()
    a.label(P + "_nodma")
    dots()
    rd_x(0); rd_x(1)
    if halo:
        for kk in range(2):
            a(f"ds_read_b128 {vr(hf(kk))}, v{V_RH+kk}")
    for s in cs_slots:
        rd_w(s)
    a(f"""
    s_add_u32 s{S_RSL}, s{S_RSL}, 1
    s_cmp_eq_u32 s{S_RSL}, 3
    s_cselect_b32 s{S_BD}, {(-2*G1_BSLOT) & 0xffffffff}, s{S_BSC}
    s_cselect_b32 s{S_RSL}, 0, s{S_RSL}
    """)
    for r in range(4):
        a(f"v_xor_b32 v{V_RA+r}, {G1_ASLOT}, v{V_RA+r}")
    for s in range(NB):
        a(f"v_add_u32 v{V_RB+s}, s{S_BD}, v{V_RB+s}")
    if halo:
        for kk in range(2):
            a(f"v_add_u32 v{V_RH+kk}, s{S_BD}, v{V_RH+kk}")
    a(f"""
    s_cmp_ge_u32 s{S_J}, 14
    s_cbranch_scc1 {P}_tailwait
    s_waitcnt vmcnt({nIss}) lgkmcnt(0)
    """)
    a.label(P + "_afterwait")
    a("s_barrier")
    a("s_setprio 1")
    for kk in range(2):
        for s in range(NB):
            for i in range(4):
                a(f"v_mfma_f32_16x16x32_bf16 {vr(acc(s,i))}, {vr(wf(s,kk))}, {vr(xf(i,kk))}, {vr(acc(s,i))}")
        if halo:
            for s in range(2):
                a(f"v_mfma_f32_16x16x32_bf16 {vr(V_HACC+4*s)}, {vr(wf(s,kk))}, {vr(hf(kk))}, {vr(V_HACC+4*s)}")
    a(f"""
    s_setprio 0
    s_add_u32 s{S_J}, s{S_J}, 1
    s_cmp_lt_u32 s{S_J}, 16
    s_barrier
    s_cbranch_scc1 {P}_loop
    s_branch {P}_post
    """)
    a.label(P + "_tailwait")
    if G == 0:
        a(f"""
        s_cmp_eq_u32 s{S_J}, 14
        s_cbranch_scc0 {P}_tw0
        s_waitcnt vmcnt(4) lgkmcnt(0)
        s_branch {P}_afterwait
        """)
        a.label(P + "_tw0")
    a(f"""
    s_waitcnt vmcnt(0) lgkmcnt(0)
    s_branch {P}_afterwait
    """)
    a.label(P + "_post")
    dots()
    a("s_nop 3")
    def finalize_row(s1, s2, addr_setup):
        xlane_sum(a, s1, T)
        xlane_sum(a, s2, T)
        a(f"""
        v_mul_f32 v{s1}, 0x3a800000, v{s1}           ; mean
        v_mul_f32 v{s2}, 0x3a800000, v{s2}           ; E[x^2]
        v_fma_f32 v{s2}, -v{s1}, v{s1}, v{s2}        ; var
        v_max_f32 v{s2}, 0, v{s2}
        v_cvt_pk_bf16_f32 v{T}, v{s1}, v{s2}
        v_lshlrev_b32 v{T+2}, 16, v{T}               ; m_b
        v_and_b32 v{T+1}, 0xffff0000, v{T}           ; v_b
        v_add_f32 v{T+1}, 0x3727c5ac, v{T+1}         ; + 1e-5
        v_cvt_pk_bf16_f32 v{T+1}, v{T+1}, v{T+1}
        v_and_b32 v{T+1}, 0xffff0000, v{T+1}
        v_sqrt_f32 v{T+1}, v{T+1}
        s_nop 0
        v_cvt_pk_bf16_f32 v{T+1}, v{T+1}, v{T+1}
        v_and_b32 v{T+1}, 0xffff0000, v{T+1}
        v_rcp_f32 v{T+3}, v{T+1}
        """)
        addr_setup()
        a(f"ds_write_b64 v{T+4}, {vr(T+2,2)}")
    for i in range(2):
        def setup(i=i):
            a(f"""
            s_lshl_b32 s{S_TMP}, s{S_MW}, 6
            s_lshl_b32 s{S_TMP2}, s{S_NW}, 5
            s_add_u32 s{S_TMP}, s{S_TMP}, s{S_TMP2}
            s_add_u32 s{S_TMP}, s{S_TMP}, {128*G + 16*i + G1_STAT//8}
            v_add_u32 v{T+4}, s{S_TMP}, v{V_TT}
            v_lshlrev_b32 v{T+4}, 3, v{T+4}
            """)
        finalize_row(V_S1 + i, V_S2 + i, setup)
    if halo:
        def setup_h():
            a(f"""
            v_add_u32 v{T+4}, {256 + G1_STAT//8}, v{V_TT}
            v_lshlrev_b32 v{T+4}, 3, v{T+4}
            """)
        finalize_row(V_SH, V_SH + 1, setup_h)
    for ci, s in enumerate(cs_slots):
        xlane_sum(a, V_CS + ci, T)
        a(f"""
        s_lshl_b32 s{S_TMP}, s{S_BLK+s}, 4
        s_add_u32 s{S_TMP}, s{S_TMP}, {G1_CS//4}
        v_add_u32 v{T+4}, s{S_TMP}, v{V_TT}
        v_lshlrev_b32 v{T+4}, 2, v{T+4}
        ds_write_b32 v{T+4}, v{V_CS+ci}
        """)
    a("s_waitcnt lgkmcnt(0)")
    if G == 0:
        a("s_barrier")
    a("s_barrier")
    V_ST = V_XF
    V_CSV = V_WF
    for i in range(4):
        a(f"""
        s_lshl_b32 s{S_TMP}, s{S_MW}, 6
        s_lshl_b32 s{S_TMP2}, s{S_NW}, 5
        s_xor_b32 s{S_TMP2}, s{S_TMP2}, {16*i}
        s_add_u32 s{S_TMP}, s{S_TMP}, s{S_TMP2}
        s_add_u32 s{S_TB+i}, s{S_TMP}, {128*G}
        s_add_u32 s{S_TMP}, s{S_TB+i}, {G1_STAT//8}
        v_add_u32 v{T+4}, s{S_TMP}, v{V_TT}
        v_lshlrev_b32 v{T+4}, 3, v{T+4}
        ds_read_b64 {vr(V_ST+2*i,2)}, v{T+4}
        """)
    if halo:
        a(f"""
        v_add_u32 v{T+4}, {256 + G1_STAT//8}, v{V_TT}
        v_lshlrev_b32 v{T+4}, 3, v{T+4}
        ds_read_b64 {vr(V_ST+8,2)}, v{T+4}
        """)
    for s in range(NB):
        a(f"""
        s_lshl_b32 s{S_TMP}, s{S_BLK+s}, 6
        s_add_u32 s{S_TMP}, s{S_TMP}, {G1_CS}
        v_lshl_add_u32 v{T+4}, v{V_GG}, 4, s{S_TMP}
        ds_read_b128 {vr(V_CSV+4*s)}, v{T+4}
        """)
    a("s_waitcnt lgkmcnt(0)")
    def fixup(ab, s, st, o, relu):
        c = V_CSV + 4 * s
        a(f"""
        v_pk_fma_f32 {vr(ab,2)}, {vr(c,2)}, {vr(st,2)}, {vr(ab,2)} op_sel_hi:[1,0,1] neg_lo:[0,1,0] neg_hi:[0,1,0]
        v_pk_fma_f32 {vr(ab+2,2)}, {vr(c+2,2)}, {vr(st,2)}, {vr(ab+2,2)} op_sel_hi:[1,0,1] neg_lo:[0,1,0] neg_hi:[0,1,0]
        v_pk_mul_f32 {vr(ab,2)}, {vr(ab,2)}, {vr(st,2)} op_sel:[0,1] op_sel_hi:[1,1]
        v_pk_mul_f32 {vr(ab+2,2)}, {vr(ab+2,2)}, {vr(st,2)} op_sel:[0,1] op_sel_hi:[1,1]
        v_cvt_pk_bf16_f32 v{o}, v{ab}, v{ab+1}
        v_cvt_pk_bf16_f32 v{o+1}, v{ab+2}, v{ab+3}
        """)
        if relu:
            a(f"""
            v_pk_max_i16 v{o}, v{o}, 0
            v_pk_max_i16 v{o+1}, v{o+1}, 0
            """)
    V_SIG = T + 8
    a(f"""
    v_and_b32 v{T}, 1, v{V_GG}
    v_lshrrev_b32 v{T+1}, 1, v{V_GG}
    v_lshl_or_b32 v{V_SIG}, v{T}, 1, v{T+1}
    """)
    if not qkv:
        V_PA = T + 9; V_SA = T + 10
        a(f"""
        v_lshl_add_u32 v{V_PA}, v{V_SIG}, 4, v{V_TT}
        v_lshlrev_b32 v{V_PA}, 4, v{V_PA}            ; (sigma*16 + t)*16
        s_lshl_b32 s{S_TMP}, s{S_NW}, 1
        v_add_u32 v{T+1}, s{S_TMP}, v{T+1}
        v_lshl_add_u32 v{V_SA}, v{T+1}, 4, v{V_TT}
        v_lshlrev_b32 v{V_SA}, 4, v{V_SA}
        v_lshl_add_u32 v{V_SA}, v{T}, 3, v{V_SA}
        """)
        for i in range(4):
            a(f"""
            s_lshr_b32 s{S_TMP}, s{S_TB+i}, 4
            s_lshl_b32 s{S_TMP2}, s{S_MT}, 4
            s_add_u32 s{S_TMP}, s{S_TMP}, s{S_TMP2}
            s_mul_i32 s{S_TB+i}, s{S_TMP}, {MBLK_PITCH}
            """)
        a(f"""
        s_mul_i32 s{S_TMP2}, s{S_JT}, 7
        s_add_u32 s{S_TMP2}, s{S_TMP2}, 32
        """)
        for ps in range(4):
            a(f"""
            s_lshr_b32 s{S_TMP}, s{S_BLK+2*ps}, 1
            s_add_u32 s{S_TMP}, s{S_TMP}, s{S_TMP2}
            s_lshl_b32 s{S_PO+ps}, s{S_TMP}, 10
            """)
        ob = [V_XF + 16, V_XF + 20, V_XF + 24, V_XF + 28]
        n = 0
        for i in range(4):
            st = V_ST + 2 * i
            for ps in range(3):
                o = ob[n % 4]; n += 1
                fixup(acc(2*ps, i), 2*ps, st, o, True)
                fixup(acc(2*ps+1, i), 2*ps+1, st, o+2, True)
                a(f"""
                s_add_u32 s{S_TMP}, s{S_TB+i}, s{S_PO+ps}
                s_nop 0
                v_permlane16_swap_b32 v{o}, v{o+2}
                v_permlane16_swap_b32 v{o+1}, v{o+3}
                s_nop 1
                buffer_store_dwordx4 {vr(o)}, v{V_PA}, {sr(SRD_O,4)}, s{S_TMP} offen
                """)
            o = ob[n % 4]; n += 1
            fixup(acc(6, i), 6, st, o, True)
            a(f"""
            s_add_u32 s{S_TMP}, s{S_TB+i}, s{S_PO+3}
            s_nop 1
            buffer_store_dwordx2 {vr(o,2)}, v{V_SA}, {sr(SRD_O,4)}, s{S_TMP} offen
            """)
        a("s_endpgm")
        return
    V_WA = T + 9
    a(f"""
    v_mul_u32_u24 v{V_WA}, {AT_PITCH}, v{V_TT}
    v_lshl_add_u32 v{V_WA}, v{V_GG}, 3, v{V_WA}      ; t*P + g*8
    """)
    ob = [V_XF + 16, V_XF + 18, V_XF + 20, V_XF + 22, V_XF + 24, V_XF + 26, V_XF + 28, V_XF + 30]
    n = 0
    for i in range(4):
        a(f"""
        s_add_u32 s{S_TMP}, s{S_TB+i}, 16
        s_mul_i32 s{S_TMP3}, s{S_TMP}, {AT_PITCH}
        """)
        for s in range(6):
            o = ob[n % 8]; n += 1
            fixup(acc(s, i), s, V_ST + 2 * i, o, False)
            a(f"""
            s_lshl_b32 s{S_TMP}, s{S_BLK+s}, 5
            s_add_u32 s{S_TMP}, s{S_TMP}, s{S_TMP3}
            v_add_u32 v{T}, s{S_TMP}, v{V_WA}
            ds_write_b64 v{T}, {vr(o,2)}
            """)
    if halo:
        for s in range(2):
            o = ob[n % 8]; n += 1
            fixup(V_HACC + 4 * s, s, V_ST + 8, o, False)
            a(f"""
            s_lshl_b32 s{S_TMP}, s{S_BLK+s}, 5
            v_add_u32 v{T}, s{S_TMP}, v{V_WA}
            ds_write_b64 v{T}, {vr(o,2)}
            """)
    a(f"""
    s_waitcnt lgkmcnt(0)
    s_barrier
    s_branch g1_attn
    """)

def g1_attn(a):
    T = V_T
    V_SIG = T + 8
    a.label("g1_attn")
    VQ = 0; VK = 1; VV = 3
    VE = 5; VO = 6
    R = 8
    a(f"""
    s_lshl_b32 s{S_TMP}, s{S_WAVE}, 5                ; 32 w
    v_lshlrev_b32 v{T}, 1, v{V_TT}                   ; 2n
    v_add_u32 v{T+1}, s{S_TMP}, v{T}                 ; 32w + 2n
    v_add_u32 v{T+2}, 16, v{T+1}
    v_mul_u32_u24 v{T+2}, {AT_PITCH}, v{T+2}
    v_lshl_add_u32 v{VQ}, v{V_GG}, 4, v{T+2}         ; + g*16
    v_add_u32 v{VK+1}, 64, v{VQ}
    v_add_u32 v{T+2}, -16, v{T+1}                    ; rho_k(kb=0)
    v_max_i32 v{T+2}, 0, v{T+2}
    v_mul_u32_u24 v{T+2}, {AT_PITCH}, v{T+2}
    v_lshl_add_u32 v{T+2}, v{V_GG}, 4, v{T+2}
    v_add_u32 v{VK}, 64, v{T+2}
    v_lshrrev_b32 v{T}, 2, v{V_TT}
    v_lshl_add_u32 v{T}, v{V_GG}, 2, v{T}            ; a
    v_lshlrev_b32 v{T}, 1, v{T}
    v_add_u32 v{T}, s{S_TMP}, v{T}                   ; 32w + 2a
    v_and_b32 v{T+3}, 3, v{V_LANE}
    v_lshlrev_b32 v{T+3}, 3, v{T+3}
    v_add_u32 v{T+3}, 128, v{T+3}                    ; v part + c*8
    v_add_u32 v{T+2}, 16, v{T}
    v_mul_u32_u24 v{T+2}, {AT_PITCH}, v{T+2}
    v_add_u32 v{VV+1}, v{T+2}, v{T+3}
    v_add_u32 v{T+2}, -16, v{T}
    v_max_i32 v{T+2}, 0, v{T+2}
    v_mul_u32_u24 v{T+2}, {AT_PITCH}, v{T+2}
    v_add_u32 v{VV}, v{T+2}, v{T+3}
    v_lshlrev_b32 v{T}, 2, v{V_GG}
    v_sub_u32 v{VE}, v{V_TT}, v{T}
    """)
    for kb in range(2):
        for i in range(4):
            a(f"""
            v_add_u32 v{T}, {(16*(1-kb) - i)}, v{VE}
            v_cmp_ge_u32 {sr(S_MASK + 2*(4*kb+i))}, 7, v{T}
            """)
    a(f"""
    s_or_b32 s{S_TMP}, s{S_MT}, s{S_WAVE}
    s_cmp_eq_u32 s{S_TMP}, 0
    s_cbranch_scc0 g1_attn_m
    """)
    for i in range(4):
        a(f"s_mov_b64 {sr(S_MASK + 2*i)}, 0")
    a.label("g1_attn_m")
    a(f"""
    v_and_b32 v{T}, 7, v{V_TT}
    v_lshlrev_b32 v{T}, 1, v{T}
    v_lshl_add_u32 v{T}, v{V_SIG}, 4, v{T}
    v_lshlrev_b32 v{T}, 4, v{T}
    v_lshrrev_b32 v{T+1}, 3, v{V_TT}
    s_mov_b32 s{S_TMP}, {MBLK_PITCH}
    v_mul_lo_u32 v{T+1}, v{T+1}, s{S_TMP}
    v_add_u32 v{VO}, v{T}, v{T+1}
    s_lshl_b32 s{S_TMP}, s{S_MT}, 4
    s_lshl_b32 s{S_TMP2}, s{S_WAVE}, 1
    s_add_u32 s{S_TMP}, s{S_TMP}, s{S_TMP2}
    s_mul_i32 s{S_TMP}, s{S_TMP}, {MBLK_PITCH}
    s_lshl_b32 s{S_TMP2}, s{S_JT}, 11
    s_add_u32 s{S_TMP3}, s{S_TMP}, s{S_TMP2}
    v_mov_b32 v{T+10}, 0xff800000                    ; -inf
    """)
    NEG = T + 10
    units = [(hh, p) for hh in range(2) for p in range(2)]
    UR = 32
    for u, (hh, p) in enumerate(units):
        b = R + u * UR
        off = p * AT_PITCH + hh * 192
        a(f"""
        ds_read_b128 {vr(b)}, v{VQ} offset:{off}
        ds_read_b128 {vr(b+4)}, v{VK} offset:{off}
        ds_read_b128 {vr(b+8)}, v{VK+1} offset:{off}
        """)
        for db in range(2):
            for kb in range(2):
                a(f"ds_read_b64_tr_b16 {vr(b+12+4*db+2*kb,2)}, v{VV+kb} offset:{off+32*db}")
    a("s_waitcnt lgkmcnt(0)")
    for u in range(4):
        b = R + u * UR
        a(f"""
        v_mfma_f32_16x16x32_bf16 {vr(b+20)}, {vr(b+4)}, {vr(b)}, 0
        v_mfma_f32_16x16x32_bf16 {vr(b+24)}, {vr(b+8)}, {vr(b)}, 0
        """)
    a("s_nop 7")
    for u, (hh, p) in enumerate(units):
        b = R + u * UR
        z = b + 20
        t0 = b + 28; t1 = b + 29
        for i in range(0, 8, 2):
            a(f"""
            v_cvt_pk_bf16_f32 v{t0}, v{z+i}, v{z+i+1}
            v_lshlrev_b32 v{z+i}, 16, v{t0}
            v_and_b32 v{z+i+1}, 0xffff0000, v{t0}
            v_mul_f32 v{z+i}, 0x3e3504f3, v{z+i}
            v_mul_f32 v{z+i+1}, 0x3e3504f3, v{z+i+1}
            v_cvt_pk_bf16_f32 v{t0}, v{z+i}, v{z+i+1}
            v_lshlrev_b32 v{z+i}, 16, v{t0}
            v_and_b32 v{z+i+1}, 0xffff0000, v{t0}
            v_cndmask_b32 v{z+i}, v{NEG}, v{z+i}, {sr(S_MASK+2*i)}
            v_cndmask_b32 v{z+i+1}, v{NEG}, v{z+i+1}, {sr(S_MASK+2*i+2)}
            """)
        a(f"""
        v_max3_f32 v{t0}, v{z}, v{z+1}, v{z+2}
        v_max3_f32 v{t0}, v{t0}, v{z+3}, v{z+4}
        v_max3_f32 v{t0}, v{t0}, v{z+5}, v{z+6}
        v_max_f32 v{t0}, v{t0}, v{z+7}
        """)
        xlane_max(a, t0, t1)
        for i in range(8):
            a(f"""
            v_sub_f32 v{z+i}, v{z+i}, v{t0}
            v_mul_f32 v{z+i}, 0x3fb8aa3b, v{z+i}
            v_exp_f32 v{z+i}, v{z+i}
            """)
        a(f"""
        s_nop 0
        v_add_f32 v{t0}, v{z}, v{z+1}
        v_add_f32 v{t1}, v{z+2}, v{z+3}
        v_add_f32 v{t0}, v{t0}, v{z+4}
        v_add_f32 v{t1}, v{t1}, v{z+5}
        v_add_f32 v{t0}, v{t0}, v{z+6}
        v_add_f32 v{t1}, v{t1}, v{z+7}
        v_add_f32 v{t0}, v{t0}, v{t1}
        """)
        xlane_sum(a, t0, t1)
        a(f"""
        v_rcp_f32 v{t0}, v{t0}
        s_nop 0
        """)
        for i in range(8):
            a(f"v_mul_f32 v{z+i}, v{z+i}, v{t0}")
        for i in range(4):
            a(f"v_cvt_pk_bf16_f32 v{b+i}, v{z+2*i}, v{z+2*i+1}")
        a(f"""
        s_nop 1
        v_mfma_f32_16x16x32_bf16 {vr(b+4)}, {vr(b+12)}, {vr(b)}, 0
        v_mfma_f32_16x16x32_bf16 {vr(b+8)}, {vr(b+16)}, {vr(b)}, 0
        """)
    a("s_nop 7")
    for u, (hh, p) in enumerate(units):
        b = R + u * UR
        o = b + 20
        a(f"""
        v_cvt_pk_bf16_f32 v{o}, v{b+4}, v{b+5}
        v_cvt_pk_bf16_f32 v{o+1}, v{b+6}, v{b+7}
        v_cvt_pk_bf16_f32 v{o+2}, v{b+8}, v{b+9}
        v_cvt_pk_bf16_f32 v{o+3}, v{b+10}, v{b+11}
        s_nop 1
        v_permlane16_swap_b32 v{o}, v{o+2}
        v_permlane16_swap_b32 v{o+1}, v{o+3}
        s_nop 1
        buffer_store_dwordx4 {vr(o)}, v{VO}, {sr(SRD_O,4)}, s{S_TMP3} offen offset:{p*16 + hh*1024}
        """)
    a("s_endpgm")

def gen_g1(a):
    a.raw("""
.globl g1_kernel
.p2align 8
.type g1_kernel,@function
g1_kernel:""")
    a(f"""
    s_cmp_ge_u32 s2, 256
    s_cbranch_scc1 g1_exit
    s_load_dwordx4 s[4:7], s[0:1], 0          ; x, wqkv
    s_load_dwordx2 s[{S_W1}:{S_W1+1}], s[0:1], 32
    s_load_dwordx2 s[{S_WS}:{S_WS+1}], s[0:1], 64
    v_and_b32 v{V_LANE}, 63, v0
    v_lshrrev_b32 v{V_T}, 6, v0
    v_and_b32 v{V_TT}, 15, v0
    v_readfirstlane_b32 s{S_WAVE}, v{V_T}
    v_bfe_u32 v{V_GG}, v0, 4, 2
    s_and_b32 s{S_TMP}, s2, 7                 ; xcd
    s_lshr_b32 s{S_TMP2}, s2, 3               ; idx
    s_and_b32 s{S_MT}, s{S_TMP}, 1
    s_lshl_b32 s{S_MT}, s{S_MT}, 2
    s_and_b32 s{S_TMP3}, s{S_TMP2}, 3
    s_add_u32 s{S_MT}, s{S_MT}, s{S_TMP3}     ; mt
    s_lshr_b32 s{S_TMP2}, s{S_TMP2}, 2        ; i8
    s_lshr_b32 s{S_TMP}, s{S_TMP}, 1          ; ng
    s_lshl_b32 s{S_JT}, s{S_TMP}, 2
    s_and_b32 s{S_TMP3}, s{S_TMP2}, 3
    s_add_u32 s{S_JT}, s{S_JT}, s{S_TMP3}     ; jt
    s_lshr_b32 s{S_TMP2}, s{S_TMP2}, 2        ; type
    s_and_b32 s{S_WQ}, s{S_WAVE}, 3
    s_and_b32 s{S_NW}, s{S_WAVE}, 1
    s_bfe_u32 s{S_MW}, s{S_WAVE}, 0x10001
    s_lshr_b32 s{S_TMP3}, s{S_WAVE}, 2        ; G
    s_waitcnt lgkmcnt(0)
    s_mov_b32 s{SRD_X}, s{S_X}
    s_and_b32 s{SRD_X+1}, s{S_X+1}, 0xffff
    s_mov_b32 s{SRD_X+2}, {2048*2048}
    s_mov_b32 s{SRD_X+3}, 0x20000
    s_mov_b32 s{SRD_O}, s{S_WS}
    s_and_b32 s{SRD_O+1}, s{S_WS+1}, 0xffff
    s_mov_b32 s{SRD_O+2}, {A2_BYTES}
    s_mov_b32 s{SRD_O+3}, 0x20000
    s_lshl_b32 s{S_TMP2}, s{S_TMP2}, 1
    s_add_u32 s{S_TMP2}, s{S_TMP2}, s{S_TMP3}
    s_cmp_eq_u32 s{S_TMP2}, 0
    s_cbranch_scc1 g1_00
    s_cmp_eq_u32 s{S_TMP2}, 1
    s_cbranch_scc1 g1_01
    s_cmp_eq_u32 s{S_TMP2}, 2
    s_cbranch_scc1 g1_10
    s_branch g1_11
    """)
    a.label("g1_exit")
    a("s_endpgm")
    for typ in range(2):
        for G in range(2):
            g1_path(a, typ, G)
    g1_attn(a)

G2_LDS = 65536
def gen_g2(a):
    SRD_A = 12; SRD_B = 16; SRD_XX = 20; SRD_OUT = 24
    S_WO = 4; S_W2 = 6; S_XP = 8; S_OUTP = 10; S_WSP = 28
    S_WV = 30; S_GK = 31; S_MW2 = 32; S_MT2 = 33; S_NT = 34; S_TRIP = 35
    S_KAA = 36; S_KBB = 37; S_MB0 = 38; S_T = 39; S_T2 = 40; S_T3 = 41
    V_AB = 0
    V_W = 64
    V_AC = 96
    V_XR = 128
    V_AA = 136
    V_DBB = 138
    V_RBB = 140
    T = 144
    VL = 156; VT = 157; VG = 158
    def ab(u, tb, kk): return V_AB + u * 16 + (tb * 2 + kk) * 4
    def w(s, kk): return V_W + (s * 2 + kk) * 4
    def ac(s, tb): return V_AC + (s * 2 + tb) * 4
    a.raw("""
.globl g2_kernel
.p2align 8
.type g2_kernel,@function
g2_kernel:""")
    a(f"""
    s_cmp_ge_u32 s2, 256
    s_cbranch_scc1 g2_exit
    s_load_dwordx2 s[{S_XP}:{S_XP+1}], s[0:1], 0
    s_load_dwordx2 s[{S_WO}:{S_WO+1}], s[0:1], 16
    s_load_dwordx2 s[{S_W2}:{S_W2+1}], s[0:1], 40
    s_load_dwordx2 s[{S_OUTP}:{S_OUTP+1}], s[0:1], 48
    s_load_dwordx2 s[{S_WSP}:{S_WSP+1}], s[0:1], 64
    v_and_b32 v{VL}, 63, v0
    v_lshrrev_b32 v{T}, 6, v0
    v_and_b32 v{VT}, 15, v0
    v_readfirstlane_b32 s{S_WV}, v{T}
    v_bfe_u32 v{VG}, v0, 4, 2
    s_and_b32 s{S_T}, s2, 7
    s_lshr_b32 s{S_T2}, s2, 3
    s_lshr_b32 s{S_MT2}, s{S_T}, 1
    s_lshl_b32 s{S_MT2}, s{S_MT2}, 2
    s_and_b32 s{S_T3}, s{S_T2}, 3
    s_add_u32 s{S_MT2}, s{S_MT2}, s{S_T3}     ; mt 0..15
    s_and_b32 s{S_NT}, s{S_T}, 1
    s_lshl_b32 s{S_NT}, s{S_NT}, 3
    s_lshr_b32 s{S_T2}, s{S_T2}, 2
    s_add_u32 s{S_NT}, s{S_NT}, s{S_T2}       ; nt 0..15
    s_lshr_b32 s{S_GK}, s{S_WV}, 2
    s_and_b32 s{S_MW2}, s{S_WV}, 3
    ; A voffsets
    s_lshl_b32 s{S_T}, s{S_MT2}, 3
    s_lshl_b32 s{S_T2}, s{S_MW2}, 1
    s_add_u32 s{S_T}, s{S_T}, s{S_T2}         ; mblk0
    s_mul_i32 s{S_T}, s{S_T}, {MBLK_PITCH}
    v_lshl_add_u32 v{V_AA}, v{VL}, 4, s{S_T}
    v_add_u32 v{V_AA+1}, {MBLK_PITCH}, v{V_AA}
    s_lshl_b32 s{S_KAA}, s{S_GK}, 11          ; K-step * 2048
    v_lshrrev_b32 v{T}, 3, v{VL}
    s_lshl_b32 s{S_T}, s{S_WV}, 4
    v_add_u32 v{T+1}, s{S_T}, v{T}            ; row (e=0)
    v_lshlrev_b32 v{T+1}, 11, v{T+1}
    s_lshl_b32 s{S_T}, s{S_NT}, 7
    v_add_u32 v{T+1}, s{S_T}, v{T+1}
    v_and_b32 v{T+2}, 1, v{VL}
    v_lshl_add_u32 v{T+1}, v{T+2}, 4, v{T+1}  ; + (c'&1)*16
    v_bfe_u32 v{T+2}, v{VL}, 1, 2             ; unit'
    v_bfe_u32 v{T+3}, v{VL}, 4, 1             ; bit1(l>>3)
    v_xor_b32 v{T+2}, v{T+2}, v{T+3}
    v_lshl_add_u32 v{V_DBB}, v{T+2}, 5, v{T+1}
    v_xor_b32 v{T+2}, 2, v{T+2}
    v_lshl_add_u32 v{V_DBB+1}, v{T+2}, 5, v{T+1}
    v_add_u32 v{V_DBB+1}, {8*2048}, v{V_DBB+1}
    s_lshl_b32 s{S_MB0}, s{S_WV}, 11
    s_mov_b32 s{S_KBB}, 0
    v_lshrrev_b32 v{T}, 2, v{VT}              ; r
    v_lshl_add_u32 v{T+1}, v{VG}, 3, v{T}
    v_lshlrev_b32 v{T+1}, 7, v{T+1}
    s_lshl_b32 s{S_T}, s{S_GK}, 13
    v_add_u32 v{T+1}, s{S_T}, v{T+1}
    v_and_b32 v{T+2}, 3, v{VL}
    v_lshl_add_u32 v{T+1}, v{T+2}, 3, v{T+1}
    v_and_b32 v{T+2}, 1, v{VG}
    v_lshrrev_b32 v{T+3}, 1, v{T}
    v_lshl_or_b32 v{T+2}, v{T+2}, 1, v{T+3}   ; f
    s_lshl_b32 s{S_T}, s{S_GK}, 1
    v_xor_b32 v{T+2}, s{S_T}, v{T+2}          ; f ^ 2Gk
    """)
    for s in range(4):
        a(f"""
        v_xor_b32 v{T+3}, {s}, v{T+2}
        v_lshl_add_u32 v{V_RBB+s}, v{T+3}, 5, v{T+1}
        """)
    V_XA = T + 4; V_OA = T + 5
    a(f"""
    s_lshl_b32 s{S_T}, s{S_MT2}, 7
    s_lshl_b32 s{S_T2}, s{S_MW2}, 5
    s_add_u32 s{S_T}, s{S_T}, s{S_T2}
    v_add_u32 v{T}, s{S_T}, v{VT}
    v_lshlrev_b32 v{T}, 11, v{T}
    s_lshl_b32 s{S_T}, s{S_NT}, 7
    s_lshl_b32 s{S_T2}, s{S_GK}, 6
    s_add_u32 s{S_T}, s{S_T}, s{S_T2}
    v_add_u32 v{T}, s{S_T}, v{T}
    v_lshl_add_u32 v{V_XA}, v{VG}, 3, v{T}    ; + g*8
    v_and_b32 v{T+1}, 1, v{VG}
    v_lshrrev_b32 v{T+2}, 1, v{VG}
    v_lshl_or_b32 v{T+1}, v{T+1}, 1, v{T+2}   ; sigma
    v_lshl_add_u32 v{V_OA}, v{T+1}, 4, v{T}
    s_waitcnt lgkmcnt(0)
    s_mov_b32 s{SRD_A}, s{S_WSP}
    s_and_b32 s{SRD_A+1}, s{S_WSP+1}, 0xffff
    s_mov_b32 s{SRD_A+2}, {A2_BYTES}
    s_mov_b32 s{SRD_A+3}, 0x20000
    s_mov_b32 s{SRD_B}, s{S_WO}
    s_and_b32 s{SRD_B+1}, s{S_WO+1}, 0xffff
    s_mov_b32 s{SRD_B+2}, {1024*2048}
    s_mov_b32 s{SRD_B+3}, 0x20000
    s_mov_b32 s{SRD_XX}, s{S_XP}
    s_and_b32 s{SRD_XX+1}, s{S_XP+1}, 0xffff
    s_mov_b32 s{SRD_XX+2}, {2048*2048}
    s_mov_b32 s{SRD_XX+3}, 0x20000
    s_mov_b32 s{SRD_OUT}, s{S_OUTP}
    s_and_b32 s{SRD_OUT+1}, s{S_OUTP+1}, 0xffff
    s_mov_b32 s{SRD_OUT+2}, {2048*2048}
    s_mov_b32 s{SRD_OUT+3}, 0x20000
    s_and_b32 s{S_W2+1}, s{S_W2+1}, 0xffff
    s_mov_b32 s{S_T}, {16*2048}
    """)
    for tb in range(2):
        for e in range(2):
            so = "0" if tb == 0 else f"s{S_T}"
            a(f"buffer_load_dwordx2 {vr(V_XR+(tb*2+e)*2,2)}, v{V_XA}, {sr(SRD_XX,4)}, {so} offen offset:{e*32}")
    def prefetch(u):
        for e in range(2):
            a(f"""
            s_add_u32 m0, s{S_MB0}, {u*16384 + e*1024}
            s_nop 0
            buffer_load_dwordx4 v{V_DBB+e}, {sr(SRD_B,4)}, s{S_KBB} offen lds
            """)
        for tb in range(2):
            for kk in range(2):
                a(f"buffer_load_dwordx4 {vr(ab(u,tb,kk))}, v{V_AA+tb}, {sr(SRD_A,4)}, s{S_KAA} offen offset:{kk*1024}")
        a(f"""
        s_add_u32 s{S_KBB}, s{S_KBB}, {128*2048}
        s_add_u32 s{S_KAA}, s{S_KAA}, 4096
        """)
    for u in range(3):
        prefetch(u)
    for r in range(V_AC, V_AC + 32):
        a(f"v_mov_b32 v{r}, 0")
    a(f"s_mov_b32 s{S_TRIP}, 0")
    def body(u, wait, pf, switch):
        a(f"""
        s_waitcnt vmcnt({wait})
        s_barrier
        """)
        if switch:
            a(f"""
            s_cmp_eq_u32 s{S_TRIP}, 1
            s_cselect_b32 s{SRD_B}, s{S_W2}, s{SRD_B}
            s_cselect_b32 s{SRD_B+1}, s{S_W2+1}, s{SRD_B+1}
            s_cselect_b32 s{SRD_B+2}, {3584*2048}, s{SRD_B+2}
            s_cselect_b32 s{S_KBB}, 0, s{S_KBB}
            """)
        for kk in range(2):
            for s in range(4):
                for h in range(2):
                    a(f"ds_read_b64_tr_b16 {vr(w(s,kk)+2*h,2)}, v{V_RBB+s} offset:{u*16384 + kk*4096 + h*512}")
        if pf:
            prefetch((u + 3) & 3)
        for kk in range(2):
            a(f"s_waitcnt lgkmcnt({8 if kk == 0 else 0})")
            for s in range(4):
                for tb in range(2):
                    a(f"v_mfma_f32_16x16x32_bf16 {vr(ac(s,tb))}, {vr(w(s,kk))}, {vr(ab(u,tb,kk))}, {vr(ac(s,tb))}")
    a.raw(".p2align 6")
    a.label("g2_loop")
    for u in range(4):
        body(u, 12, True, u == 1)
    a(f"""
    s_add_u32 s{S_TRIP}, s{S_TRIP}, 1
    s_cmp_lt_u32 s{S_TRIP}, 8
    s_cbranch_scc1 g2_loop
    """)
    body(0, 12, True, False)
    body(1, 12, False, False)
    body(2, 6, False, False)
    body(3, 0, False, False)
    a(f"""
    s_nop 7
    s_lshl_b32 s{S_T}, s{S_WV}, 12
    v_lshl_add_u32 v{T}, v{VL}, 4, s{S_T}
    v_xor_b32 v{T+1}, 16384, v{T}
    """)
    for s in range(2):
        for tb in range(2):
            a(f"ds_write_b128 v{T}, {vr(ac(2+s,tb))} offset:{(s*2+tb)*1024}")
    a("""
    s_waitcnt lgkmcnt(0)
    s_barrier
    """)
    for s in range(2):
        for tb in range(2):
            a(f"ds_read_b128 {vr(V_W+(s*2+tb)*4)}, v{T+1} offset:{(s*2+tb)*1024}")
    a("s_waitcnt lgkmcnt(0)")
    for tb in range(2):
        o = V_AB + tb * 4
        for s in range(2):
            c = ac(s, tb); p = V_W + (s * 2 + tb) * 4; xr = V_XR + (tb * 2 + s) * 2
            a(f"""
            v_lshlrev_b32 v{T+8}, 16, v{xr}
            v_and_b32 v{T+9}, 0xffff0000, v{xr}
            v_lshlrev_b32 v{T+10}, 16, v{xr+1}
            v_and_b32 v{T+11}, 0xffff0000, v{xr+1}
            v_pk_add_f32 {vr(c,2)}, {vr(c,2)}, {vr(p,2)}
            v_pk_add_f32 {vr(c+2,2)}, {vr(c+2,2)}, {vr(p+2,2)}
            v_pk_add_f32 {vr(c,2)}, {vr(c,2)}, {vr(T+8,2)}
            v_pk_add_f32 {vr(c+2,2)}, {vr(c+2,2)}, {vr(T+10,2)}
            v_cvt_pk_bf16_f32 v{o+2*s}, v{c}, v{c+1}
            v_cvt_pk_bf16_f32 v{o+2*s+1}, v{c+2}, v{c+3}
            """)
        so = "0" if tb == 0 else f"s{S_T2}"
        a(f"""
        s_mov_b32 s{S_T2}, {16*2048}
        s_nop 0
        v_permlane16_swap_b32 v{o}, v{o+2}
        v_permlane16_swap_b32 v{o+1}, v{o+3}
        s_nop 1
        buffer_store_dwordx4 {vr(o)}, v{V_OA}, {sr(SRD_OUT,4)}, {so} offen
        """)
    a.label("g2_exit")
    a("s_endpgm")

HEADER = f"""; Fused: out = x + attn(LN(x)) @ wo + relu(LN(x) @ w1) @ w2     (generated by gen.py)
; @launch kernel=g1_kernel grid=(256,1,1) block=(512,1,1) lds={G1_LDS}
; @launch kernel=g2_kernel grid=(256,1,1) block=(512,1,1) lds={G2_LDS}
.amdgcn_target "amdgcn-amd-amdhsa--gfx950"
.text
"""

def kd(name, vgpr, sgpr):
    return f"""
.amdhsa_kernel {name}
  .amdhsa_next_free_vgpr {vgpr}
  .amdhsa_next_free_sgpr {sgpr}
  .amdhsa_accum_offset {(vgpr + 3) // 4 * 4}
  .amdhsa_group_segment_fixed_size 0
  .amdhsa_kernarg_size 72
  .amdhsa_user_sgpr_count 2
  .amdhsa_user_sgpr_kernarg_segment_ptr 1
  .amdhsa_system_sgpr_workgroup_id_x 1
.end_amdhsa_kernel
"""

def main():
    a = Asm()
    gen_g1(a)
    gen_g2(a)
    s = HEADER + a.text() + '.section .rodata,"a"\n.p2align 6\n' + kd("g1_kernel", 256, 96) + ".p2align 6\n" + kd("g2_kernel", 160, 48)
    out = sys.argv[1] if len(sys.argv) > 1 else OUT
    open(out, "w").write(s)

main()
```

```python
import sys

OUT = "parallel_sum__sliding_local_dilated__dense_activation_relu__prompt.s"

class Asm:
    def __init__(self):
        self.L = []
    def __call__(self, s):
        for line in s.strip("\n").split("\n"):
            line = line.strip()
            if line:
                self.L.append("    " + line)
    def label(self, n):
        self.L.append(n + ":")
    def raw(self, s):
        self.L.append(s)
    def text(self):
        return "\n".join(self.L) + "\n"

class Collect:
    def __init__(self): self.L = []
    def __call__(self, s):
        for line in s.strip("\n").split("\n"):
            line = line.strip()
            if line: self.L.append(line)

def interleave(a, mfmas, fillers, start=2, per=2):
    fi = 0
    for n, m in enumerate(mfmas):
        a(m)
        if n >= start:
            for _ in range(per):
                if fi < len(fillers):
                    a(fillers[fi]); fi += 1
    while fi < len(fillers):
        a(fillers[fi]); fi += 1

def vr(b, n=4):
    return "v[%d:%d]" % (b, b + n - 1)
def sr(b, n=2):
    return "s[%d:%d]" % (b, b + n - 1)

MBLK_PITCH = 144 * 1024
for _o in sys.argv[2:]:
    if _o.startswith("pitch="): MBLK_PITCH = int(_o[6:])
A2_BYTES = 128 * MBLK_PITCH

G1_ASLOT = 16384
G1_BBASE = 65536
G1_BSLOT = 28672
G1_HALO = 24576
G1_STAT = G1_BBASE + 3 * G1_BSLOT
G1_CS = G1_STAT + 272 * 8
G1_LDS = G1_STAT
XN_OFF = 24 << 20
AT_PITCH = 400

V_ACC = 0
V_HACC = 96
V_XF = 112
V_WF = 144
V_HF = 200
V_S1 = 208
V_S2 = 210
V_SH = 212
V_CS = 214
V_RA = 217
V_RB = 221
V_RH = 228
V_DA = 230
V_DB = 231
V_DH = 235
V_T = 236
V_LANE = 250
V_TT = 251
V_GG = 252

S_X = 4; S_W = 6; S_WS = 8; S_W1 = 10
SRD_X = 12; SRD_W = 16; SRD_O = 20
S_WAVE = 24; S_MW = 26; S_NW = 27; S_WQ = 28; S_MT = 29; S_JT = 30; S_J = 31
S_KA = 32; S_KB = 33; S_MA = 34; S_MB = 35; S_BD = 36; S_BSL = 37; S_RSL = 38; S_TMP = 39
S_ONES = 40; S_KH = 41; S_TMP2 = 42; S_TMP3 = 43
S_BLK = 44
S_TB = 52
S_PO = 56
S_MASK = 64
S_BSC = 60
S_HD = 61
S_MAE = 25; S_MBE = 3
LDS_DUMP = 0x28000
SRD_XA = 96
S_WOP = 92; S_W2P = 94; S_PC1 = 62

STAMP = False
OPTS = sys.argv[2:]
STF = "sc0 sc1" if "stsc" in OPTS else ("nt" if "stnt" in OPTS else ("sc1" if "stsc1" in OPTS else ""))
V_STAMP = 253
S_SA = 84; S_SB = 86; S_SC = 88; SRD_D = 80; S_SI = 90
def stamp_now(a, idx, real=False):
    if not STAMP: return
    a(f"""
    {"s_memrealtime" if real else "s_memtime"} {sr(S_SC)}
    s_waitcnt lgkmcnt(0)
    v_writelane_b32 v{V_STAMP}, s{S_SC}, {idx}
    """)
def stamp_dump(a, wsreg, wave_sreg, base_off):
    if not STAMP: return
    a(f"""
    s_waitcnt vmcnt(0)
    s_memtime {sr(S_SC)}
    s_waitcnt lgkmcnt(0)
    v_writelane_b32 v{V_STAMP}, s{S_SC}, 63
    s_mov_b32 s{SRD_D}, s{wsreg}
    s_and_b32 s{SRD_D+1}, s{wsreg+1}, 0xffff
    s_mov_b32 s{SRD_D+2}, {64<<20}
    s_mov_b32 s{SRD_D+3}, 0x20000
    s_lshl_b32 s{S_SC}, s2, 3
    s_add_u32 s{S_SC}, s{S_SC}, s{wave_sreg}
    s_lshl_b32 s{S_SC}, s{S_SC}, 8
    s_add_u32 s{S_SC}, s{S_SC}, {base_off}
    v_mbcnt_lo_u32_b32 v254, -1, 0
    v_mbcnt_hi_u32_b32 v254, -1, v254
    v_lshlrev_b32 v254, 2, v254
    buffer_store_dword v{V_STAMP}, v254, {sr(SRD_D,4)}, s{S_SC} offen
    """)

def acc(s, i): return V_ACC + (s * 4 + i) * 4
def xf(i, kk): return V_XF + (i * 2 + kk) * 4
def wf(s, kk): return V_WF + (s * 2 + kk) * 4
def hf(kk): return V_HF + kk * 4

def xlane_sum(a, v, t):
    a(f"""
    v_mov_b32 v{t}, v{v}
    s_nop 1
    v_permlane16_swap_b32 v{v}, v{t}
    s_nop 1
    v_add_f32 v{v}, v{v}, v{t}
    v_mov_b32 v{t}, v{v}
    s_nop 1
    v_permlane32_swap_b32 v{v}, v{t}
    s_nop 1
    v_add_f32 v{v}, v{v}, v{t}
    """)

def xlane_max(a, v, t):
    a(f"""
    v_mov_b32 v{t}, v{v}
    s_nop 1
    v_permlane16_swap_b32 v{v}, v{t}
    s_nop 1
    v_max_f32 v{v}, v{v}, v{t}
    v_mov_b32 v{t}, v{v}
    s_nop 1
    v_permlane32_swap_b32 v{v}, v{t}
    s_nop 1
    v_max_f32 v{v}, v{v}, v{t}
    """)

def g1_path(a, typ, G):
    qkv = (typ == 0)
    NB = 6 if qkv else 7
    PB = 384 if qkv else 448
    CH = PB // 16
    WP = 6144 if qkv else 7168
    halo = qkv and G == 0
    if qkv:
        nB = 3
        p0 = 0 if G == 0 else 12
    else:
        nB = 4 if G == 0 else 3
        p0 = 0 if G == 0 else 16
    nIss = 4 + nB + (1 if halo else 0)
    nBiss = nB + (1 if halo else 0)
    cs_slots = [0, 1] if (qkv or G == 0) else [0, 1, 6]
    P = f"g1_{typ}{G}"
    T = V_T
    a.label(P)
    if STAMP: a(f"v_mov_b32 v{V_STAMP}, 0")
    stamp_now(a, 32); stamp_now(a, 50, True)
    if qkv:
        a(f"""
        s_mov_b32 s{SRD_W}, s{S_W}
        s_and_b32 s{SRD_W+1}, s{S_W+1}, 0xffff
        s_mov_b32 s{SRD_W+2}, {1024*6144}
        s_mov_b32 s{SRD_W+3}, 0x20000
        """)
    else:
        a(f"""
        s_mov_b32 s{SRD_W}, s{S_W1}
        s_and_b32 s{SRD_W+1}, s{S_W1+1}, 0xffff
        s_mov_b32 s{SRD_W+2}, {1024*7168}
        s_mov_b32 s{SRD_W+3}, 0x20000
        """)
    Go = 1 - G
    a(f"""
    v_lshrrev_b32 v{T}, 3, v{V_LANE}                 ; l>>3
    v_and_b32 v{T+1}, 7, v{V_LANE}
    v_xor_b32 v{T+1}, v{T+1}, v{T}                   ; chunk
    s_lshl_b32 s{S_TMP}, s{S_MT}, 8
    s_lshl_b32 s{S_TMP2}, s{S_WQ}, 5
    s_add_u32 s{S_TMP}, s{S_TMP}, s{S_TMP2}
    s_add_u32 s{S_TMP}, s{S_TMP}, {128*Go}
    v_add_u32 v{T+2}, s{S_TMP}, v{T}
    v_lshlrev_b32 v{T+2}, 11, v{T+2}
    v_lshl_add_u32 v{V_DA}, v{T+1}, 4, v{T+2}
    """)
    if halo:
        a(f"""
        s_and_b32 s{S_TMP2}, s{S_WQ}, 1
        s_lshl_b32 s{S_TMP2}, s{S_TMP2}, 3
        v_add_u32 v{T+2}, s{S_TMP2}, v{T}
        s_lshl_b32 s{S_TMP}, s{S_MT}, 8
        s_sub_u32 s{S_TMP}, s{S_TMP}, 16
        v_add_u32 v{T+2}, s{S_TMP}, v{T+2}
        v_max_i32 v{T+2}, 0, v{T+2}
        v_lshlrev_b32 v{T+2}, 11, v{T+2}
        v_lshl_add_u32 v{V_DH}, v{T+1}, 4, v{T+2}
        s_mul_i32 s{S_HD}, s{S_WQ}, {nB*1024}
        s_sub_u32 s{S_HD}, {G1_HALO - p0*1024}, s{S_HD}
        s_lshl_b32 s{S_TMP2}, s{S_TMP2}, 7           ; (wq&1)*1024
        s_add_u32 s{S_HD}, s{S_HD}, s{S_TMP2}
        """)
    magic = (65536 + CH - 1) // CH
    for q in range(64 * CH):
        assert (q * magic) >> 16 == q // CH
    a(f"s_mul_i32 s{S_TMP3}, s{S_WQ}, {nB*64}")
    for i in range(nB):
        a(f"""
        s_add_u32 s{S_TMP}, s{S_TMP3}, {(p0+i)*64}
        v_add_u32 v{T}, s{S_TMP}, v{V_LANE}          ; q
        v_mul_u32_u24 v{T+1}, {magic}, v{T}
        v_lshrrev_b32 v{T+1}, 16, v{T+1}             ; k
        v_mul_u32_u24 v{T+2}, {CH}, v{T+1}
        v_sub_u32 v{T+2}, v{T}, v{T+2}               ; c'
        """)
        if qkv:
            a(f"""
            v_bfe_u32 v{T+3}, v{T+1}, 1, 1
            v_bfe_u32 v{T+4}, v{T+1}, 3, 1
            v_lshl_or_b32 v{T+3}, v{T+4}, 1, v{T+3}  ; f
            v_lshrrev_b32 v{T+4}, 1, v{T+2}
            v_xor_b32 v{T+4}, v{T+4}, v{T+3}         ; unit (0..11)
            v_cmp_le_u32 vcc, 6, v{T+4}
            s_nop 1
            v_cndmask_b32 v{T+5}, 0, 1, vcc          ; hh
            v_mul_u32_u24 v{T+6}, 6, v{T+5}
            v_sub_u32 v{T+6}, v{T+4}, v{T+6}         ; unit % 6
            v_lshrrev_b32 v{T+7}, 1, v{T+6}          ; part
            v_and_b32 v{T+6}, 1, v{T+6}              ; half32
            v_lshlrev_b32 v{T+7}, 11, v{T+7}         ; part*2048
            v_lshl_add_u32 v{T+7}, v{T+5}, 6, v{T+7} ; + hh*64
            v_lshl_add_u32 v{T+7}, v{T+6}, 5, v{T+7} ; + half32*32
            v_and_b32 v{T+6}, 1, v{T+2}
            v_lshl_add_u32 v{T+7}, v{T+6}, 4, v{T+7} ; + (c'&1)*16
            s_lshl_b32 s{S_TMP}, s{S_JT}, 7          ; 2 jt * 64
            v_add_u32 v{T+7}, s{S_TMP}, v{T+7}
            v_mul_u32_u24 v{T+1}, {WP}, v{T+1}
            v_add_u32 v{V_DB+i}, v{T+1}, v{T+7}
            """)
        else:
            a(f"""
            v_bfe_u32 v{T+3}, v{T+1}, 3, 1
            v_lshlrev_b32 v{T+3}, 1, v{T+3}
            v_xor_b32 v{T+2}, v{T+2}, v{T+3}         ; c = c' ^ (2*bit3(k))
            v_lshlrev_b32 v{T+2}, 4, v{T+2}
            s_mul_i32 s{S_TMP}, s{S_JT}, 448
            v_add_u32 v{T+2}, s{S_TMP}, v{T+2}
            v_mul_u32_u24 v{T+1}, {WP}, v{T+1}
            v_add_u32 v{V_DB+i}, v{T+1}, v{T+2}
            """)
    a(f"""
    s_mov_b32 s{S_KA}, 0
    s_mov_b32 s{S_KB}, 0
    s_mov_b32 s{S_KH}, 0
    s_lshl_b32 s{S_MA}, s{S_WQ}, 12
    s_add_u32 s{S_MA}, s{S_MA}, {Go*2*G1_ASLOT}
    s_mul_i32 s{S_MB}, s{S_WQ}, {nB*1024}
    s_add_u32 s{S_MB}, s{S_MB}, {G1_BBASE + p0*1024}
    s_mov_b32 s{S_BSL}, 0
    """)
    def dma_A():
        for i in range(4):
            a(f"""
            s_add_u32 m0, s{S_MA}, {i*1024}
            s_add_u32 s{S_TMP}, s{S_KA}, {i*16384}
            buffer_load_dwordx4 v{V_DA}, {sr(SRD_XA,4)}, s{S_TMP} offen lds
            """)
        a(f"""
        s_add_u32 s{S_KA}, s{S_KA}, 128
        s_xor_b32 s{S_MA}, s{S_MA}, {G1_ASLOT}
        """)
    def dma_B():
        for i in range(nB):
            a(f"""
            s_add_u32 m0, s{S_MB}, {i*1024}
            s_nop 0
            buffer_load_dwordx4 v{V_DB+i}, {sr(SRD_W,4)}, s{S_KB} offen lds
            """)
        if halo:
            a(f"""
            s_add_u32 m0, s{S_MB}, s{S_HD}
            s_nop 0
            buffer_load_dwordx4 v{V_DH}, {sr(SRD_X,4)}, s{S_KH} offen lds
            s_add_u32 s{S_KH}, s{S_KH}, 128
            """)
        a(f"""
        s_add_u32 s{S_KB}, s{S_KB}, {64*WP}
        s_add_u32 s{S_BSL}, s{S_BSL}, 1
        s_add_u32 s{S_MB}, s{S_MB}, {G1_BSLOT}
        s_cmp_eq_u32 s{S_BSL}, 3
        s_cselect_b32 s{S_TMP}, {3*G1_BSLOT}, 0
        s_cselect_b32 s{S_BSL}, 0, s{S_BSL}
        s_sub_u32 s{S_MB}, s{S_MB}, s{S_TMP}
        """)
    if G == 0:
        dma_B(); dma_A(); dma_B()
        pro_wait = 4 + nBiss
    else:
        dma_A(); dma_B(); dma_A(); dma_B()
        pro_wait = 4 + nBiss
    if qkv:
        if G == 0:
            a(f"""
            s_mul_i32 s{S_TMP}, s{S_NW}, 6
            s_lshl_b32 s{S_TMP2}, s{S_MW}, 1
            s_add_u32 s{S_BLK+0}, s{S_TMP}, s{S_TMP2}
            s_add_u32 s{S_BLK+0}, s{S_BLK+0}, 2
            s_add_u32 s{S_BLK+1}, s{S_BLK+0}, 1
            s_mov_b32 s{S_BLK+2}, s{S_TMP}
            s_add_u32 s{S_BLK+3}, s{S_TMP}, 1
            s_sub_u32 s{S_BLK+4}, s{S_TMP}, s{S_TMP2}
            s_add_u32 s{S_BLK+4}, s{S_BLK+4}, 4
            s_add_u32 s{S_BLK+5}, s{S_BLK+4}, 1
            """)
        else:
            a(f"s_mul_i32 s{S_TMP}, s{S_NW}, 6")
            for s in range(6):
                a(f"s_add_u32 s{S_BLK+s}, s{S_TMP}, {s}")
    else:
        a(f"s_lshl_b32 s{S_TMP2}, s{S_NW}, 3")
        for ps in range(3):
            a(f"""
            s_add_u32 s{S_TMP}, s{S_MW}, {(ps + 2*G) % 3}
            s_cmp_ge_u32 s{S_TMP}, 3
            s_cselect_b32 s{S_TMP3}, 3, 0
            s_sub_u32 s{S_TMP}, s{S_TMP}, s{S_TMP3}
            s_lshl_b32 s{S_TMP}, s{S_TMP}, 1
            s_add_u32 s{S_BLK+2*ps}, s{S_TMP}, s{S_TMP2}
            s_add_u32 s{S_BLK+2*ps+1}, s{S_BLK+2*ps}, 1
            """)
        a(f"s_add_u32 s{S_BLK+6}, s{S_NW}, 6")
    a(f"""
    v_and_b32 v{T}, 7, v{V_TT}
    v_xor_b32 v{T}, v{V_GG}, v{T}                    ; g ^ (t&7)
    v_lshlrev_b32 v{T}, 4, v{T}
    v_lshl_add_u32 v{T}, v{V_TT}, 7, v{T}
    s_lshl_b32 s{S_TMP}, s{S_MW}, 13
    s_add_u32 s{S_TMP}, s{S_TMP}, {G*2*G1_ASLOT}
    s_lshl_b32 s{S_TMP2}, s{S_NW}, 12
    s_add_u32 s{S_TMP3}, s{S_TMP}, s{S_TMP2}
    v_add_u32 v{V_RA+0}, s{S_TMP3}, v{T}
    v_xor_b32 v{V_RA+1}, 64, v{V_RA+0}
    s_xor_b32 s{S_TMP2}, s{S_TMP2}, 4096
    s_add_u32 s{S_TMP3}, s{S_TMP}, s{S_TMP2}         ; sp=1
    v_add_u32 v{V_RA+2}, s{S_TMP3}, v{T}
    v_xor_b32 v{V_RA+3}, 64, v{V_RA+2}
    """)
    if halo:
        a(f"""
        v_add_u32 v{V_RH+0}, {G1_BBASE + G1_HALO}, v{T}
        v_xor_b32 v{V_RH+1}, 64, v{V_RH+0}
        """)
    a(f"""
    v_lshrrev_b32 v{T}, 2, v{V_TT}                   ; r
    v_lshl_add_u32 v{T+1}, v{V_GG}, 3, v{T}          ; 8g + r
    v_mul_u32_u24 v{T+1}, {PB}, v{T+1}
    v_and_b32 v{T+2}, 3, v{V_LANE}
    v_lshl_add_u32 v{T+1}, v{T+2}, 3, v{T+1}         ; + c*8
    v_add_u32 v{T+1}, {G1_BBASE}, v{T+1}
    v_and_b32 v{T+2}, 1, v{V_GG}                     ; g&1
    """)
    if qkv:
        a(f"""
        v_lshrrev_b32 v{T+3}, 1, v{T}                ; bit1(r)
        v_lshl_or_b32 v{T+2}, v{T+2}, 1, v{T+3}      ; f
        """)
    for s in range(NB):
        a(f"""
        v_xor_b32 v{T+3}, s{S_BLK+s}, v{T+2}
        v_lshl_add_u32 v{V_RB+s}, v{T+3}, 5, v{T+1}
        """)
    nacc = (NB * 4) * 4
    for r in range(V_ACC, V_ACC + nacc):
        a(f"v_mov_b32 v{r}, 0")
    if halo:
        for r in range(V_HACC, V_HACC + 8):
            a(f"v_mov_b32 v{r}, 0")
    a(f"""
    s_mov_b32 s{S_ONES}, 0x3f803f80
    s_mov_b32 s{S_BSC}, {G1_BSLOT}
    s_mov_b32 s{S_J}, 0
    s_mov_b32 s{S_RSL}, 0
    s_waitcnt vmcnt({pro_wait})
    s_barrier
    """)
    stamp_now(a, 33)
    if G == 1:
        a("s_barrier")
    if STAMP: a(f"s_mov_b32 s{S_SB}, 0")

    def rd_x(i):
        sp, e = i >> 1, i & 1
        for kk in range(2):
            a(f"ds_read_b128 {vr(xf(i,kk))}, v{V_RA+sp*2+kk} offset:{e*2048}")
    def rd_w(s):
        for kk in range(2):
            for h in range(2):
                a(f"ds_read_b64_tr_b16 {vr(wf(s,kk)+2*h,2)}, v{V_RB+s} offset:{(32*kk+4*h)*PB}")
    def dma_list():
        L = []
        for i in range(4):
            L.append(f"""
            s_add_u32 m0, s{S_MAE}, {i*1024}
            s_add_u32 s{S_TMP}, s{S_KA}, {i*16384}
            buffer_load_dwordx4 v{V_DA}, {sr(SRD_XA,4)}, s{S_TMP} offen lds
            """)
        for i in range(nB):
            L.append(f"""
            s_add_u32 m0, s{S_MBE}, {i*1024}
            s_nop 0
            buffer_load_dwordx4 v{V_DB+i}, {sr(SRD_W,4)}, s{S_KB} offen lds
            """)
        if halo:
            L.append(f"""
            s_add_u32 m0, s{S_MBE}, s{S_HD}
            s_nop 0
            buffer_load_dwordx4 v{V_DH}, {sr(SRD_X,4)}, s{S_KH} offen lds
            """)
        return L
    a(f"""
    s_mov_b32 s{S_MAE}, s{S_MA}
    s_mov_b32 s{S_MBE}, s{S_MB}
    """)
    reads = []
    for i in range(4):
        sp, e = i >> 1, i & 1
        for kk in range(2):
            reads.append((kk, f"ds_read_b128 {vr(xf(i,kk))}, v{V_RA+sp*2+kk} offset:{e*2048}"))
    if halo:
        for kk in range(2):
            reads.append((kk, f"ds_read_b128 {vr(hf(kk))}, v{V_RH+kk}"))
    for s_ in range(NB):
        for kk in range(2):
            for h in range(2):
                reads.append((kk, f"ds_read_b64_tr_b16 {vr(wf(s_,kk)+2*h,2)}, v{V_RB+s_} offset:{(32*kk+4*h)*PB}"))
    reads = [r for k_, r in reads if k_ == 0] + [r for k_, r in reads if k_ == 1]

    a.raw(".p2align 6")
    a.label(P + "_loop")
    if STAMP: a(f"s_memtime {sr(S_SA)}")
    dl = dma_list()
    step = len(reads) // len(dl)
    order = "rdfirst" if "rdfirst" in OPTS else "mix"
    if order == "rdfirst":
        for r in reads: a(r)
        for d in dl: a(d)
    else:
        di = 0
        for n_, r in enumerate(reads):
            a(r)
            if (n_ % step) == 1 and di < len(dl):
                a(dl[di]); di += 1
        while di < len(dl):
            a(dl[di]); di += 1
    if STAMP: a(f"s_memtime {sr(100)}")
    a(f"s_waitcnt vmcnt({0 if 'strictwait' in OPTS else nIss}) lgkmcnt(0)")
    if STAMP:
        a(f"""
        s_lshl_b32 s{S_SI}, s{S_J}, 1
        s_mov_b32 m0, s{S_SI}
        s_nop 3
        v_writelane_b32 v{V_STAMP}, s{S_SA}, m0
        s_add_u32 s{S_SI}, s{S_SI}, 63
        s_and_b32 m0, s{S_SI}, 63
        s_nop 3
        v_writelane_b32 v{V_STAMP}, s{S_SB}, m0
        s_memtime {sr(S_SC)}
        s_cmp_eq_u32 s{S_J}, 8
        s_cbranch_scc0 {P}_nost
        s_waitcnt lgkmcnt(0)
        v_writelane_b32 v{V_STAMP}, s{S_SA}, 40
        v_writelane_b32 v{V_STAMP}, s100, 41
        v_writelane_b32 v{V_STAMP}, s{S_SC}, 42
        """)
        a.label(P + "_nost")
    a("s_barrier")
    if STAMP: a(f"s_memtime {sr(S_SB)}")
    bk = Collect()
    bk(f"""
    s_add_u32 s{S_KA}, s{S_KA}, 128
    s_xor_b32 s{S_MA}, s{S_MA}, {G1_ASLOT}
    s_cmp_ge_u32 s{S_KA}, 2048
    s_cselect_b32 s{SRD_XA+2}, 0, s{SRD_XA+2}
    s_cselect_b32 s{S_MAE}, {LDS_DUMP}, s{S_MA}
    s_add_u32 s{S_KH}, s{S_KH}, 128
    s_add_u32 s{S_KB}, s{S_KB}, {64*WP}
    s_add_u32 s{S_BSL}, s{S_BSL}, 1
    s_add_u32 s{S_MB}, s{S_MB}, {G1_BSLOT}
    s_cmp_eq_u32 s{S_BSL}, 3
    s_cselect_b32 s{S_TMP}, {3*G1_BSLOT}, 0
    s_cselect_b32 s{S_BSL}, 0, s{S_BSL}
    s_sub_u32 s{S_MB}, s{S_MB}, s{S_TMP}
    s_cmp_ge_u32 s{S_J}, 13
    s_cselect_b32 s{S_MBE}, {LDS_DUMP}, s{S_MB}
    s_add_u32 s{S_RSL}, s{S_RSL}, 1
    s_cmp_eq_u32 s{S_RSL}, 3
    s_cselect_b32 s{S_BD}, {(-2*G1_BSLOT) & 0xffffffff}, s{S_BSC}
    s_cselect_b32 s{S_RSL}, 0, s{S_RSL}
    """)
    for r in range(4):
        bk(f"v_xor_b32 v{V_RA+r}, {G1_ASLOT}, v{V_RA+r}")
    for s_ in range(NB):
        bk(f"v_add_u32 v{V_RB+s_}, s{S_BD}, v{V_RB+s_}")
    if halo:
        for kk in range(2):
            bk(f"v_add_u32 v{V_RH+kk}, s{S_BD}, v{V_RH+kk}")
    a("s_setprio 1")
    mf = []
    for kk in range(2):
        for s_ in range(NB):
            for i in range(4):
                mf.append(f"v_mfma_f32_16x16x32_bf16 {vr(acc(s_,i))}, {vr(wf(s_,kk))}, {vr(xf(i,kk))}, {vr(acc(s_,i))}")
        if halo:
            for s_ in range(2):
                mf.append(f"v_mfma_f32_16x16x32_bf16 {vr(V_HACC+4*s_)}, {vr(wf(s_,kk))}, {vr(hf(kk))}, {vr(V_HACC+4*s_)}")
    interleave(a, mf, bk.L, start=2, per=1)
    a(f"""
    s_setprio 0
    s_add_u32 s{S_J}, s{S_J}, 1
    s_cmp_lt_u32 s{S_J}, 16
    """)
    if G == 0:
        a(f"""
        s_barrier
        s_cbranch_scc1 {P}_loop
        """)
    else:
        a(f"""
        s_cbranch_scc0 {P}_post
        s_barrier
        s_branch {P}_loop
        """)
    a.label(P + "_post")
    if STAMP:
        a(f"""
        s_waitcnt lgkmcnt(0)
        v_writelane_b32 v{V_STAMP}, s{S_SB}, 31
        """)
    stamp_now(a, 34)
    if qkv:
        a("""
        s_waitcnt vmcnt(0)
        s_barrier
        """)
    if "nowarm2" not in OPTS:
        a(f"""
        s_lshl_b32 s{S_TMP}, s2, 3
        s_add_u32 s{S_TMP}, s{S_TMP}, s{S_WAVE}
        s_mov_b32 s{SRD_XA}, s{S_WOP}
        s_and_b32 s{SRD_XA+1}, s{S_WOP+1}, 0xffff
        s_mov_b32 s{SRD_XA+2}, {1024*2048}
        s_mov_b32 s{SRD_W}, s{S_W2P}
        s_and_b32 s{SRD_W+1}, s{S_W2P+1}, 0xffff
        s_mov_b32 s{SRD_W+2}, {3584*2048}
        s_lshl_b32 s{S_TMP2}, s{S_TMP}, 10
        s_lshl_b32 s{S_TMP}, s{S_TMP}, 12
        v_lshlrev_b32 v{T}, 4, v{V_LANE}
        buffer_load_dwordx4 {vr(V_WF)}, v{T}, {sr(SRD_XA,4)}, s{S_TMP2} offen
        """)
        for i in range(4):
            a(f"buffer_load_dwordx4 {vr(V_WF+4+4*i)}, v{T}, {sr(SRD_W,4)}, s{S_TMP} offen offset:{i*1024}")
    stamp_now(a, 35)
    for i in range(4):
        a(f"""
        s_lshl_b32 s{S_TMP}, s{S_MW}, 6
        s_lshl_b32 s{S_TMP2}, s{S_NW}, 5
        s_xor_b32 s{S_TMP2}, s{S_TMP2}, {16*i}
        s_add_u32 s{S_TMP}, s{S_TMP}, s{S_TMP2}
        s_add_u32 s{S_TB+i}, s{S_TMP}, {128*G}
        """)
    V_ST = 0
    def fixup(ab, s, st, o, relu):
        a(f"""
        v_cvt_pk_bf16_f32 v{o}, v{ab}, v{ab+1}
        v_cvt_pk_bf16_f32 v{o+1}, v{ab+2}, v{ab+3}
        """)
        if relu:
            a(f"""
            v_pk_max_i16 v{o}, v{o}, 0
            v_pk_max_i16 v{o+1}, v{o+1}, 0
            """)
    V_SIG = T + 8
    a(f"""
    v_and_b32 v{T}, 1, v{V_GG}
    v_lshrrev_b32 v{T+1}, 1, v{V_GG}
    v_lshl_or_b32 v{V_SIG}, v{T}, 1, v{T+1}
    """)
    if not qkv:
        V_PA = T + 9; V_SA = T + 10
        a(f"""
        v_lshl_add_u32 v{V_PA}, v{V_SIG}, 4, v{V_TT}
        v_lshlrev_b32 v{V_PA}, 4, v{V_PA}            ; (sigma*16 + t)*16
        s_lshl_b32 s{S_TMP}, s{S_NW}, 1
        v_add_u32 v{T+1}, s{S_TMP}, v{T+1}
        v_lshl_add_u32 v{V_SA}, v{T+1}, 4, v{V_TT}
        v_lshlrev_b32 v{V_SA}, 4, v{V_SA}
        v_lshl_add_u32 v{V_SA}, v{T}, 3, v{V_SA}
        """)
        for i in range(4):
            a(f"""
            s_lshr_b32 s{S_TMP}, s{S_TB+i}, 4
            s_lshl_b32 s{S_TMP2}, s{S_MT}, 4
            s_add_u32 s{S_TMP}, s{S_TMP}, s{S_TMP2}
            s_mul_i32 s{S_TB+i}, s{S_TMP}, {MBLK_PITCH}
            """)
        a(f"""
        s_mul_i32 s{S_TMP2}, s{S_JT}, 7
        s_add_u32 s{S_TMP2}, s{S_TMP2}, 32
        """)
        for ps in range(4):
            a(f"""
            s_lshr_b32 s{S_TMP}, s{S_BLK+2*ps}, 1
            s_add_u32 s{S_TMP}, s{S_TMP}, s{S_TMP2}
            s_lshl_b32 s{S_PO+ps}, s{S_TMP}, 10
            """)
        ob = [V_XF + 16, V_XF + 20, V_XF + 24, V_XF + 28]
        n = 0
        for i in range(4):
            st = V_ST + 2 * i
            for ps in range(3):
                o = ob[n % 4]; n += 1
                fixup(acc(2*ps, i), 2*ps, st, o, True)
                fixup(acc(2*ps+1, i), 2*ps+1, st, o+2, True)
                a(f"""
                s_add_u32 s{S_TMP}, s{S_TB+i}, s{S_PO+ps}
                s_nop 0
                v_permlane16_swap_b32 v{o}, v{o+2}
                v_permlane16_swap_b32 v{o+1}, v{o+3}
                s_nop 1
                buffer_store_dwordx4 {vr(o)}, v{V_PA}, {sr(SRD_O,4)}, s{S_TMP} offen {STF}
                """)
            o = ob[n % 4]; n += 1
            fixup(acc(6, i), 6, st, o, True)
            a(f"""
            s_add_u32 s{S_TMP}, s{S_TB+i}, s{S_PO+3}
            s_nop 1
            buffer_store_dwordx2 {vr(o,2)}, v{V_SA}, {sr(SRD_O,4)}, s{S_TMP} offen {STF}
            """)
        stamp_now(a, 36); stamp_now(a, 51, True)
        stamp_dump(a, S_WS, S_WAVE, 32 << 20)
        a("s_endpgm")
        return
    V_WA = T + 9
    a(f"""
    v_mul_u32_u24 v{V_WA}, {AT_PITCH}, v{V_TT}
    v_lshl_add_u32 v{V_WA}, v{V_GG}, 3, v{V_WA}      ; t*P + g*8
    """)
    ob = [V_XF + 16, V_XF + 18, V_XF + 20, V_XF + 22, V_XF + 24, V_XF + 26, V_XF + 28, V_XF + 30]
    n = 0
    for i in range(4):
        a(f"""
        s_add_u32 s{S_TMP}, s{S_TB+i}, 16
        s_mul_i32 s{S_TMP3}, s{S_TMP}, {AT_PITCH}
        """)
        for s in range(6):
            o = ob[n % 8]; n += 1
            fixup(acc(s, i), s, V_ST + 2 * i, o, False)
            a(f"""
            s_lshl_b32 s{S_TMP}, s{S_BLK+s}, 5
            s_add_u32 s{S_TMP}, s{S_TMP}, s{S_TMP3}
            v_add_u32 v{T}, s{S_TMP}, v{V_WA}
            ds_write_b64 v{T}, {vr(o,2)}
            """)
            if "slowepi" in OPTS: a("s_waitcnt lgkmcnt(0)")
    if halo:
        for s in range(2):
            o = ob[n % 8]; n += 1
            fixup(V_HACC + 4 * s, s, V_ST + 8, o, False)
            a(f"""
            s_lshl_b32 s{S_TMP}, s{S_BLK+s}, 5
            v_add_u32 v{T}, s{S_TMP}, v{V_WA}
            ds_write_b64 v{T}, {vr(o,2)}
            """)
    a(f"""
    s_waitcnt lgkmcnt(0)
    s_barrier
    """)
    stamp_now(a, 36)
    a("s_branch g1_attn")

def g1_attn(a):
    T = V_T
    V_SIG = T + 8
    a.label("g1_attn")
    VQ = 0; VK = 1; VV = 3
    VE = 5; VO = 6
    R = 8
    a(f"""
    s_lshl_b32 s{S_TMP}, s{S_WAVE}, 5                ; 32 w
    v_lshlrev_b32 v{T}, 1, v{V_TT}                   ; 2n
    v_add_u32 v{T+1}, s{S_TMP}, v{T}                 ; 32w + 2n
    v_add_u32 v{T+2}, 16, v{T+1}
    v_mul_u32_u24 v{T+2}, {AT_PITCH}, v{T+2}
    v_lshl_add_u32 v{VQ}, v{V_GG}, 4, v{T+2}         ; + g*16
    v_add_u32 v{VK+1}, 64, v{VQ}
    v_add_u32 v{T+2}, -16, v{T+1}                    ; rho_k(kb=0)
    v_max_i32 v{T+2}, 0, v{T+2}
    v_mul_u32_u24 v{T+2}, {AT_PITCH}, v{T+2}
    v_lshl_add_u32 v{T+2}, v{V_GG}, 4, v{T+2}
    v_add_u32 v{VK}, 64, v{T+2}
    v_lshrrev_b32 v{T}, 2, v{V_TT}
    v_lshl_add_u32 v{T}, v{V_GG}, 2, v{T}            ; a
    v_lshlrev_b32 v{T}, 1, v{T}
    v_add_u32 v{T}, s{S_TMP}, v{T}                   ; 32w + 2a
    v_and_b32 v{T+3}, 3, v{V_LANE}
    v_lshlrev_b32 v{T+3}, 3, v{T+3}
    v_add_u32 v{T+3}, 128, v{T+3}                    ; v part + c*8
    v_add_u32 v{T+2}, 16, v{T}
    v_mul_u32_u24 v{T+2}, {AT_PITCH}, v{T+2}
    v_add_u32 v{VV+1}, v{T+2}, v{T+3}
    v_add_u32 v{T+2}, -16, v{T}
    v_max_i32 v{T+2}, 0, v{T+2}
    v_mul_u32_u24 v{T+2}, {AT_PITCH}, v{T+2}
    v_add_u32 v{VV}, v{T+2}, v{T+3}
    v_lshlrev_b32 v{T}, 2, v{V_GG}
    v_sub_u32 v{VE}, v{V_TT}, v{T}
    """)
    for kb in range(2):
        for i in range(4):
            a(f"""
            v_add_u32 v{T}, {(16*(1-kb) - i)}, v{VE}
            v_cmp_ge_u32 {sr(S_MASK + 2*(4*kb+i))}, 7, v{T}
            """)
    a(f"""
    s_or_b32 s{S_TMP}, s{S_MT}, s{S_WAVE}
    s_cmp_eq_u32 s{S_TMP}, 0
    s_cbranch_scc0 g1_attn_m
    """)
    for i in range(4):
        a(f"s_mov_b64 {sr(S_MASK + 2*i)}, 0")
    a.label("g1_attn_m")
    a(f"""
    v_and_b32 v{T}, 7, v{V_TT}
    v_lshlrev_b32 v{T}, 1, v{T}
    v_lshl_add_u32 v{T}, v{V_SIG}, 4, v{T}
    v_lshlrev_b32 v{T}, 4, v{T}
    v_lshrrev_b32 v{T+1}, 3, v{V_TT}
    s_mov_b32 s{S_TMP}, {MBLK_PITCH}
    v_mul_lo_u32 v{T+1}, v{T+1}, s{S_TMP}
    v_add_u32 v{VO}, v{T}, v{T+1}
    s_lshl_b32 s{S_TMP}, s{S_MT}, 4
    s_lshl_b32 s{S_TMP2}, s{S_WAVE}, 1
    s_add_u32 s{S_TMP}, s{S_TMP}, s{S_TMP2}
    s_mul_i32 s{S_TMP}, s{S_TMP}, {MBLK_PITCH}
    s_lshl_b32 s{S_TMP2}, s{S_JT}, 11
    s_add_u32 s{S_TMP3}, s{S_TMP}, s{S_TMP2}
    v_mov_b32 v{T+10}, 0xff800000                    ; -inf
    """)
    NEG = T + 10
    units = [(hh, p) for hh in range(2) for p in range(2)]
    UR = 32
    for u, (hh, p) in enumerate(units):
        b = R + u * UR
        off = p * AT_PITCH + hh * 192
        a(f"""
        ds_read_b128 {vr(b)}, v{VQ} offset:{off}
        ds_read_b128 {vr(b+4)}, v{VK} offset:{off}
        ds_read_b128 {vr(b+8)}, v{VK+1} offset:{off}
        """)
        for db in range(2):
            for kb in range(2):
                a(f"ds_read_b64_tr_b16 {vr(b+12+4*db+2*kb,2)}, v{VV+kb} offset:{off+32*db}")
    a("s_waitcnt lgkmcnt(0)")
    for u in range(4):
        b = R + u * UR
        a(f"""
        v_mfma_f32_16x16x32_bf16 {vr(b+20)}, {vr(b+4)}, {vr(b)}, 0
        v_mfma_f32_16x16x32_bf16 {vr(b+24)}, {vr(b+8)}, {vr(b)}, 0
        """)
    a("s_nop 7")
    for u, (hh, p) in enumerate(units):
        b = R + u * UR
        z = b + 20
        t0 = b + 28; t1 = b + 29
        for i in range(0, 8, 2):
            a(f"""
            v_cvt_pk_bf16_f32 v{t0}, v{z+i}, v{z+i+1}
            v_lshlrev_b32 v{z+i}, 16, v{t0}
            v_and_b32 v{z+i+1}, 0xffff0000, v{t0}
            v_mul_f32 v{z+i}, 0x3e3504f3, v{z+i}
            v_mul_f32 v{z+i+1}, 0x3e3504f3, v{z+i+1}
            v_cvt_pk_bf16_f32 v{t0}, v{z+i}, v{z+i+1}
            v_lshlrev_b32 v{z+i}, 16, v{t0}
            v_and_b32 v{z+i+1}, 0xffff0000, v{t0}
            v_cndmask_b32 v{z+i}, v{NEG}, v{z+i}, {sr(S_MASK+2*i)}
            v_cndmask_b32 v{z+i+1}, v{NEG}, v{z+i+1}, {sr(S_MASK+2*i+2)}
            """)
        a(f"""
        v_max3_f32 v{t0}, v{z}, v{z+1}, v{z+2}
        v_max3_f32 v{t0}, v{t0}, v{z+3}, v{z+4}
        v_max3_f32 v{t0}, v{t0}, v{z+5}, v{z+6}
        v_max_f32 v{t0}, v{t0}, v{z+7}
        """)
        xlane_max(a, t0, t1)
        for i in range(8):
            a(f"""
            v_sub_f32 v{z+i}, v{z+i}, v{t0}
            v_mul_f32 v{z+i}, 0x3fb8aa3b, v{z+i}
            v_exp_f32 v{z+i}, v{z+i}
            """)
        a(f"""
        s_nop 0
        v_add_f32 v{t0}, v{z}, v{z+1}
        v_add_f32 v{t1}, v{z+2}, v{z+3}
        v_add_f32 v{t0}, v{t0}, v{z+4}
        v_add_f32 v{t1}, v{t1}, v{z+5}
        v_add_f32 v{t0}, v{t0}, v{z+6}
        v_add_f32 v{t1}, v{t1}, v{z+7}
        v_add_f32 v{t0}, v{t0}, v{t1}
        """)
        xlane_sum(a, t0, t1)
        a(f"""
        v_rcp_f32 v{t0}, v{t0}
        s_nop 0
        """)
        for i in range(8):
            a(f"v_mul_f32 v{z+i}, v{z+i}, v{t0}")
        for i in range(4):
            a(f"v_cvt_pk_bf16_f32 v{b+i}, v{z+2*i}, v{z+2*i+1}")
        a(f"""
        s_nop 1
        v_mfma_f32_16x16x32_bf16 {vr(b+4)}, {vr(b+12)}, {vr(b)}, 0
        v_mfma_f32_16x16x32_bf16 {vr(b+8)}, {vr(b+16)}, {vr(b)}, 0
        """)
    a("s_nop 7")
    for u, (hh, p) in enumerate(units):
        b = R + u * UR
        o = b + 20
        a(f"""
        v_cvt_pk_bf16_f32 v{o}, v{b+4}, v{b+5}
        v_cvt_pk_bf16_f32 v{o+1}, v{b+6}, v{b+7}
        v_cvt_pk_bf16_f32 v{o+2}, v{b+8}, v{b+9}
        v_cvt_pk_bf16_f32 v{o+3}, v{b+10}, v{b+11}
        s_nop 1
        v_permlane16_swap_b32 v{o}, v{o+2}
        v_permlane16_swap_b32 v{o+1}, v{o+3}
        s_nop 1
        buffer_store_dwordx4 {vr(o)}, v{VO}, {sr(SRD_O,4)}, s{S_TMP3} offen offset:{p*16 + hh*1024} {STF}
        """)
    stamp_now(a, 37); stamp_now(a, 51, True)
    stamp_dump(a, S_WS, S_WAVE, 32 << 20)
    a("s_endpgm")

def gen_g1(a):
    a.raw("""
.globl g1_kernel
.p2align 8
.type g1_kernel,@function
g1_kernel:""")
    a(f"""
    s_cmp_ge_u32 s2, 256
    s_cbranch_scc1 g1_exit
    s_load_dwordx2 s[{S_W}:{S_W+1}], s[0:1], 8
    s_load_dwordx2 s[{S_W1}:{S_W1+1}], s[0:1], 32
    s_load_dwordx2 s[{S_WS}:{S_WS+1}], s[0:1], 64
    s_load_dwordx2 s[{S_WOP}:{S_WOP+1}], s[0:1], 16
    s_load_dwordx2 s[{S_W2P}:{S_W2P+1}], s[0:1], 40
    v_and_b32 v{V_LANE}, 63, v0
    v_lshrrev_b32 v{V_T}, 6, v0
    v_and_b32 v{V_TT}, 15, v0
    v_readfirstlane_b32 s{S_WAVE}, v{V_T}
    v_bfe_u32 v{V_GG}, v0, 4, 2
    s_nop 2
    s_cmp_lg_u32 s{S_WAVE}, 7
    s_cbranch_scc1 g1_nopf
    """)
    if "nocodepf" not in OPTS:
        code_prefetch(a, V_T + 2, V_LANE, S_PC1, "g1_kernel", "g1_end", 24576, 255)
    a.label("g1_nopf")
    a(f"""
    s_and_b32 s{S_TMP}, s2, 7                 ; xcd
    s_lshr_b32 s{S_TMP2}, s2, 3               ; idx
    s_and_b32 s{S_MT}, s{S_TMP}, 1
    s_lshl_b32 s{S_MT}, s{S_MT}, 2
    s_and_b32 s{S_TMP3}, s{S_TMP2}, 3
    s_add_u32 s{S_MT}, s{S_MT}, s{S_TMP3}     ; mt
    s_lshr_b32 s{S_TMP2}, s{S_TMP2}, 2        ; i8
    s_lshr_b32 s{S_TMP}, s{S_TMP}, 1          ; ng
    s_lshl_b32 s{S_JT}, s{S_TMP}, 2
    s_and_b32 s{S_TMP3}, s{S_TMP2}, 3
    s_add_u32 s{S_JT}, s{S_JT}, s{S_TMP3}     ; jt
    s_lshr_b32 s{S_TMP2}, s{S_TMP2}, 2        ; type
    s_and_b32 s{S_WQ}, s{S_WAVE}, 3
    s_and_b32 s{S_NW}, s{S_WAVE}, 1
    s_bfe_u32 s{S_MW}, s{S_WAVE}, 0x10001
    s_lshr_b32 s{S_TMP3}, s{S_WAVE}, 2        ; G
    s_waitcnt lgkmcnt(0)
    s_add_u32 s{SRD_X}, s{S_WS}, {XN_OFF}
    s_addc_u32 s{SRD_X+1}, s{S_WS+1}, 0
    s_and_b32 s{SRD_X+1}, s{SRD_X+1}, 0xffff
    s_mov_b32 s{SRD_X+2}, {2048*2048}
    s_mov_b32 s{SRD_X+3}, 0x20000
    s_mov_b32 s{SRD_XA}, s{SRD_X}
    s_mov_b32 s{SRD_XA+1}, s{SRD_X+1}
    s_mov_b32 s{SRD_XA+2}, {2048*2048}
    s_mov_b32 s{SRD_XA+3}, 0x20000
    s_mov_b32 s{SRD_O}, s{S_WS}
    s_and_b32 s{SRD_O+1}, s{S_WS+1}, 0xffff
    s_mov_b32 s{SRD_O+2}, {A2_BYTES}
    s_mov_b32 s{SRD_O+3}, 0x20000
    s_lshl_b32 s{S_TMP2}, s{S_TMP2}, 1
    s_add_u32 s{S_TMP2}, s{S_TMP2}, s{S_TMP3}
    s_cmp_eq_u32 s{S_TMP2}, 0
    s_cbranch_scc1 g1_00
    s_cmp_eq_u32 s{S_TMP2}, 1
    s_cbranch_scc1 g1_01
    s_cmp_eq_u32 s{S_TMP2}, 2
    s_cbranch_scc1 g1_10
    s_branch g1_11
    """)
    a.label("g1_exit")
    a("s_endpgm")
    for typ in range(2):
        for G in range(2):
            g1_path(a, typ, G)
    g1_attn(a)
    a.label("g1_end")
    a("s_endpgm")

def gen_k0(a):
    a.raw("""
.globl k0_kernel
.p2align 8
.type k0_kernel,@function
k0_kernel:""")
    DPP = "row_mask:0xf bank_mask:0xf"
    def reduce64(v, t):
        a(f"""
        s_nop 1
        v_add_f32_dpp v{t}, v{v}, v{v} quad_perm:[1,0,3,2] {DPP}
        s_nop 1
        v_add_f32_dpp v{v}, v{t}, v{t} quad_perm:[2,3,0,1] {DPP}
        s_nop 1
        v_add_f32_dpp v{t}, v{v}, v{v} row_half_mirror {DPP}
        s_nop 1
        v_add_f32_dpp v{v}, v{t}, v{t} row_mirror {DPP}
        """)
        xlane_sum(a, v, t)
    a(f"""
    s_cmp_ge_u32 s2, 256
    s_cbranch_scc1 k0_exit
    s_load_dwordx4 s[4:7], s[0:1], 0          ; x, wqkv
    s_load_dwordx2 s[8:9], s[0:1], 32         ; w1
    s_load_dwordx2 s[10:11], s[0:1], 64       ; ws
    v_lshrrev_b32 v1, 6, v0
    v_and_b32 v0, 63, v0
    v_lshlrev_b32 v2, 4, v0                   ; lane*16
    v_readfirstlane_b32 s3, v1
    s_lshl_b32 s28, s2, 3
    s_nop 2
    s_add_u32 s28, s28, s3
    s_lshl_b32 s29, s28, 11
    s_waitcnt lgkmcnt(0)
    s_mov_b32 s12, s4
    s_and_b32 s13, s5, 0xffff
    s_mov_b32 s14, {2048*2048}
    s_mov_b32 s15, 0x20000
    buffer_load_dwordx4 v[4:7], v2, s[12:15], s29 offen
    buffer_load_dwordx4 v[8:11], v2, s[12:15], s29 offen offset:1024
    s_mov_b32 s16, s6
    s_and_b32 s17, s7, 0xffff
    s_mov_b32 s18, {1024*6144}
    s_mov_b32 s19, 0x20000
    s_mov_b32 s20, s8
    s_and_b32 s21, s9, 0xffff
    s_mov_b32 s22, {1024*7168}
    s_mov_b32 s23, 0x20000
    s_add_u32 s24, s10, {XN_OFF}
    s_addc_u32 s25, s11, 0
    s_and_b32 s25, s25, 0xffff
    s_mov_b32 s26, {2048*2048}
    s_mov_b32 s27, 0x20000
    s_cmp_lg_u32 s2, 0
    s_cbranch_scc1 k0_noz
    s_add_u32 s32, s10, {30 << 20}
    s_addc_u32 s33, s11, 0
    s_and_b32 s33, s33, 0xffff
    s_mov_b32 s34, 8192
    s_mov_b32 s35, 0x20000
    s_lshl_b32 s30, s3, 10
    v_mov_b32 v60, 0
    v_mov_b32 v61, 0
    v_mov_b32 v62, 0
    v_mov_b32 v63, 0
    buffer_store_dwordx4 v[60:63], v2, s[32:35], s30 offen
    s_waitcnt vmcnt(0)
k0_noz:
    s_mul_i32 s30, s28, 3072
    s_lshl_b32 s31, s28, 12
    """)
    nw = 0
    if "nowarm1" not in OPTS:
        for i in range(3):
            a(f"buffer_load_dwordx4 v[{32+4*i}:{35+4*i}], v2, s[16:19], s30 offen offset:{1024*i}"); nw += 1
        for i in range(4):
            a(f"buffer_load_dwordx4 v[{44+4*i}:{47+4*i}], v2, s[20:23], s31 offen offset:{1024*i}"); nw += 1
    a(f"s_waitcnt vmcnt({nw})")
    for r in range(8):
        a(f"""
        v_lshlrev_b32 v{12+2*r}, 16, v{4+r}
        v_and_b32 v{13+2*r}, 0xffff0000, v{4+r}
        """)
    a("v_add_f32 v28, v12, v13")
    for r in range(14, 28):
        a(f"v_add_f32 v28, v28, v{r}")
    reduce64(28, 29)
    a("v_mul_f32 v28, 0x3a800000, v28")
    a("""
    v_sub_f32 v30, v12, v28
    v_mul_f32 v31, v30, v30
    """)
    for r in range(13, 28):
        a(f"""
        v_sub_f32 v30, v{r}, v28
        v_fmac_f32 v31, v30, v30
        """)
    reduce64(31, 29)
    a(f"""
    v_mul_f32 v31, 0x3a800000, v31            ; var
    v_cvt_pk_bf16_f32 v29, v28, v31
    v_lshlrev_b32 v28, 16, v29                ; m_b
    v_and_b32 v31, 0xffff0000, v29            ; v_b
    v_add_f32 v31, 0x3727c5ac, v31
    v_cvt_pk_bf16_f32 v31, v31, v31
    v_and_b32 v31, 0xffff0000, v31
    v_sqrt_f32 v31, v31
    s_nop 0
    v_cvt_pk_bf16_f32 v31, v31, v31
    v_and_b32 v31, 0xffff0000, v31
    v_rcp_f32 v31, v31
    s_nop 0
    """)
    for r in range(8):
        a(f"""
        v_sub_f32 v{12+2*r}, v{12+2*r}, v28
        v_sub_f32 v{13+2*r}, v{13+2*r}, v28
        v_cvt_pk_bf16_f32 v29, v{12+2*r}, v{13+2*r}
        v_lshlrev_b32 v{12+2*r}, 16, v29
        v_and_b32 v{13+2*r}, 0xffff0000, v29
        v_mul_f32 v{12+2*r}, v{12+2*r}, v31
        v_mul_f32 v{13+2*r}, v{13+2*r}, v31
        v_cvt_pk_bf16_f32 v{4+r}, v{12+2*r}, v{13+2*r}
        """)
    a("""
    buffer_store_dwordx4 v[4:7], v2, s[24:27], s29 offen
    buffer_store_dwordx4 v[8:11], v2, s[24:27], s29 offen offset:1024
    """)
    a.label("k0_exit")
    a("s_endpgm")

G2_NB = 6
G2_LDS = G2_NB * 16384
def code_prefetch(a, vtmp, vlane, stmp, start_label, end_label, nbytes, vdst):
    a(f"""
    s_getpc_b64 {sr(stmp)}
    """)
    a.label(start_label + "_pc")
    a(f"""
    s_add_u32 s{stmp}, s{stmp}, {start_label}-{start_label}_pc
    s_addc_u32 s{stmp+1}, s{stmp+1}, -1
    v_lshlrev_b32 v{vtmp}, 7, v{vlane}
    """)
    for i in range((nbytes + 8191) // 8192):
        if i: a(f"v_add_u32 v{vtmp}, 0x2000, v{vtmp}")
        a(f"""
        v_min_u32 v{vtmp+1}, {end_label}-{start_label}-4, v{vtmp}
        global_load_dword v{vdst}, v{vtmp+1}, {sr(stmp)}
        """)

def gen_g2(a):
    NBUF = G2_NB; D = NBUF - 1
    NTB = "nt " if "g2ntB" in OPTS else ""
    SRD_A = 12; SRD_B = 16; SRD_XX = 20; SRD_OUT = 24
    S_WO = 4; S_W2 = 6; S_XP = 8; S_OUTP = 10; S_WSP = 28
    S_WV = 30; S_GK = 31; S_MW2 = 32; S_MT2 = 33; S_NT = 34; S_TRIP = 35
    S_KAA = 36; S_KBB = 37; S_MB0 = 38; S_T = 39; S_T2 = 40; S_T3 = 41; S_PC = 42; S_P = 44; S_KA0 = 45; S_WOL = 46; S_WOH = 47; S_SZ = 48; S_CNT = 49
    V_AB = 0
    V_W = V_AB + NBUF * 16
    V_AC = V_W + 64
    V_XR = V_AC + 32
    V_AA = V_XR + 8
    V_DBB = V_AA + 2
    V_RBB = V_DBB + 2
    T = V_RBB + 8
    VL = T + 14; VT = T + 15; VG = T + 16
    global G2_VGPRS
    G2_VGPRS = 256 if STAMP else VG + 2
    def ab(u, tb, kk): return V_AB + u * 16 + (tb * 2 + kk) * 4
    def w(par, s, kk): return V_W + par * 32 + (s * 2 + kk) * 4
    def ac(s, tb): return V_AC + (s * 2 + tb) * 4
    a.raw("""
.globl g2_kernel
.p2align 8
.type g2_kernel,@function
g2_kernel:""")
    a(f"""
    s_cmp_ge_u32 s2, 256
    s_cbranch_scc1 g2_exit
    s_load_dwordx2 s[{S_XP}:{S_XP+1}], s[0:1], 0
    s_load_dwordx2 s[{S_WO}:{S_WO+1}], s[0:1], 16
    s_load_dwordx2 s[{S_W2}:{S_W2+1}], s[0:1], 40
    s_load_dwordx2 s[{S_OUTP}:{S_OUTP+1}], s[0:1], 48
    s_load_dwordx2 s[{S_WSP}:{S_WSP+1}], s[0:1], 64
    v_and_b32 v{VL}, 63, v0
    v_lshrrev_b32 v{T}, 6, v0
    v_and_b32 v{VT}, 15, v0
    v_readfirstlane_b32 s{S_WV}, v{T}
    v_bfe_u32 v{VG}, v0, 4, 2
    """)
    if STAMP: a(f"v_mov_b32 v{V_STAMP}, 0")
    stamp_now(a, 32); stamp_now(a, 50, True)
    npf = 0
    if "nocodepf" not in OPTS:
        code_prefetch(a, T + 12, VL, S_PC, "g2_kernel", "g2_exit", 4096, VG + 1); npf = 1
    a(f"""
    s_and_b32 s{S_T}, s2, 7
    s_lshr_b32 s{S_T2}, s2, 3
    s_lshr_b32 s{S_MT2}, s{S_T}, 1
    s_lshl_b32 s{S_MT2}, s{S_MT2}, 2
    s_and_b32 s{S_T3}, s{S_T2}, 3
    s_add_u32 s{S_MT2}, s{S_MT2}, s{S_T3}     ; mt 0..15
    s_and_b32 s{S_NT}, s{S_T}, 1
    s_lshl_b32 s{S_NT}, s{S_NT}, 3
    s_lshr_b32 s{S_T2}, s{S_T2}, 2
    s_add_u32 s{S_NT}, s{S_NT}, s{S_T2}       ; nt 0..15
    s_lshr_b32 s{S_GK}, s{S_WV}, 2
    s_and_b32 s{S_MW2}, s{S_WV}, 3
    ; A voffsets
    s_lshl_b32 s{S_T}, s{S_MT2}, 3
    s_lshl_b32 s{S_T2}, s{S_MW2}, 1
    s_add_u32 s{S_T}, s{S_T}, s{S_T2}         ; mblk0
    s_mul_i32 s{S_T}, s{S_T}, {MBLK_PITCH}
    v_lshl_add_u32 v{V_AA}, v{VL}, 4, s{S_T}
    v_add_u32 v{V_AA+1}, {MBLK_PITCH}, v{V_AA}
    s_lshl_b32 s{S_KAA}, s{S_GK}, 11          ; K-step * 2048
    v_lshrrev_b32 v{T}, 3, v{VL}
    s_lshl_b32 s{S_T}, s{S_WV}, 4
    v_add_u32 v{T+1}, s{S_T}, v{T}            ; row (e=0)
    v_lshlrev_b32 v{T+1}, 11, v{T+1}
    s_lshl_b32 s{S_T}, s{S_NT}, 7
    v_add_u32 v{T+1}, s{S_T}, v{T+1}
    v_and_b32 v{T+2}, 1, v{VL}
    v_lshl_add_u32 v{T+1}, v{T+2}, 4, v{T+1}  ; + (c'&1)*16
    v_bfe_u32 v{T+2}, v{VL}, 1, 2             ; unit'
    v_bfe_u32 v{T+3}, v{VL}, 4, 1             ; bit1(l>>3)
    v_xor_b32 v{T+2}, v{T+2}, v{T+3}
    v_lshl_add_u32 v{V_DBB}, v{T+2}, 5, v{T+1}
    v_xor_b32 v{T+2}, 2, v{T+2}
    v_lshl_add_u32 v{V_DBB+1}, v{T+2}, 5, v{T+1}
    v_add_u32 v{V_DBB+1}, {8*2048}, v{V_DBB+1}
    s_lshl_b32 s{S_MB0}, s{S_WV}, 11
    s_mov_b32 s{S_KBB}, 0
    s_waitcnt lgkmcnt(0)
    s_mov_b32 s{SRD_A}, s{S_WSP}
    s_and_b32 s{SRD_A+1}, s{S_WSP+1}, 0xffff
    s_mov_b32 s{SRD_A+2}, {A2_BYTES}
    s_mov_b32 s{SRD_A+3}, 0x20000
    s_mov_b32 s{SRD_B}, s{S_WO}
    s_and_b32 s{SRD_B+1}, s{S_WO+1}, 0xffff
    s_mov_b32 s{SRD_B+2}, {1024*2048}
    s_mov_b32 s{SRD_B+3}, 0x20000
    """)
    def prefetch(u):
        for e in range(2):
            if "g2noB" in OPTS:
                a(f"buffer_load_dword v{T+12}, off, {sr(SRD_B,4)}, 0")
                continue
            a(f"""
            s_add_u32 m0, s{S_MB0}, {u*16384 + e*1024}
            s_nop 0
            buffer_load_dwordx4 v{V_DBB+e}, {sr(SRD_B,4)}, s{S_KBB} offen {NTB}lds
            """)
        for tb in range(2):
            for kk in range(2):
                if "g2noA" in OPTS:
                    a(f"buffer_load_dword v{T+12}, off, {sr(SRD_B,4)}, 0")
                    continue
                a(f"buffer_load_dwordx4 {vr(ab(u,tb,kk))}, v{V_AA+tb}, {sr(SRD_A,4)}, s{S_KAA} offen offset:{kk*1024}" + (" nt" if "g2ntA" in OPTS else ""))
        advance()
    def advance():
        a(f"""
        s_add_u32 s{S_P}, s{S_P}, 1
        s_cmp_eq_u32 s{S_P}, 36
        s_cselect_b32 s{S_P}, 0, s{S_P}
        s_add_u32 s{S_CNT}, s{S_CNT}, 1
        """)
        setpos()
    def setpos():
        a(f"""
        s_lshl_b32 s{S_KAA}, s{S_P}, 12
        s_add_u32 s{S_KAA}, s{S_KAA}, s{S_KA0}
        s_cmp_lt_u32 s{S_P}, 8
        s_cselect_b32 s{SRD_B}, s{S_WOL}, s{S_W2}
        s_cselect_b32 s{SRD_B+1}, s{S_WOH}, s{S_W2+1}
        s_cselect_b32 s{SRD_B+2}, {1024*2048}, s{S_SZ}
        s_cselect_b32 s{S_T}, 0, 8
        s_sub_u32 s{S_T}, s{S_P}, s{S_T}
        s_lshl_b32 s{S_KBB}, s{S_T}, 18
        s_cmp_ge_u32 s{S_CNT}, 36
        s_cselect_b32 s{SRD_B+2}, 0, s{SRD_B+2}
        s_cselect_b32 s{SRD_A+2}, 0, s{SRD_A+2}
        s_cselect_b32 s{S_MB0}, {G2_LDS}, s{S_MB0}
        """)
    rotmul = (1, 2)
    for o in OPTS:
        if o.startswith("rot="): rotmul = tuple(int(x) for x in o[4:].split(","))
    a(f"""
    s_and_b32 s{S_W2+1}, s{S_W2+1}, 0xffff
    s_mov_b32 s{S_WOL}, s{S_WO}
    s_and_b32 s{S_WOH}, s{S_WO+1}, 0xffff
    s_mov_b32 s{S_SZ}, {3584*2048}
    s_mov_b32 s{S_KA0}, s{S_KAA}
    s_mov_b32 s{S_CNT}, 0
    s_and_b32 s{S_T}, s{S_NT}, 7
    s_mul_i32 s{S_T}, s{S_T}, {rotmul[0]}
    s_and_b32 s{S_T2}, s{S_MT2}, 3
    s_mul_i32 s{S_T2}, s{S_T2}, {rotmul[1]}
    s_add_u32 s{S_P}, s{S_T}, s{S_T2}
    """)
    setpos()
    if "g2tlb" in OPTS:
        a(f"""
        s_lshr_b32 s{S_T}, s2, 3
        s_lshl_b32 s{S_T}, s{S_T}, 3
        s_add_u32 s{S_T}, s{S_T}, s{S_WV}          ; j
        s_lshl_b32 s{S_T2}, s{S_T}, 18             ; j*64 pages*4096
        v_lshl_add_u32 v{T+12}, v{VL}, 12, s{S_T2}
        s_cmp_lt_u32 s{S_T}, 18
        s_cbranch_scc0 g2_tlb1
        s_and_b32 s{S_T3}, s{S_MT2}, 12
        s_mul_i32 s{S_T3}, s{S_T3}, {8*MBLK_PITCH}
        buffer_load_dword v{T+13}, v{T+12}, {sr(SRD_A,4)}, s{S_T3} offen
        s_branch g2_tlb3
        """)
        a.label("g2_tlb1")
        a(f"""
        s_cmp_lt_u32 s{S_T}, 26
        s_cbranch_scc0 g2_tlb2
        v_subrev_u32 v{T+12}, {18<<18}, v{T+12}
        global_load_dword v{T+13}, v{T+12}, s[{S_WO}:{S_WO+1}]
        s_branch g2_tlb3
        """)
        a.label("g2_tlb2")
        a(f"""
        s_cmp_lt_u32 s{S_T}, 54
        s_cbranch_scc0 g2_tlb3
        v_subrev_u32 v{T+12}, {26<<18}, v{T+12}
        global_load_dword v{T+13}, v{T+12}, s[{S_W2}:{S_W2+1}]
        """)
        a.label("g2_tlb3")
    for u in range(D):
        prefetch(u)
    V_XA = T + 4; V_OA = T + 5
    a(f"""
    s_mov_b32 s{SRD_XX}, s{S_XP}
    s_and_b32 s{SRD_XX+1}, s{S_XP+1}, 0xffff
    s_mov_b32 s{SRD_XX+2}, {2048*2048}
    s_mov_b32 s{SRD_XX+3}, 0x20000
    s_mov_b32 s{SRD_OUT}, s{S_OUTP}
    s_and_b32 s{SRD_OUT+1}, s{S_OUTP+1}, 0xffff
    s_mov_b32 s{SRD_OUT+2}, {2048*2048}
    s_mov_b32 s{SRD_OUT+3}, 0x20000
    v_lshrrev_b32 v{T}, 2, v{VT}              ; r
    v_lshl_add_u32 v{T+1}, v{VG}, 3, v{T}
    v_lshlrev_b32 v{T+1}, 7, v{T+1}
    s_lshl_b32 s{S_T}, s{S_GK}, 13
    v_add_u32 v{T+1}, s{S_T}, v{T+1}
    v_and_b32 v{T+2}, 3, v{VL}
    v_lshl_add_u32 v{T+1}, v{T+2}, 3, v{T+1}
    v_and_b32 v{T+2}, 1, v{VG}
    v_lshrrev_b32 v{T+3}, 1, v{T}
    v_lshl_or_b32 v{T+2}, v{T+2}, 1, v{T+3}   ; f
    s_lshl_b32 s{S_T}, s{S_GK}, 1
    v_xor_b32 v{T+2}, s{S_T}, v{T+2}          ; f ^ 2Gk
    """)
    for s in range(4):
        a(f"""
        v_xor_b32 v{T+3}, {s}, v{T+2}
        v_lshl_add_u32 v{V_RBB+s}, v{T+3}, 5, v{T+1}
        v_add_u32 v{V_RBB+4+s}, 0xc000, v{V_RBB+s}
        """)
    a(f"""
    s_lshl_b32 s{S_T}, s{S_MT2}, 7
    s_lshl_b32 s{S_T2}, s{S_MW2}, 5
    s_add_u32 s{S_T}, s{S_T}, s{S_T2}
    v_add_u32 v{T}, s{S_T}, v{VT}
    v_lshlrev_b32 v{T}, 11, v{T}
    s_lshl_b32 s{S_T}, s{S_NT}, 7
    s_lshl_b32 s{S_T2}, s{S_GK}, 6
    s_add_u32 s{S_T}, s{S_T}, s{S_T2}
    v_add_u32 v{T}, s{S_T}, v{T}
    v_lshl_add_u32 v{V_XA}, v{VG}, 3, v{T}    ; + g*8
    v_and_b32 v{T+1}, 1, v{VG}
    v_lshrrev_b32 v{T+2}, 1, v{VG}
    v_lshl_or_b32 v{T+1}, v{T+1}, 1, v{T+2}   ; sigma
    v_lshl_add_u32 v{V_OA}, v{T+1}, 4, v{T}
    """)
    for r in range(V_AC, V_AC + 32):
        a(f"v_mov_b32 v{r}, 0")
    def reads(u, par):
        hi = 4 if u >= 3 else 0
        uo = (u - 3 if u >= 3 else u) * 16384
        for kk in range(2):
            for s in range(4):
                for h in range(2):
                    if "g2nocomp" in OPTS: continue
                    a(f"ds_read_b64_tr_b16 {vr(w(par,s,kk)+2*h,2)}, v{V_RBB+hi+s} offset:{uo + kk*4096 + h*512}")
    a(f"""
    s_mov_b32 s{S_TRIP}, 0
    s_waitcnt vmcnt({4 + 6*(D-1)})
    s_barrier
    """)
    reads(0, 0)
    stamp_now(a, 33)
    def body(u):
        par = u & 1
        a(f"""
        s_waitcnt vmcnt({4 + 6*(D-2)})
        s_barrier
        """)
        prefetch((u + D) % NBUF)
        a("s_waitcnt lgkmcnt(0)")
        reads((u + 1) % NBUF, par ^ 1)
        for kk in range(2):
            for s in range(4):
                for tb in range(2):
                    if "g2nocomp" in OPTS: continue
                    a(f"v_mfma_f32_16x16x32_bf16 {vr(ac(s,tb))}, {vr(w(par,s,kk))}, {vr(ab(u,tb,kk))}, {vr(ac(s,tb))}")
    a.raw(".p2align 6")
    a.label("g2_loop")
    for u in range(NBUF):
        body(u)
    a(f"""
    s_add_u32 s{S_TRIP}, s{S_TRIP}, 1
    s_cmp_lt_u32 s{S_TRIP}, {36 // NBUF}
    s_cbranch_scc1 g2_loop
    s_mov_b32 s{S_T}, {16*2048}
    """)
    stamp_now(a, 34)
    for tb in range(2):
        for e in range(2):
            so = "0" if tb == 0 else f"s{S_T}"
            a(f"buffer_load_dwordx2 {vr(V_XR+(tb*2+e)*2,2)}, v{V_XA}, {sr(SRD_XX,4)}, {so} offen offset:{e*32}")
    a(f"""
    s_waitcnt vmcnt(4) lgkmcnt(0)
    s_barrier
    s_lshl_b32 s{S_T}, s{S_WV}, 12
    v_lshl_add_u32 v{T}, v{VL}, 4, s{S_T}
    v_xor_b32 v{T+1}, 16384, v{T}
    """)
    for s in range(2):
        for tb in range(2):
            a(f"ds_write_b128 v{T}, {vr(ac(2+s,tb))} offset:{(s*2+tb)*1024}")
    a("""
    s_waitcnt lgkmcnt(0)
    s_barrier
    """)
    for s in range(2):
        for tb in range(2):
            a(f"ds_read_b128 {vr(V_W+(s*2+tb)*4)}, v{T+1} offset:{(s*2+tb)*1024}")
    a("s_waitcnt vmcnt(0) lgkmcnt(0)")
    for tb in range(2):
        o = V_AB + tb * 4
        for s in range(2):
            c = ac(s, tb); p = V_W + (s * 2 + tb) * 4; xr = V_XR + (tb * 2 + s) * 2
            a(f"""
            v_lshlrev_b32 v{T+8}, 16, v{xr}
            v_and_b32 v{T+9}, 0xffff0000, v{xr}
            v_lshlrev_b32 v{T+10}, 16, v{xr+1}
            v_and_b32 v{T+11}, 0xffff0000, v{xr+1}
            v_pk_add_f32 {vr(c,2)}, {vr(c,2)}, {vr(p,2)}
            v_pk_add_f32 {vr(c+2,2)}, {vr(c+2,2)}, {vr(p+2,2)}
            v_pk_add_f32 {vr(c,2)}, {vr(c,2)}, {vr(T+8,2)}
            v_pk_add_f32 {vr(c+2,2)}, {vr(c+2,2)}, {vr(T+10,2)}
            v_cvt_pk_bf16_f32 v{o+2*s}, v{c}, v{c+1}
            v_cvt_pk_bf16_f32 v{o+2*s+1}, v{c+2}, v{c+3}
            """)
        so = "0" if tb == 0 else f"s{S_T2}"
        a(f"""
        s_mov_b32 s{S_T2}, {16*2048}
        s_nop 0
        v_permlane16_swap_b32 v{o}, v{o+2}
        v_permlane16_swap_b32 v{o+1}, v{o+3}
        s_nop 1
        buffer_store_dwordx4 {vr(o)}, v{V_OA}, {sr(SRD_OUT,4)}, {so} offen
        """)
    stamp_now(a, 51, True)
    stamp_dump(a, S_WSP, S_WV, 40 << 20)
    a.label("g2_exit")
    a("s_endpgm")

C_ASLOT = 16384; C_NA = 3
C_BSLOT = 16384; C_NBS = 4
C_BBASE = 2 * C_NA * C_ASLOT
G2C_LDS = C_BBASE + C_NBS * C_BSLOT
SLAB_OFF = 64 << 20
FLAG_OFF = 30 << 20
SLAB_BYTES = 64 * 4 * 131072
NKS = 18
PUBF = "sc1" if "pubsc1" in OPTS else ("sc0 sc1 nt" if "pubnt" in OPTS else "sc0 sc1")
GETF = "sc1" if "pubsc1" in OPTS else "sc0 sc1"
def gen_g2c(a):
    XF = 64; WF = 96
    def acc(c, t): return (c * 4 + t) * 4
    def xf(t, kk): return XF + (t * 2 + kk) * 4
    def wf(c, kk): return WF + (c * 2 + kk) * 4
    V_RA = 128; V_RB = 129; V_DA = 133; V_DB = 134; VL = 135; VT = 136; VG = 137; T = 138
    VPF = 152; VH = 153; VHA = 154; VHL = 156
    S_XP = 4; S_WO = 6; S_W2 = 8; S_OUTP = 10; S_DBG = 28; S_WSP = 30
    SRD_A = 12; SRD_B = 16; SRD_S = 20; SRD_X = 24; SRD_O = 32; SRD_F = 36
    S_WV = 40; S_MW = 41; S_NW = 42; S_WQ = 43; S_MT = 44; S_NT = 45; S_KQ = 46; S_J = 47
    S_KA = 48; S_PA = 49; S_PB = 50; S_MA = 51; S_MB = 52; S_MAE = 53; S_MBE = 54; S_ASL = 55; S_BSL = 56
    S_RAS = 57; S_RBS = 58; S_T = 59; S_T2 = 60; S_T3 = 61; S_KB = 62; S_SZ2 = 63; S_CUR = 64; S_DONE = 65
    S_TILE = 66; S_G = 67; S_CNT = 68; S_ARR = 69; S_PC = 70; S_DA = 72; S_DB = 73; S_Q = 74; S_ASZ = 75; S_XCC = 76; S_FB = 77; S_LOC = 78
    a.raw("""
.globl g2_kernel
.p2align 8
.type g2_kernel,@function
g2_kernel:""")
    a(f"""
    s_cmp_ge_u32 s2, 256
    s_cbranch_scc1 g2_exit
    s_load_dwordx2 s[{S_XP}:{S_XP+1}], s[0:1], 0
    s_load_dwordx2 s[{S_WO}:{S_WO+1}], s[0:1], 16
    s_load_dwordx4 s[{S_W2}:{S_W2+3}], s[0:1], 40      ; w2, out
    s_load_dwordx4 s[{S_DBG}:{S_DBG+3}], s[0:1], 56
    v_and_b32 v{VL}, 63, v0
    v_lshrrev_b32 v{T}, 6, v0
    v_and_b32 v{VT}, 15, v0
    v_readfirstlane_b32 s{S_WV}, v{T}
    v_bfe_u32 v{VG}, v0, 4, 2
    """)
    if STAMP: a(f"v_mov_b32 v{V_STAMP}, 0")
    stamp_now(a, 32); stamp_now(a, 50, True)
    a(f"""
    s_nop 2
    s_cmp_lg_u32 s{S_WV}, 7
    s_cbranch_scc1 g2_nopf
    """)
    code_prefetch(a, T, VL, S_PC, "g2_kernel", "g2_exit", 8192, VPF)
    a.label("g2_nopf")
    a(f"""
    s_and_b32 s{S_KQ}, s2, 3
    s_bfe_u32 s{S_T}, s2, 0x10002             ; M half
    s_lshr_b32 s{S_T2}, s2, 3                 ; idx
    s_and_b32 s{S_MT}, s{S_T2}, 3
    s_lshl_b32 s{S_T}, s{S_T}, 2
    s_add_u32 s{S_MT}, s{S_MT}, s{S_T}        ; mt 0..7
    s_lshr_b32 s{S_NT}, s{S_T2}, 2            ; nt 0..7
    s_lshl_b32 s{S_TILE}, s{S_MT}, 3
    s_add_u32 s{S_TILE}, s{S_TILE}, s{S_NT}
    s_lshr_b32 s{S_G}, s{S_WV}, 2
    s_and_b32 s{S_WQ}, s{S_WV}, 3
    s_and_b32 s{S_NW}, s{S_WV}, 1
    s_bfe_u32 s{S_MW}, s{S_WV}, 0x10001
    s_lshr_b32 s{S_Q}, s{S_WV}, 1
    s_xor_b32 s{S_T}, s{S_G}, 1
    s_lshl_b32 s{S_T2}, s{S_T}, 3
    s_lshl_b32 s{S_T3}, s{S_MT}, 4
    s_add_u32 s{S_T2}, s{S_T2}, s{S_T3}
    s_lshl_b32 s{S_T3}, s{S_WQ}, 1
    s_add_u32 s{S_T2}, s{S_T2}, s{S_T3}
    s_mul_i32 s{S_T2}, s{S_T2}, {MBLK_PITCH}
    v_lshl_add_u32 v{V_DA}, v{VL}, 4, s{S_T2}
    s_mul_i32 s{S_DA}, s{S_T}, {C_NA*C_ASLOT}
    s_lshl_b32 s{S_T3}, s{S_WQ}, 12
    s_add_u32 s{S_DA}, s{S_DA}, s{S_T3}
    v_lshrrev_b32 v{T}, 4, v{VL}
    s_lshl_b32 s{S_T}, s{S_WV}, 3
    v_add_u32 v{T+1}, s{S_T}, v{T}
    v_lshlrev_b32 v{T+1}, 11, v{T+1}
    s_lshl_b32 s{S_T}, s{S_NT}, 8
    v_add_u32 v{T+1}, s{S_T}, v{T+1}
    v_and_b32 v{T+2}, 1, v{VL}
    v_lshl_add_u32 v{T+1}, v{T+2}, 4, v{T+1}
    v_bfe_u32 v{T+2}, v{VL}, 1, 3
    s_lshl_b32 s{S_T}, s{S_NW}, 2
    v_or_b32 v{T}, s{S_T}, v{T}
    v_xor_b32 v{T+2}, v{T+2}, v{T}
    v_lshl_add_u32 v{V_DB}, v{T+2}, 5, v{T+1}
    s_lshl_b32 s{S_DB}, s{S_WV}, 11
    s_add_u32 s{S_DB}, s{S_DB}, {C_BBASE}
    s_waitcnt lgkmcnt(0)
    s_mov_b32 s{SRD_A}, s{S_WSP}
    s_and_b32 s{SRD_A+1}, s{S_WSP+1}, 0xffff
    s_mov_b32 s{SRD_A+3}, 0x20000
    s_mov_b32 s{SRD_B+3}, 0x20000
    s_and_b32 s{S_WO+1}, s{S_WO+1}, 0xffff
    s_and_b32 s{S_W2+1}, s{S_W2+1}, 0xffff
    s_mov_b32 s{S_SZ2}, {3584*2048}
    s_mov_b32 s{S_ASZ}, {A2_BYTES}
    s_mov_b32 s{S_CUR}, s{S_KQ}
    s_lshl_b32 s{S_DONE}, s{S_KQ}, 3
    s_lshl_b32 s{S_DONE}, 1, s{S_DONE}
    s_mov_b32 s{S_ARR}, 0
    s_mov_b32 s{S_LOC}, 0
    s_add_u32 s{SRD_S}, s{S_WSP}, {SLAB_OFF}
    s_addc_u32 s{SRD_S+1}, s{S_WSP+1}, 0
    s_and_b32 s{SRD_S+1}, s{SRD_S+1}, 0xffff
    s_mov_b32 s{SRD_S+2}, {SLAB_BYTES}
    s_mov_b32 s{SRD_S+3}, 0x20000
    s_add_u32 s{SRD_F}, s{S_WSP}, {FLAG_OFF}
    s_addc_u32 s{SRD_F+1}, s{S_WSP+1}, 0
    s_and_b32 s{SRD_F+1}, s{SRD_F+1}, 0xffff
    s_mov_b32 s{SRD_F+2}, {64*128}
    s_mov_b32 s{SRD_F+3}, 0x20000
    s_lshl_b32 s{S_FB}, s{S_TILE}, 7
    s_mov_b32 s{SRD_X}, s{S_XP}
    s_and_b32 s{SRD_X+1}, s{S_XP+1}, 0xffff
    s_mov_b32 s{SRD_X+2}, {2048*2048}
    s_mov_b32 s{SRD_X+3}, 0x20000
    s_mov_b32 s{SRD_O}, s{S_OUTP}
    s_and_b32 s{SRD_O+1}, s{S_OUTP+1}, 0xffff
    s_mov_b32 s{SRD_O+2}, {2048*2048}
    s_mov_b32 s{SRD_O+3}, 0x20000
    """)
    for r in range(64):
        a(f"v_mov_b32 v{r}, 0")
    def setA():
        a(f"""
        s_mul_i32 s{S_T}, s{S_CUR}, {NKS}
        s_add_u32 s{S_T}, s{S_T}, s{S_PA}
        s_lshl_b32 s{S_KA}, s{S_T}, 11
        s_cmp_ge_u32 s{S_PA}, {NKS}
        s_cselect_b32 s{SRD_A+2}, 0, s{S_ASZ}
        s_cselect_b32 s{S_MAE}, {LDS_DUMP}, s{S_MA}
        """)
    def setB():
        a(f"""
        s_mul_i32 s{S_T}, s{S_CUR}, {NKS}
        s_add_u32 s{S_T}, s{S_T}, s{S_PB}
        s_cmp_lt_u32 s{S_T}, 16
        s_cselect_b32 s{SRD_B}, s{S_WO}, s{S_W2}
        s_cselect_b32 s{SRD_B+1}, s{S_WO+1}, s{S_W2+1}
        s_cselect_b32 s{SRD_B+2}, {1024*2048}, s{S_SZ2}
        s_cselect_b32 s{S_T2}, 0, 16
        s_sub_u32 s{S_T}, s{S_T}, s{S_T2}
        s_lshl_b32 s{S_KB}, s{S_T}, 17
        s_cmp_ge_u32 s{S_PB}, {NKS}
        s_cselect_b32 s{SRD_B+2}, 0, s{SRD_B+2}
        s_cselect_b32 s{S_MBE}, {LDS_DUMP}, s{S_MB}
        """)
    def dmaA_list():
        L = []
        for e in range(2):
            L.append(f"""
            s_add_u32 m0, s{S_MAE}, {e*2048}
            s_add_u32 s{S_T3}, s{S_KA}, {e*MBLK_PITCH}
            buffer_load_dwordx4 v{V_DA}, {sr(SRD_A,4)}, s{S_T3} offen lds
            """)
            L.append(f"buffer_load_dwordx4 v{V_DA}, {sr(SRD_A,4)}, s{S_T3} offen offset:1024 lds")
        return L
    def dmaB_list():
        L = []
        for e in range(2):
            L.append(f"""
            s_add_u32 m0, s{S_MBE}, {e*1024}
            s_add_u32 s{S_T3}, s{S_KB}, {e*8192}
            buffer_load_dwordx4 v{V_DB}, {sr(SRD_B,4)}, s{S_T3} offen lds
            """)
        return L
    def advA():
        a(f"""
        s_add_u32 s{S_PA}, s{S_PA}, 1
        s_add_u32 s{S_ASL}, s{S_ASL}, 1
        s_add_u32 s{S_MA}, s{S_MA}, {C_ASLOT}
        s_cmp_eq_u32 s{S_ASL}, {C_NA}
        s_cselect_b32 s{S_ASL}, 0, s{S_ASL}
        s_cselect_b32 s{S_MA}, s{S_DA}, s{S_MA}
        """)
        setA()
    def advB():
        a(f"""
        s_add_u32 s{S_PB}, s{S_PB}, 1
        s_add_u32 s{S_BSL}, s{S_BSL}, 1
        s_add_u32 s{S_MB}, s{S_MB}, {C_BSLOT}
        s_cmp_eq_u32 s{S_BSL}, {C_NBS}
        s_cselect_b32 s{S_BSL}, 0, s{S_BSL}
        s_cselect_b32 s{S_MB}, s{S_DB}, s{S_MB}
        """)
        setB()
    def doA():
        for d in dmaA_list(): a(d)
        advA()
    def doB():
        for d in dmaB_list(): a(d)
        advB()
    a.label("g2_gemm")
    a(f"""
    s_mov_b32 s{S_PA}, 0
    s_mov_b32 s{S_PB}, 0
    s_mov_b32 s{S_ASL}, 0
    s_mov_b32 s{S_BSL}, 0
    s_mov_b32 s{S_MA}, s{S_DA}
    s_mov_b32 s{S_MB}, s{S_DB}
    """)
    setA(); setB()
    a(f"""
    s_cmp_eq_u32 s{S_G}, 0
    s_cbranch_scc0 g2_pro1
    """)
    doB(); doA(); doB(); doA(); doB()
    a("s_branch g2_pro2")
    a.label("g2_pro1")
    doA(); doB(); doA(); doB(); doA(); doB()
    a.label("g2_pro2")
    a(f"""
    s_mul_i32 s{S_T}, s{S_G}, {C_NA*C_ASLOT}
    s_lshl_b32 s{S_T2}, s{S_MW}, 13
    s_add_u32 s{S_T}, s{S_T}, s{S_T2}
    v_lshl_add_u32 v{V_RA}, v{VL}, 4, s{S_T}
    v_lshrrev_b32 v{T}, 2, v{VT}              ; r
    v_lshl_add_u32 v{T+1}, v{VG}, 3, v{T}
    v_lshlrev_b32 v{T+1}, 8, v{T+1}
    v_and_b32 v{T+2}, 3, v{VL}
    v_lshl_add_u32 v{T+1}, v{T+2}, 3, v{T+1}
    v_add_u32 v{T+1}, {C_BBASE}, v{T+1}
    v_and_b32 v{T+2}, 1, v{VG}
    v_lshl_or_b32 v{T+2}, v{T+2}, 2, v{T}     ; f = r | (g&1)<<2
    s_lshl_b32 s{S_T}, s{S_NW}, 2
    v_xor_b32 v{T+2}, s{S_T}, v{T+2}
    """)
    for c in range(4):
        a(f"""
        v_xor_b32 v{T+3}, {c}, v{T+2}
        v_lshl_add_u32 v{V_RB+c}, v{T+3}, 5, v{T+1}
        """)
    a(f"""
    s_mov_b32 s{S_J}, 0
    s_mov_b32 s{S_RAS}, 0
    s_mov_b32 s{S_RBS}, 0
    s_waitcnt vmcnt(12)
    s_barrier
    """)
    stamp_now(a, 33)
    a(f"""
    s_cmp_eq_u32 s{S_G}, 0
    s_cbranch_scc1 g2_loop
    s_barrier
    """)
    reads = []
    for kk in range(2):
        for t in range(4):
            reads.append(f"ds_read_b128 {vr(xf(t,kk))}, v{V_RA} offset:{(t*2+kk)*1024}")
        for c in range(4):
            for h in range(2):
                reads.append(f"ds_read_b64_tr_b16 {vr(wf(c,kk)+2*h,2)}, v{V_RB+c} offset:{(32*kk+4*h)*256}")
    a.raw(".p2align 6")
    a.label("g2_loop")
    dl = dmaA_list() + dmaB_list()
    di = 0
    for n_, r in enumerate(reads):
        a(r)
        if n_ % 4 == 1 and di < len(dl):
            a(dl[di]); di += 1
    assert di == len(dl)
    a("""
    s_waitcnt vmcnt(12) lgkmcnt(0)
    s_barrier
    s_setprio 1
    """)
    real = a; a = bk = Collect()
    def _adv():
        pass
    bk(f"""
    s_add_u32 s{S_PA}, s{S_PA}, 1
    s_add_u32 s{S_ASL}, s{S_ASL}, 1
    s_add_u32 s{S_MA}, s{S_MA}, {C_ASLOT}
    s_cmp_eq_u32 s{S_ASL}, {C_NA}
    s_cselect_b32 s{S_ASL}, 0, s{S_ASL}
    s_cselect_b32 s{S_MA}, s{S_DA}, s{S_MA}
    s_add_u32 s{S_KA}, s{S_KA}, 2048
    s_cmp_ge_u32 s{S_PA}, {NKS}
    s_cselect_b32 s{SRD_A+2}, 0, s{S_ASZ}
    s_cselect_b32 s{S_MAE}, {LDS_DUMP}, s{S_MA}
    s_add_u32 s{S_PB}, s{S_PB}, 1
    s_add_u32 s{S_BSL}, s{S_BSL}, 1
    s_add_u32 s{S_MB}, s{S_MB}, {C_BSLOT}
    s_cmp_eq_u32 s{S_BSL}, {C_NBS}
    s_cselect_b32 s{S_BSL}, 0, s{S_BSL}
    s_cselect_b32 s{S_MB}, s{S_DB}, s{S_MB}
    s_add_u32 s{S_KB}, s{S_KB}, {1<<17}
    s_lshl_b32 s{S_T}, s{S_CUR}, 8
    s_add_u32 s{S_T}, s{S_T}, s{S_PB}
    s_cmp_eq_u32 s{S_T}, 16
    s_cselect_b32 s{SRD_B}, s{S_W2}, s{SRD_B}
    s_cselect_b32 s{SRD_B+1}, s{S_W2+1}, s{SRD_B+1}
    s_cselect_b32 s{SRD_B+2}, s{S_SZ2}, s{SRD_B+2}
    s_cselect_b32 s{S_KB}, 0, s{S_KB}
    s_cmp_ge_u32 s{S_PB}, {NKS}
    s_cselect_b32 s{SRD_B+2}, 0, s{SRD_B+2}
    s_cselect_b32 s{S_MBE}, {LDS_DUMP}, s{S_MB}
    s_add_u32 s{S_RAS}, s{S_RAS}, 1
    s_cmp_eq_u32 s{S_RAS}, {C_NA}
    s_cselect_b32 s{S_RAS}, 0, s{S_RAS}
    s_cselect_b32 s{S_T}, {C_NA*C_ASLOT}, 0
    s_sub_u32 s{S_T}, {C_ASLOT}, s{S_T}
    v_add_u32 v{V_RA}, s{S_T}, v{V_RA}
    s_add_u32 s{S_RBS}, s{S_RBS}, 1
    s_cmp_eq_u32 s{S_RBS}, {C_NBS}
    s_cselect_b32 s{S_RBS}, 0, s{S_RBS}
    s_cselect_b32 s{S_T}, {C_NBS*C_BSLOT}, 0
    s_sub_u32 s{S_T}, {C_BSLOT}, s{S_T}
    """)
    for c in range(4):
        bk(f"v_add_u32 v{V_RB+c}, s{S_T}, v{V_RB+c}")
    a = real
    mf = []
    for kk in range(2):
        for c in range(4):
            for t in range(4):
                mf.append(f"v_mfma_f32_16x16x32_bf16 {vr(acc(c,t))}, {vr(wf(c,kk))}, {vr(xf(t,kk))}, {vr(acc(c,t))}")
    interleave(a, mf, bk.L, start=1, per=2)
    a(f"""
    s_setprio 0
    s_add_u32 s{S_J}, s{S_J}, 1
    s_lshl_b32 s{S_T}, s{S_G}, 8
    s_add_u32 s{S_T}, s{S_T}, s{S_J}
    s_cmp_eq_u32 s{S_T}, {256 + NKS}
    s_cbranch_scc1 g2_post
    s_cmp_lt_u32 s{S_J}, {NKS}
    s_barrier
    s_cbranch_scc1 g2_loop
    """)
    a.label("g2_post")
    stamp_now(a, 34)
    V_XR = XF; V_XA = T + 1; V_OA = T + 2; PK = WF
    a(f"""
    v_lshlrev_b32 v{T}, 4, v{VL}
    s_cmp_eq_u32 s{S_Q}, s{S_KQ}
    s_cbranch_scc1 g2_own
    s_cmp_eq_u32 s{S_CUR}, s{S_KQ}
    s_cbranch_scc0 g2_pub_done
    s_lshl_b32 s{S_T}, s{S_TILE}, 2
    s_add_u32 s{S_T}, s{S_T}, s{S_KQ}
    s_lshl_b32 s{S_T}, s{S_T}, 3
    s_add_u32 s{S_T}, s{S_T}, s{S_WV}
    s_lshl_b32 s{S_T}, s{S_T}, 13
    s_add_u32 s{S_T2}, s{S_T}, 4096
    """)
    for bp in range(8):
        o = PK + 4 * bp
        for h in range(2):
            b = acc(bp >> 1, (bp & 1) * 2 + h)
            a(f"""
            v_cvt_pk_bf16_f32 v{o+2*h}, v{b}, v{b+1}
            v_cvt_pk_bf16_f32 v{o+2*h+1}, v{b+2}, v{b+3}
            """)
        a(f"buffer_store_dwordx4 {vr(o)}, v{T}, {sr(SRD_S,4)}, s{S_T if bp < 4 else S_T2} offen offset:{(bp%4)*1024} sc0 sc1")
    a("s_branch g2_pub_done")
    a.label("g2_own")
    a(f"""
    s_lshl_b32 s{S_T}, s{S_NW}, 14
    v_add_u32 v{T+3}, s{S_T}, v{T}
    """)
    for b in range(16):
        a(f"ds_write_b128 v{T+3}, {vr(4*b)} offset:{b*1024}")
    a.label("g2_pub_done")
    a(f"""
    s_lshl_b32 s{S_T}, s{S_MT}, 8
    s_lshl_b32 s{S_T2}, s{S_KQ}, 6
    s_add_u32 s{S_T}, s{S_T}, s{S_T2}
    s_lshl_b32 s{S_T2}, s{S_G}, 5
    s_add_u32 s{S_T}, s{S_T}, s{S_T2}
    v_add_u32 v{T+3}, s{S_T}, v{VT}
    v_lshlrev_b32 v{T+3}, 11, v{T+3}
    s_lshl_b32 s{S_T}, s{S_NT}, 8
    s_lshl_b32 s{S_T2}, s{S_NW}, 7
    s_add_u32 s{S_T}, s{S_T}, s{S_T2}
    s_lshl_b32 s{S_T2}, s{S_MW}, 6
    s_add_u32 s{S_T}, s{S_T}, s{S_T2}
    v_add_u32 v{T+3}, s{S_T}, v{T+3}
    v_lshl_add_u32 v{V_XA}, v{VG}, 3, v{T+3}
    v_and_b32 v{T+4}, 1, v{VG}
    v_lshrrev_b32 v{T+5}, 1, v{VG}
    v_lshl_or_b32 v{T+4}, v{T+4}, 1, v{T+5}
    v_lshl_add_u32 v{V_OA}, v{T+4}, 4, v{T+3}
    s_mov_b32 s{S_T}, {16*2048}
    """)
    for t in range(2):
        for e in range(2):
            so = "0" if t == 0 else f"s{S_T}"
            a(f"buffer_load_dwordx2 {vr(V_XR+(t*2+e)*2,2)}, v{V_XA}, {sr(SRD_X,4)}, {so} offen offset:{e*32}")
    a("s_waitcnt vmcnt(4) lgkmcnt(0)")
    stamp_now(a, 36)
    a(f"""
    s_barrier
    s_cmp_eq_u32 s{S_CUR}, s{S_KQ}
    s_cbranch_scc0 g2_after_publish
    s_cmp_eq_u32 s{S_WV}, 0
    s_cbranch_scc0 g2_wait_done
    s_lshl_b32 s{S_T}, s{S_KQ}, 2
    v_mov_b32 v{T+3}, s{S_DONE}
    v_mov_b32 v{T+4}, s{S_T}
    s_mov_b64 exec, 1
    buffer_store_dword v{T+3}, v{T+4}, {sr(SRD_F,4)}, s{S_FB} offen sc0 sc1
    s_mov_b32 s{S_CNT}, 0
    """)
    a.label("g2_poll")
    a(f"""
    buffer_load_dwordx4 {vr(T+6)}, off, {sr(SRD_F,4)}, s{S_FB} sc0 sc1
    s_waitcnt vmcnt(0)
    v_or_b32 v{T+6}, v{T+6}, v{T+7}
    v_or3_b32 v{T+5}, v{T+6}, v{T+8}, v{T+9}
    s_add_u32 s{S_CNT}, s{S_CNT}, 1
    v_readfirstlane_b32 s{S_ARR}, v{T+5}
    s_nop 3
    s_cmp_eq_u32 s{S_ARR}, {0x77 if "forcefb" in OPTS else 0x01010101}
    s_cbranch_scc1 g2_poll_end
    s_cmp_lt_u32 s{S_CNT}, {64 if "forcefb" in OPTS else 20000}
    s_cbranch_scc1 g2_poll
    """)
    a.label("g2_poll_end")
    if STAMP:
        a(f"v_writelane_b32 v{V_STAMP}, s{S_CNT}, 39")
    if "forcefb" in OPTS:
        a(f"s_and_b32 s{S_ARR}, s{S_ARR}, 0x00010001")
    a(f"""
    v_mov_b32 v{T+5}, s{S_ARR}
    v_mov_b32 v{T+4}, {65536}
    ds_write_b32 v{T+4}, v{T+5}
    s_mov_b64 exec, -1
    s_waitcnt lgkmcnt(0)
    """)
    a.label("g2_wait_done")
    a(f"""
    s_barrier
    v_mov_b32 v{T+4}, {65536}
    ds_read_b32 v{T+5}, v{T+4}
    s_waitcnt lgkmcnt(0)
    v_readfirstlane_b32 s{S_ARR}, v{T+5}
    s_nop 3
    """)
    a.label("g2_after_publish")
    a(f"""
    s_or_b32 s{S_T}, s{S_ARR}, s{S_DONE}
    s_cmp_eq_u32 s{S_T}, 0x01010101
    s_cbranch_scc1 g2_final
    s_andn2_b32 s{S_T}, 0x01010101, s{S_T}
    s_ff1_i32_b32 s{S_T}, s{S_T}
    s_lshl_b32 s{S_T2}, 1, s{S_T}
    s_or_b32 s{S_DONE}, s{S_DONE}, s{S_T2}
    s_lshr_b32 s{S_CUR}, s{S_T}, 3
    s_waitcnt vmcnt(0)
    s_barrier
    s_branch g2_gemm
    """)
    a.label("g2_final")
    stamp_now(a, 35)
    R0 = WF
    a(f"""
    s_andn2_b32 s{S_ARR}, s{S_ARR}, s{S_DONE}
    s_lshl_b32 s{S_T}, s{S_MW}, 2
    s_add_u32 s{S_T}, s{S_T}, s{S_G}
    s_lshl_b32 s{S_T}, s{S_T}, 10             ; pair0 * 1024
    s_lshl_b32 s{S_T2}, s{S_NW}, 13
    s_add_u32 s{S_T3}, s{S_T}, s{S_T2}
    """)
    for src in range(4):
        a(f"""
        s_bitcmp1_b32 s{S_ARR}, {8*src}
        s_cbranch_scc1 g2_ld{src}
        """)
        for r in range(8):
            a(f"v_mov_b32 v{8*src+r}, 0")
        a(f"s_branch g2_ld{src}_done")
        a.label(f"g2_ld{src}")
        a(f"""
        s_lshl_b32 s{S_T}, s{S_TILE}, 2
        s_add_u32 s{S_T}, s{S_T}, {src}
        s_lshl_b32 s{S_T}, s{S_T}, 2
        s_add_u32 s{S_T}, s{S_T}, s{S_KQ}
        s_lshl_b32 s{S_T}, s{S_T}, 14
        s_add_u32 s{S_T}, s{S_T}, s{S_T3}
        """)
        for e in range(2):
            a(f"buffer_load_dwordx4 {vr(8*src+4*e)}, v{T}, {sr(SRD_S,4)}, s{S_T} offen offset:{e*2048} sc0 sc1")
        a.label(f"g2_ld{src}_done")
    a(f"""
    s_lshl_b32 s{S_T}, s{S_MW}, 3
    s_lshl_b32 s{S_T2}, s{S_G}, 1
    s_add_u32 s{S_T}, s{S_T}, s{S_T2}
    s_lshl_b32 s{S_T}, s{S_T}, 10
    s_lshl_b32 s{S_T2}, s{S_NW}, 14
    s_add_u32 s{S_T}, s{S_T}, s{S_T2}
    v_add_u32 v{T+3}, s{S_T}, v{T}
    """)
    for e in range(2):
        for t in range(2):
            a(f"ds_read_b128 {vr(R0+(e*2+t)*4)}, v{T+3} offset:{e*4096 + t*1024}")
    a("s_waitcnt vmcnt(0) lgkmcnt(0)")
    stamp_now(a, 37)
    for t in range(2):
        o = XF + 16 + t * 4
        for e in range(2):
            c = R0 + (e * 2 + t) * 4
            srcs = [8 * src + 4 * e + 2 * t for src in range(4)] + [V_XR + (t * 2 + e) * 2]
            for p in srcs:
                a(f"""
                v_lshlrev_b32 v{T+8}, 16, v{p}
                v_and_b32 v{T+9}, 0xffff0000, v{p}
                v_lshlrev_b32 v{T+10}, 16, v{p+1}
                v_and_b32 v{T+11}, 0xffff0000, v{p+1}
                v_pk_add_f32 {vr(c,2)}, {vr(c,2)}, {vr(T+8,2)}
                v_pk_add_f32 {vr(c+2,2)}, {vr(c+2,2)}, {vr(T+10,2)}
                """)
            a(f"""
            v_cvt_pk_bf16_f32 v{o+2*e}, v{c}, v{c+1}
            v_cvt_pk_bf16_f32 v{o+2*e+1}, v{c+2}, v{c+3}
            """)
        so = "0" if t == 0 else f"s{S_T2}"
        a(f"""
        s_mov_b32 s{S_T2}, {16*2048}
        s_nop 0
        v_permlane16_swap_b32 v{o}, v{o+2}
        v_permlane16_swap_b32 v{o+1}, v{o+3}
        s_nop 1
        buffer_store_dwordx4 {vr(o)}, v{V_OA}, {sr(SRD_O,4)}, {so} offen
        """)
    stamp_now(a, 51, True)
    stamp_dump(a, S_WSP, S_WV, 40 << 20)
    a.label("g2_exit")
    a("s_endpgm")
    global G2_VGPRS
    G2_VGPRS = 256 if STAMP else VPF + 1

HEADER = f"""; mblk_pitch={MBLK_PITCH}
; @launch kernel=k0_kernel grid=(256,1,1) block=(512,1,1) lds=0
; @launch kernel=g1_kernel grid=(256,1,1) block=(512,1,1) lds={G1_LDS}
; @launch kernel=g2_kernel grid=(256,1,1) block=(512,1,1) lds={G2_LDS if 'g2a' in OPTS else G2C_LDS}
.amdgcn_target "amdgcn-amd-amdhsa--gfx950"
.text
"""

def kd(name, vgpr, sgpr):
    return f"""
.amdhsa_kernel {name}
  .amdhsa_next_free_vgpr {vgpr}
  .amdhsa_next_free_sgpr {sgpr}
  .amdhsa_accum_offset {(vgpr + 3) // 4 * 4}
  .amdhsa_group_segment_fixed_size 0
  .amdhsa_kernarg_size 72
  .amdhsa_user_sgpr_count 2
  .amdhsa_user_sgpr_kernarg_segment_ptr 1
  .amdhsa_system_sgpr_workgroup_id_x 1
.end_amdhsa_kernel
"""

def main():
    global STAMP
    if "stamp" in sys.argv[2:]: STAMP = True
    a = Asm()
    gen_k0(a)
    gen_g1(a)
    (gen_g2 if 'g2a' in OPTS else gen_g2c)(a)
    s = HEADER + a.text() + '.section .rodata,"a"\n.p2align 6\n' + kd("k0_kernel", 64, 40) + ".p2align 6\n" + kd("g1_kernel", 256, 102) + ".p2align 6\n" + kd("g2_kernel", G2_VGPRS, 102 if STAMP else 80)
    out = sys.argv[1] if len(sys.argv) > 1 else OUT
    open(out, "w").write(s)

main()
```

```python
import sys

OUT = "parallel_sum__sliding_local_dilated__dense_activation_relu__prompt.s"

class Asm:
    def __init__(self):
        self.L = []
    def __call__(self, s):
        for line in s.strip("\n").split("\n"):
            line = line.strip()
            if line:
                self.L.append("    " + line)
    def label(self, n):
        self.L.append(n + ":")
    def raw(self, s):
        self.L.append(s)
    def text(self):
        return "\n".join(self.L) + "\n"

class Collect:
    def __init__(self): self.L = []
    def __call__(self, s):
        for line in s.strip("\n").split("\n"):
            line = line.strip()
            if line: self.L.append(line)

def interleave(a, mfmas, fillers, start=2, per=2):
    fi = 0
    for n, m in enumerate(mfmas):
        a(m)
        if n >= start:
            for _ in range(per):
                if fi < len(fillers):
                    a(fillers[fi]); fi += 1
    while fi < len(fillers):
        a(fillers[fi]); fi += 1

def vr(b, n=4):
    return "v[%d:%d]" % (b, b + n - 1)
def sr(b, n=2):
    return "s[%d:%d]" % (b, b + n - 1)

MBLK_PITCH = 144 * 1024
for _o in sys.argv[2:]:
    if _o.startswith("pitch="): MBLK_PITCH = int(_o[6:])
A2_BYTES = 128 * MBLK_PITCH

G1_ASLOT = 16384
G1_BBASE = 65536
G1_BSLOT = 28672
G1_HALO = 24576
G1_STAT = G1_BBASE + 3 * G1_BSLOT
G1_CS = G1_STAT + 272 * 8
G1_LDS = G1_STAT
XN_OFF = 24 << 20
AT_PITCH = 400

V_ACC = 0
V_HACC = 96
V_XF = 112
V_WF = 144
V_HF = 200
V_S1 = 208
V_S2 = 210
V_SH = 212
V_CS = 214
V_WD = 208
V_WV = 212
V_RA = 217
V_RB = 221
V_RH = 228
V_DA = 230
V_DB = 231
V_DH = 235
V_T = 236
V_LANE = 250
V_TT = 251
V_GG = 252

S_X = 4; S_W = 6; S_WS = 8; S_W1 = 10
SRD_X = 12; SRD_W = 16; SRD_O = 20
S_WAVE = 24; S_MW = 26; S_NW = 27; S_WQ = 28; S_MT = 29; S_JT = 30; S_J = 31
S_KA = 32; S_KB = 33; S_MA = 34; S_MB = 35; S_BD = 36; S_BSL = 37; S_RSL = 38; S_TMP = 39
S_ONES = 40; S_KH = 41; S_TMP2 = 42; S_TMP3 = 43
S_BLK = 44
S_TB = 52
S_PO = 56
S_MASK = 64
S_BSC = 60
S_HD = 61
S_KW = 91
S_MAE = 25; S_MBE = 3
LDS_DUMP = 0x28000
SRD_XA = 96
S_WOP = 92; S_W2P = 94; S_PC1 = 62

STAMP = False
OPTS = sys.argv[2:]
STF = "sc0 sc1" if "stsc" in OPTS else ("nt" if "stnt" in OPTS else ("sc1" if "stsc1" in OPTS else ""))
V_STAMP = 253
S_SA = 84; S_SB = 86; S_SC = 88; SRD_D = 80; S_SI = 90
def stamp_now(a, idx, real=False):
    if not STAMP: return
    a(f"""
    {"s_memrealtime" if real else "s_memtime"} {sr(S_SC)}
    s_waitcnt lgkmcnt(0)
    v_writelane_b32 v{V_STAMP}, s{S_SC}, {idx}
    """)
def stamp_dump(a, wsreg, wave_sreg, base_off):
    if not STAMP: return
    a(f"""
    s_waitcnt vmcnt(0)
    s_memtime {sr(S_SC)}
    s_waitcnt lgkmcnt(0)
    v_writelane_b32 v{V_STAMP}, s{S_SC}, 63
    s_mov_b32 s{SRD_D}, s{wsreg}
    s_and_b32 s{SRD_D+1}, s{wsreg+1}, 0xffff
    s_mov_b32 s{SRD_D+2}, {64<<20}
    s_mov_b32 s{SRD_D+3}, 0x20000
    s_lshl_b32 s{S_SC}, s2, 3
    s_add_u32 s{S_SC}, s{S_SC}, s{wave_sreg}
    s_lshl_b32 s{S_SC}, s{S_SC}, 8
    s_add_u32 s{S_SC}, s{S_SC}, {base_off}
    v_mbcnt_lo_u32_b32 v254, -1, 0
    v_mbcnt_hi_u32_b32 v254, -1, v254
    v_lshlrev_b32 v254, 2, v254
    buffer_store_dword v{V_STAMP}, v254, {sr(SRD_D,4)}, s{S_SC} offen
    """)

def acc(s, i): return V_ACC + (s * 4 + i) * 4
def xf(i, kk): return V_XF + (i * 2 + kk) * 4
def wf(s, kk): return V_WF + (s * 2 + kk) * 4
def hf(kk): return V_HF + kk * 4

def xlane_sum(a, v, t):
    a(f"""
    v_mov_b32 v{t}, v{v}
    s_nop 1
    v_permlane16_swap_b32 v{v}, v{t}
    s_nop 1
    v_add_f32 v{v}, v{v}, v{t}
    v_mov_b32 v{t}, v{v}
    s_nop 1
    v_permlane32_swap_b32 v{v}, v{t}
    s_nop 1
    v_add_f32 v{v}, v{v}, v{t}
    """)

def xlane_max(a, v, t):
    a(f"""
    v_mov_b32 v{t}, v{v}
    s_nop 1
    v_permlane16_swap_b32 v{v}, v{t}
    s_nop 1
    v_max_f32 v{v}, v{v}, v{t}
    v_mov_b32 v{t}, v{v}
    s_nop 1
    v_permlane32_swap_b32 v{v}, v{t}
    s_nop 1
    v_max_f32 v{v}, v{v}, v{t}
    """)

def g1_path(a, typ, G):
    qkv = (typ == 0)
    NB = 6 if qkv else 7
    PB = 384 if qkv else 448
    CH = PB // 16
    WP = 6144 if qkv else 7168
    halo = qkv and G == 0
    if qkv:
        nB = 3
        p0 = 0 if G == 0 else 12
    else:
        nB = 4 if G == 0 else 3
        p0 = 0 if G == 0 else 16
    nIss = 4 + nB + (1 if halo else 0)
    nBiss = nB + (1 if halo else 0)
    cs_slots = [0, 1] if (qkv or G == 0) else [0, 1, 6]
    P = f"g1_{typ}{G}"
    T = V_T
    a.label(P)
    if STAMP: a(f"v_mov_b32 v{V_STAMP}, 0")
    stamp_now(a, 32); stamp_now(a, 50, True)
    if qkv:
        a(f"""
        s_mov_b32 s{SRD_W}, s{S_W}
        s_and_b32 s{SRD_W+1}, s{S_W+1}, 0xffff
        s_mov_b32 s{SRD_W+2}, {1024*6144}
        s_mov_b32 s{SRD_W+3}, 0x20000
        """)
    else:
        a(f"""
        s_mov_b32 s{SRD_W}, s{S_W1}
        s_and_b32 s{SRD_W+1}, s{S_W1+1}, 0xffff
        s_mov_b32 s{SRD_W+2}, {1024*7168}
        s_mov_b32 s{SRD_W+3}, 0x20000
        """)
    Go = 1 - G
    a(f"""
    v_lshrrev_b32 v{T}, 3, v{V_LANE}                 ; l>>3
    v_and_b32 v{T+1}, 7, v{V_LANE}
    v_xor_b32 v{T+1}, v{T+1}, v{T}                   ; chunk
    s_lshl_b32 s{S_TMP}, s{S_MT}, 8
    s_lshl_b32 s{S_TMP2}, s{S_WQ}, 5
    s_add_u32 s{S_TMP}, s{S_TMP}, s{S_TMP2}
    s_add_u32 s{S_TMP}, s{S_TMP}, {128*Go}
    v_add_u32 v{T+2}, s{S_TMP}, v{T}
    v_lshlrev_b32 v{T+2}, 11, v{T+2}
    v_lshl_add_u32 v{V_DA}, v{T+1}, 4, v{T+2}
    """)
    if halo:
        a(f"""
        s_and_b32 s{S_TMP2}, s{S_WQ}, 1
        s_lshl_b32 s{S_TMP2}, s{S_TMP2}, 3
        v_add_u32 v{T+2}, s{S_TMP2}, v{T}
        s_lshl_b32 s{S_TMP}, s{S_MT}, 8
        s_sub_u32 s{S_TMP}, s{S_TMP}, 16
        v_add_u32 v{T+2}, s{S_TMP}, v{T+2}
        v_max_i32 v{T+2}, 0, v{T+2}
        v_lshlrev_b32 v{T+2}, 11, v{T+2}
        v_lshl_add_u32 v{V_DH}, v{T+1}, 4, v{T+2}
        s_mul_i32 s{S_HD}, s{S_WQ}, {nB*1024}
        s_sub_u32 s{S_HD}, {G1_HALO - p0*1024}, s{S_HD}
        s_lshl_b32 s{S_TMP2}, s{S_TMP2}, 7           ; (wq&1)*1024
        s_add_u32 s{S_HD}, s{S_HD}, s{S_TMP2}
        """)
    magic = (65536 + CH - 1) // CH
    for q in range(64 * CH):
        assert (q * magic) >> 16 == q // CH
    a(f"s_mul_i32 s{S_TMP3}, s{S_WQ}, {nB*64}")
    for i in range(nB):
        a(f"""
        s_add_u32 s{S_TMP}, s{S_TMP3}, {(p0+i)*64}
        v_add_u32 v{T}, s{S_TMP}, v{V_LANE}          ; q
        v_mul_u32_u24 v{T+1}, {magic}, v{T}
        v_lshrrev_b32 v{T+1}, 16, v{T+1}             ; k
        v_mul_u32_u24 v{T+2}, {CH}, v{T+1}
        v_sub_u32 v{T+2}, v{T}, v{T+2}               ; c'
        """)
        if qkv:
            a(f"""
            v_bfe_u32 v{T+3}, v{T+1}, 1, 1
            v_bfe_u32 v{T+4}, v{T+1}, 3, 1
            v_lshl_or_b32 v{T+3}, v{T+4}, 1, v{T+3}  ; f
            v_lshrrev_b32 v{T+4}, 1, v{T+2}
            v_xor_b32 v{T+4}, v{T+4}, v{T+3}         ; unit (0..11)
            v_cmp_le_u32 vcc, 6, v{T+4}
            s_nop 1
            v_cndmask_b32 v{T+5}, 0, 1, vcc          ; hh
            v_mul_u32_u24 v{T+6}, 6, v{T+5}
            v_sub_u32 v{T+6}, v{T+4}, v{T+6}         ; unit % 6
            v_lshrrev_b32 v{T+7}, 1, v{T+6}          ; part
            v_and_b32 v{T+6}, 1, v{T+6}              ; half32
            v_lshlrev_b32 v{T+7}, 11, v{T+7}         ; part*2048
            v_lshl_add_u32 v{T+7}, v{T+5}, 6, v{T+7} ; + hh*64
            v_lshl_add_u32 v{T+7}, v{T+6}, 5, v{T+7} ; + half32*32
            v_and_b32 v{T+6}, 1, v{T+2}
            v_lshl_add_u32 v{T+7}, v{T+6}, 4, v{T+7} ; + (c'&1)*16
            s_lshl_b32 s{S_TMP}, s{S_JT}, 7          ; 2 jt * 64
            v_add_u32 v{T+7}, s{S_TMP}, v{T+7}
            v_mul_u32_u24 v{T+1}, {WP}, v{T+1}
            v_add_u32 v{V_DB+i}, v{T+1}, v{T+7}
            """)
        else:
            a(f"""
            v_bfe_u32 v{T+3}, v{T+1}, 3, 1
            v_lshlrev_b32 v{T+3}, 1, v{T+3}
            v_xor_b32 v{T+2}, v{T+2}, v{T+3}         ; c = c' ^ (2*bit3(k))
            v_lshlrev_b32 v{T+2}, 4, v{T+2}
            s_mul_i32 s{S_TMP}, s{S_JT}, 448
            v_add_u32 v{T+2}, s{S_TMP}, v{T+2}
            v_mul_u32_u24 v{T+1}, {WP}, v{T+1}
            v_add_u32 v{V_DB+i}, v{T+1}, v{T+2}
            """)
    a(f"""
    s_mov_b32 s{S_KA}, 0
    s_mov_b32 s{S_KB}, 0
    s_mov_b32 s{S_KH}, 0
    s_lshl_b32 s{S_MA}, s{S_WQ}, 12
    s_add_u32 s{S_MA}, s{S_MA}, {Go*2*G1_ASLOT}
    s_mul_i32 s{S_MB}, s{S_WQ}, {nB*1024}
    s_add_u32 s{S_MB}, s{S_MB}, {G1_BBASE + p0*1024}
    s_mov_b32 s{S_BSL}, 0
    """)
    def dma_A():
        for i in range(4):
            a(f"""
            s_add_u32 m0, s{S_MA}, {i*1024}
            s_add_u32 s{S_TMP}, s{S_KA}, {i*16384}
            buffer_load_dwordx4 v{V_DA}, {sr(SRD_XA,4)}, s{S_TMP} offen lds
            """)
        a(f"""
        s_add_u32 s{S_KA}, s{S_KA}, 128
        s_xor_b32 s{S_MA}, s{S_MA}, {G1_ASLOT}
        """)
    def dma_B():
        for i in range(nB):
            a(f"""
            s_add_u32 m0, s{S_MB}, {i*1024}
            s_nop 0
            buffer_load_dwordx4 v{V_DB+i}, {sr(SRD_W,4)}, s{S_KB} offen lds
            """)
        if halo:
            a(f"""
            s_add_u32 m0, s{S_MB}, s{S_HD}
            s_nop 0
            buffer_load_dwordx4 v{V_DH}, {sr(SRD_X,4)}, s{S_KH} offen lds
            s_add_u32 s{S_KH}, s{S_KH}, 128
            """)
        a(f"""
        s_add_u32 s{S_KB}, s{S_KB}, {64*WP}
        s_add_u32 s{S_BSL}, s{S_BSL}, 1
        s_add_u32 s{S_MB}, s{S_MB}, {G1_BSLOT}
        s_cmp_eq_u32 s{S_BSL}, 3
        s_cselect_b32 s{S_TMP}, {3*G1_BSLOT}, 0
        s_cselect_b32 s{S_BSL}, 0, s{S_BSL}
        s_sub_u32 s{S_MB}, s{S_MB}, s{S_TMP}
        """)
    if G == 0:
        dma_B(); dma_A(); dma_B()
        pro_wait = 4 + nBiss
    else:
        dma_A(); dma_B(); dma_A(); dma_B()
        pro_wait = 4 + nBiss
    WARM = "nowarmw" not in OPTS
    if WARM:
        a(f"""
        v_min_u32 v{T}, {2*CH - 1}, v{V_LANE}
        v_cmp_le_u32 vcc, {CH}, v{T}
        s_lshl_b32 s{S_TMP}, s{S_MT}, 4
        s_lshl_b32 s{S_TMP2}, s{S_WAVE}, 1
        v_cndmask_b32 v{T+1}, 0, 1, vcc              ; row
        s_add_u32 s{S_TMP}, s{S_TMP}, s{S_TMP2}
        v_mul_u32_u24 v{T+2}, {CH}, v{T+1}
        v_sub_u32 v{T}, v{T}, v{T+2}                 ; chunk
        v_add_u32 v{T+1}, s{S_TMP}, v{T+1}
        v_mul_u32_u24 v{T+1}, {WP}, v{T+1}
        """)
        if qkv:
            a(f"""
            v_lshrrev_b32 v{T+2}, 3, v{T}
            v_lshl_add_u32 v{T+1}, v{T+2}, 11, v{T+1}
            v_and_b32 v{T}, 7, v{T}
            s_lshl_b32 s{S_TMP}, s{S_JT}, 7
            """)
        else:
            a(f"s_mul_i32 s{S_TMP}, s{S_JT}, 448")
        a(f"""
        v_lshl_add_u32 v{T+1}, v{T}, 4, v{T+1}
        v_add_u32 v{V_WV}, s{S_TMP}, v{T+1}
        s_mov_b32 s{S_KW}, {256*WP}
        buffer_load_dwordx4 {vr(V_WD)}, v{V_WV}, {sr(SRD_W,4)}, s{S_KW} offen
        s_mov_b32 s{S_KW}, {384*WP}
        buffer_load_dwordx4 {vr(V_WD)}, v{V_WV}, {sr(SRD_W,4)}, s{S_KW} offen
        s_mov_b32 s{S_KW}, {512*WP}
        """)
        pro_wait += 2
        nIss += 1
    if qkv:
        if G == 0:
            a(f"""
            s_mul_i32 s{S_TMP}, s{S_NW}, 6
            s_lshl_b32 s{S_TMP2}, s{S_MW}, 1
            s_add_u32 s{S_BLK+0}, s{S_TMP}, s{S_TMP2}
            s_add_u32 s{S_BLK+0}, s{S_BLK+0}, 2
            s_add_u32 s{S_BLK+1}, s{S_BLK+0}, 1
            s_mov_b32 s{S_BLK+2}, s{S_TMP}
            s_add_u32 s{S_BLK+3}, s{S_TMP}, 1
            s_sub_u32 s{S_BLK+4}, s{S_TMP}, s{S_TMP2}
            s_add_u32 s{S_BLK+4}, s{S_BLK+4}, 4
            s_add_u32 s{S_BLK+5}, s{S_BLK+4}, 1
            """)
        else:
            a(f"s_mul_i32 s{S_TMP}, s{S_NW}, 6")
            for s in range(6):
                a(f"s_add_u32 s{S_BLK+s}, s{S_TMP}, {s}")
    else:
        a(f"s_lshl_b32 s{S_TMP2}, s{S_NW}, 3")
        for ps in range(3):
            a(f"""
            s_add_u32 s{S_TMP}, s{S_MW}, {(ps + 2*G) % 3}
            s_cmp_ge_u32 s{S_TMP}, 3
            s_cselect_b32 s{S_TMP3}, 3, 0
            s_sub_u32 s{S_TMP}, s{S_TMP}, s{S_TMP3}
            s_lshl_b32 s{S_TMP}, s{S_TMP}, 1
            s_add_u32 s{S_BLK+2*ps}, s{S_TMP}, s{S_TMP2}
            s_add_u32 s{S_BLK+2*ps+1}, s{S_BLK+2*ps}, 1
            """)
        a(f"s_add_u32 s{S_BLK+6}, s{S_NW}, 6")
    a(f"""
    v_and_b32 v{T}, 7, v{V_TT}
    v_xor_b32 v{T}, v{V_GG}, v{T}                    ; g ^ (t&7)
    v_lshlrev_b32 v{T}, 4, v{T}
    v_lshl_add_u32 v{T}, v{V_TT}, 7, v{T}
    s_lshl_b32 s{S_TMP}, s{S_MW}, 13
    s_add_u32 s{S_TMP}, s{S_TMP}, {G*2*G1_ASLOT}
    s_lshl_b32 s{S_TMP2}, s{S_NW}, 12
    s_add_u32 s{S_TMP3}, s{S_TMP}, s{S_TMP2}
    v_add_u32 v{V_RA+0}, s{S_TMP3}, v{T}
    v_xor_b32 v{V_RA+1}, 64, v{V_RA+0}
    s_xor_b32 s{S_TMP2}, s{S_TMP2}, 4096
    s_add_u32 s{S_TMP3}, s{S_TMP}, s{S_TMP2}         ; sp=1
    v_add_u32 v{V_RA+2}, s{S_TMP3}, v{T}
    v_xor_b32 v{V_RA+3}, 64, v{V_RA+2}
    """)
    if halo:
        a(f"""
        v_add_u32 v{V_RH+0}, {G1_BBASE + G1_HALO}, v{T}
        v_xor_b32 v{V_RH+1}, 64, v{V_RH+0}
        """)
    a(f"""
    v_lshrrev_b32 v{T}, 2, v{V_TT}                   ; r
    v_lshl_add_u32 v{T+1}, v{V_GG}, 3, v{T}          ; 8g + r
    v_mul_u32_u24 v{T+1}, {PB}, v{T+1}
    v_and_b32 v{T+2}, 3, v{V_LANE}
    v_lshl_add_u32 v{T+1}, v{T+2}, 3, v{T+1}         ; + c*8
    v_add_u32 v{T+1}, {G1_BBASE}, v{T+1}
    v_and_b32 v{T+2}, 1, v{V_GG}                     ; g&1
    """)
    if qkv:
        a(f"""
        v_lshrrev_b32 v{T+3}, 1, v{T}                ; bit1(r)
        v_lshl_or_b32 v{T+2}, v{T+2}, 1, v{T+3}      ; f
        """)
    for s in range(NB):
        a(f"""
        v_xor_b32 v{T+3}, s{S_BLK+s}, v{T+2}
        v_lshl_add_u32 v{V_RB+s}, v{T+3}, 5, v{T+1}
        """)
    nacc = (NB * 4) * 4
    for r in range(V_ACC, V_ACC + nacc):
        a(f"v_mov_b32 v{r}, 0")
    if halo:
        for r in range(V_HACC, V_HACC + 8):
            a(f"v_mov_b32 v{r}, 0")
    a(f"""
    s_mov_b32 s{S_ONES}, 0x3f803f80
    s_mov_b32 s{S_BSC}, {G1_BSLOT}
    s_mov_b32 s{S_J}, 0
    s_mov_b32 s{S_RSL}, 0
    s_waitcnt vmcnt({pro_wait})
    s_barrier
    """)
    stamp_now(a, 33)
    if G == 1:
        a("s_barrier")
    if STAMP: a(f"s_mov_b32 s{S_SB}, 0")

    def rd_x(i):
        sp, e = i >> 1, i & 1
        for kk in range(2):
            a(f"ds_read_b128 {vr(xf(i,kk))}, v{V_RA+sp*2+kk} offset:{e*2048}")
    def rd_w(s):
        for kk in range(2):
            for h in range(2):
                a(f"ds_read_b64_tr_b16 {vr(wf(s,kk)+2*h,2)}, v{V_RB+s} offset:{(32*kk+4*h)*PB}")
    def dma_list():
        L = []
        for i in range(4):
            L.append(f"""
            s_add_u32 m0, s{S_MAE}, {i*1024}
            s_add_u32 s{S_TMP}, s{S_KA}, {i*16384}
            buffer_load_dwordx4 v{V_DA}, {sr(SRD_XA,4)}, s{S_TMP} offen lds
            """)
        for i in range(nB):
            L.append(f"""
            s_add_u32 m0, s{S_MBE}, {i*1024}
            s_nop 0
            buffer_load_dwordx4 v{V_DB+i}, {sr(SRD_W,4)}, s{S_KB} offen lds
            """)
        if halo:
            L.append(f"""
            s_add_u32 m0, s{S_MBE}, s{S_HD}
            s_nop 0
            buffer_load_dwordx4 v{V_DH}, {sr(SRD_X,4)}, s{S_KH} offen lds
            """)
        if WARM:
            L.append(f"buffer_load_dwordx4 {vr(V_WD)}, v{V_WV}, {sr(SRD_W,4)}, s{S_KW} offen")
        return L
    a(f"""
    s_mov_b32 s{S_MAE}, s{S_MA}
    s_mov_b32 s{S_MBE}, s{S_MB}
    """)
    reads = []
    for i in range(4):
        sp, e = i >> 1, i & 1
        for kk in range(2):
            reads.append((kk, f"ds_read_b128 {vr(xf(i,kk))}, v{V_RA+sp*2+kk} offset:{e*2048}"))
    if halo:
        for kk in range(2):
            reads.append((kk, f"ds_read_b128 {vr(hf(kk))}, v{V_RH+kk}"))
    for s_ in range(NB):
        for kk in range(2):
            for h in range(2):
                reads.append((kk, f"ds_read_b64_tr_b16 {vr(wf(s_,kk)+2*h,2)}, v{V_RB+s_} offset:{(32*kk+4*h)*PB}"))
    reads = [r for k_, r in reads if k_ == 0] + [r for k_, r in reads if k_ == 1]

    a.raw(".p2align 6")
    a.label(P + "_loop")
    if STAMP: a(f"s_memtime {sr(S_SA)}")
    dl = dma_list()
    step = max(3, len(reads) // len(dl))
    order = "rdfirst" if "rdfirst" in OPTS else "mix"
    if order == "rdfirst":
        for r in reads: a(r)
        for d in dl: a(d)
    else:
        di = 0
        for n_, r in enumerate(reads):
            a(r)
            if (n_ % step) == 1 and di < len(dl):
                a(dl[di]); di += 1
        while di < len(dl):
            a(dl[di]); di += 1
    if STAMP: a(f"s_memtime {sr(100)}")
    a(f"s_waitcnt vmcnt({0 if 'strictwait' in OPTS else nIss}) lgkmcnt(0)")
    if STAMP:
        a(f"""
        s_lshl_b32 s{S_SI}, s{S_J}, 1
        s_mov_b32 m0, s{S_SI}
        s_nop 3
        v_writelane_b32 v{V_STAMP}, s{S_SA}, m0
        s_add_u32 s{S_SI}, s{S_SI}, 63
        s_and_b32 m0, s{S_SI}, 63
        s_nop 3
        v_writelane_b32 v{V_STAMP}, s{S_SB}, m0
        s_memtime {sr(S_SC)}
        s_cmp_eq_u32 s{S_J}, 8
        s_cbranch_scc0 {P}_nost
        s_waitcnt lgkmcnt(0)
        v_writelane_b32 v{V_STAMP}, s{S_SA}, 40
        v_writelane_b32 v{V_STAMP}, s100, 41
        v_writelane_b32 v{V_STAMP}, s{S_SC}, 42
        """)
        a.label(P + "_nost")
    a("s_barrier")
    if STAMP: a(f"s_memtime {sr(S_SB)}")
    bk = Collect()
    bk(f"""
    s_add_u32 s{S_KA}, s{S_KA}, 128
    s_xor_b32 s{S_MA}, s{S_MA}, {G1_ASLOT}
    s_cmp_ge_u32 s{S_KA}, 2048
    s_cselect_b32 s{SRD_XA+2}, 0, s{SRD_XA+2}
    s_cselect_b32 s{S_MAE}, {LDS_DUMP}, s{S_MA}
    s_add_u32 s{S_KH}, s{S_KH}, 128
    s_add_u32 s{S_KW}, s{S_KW}, {128*WP}
    s_add_u32 s{S_KB}, s{S_KB}, {64*WP}
    s_add_u32 s{S_BSL}, s{S_BSL}, 1
    s_add_u32 s{S_MB}, s{S_MB}, {G1_BSLOT}
    s_cmp_eq_u32 s{S_BSL}, 3
    s_cselect_b32 s{S_TMP}, {3*G1_BSLOT}, 0
    s_cselect_b32 s{S_BSL}, 0, s{S_BSL}
    s_sub_u32 s{S_MB}, s{S_MB}, s{S_TMP}
    s_cmp_ge_u32 s{S_J}, 13
    s_cselect_b32 s{S_MBE}, {LDS_DUMP}, s{S_MB}
    s_add_u32 s{S_RSL}, s{S_RSL}, 1
    s_cmp_eq_u32 s{S_RSL}, 3
    s_cselect_b32 s{S_BD}, {(-2*G1_BSLOT) & 0xffffffff}, s{S_BSC}
    s_cselect_b32 s{S_RSL}, 0, s{S_RSL}
    """)
    for r in range(4):
        bk(f"v_xor_b32 v{V_RA+r}, {G1_ASLOT}, v{V_RA+r}")
    for s_ in range(NB):
        bk(f"v_add_u32 v{V_RB+s_}, s{S_BD}, v{V_RB+s_}")
    if halo:
        for kk in range(2):
            bk(f"v_add_u32 v{V_RH+kk}, s{S_BD}, v{V_RH+kk}")
    a("s_setprio 1")
    mf = []
    for kk in range(2):
        for s_ in range(NB):
            for i in range(4):
                mf.append(f"v_mfma_f32_16x16x32_bf16 {vr(acc(s_,i))}, {vr(wf(s_,kk))}, {vr(xf(i,kk))}, {vr(acc(s_,i))}")
        if halo:
            for s_ in range(2):
                mf.append(f"v_mfma_f32_16x16x32_bf16 {vr(V_HACC+4*s_)}, {vr(wf(s_,kk))}, {vr(hf(kk))}, {vr(V_HACC+4*s_)}")
    interleave(a, mf, bk.L, start=2, per=1)
    a(f"""
    s_setprio 0
    s_add_u32 s{S_J}, s{S_J}, 1
    s_cmp_lt_u32 s{S_J}, 16
    """)
    if G == 0:
        a(f"""
        s_barrier
        s_cbranch_scc1 {P}_loop
        """)
    else:
        a(f"""
        s_cbranch_scc0 {P}_post
        s_barrier
        s_branch {P}_loop
        """)
    a.label(P + "_post")
    if STAMP:
        a(f"""
        s_waitcnt lgkmcnt(0)
        v_writelane_b32 v{V_STAMP}, s{S_SB}, 31
        """)
    stamp_now(a, 34)
    if qkv:
        a("""
        s_waitcnt vmcnt(0)
        s_barrier
        """)
    if "nowarm2" not in OPTS:
        a(f"""
        s_lshl_b32 s{S_TMP}, s2, 3
        s_add_u32 s{S_TMP}, s{S_TMP}, s{S_WAVE}
        s_mov_b32 s{SRD_XA}, s{S_WOP}
        s_and_b32 s{SRD_XA+1}, s{S_WOP+1}, 0xffff
        s_mov_b32 s{SRD_XA+2}, {1024*2048}
        s_mov_b32 s{SRD_W}, s{S_W2P}
        s_and_b32 s{SRD_W+1}, s{S_W2P+1}, 0xffff
        s_mov_b32 s{SRD_W+2}, {3584*2048}
        s_lshl_b32 s{S_TMP2}, s{S_TMP}, 10
        s_lshl_b32 s{S_TMP}, s{S_TMP}, 12
        v_lshlrev_b32 v{T}, 4, v{V_LANE}
        buffer_load_dwordx4 {vr(V_WF)}, v{T}, {sr(SRD_XA,4)}, s{S_TMP2} offen
        """)
        for i in range(4):
            a(f"buffer_load_dwordx4 {vr(V_WF+4+4*i)}, v{T}, {sr(SRD_W,4)}, s{S_TMP} offen offset:{i*1024}")
    stamp_now(a, 35)
    for i in range(4):
        a(f"""
        s_lshl_b32 s{S_TMP}, s{S_MW}, 6
        s_lshl_b32 s{S_TMP2}, s{S_NW}, 5
        s_xor_b32 s{S_TMP2}, s{S_TMP2}, {16*i}
        s_add_u32 s{S_TMP}, s{S_TMP}, s{S_TMP2}
        s_add_u32 s{S_TB+i}, s{S_TMP}, {128*G}
        """)
    V_ST = 0
    def fixup(ab, s, st, o, relu):
        a(f"""
        v_cvt_pk_bf16_f32 v{o}, v{ab}, v{ab+1}
        v_cvt_pk_bf16_f32 v{o+1}, v{ab+2}, v{ab+3}
        """)
        if relu:
            a(f"""
            v_pk_max_i16 v{o}, v{o}, 0
            v_pk_max_i16 v{o+1}, v{o+1}, 0
            """)
    V_SIG = T + 8
    a(f"""
    v_and_b32 v{T}, 1, v{V_GG}
    v_lshrrev_b32 v{T+1}, 1, v{V_GG}
    v_lshl_or_b32 v{V_SIG}, v{T}, 1, v{T+1}
    """)
    if not qkv:
        V_PA = T + 9; V_SA = T + 10
        a(f"""
        v_lshl_add_u32 v{V_PA}, v{V_SIG}, 4, v{V_TT}
        v_lshlrev_b32 v{V_PA}, 4, v{V_PA}            ; (sigma*16 + t)*16
        s_lshl_b32 s{S_TMP}, s{S_NW}, 1
        v_add_u32 v{T+1}, s{S_TMP}, v{T+1}
        v_lshl_add_u32 v{V_SA}, v{T+1}, 4, v{V_TT}
        v_lshlrev_b32 v{V_SA}, 4, v{V_SA}
        v_lshl_add_u32 v{V_SA}, v{T}, 3, v{V_SA}
        """)
        for i in range(4):
            a(f"""
            s_lshr_b32 s{S_TMP}, s{S_TB+i}, 4
            s_lshl_b32 s{S_TMP2}, s{S_MT}, 4
            s_add_u32 s{S_TMP}, s{S_TMP}, s{S_TMP2}
            s_mul_i32 s{S_TB+i}, s{S_TMP}, {MBLK_PITCH}
            """)
        a(f"""
        s_mul_i32 s{S_TMP2}, s{S_JT}, 7
        s_add_u32 s{S_TMP2}, s{S_TMP2}, 32
        """)
        for ps in range(4):
            a(f"""
            s_lshr_b32 s{S_TMP}, s{S_BLK+2*ps}, 1
            s_add_u32 s{S_TMP}, s{S_TMP}, s{S_TMP2}
            s_lshl_b32 s{S_PO+ps}, s{S_TMP}, 10
            """)
        ob = [V_XF + 16, V_XF + 20, V_XF + 24, V_XF + 28]
        n = 0
        for i in range(4):
            st = V_ST + 2 * i
            for ps in range(3):
                o = ob[n % 4]; n += 1
                fixup(acc(2*ps, i), 2*ps, st, o, True)
                fixup(acc(2*ps+1, i), 2*ps+1, st, o+2, True)
                a(f"""
                s_add_u32 s{S_TMP}, s{S_TB+i}, s{S_PO+ps}
                s_nop 0
                v_permlane16_swap_b32 v{o}, v{o+2}
                v_permlane16_swap_b32 v{o+1}, v{o+3}
                s_nop 1
                buffer_store_dwordx4 {vr(o)}, v{V_PA}, {sr(SRD_O,4)}, s{S_TMP} offen {STF}
                """)
            o = ob[n % 4]; n += 1
            fixup(acc(6, i), 6, st, o, True)
            a(f"""
            s_add_u32 s{S_TMP}, s{S_TB+i}, s{S_PO+3}
            s_nop 1
            buffer_store_dwordx2 {vr(o,2)}, v{V_SA}, {sr(SRD_O,4)}, s{S_TMP} offen {STF}
            """)
        stamp_now(a, 36); stamp_now(a, 51, True)
        stamp_dump(a, S_WS, S_WAVE, 32 << 20)
        a("s_endpgm")
        return
    V_WA = T + 9
    a(f"""
    v_mul_u32_u24 v{V_WA}, {AT_PITCH}, v{V_TT}
    v_lshl_add_u32 v{V_WA}, v{V_GG}, 3, v{V_WA}      ; t*P + g*8
    """)
    ob = [V_XF + 16, V_XF + 18, V_XF + 20, V_XF + 22, V_XF + 24, V_XF + 26, V_XF + 28, V_XF + 30]
    n = 0
    for i in range(4):
        a(f"""
        s_add_u32 s{S_TMP}, s{S_TB+i}, 16
        s_mul_i32 s{S_TMP3}, s{S_TMP}, {AT_PITCH}
        """)
        for s in range(6):
            o = ob[n % 8]; n += 1
            fixup(acc(s, i), s, V_ST + 2 * i, o, False)
            a(f"""
            s_lshl_b32 s{S_TMP}, s{S_BLK+s}, 5
            s_add_u32 s{S_TMP}, s{S_TMP}, s{S_TMP3}
            v_add_u32 v{T}, s{S_TMP}, v{V_WA}
            ds_write_b64 v{T}, {vr(o,2)}
            """)
            if "slowepi" in OPTS: a("s_waitcnt lgkmcnt(0)")
    if halo:
        for s in range(2):
            o = ob[n % 8]; n += 1
            fixup(V_HACC + 4 * s, s, V_ST + 8, o, False)
            a(f"""
            s_lshl_b32 s{S_TMP}, s{S_BLK+s}, 5
            v_add_u32 v{T}, s{S_TMP}, v{V_WA}
            ds_write_b64 v{T}, {vr(o,2)}
            """)
    a(f"""
    s_waitcnt lgkmcnt(0)
    s_barrier
    """)
    stamp_now(a, 36)
    a("s_branch g1_attn")

def g1_attn(a):
    T = V_T
    V_SIG = T + 8
    a.label("g1_attn")
    VQ = 0; VK = 1; VV = 3
    VE = 5; VO = 6
    R = 8
    a(f"""
    s_lshl_b32 s{S_TMP}, s{S_WAVE}, 5                ; 32 w
    v_lshlrev_b32 v{T}, 1, v{V_TT}                   ; 2n
    v_add_u32 v{T+1}, s{S_TMP}, v{T}                 ; 32w + 2n
    v_add_u32 v{T+2}, 16, v{T+1}
    v_mul_u32_u24 v{T+2}, {AT_PITCH}, v{T+2}
    v_lshl_add_u32 v{VQ}, v{V_GG}, 4, v{T+2}         ; + g*16
    v_add_u32 v{VK+1}, 64, v{VQ}
    v_add_u32 v{T+2}, -16, v{T+1}                    ; rho_k(kb=0)
    v_max_i32 v{T+2}, 0, v{T+2}
    v_mul_u32_u24 v{T+2}, {AT_PITCH}, v{T+2}
    v_lshl_add_u32 v{T+2}, v{V_GG}, 4, v{T+2}
    v_add_u32 v{VK}, 64, v{T+2}
    v_lshrrev_b32 v{T}, 2, v{V_TT}
    v_lshl_add_u32 v{T}, v{V_GG}, 2, v{T}            ; a
    v_lshlrev_b32 v{T}, 1, v{T}
    v_add_u32 v{T}, s{S_TMP}, v{T}                   ; 32w + 2a
    v_and_b32 v{T+3}, 3, v{V_LANE}
    v_lshlrev_b32 v{T+3}, 3, v{T+3}
    v_add_u32 v{T+3}, 128, v{T+3}                    ; v part + c*8
    v_add_u32 v{T+2}, 16, v{T}
    v_mul_u32_u24 v{T+2}, {AT_PITCH}, v{T+2}
    v_add_u32 v{VV+1}, v{T+2}, v{T+3}
    v_add_u32 v{T+2}, -16, v{T}
    v_max_i32 v{T+2}, 0, v{T+2}
    v_mul_u32_u24 v{T+2}, {AT_PITCH}, v{T+2}
    v_add_u32 v{VV}, v{T+2}, v{T+3}
    v_lshlrev_b32 v{T}, 2, v{V_GG}
    v_sub_u32 v{VE}, v{V_TT}, v{T}
    """)
    for kb in range(2):
        for i in range(4):
            a(f"""
            v_add_u32 v{T}, {(16*(1-kb) - i)}, v{VE}
            v_cmp_ge_u32 {sr(S_MASK + 2*(4*kb+i))}, 7, v{T}
            """)
    a(f"""
    s_or_b32 s{S_TMP}, s{S_MT}, s{S_WAVE}
    s_cmp_eq_u32 s{S_TMP}, 0
    s_cbranch_scc0 g1_attn_m
    """)
    for i in range(4):
        a(f"s_mov_b64 {sr(S_MASK + 2*i)}, 0")
    a.label("g1_attn_m")
    a(f"""
    v_and_b32 v{T}, 7, v{V_TT}
    v_lshlrev_b32 v{T}, 1, v{T}
    v_lshl_add_u32 v{T}, v{V_SIG}, 4, v{T}
    v_lshlrev_b32 v{T}, 4, v{T}
    v_lshrrev_b32 v{T+1}, 3, v{V_TT}
    s_mov_b32 s{S_TMP}, {MBLK_PITCH}
    v_mul_lo_u32 v{T+1}, v{T+1}, s{S_TMP}
    v_add_u32 v{VO}, v{T}, v{T+1}
    s_lshl_b32 s{S_TMP}, s{S_MT}, 4
    s_lshl_b32 s{S_TMP2}, s{S_WAVE}, 1
    s_add_u32 s{S_TMP}, s{S_TMP}, s{S_TMP2}
    s_mul_i32 s{S_TMP}, s{S_TMP}, {MBLK_PITCH}
    s_lshl_b32 s{S_TMP2}, s{S_JT}, 11
    s_add_u32 s{S_TMP3}, s{S_TMP}, s{S_TMP2}
    v_mov_b32 v{T+10}, 0xff800000                    ; -inf
    """)
    NEG = T + 10
    units = [(hh, p) for hh in range(2) for p in range(2)]
    UR = 32
    for u, (hh, p) in enumerate(units):
        b = R + u * UR
        off = p * AT_PITCH + hh * 192
        a(f"""
        ds_read_b128 {vr(b)}, v{VQ} offset:{off}
        ds_read_b128 {vr(b+4)}, v{VK} offset:{off}
        ds_read_b128 {vr(b+8)}, v{VK+1} offset:{off}
        """)
        for db in range(2):
            for kb in range(2):
                a(f"ds_read_b64_tr_b16 {vr(b+12+4*db+2*kb,2)}, v{VV+kb} offset:{off+32*db}")
    a("s_waitcnt lgkmcnt(0)")
    for u in range(4):
        b = R + u * UR
        a(f"""
        v_mfma_f32_16x16x32_bf16 {vr(b+20)}, {vr(b+4)}, {vr(b)}, 0
        v_mfma_f32_16x16x32_bf16 {vr(b+24)}, {vr(b+8)}, {vr(b)}, 0
        """)
    a("s_nop 7")
    for u, (hh, p) in enumerate(units):
        b = R + u * UR
        z = b + 20
        t0 = b + 28; t1 = b + 29
        for i in range(0, 8, 2):
            a(f"""
            v_cvt_pk_bf16_f32 v{t0}, v{z+i}, v{z+i+1}
            v_lshlrev_b32 v{z+i}, 16, v{t0}
            v_and_b32 v{z+i+1}, 0xffff0000, v{t0}
            v_mul_f32 v{z+i}, 0x3e3504f3, v{z+i}
            v_mul_f32 v{z+i+1}, 0x3e3504f3, v{z+i+1}
            v_cvt_pk_bf16_f32 v{t0}, v{z+i}, v{z+i+1}
            v_lshlrev_b32 v{z+i}, 16, v{t0}
            v_and_b32 v{z+i+1}, 0xffff0000, v{t0}
            v_cndmask_b32 v{z+i}, v{NEG}, v{z+i}, {sr(S_MASK+2*i)}
            v_cndmask_b32 v{z+i+1}, v{NEG}, v{z+i+1}, {sr(S_MASK+2*i+2)}
            """)
        a(f"""
        v_max3_f32 v{t0}, v{z}, v{z+1}, v{z+2}
        v_max3_f32 v{t0}, v{t0}, v{z+3}, v{z+4}
        v_max3_f32 v{t0}, v{t0}, v{z+5}, v{z+6}
        v_max_f32 v{t0}, v{t0}, v{z+7}
        """)
        xlane_max(a, t0, t1)
        for i in range(8):
            a(f"""
            v_sub_f32 v{z+i}, v{z+i}, v{t0}
            v_mul_f32 v{z+i}, 0x3fb8aa3b, v{z+i}
            v_exp_f32 v{z+i}, v{z+i}
            """)
        a(f"""
        s_nop 0
        v_add_f32 v{t0}, v{z}, v{z+1}
        v_add_f32 v{t1}, v{z+2}, v{z+3}
        v_add_f32 v{t0}, v{t0}, v{z+4}
        v_add_f32 v{t1}, v{t1}, v{z+5}
        v_add_f32 v{t0}, v{t0}, v{z+6}
        v_add_f32 v{t1}, v{t1}, v{z+7}
        v_add_f32 v{t0}, v{t0}, v{t1}
        """)
        xlane_sum(a, t0, t1)
        a(f"""
        v_rcp_f32 v{t0}, v{t0}
        s_nop 0
        """)
        for i in range(8):
            a(f"v_mul_f32 v{z+i}, v{z+i}, v{t0}")
        for i in range(4):
            a(f"v_cvt_pk_bf16_f32 v{b+i}, v{z+2*i}, v{z+2*i+1}")
        a(f"""
        s_nop 1
        v_mfma_f32_16x16x32_bf16 {vr(b+4)}, {vr(b+12)}, {vr(b)}, 0
        v_mfma_f32_16x16x32_bf16 {vr(b+8)}, {vr(b+16)}, {vr(b)}, 0
        """)
    a("s_nop 7")
    for u, (hh, p) in enumerate(units):
        b = R + u * UR
        o = b + 20
        a(f"""
        v_cvt_pk_bf16_f32 v{o}, v{b+4}, v{b+5}
        v_cvt_pk_bf16_f32 v{o+1}, v{b+6}, v{b+7}
        v_cvt_pk_bf16_f32 v{o+2}, v{b+8}, v{b+9}
        v_cvt_pk_bf16_f32 v{o+3}, v{b+10}, v{b+11}
        s_nop 1
        v_permlane16_swap_b32 v{o}, v{o+2}
        v_permlane16_swap_b32 v{o+1}, v{o+3}
        s_nop 1
        buffer_store_dwordx4 {vr(o)}, v{VO}, {sr(SRD_O,4)}, s{S_TMP3} offen offset:{p*16 + hh*1024} {STF}
        """)
    stamp_now(a, 37); stamp_now(a, 51, True)
    stamp_dump(a, S_WS, S_WAVE, 32 << 20)
    a("s_endpgm")

def gen_g1(a):
    a.raw("""
.globl g1_kernel
.p2align 8
.type g1_kernel,@function
g1_kernel:""")
    a(f"""
    s_cmp_ge_u32 s2, 256
    s_cbranch_scc1 g1_exit
    s_load_dwordx2 s[{S_W}:{S_W+1}], s[0:1], 8
    s_load_dwordx2 s[{S_W1}:{S_W1+1}], s[0:1], 32
    s_load_dwordx2 s[{S_WS}:{S_WS+1}], s[0:1], 64
    s_load_dwordx2 s[{S_WOP}:{S_WOP+1}], s[0:1], 16
    s_load_dwordx2 s[{S_W2P}:{S_W2P+1}], s[0:1], 40
    v_and_b32 v{V_LANE}, 63, v0
    v_lshrrev_b32 v{V_T}, 6, v0
    v_and_b32 v{V_TT}, 15, v0
    v_readfirstlane_b32 s{S_WAVE}, v{V_T}
    v_bfe_u32 v{V_GG}, v0, 4, 2
    s_nop 2
    s_cmp_lg_u32 s{S_WAVE}, 7
    s_cbranch_scc1 g1_nopf
    """)
    if "nocodepf" not in OPTS:
        code_prefetch(a, V_T + 2, V_LANE, S_PC1, "g1_kernel", "g1_end", 24576, 255)
    a.label("g1_nopf")
    a(f"""
    s_and_b32 s{S_TMP}, s2, 7                 ; xcd
    s_lshr_b32 s{S_TMP2}, s2, 3               ; idx
    s_and_b32 s{S_MT}, s{S_TMP}, 1
    s_lshl_b32 s{S_MT}, s{S_MT}, 2
    s_and_b32 s{S_TMP3}, s{S_TMP2}, 3
    s_add_u32 s{S_MT}, s{S_MT}, s{S_TMP3}     ; mt
    s_lshr_b32 s{S_TMP2}, s{S_TMP2}, 2        ; i8
    s_lshr_b32 s{S_TMP}, s{S_TMP}, 1          ; ng
    s_lshl_b32 s{S_JT}, s{S_TMP}, 2
    s_and_b32 s{S_TMP3}, s{S_TMP2}, 3
    s_add_u32 s{S_JT}, s{S_JT}, s{S_TMP3}     ; jt
    s_lshr_b32 s{S_TMP2}, s{S_TMP2}, 2        ; type
    s_and_b32 s{S_WQ}, s{S_WAVE}, 3
    s_and_b32 s{S_NW}, s{S_WAVE}, 1
    s_bfe_u32 s{S_MW}, s{S_WAVE}, 0x10001
    s_lshr_b32 s{S_TMP3}, s{S_WAVE}, 2        ; G
    s_waitcnt lgkmcnt(0)
    s_add_u32 s{SRD_X}, s{S_WS}, {XN_OFF}
    s_addc_u32 s{SRD_X+1}, s{S_WS+1}, 0
    s_and_b32 s{SRD_X+1}, s{SRD_X+1}, 0xffff
    s_mov_b32 s{SRD_X+2}, {2048*2048}
    s_mov_b32 s{SRD_X+3}, 0x20000
    s_mov_b32 s{SRD_XA}, s{SRD_X}
    s_mov_b32 s{SRD_XA+1}, s{SRD_X+1}
    s_mov_b32 s{SRD_XA+2}, {2048*2048}
    s_mov_b32 s{SRD_XA+3}, 0x20000
    s_mov_b32 s{SRD_O}, s{S_WS}
    s_and_b32 s{SRD_O+1}, s{S_WS+1}, 0xffff
    s_mov_b32 s{SRD_O+2}, {A2_BYTES}
    s_mov_b32 s{SRD_O+3}, 0x20000
    s_lshl_b32 s{S_TMP2}, s{S_TMP2}, 1
    s_add_u32 s{S_TMP2}, s{S_TMP2}, s{S_TMP3}
    s_cmp_eq_u32 s{S_TMP2}, 0
    s_cbranch_scc1 g1_00
    s_cmp_eq_u32 s{S_TMP2}, 1
    s_cbranch_scc1 g1_01
    s_cmp_eq_u32 s{S_TMP2}, 2
    s_cbranch_scc1 g1_10
    s_branch g1_11
    """)
    a.label("g1_exit")
    a("s_endpgm")
    for typ in range(2):
        for G in range(2):
            g1_path(a, typ, G)
    g1_attn(a)
    a.label("g1_end")
    a("s_endpgm")

def gen_k0(a):
    a.raw("""
.globl k0_kernel
.p2align 8
.type k0_kernel,@function
k0_kernel:""")
    DPP = "row_mask:0xf bank_mask:0xf"
    def reduce64(v, t):
        a(f"""
        s_nop 1
        v_add_f32_dpp v{t}, v{v}, v{v} quad_perm:[1,0,3,2] {DPP}
        s_nop 1
        v_add_f32_dpp v{v}, v{t}, v{t} quad_perm:[2,3,0,1] {DPP}
        s_nop 1
        v_add_f32_dpp v{t}, v{v}, v{v} row_half_mirror {DPP}
        s_nop 1
        v_add_f32_dpp v{v}, v{t}, v{t} row_mirror {DPP}
        """)
        xlane_sum(a, v, t)
    a(f"""
    s_cmp_ge_u32 s2, 256
    s_cbranch_scc1 k0_exit
    s_load_dwordx4 s[4:7], s[0:1], 0          ; x, wqkv
    s_load_dwordx2 s[8:9], s[0:1], 32         ; w1
    s_load_dwordx2 s[10:11], s[0:1], 64       ; ws
    v_lshrrev_b32 v1, 6, v0
    v_and_b32 v0, 63, v0
    v_lshlrev_b32 v2, 4, v0                   ; lane*16
    v_readfirstlane_b32 s3, v1
    s_lshl_b32 s28, s2, 3
    s_nop 2
    s_add_u32 s28, s28, s3
    s_lshl_b32 s29, s28, 11
    s_waitcnt lgkmcnt(0)
    s_mov_b32 s12, s4
    s_and_b32 s13, s5, 0xffff
    s_mov_b32 s14, {2048*2048}
    s_mov_b32 s15, 0x20000
    buffer_load_dwordx4 v[4:7], v2, s[12:15], s29 offen
    buffer_load_dwordx4 v[8:11], v2, s[12:15], s29 offen offset:1024
    s_mov_b32 s16, s6
    s_and_b32 s17, s7, 0xffff
    s_mov_b32 s18, {1024*6144}
    s_mov_b32 s19, 0x20000
    s_mov_b32 s20, s8
    s_and_b32 s21, s9, 0xffff
    s_mov_b32 s22, {1024*7168}
    s_mov_b32 s23, 0x20000
    s_add_u32 s24, s10, {XN_OFF}
    s_addc_u32 s25, s11, 0
    s_and_b32 s25, s25, 0xffff
    s_mov_b32 s26, {2048*2048}
    s_mov_b32 s27, 0x20000
    s_cmp_lg_u32 s2, 0
    s_cbranch_scc1 k0_noz
    s_add_u32 s32, s10, {30 << 20}
    s_addc_u32 s33, s11, 0
    s_and_b32 s33, s33, 0xffff
    s_mov_b32 s34, 8192
    s_mov_b32 s35, 0x20000
    s_lshl_b32 s30, s3, 10
    v_mov_b32 v60, 0
    v_mov_b32 v61, 0
    v_mov_b32 v62, 0
    v_mov_b32 v63, 0
    buffer_store_dwordx4 v[60:63], v2, s[32:35], s30 offen
    s_waitcnt vmcnt(0)
k0_noz:
    s_mul_i32 s30, s28, 3072
    s_lshl_b32 s31, s28, 12
    """)
    nw = 0
    if "nowarm1" not in OPTS:
        a(f"""
        s_mov_b32 s18, {256*6144}
        s_mov_b32 s22, {256*7168}
        s_lshl_b32 s30, s28, 10
        buffer_load_dwordx4 v[32:35], v2, s[16:19], s30 offen
        buffer_load_dwordx4 v[36:39], v2, s[20:23], s30 offen
        """)
        nw = 2
    a(f"s_waitcnt vmcnt({nw})")
    for r in range(8):
        a(f"""
        v_lshlrev_b32 v{12+2*r}, 16, v{4+r}
        v_and_b32 v{13+2*r}, 0xffff0000, v{4+r}
        """)
    a("v_add_f32 v28, v12, v13")
    for r in range(14, 28):
        a(f"v_add_f32 v28, v28, v{r}")
    reduce64(28, 29)
    a("v_mul_f32 v28, 0x3a800000, v28")
    a("""
    v_sub_f32 v30, v12, v28
    v_mul_f32 v31, v30, v30
    """)
    for r in range(13, 28):
        a(f"""
        v_sub_f32 v30, v{r}, v28
        v_fmac_f32 v31, v30, v30
        """)
    reduce64(31, 29)
    a(f"""
    v_mul_f32 v31, 0x3a800000, v31            ; var
    v_cvt_pk_bf16_f32 v29, v28, v31
    v_lshlrev_b32 v28, 16, v29                ; m_b
    v_and_b32 v31, 0xffff0000, v29            ; v_b
    v_add_f32 v31, 0x3727c5ac, v31
    v_cvt_pk_bf16_f32 v31, v31, v31
    v_and_b32 v31, 0xffff0000, v31
    v_sqrt_f32 v31, v31
    s_nop 0
    v_cvt_pk_bf16_f32 v31, v31, v31
    v_and_b32 v31, 0xffff0000, v31
    v_rcp_f32 v31, v31
    s_nop 0
    """)
    for r in range(8):
        a(f"""
        v_sub_f32 v{12+2*r}, v{12+2*r}, v28
        v_sub_f32 v{13+2*r}, v{13+2*r}, v28
        v_cvt_pk_bf16_f32 v29, v{12+2*r}, v{13+2*r}
        v_lshlrev_b32 v{12+2*r}, 16, v29
        v_and_b32 v{13+2*r}, 0xffff0000, v29
        v_mul_f32 v{12+2*r}, v{12+2*r}, v31
        v_mul_f32 v{13+2*r}, v{13+2*r}, v31
        v_cvt_pk_bf16_f32 v{4+r}, v{12+2*r}, v{13+2*r}
        """)
    a("""
    buffer_store_dwordx4 v[4:7], v2, s[24:27], s29 offen
    buffer_store_dwordx4 v[8:11], v2, s[24:27], s29 offen offset:1024
    """)
    a.label("k0_exit")
    a("s_endpgm")

G2_NB = 6
G2_LDS = G2_NB * 16384
def code_prefetch(a, vtmp, vlane, stmp, start_label, end_label, nbytes, vdst):
    a(f"""
    s_getpc_b64 {sr(stmp)}
    """)
    a.label(start_label + "_pc")
    a(f"""
    s_add_u32 s{stmp}, s{stmp}, {start_label}-{start_label}_pc
    s_addc_u32 s{stmp+1}, s{stmp+1}, -1
    v_lshlrev_b32 v{vtmp}, 7, v{vlane}
    """)
    for i in range((nbytes + 8191) // 8192):
        if i: a(f"v_add_u32 v{vtmp}, 0x2000, v{vtmp}")
        a(f"""
        v_min_u32 v{vtmp+1}, {end_label}-{start_label}-4, v{vtmp}
        global_load_dword v{vdst}, v{vtmp+1}, {sr(stmp)}
        """)

def gen_g2(a):
    NBUF = G2_NB; D = NBUF - 1
    NTB = "nt " if "g2ntB" in OPTS else ""
    SRD_A = 12; SRD_B = 16; SRD_XX = 20; SRD_OUT = 24
    S_WO = 4; S_W2 = 6; S_XP = 8; S_OUTP = 10; S_WSP = 28
    S_WV = 30; S_GK = 31; S_MW2 = 32; S_MT2 = 33; S_NT = 34; S_TRIP = 35
    S_KAA = 36; S_KBB = 37; S_MB0 = 38; S_T = 39; S_T2 = 40; S_T3 = 41; S_PC = 42; S_P = 44; S_KA0 = 45; S_WOL = 46; S_WOH = 47; S_SZ = 48; S_CNT = 49
    V_AB = 0
    V_W = V_AB + NBUF * 16
    V_AC = V_W + 64
    V_XR = V_AC + 32
    V_AA = V_XR + 8
    V_DBB = V_AA + 2
    V_RBB = V_DBB + 2
    T = V_RBB + 8
    VL = T + 14; VT = T + 15; VG = T + 16
    global G2_VGPRS
    G2_VGPRS = 256 if STAMP else VG + 2
    def ab(u, tb, kk): return V_AB + u * 16 + (tb * 2 + kk) * 4
    def w(par, s, kk): return V_W + par * 32 + (s * 2 + kk) * 4
    def ac(s, tb): return V_AC + (s * 2 + tb) * 4
    a.raw("""
.globl g2_kernel
.p2align 8
.type g2_kernel,@function
g2_kernel:""")
    a(f"""
    s_cmp_ge_u32 s2, 256
    s_cbranch_scc1 g2_exit
    s_load_dwordx2 s[{S_XP}:{S_XP+1}], s[0:1], 0
    s_load_dwordx2 s[{S_WO}:{S_WO+1}], s[0:1], 16
    s_load_dwordx2 s[{S_W2}:{S_W2+1}], s[0:1], 40
    s_load_dwordx2 s[{S_OUTP}:{S_OUTP+1}], s[0:1], 48
    s_load_dwordx2 s[{S_WSP}:{S_WSP+1}], s[0:1], 64
    v_and_b32 v{VL}, 63, v0
    v_lshrrev_b32 v{T}, 6, v0
    v_and_b32 v{VT}, 15, v0
    v_readfirstlane_b32 s{S_WV}, v{T}
    v_bfe_u32 v{VG}, v0, 4, 2
    """)
    if STAMP: a(f"v_mov_b32 v{V_STAMP}, 0")
    stamp_now(a, 32); stamp_now(a, 50, True)
    npf = 0
    if "nocodepf" not in OPTS:
        code_prefetch(a, T + 12, VL, S_PC, "g2_kernel", "g2_exit", 4096, VG + 1); npf = 1
    a(f"""
    s_and_b32 s{S_T}, s2, 7
    s_lshr_b32 s{S_T2}, s2, 3
    s_lshr_b32 s{S_MT2}, s{S_T}, 1
    s_lshl_b32 s{S_MT2}, s{S_MT2}, 2
    s_and_b32 s{S_T3}, s{S_T2}, 3
    s_add_u32 s{S_MT2}, s{S_MT2}, s{S_T3}     ; mt 0..15
    s_and_b32 s{S_NT}, s{S_T}, 1
    s_lshl_b32 s{S_NT}, s{S_NT}, 3
    s_lshr_b32 s{S_T2}, s{S_T2}, 2
    s_add_u32 s{S_NT}, s{S_NT}, s{S_T2}       ; nt 0..15
    s_lshr_b32 s{S_GK}, s{S_WV}, 2
    s_and_b32 s{S_MW2}, s{S_WV}, 3
    ; A voffsets
    s_lshl_b32 s{S_T}, s{S_MT2}, 3
    s_lshl_b32 s{S_T2}, s{S_MW2}, 1
    s_add_u32 s{S_T}, s{S_T}, s{S_T2}         ; mblk0
    s_mul_i32 s{S_T}, s{S_T}, {MBLK_PITCH}
    v_lshl_add_u32 v{V_AA}, v{VL}, 4, s{S_T}
    v_add_u32 v{V_AA+1}, {MBLK_PITCH}, v{V_AA}
    s_lshl_b32 s{S_KAA}, s{S_GK}, 11          ; K-step * 2048
    v_lshrrev_b32 v{T}, 3, v{VL}
    s_lshl_b32 s{S_T}, s{S_WV}, 4
    v_add_u32 v{T+1}, s{S_T}, v{T}            ; row (e=0)
    v_lshlrev_b32 v{T+1}, 11, v{T+1}
    s_lshl_b32 s{S_T}, s{S_NT}, 7
    v_add_u32 v{T+1}, s{S_T}, v{T+1}
    v_and_b32 v{T+2}, 1, v{VL}
    v_lshl_add_u32 v{T+1}, v{T+2}, 4, v{T+1}  ; + (c'&1)*16
    v_bfe_u32 v{T+2}, v{VL}, 1, 2             ; unit'
    v_bfe_u32 v{T+3}, v{VL}, 4, 1             ; bit1(l>>3)
    v_xor_b32 v{T+2}, v{T+2}, v{T+3}
    v_lshl_add_u32 v{V_DBB}, v{T+2}, 5, v{T+1}
    v_xor_b32 v{T+2}, 2, v{T+2}
    v_lshl_add_u32 v{V_DBB+1}, v{T+2}, 5, v{T+1}
    v_add_u32 v{V_DBB+1}, {8*2048}, v{V_DBB+1}
    s_lshl_b32 s{S_MB0}, s{S_WV}, 11
    s_mov_b32 s{S_KBB}, 0
    s_waitcnt lgkmcnt(0)
    s_mov_b32 s{SRD_A}, s{S_WSP}
    s_and_b32 s{SRD_A+1}, s{S_WSP+1}, 0xffff
    s_mov_b32 s{SRD_A+2}, {A2_BYTES}
    s_mov_b32 s{SRD_A+3}, 0x20000
    s_mov_b32 s{SRD_B}, s{S_WO}
    s_and_b32 s{SRD_B+1}, s{S_WO+1}, 0xffff
    s_mov_b32 s{SRD_B+2}, {1024*2048}
    s_mov_b32 s{SRD_B+3}, 0x20000
    """)
    def prefetch(u):
        for e in range(2):
            if "g2noB" in OPTS:
                a(f"buffer_load_dword v{T+12}, off, {sr(SRD_B,4)}, 0")
                continue
            a(f"""
            s_add_u32 m0, s{S_MB0}, {u*16384 + e*1024}
            s_nop 0
            buffer_load_dwordx4 v{V_DBB+e}, {sr(SRD_B,4)}, s{S_KBB} offen {NTB}lds
            """)
        for tb in range(2):
            for kk in range(2):
                if "g2noA" in OPTS:
                    a(f"buffer_load_dword v{T+12}, off, {sr(SRD_B,4)}, 0")
                    continue
                a(f"buffer_load_dwordx4 {vr(ab(u,tb,kk))}, v{V_AA+tb}, {sr(SRD_A,4)}, s{S_KAA} offen offset:{kk*1024}" + (" nt" if "g2ntA" in OPTS else ""))
        advance()
    def advance():
        a(f"""
        s_add_u32 s{S_P}, s{S_P}, 1
        s_cmp_eq_u32 s{S_P}, 36
        s_cselect_b32 s{S_P}, 0, s{S_P}
        s_add_u32 s{S_CNT}, s{S_CNT}, 1
        """)
        setpos()
    def setpos():
        a(f"""
        s_lshl_b32 s{S_KAA}, s{S_P}, 12
        s_add_u32 s{S_KAA}, s{S_KAA}, s{S_KA0}
        s_cmp_lt_u32 s{S_P}, 8
        s_cselect_b32 s{SRD_B}, s{S_WOL}, s{S_W2}
        s_cselect_b32 s{SRD_B+1}, s{S_WOH}, s{S_W2+1}
        s_cselect_b32 s{SRD_B+2}, {1024*2048}, s{S_SZ}
        s_cselect_b32 s{S_T}, 0, 8
        s_sub_u32 s{S_T}, s{S_P}, s{S_T}
        s_lshl_b32 s{S_KBB}, s{S_T}, 18
        s_cmp_ge_u32 s{S_CNT}, 36
        s_cselect_b32 s{SRD_B+2}, 0, s{SRD_B+2}
        s_cselect_b32 s{SRD_A+2}, 0, s{SRD_A+2}
        s_cselect_b32 s{S_MB0}, {G2_LDS}, s{S_MB0}
        """)
    rotmul = (1, 2)
    for o in OPTS:
        if o.startswith("rot="): rotmul = tuple(int(x) for x in o[4:].split(","))
    a(f"""
    s_and_b32 s{S_W2+1}, s{S_W2+1}, 0xffff
    s_mov_b32 s{S_WOL}, s{S_WO}
    s_and_b32 s{S_WOH}, s{S_WO+1}, 0xffff
    s_mov_b32 s{S_SZ}, {3584*2048}
    s_mov_b32 s{S_KA0}, s{S_KAA}
    s_mov_b32 s{S_CNT}, 0
    s_and_b32 s{S_T}, s{S_NT}, 7
    s_mul_i32 s{S_T}, s{S_T}, {rotmul[0]}
    s_and_b32 s{S_T2}, s{S_MT2}, 3
    s_mul_i32 s{S_T2}, s{S_T2}, {rotmul[1]}
    s_add_u32 s{S_P}, s{S_T}, s{S_T2}
    """)
    setpos()
    if "g2tlb" in OPTS:
        a(f"""
        s_lshr_b32 s{S_T}, s2, 3
        s_lshl_b32 s{S_T}, s{S_T}, 3
        s_add_u32 s{S_T}, s{S_T}, s{S_WV}          ; j
        s_lshl_b32 s{S_T2}, s{S_T}, 18             ; j*64 pages*4096
        v_lshl_add_u32 v{T+12}, v{VL}, 12, s{S_T2}
        s_cmp_lt_u32 s{S_T}, 18
        s_cbranch_scc0 g2_tlb1
        s_and_b32 s{S_T3}, s{S_MT2}, 12
        s_mul_i32 s{S_T3}, s{S_T3}, {8*MBLK_PITCH}
        buffer_load_dword v{T+13}, v{T+12}, {sr(SRD_A,4)}, s{S_T3} offen
        s_branch g2_tlb3
        """)
        a.label("g2_tlb1")
        a(f"""
        s_cmp_lt_u32 s{S_T}, 26
        s_cbranch_scc0 g2_tlb2
        v_subrev_u32 v{T+12}, {18<<18}, v{T+12}
        global_load_dword v{T+13}, v{T+12}, s[{S_WO}:{S_WO+1}]
        s_branch g2_tlb3
        """)
        a.label("g2_tlb2")
        a(f"""
        s_cmp_lt_u32 s{S_T}, 54
        s_cbranch_scc0 g2_tlb3
        v_subrev_u32 v{T+12}, {26<<18}, v{T+12}
        global_load_dword v{T+13}, v{T+12}, s[{S_W2}:{S_W2+1}]
        """)
        a.label("g2_tlb3")
    for u in range(D):
        prefetch(u)
    V_XA = T + 4; V_OA = T + 5
    a(f"""
    s_mov_b32 s{SRD_XX}, s{S_XP}
    s_and_b32 s{SRD_XX+1}, s{S_XP+1}, 0xffff
    s_mov_b32 s{SRD_XX+2}, {2048*2048}
    s_mov_b32 s{SRD_XX+3}, 0x20000
    s_mov_b32 s{SRD_OUT}, s{S_OUTP}
    s_and_b32 s{SRD_OUT+1}, s{S_OUTP+1}, 0xffff
    s_mov_b32 s{SRD_OUT+2}, {2048*2048}
    s_mov_b32 s{SRD_OUT+3}, 0x20000
    v_lshrrev_b32 v{T}, 2, v{VT}              ; r
    v_lshl_add_u32 v{T+1}, v{VG}, 3, v{T}
    v_lshlrev_b32 v{T+1}, 7, v{T+1}
    s_lshl_b32 s{S_T}, s{S_GK}, 13
    v_add_u32 v{T+1}, s{S_T}, v{T+1}
    v_and_b32 v{T+2}, 3, v{VL}
    v_lshl_add_u32 v{T+1}, v{T+2}, 3, v{T+1}
    v_and_b32 v{T+2}, 1, v{VG}
    v_lshrrev_b32 v{T+3}, 1, v{T}
    v_lshl_or_b32 v{T+2}, v{T+2}, 1, v{T+3}   ; f
    s_lshl_b32 s{S_T}, s{S_GK}, 1
    v_xor_b32 v{T+2}, s{S_T}, v{T+2}          ; f ^ 2Gk
    """)
    for s in range(4):
        a(f"""
        v_xor_b32 v{T+3}, {s}, v{T+2}
        v_lshl_add_u32 v{V_RBB+s}, v{T+3}, 5, v{T+1}
        v_add_u32 v{V_RBB+4+s}, 0xc000, v{V_RBB+s}
        """)
    a(f"""
    s_lshl_b32 s{S_T}, s{S_MT2}, 7
    s_lshl_b32 s{S_T2}, s{S_MW2}, 5
    s_add_u32 s{S_T}, s{S_T}, s{S_T2}
    v_add_u32 v{T}, s{S_T}, v{VT}
    v_lshlrev_b32 v{T}, 11, v{T}
    s_lshl_b32 s{S_T}, s{S_NT}, 7
    s_lshl_b32 s{S_T2}, s{S_GK}, 6
    s_add_u32 s{S_T}, s{S_T}, s{S_T2}
    v_add_u32 v{T}, s{S_T}, v{T}
    v_lshl_add_u32 v{V_XA}, v{VG}, 3, v{T}    ; + g*8
    v_and_b32 v{T+1}, 1, v{VG}
    v_lshrrev_b32 v{T+2}, 1, v{VG}
    v_lshl_or_b32 v{T+1}, v{T+1}, 1, v{T+2}   ; sigma
    v_lshl_add_u32 v{V_OA}, v{T+1}, 4, v{T}
    """)
    for r in range(V_AC, V_AC + 32):
        a(f"v_mov_b32 v{r}, 0")
    def reads(u, par):
        hi = 4 if u >= 3 else 0
        uo = (u - 3 if u >= 3 else u) * 16384
        for kk in range(2):
            for s in range(4):
                for h in range(2):
                    if "g2nocomp" in OPTS: continue
                    a(f"ds_read_b64_tr_b16 {vr(w(par,s,kk)+2*h,2)}, v{V_RBB+hi+s} offset:{uo + kk*4096 + h*512}")
    a(f"""
    s_mov_b32 s{S_TRIP}, 0
    s_waitcnt vmcnt({4 + 6*(D-1)})
    s_barrier
    """)
    reads(0, 0)
    stamp_now(a, 33)
    def body(u):
        par = u & 1
        a(f"""
        s_waitcnt vmcnt({4 + 6*(D-2)})
        s_barrier
        """)
        prefetch((u + D) % NBUF)
        a("s_waitcnt lgkmcnt(0)")
        reads((u + 1) % NBUF, par ^ 1)
        for kk in range(2):
            for s in range(4):
                for tb in range(2):
                    if "g2nocomp" in OPTS: continue
                    a(f"v_mfma_f32_16x16x32_bf16 {vr(ac(s,tb))}, {vr(w(par,s,kk))}, {vr(ab(u,tb,kk))}, {vr(ac(s,tb))}")
    a.raw(".p2align 6")
    a.label("g2_loop")
    for u in range(NBUF):
        body(u)
    a(f"""
    s_add_u32 s{S_TRIP}, s{S_TRIP}, 1
    s_cmp_lt_u32 s{S_TRIP}, {36 // NBUF}
    s_cbranch_scc1 g2_loop
    s_mov_b32 s{S_T}, {16*2048}
    """)
    stamp_now(a, 34)
    for tb in range(2):
        for e in range(2):
            so = "0" if tb == 0 else f"s{S_T}"
            a(f"buffer_load_dwordx2 {vr(V_XR+(tb*2+e)*2,2)}, v{V_XA}, {sr(SRD_XX,4)}, {so} offen offset:{e*32}")
    a(f"""
    s_waitcnt vmcnt(4) lgkmcnt(0)
    s_barrier
    s_lshl_b32 s{S_T}, s{S_WV}, 12
    v_lshl_add_u32 v{T}, v{VL}, 4, s{S_T}
    v_xor_b32 v{T+1}, 16384, v{T}
    """)
    for s in range(2):
        for tb in range(2):
            a(f"ds_write_b128 v{T}, {vr(ac(2+s,tb))} offset:{(s*2+tb)*1024}")
    a("""
    s_waitcnt lgkmcnt(0)
    s_barrier
    """)
    for s in range(2):
        for tb in range(2):
            a(f"ds_read_b128 {vr(V_W+(s*2+tb)*4)}, v{T+1} offset:{(s*2+tb)*1024}")
    a("s_waitcnt vmcnt(0) lgkmcnt(0)")
    for tb in range(2):
        o = V_AB + tb * 4
        for s in range(2):
            c = ac(s, tb); p = V_W + (s * 2 + tb) * 4; xr = V_XR + (tb * 2 + s) * 2
            a(f"""
            v_lshlrev_b32 v{T+8}, 16, v{xr}
            v_and_b32 v{T+9}, 0xffff0000, v{xr}
            v_lshlrev_b32 v{T+10}, 16, v{xr+1}
            v_and_b32 v{T+11}, 0xffff0000, v{xr+1}
            v_pk_add_f32 {vr(c,2)}, {vr(c,2)}, {vr(p,2)}
            v_pk_add_f32 {vr(c+2,2)}, {vr(c+2,2)}, {vr(p+2,2)}
            v_pk_add_f32 {vr(c,2)}, {vr(c,2)}, {vr(T+8,2)}
            v_pk_add_f32 {vr(c+2,2)}, {vr(c+2,2)}, {vr(T+10,2)}
            v_cvt_pk_bf16_f32 v{o+2*s}, v{c}, v{c+1}
            v_cvt_pk_bf16_f32 v{o+2*s+1}, v{c+2}, v{c+3}
            """)
        so = "0" if tb == 0 else f"s{S_T2}"
        a(f"""
        s_mov_b32 s{S_T2}, {16*2048}
        s_nop 0
        v_permlane16_swap_b32 v{o}, v{o+2}
        v_permlane16_swap_b32 v{o+1}, v{o+3}
        s_nop 1
        buffer_store_dwordx4 {vr(o)}, v{V_OA}, {sr(SRD_OUT,4)}, {so} offen
        """)
    stamp_now(a, 51, True)
    stamp_dump(a, S_WSP, S_WV, 40 << 20)
    a.label("g2_exit")
    a("s_endpgm")

C_ASLOT = 16384; C_NA = 3
C_BSLOT = 16384; C_NBS = 4
C_BBASE = 2 * C_NA * C_ASLOT
G2C_LDS = C_BBASE + C_NBS * C_BSLOT
SLAB_OFF = 64 << 20
FLAG_OFF = 30 << 20
SLAB_BYTES = 64 * 4 * 131072
NKS = 18
PUBF = "sc1" if "pubsc1" in OPTS else ("sc0 sc1 nt" if "pubnt" in OPTS else "sc0 sc1")
GETF = "sc1" if "pubsc1" in OPTS else "sc0 sc1"
def gen_g2c(a):
    XF = 64; WF = 96
    def acc(c, t): return (c * 4 + t) * 4
    def xf(t, kk): return XF + (t * 2 + kk) * 4
    def wf(c, kk): return WF + (c * 2 + kk) * 4
    V_RA = 128; V_RB = 129; V_DA = 133; V_DB = 134; VL = 135; VT = 136; VG = 137; T = 138
    VPF = 152; VH = 153; VHA = 154; VHL = 156
    S_XP = 4; S_WO = 6; S_W2 = 8; S_OUTP = 10; S_DBG = 28; S_WSP = 30
    SRD_A = 12; SRD_B = 16; SRD_S = 20; SRD_X = 24; SRD_O = 32; SRD_F = 36
    S_WV = 40; S_MW = 41; S_NW = 42; S_WQ = 43; S_MT = 44; S_NT = 45; S_KQ = 46; S_J = 47
    S_KA = 48; S_PA = 49; S_PB = 50; S_MA = 51; S_MB = 52; S_MAE = 53; S_MBE = 54; S_ASL = 55; S_BSL = 56
    S_RAS = 57; S_RBS = 58; S_T = 59; S_T2 = 60; S_T3 = 61; S_KB = 62; S_SZ2 = 63; S_CUR = 64; S_DONE = 65
    S_TILE = 66; S_G = 67; S_CNT = 68; S_ARR = 69; S_PC = 70; S_DA = 72; S_DB = 73; S_Q = 74; S_ASZ = 75; S_XCC = 76; S_FB = 77; S_LOC = 78
    a.raw("""
.globl g2_kernel
.p2align 8
.type g2_kernel,@function
g2_kernel:""")
    a(f"""
    s_cmp_ge_u32 s2, 256
    s_cbranch_scc1 g2_exit
    s_load_dwordx2 s[{S_XP}:{S_XP+1}], s[0:1], 0
    s_load_dwordx2 s[{S_WO}:{S_WO+1}], s[0:1], 16
    s_load_dwordx4 s[{S_W2}:{S_W2+3}], s[0:1], 40      ; w2, out
    s_load_dwordx4 s[{S_DBG}:{S_DBG+3}], s[0:1], 56
    v_and_b32 v{VL}, 63, v0
    v_lshrrev_b32 v{T}, 6, v0
    v_and_b32 v{VT}, 15, v0
    v_readfirstlane_b32 s{S_WV}, v{T}
    v_bfe_u32 v{VG}, v0, 4, 2
    """)
    if STAMP: a(f"v_mov_b32 v{V_STAMP}, 0")
    stamp_now(a, 32); stamp_now(a, 50, True)
    a(f"""
    s_nop 2
    s_cmp_lg_u32 s{S_WV}, 7
    s_cbranch_scc1 g2_nopf
    """)
    code_prefetch(a, T, VL, S_PC, "g2_kernel", "g2_exit", 8192, VPF)
    a.label("g2_nopf")
    a(f"""
    s_and_b32 s{S_KQ}, s2, 3
    s_bfe_u32 s{S_T}, s2, 0x10002             ; M half
    s_lshr_b32 s{S_T2}, s2, 3                 ; idx
    s_and_b32 s{S_MT}, s{S_T2}, 3
    s_lshl_b32 s{S_T}, s{S_T}, 2
    s_add_u32 s{S_MT}, s{S_MT}, s{S_T}        ; mt 0..7
    s_lshr_b32 s{S_NT}, s{S_T2}, 2            ; nt 0..7
    s_lshl_b32 s{S_TILE}, s{S_MT}, 3
    s_add_u32 s{S_TILE}, s{S_TILE}, s{S_NT}
    s_lshr_b32 s{S_G}, s{S_WV}, 2
    s_and_b32 s{S_WQ}, s{S_WV}, 3
    s_and_b32 s{S_NW}, s{S_WV}, 1
    s_bfe_u32 s{S_MW}, s{S_WV}, 0x10001
    s_lshr_b32 s{S_Q}, s{S_WV}, 1
    s_xor_b32 s{S_T}, s{S_G}, 1
    s_lshl_b32 s{S_T2}, s{S_T}, 3
    s_lshl_b32 s{S_T3}, s{S_MT}, 4
    s_add_u32 s{S_T2}, s{S_T2}, s{S_T3}
    s_lshl_b32 s{S_T3}, s{S_WQ}, 1
    s_add_u32 s{S_T2}, s{S_T2}, s{S_T3}
    s_mul_i32 s{S_T2}, s{S_T2}, {MBLK_PITCH}
    v_lshl_add_u32 v{V_DA}, v{VL}, 4, s{S_T2}
    s_mul_i32 s{S_DA}, s{S_T}, {C_NA*C_ASLOT}
    s_lshl_b32 s{S_T3}, s{S_WQ}, 12
    s_add_u32 s{S_DA}, s{S_DA}, s{S_T3}
    v_lshrrev_b32 v{T}, 4, v{VL}
    s_lshl_b32 s{S_T}, s{S_WV}, 3
    v_add_u32 v{T+1}, s{S_T}, v{T}
    v_lshlrev_b32 v{T+1}, 11, v{T+1}
    s_lshl_b32 s{S_T}, s{S_NT}, 8
    v_add_u32 v{T+1}, s{S_T}, v{T+1}
    v_and_b32 v{T+2}, 1, v{VL}
    v_lshl_add_u32 v{T+1}, v{T+2}, 4, v{T+1}
    v_bfe_u32 v{T+2}, v{VL}, 1, 3
    s_lshl_b32 s{S_T}, s{S_NW}, 2
    v_or_b32 v{T}, s{S_T}, v{T}
    v_xor_b32 v{T+2}, v{T+2}, v{T}
    v_lshl_add_u32 v{V_DB}, v{T+2}, 5, v{T+1}
    s_lshl_b32 s{S_DB}, s{S_WV}, 11
    s_add_u32 s{S_DB}, s{S_DB}, {C_BBASE}
    s_waitcnt lgkmcnt(0)
    s_mov_b32 s{SRD_A}, s{S_WSP}
    s_and_b32 s{SRD_A+1}, s{S_WSP+1}, 0xffff
    s_mov_b32 s{SRD_A+3}, 0x20000
    s_mov_b32 s{SRD_B+3}, 0x20000
    s_and_b32 s{S_WO+1}, s{S_WO+1}, 0xffff
    s_and_b32 s{S_W2+1}, s{S_W2+1}, 0xffff
    s_mov_b32 s{S_SZ2}, {3584*2048}
    s_mov_b32 s{S_ASZ}, {A2_BYTES}
    s_mov_b32 s{S_CUR}, s{S_KQ}
    s_lshl_b32 s{S_DONE}, s{S_KQ}, 3
    s_lshl_b32 s{S_DONE}, 1, s{S_DONE}
    s_mov_b32 s{S_ARR}, 0
    s_mov_b32 s{S_LOC}, 0
    s_add_u32 s{SRD_S}, s{S_WSP}, {SLAB_OFF}
    s_addc_u32 s{SRD_S+1}, s{S_WSP+1}, 0
    s_and_b32 s{SRD_S+1}, s{SRD_S+1}, 0xffff
    s_mov_b32 s{SRD_S+2}, {SLAB_BYTES}
    s_mov_b32 s{SRD_S+3}, 0x20000
    s_add_u32 s{SRD_F}, s{S_WSP}, {FLAG_OFF}
    s_addc_u32 s{SRD_F+1}, s{S_WSP+1}, 0
    s_and_b32 s{SRD_F+1}, s{SRD_F+1}, 0xffff
    s_mov_b32 s{SRD_F+2}, {64*128}
    s_mov_b32 s{SRD_F+3}, 0x20000
    s_lshl_b32 s{S_FB}, s{S_TILE}, 7
    s_mov_b32 s{SRD_X}, s{S_XP}
    s_and_b32 s{SRD_X+1}, s{S_XP+1}, 0xffff
    s_mov_b32 s{SRD_X+2}, {2048*2048}
    s_mov_b32 s{SRD_X+3}, 0x20000
    s_mov_b32 s{SRD_O}, s{S_OUTP}
    s_and_b32 s{SRD_O+1}, s{S_OUTP+1}, 0xffff
    s_mov_b32 s{SRD_O+2}, {2048*2048}
    s_mov_b32 s{SRD_O+3}, 0x20000
    """)
    for r in range(64):
        a(f"v_mov_b32 v{r}, 0")
    def setA():
        a(f"""
        s_mul_i32 s{S_T}, s{S_CUR}, {NKS}
        s_add_u32 s{S_T}, s{S_T}, s{S_PA}
        s_lshl_b32 s{S_KA}, s{S_T}, 11
        s_cmp_ge_u32 s{S_PA}, {NKS}
        s_cselect_b32 s{SRD_A+2}, 0, s{S_ASZ}
        s_cselect_b32 s{S_MAE}, {LDS_DUMP}, s{S_MA}
        """)
    def setB():
        a(f"""
        s_mul_i32 s{S_T}, s{S_CUR}, {NKS}
        s_add_u32 s{S_T}, s{S_T}, s{S_PB}
        s_cmp_lt_u32 s{S_T}, 16
        s_cselect_b32 s{SRD_B}, s{S_WO}, s{S_W2}
        s_cselect_b32 s{SRD_B+1}, s{S_WO+1}, s{S_W2+1}
        s_cselect_b32 s{SRD_B+2}, {1024*2048}, s{S_SZ2}
        s_cselect_b32 s{S_T2}, 0, 16
        s_sub_u32 s{S_T}, s{S_T}, s{S_T2}
        s_lshl_b32 s{S_KB}, s{S_T}, 17
        s_cmp_ge_u32 s{S_PB}, {NKS}
        s_cselect_b32 s{SRD_B+2}, 0, s{SRD_B+2}
        s_cselect_b32 s{S_MBE}, {LDS_DUMP}, s{S_MB}
        """)
    def dmaA_list():
        L = []
        for e in range(2):
            L.append(f"""
            s_add_u32 m0, s{S_MAE}, {e*2048}
            s_add_u32 s{S_T3}, s{S_KA}, {e*MBLK_PITCH}
            buffer_load_dwordx4 v{V_DA}, {sr(SRD_A,4)}, s{S_T3} offen lds
            """)
            L.append(f"buffer_load_dwordx4 v{V_DA}, {sr(SRD_A,4)}, s{S_T3} offen offset:1024 lds")
        return L
    def dmaB_list():
        L = []
        for e in range(2):
            L.append(f"""
            s_add_u32 m0, s{S_MBE}, {e*1024}
            s_add_u32 s{S_T3}, s{S_KB}, {e*8192}
            buffer_load_dwordx4 v{V_DB}, {sr(SRD_B,4)}, s{S_T3} offen lds
            """)
        return L
    def advA():
        a(f"""
        s_add_u32 s{S_PA}, s{S_PA}, 1
        s_add_u32 s{S_ASL}, s{S_ASL}, 1
        s_add_u32 s{S_MA}, s{S_MA}, {C_ASLOT}
        s_cmp_eq_u32 s{S_ASL}, {C_NA}
        s_cselect_b32 s{S_ASL}, 0, s{S_ASL}
        s_cselect_b32 s{S_MA}, s{S_DA}, s{S_MA}
        """)
        setA()
    def advB():
        a(f"""
        s_add_u32 s{S_PB}, s{S_PB}, 1
        s_add_u32 s{S_BSL}, s{S_BSL}, 1
        s_add_u32 s{S_MB}, s{S_MB}, {C_BSLOT}
        s_cmp_eq_u32 s{S_BSL}, {C_NBS}
        s_cselect_b32 s{S_BSL}, 0, s{S_BSL}
        s_cselect_b32 s{S_MB}, s{S_DB}, s{S_MB}
        """)
        setB()
    def doA():
        for d in dmaA_list(): a(d)
        advA()
    def doB():
        for d in dmaB_list(): a(d)
        advB()
    a.label("g2_gemm")
    a(f"""
    s_mov_b32 s{S_PA}, 0
    s_mov_b32 s{S_PB}, 0
    s_mov_b32 s{S_ASL}, 0
    s_mov_b32 s{S_BSL}, 0
    s_mov_b32 s{S_MA}, s{S_DA}
    s_mov_b32 s{S_MB}, s{S_DB}
    """)
    setA(); setB()
    a(f"""
    s_cmp_eq_u32 s{S_G}, 0
    s_cbranch_scc0 g2_pro1
    """)
    doB(); doA(); doB(); doA(); doB()
    a("s_branch g2_pro2")
    a.label("g2_pro1")
    doA(); doB(); doA(); doB(); doA(); doB()
    a.label("g2_pro2")
    a(f"""
    s_mul_i32 s{S_T}, s{S_G}, {C_NA*C_ASLOT}
    s_lshl_b32 s{S_T2}, s{S_MW}, 13
    s_add_u32 s{S_T}, s{S_T}, s{S_T2}
    v_lshl_add_u32 v{V_RA}, v{VL}, 4, s{S_T}
    v_lshrrev_b32 v{T}, 2, v{VT}              ; r
    v_lshl_add_u32 v{T+1}, v{VG}, 3, v{T}
    v_lshlrev_b32 v{T+1}, 8, v{T+1}
    v_and_b32 v{T+2}, 3, v{VL}
    v_lshl_add_u32 v{T+1}, v{T+2}, 3, v{T+1}
    v_add_u32 v{T+1}, {C_BBASE}, v{T+1}
    v_and_b32 v{T+2}, 1, v{VG}
    v_lshl_or_b32 v{T+2}, v{T+2}, 2, v{T}     ; f = r | (g&1)<<2
    s_lshl_b32 s{S_T}, s{S_NW}, 2
    v_xor_b32 v{T+2}, s{S_T}, v{T+2}
    """)
    for c in range(4):
        a(f"""
        v_xor_b32 v{T+3}, {c}, v{T+2}
        v_lshl_add_u32 v{V_RB+c}, v{T+3}, 5, v{T+1}
        """)
    a(f"""
    s_mov_b32 s{S_J}, 0
    s_mov_b32 s{S_RAS}, 0
    s_mov_b32 s{S_RBS}, 0
    s_waitcnt vmcnt(12)
    s_barrier
    """)
    stamp_now(a, 33)
    a(f"""
    s_cmp_eq_u32 s{S_G}, 0
    s_cbranch_scc1 g2_loop
    s_barrier
    """)
    reads = []
    for kk in range(2):
        for t in range(4):
            reads.append(f"ds_read_b128 {vr(xf(t,kk))}, v{V_RA} offset:{(t*2+kk)*1024}")
        for c in range(4):
            for h in range(2):
                reads.append(f"ds_read_b64_tr_b16 {vr(wf(c,kk)+2*h,2)}, v{V_RB+c} offset:{(32*kk+4*h)*256}")
    a.raw(".p2align 6")
    a.label("g2_loop")
    dl = dmaA_list() + dmaB_list()
    di = 0
    for n_, r in enumerate(reads):
        a(r)
        if n_ % 4 == 1 and di < len(dl):
            a(dl[di]); di += 1
    assert di == len(dl)
    a("""
    s_waitcnt vmcnt(12) lgkmcnt(0)
    s_barrier
    s_setprio 1
    """)
    real = a; a = bk = Collect()
    def _adv():
        pass
    bk(f"""
    s_add_u32 s{S_PA}, s{S_PA}, 1
    s_add_u32 s{S_ASL}, s{S_ASL}, 1
    s_add_u32 s{S_MA}, s{S_MA}, {C_ASLOT}
    s_cmp_eq_u32 s{S_ASL}, {C_NA}
    s_cselect_b32 s{S_ASL}, 0, s{S_ASL}
    s_cselect_b32 s{S_MA}, s{S_DA}, s{S_MA}
    s_add_u32 s{S_KA}, s{S_KA}, 2048
    s_cmp_ge_u32 s{S_PA}, {NKS}
    s_cselect_b32 s{SRD_A+2}, 0, s{S_ASZ}
    s_cselect_b32 s{S_MAE}, {LDS_DUMP}, s{S_MA}
    s_add_u32 s{S_PB}, s{S_PB}, 1
    s_add_u32 s{S_BSL}, s{S_BSL}, 1
    s_add_u32 s{S_MB}, s{S_MB}, {C_BSLOT}
    s_cmp_eq_u32 s{S_BSL}, {C_NBS}
    s_cselect_b32 s{S_BSL}, 0, s{S_BSL}
    s_cselect_b32 s{S_MB}, s{S_DB}, s{S_MB}
    s_add_u32 s{S_KB}, s{S_KB}, {1<<17}
    s_lshl_b32 s{S_T}, s{S_CUR}, 8
    s_add_u32 s{S_T}, s{S_T}, s{S_PB}
    s_cmp_eq_u32 s{S_T}, 16
    s_cselect_b32 s{SRD_B}, s{S_W2}, s{SRD_B}
    s_cselect_b32 s{SRD_B+1}, s{S_W2+1}, s{SRD_B+1}
    s_cselect_b32 s{SRD_B+2}, s{S_SZ2}, s{SRD_B+2}
    s_cselect_b32 s{S_KB}, 0, s{S_KB}
    s_cmp_ge_u32 s{S_PB}, {NKS}
    s_cselect_b32 s{SRD_B+2}, 0, s{SRD_B+2}
    s_cselect_b32 s{S_MBE}, {LDS_DUMP}, s{S_MB}
    s_add_u32 s{S_RAS}, s{S_RAS}, 1
    s_cmp_eq_u32 s{S_RAS}, {C_NA}
    s_cselect_b32 s{S_RAS}, 0, s{S_RAS}
    s_cselect_b32 s{S_T}, {C_NA*C_ASLOT}, 0
    s_sub_u32 s{S_T}, {C_ASLOT}, s{S_T}
    v_add_u32 v{V_RA}, s{S_T}, v{V_RA}
    s_add_u32 s{S_RBS}, s{S_RBS}, 1
    s_cmp_eq_u32 s{S_RBS}, {C_NBS}
    s_cselect_b32 s{S_RBS}, 0, s{S_RBS}
    s_cselect_b32 s{S_T}, {C_NBS*C_BSLOT}, 0
    s_sub_u32 s{S_T}, {C_BSLOT}, s{S_T}
    """)
    for c in range(4):
        bk(f"v_add_u32 v{V_RB+c}, s{S_T}, v{V_RB+c}")
    a = real
    mf = []
    for kk in range(2):
        for c in range(4):
            for t in range(4):
                mf.append(f"v_mfma_f32_16x16x32_bf16 {vr(acc(c,t))}, {vr(wf(c,kk))}, {vr(xf(t,kk))}, {vr(acc(c,t))}")
    interleave(a, mf, bk.L, start=1, per=2)
    a(f"""
    s_setprio 0
    s_add_u32 s{S_J}, s{S_J}, 1
    s_lshl_b32 s{S_T}, s{S_G}, 8
    s_add_u32 s{S_T}, s{S_T}, s{S_J}
    s_cmp_eq_u32 s{S_T}, {256 + NKS}
    s_cbranch_scc1 g2_post
    s_cmp_lt_u32 s{S_J}, {NKS}
    s_barrier
    s_cbranch_scc1 g2_loop
    """)
    a.label("g2_post")
    stamp_now(a, 34)
    V_XR = XF; V_XA = T + 1; V_OA = T + 2; PK = WF
    a(f"""
    v_lshlrev_b32 v{T}, 4, v{VL}
    s_cmp_eq_u32 s{S_Q}, s{S_KQ}
    s_cbranch_scc1 g2_own
    s_cmp_eq_u32 s{S_CUR}, s{S_KQ}
    s_cbranch_scc0 g2_pub_done
    s_lshl_b32 s{S_T}, s{S_TILE}, 2
    s_add_u32 s{S_T}, s{S_T}, s{S_KQ}
    s_lshl_b32 s{S_T}, s{S_T}, 3
    s_add_u32 s{S_T}, s{S_T}, s{S_WV}
    s_lshl_b32 s{S_T}, s{S_T}, 13
    s_add_u32 s{S_T2}, s{S_T}, 4096
    """)
    for bp in range(8):
        o = PK + 4 * bp
        for h in range(2):
            b = acc(bp >> 1, (bp & 1) * 2 + h)
            a(f"""
            v_cvt_pk_bf16_f32 v{o+2*h}, v{b}, v{b+1}
            v_cvt_pk_bf16_f32 v{o+2*h+1}, v{b+2}, v{b+3}
            """)
        a(f"buffer_store_dwordx4 {vr(o)}, v{T}, {sr(SRD_S,4)}, s{S_T if bp < 4 else S_T2} offen offset:{(bp%4)*1024} sc0 sc1")
    a("s_branch g2_pub_done")
    a.label("g2_own")
    a(f"""
    s_lshl_b32 s{S_T}, s{S_NW}, 14
    v_add_u32 v{T+3}, s{S_T}, v{T}
    """)
    for b in range(16):
        a(f"ds_write_b128 v{T+3}, {vr(4*b)} offset:{b*1024}")
    a.label("g2_pub_done")
    a(f"""
    s_lshl_b32 s{S_T}, s{S_MT}, 8
    s_lshl_b32 s{S_T2}, s{S_KQ}, 6
    s_add_u32 s{S_T}, s{S_T}, s{S_T2}
    s_lshl_b32 s{S_T2}, s{S_G}, 5
    s_add_u32 s{S_T}, s{S_T}, s{S_T2}
    v_add_u32 v{T+3}, s{S_T}, v{VT}
    v_lshlrev_b32 v{T+3}, 11, v{T+3}
    s_lshl_b32 s{S_T}, s{S_NT}, 8
    s_lshl_b32 s{S_T2}, s{S_NW}, 7
    s_add_u32 s{S_T}, s{S_T}, s{S_T2}
    s_lshl_b32 s{S_T2}, s{S_MW}, 6
    s_add_u32 s{S_T}, s{S_T}, s{S_T2}
    v_add_u32 v{T+3}, s{S_T}, v{T+3}
    v_lshl_add_u32 v{V_XA}, v{VG}, 3, v{T+3}
    v_and_b32 v{T+4}, 1, v{VG}
    v_lshrrev_b32 v{T+5}, 1, v{VG}
    v_lshl_or_b32 v{T+4}, v{T+4}, 1, v{T+5}
    v_lshl_add_u32 v{V_OA}, v{T+4}, 4, v{T+3}
    s_mov_b32 s{S_T}, {16*2048}
    """)
    for t in range(2):
        for e in range(2):
            so = "0" if t == 0 else f"s{S_T}"
            a(f"buffer_load_dwordx2 {vr(V_XR+(t*2+e)*2,2)}, v{V_XA}, {sr(SRD_X,4)}, {so} offen offset:{e*32}")
    a("s_waitcnt vmcnt(4) lgkmcnt(0)")
    stamp_now(a, 36)
    a(f"""
    s_barrier
    s_cmp_eq_u32 s{S_CUR}, s{S_KQ}
    s_cbranch_scc0 g2_after_publish
    s_cmp_eq_u32 s{S_WV}, 0
    s_cbranch_scc0 g2_wait_done
    s_lshl_b32 s{S_T}, s{S_KQ}, 2
    v_mov_b32 v{T+3}, s{S_DONE}
    v_mov_b32 v{T+4}, s{S_T}
    s_mov_b64 exec, 1
    buffer_store_dword v{T+3}, v{T+4}, {sr(SRD_F,4)}, s{S_FB} offen sc0 sc1
    s_mov_b32 s{S_CNT}, 0
    """)
    a.label("g2_poll")
    a(f"""
    buffer_load_dwordx4 {vr(T+6)}, off, {sr(SRD_F,4)}, s{S_FB} sc0 sc1
    s_waitcnt vmcnt(0)
    v_or_b32 v{T+6}, v{T+6}, v{T+7}
    v_or3_b32 v{T+5}, v{T+6}, v{T+8}, v{T+9}
    s_add_u32 s{S_CNT}, s{S_CNT}, 1
    v_readfirstlane_b32 s{S_ARR}, v{T+5}
    s_nop 3
    s_cmp_eq_u32 s{S_ARR}, {0x77 if "forcefb" in OPTS else 0x01010101}
    s_cbranch_scc1 g2_poll_end
    s_cmp_lt_u32 s{S_CNT}, {64 if "forcefb" in OPTS else 20000}
    s_cbranch_scc1 g2_poll
    """)
    a.label("g2_poll_end")
    if STAMP:
        a(f"v_writelane_b32 v{V_STAMP}, s{S_CNT}, 39")
    if "forcefb" in OPTS:
        a(f"s_and_b32 s{S_ARR}, s{S_ARR}, 0x00010001")
    a(f"""
    v_mov_b32 v{T+5}, s{S_ARR}
    v_mov_b32 v{T+4}, {65536}
    ds_write_b32 v{T+4}, v{T+5}
    s_mov_b64 exec, -1
    s_waitcnt lgkmcnt(0)
    """)
    a.label("g2_wait_done")
    a(f"""
    s_barrier
    v_mov_b32 v{T+4}, {65536}
    ds_read_b32 v{T+5}, v{T+4}
    s_waitcnt lgkmcnt(0)
    v_readfirstlane_b32 s{S_ARR}, v{T+5}
    s_nop 3
    """)
    a.label("g2_after_publish")
    a(f"""
    s_or_b32 s{S_T}, s{S_ARR}, s{S_DONE}
    s_cmp_eq_u32 s{S_T}, 0x01010101
    s_cbranch_scc1 g2_final
    s_andn2_b32 s{S_T}, 0x01010101, s{S_T}
    s_ff1_i32_b32 s{S_T}, s{S_T}
    s_lshl_b32 s{S_T2}, 1, s{S_T}
    s_or_b32 s{S_DONE}, s{S_DONE}, s{S_T2}
    s_lshr_b32 s{S_CUR}, s{S_T}, 3
    s_waitcnt vmcnt(0)
    s_barrier
    s_branch g2_gemm
    """)
    a.label("g2_final")
    stamp_now(a, 35)
    R0 = WF
    a(f"""
    s_andn2_b32 s{S_ARR}, s{S_ARR}, s{S_DONE}
    s_lshl_b32 s{S_T}, s{S_MW}, 2
    s_add_u32 s{S_T}, s{S_T}, s{S_G}
    s_lshl_b32 s{S_T}, s{S_T}, 10             ; pair0 * 1024
    s_lshl_b32 s{S_T2}, s{S_NW}, 13
    s_add_u32 s{S_T3}, s{S_T}, s{S_T2}
    """)
    for src in range(4):
        a(f"""
        s_bitcmp1_b32 s{S_ARR}, {8*src}
        s_cbranch_scc1 g2_ld{src}
        """)
        for r in range(8):
            a(f"v_mov_b32 v{8*src+r}, 0")
        a(f"s_branch g2_ld{src}_done")
        a.label(f"g2_ld{src}")
        a(f"""
        s_lshl_b32 s{S_T}, s{S_TILE}, 2
        s_add_u32 s{S_T}, s{S_T}, {src}
        s_lshl_b32 s{S_T}, s{S_T}, 2
        s_add_u32 s{S_T}, s{S_T}, s{S_KQ}
        s_lshl_b32 s{S_T}, s{S_T}, 14
        s_add_u32 s{S_T}, s{S_T}, s{S_T3}
        """)
        for e in range(2):
            a(f"buffer_load_dwordx4 {vr(8*src+4*e)}, v{T}, {sr(SRD_S,4)}, s{S_T} offen offset:{e*2048} sc0 sc1")
        a.label(f"g2_ld{src}_done")
    a(f"""
    s_lshl_b32 s{S_T}, s{S_MW}, 3
    s_lshl_b32 s{S_T2}, s{S_G}, 1
    s_add_u32 s{S_T}, s{S_T}, s{S_T2}
    s_lshl_b32 s{S_T}, s{S_T}, 10
    s_lshl_b32 s{S_T2}, s{S_NW}, 14
    s_add_u32 s{S_T}, s{S_T}, s{S_T2}
    v_add_u32 v{T+3}, s{S_T}, v{T}
    """)
    for e in range(2):
        for t in range(2):
            a(f"ds_read_b128 {vr(R0+(e*2+t)*4)}, v{T+3} offset:{e*4096 + t*1024}")
    a("s_waitcnt vmcnt(0) lgkmcnt(0)")
    stamp_now(a, 37)
    for t in range(2):
        o = XF + 16 + t * 4
        for e in range(2):
            c = R0 + (e * 2 + t) * 4
            srcs = [8 * src + 4 * e + 2 * t for src in range(4)] + [V_XR + (t * 2 + e) * 2]
            for p in srcs:
                a(f"""
                v_lshlrev_b32 v{T+8}, 16, v{p}
                v_and_b32 v{T+9}, 0xffff0000, v{p}
                v_lshlrev_b32 v{T+10}, 16, v{p+1}
                v_and_b32 v{T+11}, 0xffff0000, v{p+1}
                v_pk_add_f32 {vr(c,2)}, {vr(c,2)}, {vr(T+8,2)}
                v_pk_add_f32 {vr(c+2,2)}, {vr(c+2,2)}, {vr(T+10,2)}
                """)
            a(f"""
            v_cvt_pk_bf16_f32 v{o+2*e}, v{c}, v{c+1}
            v_cvt_pk_bf16_f32 v{o+2*e+1}, v{c+2}, v{c+3}
            """)
        so = "0" if t == 0 else f"s{S_T2}"
        a(f"""
        s_mov_b32 s{S_T2}, {16*2048}
        s_nop 0
        v_permlane16_swap_b32 v{o}, v{o+2}
        v_permlane16_swap_b32 v{o+1}, v{o+3}
        s_nop 1
        buffer_store_dwordx4 {vr(o)}, v{V_OA}, {sr(SRD_O,4)}, {so} offen
        """)
    stamp_now(a, 51, True)
    stamp_dump(a, S_WSP, S_WV, 40 << 20)
    a.label("g2_exit")
    a("s_endpgm")
    global G2_VGPRS
    G2_VGPRS = 256 if STAMP else VPF + 1

HEADER = f"""; mblk_pitch={MBLK_PITCH}
; @launch kernel=k0_kernel grid=(256,1,1) block=(512,1,1) lds=0
; @launch kernel=g1_kernel grid=(256,1,1) block=(512,1,1) lds={G1_LDS}
; @launch kernel=g2_kernel grid=(256,1,1) block=(512,1,1) lds={G2_LDS if 'g2a' in OPTS else G2C_LDS}
.amdgcn_target "amdgcn-amd-amdhsa--gfx950"
.text
"""

def kd(name, vgpr, sgpr):
    return f"""
.amdhsa_kernel {name}
  .amdhsa_next_free_vgpr {vgpr}
  .amdhsa_next_free_sgpr {sgpr}
  .amdhsa_accum_offset {(vgpr + 3) // 4 * 4}
  .amdhsa_group_segment_fixed_size 0
  .amdhsa_kernarg_size 72
  .amdhsa_user_sgpr_count 2
  .amdhsa_user_sgpr_kernarg_segment_ptr 1
  .amdhsa_system_sgpr_workgroup_id_x 1
.end_amdhsa_kernel
"""

def main():
    global STAMP
    if "stamp" in sys.argv[2:]: STAMP = True
    a = Asm()
    gen_k0(a)
    gen_g1(a)
    (gen_g2 if 'g2a' in OPTS else gen_g2c)(a)
    s = HEADER + a.text() + '.section .rodata,"a"\n.p2align 6\n' + kd("k0_kernel", 64, 40) + ".p2align 6\n" + kd("g1_kernel", 256, 102) + ".p2align 6\n" + kd("g2_kernel", G2_VGPRS, 102 if STAMP else 80)
    out = sys.argv[1] if len(sys.argv) > 1 else OUT
    open(out, "w").write(s)

main()
```

```python
import sys

OUT = "parallel_sum__sliding_local_dilated__dense_activation_relu__prompt.s"

class Asm:
    def __init__(self):
        self.L = []
    def __call__(self, s):
        for line in s.strip("\n").split("\n"):
            line = line.strip()
            if line:
                self.L.append("    " + line)
    def label(self, n):
        self.L.append(n + ":")
    def raw(self, s):
        self.L.append(s)
    def text(self):
        return "\n".join(self.L) + "\n"

class Collect:
    def __init__(self): self.L = []
    def __call__(self, s):
        for line in s.strip("\n").split("\n"):
            line = line.strip()
            if line: self.L.append(line)

def interleave(a, mfmas, fillers, start=2, per=2):
    fi = 0
    for n, m in enumerate(mfmas):
        a(m)
        if n >= start:
            for _ in range(per):
                if fi < len(fillers):
                    a(fillers[fi]); fi += 1
    while fi < len(fillers):
        a(fillers[fi]); fi += 1

def vr(b, n=4):
    return "v[%d:%d]" % (b, b + n - 1)
def sr(b, n=2):
    return "s[%d:%d]" % (b, b + n - 1)

MBLK_PITCH = 144 * 1024
for _o in sys.argv[2:]:
    if _o.startswith("pitch="): MBLK_PITCH = int(_o[6:])
A2_BYTES = 128 * MBLK_PITCH

G1_ASLOT = 16384
G1_BBASE = 65536
G1_BSLOT = 28672
G1_HALO = 24576
G1_STAT = G1_BBASE + 3 * G1_BSLOT
G1_CS = G1_STAT + 272 * 8
G1_LDS = G1_STAT
XN_OFF = 24 << 20
AT_PITCH = 400

V_ACC = 0
V_HACC = 96
V_XF = 112
V_WF = 144
V_HF = 200
V_S1 = 208
V_S2 = 210
V_SH = 212
V_CS = 214
V_WD = 208
V_WV = 212
V_RA = 217
V_RB = 221
V_RH = 228
V_DA = 230
V_DB = 231
V_DH = 235
V_T = 236
V_LANE = 250
V_TT = 251
V_GG = 252

S_X = 4; S_W = 6; S_WS = 8; S_W1 = 10
SRD_X = 12; SRD_W = 16; SRD_O = 20
S_WAVE = 24; S_MW = 26; S_NW = 27; S_WQ = 28; S_MT = 29; S_JT = 30; S_J = 31
S_KA = 32; S_KB = 33; S_MA = 34; S_MB = 35; S_BD = 36; S_BSL = 37; S_RSL = 38; S_TMP = 39
S_ONES = 40; S_KH = 41; S_TMP2 = 42; S_TMP3 = 43
S_BLK = 44
S_TB = 52
S_PO = 56
S_MASK = 64
S_BSC = 60
S_HD = 61
S_KW = 91
SRD_WW = 64; S_WM = 68; S_GW = 70; S_WPK = 71
V_L16 = 213
S_MAE = 25; S_MBE = 3
LDS_DUMP = 0x28000
SRD_XA = 96
S_WOP = 92; S_W2P = 94; S_PC1 = 62

STAMP = False
OPTS = sys.argv[2:]
STF = "sc0 sc1" if "stsc" in OPTS else ""
STH = "" if "hplain" in OPTS else "sc0 sc1"
V_STAMP = 253
S_SA = 84; S_SB = 86; S_SC = 88; SRD_D = 80; S_SI = 90
def stamp_now(a, idx, real=False):
    if not STAMP: return
    a(f"""
    {"s_memrealtime" if real else "s_memtime"} {sr(S_SC)}
    s_waitcnt lgkmcnt(0)
    v_writelane_b32 v{V_STAMP}, s{S_SC}, {idx}
    """)
def stamp_dump(a, wsreg, wave_sreg, base_off):
    if not STAMP: return
    a(f"""
    s_waitcnt vmcnt(0)
    s_memtime {sr(S_SC)}
    s_waitcnt lgkmcnt(0)
    v_writelane_b32 v{V_STAMP}, s{S_SC}, 63
    s_mov_b32 s{SRD_D}, s{wsreg}
    s_and_b32 s{SRD_D+1}, s{wsreg+1}, 0xffff
    s_mov_b32 s{SRD_D+2}, {64<<20}
    s_mov_b32 s{SRD_D+3}, 0x20000
    s_lshl_b32 s{S_SC}, s2, 3
    s_add_u32 s{S_SC}, s{S_SC}, s{wave_sreg}
    s_lshl_b32 s{S_SC}, s{S_SC}, 8
    s_add_u32 s{S_SC}, s{S_SC}, {base_off}
    v_mbcnt_lo_u32_b32 v254, -1, 0
    v_mbcnt_hi_u32_b32 v254, -1, v254
    v_lshlrev_b32 v254, 2, v254
    buffer_store_dword v{V_STAMP}, v254, {sr(SRD_D,4)}, s{S_SC} offen
    """)

def acc(s, i): return V_ACC + (s * 4 + i) * 4
def xf(i, kk): return V_XF + (i * 2 + kk) * 4
def wf(s, kk): return V_WF + (s * 2 + kk) * 4
def hf(kk): return V_HF + kk * 4

def xlane_sum(a, v, t):
    a(f"""
    v_mov_b32 v{t}, v{v}
    s_nop 1
    v_permlane16_swap_b32 v{v}, v{t}
    s_nop 1
    v_add_f32 v{v}, v{v}, v{t}
    v_mov_b32 v{t}, v{v}
    s_nop 1
    v_permlane32_swap_b32 v{v}, v{t}
    s_nop 1
    v_add_f32 v{v}, v{v}, v{t}
    """)

def xlane_max(a, v, t):
    a(f"""
    v_mov_b32 v{t}, v{v}
    s_nop 1
    v_permlane16_swap_b32 v{v}, v{t}
    s_nop 1
    v_max_f32 v{v}, v{v}, v{t}
    v_mov_b32 v{t}, v{v}
    s_nop 1
    v_permlane32_swap_b32 v{v}, v{t}
    s_nop 1
    v_max_f32 v{v}, v{v}, v{t}
    """)

def g1_path(a, typ, G):
    qkv = (typ == 0)
    NB = 6 if qkv else 7
    PB = 384 if qkv else 448
    CH = PB // 16
    WP = 6144 if qkv else 7168
    halo = qkv and G == 0
    if qkv:
        nB = 3
        p0 = 0 if G == 0 else 12
    else:
        nB = 4 if G == 0 else 3
        p0 = 0 if G == 0 else 16
    nIss = 4 + nB + (1 if halo else 0)
    nBiss = nB + (1 if halo else 0)
    cs_slots = [0, 1] if (qkv or G == 0) else [0, 1, 6]
    P = f"g1_{typ}{G}"
    T = V_T
    a.label(P)
    if STAMP: a(f"v_mov_b32 v{V_STAMP}, 0")
    stamp_now(a, 32); stamp_now(a, 50, True)
    if qkv:
        a(f"""
        s_mov_b32 s{SRD_W}, s{S_W}
        s_and_b32 s{SRD_W+1}, s{S_W+1}, 0xffff
        s_mov_b32 s{SRD_W+2}, {1024*6144}
        s_mov_b32 s{SRD_W+3}, 0x20000
        """)
    else:
        a(f"""
        s_mov_b32 s{SRD_W}, s{S_W1}
        s_and_b32 s{SRD_W+1}, s{S_W1+1}, 0xffff
        s_mov_b32 s{SRD_W+2}, {1024*7168}
        s_mov_b32 s{SRD_W+3}, 0x20000
        """)
    Go = 1 - G
    a(f"""
    v_lshrrev_b32 v{T}, 3, v{V_LANE}                 ; l>>3
    v_and_b32 v{T+1}, 7, v{V_LANE}
    v_xor_b32 v{T+1}, v{T+1}, v{T}                   ; chunk
    s_lshl_b32 s{S_TMP}, s{S_MT}, 8
    s_lshl_b32 s{S_TMP2}, s{S_WQ}, 5
    s_add_u32 s{S_TMP}, s{S_TMP}, s{S_TMP2}
    s_add_u32 s{S_TMP}, s{S_TMP}, {128*Go}
    v_add_u32 v{T+2}, s{S_TMP}, v{T}
    v_lshlrev_b32 v{T+2}, 11, v{T+2}
    v_lshl_add_u32 v{V_DA}, v{T+1}, 4, v{T+2}
    """)
    if halo:
        a(f"""
        s_and_b32 s{S_TMP2}, s{S_WQ}, 1
        s_lshl_b32 s{S_TMP2}, s{S_TMP2}, 3
        v_add_u32 v{T+2}, s{S_TMP2}, v{T}
        s_lshl_b32 s{S_TMP}, s{S_MT}, 8
        s_sub_u32 s{S_TMP}, s{S_TMP}, 16
        v_add_u32 v{T+2}, s{S_TMP}, v{T+2}
        v_max_i32 v{T+2}, 0, v{T+2}
        v_lshlrev_b32 v{T+2}, 11, v{T+2}
        v_lshl_add_u32 v{V_DH}, v{T+1}, 4, v{T+2}
        s_mul_i32 s{S_HD}, s{S_WQ}, {nB*1024}
        s_sub_u32 s{S_HD}, {G1_HALO - p0*1024}, s{S_HD}
        s_lshl_b32 s{S_TMP2}, s{S_TMP2}, 7           ; (wq&1)*1024
        s_add_u32 s{S_HD}, s{S_HD}, s{S_TMP2}
        """)
    magic = (65536 + CH - 1) // CH
    for q in range(64 * CH):
        assert (q * magic) >> 16 == q // CH
    a(f"s_mul_i32 s{S_TMP3}, s{S_WQ}, {nB*64}")
    for i in range(nB):
        a(f"""
        s_add_u32 s{S_TMP}, s{S_TMP3}, {(p0+i)*64}
        v_add_u32 v{T}, s{S_TMP}, v{V_LANE}          ; q
        v_mul_u32_u24 v{T+1}, {magic}, v{T}
        v_lshrrev_b32 v{T+1}, 16, v{T+1}             ; k
        v_mul_u32_u24 v{T+2}, {CH}, v{T+1}
        v_sub_u32 v{T+2}, v{T}, v{T+2}               ; c'
        """)
        if qkv:
            a(f"""
            v_bfe_u32 v{T+3}, v{T+1}, 1, 1
            v_bfe_u32 v{T+4}, v{T+1}, 3, 1
            v_lshl_or_b32 v{T+3}, v{T+4}, 1, v{T+3}  ; f
            v_lshrrev_b32 v{T+4}, 1, v{T+2}
            v_xor_b32 v{T+4}, v{T+4}, v{T+3}         ; unit (0..11)
            v_cmp_le_u32 vcc, 6, v{T+4}
            s_nop 1
            v_cndmask_b32 v{T+5}, 0, 1, vcc          ; hh
            v_mul_u32_u24 v{T+6}, 6, v{T+5}
            v_sub_u32 v{T+6}, v{T+4}, v{T+6}         ; unit % 6
            v_lshrrev_b32 v{T+7}, 1, v{T+6}          ; part
            v_and_b32 v{T+6}, 1, v{T+6}              ; half32
            v_lshlrev_b32 v{T+7}, 11, v{T+7}         ; part*2048
            v_lshl_add_u32 v{T+7}, v{T+5}, 6, v{T+7} ; + hh*64
            v_lshl_add_u32 v{T+7}, v{T+6}, 5, v{T+7} ; + half32*32
            v_and_b32 v{T+6}, 1, v{T+2}
            v_lshl_add_u32 v{T+7}, v{T+6}, 4, v{T+7} ; + (c'&1)*16
            s_lshl_b32 s{S_TMP}, s{S_JT}, 7          ; 2 jt * 64
            v_add_u32 v{T+7}, s{S_TMP}, v{T+7}
            v_mul_u32_u24 v{T+1}, {WP}, v{T+1}
            v_add_u32 v{V_DB+i}, v{T+1}, v{T+7}
            """)
        else:
            a(f"""
            v_bfe_u32 v{T+3}, v{T+1}, 3, 1
            v_lshlrev_b32 v{T+3}, 1, v{T+3}
            v_xor_b32 v{T+2}, v{T+2}, v{T+3}         ; c = c' ^ (2*bit3(k))
            v_lshlrev_b32 v{T+2}, 4, v{T+2}
            s_mul_i32 s{S_TMP}, s{S_JT}, 448
            v_add_u32 v{T+2}, s{S_TMP}, v{T+2}
            v_mul_u32_u24 v{T+1}, {WP}, v{T+1}
            v_add_u32 v{V_DB+i}, v{T+1}, v{T+2}
            """)
    a(f"""
    s_mov_b32 s{S_KA}, 0
    s_mov_b32 s{S_KB}, 0
    s_mov_b32 s{S_KH}, 0
    s_lshl_b32 s{S_MA}, s{S_WQ}, 12
    s_add_u32 s{S_MA}, s{S_MA}, {Go*2*G1_ASLOT}
    s_mul_i32 s{S_MB}, s{S_WQ}, {nB*1024}
    s_add_u32 s{S_MB}, s{S_MB}, {G1_BBASE + p0*1024}
    s_mov_b32 s{S_BSL}, 0
    """)
    def dma_A():
        for i in range(4):
            a(f"""
            s_add_u32 m0, s{S_MA}, {i*1024}
            s_add_u32 s{S_TMP}, s{S_KA}, {i*16384}
            buffer_load_dwordx4 v{V_DA}, {sr(SRD_XA,4)}, s{S_TMP} offen lds
            """)
        a(f"""
        s_add_u32 s{S_KA}, s{S_KA}, 128
        s_xor_b32 s{S_MA}, s{S_MA}, {G1_ASLOT}
        """)
    def dma_B():
        for i in range(nB):
            a(f"""
            s_add_u32 m0, s{S_MB}, {i*1024}
            s_nop 0
            buffer_load_dwordx4 v{V_DB+i}, {sr(SRD_W,4)}, s{S_KB} offen lds
            """)
        if halo:
            a(f"""
            s_add_u32 m0, s{S_MB}, s{S_HD}
            s_nop 0
            buffer_load_dwordx4 v{V_DH}, {sr(SRD_X,4)}, s{S_KH} offen lds
            s_add_u32 s{S_KH}, s{S_KH}, 128
            """)
        a(f"""
        s_add_u32 s{S_KB}, s{S_KB}, {64*WP}
        s_add_u32 s{S_BSL}, s{S_BSL}, 1
        s_add_u32 s{S_MB}, s{S_MB}, {G1_BSLOT}
        s_cmp_eq_u32 s{S_BSL}, 3
        s_cselect_b32 s{S_TMP}, {3*G1_BSLOT}, 0
        s_cselect_b32 s{S_BSL}, 0, s{S_BSL}
        s_sub_u32 s{S_MB}, s{S_MB}, s{S_TMP}
        """)
    if G == 0:
        dma_B(); dma_A(); dma_B()
        pro_wait = 4 + nBiss
    else:
        dma_A(); dma_B(); dma_A(); dma_B()
        pro_wait = 4 + nBiss
    WARM = "nowarmw" not in OPTS
    if WARM:
        a(f"""
        v_min_u32 v{T}, {2*CH - 1}, v{V_LANE}
        v_cmp_le_u32 vcc, {CH}, v{T}
        s_lshl_b32 s{S_TMP}, s{S_MT}, 4
        s_lshl_b32 s{S_TMP2}, s{S_WAVE}, 1
        v_cndmask_b32 v{T+1}, 0, 1, vcc              ; row
        s_add_u32 s{S_TMP}, s{S_TMP}, s{S_TMP2}
        v_mul_u32_u24 v{T+2}, {CH}, v{T+1}
        v_sub_u32 v{T}, v{T}, v{T+2}                 ; chunk
        v_add_u32 v{T+1}, s{S_TMP}, v{T+1}
        v_mul_u32_u24 v{T+1}, {WP}, v{T+1}
        """)
        if qkv:
            a(f"""
            v_lshrrev_b32 v{T+2}, 3, v{T}
            v_lshl_add_u32 v{T+1}, v{T+2}, 11, v{T+1}
            v_and_b32 v{T}, 7, v{T}
            s_lshl_b32 s{S_TMP}, s{S_JT}, 7
            """)
        else:
            a(f"s_mul_i32 s{S_TMP}, s{S_JT}, 448")
        a(f"""
        v_lshl_add_u32 v{T+1}, v{T}, 4, v{T+1}
        v_add_u32 v{V_WV}, s{S_TMP}, v{T+1}
        s_mov_b32 s{S_KW}, {256*WP}
        buffer_load_dwordx4 {vr(V_WD)}, v{V_WV}, {sr(SRD_W,4)}, s{S_KW} offen
        s_mov_b32 s{S_KW}, {384*WP}
        buffer_load_dwordx4 {vr(V_WD)}, v{V_WV}, {sr(SRD_W,4)}, s{S_KW} offen
        s_mov_b32 s{S_KW}, {512*WP}
        s_mov_b32 s{SRD_WW}, s{SRD_W}
        s_mov_b32 s{SRD_WW+1}, s{SRD_W+1}
        s_mov_b32 s{SRD_WW+2}, s{SRD_W+2}
        s_mov_b32 s{SRD_WW+3}, 0x20000
        s_and_b32 s{S_WOP+1}, s{S_WOP+1}, 0xffff
        s_and_b32 s{S_W2P+1}, s{S_W2P+1}, 0xffff
        s_mov_b32 s{S_WPK}, {128*WP}
        s_lshl_b32 s{S_GW}, s2, 3
        s_add_u32 s{S_GW}, s{S_GW}, s{S_WAVE}
        s_lshl_b32 s{S_GW}, s{S_GW}, 10
        v_lshlrev_b32 v{V_L16}, 4, v{V_LANE}
        """)
        pro_wait += 2
        nIss += 1
    if qkv:
        if G == 0:
            a(f"""
            s_mul_i32 s{S_TMP}, s{S_NW}, 6
            s_lshl_b32 s{S_TMP2}, s{S_MW}, 1
            s_add_u32 s{S_BLK+0}, s{S_TMP}, s{S_TMP2}
            s_add_u32 s{S_BLK+0}, s{S_BLK+0}, 2
            s_add_u32 s{S_BLK+1}, s{S_BLK+0}, 1
            s_mov_b32 s{S_BLK+2}, s{S_TMP}
            s_add_u32 s{S_BLK+3}, s{S_TMP}, 1
            s_sub_u32 s{S_BLK+4}, s{S_TMP}, s{S_TMP2}
            s_add_u32 s{S_BLK+4}, s{S_BLK+4}, 4
            s_add_u32 s{S_BLK+5}, s{S_BLK+4}, 1
            """)
        else:
            a(f"s_mul_i32 s{S_TMP}, s{S_NW}, 6")
            for s in range(6):
                a(f"s_add_u32 s{S_BLK+s}, s{S_TMP}, {s}")
    else:
        a(f"s_lshl_b32 s{S_TMP2}, s{S_NW}, 3")
        for ps in range(3):
            a(f"""
            s_add_u32 s{S_TMP}, s{S_MW}, {(ps + 2*G) % 3}
            s_cmp_ge_u32 s{S_TMP}, 3
            s_cselect_b32 s{S_TMP3}, 3, 0
            s_sub_u32 s{S_TMP}, s{S_TMP}, s{S_TMP3}
            s_lshl_b32 s{S_TMP}, s{S_TMP}, 1
            s_add_u32 s{S_BLK+2*ps}, s{S_TMP}, s{S_TMP2}
            s_add_u32 s{S_BLK+2*ps+1}, s{S_BLK+2*ps}, 1
            """)
        a(f"s_add_u32 s{S_BLK+6}, s{S_NW}, 6")
    a(f"""
    v_and_b32 v{T}, 7, v{V_TT}
    v_xor_b32 v{T}, v{V_GG}, v{T}                    ; g ^ (t&7)
    v_lshlrev_b32 v{T}, 4, v{T}
    v_lshl_add_u32 v{T}, v{V_TT}, 7, v{T}
    s_lshl_b32 s{S_TMP}, s{S_MW}, 13
    s_add_u32 s{S_TMP}, s{S_TMP}, {G*2*G1_ASLOT}
    s_lshl_b32 s{S_TMP2}, s{S_NW}, 12
    s_add_u32 s{S_TMP3}, s{S_TMP}, s{S_TMP2}
    v_add_u32 v{V_RA+0}, s{S_TMP3}, v{T}
    v_xor_b32 v{V_RA+1}, 64, v{V_RA+0}
    s_xor_b32 s{S_TMP2}, s{S_TMP2}, 4096
    s_add_u32 s{S_TMP3}, s{S_TMP}, s{S_TMP2}         ; sp=1
    v_add_u32 v{V_RA+2}, s{S_TMP3}, v{T}
    v_xor_b32 v{V_RA+3}, 64, v{V_RA+2}
    """)
    if halo:
        a(f"""
        v_add_u32 v{V_RH+0}, {G1_BBASE + G1_HALO}, v{T}
        v_xor_b32 v{V_RH+1}, 64, v{V_RH+0}
        """)
    a(f"""
    v_lshrrev_b32 v{T}, 2, v{V_TT}                   ; r
    v_lshl_add_u32 v{T+1}, v{V_GG}, 3, v{T}          ; 8g + r
    v_mul_u32_u24 v{T+1}, {PB}, v{T+1}
    v_and_b32 v{T+2}, 3, v{V_LANE}
    v_lshl_add_u32 v{T+1}, v{T+2}, 3, v{T+1}         ; + c*8
    v_add_u32 v{T+1}, {G1_BBASE}, v{T+1}
    v_and_b32 v{T+2}, 1, v{V_GG}                     ; g&1
    """)
    if qkv:
        a(f"""
        v_lshrrev_b32 v{T+3}, 1, v{T}                ; bit1(r)
        v_lshl_or_b32 v{T+2}, v{T+2}, 1, v{T+3}      ; f
        """)
    for s in range(NB):
        a(f"""
        v_xor_b32 v{T+3}, s{S_BLK+s}, v{T+2}
        v_lshl_add_u32 v{V_RB+s}, v{T+3}, 5, v{T+1}
        """)
    nacc = (NB * 4) * 4
    for r in range(V_ACC, V_ACC + nacc):
        a(f"v_mov_b32 v{r}, 0")
    if halo:
        for r in range(V_HACC, V_HACC + 8):
            a(f"v_mov_b32 v{r}, 0")
    a(f"""
    s_mov_b32 s{S_ONES}, 0x3f803f80
    s_mov_b32 s{S_BSC}, {G1_BSLOT}
    s_mov_b32 s{S_J}, 0
    s_mov_b32 s{S_RSL}, 0
    s_waitcnt vmcnt({pro_wait})
    s_barrier
    """)
    stamp_now(a, 33)
    if G == 1:
        a("s_barrier")
    if STAMP: a(f"s_mov_b32 s{S_SB}, 0")

    def rd_x(i):
        sp, e = i >> 1, i & 1
        for kk in range(2):
            a(f"ds_read_b128 {vr(xf(i,kk))}, v{V_RA+sp*2+kk} offset:{e*2048}")
    def rd_w(s):
        for kk in range(2):
            for h in range(2):
                a(f"ds_read_b64_tr_b16 {vr(wf(s,kk)+2*h,2)}, v{V_RB+s} offset:{(32*kk+4*h)*PB}")
    def dma_list():
        L = []
        for i in range(4):
            L.append(f"""
            s_add_u32 m0, s{S_MAE}, {i*1024}
            s_add_u32 s{S_TMP}, s{S_KA}, {i*16384}
            buffer_load_dwordx4 v{V_DA}, {sr(SRD_XA,4)}, s{S_TMP} offen lds
            """)
        for i in range(nB):
            L.append(f"""
            s_add_u32 m0, s{S_MBE}, {i*1024}
            s_nop 0
            buffer_load_dwordx4 v{V_DB+i}, {sr(SRD_W,4)}, s{S_KB} offen lds
            """)
        if halo:
            L.append(f"""
            s_add_u32 m0, s{S_MBE}, s{S_HD}
            s_nop 0
            buffer_load_dwordx4 v{V_DH}, {sr(SRD_X,4)}, s{S_KH} offen lds
            """)
        if WARM:
            L.append(f"buffer_load_dwordx4 {vr(V_WD)}, v{V_WV}, {sr(SRD_WW,4)}, s{S_KW} offen")
        return L
    a(f"""
    s_mov_b32 s{S_MAE}, s{S_MA}
    s_mov_b32 s{S_MBE}, s{S_MB}
    """)
    reads = []
    for i in range(4):
        sp, e = i >> 1, i & 1
        for kk in range(2):
            reads.append((kk, f"ds_read_b128 {vr(xf(i,kk))}, v{V_RA+sp*2+kk} offset:{e*2048}"))
    if halo:
        for kk in range(2):
            reads.append((kk, f"ds_read_b128 {vr(hf(kk))}, v{V_RH+kk}"))
    for s_ in range(NB):
        for kk in range(2):
            for h in range(2):
                reads.append((kk, f"ds_read_b64_tr_b16 {vr(wf(s_,kk)+2*h,2)}, v{V_RB+s_} offset:{(32*kk+4*h)*PB}"))
    reads = [r for k_, r in reads if k_ == 0] + [r for k_, r in reads if k_ == 1]

    a.raw(".p2align 6")
    a.label(P + "_loop")
    if STAMP: a(f"s_memtime {sr(S_SA)}")
    dl = dma_list()
    step = max(3, len(reads) // len(dl))
    order = "rdfirst" if "rdfirst" in OPTS else "mix"
    if order == "rdfirst":
        for r in reads: a(r)
        for d in dl: a(d)
    else:
        di = 0
        for n_, r in enumerate(reads):
            a(r)
            if (n_ % step) == 1 and di < len(dl):
                a(dl[di]); di += 1
        while di < len(dl):
            a(dl[di]); di += 1
    if STAMP: a(f"s_memtime {sr(100)}")
    a(f"s_waitcnt vmcnt({0 if 'strictwait' in OPTS else nIss}) lgkmcnt(0)")
    if STAMP:
        a(f"""
        s_lshl_b32 s{S_SI}, s{S_J}, 1
        s_mov_b32 m0, s{S_SI}
        s_nop 3
        v_writelane_b32 v{V_STAMP}, s{S_SA}, m0
        s_add_u32 s{S_SI}, s{S_SI}, 63
        s_and_b32 m0, s{S_SI}, 63
        s_nop 3
        v_writelane_b32 v{V_STAMP}, s{S_SB}, m0
        s_memtime {sr(S_SC)}
        s_cmp_eq_u32 s{S_J}, 8
        s_cbranch_scc0 {P}_nost
        s_waitcnt lgkmcnt(0)
        v_writelane_b32 v{V_STAMP}, s{S_SA}, 40
        v_writelane_b32 v{V_STAMP}, s100, 41
        v_writelane_b32 v{V_STAMP}, s{S_SC}, 42
        """)
        a.label(P + "_nost")
    a("s_barrier")
    if STAMP: a(f"s_memtime {sr(S_SB)}")
    bk = Collect()
    bk(f"""
    s_add_u32 s{S_KA}, s{S_KA}, 128
    s_xor_b32 s{S_MA}, s{S_MA}, {G1_ASLOT}
    s_cmp_ge_u32 s{S_KA}, 2048
    s_cselect_b32 s{SRD_XA+2}, 0, s{SRD_XA+2}
    s_cselect_b32 s{S_MAE}, {LDS_DUMP}, s{S_MA}
    s_add_u32 s{S_KH}, s{S_KH}, 128
    s_add_u32 s{S_KW}, s{S_KW}, s{S_WPK}
    s_add_u32 s{S_KB}, s{S_KB}, {64*WP}
    s_add_u32 s{S_BSL}, s{S_BSL}, 1
    s_add_u32 s{S_MB}, s{S_MB}, {G1_BSLOT}
    s_cmp_eq_u32 s{S_BSL}, 3
    s_cselect_b32 s{S_TMP}, {3*G1_BSLOT}, 0
    s_cselect_b32 s{S_BSL}, 0, s{S_BSL}
    s_sub_u32 s{S_MB}, s{S_MB}, s{S_TMP}
    s_cmp_ge_u32 s{S_J}, 13
    s_cselect_b32 s{S_MBE}, {LDS_DUMP}, s{S_MB}
    s_add_u32 s{S_RSL}, s{S_RSL}, 1
    s_cmp_eq_u32 s{S_RSL}, 3
    s_cselect_b32 s{S_BD}, {(-2*G1_BSLOT) & 0xffffffff}, s{S_BSC}
    s_cselect_b32 s{S_RSL}, 0, s{S_RSL}
    """)
    for r in range(4):
        bk(f"v_xor_b32 v{V_RA+r}, {G1_ASLOT}, v{V_RA+r}")
    for s_ in range(NB):
        bk(f"v_add_u32 v{V_RB+s_}, s{S_BD}, v{V_RB+s_}")
    if halo:
        for kk in range(2):
            bk(f"v_add_u32 v{V_RH+kk}, s{S_BD}, v{V_RH+kk}")
    a("s_setprio 1")
    mf = []
    for kk in range(2):
        for s_ in range(NB):
            for i in range(4):
                mf.append(f"v_mfma_f32_16x16x32_bf16 {vr(acc(s_,i))}, {vr(wf(s_,kk))}, {vr(xf(i,kk))}, {vr(acc(s_,i))}")
        if halo:
            for s_ in range(2):
                mf.append(f"v_mfma_f32_16x16x32_bf16 {vr(V_HACC+4*s_)}, {vr(wf(s_,kk))}, {vr(hf(kk))}, {vr(V_HACC+4*s_)}")
    interleave(a, mf, bk.L, start=2, per=1)
    a(f"""
    s_setprio 0
    s_add_u32 s{S_J}, s{S_J}, 1
    s_cmp_lt_u32 s{S_J}, 16
    """)
    if G == 0:
        a(f"""
        s_barrier
        s_cbranch_scc1 {P}_loop
        """)
    else:
        a(f"""
        s_cbranch_scc0 {P}_post
        s_barrier
        s_branch {P}_loop
        """)
    a.label(P + "_post")
    if STAMP:
        a(f"""
        s_waitcnt lgkmcnt(0)
        v_writelane_b32 v{V_STAMP}, s{S_SB}, 31
        """)
    stamp_now(a, 34)
    if "nowarm2" not in OPTS:
        a(f"""
        s_mov_b32 s{SRD_XA}, s{S_WOP}
        s_mov_b32 s{SRD_XA+1}, s{S_WOP+1}
        s_mov_b32 s{SRD_XA+2}, {1024*2048}
        s_mov_b32 s{SRD_W}, s{S_W2P}
        s_mov_b32 s{SRD_W+1}, s{S_W2P+1}
        s_mov_b32 s{SRD_W+2}, {3584*2048}
        s_lshl_b32 s{S_TMP}, s{S_GW}, 2
        buffer_load_dwordx4 {vr(V_WD)}, v{V_L16}, {sr(SRD_XA,4)}, s{S_GW} offen
        """)
        for i in range(4):
            a(f"buffer_load_dwordx4 {vr(V_WD)}, v{V_L16}, {sr(SRD_W,4)}, s{S_TMP} offen offset:{i*1024}")
    if "slabwarm" in OPTS:
        a(f"""
        s_add_u32 s{SRD_WW}, s{S_WS}, {64 << 20}
        s_addc_u32 s{SRD_WW+1}, s{S_WS+1}, 0
        s_and_b32 s{SRD_WW+1}, s{SRD_WW+1}, 0xffff
        s_mov_b32 s{SRD_WW+2}, {16 << 20}
        s_and_b32 s{S_TMP}, s2, 3
        s_lshr_b32 s{S_TMP2}, s{S_WAVE}, 1
        s_cmp_eq_u32 s{S_TMP}, s{S_TMP2}
        s_cselect_b32 s{SRD_WW+2}, 0, s{SRD_WW+2}
        s_lshl_b32 s{S_TMP}, s{S_GW}, 3
        s_add_u32 s{S_TMP2}, s{S_TMP}, 4096
        """)
        for i in range(8):
            a(f"buffer_load_dwordx4 {vr(V_WD)}, v{V_L16}, {sr(SRD_WW,4)}, s{S_TMP if i < 4 else S_TMP2} offen offset:{(i%4)*1024}")
    stamp_now(a, 35)
    for i in range(4):
        a(f"""
        s_lshl_b32 s{S_TMP}, s{S_MW}, 6
        s_lshl_b32 s{S_TMP2}, s{S_NW}, 5
        s_xor_b32 s{S_TMP2}, s{S_TMP2}, {16*i}
        s_add_u32 s{S_TMP}, s{S_TMP}, s{S_TMP2}
        s_add_u32 s{S_TB+i}, s{S_TMP}, {128*G}
        """)
    V_ST = 0
    def fixup(ab, s, st, o, relu):
        a(f"""
        v_cvt_pk_bf16_f32 v{o}, v{ab}, v{ab+1}
        v_cvt_pk_bf16_f32 v{o+1}, v{ab+2}, v{ab+3}
        """)
        if relu:
            a(f"""
            v_pk_max_i16 v{o}, v{o}, 0
            v_pk_max_i16 v{o+1}, v{o+1}, 0
            """)
    V_SIG = T + 8
    a(f"""
    v_and_b32 v{T}, 1, v{V_GG}
    v_lshrrev_b32 v{T+1}, 1, v{V_GG}
    v_lshl_or_b32 v{V_SIG}, v{T}, 1, v{T+1}
    """)
    if not qkv:
        V_PA = T + 9; V_SA = T + 10
        a(f"""
        v_lshl_add_u32 v{V_PA}, v{V_SIG}, 4, v{V_TT}
        v_lshlrev_b32 v{V_PA}, 4, v{V_PA}            ; (sigma*16 + t)*16
        s_lshl_b32 s{S_TMP}, s{S_NW}, 1
        v_add_u32 v{T+1}, s{S_TMP}, v{T+1}
        v_lshl_add_u32 v{V_SA}, v{T+1}, 4, v{V_TT}
        v_lshlrev_b32 v{V_SA}, 4, v{V_SA}
        v_lshl_add_u32 v{V_SA}, v{T}, 3, v{V_SA}
        """)
        for i in range(4):
            a(f"""
            s_lshr_b32 s{S_TMP}, s{S_TB+i}, 4
            s_lshl_b32 s{S_TMP2}, s{S_MT}, 4
            s_add_u32 s{S_TMP}, s{S_TMP}, s{S_TMP2}
            s_mul_i32 s{S_TB+i}, s{S_TMP}, {MBLK_PITCH}
            """)
        a(f"""
        s_mul_i32 s{S_TMP2}, s{S_JT}, 7
        s_add_u32 s{S_TMP2}, s{S_TMP2}, 32
        """)
        for ps in range(4):
            a(f"""
            s_lshr_b32 s{S_TMP}, s{S_BLK+2*ps}, 1
            s_add_u32 s{S_TMP}, s{S_TMP}, s{S_TMP2}
            s_lshl_b32 s{S_PO+ps}, s{S_TMP}, 10
            """)
        ob = [V_XF + 16, V_XF + 20, V_XF + 24, V_XF + 28]
        n = 0
        for i in range(4):
            st = V_ST + 2 * i
            for ps in range(3):
                o = ob[n % 4]; n += 1
                fixup(acc(2*ps, i), 2*ps, st, o, True)
                fixup(acc(2*ps+1, i), 2*ps+1, st, o+2, True)
                a(f"""
                s_add_u32 s{S_TMP}, s{S_TB+i}, s{S_PO+ps}
                s_nop 0
                v_permlane16_swap_b32 v{o}, v{o+2}
                v_permlane16_swap_b32 v{o+1}, v{o+3}
                s_nop 1
                buffer_store_dwordx4 {vr(o)}, v{V_PA}, {sr(SRD_O,4)}, s{S_TMP} offen {STH}
                """)
            o = ob[n % 4]; n += 1
            fixup(acc(6, i), 6, st, o, True)
            a(f"""
            s_add_u32 s{S_TMP}, s{S_TB+i}, s{S_PO+3}
            s_nop 1
            buffer_store_dwordx2 {vr(o,2)}, v{V_SA}, {sr(SRD_O,4)}, s{S_TMP} offen {STH}
            """)
        stamp_now(a, 36); stamp_now(a, 51, True)
        stamp_dump(a, S_WS, S_WAVE, 32 << 20)
        a("s_endpgm")
        return
    V_WA = T + 9
    a(f"""
    v_mul_u32_u24 v{V_WA}, {AT_PITCH}, v{V_TT}
    v_lshl_add_u32 v{V_WA}, v{V_GG}, 3, v{V_WA}      ; t*P + g*8
    """)
    ob = [V_XF + 16, V_XF + 18, V_XF + 20, V_XF + 22, V_XF + 24, V_XF + 26, V_XF + 28, V_XF + 30]
    n = 0
    for i in range(4):
        a(f"""
        s_add_u32 s{S_TMP}, s{S_TB+i}, 16
        s_mul_i32 s{S_TMP3}, s{S_TMP}, {AT_PITCH}
        """)
        for s in range(6):
            o = ob[n % 8]; n += 1
            fixup(acc(s, i), s, V_ST + 2 * i, o, False)
            a(f"""
            s_lshl_b32 s{S_TMP}, s{S_BLK+s}, 5
            s_add_u32 s{S_TMP}, s{S_TMP}, s{S_TMP3}
            v_add_u32 v{T}, s{S_TMP}, v{V_WA}
            ds_write_b64 v{T}, {vr(o,2)}
            """)
            if "slowepi" in OPTS: a("s_waitcnt lgkmcnt(0)")
    if halo:
        for s in range(2):
            o = ob[n % 8]; n += 1
            fixup(V_HACC + 4 * s, s, V_ST + 8, o, False)
            a(f"""
            s_lshl_b32 s{S_TMP}, s{S_BLK+s}, 5
            v_add_u32 v{T}, s{S_TMP}, v{V_WA}
            ds_write_b64 v{T}, {vr(o,2)}
            """)
    a(f"""
    s_waitcnt lgkmcnt(0)
    s_barrier
    """)
    stamp_now(a, 36)
    a("s_branch g1_attn")

def g1_attn(a):
    T = V_T
    V_SIG = T + 8
    a.label("g1_attn")
    VQ = 0; VK = 1; VV = 3
    VE = 5; VO = 6
    R = 8
    a(f"""
    s_lshl_b32 s{S_TMP}, s{S_WAVE}, 5                ; 32 w
    v_lshlrev_b32 v{T}, 1, v{V_TT}                   ; 2n
    v_add_u32 v{T+1}, s{S_TMP}, v{T}                 ; 32w + 2n
    v_add_u32 v{T+2}, 16, v{T+1}
    v_mul_u32_u24 v{T+2}, {AT_PITCH}, v{T+2}
    v_lshl_add_u32 v{VQ}, v{V_GG}, 4, v{T+2}         ; + g*16
    v_add_u32 v{VK+1}, 64, v{VQ}
    v_add_u32 v{T+2}, -16, v{T+1}                    ; rho_k(kb=0)
    v_max_i32 v{T+2}, 0, v{T+2}
    v_mul_u32_u24 v{T+2}, {AT_PITCH}, v{T+2}
    v_lshl_add_u32 v{T+2}, v{V_GG}, 4, v{T+2}
    v_add_u32 v{VK}, 64, v{T+2}
    v_lshrrev_b32 v{T}, 2, v{V_TT}
    v_lshl_add_u32 v{T}, v{V_GG}, 2, v{T}            ; a
    v_lshlrev_b32 v{T}, 1, v{T}
    v_add_u32 v{T}, s{S_TMP}, v{T}                   ; 32w + 2a
    v_and_b32 v{T+3}, 3, v{V_LANE}
    v_lshlrev_b32 v{T+3}, 3, v{T+3}
    v_add_u32 v{T+3}, 128, v{T+3}                    ; v part + c*8
    v_add_u32 v{T+2}, 16, v{T}
    v_mul_u32_u24 v{T+2}, {AT_PITCH}, v{T+2}
    v_add_u32 v{VV+1}, v{T+2}, v{T+3}
    v_add_u32 v{T+2}, -16, v{T}
    v_max_i32 v{T+2}, 0, v{T+2}
    v_mul_u32_u24 v{T+2}, {AT_PITCH}, v{T+2}
    v_add_u32 v{VV}, v{T+2}, v{T+3}
    v_lshlrev_b32 v{T}, 2, v{V_GG}
    v_sub_u32 v{VE}, v{V_TT}, v{T}
    """)
    for kb in range(2):
        for i in range(4):
            a(f"""
            v_add_u32 v{T}, {(16*(1-kb) - i)}, v{VE}
            v_cmp_ge_u32 {sr(S_MASK + 2*(4*kb+i))}, 7, v{T}
            """)
    a(f"""
    s_or_b32 s{S_TMP}, s{S_MT}, s{S_WAVE}
    s_cmp_eq_u32 s{S_TMP}, 0
    s_cbranch_scc0 g1_attn_m
    """)
    for i in range(4):
        a(f"s_mov_b64 {sr(S_MASK + 2*i)}, 0")
    a.label("g1_attn_m")
    a(f"""
    v_and_b32 v{T}, 7, v{V_TT}
    v_lshlrev_b32 v{T}, 1, v{T}
    v_lshl_add_u32 v{T}, v{V_SIG}, 4, v{T}
    v_lshlrev_b32 v{T}, 4, v{T}
    v_lshrrev_b32 v{T+1}, 3, v{V_TT}
    s_mov_b32 s{S_TMP}, {MBLK_PITCH}
    v_mul_lo_u32 v{T+1}, v{T+1}, s{S_TMP}
    v_add_u32 v{VO}, v{T}, v{T+1}
    s_lshl_b32 s{S_TMP}, s{S_MT}, 4
    s_lshl_b32 s{S_TMP2}, s{S_WAVE}, 1
    s_add_u32 s{S_TMP}, s{S_TMP}, s{S_TMP2}
    s_mul_i32 s{S_TMP}, s{S_TMP}, {MBLK_PITCH}
    s_lshl_b32 s{S_TMP2}, s{S_JT}, 11
    s_add_u32 s{S_TMP3}, s{S_TMP}, s{S_TMP2}
    v_mov_b32 v{T+10}, 0xff800000                    ; -inf
    v_mov_b32 v{T+4}, 0x3e3504f3
    v_mov_b32 v{T+5}, 0x3e3504f3
    v_mov_b32 v{T+6}, 0x3fb8aa3b
    v_mov_b32 v{T+7}, 0x3fb8aa3b
    """)
    NEG = T + 10; CSC = T + 4; CL2 = T + 6
    units = [(hh, p) for hh in range(2) for p in range(2)]
    UR = 32
    for u, (hh, p) in enumerate(units):
        b = R + u * UR
        off = p * AT_PITCH + hh * 192
        a(f"""
        ds_read_b128 {vr(b)}, v{VQ} offset:{off}
        ds_read_b128 {vr(b+4)}, v{VK} offset:{off}
        ds_read_b128 {vr(b+8)}, v{VK+1} offset:{off}
        """)
        for db in range(2):
            for kb in range(2):
                a(f"ds_read_b64_tr_b16 {vr(b+12+4*db+2*kb,2)}, v{VV+kb} offset:{off+32*db}")
    a("s_waitcnt lgkmcnt(0)")
    for u in range(4):
        b = R + u * UR
        a(f"""
        v_mfma_f32_16x16x32_bf16 {vr(b+20)}, {vr(b+4)}, {vr(b)}, 0
        v_mfma_f32_16x16x32_bf16 {vr(b+24)}, {vr(b+8)}, {vr(b)}, 0
        """)
    a("s_nop 7")
    for u, (hh, p) in enumerate(units):
        b = R + u * UR
        z = b + 20
        t0 = b + 28; t1 = b + 29
        for i in range(0, 8, 2):
            a(f"""
            v_cvt_pk_bf16_f32 v{t0}, v{z+i}, v{z+i+1}
            v_lshlrev_b32 v{z+i}, 16, v{t0}
            v_and_b32 v{z+i+1}, 0xffff0000, v{t0}
            v_pk_mul_f32 {vr(z+i,2)}, {vr(z+i,2)}, {vr(CSC,2)}
            v_cvt_pk_bf16_f32 v{t0}, v{z+i}, v{z+i+1}
            v_lshlrev_b32 v{z+i}, 16, v{t0}
            v_and_b32 v{z+i+1}, 0xffff0000, v{t0}
            v_cndmask_b32 v{z+i}, v{NEG}, v{z+i}, {sr(S_MASK+2*i)}
            v_cndmask_b32 v{z+i+1}, v{NEG}, v{z+i+1}, {sr(S_MASK+2*i+2)}
            """)
        a(f"""
        v_max3_f32 v{t0}, v{z}, v{z+1}, v{z+2}
        v_max3_f32 v{t0}, v{t0}, v{z+3}, v{z+4}
        v_max3_f32 v{t0}, v{t0}, v{z+5}, v{z+6}
        v_max_f32 v{t0}, v{t0}, v{z+7}
        """)
        xlane_max(a, t0, t1)
        for i in range(0, 8, 2):
            a(f"""
            v_pk_add_f32 {vr(z+i,2)}, {vr(z+i,2)}, {vr(t0,2)} op_sel_hi:[1,0] neg_lo:[0,1] neg_hi:[0,1]
            v_pk_mul_f32 {vr(z+i,2)}, {vr(z+i,2)}, {vr(CL2,2)}
            """)
        for i in range(8):
            a(f"v_exp_f32 v{z+i}, v{z+i}")
        a(f"""
        s_nop 0
        v_pk_add_f32 {vr(t0,2)}, {vr(z,2)}, {vr(z+2,2)}
        v_pk_add_f32 {vr(t0+2,2)}, {vr(z+4,2)}, {vr(z+6,2)}
        v_pk_add_f32 {vr(t0,2)}, {vr(t0,2)}, {vr(t0+2,2)}
        v_add_f32 v{t0}, v{t0}, v{t1}
        """)
        xlane_sum(a, t0, t1)
        a(f"""
        v_rcp_f32 v{t0}, v{t0}
        s_nop 0
        """)
        for i in range(0, 8, 2):
            a(f"v_pk_mul_f32 {vr(z+i,2)}, {vr(z+i,2)}, {vr(t0,2)} op_sel_hi:[1,0]")
        for i in range(4):
            a(f"v_cvt_pk_bf16_f32 v{b+i}, v{z+2*i}, v{z+2*i+1}")
        a(f"""
        s_nop 1
        v_mfma_f32_16x16x32_bf16 {vr(b+4)}, {vr(b+12)}, {vr(b)}, 0
        v_mfma_f32_16x16x32_bf16 {vr(b+8)}, {vr(b+16)}, {vr(b)}, 0
        """)
    a("s_nop 7")
    for u, (hh, p) in enumerate(units):
        b = R + u * UR
        o = b + 20
        a(f"""
        v_cvt_pk_bf16_f32 v{o}, v{b+4}, v{b+5}
        v_cvt_pk_bf16_f32 v{o+1}, v{b+6}, v{b+7}
        v_cvt_pk_bf16_f32 v{o+2}, v{b+8}, v{b+9}
        v_cvt_pk_bf16_f32 v{o+3}, v{b+10}, v{b+11}
        s_nop 1
        v_permlane16_swap_b32 v{o}, v{o+2}
        v_permlane16_swap_b32 v{o+1}, v{o+3}
        s_nop 1
        buffer_store_dwordx4 {vr(o)}, v{VO}, {sr(SRD_O,4)}, s{S_TMP3} offen offset:{p*16 + hh*1024} {STF}
        """)
    stamp_now(a, 37); stamp_now(a, 51, True)
    stamp_dump(a, S_WS, S_WAVE, 32 << 20)
    a("s_endpgm")

def gen_g1(a):
    a.raw("""
.globl g1_kernel
.p2align 8
.type g1_kernel,@function
g1_kernel:""")
    a(f"""
    s_cmp_ge_u32 s2, 256
    s_cbranch_scc1 g1_exit
    s_load_dwordx2 s[{S_W}:{S_W+1}], s[0:1], 8
    s_load_dwordx2 s[{S_W1}:{S_W1+1}], s[0:1], 32
    s_load_dwordx2 s[{S_WS}:{S_WS+1}], s[0:1], 64
    s_load_dwordx2 s[{S_WOP}:{S_WOP+1}], s[0:1], 16
    s_load_dwordx2 s[{S_W2P}:{S_W2P+1}], s[0:1], 40
    v_and_b32 v{V_LANE}, 63, v0
    v_lshrrev_b32 v{V_T}, 6, v0
    v_and_b32 v{V_TT}, 15, v0
    v_readfirstlane_b32 s{S_WAVE}, v{V_T}
    v_bfe_u32 v{V_GG}, v0, 4, 2
    s_nop 2
    s_cmp_lg_u32 s{S_WAVE}, 7
    s_cbranch_scc1 g1_nopf
    """)
    if "nocodepf" not in OPTS:
        code_prefetch(a, V_T + 2, V_LANE, S_PC1, "g1_kernel", "g1_end", 24576, 255)
    a.label("g1_nopf")
    a(f"""
    s_and_b32 s{S_TMP}, s2, 7                 ; xcd
    s_lshr_b32 s{S_TMP2}, s2, 3               ; idx
    s_and_b32 s{S_MT}, s{S_TMP}, 1
    s_lshl_b32 s{S_MT}, s{S_MT}, 2
    s_and_b32 s{S_TMP3}, s{S_TMP2}, 3
    s_add_u32 s{S_MT}, s{S_MT}, s{S_TMP3}     ; mt
    s_lshr_b32 s{S_TMP2}, s{S_TMP2}, 2        ; i8
    s_lshr_b32 s{S_TMP}, s{S_TMP}, 1          ; ng
    s_lshl_b32 s{S_JT}, s{S_TMP}, 2
    s_and_b32 s{S_TMP3}, s{S_TMP2}, 3
    s_add_u32 s{S_JT}, s{S_JT}, s{S_TMP3}     ; jt
    s_lshr_b32 s{S_TMP2}, s{S_TMP2}, 2        ; type
    s_and_b32 s{S_WQ}, s{S_WAVE}, 3
    s_and_b32 s{S_NW}, s{S_WAVE}, 1
    s_bfe_u32 s{S_MW}, s{S_WAVE}, 0x10001
    s_lshr_b32 s{S_TMP3}, s{S_WAVE}, 2        ; G
    s_waitcnt lgkmcnt(0)
    s_add_u32 s{SRD_X}, s{S_WS}, {XN_OFF}
    s_addc_u32 s{SRD_X+1}, s{S_WS+1}, 0
    s_and_b32 s{SRD_X+1}, s{SRD_X+1}, 0xffff
    s_mov_b32 s{SRD_X+2}, {2048*2048}
    s_mov_b32 s{SRD_X+3}, 0x20000
    s_mov_b32 s{SRD_XA}, s{SRD_X}
    s_mov_b32 s{SRD_XA+1}, s{SRD_X+1}
    s_mov_b32 s{SRD_XA+2}, {2048*2048}
    s_mov_b32 s{SRD_XA+3}, 0x20000
    s_mov_b32 s{SRD_O}, s{S_WS}
    s_and_b32 s{SRD_O+1}, s{S_WS+1}, 0xffff
    s_mov_b32 s{SRD_O+2}, {A2_BYTES}
    s_mov_b32 s{SRD_O+3}, 0x20000
    s_lshl_b32 s{S_TMP2}, s{S_TMP2}, 1
    s_add_u32 s{S_TMP2}, s{S_TMP2}, s{S_TMP3}
    s_cmp_eq_u32 s{S_TMP2}, 0
    s_cbranch_scc1 g1_00
    s_cmp_eq_u32 s{S_TMP2}, 1
    s_cbranch_scc1 g1_01
    s_cmp_eq_u32 s{S_TMP2}, 2
    s_cbranch_scc1 g1_10
    s_branch g1_11
    """)
    a.label("g1_exit")
    a("s_endpgm")
    for typ in range(2):
        for G in range(2):
            g1_path(a, typ, G)
    g1_attn(a)
    a.label("g1_end")
    a("s_endpgm")

def gen_k0(a):
    a.raw("""
.globl k0_kernel
.p2align 8
.type k0_kernel,@function
k0_kernel:""")
    DPP = "row_mask:0xf bank_mask:0xf"
    def reduce64(v, t):
        a(f"""
        s_nop 1
        v_add_f32_dpp v{t}, v{v}, v{v} quad_perm:[1,0,3,2] {DPP}
        s_nop 1
        v_add_f32_dpp v{v}, v{t}, v{t} quad_perm:[2,3,0,1] {DPP}
        s_nop 1
        v_add_f32_dpp v{t}, v{v}, v{v} row_half_mirror {DPP}
        s_nop 1
        v_add_f32_dpp v{v}, v{t}, v{t} row_mirror {DPP}
        """)
        xlane_sum(a, v, t)
    a(f"""
    s_cmp_ge_u32 s2, 256
    s_cbranch_scc1 k0_exit
    s_load_dwordx4 s[4:7], s[0:1], 0          ; x, wqkv
    s_load_dwordx2 s[8:9], s[0:1], 32         ; w1
    s_load_dwordx2 s[10:11], s[0:1], 64       ; ws
    v_lshrrev_b32 v1, 6, v0
    v_and_b32 v0, 63, v0
    v_lshlrev_b32 v2, 4, v0                   ; lane*16
    v_readfirstlane_b32 s3, v1
    s_lshl_b32 s28, s2, 3
    s_nop 2
    s_add_u32 s28, s28, s3
    s_lshl_b32 s29, s28, 11
    s_waitcnt lgkmcnt(0)
    s_mov_b32 s12, s4
    s_and_b32 s13, s5, 0xffff
    s_mov_b32 s14, {2048*2048}
    s_mov_b32 s15, 0x20000
    buffer_load_dwordx4 v[4:7], v2, s[12:15], s29 offen
    buffer_load_dwordx4 v[8:11], v2, s[12:15], s29 offen offset:1024
    s_mov_b32 s16, s6
    s_and_b32 s17, s7, 0xffff
    s_mov_b32 s18, {1024*6144}
    s_mov_b32 s19, 0x20000
    s_mov_b32 s20, s8
    s_and_b32 s21, s9, 0xffff
    s_mov_b32 s22, {1024*7168}
    s_mov_b32 s23, 0x20000
    s_add_u32 s24, s10, {XN_OFF}
    s_addc_u32 s25, s11, 0
    s_and_b32 s25, s25, 0xffff
    s_mov_b32 s26, {2048*2048}
    s_mov_b32 s27, 0x20000
    s_cmp_lg_u32 s2, 0
    s_cbranch_scc1 k0_noz
    s_add_u32 s32, s10, {30 << 20}
    s_addc_u32 s33, s11, 0
    s_and_b32 s33, s33, 0xffff
    s_mov_b32 s34, 8192
    s_mov_b32 s35, 0x20000
    s_lshl_b32 s30, s3, 10
    v_mov_b32 v60, 0
    v_mov_b32 v61, 0
    v_mov_b32 v62, 0
    v_mov_b32 v63, 0
    buffer_store_dwordx4 v[60:63], v2, s[32:35], s30 offen
    s_waitcnt vmcnt(0)
k0_noz:
    s_mul_i32 s30, s28, 3072
    s_lshl_b32 s31, s28, 12
    """)
    nw = 0
    if "nowarm1" not in OPTS:
        a(f"""
        s_mov_b32 s18, {256*6144}
        s_mov_b32 s22, {256*7168}
        s_lshl_b32 s30, s28, 10
        buffer_load_dwordx4 v[32:35], v2, s[16:19], s30 offen
        buffer_load_dwordx4 v[36:39], v2, s[20:23], s30 offen
        """)
        nw = 2
    a(f"s_waitcnt vmcnt({nw})")
    for r in range(8):
        a(f"""
        v_lshlrev_b32 v{12+2*r}, 16, v{4+r}
        v_and_b32 v{13+2*r}, 0xffff0000, v{4+r}
        """)
    a("v_add_f32 v28, v12, v13")
    for r in range(14, 28):
        a(f"v_add_f32 v28, v28, v{r}")
    reduce64(28, 29)
    a("v_mul_f32 v28, 0x3a800000, v28")
    a("""
    v_sub_f32 v30, v12, v28
    v_mul_f32 v31, v30, v30
    """)
    for r in range(13, 28):
        a(f"""
        v_sub_f32 v30, v{r}, v28
        v_fmac_f32 v31, v30, v30
        """)
    reduce64(31, 29)
    a(f"""
    v_mul_f32 v31, 0x3a800000, v31            ; var
    v_cvt_pk_bf16_f32 v29, v28, v31
    v_lshlrev_b32 v28, 16, v29                ; m_b
    v_and_b32 v31, 0xffff0000, v29            ; v_b
    v_add_f32 v31, 0x3727c5ac, v31
    v_cvt_pk_bf16_f32 v31, v31, v31
    v_and_b32 v31, 0xffff0000, v31
    v_sqrt_f32 v31, v31
    s_nop 0
    v_cvt_pk_bf16_f32 v31, v31, v31
    v_and_b32 v31, 0xffff0000, v31
    v_rcp_f32 v31, v31
    s_nop 0
    """)
    for r in range(8):
        a(f"""
        v_sub_f32 v{12+2*r}, v{12+2*r}, v28
        v_sub_f32 v{13+2*r}, v{13+2*r}, v28
        v_cvt_pk_bf16_f32 v29, v{12+2*r}, v{13+2*r}
        v_lshlrev_b32 v{12+2*r}, 16, v29
        v_and_b32 v{13+2*r}, 0xffff0000, v29
        v_mul_f32 v{12+2*r}, v{12+2*r}, v31
        v_mul_f32 v{13+2*r}, v{13+2*r}, v31
        v_cvt_pk_bf16_f32 v{4+r}, v{12+2*r}, v{13+2*r}
        """)
    a("""
    buffer_store_dwordx4 v[4:7], v2, s[24:27], s29 offen
    buffer_store_dwordx4 v[8:11], v2, s[24:27], s29 offen offset:1024
    """)
    a.label("k0_exit")
    a("s_endpgm")

G2_NB = 6
G2_LDS = G2_NB * 16384
def code_prefetch(a, vtmp, vlane, stmp, start_label, end_label, nbytes, vdst):
    a(f"""
    s_getpc_b64 {sr(stmp)}
    """)
    a.label(start_label + "_pc")
    a(f"""
    s_add_u32 s{stmp}, s{stmp}, {start_label}-{start_label}_pc
    s_addc_u32 s{stmp+1}, s{stmp+1}, -1
    v_lshlrev_b32 v{vtmp}, 7, v{vlane}
    """)
    for i in range((nbytes + 8191) // 8192):
        if i: a(f"v_add_u32 v{vtmp}, 0x2000, v{vtmp}")
        a(f"""
        v_min_u32 v{vtmp+1}, {end_label}-{start_label}-4, v{vtmp}
        global_load_dword v{vdst}, v{vtmp+1}, {sr(stmp)}
        """)

def gen_g2(a):
    NBUF = G2_NB; D = NBUF - 1
    NTB = "nt " if "g2ntB" in OPTS else ""
    SRD_A = 12; SRD_B = 16; SRD_XX = 20; SRD_OUT = 24
    S_WO = 4; S_W2 = 6; S_XP = 8; S_OUTP = 10; S_WSP = 28
    S_WV = 30; S_GK = 31; S_MW2 = 32; S_MT2 = 33; S_NT = 34; S_TRIP = 35
    S_KAA = 36; S_KBB = 37; S_MB0 = 38; S_T = 39; S_T2 = 40; S_T3 = 41; S_PC = 42; S_P = 44; S_KA0 = 45; S_WOL = 46; S_WOH = 47; S_SZ = 48; S_CNT = 49
    V_AB = 0
    V_W = V_AB + NBUF * 16
    V_AC = V_W + 64
    V_XR = V_AC + 32
    V_AA = V_XR + 8
    V_DBB = V_AA + 2
    V_RBB = V_DBB + 2
    T = V_RBB + 8
    VL = T + 14; VT = T + 15; VG = T + 16
    global G2_VGPRS
    G2_VGPRS = 256 if STAMP else VG + 2
    def ab(u, tb, kk): return V_AB + u * 16 + (tb * 2 + kk) * 4
    def w(par, s, kk): return V_W + par * 32 + (s * 2 + kk) * 4
    def ac(s, tb): return V_AC + (s * 2 + tb) * 4
    a.raw("""
.globl g2_kernel
.p2align 8
.type g2_kernel,@function
g2_kernel:""")
    a(f"""
    s_cmp_ge_u32 s2, 256
    s_cbranch_scc1 g2_exit
    s_load_dwordx2 s[{S_XP}:{S_XP+1}], s[0:1], 0
    s_load_dwordx2 s[{S_WO}:{S_WO+1}], s[0:1], 16
    s_load_dwordx2 s[{S_W2}:{S_W2+1}], s[0:1], 40
    s_load_dwordx2 s[{S_OUTP}:{S_OUTP+1}], s[0:1], 48
    s_load_dwordx2 s[{S_WSP}:{S_WSP+1}], s[0:1], 64
    v_and_b32 v{VL}, 63, v0
    v_lshrrev_b32 v{T}, 6, v0
    v_and_b32 v{VT}, 15, v0
    v_readfirstlane_b32 s{S_WV}, v{T}
    v_bfe_u32 v{VG}, v0, 4, 2
    """)
    if STAMP: a(f"v_mov_b32 v{V_STAMP}, 0")
    stamp_now(a, 32); stamp_now(a, 50, True)
    npf = 0
    if "nocodepf" not in OPTS:
        code_prefetch(a, T + 12, VL, S_PC, "g2_kernel", "g2_exit", 4096, VG + 1); npf = 1
    a(f"""
    s_and_b32 s{S_T}, s2, 7
    s_lshr_b32 s{S_T2}, s2, 3
    s_lshr_b32 s{S_MT2}, s{S_T}, 1
    s_lshl_b32 s{S_MT2}, s{S_MT2}, 2
    s_and_b32 s{S_T3}, s{S_T2}, 3
    s_add_u32 s{S_MT2}, s{S_MT2}, s{S_T3}     ; mt 0..15
    s_and_b32 s{S_NT}, s{S_T}, 1
    s_lshl_b32 s{S_NT}, s{S_NT}, 3
    s_lshr_b32 s{S_T2}, s{S_T2}, 2
    s_add_u32 s{S_NT}, s{S_NT}, s{S_T2}       ; nt 0..15
    s_lshr_b32 s{S_GK}, s{S_WV}, 2
    s_and_b32 s{S_MW2}, s{S_WV}, 3
    ; A voffsets
    s_lshl_b32 s{S_T}, s{S_MT2}, 3
    s_lshl_b32 s{S_T2}, s{S_MW2}, 1
    s_add_u32 s{S_T}, s{S_T}, s{S_T2}         ; mblk0
    s_mul_i32 s{S_T}, s{S_T}, {MBLK_PITCH}
    v_lshl_add_u32 v{V_AA}, v{VL}, 4, s{S_T}
    v_add_u32 v{V_AA+1}, {MBLK_PITCH}, v{V_AA}
    s_lshl_b32 s{S_KAA}, s{S_GK}, 11          ; K-step * 2048
    v_lshrrev_b32 v{T}, 3, v{VL}
    s_lshl_b32 s{S_T}, s{S_WV}, 4
    v_add_u32 v{T+1}, s{S_T}, v{T}            ; row (e=0)
    v_lshlrev_b32 v{T+1}, 11, v{T+1}
    s_lshl_b32 s{S_T}, s{S_NT}, 7
    v_add_u32 v{T+1}, s{S_T}, v{T+1}
    v_and_b32 v{T+2}, 1, v{VL}
    v_lshl_add_u32 v{T+1}, v{T+2}, 4, v{T+1}  ; + (c'&1)*16
    v_bfe_u32 v{T+2}, v{VL}, 1, 2             ; unit'
    v_bfe_u32 v{T+3}, v{VL}, 4, 1             ; bit1(l>>3)
    v_xor_b32 v{T+2}, v{T+2}, v{T+3}
    v_lshl_add_u32 v{V_DBB}, v{T+2}, 5, v{T+1}
    v_xor_b32 v{T+2}, 2, v{T+2}
    v_lshl_add_u32 v{V_DBB+1}, v{T+2}, 5, v{T+1}
    v_add_u32 v{V_DBB+1}, {8*2048}, v{V_DBB+1}
    s_lshl_b32 s{S_MB0}, s{S_WV}, 11
    s_mov_b32 s{S_KBB}, 0
    s_waitcnt lgkmcnt(0)
    s_mov_b32 s{SRD_A}, s{S_WSP}
    s_and_b32 s{SRD_A+1}, s{S_WSP+1}, 0xffff
    s_mov_b32 s{SRD_A+2}, {A2_BYTES}
    s_mov_b32 s{SRD_A+3}, 0x20000
    s_mov_b32 s{SRD_B}, s{S_WO}
    s_and_b32 s{SRD_B+1}, s{S_WO+1}, 0xffff
    s_mov_b32 s{SRD_B+2}, {1024*2048}
    s_mov_b32 s{SRD_B+3}, 0x20000
    """)
    def prefetch(u):
        for e in range(2):
            if "g2noB" in OPTS:
                a(f"buffer_load_dword v{T+12}, off, {sr(SRD_B,4)}, 0")
                continue
            a(f"""
            s_add_u32 m0, s{S_MB0}, {u*16384 + e*1024}
            s_nop 0
            buffer_load_dwordx4 v{V_DBB+e}, {sr(SRD_B,4)}, s{S_KBB} offen {NTB}lds
            """)
        for tb in range(2):
            for kk in range(2):
                if "g2noA" in OPTS:
                    a(f"buffer_load_dword v{T+12}, off, {sr(SRD_B,4)}, 0")
                    continue
                a(f"buffer_load_dwordx4 {vr(ab(u,tb,kk))}, v{V_AA+tb}, {sr(SRD_A,4)}, s{S_KAA} offen offset:{kk*1024}" + (" nt" if "g2ntA" in OPTS else ""))
        advance()
    def advance():
        a(f"""
        s_add_u32 s{S_P}, s{S_P}, 1
        s_cmp_eq_u32 s{S_P}, 36
        s_cselect_b32 s{S_P}, 0, s{S_P}
        s_add_u32 s{S_CNT}, s{S_CNT}, 1
        """)
        setpos()
    def setpos():
        a(f"""
        s_lshl_b32 s{S_KAA}, s{S_P}, 12
        s_add_u32 s{S_KAA}, s{S_KAA}, s{S_KA0}
        s_cmp_lt_u32 s{S_P}, 8
        s_cselect_b32 s{SRD_B}, s{S_WOL}, s{S_W2}
        s_cselect_b32 s{SRD_B+1}, s{S_WOH}, s{S_W2+1}
        s_cselect_b32 s{SRD_B+2}, {1024*2048}, s{S_SZ}
        s_cselect_b32 s{S_T}, 0, 8
        s_sub_u32 s{S_T}, s{S_P}, s{S_T}
        s_lshl_b32 s{S_KBB}, s{S_T}, 18
        s_cmp_ge_u32 s{S_CNT}, 36
        s_cselect_b32 s{SRD_B+2}, 0, s{SRD_B+2}
        s_cselect_b32 s{SRD_A+2}, 0, s{SRD_A+2}
        s_cselect_b32 s{S_MB0}, {G2_LDS}, s{S_MB0}
        """)
    rotmul = (1, 2)
    for o in OPTS:
        if o.startswith("rot="): rotmul = tuple(int(x) for x in o[4:].split(","))
    a(f"""
    s_and_b32 s{S_W2+1}, s{S_W2+1}, 0xffff
    s_mov_b32 s{S_WOL}, s{S_WO}
    s_and_b32 s{S_WOH}, s{S_WO+1}, 0xffff
    s_mov_b32 s{S_SZ}, {3584*2048}
    s_mov_b32 s{S_KA0}, s{S_KAA}
    s_mov_b32 s{S_CNT}, 0
    s_and_b32 s{S_T}, s{S_NT}, 7
    s_mul_i32 s{S_T}, s{S_T}, {rotmul[0]}
    s_and_b32 s{S_T2}, s{S_MT2}, 3
    s_mul_i32 s{S_T2}, s{S_T2}, {rotmul[1]}
    s_add_u32 s{S_P}, s{S_T}, s{S_T2}
    """)
    setpos()
    if "g2tlb" in OPTS:
        a(f"""
        s_lshr_b32 s{S_T}, s2, 3
        s_lshl_b32 s{S_T}, s{S_T}, 3
        s_add_u32 s{S_T}, s{S_T}, s{S_WV}          ; j
        s_lshl_b32 s{S_T2}, s{S_T}, 18             ; j*64 pages*4096
        v_lshl_add_u32 v{T+12}, v{VL}, 12, s{S_T2}
        s_cmp_lt_u32 s{S_T}, 18
        s_cbranch_scc0 g2_tlb1
        s_and_b32 s{S_T3}, s{S_MT2}, 12
        s_mul_i32 s{S_T3}, s{S_T3}, {8*MBLK_PITCH}
        buffer_load_dword v{T+13}, v{T+12}, {sr(SRD_A,4)}, s{S_T3} offen
        s_branch g2_tlb3
        """)
        a.label("g2_tlb1")
        a(f"""
        s_cmp_lt_u32 s{S_T}, 26
        s_cbranch_scc0 g2_tlb2
        v_subrev_u32 v{T+12}, {18<<18}, v{T+12}
        global_load_dword v{T+13}, v{T+12}, s[{S_WO}:{S_WO+1}]
        s_branch g2_tlb3
        """)
        a.label("g2_tlb2")
        a(f"""
        s_cmp_lt_u32 s{S_T}, 54
        s_cbranch_scc0 g2_tlb3
        v_subrev_u32 v{T+12}, {26<<18}, v{T+12}
        global_load_dword v{T+13}, v{T+12}, s[{S_W2}:{S_W2+1}]
        """)
        a.label("g2_tlb3")
    for u in range(D):
        prefetch(u)
    V_XA = T + 4; V_OA = T + 5
    a(f"""
    s_mov_b32 s{SRD_XX}, s{S_XP}
    s_and_b32 s{SRD_XX+1}, s{S_XP+1}, 0xffff
    s_mov_b32 s{SRD_XX+2}, {2048*2048}
    s_mov_b32 s{SRD_XX+3}, 0x20000
    s_mov_b32 s{SRD_OUT}, s{S_OUTP}
    s_and_b32 s{SRD_OUT+1}, s{S_OUTP+1}, 0xffff
    s_mov_b32 s{SRD_OUT+2}, {2048*2048}
    s_mov_b32 s{SRD_OUT+3}, 0x20000
    v_lshrrev_b32 v{T}, 2, v{VT}              ; r
    v_lshl_add_u32 v{T+1}, v{VG}, 3, v{T}
    v_lshlrev_b32 v{T+1}, 7, v{T+1}
    s_lshl_b32 s{S_T}, s{S_GK}, 13
    v_add_u32 v{T+1}, s{S_T}, v{T+1}
    v_and_b32 v{T+2}, 3, v{VL}
    v_lshl_add_u32 v{T+1}, v{T+2}, 3, v{T+1}
    v_and_b32 v{T+2}, 1, v{VG}
    v_lshrrev_b32 v{T+3}, 1, v{T}
    v_lshl_or_b32 v{T+2}, v{T+2}, 1, v{T+3}   ; f
    s_lshl_b32 s{S_T}, s{S_GK}, 1
    v_xor_b32 v{T+2}, s{S_T}, v{T+2}          ; f ^ 2Gk
    """)
    for s in range(4):
        a(f"""
        v_xor_b32 v{T+3}, {s}, v{T+2}
        v_lshl_add_u32 v{V_RBB+s}, v{T+3}, 5, v{T+1}
        v_add_u32 v{V_RBB+4+s}, 0xc000, v{V_RBB+s}
        """)
    a(f"""
    s_lshl_b32 s{S_T}, s{S_MT2}, 7
    s_lshl_b32 s{S_T2}, s{S_MW2}, 5
    s_add_u32 s{S_T}, s{S_T}, s{S_T2}
    v_add_u32 v{T}, s{S_T}, v{VT}
    v_lshlrev_b32 v{T}, 11, v{T}
    s_lshl_b32 s{S_T}, s{S_NT}, 7
    s_lshl_b32 s{S_T2}, s{S_GK}, 6
    s_add_u32 s{S_T}, s{S_T}, s{S_T2}
    v_add_u32 v{T}, s{S_T}, v{T}
    v_lshl_add_u32 v{V_XA}, v{VG}, 3, v{T}    ; + g*8
    v_and_b32 v{T+1}, 1, v{VG}
    v_lshrrev_b32 v{T+2}, 1, v{VG}
    v_lshl_or_b32 v{T+1}, v{T+1}, 1, v{T+2}   ; sigma
    v_lshl_add_u32 v{V_OA}, v{T+1}, 4, v{T}
    """)
    for r in range(V_AC, V_AC + 32):
        a(f"v_mov_b32 v{r}, 0")
    def reads(u, par):
        hi = 4 if u >= 3 else 0
        uo = (u - 3 if u >= 3 else u) * 16384
        for kk in range(2):
            for s in range(4):
                for h in range(2):
                    if "g2nocomp" in OPTS: continue
                    a(f"ds_read_b64_tr_b16 {vr(w(par,s,kk)+2*h,2)}, v{V_RBB+hi+s} offset:{uo + kk*4096 + h*512}")
    a(f"""
    s_mov_b32 s{S_TRIP}, 0
    s_waitcnt vmcnt({4 + 6*(D-1)})
    s_barrier
    """)
    reads(0, 0)
    stamp_now(a, 33)
    def body(u):
        par = u & 1
        a(f"""
        s_waitcnt vmcnt({4 + 6*(D-2)})
        s_barrier
        """)
        prefetch((u + D) % NBUF)
        a("s_waitcnt lgkmcnt(0)")
        reads((u + 1) % NBUF, par ^ 1)
        for kk in range(2):
            for s in range(4):
                for tb in range(2):
                    if "g2nocomp" in OPTS: continue
                    a(f"v_mfma_f32_16x16x32_bf16 {vr(ac(s,tb))}, {vr(w(par,s,kk))}, {vr(ab(u,tb,kk))}, {vr(ac(s,tb))}")
    a.raw(".p2align 6")
    a.label("g2_loop")
    for u in range(NBUF):
        body(u)
    a(f"""
    s_add_u32 s{S_TRIP}, s{S_TRIP}, 1
    s_cmp_lt_u32 s{S_TRIP}, {36 // NBUF}
    s_cbranch_scc1 g2_loop
    s_mov_b32 s{S_T}, {16*2048}
    """)
    stamp_now(a, 34)
    for tb in range(2):
        for e in range(2):
            so = "0" if tb == 0 else f"s{S_T}"
            a(f"buffer_load_dwordx2 {vr(V_XR+(tb*2+e)*2,2)}, v{V_XA}, {sr(SRD_XX,4)}, {so} offen offset:{e*32}")
    a(f"""
    s_waitcnt vmcnt(4) lgkmcnt(0)
    s_barrier
    s_lshl_b32 s{S_T}, s{S_WV}, 12
    v_lshl_add_u32 v{T}, v{VL}, 4, s{S_T}
    v_xor_b32 v{T+1}, 16384, v{T}
    """)
    for s in range(2):
        for tb in range(2):
            a(f"ds_write_b128 v{T}, {vr(ac(2+s,tb))} offset:{(s*2+tb)*1024}")
    a("""
    s_waitcnt lgkmcnt(0)
    s_barrier
    """)
    for s in range(2):
        for tb in range(2):
            a(f"ds_read_b128 {vr(V_W+(s*2+tb)*4)}, v{T+1} offset:{(s*2+tb)*1024}")
    a("s_waitcnt vmcnt(0) lgkmcnt(0)")
    for tb in range(2):
        o = V_AB + tb * 4
        for s in range(2):
            c = ac(s, tb); p = V_W + (s * 2 + tb) * 4; xr = V_XR + (tb * 2 + s) * 2
            a(f"""
            v_lshlrev_b32 v{T+8}, 16, v{xr}
            v_and_b32 v{T+9}, 0xffff0000, v{xr}
            v_lshlrev_b32 v{T+10}, 16, v{xr+1}
            v_and_b32 v{T+11}, 0xffff0000, v{xr+1}
            v_pk_add_f32 {vr(c,2)}, {vr(c,2)}, {vr(p,2)}
            v_pk_add_f32 {vr(c+2,2)}, {vr(c+2,2)}, {vr(p+2,2)}
            v_pk_add_f32 {vr(c,2)}, {vr(c,2)}, {vr(T+8,2)}
            v_pk_add_f32 {vr(c+2,2)}, {vr(c+2,2)}, {vr(T+10,2)}
            v_cvt_pk_bf16_f32 v{o+2*s}, v{c}, v{c+1}
            v_cvt_pk_bf16_f32 v{o+2*s+1}, v{c+2}, v{c+3}
            """)
        so = "0" if tb == 0 else f"s{S_T2}"
        a(f"""
        s_mov_b32 s{S_T2}, {16*2048}
        s_nop 0
        v_permlane16_swap_b32 v{o}, v{o+2}
        v_permlane16_swap_b32 v{o+1}, v{o+3}
        s_nop 1
        buffer_store_dwordx4 {vr(o)}, v{V_OA}, {sr(SRD_OUT,4)}, {so} offen
        """)
    stamp_now(a, 51, True)
    stamp_dump(a, S_WSP, S_WV, 40 << 20)
    a.label("g2_exit")
    a("s_endpgm")

C_ASLOT = 16384; C_NA = 3
C_BSLOT = 16384; C_NBS = 4
C_BBASE = 2 * C_NA * C_ASLOT
G2C_LDS = C_BBASE + C_NBS * C_BSLOT
SLAB_OFF = 64 << 20
FLAG_OFF = 30 << 20
SLAB_BYTES = 64 * 4 * 131072
NKS = 18
PUBF = "sc1" if "pubsc1" in OPTS else ("sc0 sc1 nt" if "pubnt" in OPTS else "sc0 sc1")
GETF = "sc1" if "pubsc1" in OPTS else "sc0 sc1"
def gen_g2c(a):
    XF = 64; WF = 96
    def acc(c, t): return (c * 4 + t) * 4
    def xf(t, kk): return XF + (t * 2 + kk) * 4
    def wf(c, kk): return WF + (c * 2 + kk) * 4
    V_RA = 128; V_RB = 129; V_DA = 133; V_DB = 134; VL = 135; VT = 136; VG = 137; T = 138
    VPF = 152; VH = 153; VHA = 154; VHL = 156
    S_XP = 4; S_WO = 6; S_W2 = 8; S_OUTP = 10; S_DBG = 28; S_WSP = 30
    SRD_A = 12; SRD_B = 16; SRD_S = 20; SRD_X = 24; SRD_O = 32; SRD_F = 36
    S_WV = 40; S_MW = 41; S_NW = 42; S_WQ = 43; S_MT = 44; S_NT = 45; S_KQ = 46; S_J = 47
    S_KA = 48; S_PA = 49; S_PB = 50; S_MA = 51; S_MB = 52; S_MAE = 53; S_MBE = 54; S_ASL = 55; S_BSL = 56
    S_RAS = 57; S_RBS = 58; S_T = 59; S_T2 = 60; S_T3 = 61; S_KB = 62; S_SZ2 = 63; S_CUR = 64; S_DONE = 65
    S_TILE = 66; S_G = 67; S_CNT = 68; S_ARR = 69; S_PC = 70; S_DA = 72; S_DB = 73; S_Q = 74; S_ASZ = 75; S_XCC = 76; S_FB = 77; S_LOC = 78
    MAPK = f"""
    s_and_b32 s{S_KQ}, s2, 3
    s_bfe_u32 s{S_T}, s2, 0x10002             ; M half
    s_lshr_b32 s{S_T2}, s2, 3                 ; idx
    s_and_b32 s{S_MT}, s{S_T2}, 3
    s_lshl_b32 s{S_T}, s{S_T}, 2
    s_add_u32 s{S_MT}, s{S_MT}, s{S_T}        ; mt 0..7
    s_lshr_b32 s{S_NT}, s{S_T2}, 2            ; nt 0..7
"""
    MAPL = f"""
    s_lshr_b32 s{S_T2}, s2, 3                 ; idx
    s_and_b32 s{S_KQ}, s{S_T2}, 3
    s_bfe_u32 s{S_T}, s2, 0x20001             ; xcd >> 1
    s_lshl_b32 s{S_MT}, s{S_T}, 1
    s_bfe_u32 s{S_T}, s{S_T2}, 0x10002
    s_add_u32 s{S_MT}, s{S_MT}, s{S_T}        ; mt 0..7
    s_and_b32 s{S_NT}, s2, 1
    s_lshl_b32 s{S_NT}, s{S_NT}, 2
    s_lshr_b32 s{S_T}, s{S_T2}, 3
    s_add_u32 s{S_NT}, s{S_NT}, s{S_T}        ; nt 0..7
"""
    XF_ = "" if "xloc" in OPTS else "sc0 sc1"
    a.raw("""
.globl g2_kernel
.p2align 8
.type g2_kernel,@function
g2_kernel:""")
    a(f"""
    s_cmp_ge_u32 s2, 256
    s_cbranch_scc1 g2_exit
    s_load_dwordx2 s[{S_XP}:{S_XP+1}], s[0:1], 0
    s_load_dwordx2 s[{S_WO}:{S_WO+1}], s[0:1], 16
    s_load_dwordx4 s[{S_W2}:{S_W2+3}], s[0:1], 40      ; w2, out
    s_load_dwordx4 s[{S_DBG}:{S_DBG+3}], s[0:1], 56
    v_and_b32 v{VL}, 63, v0
    v_lshrrev_b32 v{T}, 6, v0
    v_and_b32 v{VT}, 15, v0
    v_readfirstlane_b32 s{S_WV}, v{T}
    v_bfe_u32 v{VG}, v0, 4, 2
    """)
    if STAMP: a(f"v_mov_b32 v{V_STAMP}, 0")
    stamp_now(a, 32); stamp_now(a, 50, True)
    a(f"""
    s_nop 2
    s_cmp_lg_u32 s{S_WV}, 7
    s_cbranch_scc1 g2_nopf
    """)
    code_prefetch(a, T, VL, S_PC, "g2_kernel", "g2_exit", 8192, VPF)
    a.label("g2_nopf")
    a(f"""
    """)
    a(MAPL if "xloc" in OPTS else MAPK)
    a(f"""
    s_lshl_b32 s{S_TILE}, s{S_MT}, 3
    s_add_u32 s{S_TILE}, s{S_TILE}, s{S_NT}
    s_lshr_b32 s{S_G}, s{S_WV}, 2
    s_and_b32 s{S_WQ}, s{S_WV}, 3
    s_and_b32 s{S_NW}, s{S_WV}, 1
    s_bfe_u32 s{S_MW}, s{S_WV}, 0x10001
    s_lshr_b32 s{S_Q}, s{S_WV}, 1
    s_xor_b32 s{S_T}, s{S_G}, 1
    s_lshl_b32 s{S_T2}, s{S_T}, 3
    s_lshl_b32 s{S_T3}, s{S_MT}, 4
    s_add_u32 s{S_T2}, s{S_T2}, s{S_T3}
    s_lshl_b32 s{S_T3}, s{S_WQ}, 1
    s_add_u32 s{S_T2}, s{S_T2}, s{S_T3}
    s_mul_i32 s{S_T2}, s{S_T2}, {MBLK_PITCH}
    v_lshl_add_u32 v{V_DA}, v{VL}, 4, s{S_T2}
    s_mul_i32 s{S_DA}, s{S_T}, {C_NA*C_ASLOT}
    s_lshl_b32 s{S_T3}, s{S_WQ}, 12
    s_add_u32 s{S_DA}, s{S_DA}, s{S_T3}
    v_lshrrev_b32 v{T}, 4, v{VL}
    s_lshl_b32 s{S_T}, s{S_WV}, 3
    v_add_u32 v{T+1}, s{S_T}, v{T}
    v_lshlrev_b32 v{T+1}, 11, v{T+1}
    s_lshl_b32 s{S_T}, s{S_NT}, 8
    v_add_u32 v{T+1}, s{S_T}, v{T+1}
    v_and_b32 v{T+2}, 1, v{VL}
    v_lshl_add_u32 v{T+1}, v{T+2}, 4, v{T+1}
    v_bfe_u32 v{T+2}, v{VL}, 1, 3
    s_lshl_b32 s{S_T}, s{S_NW}, 2
    v_or_b32 v{T}, s{S_T}, v{T}
    v_xor_b32 v{T+2}, v{T+2}, v{T}
    v_lshl_add_u32 v{V_DB}, v{T+2}, 5, v{T+1}
    s_lshl_b32 s{S_DB}, s{S_WV}, 11
    s_add_u32 s{S_DB}, s{S_DB}, {C_BBASE}
    s_waitcnt lgkmcnt(0)
    s_mov_b32 s{SRD_A}, s{S_WSP}
    s_and_b32 s{SRD_A+1}, s{S_WSP+1}, 0xffff
    s_mov_b32 s{SRD_A+3}, 0x20000
    s_mov_b32 s{SRD_B+3}, 0x20000
    s_and_b32 s{S_WO+1}, s{S_WO+1}, 0xffff
    s_and_b32 s{S_W2+1}, s{S_W2+1}, 0xffff
    s_mov_b32 s{S_SZ2}, {3584*2048}
    s_mov_b32 s{S_ASZ}, {A2_BYTES}
    s_mov_b32 s{S_CUR}, s{S_KQ}
    s_lshl_b32 s{S_DONE}, s{S_KQ}, 3
    s_lshl_b32 s{S_DONE}, 1, s{S_DONE}
    s_mov_b32 s{S_ARR}, 0
    s_mov_b32 s{S_LOC}, 0
    s_add_u32 s{SRD_S}, s{S_WSP}, {SLAB_OFF}
    s_addc_u32 s{SRD_S+1}, s{S_WSP+1}, 0
    s_and_b32 s{SRD_S+1}, s{SRD_S+1}, 0xffff
    s_mov_b32 s{SRD_S+2}, {SLAB_BYTES}
    s_mov_b32 s{SRD_S+3}, 0x20000
    s_add_u32 s{SRD_F}, s{S_WSP}, {FLAG_OFF}
    s_addc_u32 s{SRD_F+1}, s{S_WSP+1}, 0
    s_and_b32 s{SRD_F+1}, s{SRD_F+1}, 0xffff
    s_mov_b32 s{SRD_F+2}, {64*128}
    s_mov_b32 s{SRD_F+3}, 0x20000
    s_lshl_b32 s{S_FB}, s{S_TILE}, 7
    s_lshl_b32 s{S_T}, s{S_TILE}, 2
    s_add_u32 s{S_T}, s{S_T}, s{S_KQ}
    s_lshl_b32 s{S_T}, s{S_T}, 3
    s_add_u32 s{S_T}, s{S_T}, s{S_WV}
    s_lshl_b32 s{S_FB+1}, s{S_T}, 13
    v_lshlrev_b32 v155, 4, v{VL}
    s_mov_b32 s{SRD_X}, s{S_XP}
    s_and_b32 s{SRD_X+1}, s{S_XP+1}, 0xffff
    s_mov_b32 s{SRD_X+2}, {2048*2048}
    s_mov_b32 s{SRD_X+3}, 0x20000
    s_mov_b32 s{SRD_O}, s{S_OUTP}
    s_and_b32 s{SRD_O+1}, s{S_OUTP+1}, 0xffff
    s_mov_b32 s{SRD_O+2}, {2048*2048}
    s_mov_b32 s{SRD_O+3}, 0x20000
    """)
    for r in range(64):
        a(f"v_mov_b32 v{r}, 0")
    def setA():
        a(f"""
        s_mul_i32 s{S_T}, s{S_CUR}, {NKS}
        s_add_u32 s{S_T}, s{S_T}, s{S_PA}
        s_lshl_b32 s{S_KA}, s{S_T}, 11
        s_cmp_ge_u32 s{S_PA}, {NKS}
        s_cselect_b32 s{SRD_A+2}, 0, s{S_ASZ}
        s_cselect_b32 s{S_MAE}, {LDS_DUMP}, s{S_MA}
        """)
    def setB():
        a(f"""
        s_mul_i32 s{S_T}, s{S_CUR}, {NKS}
        s_add_u32 s{S_T}, s{S_T}, s{S_PB}
        s_cmp_lt_u32 s{S_T}, 16
        s_cselect_b32 s{SRD_B}, s{S_WO}, s{S_W2}
        s_cselect_b32 s{SRD_B+1}, s{S_WO+1}, s{S_W2+1}
        s_cselect_b32 s{SRD_B+2}, {1024*2048}, s{S_SZ2}
        s_cselect_b32 s{S_T2}, 0, 16
        s_sub_u32 s{S_T}, s{S_T}, s{S_T2}
        s_lshl_b32 s{S_KB}, s{S_T}, 17
        s_cmp_ge_u32 s{S_PB}, {NKS}
        s_cselect_b32 s{SRD_B+2}, 0, s{SRD_B+2}
        s_cselect_b32 s{S_MBE}, {LDS_DUMP}, s{S_MB}
        """)
    def dmaA_list():
        L = []
        for e in range(2):
            L.append(f"""
            s_add_u32 m0, s{S_MAE}, {e*2048}
            s_add_u32 s{S_T3}, s{S_KA}, {e*MBLK_PITCH}
            buffer_load_dwordx4 v{V_DA}, {sr(SRD_A,4)}, s{S_T3} offen lds
            """)
            L.append(f"buffer_load_dwordx4 v{V_DA}, {sr(SRD_A,4)}, s{S_T3} offen offset:1024 lds")
        return L
    def dmaB_list():
        L = []
        for e in range(2):
            L.append(f"""
            s_add_u32 m0, s{S_MBE}, {e*1024}
            s_add_u32 s{S_T3}, s{S_KB}, {e*8192}
            buffer_load_dwordx4 v{V_DB}, {sr(SRD_B,4)}, s{S_T3} offen lds
            """)
        return L
    def advA():
        a(f"""
        s_add_u32 s{S_PA}, s{S_PA}, 1
        s_add_u32 s{S_ASL}, s{S_ASL}, 1
        s_add_u32 s{S_MA}, s{S_MA}, {C_ASLOT}
        s_cmp_eq_u32 s{S_ASL}, {C_NA}
        s_cselect_b32 s{S_ASL}, 0, s{S_ASL}
        s_cselect_b32 s{S_MA}, s{S_DA}, s{S_MA}
        """)
        setA()
    def advB():
        a(f"""
        s_add_u32 s{S_PB}, s{S_PB}, 1
        s_add_u32 s{S_BSL}, s{S_BSL}, 1
        s_add_u32 s{S_MB}, s{S_MB}, {C_BSLOT}
        s_cmp_eq_u32 s{S_BSL}, {C_NBS}
        s_cselect_b32 s{S_BSL}, 0, s{S_BSL}
        s_cselect_b32 s{S_MB}, s{S_DB}, s{S_MB}
        """)
        setB()
    def doA():
        for d in dmaA_list(): a(d)
        advA()
    def doB():
        for d in dmaB_list(): a(d)
        advB()
    a.label("g2_gemm")
    a(f"""
    s_mov_b32 s{S_PA}, 0
    s_mov_b32 s{S_PB}, 0
    s_mov_b32 s{S_ASL}, 0
    s_mov_b32 s{S_BSL}, 0
    s_mov_b32 s{S_MA}, s{S_DA}
    s_mov_b32 s{S_MB}, s{S_DB}
    """)
    setA(); setB()
    a(f"""
    s_cmp_eq_u32 s{S_G}, 0
    s_cbranch_scc0 g2_pro1
    """)
    doB(); doA(); doB(); doA(); doB()
    a("s_branch g2_pro2")
    a.label("g2_pro1")
    doA(); doB(); doA(); doB(); doA(); doB()
    a.label("g2_pro2")
    a(f"""
    s_mul_i32 s{S_T}, s{S_G}, {C_NA*C_ASLOT}
    s_lshl_b32 s{S_T2}, s{S_MW}, 13
    s_add_u32 s{S_T}, s{S_T}, s{S_T2}
    v_lshl_add_u32 v{V_RA}, v{VL}, 4, s{S_T}
    v_lshrrev_b32 v{T}, 2, v{VT}              ; r
    v_lshl_add_u32 v{T+1}, v{VG}, 3, v{T}
    v_lshlrev_b32 v{T+1}, 8, v{T+1}
    v_and_b32 v{T+2}, 3, v{VL}
    v_lshl_add_u32 v{T+1}, v{T+2}, 3, v{T+1}
    v_add_u32 v{T+1}, {C_BBASE}, v{T+1}
    v_and_b32 v{T+2}, 1, v{VG}
    v_lshl_or_b32 v{T+2}, v{T+2}, 2, v{T}     ; f = r | (g&1)<<2
    s_lshl_b32 s{S_T}, s{S_NW}, 2
    v_xor_b32 v{T+2}, s{S_T}, v{T+2}
    """)
    for c in range(4):
        a(f"""
        v_xor_b32 v{T+3}, {c}, v{T+2}
        v_lshl_add_u32 v{V_RB+c}, v{T+3}, 5, v{T+1}
        """)
    a(f"""
    s_mov_b32 s{S_J}, 0
    s_mov_b32 s{S_RAS}, 0
    s_mov_b32 s{S_RBS}, 0
    s_waitcnt vmcnt(12)
    s_barrier
    """)
    stamp_now(a, 33)
    a(f"""
    s_cmp_eq_u32 s{S_G}, 0
    s_cbranch_scc1 g2_loop
    s_barrier
    """)
    reads = []
    for kk in range(2):
        for t in range(4):
            reads.append(f"ds_read_b128 {vr(xf(t,kk))}, v{V_RA} offset:{(t*2+kk)*1024}")
        for c in range(4):
            for h in range(2):
                reads.append(f"ds_read_b64_tr_b16 {vr(wf(c,kk)+2*h,2)}, v{V_RB+c} offset:{(32*kk+4*h)*256}")
    a.raw(".p2align 6")
    a.label("g2_loop")
    if "pretouch" in OPTS:
        a(f"""
        s_sub_u32 s{S_T}, s{S_J}, 4
        s_cmp_lt_u32 s{S_T}, 8
        s_cbranch_scc0 g2_nopt
        s_lshl_b32 s{S_T}, s{S_T}, 10
        s_add_u32 s{S_T}, s{S_T}, s{S_FB+1}
        buffer_load_dwordx4 v[156:159], v155, {sr(SRD_S,4)}, s{S_T} offen
        """)
        a.label("g2_nopt")
    dl = dmaA_list() + dmaB_list()
    di = 0
    for n_, r in enumerate(reads):
        a(r)
        if n_ % 4 == 1 and di < len(dl):
            a(dl[di]); di += 1
    assert di == len(dl)
    a("""
    s_waitcnt vmcnt(12) lgkmcnt(0)
    s_barrier
    s_setprio 1
    """)
    real = a; a = bk = Collect()
    def _adv():
        pass
    bk(f"""
    s_add_u32 s{S_PA}, s{S_PA}, 1
    s_add_u32 s{S_ASL}, s{S_ASL}, 1
    s_add_u32 s{S_MA}, s{S_MA}, {C_ASLOT}
    s_cmp_eq_u32 s{S_ASL}, {C_NA}
    s_cselect_b32 s{S_ASL}, 0, s{S_ASL}
    s_cselect_b32 s{S_MA}, s{S_DA}, s{S_MA}
    s_add_u32 s{S_KA}, s{S_KA}, 2048
    s_cmp_ge_u32 s{S_PA}, {NKS}
    s_cselect_b32 s{SRD_A+2}, 0, s{S_ASZ}
    s_cselect_b32 s{S_MAE}, {LDS_DUMP}, s{S_MA}
    s_add_u32 s{S_PB}, s{S_PB}, 1
    s_add_u32 s{S_BSL}, s{S_BSL}, 1
    s_add_u32 s{S_MB}, s{S_MB}, {C_BSLOT}
    s_cmp_eq_u32 s{S_BSL}, {C_NBS}
    s_cselect_b32 s{S_BSL}, 0, s{S_BSL}
    s_cselect_b32 s{S_MB}, s{S_DB}, s{S_MB}
    s_add_u32 s{S_KB}, s{S_KB}, {1<<17}
    s_lshl_b32 s{S_T}, s{S_CUR}, 8
    s_add_u32 s{S_T}, s{S_T}, s{S_PB}
    s_cmp_eq_u32 s{S_T}, 16
    s_cselect_b32 s{SRD_B}, s{S_W2}, s{SRD_B}
    s_cselect_b32 s{SRD_B+1}, s{S_W2+1}, s{SRD_B+1}
    s_cselect_b32 s{SRD_B+2}, s{S_SZ2}, s{SRD_B+2}
    s_cselect_b32 s{S_KB}, 0, s{S_KB}
    s_cmp_ge_u32 s{S_PB}, {NKS}
    s_cselect_b32 s{SRD_B+2}, 0, s{SRD_B+2}
    s_cselect_b32 s{S_MBE}, {LDS_DUMP}, s{S_MB}
    s_add_u32 s{S_RAS}, s{S_RAS}, 1
    s_cmp_eq_u32 s{S_RAS}, {C_NA}
    s_cselect_b32 s{S_RAS}, 0, s{S_RAS}
    s_cselect_b32 s{S_T}, {C_NA*C_ASLOT}, 0
    s_sub_u32 s{S_T}, {C_ASLOT}, s{S_T}
    v_add_u32 v{V_RA}, s{S_T}, v{V_RA}
    s_add_u32 s{S_RBS}, s{S_RBS}, 1
    s_cmp_eq_u32 s{S_RBS}, {C_NBS}
    s_cselect_b32 s{S_RBS}, 0, s{S_RBS}
    s_cselect_b32 s{S_T}, {C_NBS*C_BSLOT}, 0
    s_sub_u32 s{S_T}, {C_BSLOT}, s{S_T}
    """)
    for c in range(4):
        bk(f"v_add_u32 v{V_RB+c}, s{S_T}, v{V_RB+c}")
    a = real
    mf = []
    for kk in range(2):
        for c in range(4):
            for t in range(4):
                mf.append(f"v_mfma_f32_16x16x32_bf16 {vr(acc(c,t))}, {vr(wf(c,kk))}, {vr(xf(t,kk))}, {vr(acc(c,t))}")
    interleave(a, mf, bk.L, start=1, per=2)
    a(f"""
    s_setprio 0
    s_add_u32 s{S_J}, s{S_J}, 1
    s_lshl_b32 s{S_T}, s{S_G}, 8
    s_add_u32 s{S_T}, s{S_T}, s{S_J}
    s_cmp_eq_u32 s{S_T}, {256 + NKS}
    s_cbranch_scc1 g2_post
    s_cmp_lt_u32 s{S_J}, {NKS}
    s_barrier
    s_cbranch_scc1 g2_loop
    """)
    a.label("g2_post")
    stamp_now(a, 34)
    V_XR = XF; V_XA = T + 1; V_OA = T + 2; PK = WF
    a(f"""
    v_lshlrev_b32 v{T}, 4, v{VL}
    s_cmp_eq_u32 s{S_Q}, s{S_KQ}
    s_cbranch_scc1 g2_own
    s_cmp_eq_u32 s{S_CUR}, s{S_KQ}
    s_cbranch_scc0 g2_pub_done
    s_lshl_b32 s{S_T}, s{S_TILE}, 2
    s_add_u32 s{S_T}, s{S_T}, s{S_KQ}
    s_lshl_b32 s{S_T}, s{S_T}, 3
    s_add_u32 s{S_T}, s{S_T}, s{S_WV}
    s_lshl_b32 s{S_T}, s{S_T}, 13
    s_add_u32 s{S_T2}, s{S_T}, 4096
    """)
    for bp in range(8):
        o = PK + 4 * bp
        for h in range(2):
            b = acc(bp >> 1, (bp & 1) * 2 + h)
            a(f"""
            v_cvt_pk_bf16_f32 v{o+2*h}, v{b}, v{b+1}
            v_cvt_pk_bf16_f32 v{o+2*h+1}, v{b+2}, v{b+3}
            """)
        a(f"buffer_store_dwordx4 {vr(o)}, v{T}, {sr(SRD_S,4)}, s{S_T if bp < 4 else S_T2} offen offset:{(bp%4)*1024} {XF_}")
    a("s_branch g2_pub_done")
    a.label("g2_own")
    a(f"""
    s_lshl_b32 s{S_T}, s{S_NW}, 14
    v_add_u32 v{T+3}, s{S_T}, v{T}
    """)
    for b in range(16):
        a(f"ds_write_b128 v{T+3}, {vr(4*b)} offset:{b*1024}")
    a.label("g2_pub_done")
    a(f"""
    s_lshl_b32 s{S_T}, s{S_MT}, 8
    s_lshl_b32 s{S_T2}, s{S_KQ}, 6
    s_add_u32 s{S_T}, s{S_T}, s{S_T2}
    s_lshl_b32 s{S_T2}, s{S_G}, 5
    s_add_u32 s{S_T}, s{S_T}, s{S_T2}
    v_add_u32 v{T+3}, s{S_T}, v{VT}
    v_lshlrev_b32 v{T+3}, 11, v{T+3}
    s_lshl_b32 s{S_T}, s{S_NT}, 8
    s_lshl_b32 s{S_T2}, s{S_NW}, 7
    s_add_u32 s{S_T}, s{S_T}, s{S_T2}
    s_lshl_b32 s{S_T2}, s{S_MW}, 6
    s_add_u32 s{S_T}, s{S_T}, s{S_T2}
    v_add_u32 v{T+3}, s{S_T}, v{T+3}
    v_lshl_add_u32 v{V_XA}, v{VG}, 3, v{T+3}
    v_and_b32 v{T+4}, 1, v{VG}
    v_lshrrev_b32 v{T+5}, 1, v{VG}
    v_lshl_or_b32 v{T+4}, v{T+4}, 1, v{T+5}
    v_lshl_add_u32 v{V_OA}, v{T+4}, 4, v{T+3}
    s_mov_b32 s{S_T}, {16*2048}
    """)
    for t in range(2):
        for e in range(2):
            so = "0" if t == 0 else f"s{S_T}"
            a(f"buffer_load_dwordx2 {vr(V_XR+(t*2+e)*2,2)}, v{V_XA}, {sr(SRD_X,4)}, {so} offen offset:{e*32}")
    a("s_waitcnt vmcnt(4) lgkmcnt(0)")
    stamp_now(a, 36)
    a(f"""
    s_barrier
    s_cmp_eq_u32 s{S_CUR}, s{S_KQ}
    s_cbranch_scc0 g2_after_publish
    s_cmp_eq_u32 s{S_WV}, 0
    s_cbranch_scc0 g2_wait_done
    s_lshl_b32 s{S_T}, s{S_KQ}, 2
    v_mov_b32 v{T+3}, s{S_DONE}
    v_mov_b32 v{T+4}, s{S_T}
    s_mov_b64 exec, 1
    buffer_store_dword v{T+3}, v{T+4}, {sr(SRD_F,4)}, s{S_FB} offen sc0 sc1
    s_mov_b32 s{S_CNT}, 0
    """)
    a.label("g2_poll")
    a(f"""
    buffer_load_dwordx4 {vr(T+6)}, off, {sr(SRD_F,4)}, s{S_FB} sc0 sc1
    s_waitcnt vmcnt(0)
    v_or_b32 v{T+6}, v{T+6}, v{T+7}
    v_or3_b32 v{T+5}, v{T+6}, v{T+8}, v{T+9}
    s_add_u32 s{S_CNT}, s{S_CNT}, 1
    v_readfirstlane_b32 s{S_ARR}, v{T+5}
    s_nop 3
    s_cmp_eq_u32 s{S_ARR}, {0x77 if "forcefb" in OPTS else 0x01010101}
    s_cbranch_scc1 g2_poll_end
    s_cmp_lt_u32 s{S_CNT}, {64 if "forcefb" in OPTS else 20000}
    s_cbranch_scc1 g2_poll
    """)
    a.label("g2_poll_end")
    if STAMP:
        a(f"v_writelane_b32 v{V_STAMP}, s{S_CNT}, 39")
    if "forcefb" in OPTS:
        a(f"s_and_b32 s{S_ARR}, s{S_ARR}, 0x00010001")
    a(f"""
    v_mov_b32 v{T+5}, s{S_ARR}
    v_mov_b32 v{T+4}, {65536}
    ds_write_b32 v{T+4}, v{T+5}
    s_mov_b64 exec, -1
    s_waitcnt lgkmcnt(0)
    """)
    a.label("g2_wait_done")
    a(f"""
    s_barrier
    v_mov_b32 v{T+4}, {65536}
    ds_read_b32 v{T+5}, v{T+4}
    s_waitcnt lgkmcnt(0)
    v_readfirstlane_b32 s{S_ARR}, v{T+5}
    s_nop 3
    """)
    a.label("g2_after_publish")
    a(f"""
    s_or_b32 s{S_T}, s{S_ARR}, s{S_DONE}
    s_cmp_eq_u32 s{S_T}, 0x01010101
    s_cbranch_scc1 g2_final
    s_andn2_b32 s{S_T}, 0x01010101, s{S_T}
    s_ff1_i32_b32 s{S_T}, s{S_T}
    s_lshl_b32 s{S_T2}, 1, s{S_T}
    s_or_b32 s{S_DONE}, s{S_DONE}, s{S_T2}
    s_lshr_b32 s{S_CUR}, s{S_T}, 3
    s_waitcnt vmcnt(0)
    s_barrier
    s_branch g2_gemm
    """)
    a.label("g2_final")
    stamp_now(a, 35)
    R0 = WF
    a(f"""
    s_andn2_b32 s{S_ARR}, s{S_ARR}, s{S_DONE}
    s_lshl_b32 s{S_T}, s{S_MW}, 2
    s_add_u32 s{S_T}, s{S_T}, s{S_G}
    s_lshl_b32 s{S_T}, s{S_T}, 10             ; pair0 * 1024
    s_lshl_b32 s{S_T2}, s{S_NW}, 13
    s_add_u32 s{S_T3}, s{S_T}, s{S_T2}
    """)
    for src in range(4):
        a(f"""
        s_bitcmp1_b32 s{S_ARR}, {8*src}
        s_cbranch_scc1 g2_ld{src}
        """)
        for r in range(8):
            a(f"v_mov_b32 v{8*src+r}, 0")
        a(f"s_branch g2_ld{src}_done")
        a.label(f"g2_ld{src}")
        a(f"""
        s_lshl_b32 s{S_T}, s{S_TILE}, 2
        s_add_u32 s{S_T}, s{S_T}, {src}
        s_lshl_b32 s{S_T}, s{S_T}, 2
        s_add_u32 s{S_T}, s{S_T}, s{S_KQ}
        s_lshl_b32 s{S_T}, s{S_T}, 14
        s_add_u32 s{S_T}, s{S_T}, s{S_T3}
        """)
        for e in range(2):
            a(f"buffer_load_dwordx4 {vr(8*src+4*e)}, v{T}, {sr(SRD_S,4)}, s{S_T} offen offset:{e*2048} {XF_}")
        a.label(f"g2_ld{src}_done")
    a(f"""
    s_lshl_b32 s{S_T}, s{S_MW}, 3
    s_lshl_b32 s{S_T2}, s{S_G}, 1
    s_add_u32 s{S_T}, s{S_T}, s{S_T2}
    s_lshl_b32 s{S_T}, s{S_T}, 10
    s_lshl_b32 s{S_T2}, s{S_NW}, 14
    s_add_u32 s{S_T}, s{S_T}, s{S_T2}
    v_add_u32 v{T+3}, s{S_T}, v{T}
    """)
    for e in range(2):
        for t in range(2):
            a(f"ds_read_b128 {vr(R0+(e*2+t)*4)}, v{T+3} offset:{e*4096 + t*1024}")
    a("s_waitcnt vmcnt(0) lgkmcnt(0)")
    stamp_now(a, 37)
    for t in range(2):
        o = XF + 16 + t * 4
        for e in range(2):
            c = R0 + (e * 2 + t) * 4
            srcs = [8 * src + 4 * e + 2 * t for src in range(4)] + [V_XR + (t * 2 + e) * 2]
            for p in srcs:
                a(f"""
                v_lshlrev_b32 v{T+8}, 16, v{p}
                v_and_b32 v{T+9}, 0xffff0000, v{p}
                v_lshlrev_b32 v{T+10}, 16, v{p+1}
                v_and_b32 v{T+11}, 0xffff0000, v{p+1}
                v_pk_add_f32 {vr(c,2)}, {vr(c,2)}, {vr(T+8,2)}
                v_pk_add_f32 {vr(c+2,2)}, {vr(c+2,2)}, {vr(T+10,2)}
                """)
            a(f"""
            v_cvt_pk_bf16_f32 v{o+2*e}, v{c}, v{c+1}
            v_cvt_pk_bf16_f32 v{o+2*e+1}, v{c+2}, v{c+3}
            """)
        so = "0" if t == 0 else f"s{S_T2}"
        a(f"""
        s_mov_b32 s{S_T2}, {16*2048}
        s_nop 0
        v_permlane16_swap_b32 v{o}, v{o+2}
        v_permlane16_swap_b32 v{o+1}, v{o+3}
        s_nop 1
        buffer_store_dwordx4 {vr(o)}, v{V_OA}, {sr(SRD_O,4)}, {so} offen
        """)
    stamp_now(a, 51, True)
    stamp_dump(a, S_WSP, S_WV, 40 << 20)
    a.label("g2_exit")
    a("s_endpgm")
    global G2_VGPRS
    G2_VGPRS = 256 if STAMP else 160

HEADER = f"""; mblk_pitch={MBLK_PITCH}
; @launch kernel=k0_kernel grid=(256,1,1) block=(512,1,1) lds=0
; @launch kernel=g1_kernel grid=(256,1,1) block=(512,1,1) lds={G1_LDS}
; @launch kernel=g2_kernel grid=(256,1,1) block=(512,1,1) lds={G2_LDS if 'g2a' in OPTS else G2C_LDS}
.amdgcn_target "amdgcn-amd-amdhsa--gfx950"
.text
"""

def kd(name, vgpr, sgpr):
    return f"""
.amdhsa_kernel {name}
  .amdhsa_next_free_vgpr {vgpr}
  .amdhsa_next_free_sgpr {sgpr}
  .amdhsa_accum_offset {(vgpr + 3) // 4 * 4}
  .amdhsa_group_segment_fixed_size 0
  .amdhsa_kernarg_size 72
  .amdhsa_user_sgpr_count 2
  .amdhsa_user_sgpr_kernarg_segment_ptr 1
  .amdhsa_system_sgpr_workgroup_id_x 1
.end_amdhsa_kernel
"""

def main():
    global STAMP
    if "stamp" in sys.argv[2:]: STAMP = True
    a = Asm()
    gen_k0(a)
    gen_g1(a)
    (gen_g2 if 'g2a' in OPTS else gen_g2c)(a)
    s = HEADER + a.text() + '.section .rodata,"a"\n.p2align 6\n' + kd("k0_kernel", 64, 40) + ".p2align 6\n" + kd("g1_kernel", 256, 102) + ".p2align 6\n" + kd("g2_kernel", G2_VGPRS, 102 if STAMP else 80)
    out = sys.argv[1] if len(sys.argv) > 1 else OUT
    open(out, "w").write(s)

main()
```

```python
import sys

OUT = "parallel_sum__sliding_local_dilated__dense_activation_relu__prompt.s"

class Asm:
    def __init__(self):
        self.L = []
    def __call__(self, s):
        for line in s.strip("\n").split("\n"):
            line = line.strip()
            if line:
                self.L.append("    " + line)
    def label(self, n):
        self.L.append(n + ":")
    def raw(self, s):
        self.L.append(s)
    def text(self):
        return "\n".join(self.L) + "\n"

class Collect:
    def __init__(self): self.L = []
    def __call__(self, s):
        for line in s.strip("\n").split("\n"):
            line = line.strip()
            if line: self.L.append(line)

def interleave(a, mfmas, fillers, start=2, per=2):
    fi = 0
    for n, m in enumerate(mfmas):
        a(m)
        if n >= start:
            for _ in range(per):
                if fi < len(fillers):
                    a(fillers[fi]); fi += 1
    while fi < len(fillers):
        a(fillers[fi]); fi += 1

def vr(b, n=4):
    return "v[%d:%d]" % (b, b + n - 1)
def sr(b, n=2):
    return "s[%d:%d]" % (b, b + n - 1)

MBLK_PITCH = 144 * 1024
for _o in sys.argv[2:]:
    if _o.startswith("pitch="): MBLK_PITCH = int(_o[6:])
A2_BYTES = 128 * MBLK_PITCH

G1_ASLOT = 16384
G1_BBASE = 65536
G1_BSLOT = 28672
G1_HALO = 24576
G1_STAT = G1_BBASE + 3 * G1_BSLOT
G1_CS = G1_STAT + 272 * 8
G1_CSP = G1_STAT + 3072
G1_CS = G1_CSP + 8192
G1_VERD = G1_CS + 896
G1_LDS = 163840 if "fuse" in sys.argv[2:] else G1_STAT
ST_OFF = 28 << 20
XN_OFF = 24 << 20
AT_PITCH = 400

V_ACC = 0
V_HACC = 96
V_XF = 112
V_WF = 144
V_HF = 200
V_S1 = 208
V_S2 = 210
V_SH = 212
V_CS = 214
V_WD = 208
V_WV = 212
V_RA = 217
V_RB = 221
V_RH = 228
V_DA = 230
V_DB = 231
V_DH = 235
V_T = 236
V_LANE = 250
V_TT = 251
V_GG = 252

S_X = 4; S_W = 6; S_WS = 8; S_W1 = 10
SRD_X = 12; SRD_W = 16; SRD_O = 20
S_WAVE = 24; S_MW = 26; S_NW = 27; S_WQ = 28; S_MT = 29; S_JT = 30; S_J = 31
S_KA = 32; S_KB = 33; S_MA = 34; S_MB = 35; S_BD = 36; S_BSL = 37; S_RSL = 38; S_TMP = 39
S_ONES = 40; S_KH = 41; S_TMP2 = 42; S_TMP3 = 43
S_BLK = 44
S_TB = 52
S_PO = 56
S_MASK = 64
S_BSC = 60
S_HD = 61
S_KW = 91
SRD_WW = 64; S_WM = 68; S_GW = 70; S_WPK = 71
V_L16 = 216
SRD_ST = 64; SRD_DBG = 72; S_NTI = 76; S_EV = 77; S_DBGP = 78
V_ONES = 240; V_CHK = 208
S_MAE = 25; S_MBE = 3
LDS_DUMP = 0x28000
SRD_XA = 96
S_WOP = 92; S_W2P = 94; S_PC1 = 62

STAMP = False
FUSE = "fuse" in sys.argv[2:]
OPTS = sys.argv[2:]
STF = "sc0 sc1" if "stsc" in OPTS else ""
STH = "sc0 sc1" if "hwt" in OPTS else ""
V_STAMP = 253
S_SA = 84; S_SB = 86; S_SC = 88; SRD_D = 80; S_SI = 90
def stamp_now(a, idx, real=False):
    if not STAMP: return
    a(f"""
    {"s_memrealtime" if real else "s_memtime"} {sr(S_SC)}
    s_waitcnt lgkmcnt(0)
    v_writelane_b32 v{V_STAMP}, s{S_SC}, {idx}
    """)
def stamp_dump(a, wsreg, wave_sreg, base_off):
    if not STAMP: return
    a(f"""
    s_waitcnt vmcnt(0)
    s_memtime {sr(S_SC)}
    s_waitcnt lgkmcnt(0)
    v_writelane_b32 v{V_STAMP}, s{S_SC}, 63
    s_mov_b32 s{SRD_D}, s{wsreg}
    s_and_b32 s{SRD_D+1}, s{wsreg+1}, 0xffff
    s_mov_b32 s{SRD_D+2}, {64<<20}
    s_mov_b32 s{SRD_D+3}, 0x20000
    s_lshl_b32 s{S_SC}, s2, 3
    s_add_u32 s{S_SC}, s{S_SC}, s{wave_sreg}
    s_lshl_b32 s{S_SC}, s{S_SC}, 8
    s_add_u32 s{S_SC}, s{S_SC}, {base_off}
    v_mbcnt_lo_u32_b32 v254, -1, 0
    v_mbcnt_hi_u32_b32 v254, -1, v254
    v_lshlrev_b32 v254, 2, v254
    buffer_store_dword v{V_STAMP}, v254, {sr(SRD_D,4)}, s{S_SC} offen
    """)

def acc(s, i): return V_ACC + (s * 4 + i) * 4
def xf(i, kk): return V_XF + (i * 2 + kk) * 4
def wf(s, kk): return V_WF + (s * 2 + kk) * 4
def hf(kk): return V_HF + kk * 4

def xlane_sum(a, v, t):
    a(f"""
    v_mov_b32 v{t}, v{v}
    s_nop 1
    v_permlane16_swap_b32 v{v}, v{t}
    s_nop 1
    v_add_f32 v{v}, v{v}, v{t}
    v_mov_b32 v{t}, v{v}
    s_nop 1
    v_permlane32_swap_b32 v{v}, v{t}
    s_nop 1
    v_add_f32 v{v}, v{v}, v{t}
    """)

def xlane_max(a, v, t):
    a(f"""
    v_mov_b32 v{t}, v{v}
    s_nop 1
    v_permlane16_swap_b32 v{v}, v{t}
    s_nop 1
    v_max_f32 v{v}, v{v}, v{t}
    v_mov_b32 v{t}, v{v}
    s_nop 1
    v_permlane32_swap_b32 v{v}, v{t}
    s_nop 1
    v_max_f32 v{v}, v{v}, v{t}
    """)

def reduce64(a, v, t):
    DPP = "row_mask:0xf bank_mask:0xf"
    a(f"""
    s_nop 1
    v_add_f32_dpp v{t}, v{v}, v{v} quad_perm:[1,0,3,2] {DPP}
    s_nop 1
    v_add_f32_dpp v{v}, v{t}, v{t} quad_perm:[2,3,0,1] {DPP}
    s_nop 1
    v_add_f32_dpp v{t}, v{v}, v{v} row_half_mirror {DPP}
    s_nop 1
    v_add_f32_dpp v{v}, v{t}, v{t} row_mirror {DPP}
    """)
    xlane_sum(a, v, t)

def row_stats(a, src, u, dst, t0, t1):
    for r in range(8):
        a(f"""
        v_lshlrev_b32 v{u+2*r}, 16, v{src+r}
        v_and_b32 v{u+2*r+1}, 0xffff0000, v{src+r}
        """)
    a(f"v_pk_add_f32 {vr(dst,2)}, {vr(u,2)}, {vr(u+2,2)}")
    for r in range(2, 8):
        a(f"v_pk_add_f32 {vr(dst,2)}, {vr(dst,2)}, {vr(u+2*r,2)}")
    a(f"v_add_f32 v{t0}, v{dst}, v{dst+1}")
    reduce64(a, t0, t1)
    a(f"v_mul_f32 v{t0}, 0x3a800000, v{t0}          ; mean")
    for r in range(8):
        a(f"v_pk_add_f32 {vr(u+2*r,2)}, {vr(u+2*r,2)}, {vr(t0,2)} op_sel_hi:[1,0] neg_lo:[0,1] neg_hi:[0,1]")
    a(f"v_pk_mul_f32 {vr(dst,2)}, {vr(u,2)}, {vr(u,2)}")
    for r in range(1, 8):
        a(f"v_pk_fma_f32 {vr(dst,2)}, {vr(u+2*r,2)}, {vr(u+2*r,2)}, {vr(dst,2)}")
    a(f"v_add_f32 v{dst+1}, v{dst}, v{dst+1}")
    reduce64(a, dst + 1, t1)
    a(f"""
    v_mul_f32 v{dst+1}, 0x3a800000, v{dst+1}     ; var
    v_cvt_pk_bf16_f32 v{t1}, v{t0}, v{dst+1}
    v_lshlrev_b32 v{dst}, 16, v{t1}              ; m_b
    v_and_b32 v{dst+1}, 0xffff0000, v{t1}        ; v_b
    v_add_f32 v{dst+1}, 0x3727c5ac, v{dst+1}
    v_cvt_pk_bf16_f32 v{dst+1}, v{dst+1}, v{dst+1}
    v_and_b32 v{dst+1}, 0xffff0000, v{dst+1}
    v_sqrt_f32 v{dst+1}, v{dst+1}
    s_nop 0
    v_cvt_pk_bf16_f32 v{dst+1}, v{dst+1}, v{dst+1}
    v_and_b32 v{dst+1}, 0xffff0000, v{dst+1}
    v_rcp_f32 v{dst+1}, v{dst+1}
    s_nop 0
    """)

def g1_path(a, typ, G):
    qkv = (typ == 0)
    NB = 6 if qkv else 7
    PB = 384 if qkv else 448
    CH = PB // 16
    WP = 6144 if qkv else 7168
    halo = qkv and G == 0
    if qkv:
        nB = 3
        p0 = 0 if G == 0 else 12
    else:
        nB = 4 if G == 0 else 3
        p0 = 0 if G == 0 else 16
    nIss = 4 + nB + (1 if halo else 0)
    nBiss = nB + (1 if halo else 0)
    cs_slots = [0, 1] if (qkv or G == 0) else [0, 1, 6]
    P = f"g1_{typ}{G}"
    T = V_T
    a.label(P)
    if STAMP: a(f"v_mov_b32 v{V_STAMP}, 0")
    stamp_now(a, 32); stamp_now(a, 50, True)
    if qkv:
        a(f"""
        s_mov_b32 s{SRD_W}, s{S_W}
        s_and_b32 s{SRD_W+1}, s{S_W+1}, 0xffff
        s_mov_b32 s{SRD_W+2}, {1024*6144}
        s_mov_b32 s{SRD_W+3}, 0x20000
        """)
    else:
        a(f"""
        s_mov_b32 s{SRD_W}, s{S_W1}
        s_and_b32 s{SRD_W+1}, s{S_W1+1}, 0xffff
        s_mov_b32 s{SRD_W+2}, {1024*7168}
        s_mov_b32 s{SRD_W+3}, 0x20000
        """)
    Go = 1 - G
    a(f"""
    v_lshrrev_b32 v{T}, 3, v{V_LANE}                 ; l>>3
    v_and_b32 v{T+1}, 7, v{V_LANE}
    v_xor_b32 v{T+1}, v{T+1}, v{T}                   ; chunk
    s_lshl_b32 s{S_TMP}, s{S_MT}, 8
    s_lshl_b32 s{S_TMP2}, s{S_WQ}, 5
    s_add_u32 s{S_TMP}, s{S_TMP}, s{S_TMP2}
    s_add_u32 s{S_TMP}, s{S_TMP}, {128*Go}
    v_add_u32 v{T+2}, s{S_TMP}, v{T}
    v_lshlrev_b32 v{T+2}, 11, v{T+2}
    v_lshl_add_u32 v{V_DA}, v{T+1}, 4, v{T+2}
    """)
    if halo:
        a(f"""
        s_and_b32 s{S_TMP2}, s{S_WQ}, 1
        s_lshl_b32 s{S_TMP2}, s{S_TMP2}, 3
        v_add_u32 v{T+2}, s{S_TMP2}, v{T}
        s_lshl_b32 s{S_TMP}, s{S_MT}, 8
        s_sub_u32 s{S_TMP}, s{S_TMP}, 16
        v_add_u32 v{T+2}, s{S_TMP}, v{T+2}
        v_max_i32 v{T+2}, 0, v{T+2}
        v_lshlrev_b32 v{T+2}, 11, v{T+2}
        v_lshl_add_u32 v{V_DH}, v{T+1}, 4, v{T+2}
        s_mul_i32 s{S_HD}, s{S_WQ}, {nB*1024}
        s_sub_u32 s{S_HD}, {G1_HALO - p0*1024}, s{S_HD}
        s_lshl_b32 s{S_TMP2}, s{S_TMP2}, 7           ; (wq&1)*1024
        s_add_u32 s{S_HD}, s{S_HD}, s{S_TMP2}
        """)
    magic = (65536 + CH - 1) // CH
    for q in range(64 * CH):
        assert (q * magic) >> 16 == q // CH
    a(f"s_mul_i32 s{S_TMP3}, s{S_WQ}, {nB*64}")
    for i in range(nB):
        a(f"""
        s_add_u32 s{S_TMP}, s{S_TMP3}, {(p0+i)*64}
        v_add_u32 v{T}, s{S_TMP}, v{V_LANE}          ; q
        v_mul_u32_u24 v{T+1}, {magic}, v{T}
        v_lshrrev_b32 v{T+1}, 16, v{T+1}             ; k
        v_mul_u32_u24 v{T+2}, {CH}, v{T+1}
        v_sub_u32 v{T+2}, v{T}, v{T+2}               ; c'
        """)
        if qkv:
            a(f"""
            v_bfe_u32 v{T+3}, v{T+1}, 1, 1
            v_bfe_u32 v{T+4}, v{T+1}, 3, 1
            v_lshl_or_b32 v{T+3}, v{T+4}, 1, v{T+3}  ; f
            v_lshrrev_b32 v{T+4}, 1, v{T+2}
            v_xor_b32 v{T+4}, v{T+4}, v{T+3}         ; unit (0..11)
            v_cmp_le_u32 vcc, 6, v{T+4}
            s_nop 1
            v_cndmask_b32 v{T+5}, 0, 1, vcc          ; hh
            v_mul_u32_u24 v{T+6}, 6, v{T+5}
            v_sub_u32 v{T+6}, v{T+4}, v{T+6}         ; unit % 6
            v_lshrrev_b32 v{T+7}, 1, v{T+6}          ; part
            v_and_b32 v{T+6}, 1, v{T+6}              ; half32
            v_lshlrev_b32 v{T+7}, 11, v{T+7}         ; part*2048
            v_lshl_add_u32 v{T+7}, v{T+5}, 6, v{T+7} ; + hh*64
            v_lshl_add_u32 v{T+7}, v{T+6}, 5, v{T+7} ; + half32*32
            v_and_b32 v{T+6}, 1, v{T+2}
            v_lshl_add_u32 v{T+7}, v{T+6}, 4, v{T+7} ; + (c'&1)*16
            s_lshl_b32 s{S_TMP}, s{S_JT}, 7          ; 2 jt * 64
            v_add_u32 v{T+7}, s{S_TMP}, v{T+7}
            v_mul_u32_u24 v{T+1}, {WP}, v{T+1}
            v_add_u32 v{V_DB+i}, v{T+1}, v{T+7}
            """)
        else:
            a(f"""
            v_bfe_u32 v{T+3}, v{T+1}, 3, 1
            v_lshlrev_b32 v{T+3}, 1, v{T+3}
            v_xor_b32 v{T+2}, v{T+2}, v{T+3}         ; c = c' ^ (2*bit3(k))
            v_lshlrev_b32 v{T+2}, 4, v{T+2}
            s_mul_i32 s{S_TMP}, s{S_JT}, 448
            v_add_u32 v{T+2}, s{S_TMP}, v{T+2}
            v_mul_u32_u24 v{T+1}, {WP}, v{T+1}
            v_add_u32 v{V_DB+i}, v{T+1}, v{T+2}
            """)
    a(f"""
    s_lshl_b32 s{S_KA}, s{S_MT}, {8 if FUSE else 31}
    s_and_b32 s{S_KA}, s{S_KA}, 0x7ff
    s_mul_i32 s{S_KB}, s{S_MT}, {128*WP if FUSE else 0}
    s_mov_b32 s{S_KH}, s{S_KA}
    s_lshl_b32 s{S_MA}, s{S_WQ}, 12
    s_add_u32 s{S_MA}, s{S_MA}, {Go*2*G1_ASLOT}
    s_mul_i32 s{S_MB}, s{S_WQ}, {nB*1024}
    s_add_u32 s{S_MB}, s{S_MB}, {G1_BBASE + p0*1024}
    s_mov_b32 s{S_BSL}, 0
    """)
    def dma_A():
        for i in range(4):
            a(f"""
            s_add_u32 m0, s{S_MA}, {i*1024}
            s_add_u32 s{S_TMP}, s{S_KA}, {i*16384}
            buffer_load_dwordx4 v{V_DA}, {sr(SRD_XA,4)}, s{S_TMP} offen lds
            """)
        a(f"""
        s_add_u32 s{S_KA}, s{S_KA}, 128
        s_and_b32 s{S_KA}, s{S_KA}, 0x7ff
        s_xor_b32 s{S_MA}, s{S_MA}, {G1_ASLOT}
        """)
    def dma_B():
        for i in range(nB):
            a(f"""
            s_add_u32 m0, s{S_MB}, {i*1024}
            s_nop 0
            buffer_load_dwordx4 v{V_DB+i}, {sr(SRD_W,4)}, s{S_KB} offen lds
            """)
        if halo:
            a(f"""
            s_add_u32 m0, s{S_MB}, s{S_HD}
            s_nop 0
            buffer_load_dwordx4 v{V_DH}, {sr(SRD_X,4)}, s{S_KH} offen lds
            s_add_u32 s{S_KH}, s{S_KH}, 128
            s_and_b32 s{S_KH}, s{S_KH}, 0x7ff
            """)
        a(f"""
        s_add_u32 s{S_KB}, s{S_KB}, {64*WP}
        s_cmp_eq_u32 s{S_KB}, {1024*WP}
        s_cselect_b32 s{S_KB}, 0, s{S_KB}
        s_add_u32 s{S_BSL}, s{S_BSL}, 1
        s_add_u32 s{S_MB}, s{S_MB}, {G1_BSLOT}
        s_cmp_eq_u32 s{S_BSL}, 3
        s_cselect_b32 s{S_TMP}, {3*G1_BSLOT}, 0
        s_cselect_b32 s{S_BSL}, 0, s{S_BSL}
        s_sub_u32 s{S_MB}, s{S_MB}, s{S_TMP}
        """)
    if G == 0:
        dma_B(); dma_A(); dma_B()
        pro_wait = 4 + nBiss
    else:
        dma_A(); dma_B(); dma_A(); dma_B()
        pro_wait = 4 + nBiss
    WARM = "nowarmw" not in OPTS and not FUSE
    a(f"""
    s_and_b32 s{S_WOP+1}, s{S_WOP+1}, 0xffff
    s_and_b32 s{S_W2P+1}, s{S_W2P+1}, 0xffff
    s_lshl_b32 s{S_GW}, s2, 3
    s_add_u32 s{S_GW}, s{S_GW}, s{S_WAVE}
    s_lshl_b32 s{S_GW}, s{S_GW}, 10
    v_lshlrev_b32 v{V_L16}, 4, v{V_LANE}
    s_mov_b32 s{S_WPK}, {128*WP}
    s_mov_b32 s{S_KW}, 0
    """)
    if WARM:
        a(f"""
        v_min_u32 v{T}, {2*CH - 1}, v{V_LANE}
        v_cmp_le_u32 vcc, {CH}, v{T}
        s_lshl_b32 s{S_TMP}, s{S_MT}, 4
        s_lshl_b32 s{S_TMP2}, s{S_WAVE}, 1
        v_cndmask_b32 v{T+1}, 0, 1, vcc              ; row
        s_add_u32 s{S_TMP}, s{S_TMP}, s{S_TMP2}
        v_mul_u32_u24 v{T+2}, {CH}, v{T+1}
        v_sub_u32 v{T}, v{T}, v{T+2}                 ; chunk
        v_add_u32 v{T+1}, s{S_TMP}, v{T+1}
        v_mul_u32_u24 v{T+1}, {WP}, v{T+1}
        """)
        if qkv:
            a(f"""
            v_lshrrev_b32 v{T+2}, 3, v{T}
            v_lshl_add_u32 v{T+1}, v{T+2}, 11, v{T+1}
            v_and_b32 v{T}, 7, v{T}
            s_lshl_b32 s{S_TMP}, s{S_JT}, 7
            """)
        else:
            a(f"s_mul_i32 s{S_TMP}, s{S_JT}, 448")
        a(f"""
        v_lshl_add_u32 v{T+1}, v{T}, 4, v{T+1}
        v_add_u32 v{V_WV}, s{S_TMP}, v{T+1}
        s_mov_b32 s{S_KW}, {256*WP}
        buffer_load_dwordx4 {vr(V_WD)}, v{V_WV}, {sr(SRD_W,4)}, s{S_KW} offen
        s_mov_b32 s{S_KW}, {384*WP}
        buffer_load_dwordx4 {vr(V_WD)}, v{V_WV}, {sr(SRD_W,4)}, s{S_KW} offen
        s_mov_b32 s{S_KW}, {512*WP}
        s_mov_b32 s{SRD_WW}, s{SRD_W}
        s_mov_b32 s{SRD_WW+1}, s{SRD_W+1}
        s_mov_b32 s{SRD_WW+2}, s{SRD_W+2}
        s_mov_b32 s{SRD_WW+3}, 0x20000
        s_and_b32 s{S_WOP+1}, s{S_WOP+1}, 0xffff
        s_and_b32 s{S_W2P+1}, s{S_W2P+1}, 0xffff
        s_mov_b32 s{S_WPK}, {128*WP}
        s_lshl_b32 s{S_GW}, s2, 3
        s_add_u32 s{S_GW}, s{S_GW}, s{S_WAVE}
        s_lshl_b32 s{S_GW}, s{S_GW}, 10
        v_lshlrev_b32 v{V_L16}, 4, v{V_LANE}
        """)
        pro_wait += 2
        nIss += 1
    NCOL = 16 * 2 * NB
    VCS = 216 - 4 * len(cs_slots)
    if FUSE:
        a(f"""
        s_add_u32 s{SRD_ST}, s{S_WS}, {ST_OFF}
        s_addc_u32 s{SRD_ST+1}, s{S_WS+1}, 0
        s_and_b32 s{SRD_ST+1}, s{SRD_ST+1}, 0xffff
        s_mov_b32 s{SRD_ST+2}, {65536 + 262144}
        s_mov_b32 s{SRD_ST+3}, 0x20000
        s_mov_b32 s{SRD_DBG}, s{S_DBGP}
        s_and_b32 s{SRD_DBG+1}, s{S_DBGP+1}, 0xffff
        s_mov_b32 s{SRD_DBG+2}, 256
        s_mov_b32 s{SRD_DBG+3}, 0x20000
        s_add_u32 s{S_NTI}, s{S_JT}, {16*typ}
        s_mov_b32 s{S_EV}, {(1<<2) | (1<<5) | (1<<12) | (1<<14) if G == 0 else (1<<2)}
        """)
        if G == 1:
            a(f"""
            s_lshl_b32 s{S_TMP}, s{S_MT}, 8
            s_lshl_b32 s{S_TMP2}, s{S_NTI}, 3
            s_add_u32 s{S_TMP}, s{S_TMP}, s{S_TMP2}
            s_lshl_b32 s{S_TMP2}, s{S_WQ}, 1
            s_add_u32 s{S_KW}, s{S_TMP}, s{S_TMP2}
            s_lshl_b32 s{S_TMP}, s{S_KW}, 11
            """)
            for i in range(4):
                a(f"buffer_load_dwordx4 {vr(V_XF+4*i)}, v{V_L16}, {sr(SRD_X,4)}, s{S_TMP} offen offset:{1024*i}")
            pro_wait += 4
    if qkv:
        if G == 0:
            a(f"""
            s_mul_i32 s{S_TMP}, s{S_NW}, 6
            s_lshl_b32 s{S_TMP2}, s{S_MW}, 1
            s_add_u32 s{S_BLK+0}, s{S_TMP}, s{S_TMP2}
            s_add_u32 s{S_BLK+0}, s{S_BLK+0}, 2
            s_add_u32 s{S_BLK+1}, s{S_BLK+0}, 1
            s_mov_b32 s{S_BLK+2}, s{S_TMP}
            s_add_u32 s{S_BLK+3}, s{S_TMP}, 1
            s_sub_u32 s{S_BLK+4}, s{S_TMP}, s{S_TMP2}
            s_add_u32 s{S_BLK+4}, s{S_BLK+4}, 4
            s_add_u32 s{S_BLK+5}, s{S_BLK+4}, 1
            """)
        else:
            a(f"s_mul_i32 s{S_TMP}, s{S_NW}, 6")
            for s in range(6):
                a(f"s_add_u32 s{S_BLK+s}, s{S_TMP}, {s}")
    else:
        a(f"s_lshl_b32 s{S_TMP2}, s{S_NW}, 3")
        for ps in range(3):
            a(f"""
            s_add_u32 s{S_TMP}, s{S_MW}, {(ps + 2*G) % 3}
            s_cmp_ge_u32 s{S_TMP}, 3
            s_cselect_b32 s{S_TMP3}, 3, 0
            s_sub_u32 s{S_TMP}, s{S_TMP}, s{S_TMP3}
            s_lshl_b32 s{S_TMP}, s{S_TMP}, 1
            s_add_u32 s{S_BLK+2*ps}, s{S_TMP}, s{S_TMP2}
            s_add_u32 s{S_BLK+2*ps+1}, s{S_BLK+2*ps}, 1
            """)
        a(f"s_add_u32 s{S_BLK+6}, s{S_NW}, 6")
    a(f"""
    v_and_b32 v{T}, 7, v{V_TT}
    v_xor_b32 v{T}, v{V_GG}, v{T}                    ; g ^ (t&7)
    v_lshlrev_b32 v{T}, 4, v{T}
    v_lshl_add_u32 v{T}, v{V_TT}, 7, v{T}
    s_lshl_b32 s{S_TMP}, s{S_MW}, 13
    s_add_u32 s{S_TMP}, s{S_TMP}, {G*2*G1_ASLOT}
    s_lshl_b32 s{S_TMP2}, s{S_NW}, 12
    s_add_u32 s{S_TMP3}, s{S_TMP}, s{S_TMP2}
    v_add_u32 v{V_RA+0}, s{S_TMP3}, v{T}
    v_xor_b32 v{V_RA+1}, 64, v{V_RA+0}
    s_xor_b32 s{S_TMP2}, s{S_TMP2}, 4096
    s_add_u32 s{S_TMP3}, s{S_TMP}, s{S_TMP2}         ; sp=1
    v_add_u32 v{V_RA+2}, s{S_TMP3}, v{T}
    v_xor_b32 v{V_RA+3}, 64, v{V_RA+2}
    """)
    if halo:
        a(f"""
        v_add_u32 v{V_RH+0}, {G1_BBASE + G1_HALO}, v{T}
        v_xor_b32 v{V_RH+1}, 64, v{V_RH+0}
        """)
    a(f"""
    v_lshrrev_b32 v{T}, 2, v{V_TT}                   ; r
    v_lshl_add_u32 v{T+1}, v{V_GG}, 3, v{T}          ; 8g + r
    v_mul_u32_u24 v{T+1}, {PB}, v{T+1}
    v_and_b32 v{T+2}, 3, v{V_LANE}
    v_lshl_add_u32 v{T+1}, v{T+2}, 3, v{T+1}         ; + c*8
    v_add_u32 v{T+1}, {G1_BBASE}, v{T+1}
    v_and_b32 v{T+2}, 1, v{V_GG}                     ; g&1
    """)
    if qkv:
        a(f"""
        v_lshrrev_b32 v{T+3}, 1, v{T}                ; bit1(r)
        v_lshl_or_b32 v{T+2}, v{T+2}, 1, v{T+3}      ; f
        """)
    for s in range(NB):
        a(f"""
        v_xor_b32 v{T+3}, s{S_BLK+s}, v{T+2}
        v_lshl_add_u32 v{V_RB+s}, v{T+3}, 5, v{T+1}
        """)
    nacc = (NB * 4) * 4
    for r in range(V_ACC, V_ACC + nacc):
        a(f"v_mov_b32 v{r}, 0")
    if halo:
        for r in range(V_HACC, V_HACC + 8):
            a(f"v_mov_b32 v{r}, 0")
    if FUSE:
        for r in range(4 * len(cs_slots)):
            a(f"v_mov_b32 v{VCS+r}, 0")
        for r in range(4):
            a(f"v_mov_b32 v{V_ONES+r}, 0x3f803f80")
    a(f"""
    s_mov_b32 s{S_BSC}, {G1_BSLOT}
    s_mov_b32 s{S_J}, 0
    s_mov_b32 s{S_RSL}, 0
    s_waitcnt vmcnt({pro_wait})
    s_barrier
    """)
    stamp_now(a, 33)
    if G == 1:
        if FUSE:
            a("s_waitcnt vmcnt(0)")
            row_stats(a, V_XF, V_WF, V_WF + 16, V_WF + 20, V_WF + 21)
            row_stats(a, V_XF + 8, V_WF, V_WF + 18, V_WF + 20, V_WF + 21)
            a(f"""
            v_lshlrev_b32 v{V_WF+20}, 24, v{V_LANE}
            s_lshl_b32 s{S_TMP}, s{S_KW}, 3
            buffer_store_dwordx4 {vr(V_WF+16)}, v{V_WF+20}, {sr(SRD_ST,4)}, s{S_TMP} offen sc0 sc1
            """)
        a("s_barrier")
    if STAMP: a(f"s_mov_b32 s{S_SB}, 0")

    def rd_x(i):
        sp, e = i >> 1, i & 1
        for kk in range(2):
            a(f"ds_read_b128 {vr(xf(i,kk))}, v{V_RA+sp*2+kk} offset:{e*2048}")
    def rd_w(s):
        for kk in range(2):
            for h in range(2):
                a(f"ds_read_b64_tr_b16 {vr(wf(s,kk)+2*h,2)}, v{V_RB+s} offset:{(32*kk+4*h)*PB}")
    def dma_list():
        L = []
        for i in range(4):
            L.append(f"""
            s_add_u32 m0, s{S_MAE}, {i*1024}
            s_add_u32 s{S_TMP}, s{S_KA}, {i*16384}
            buffer_load_dwordx4 v{V_DA}, {sr(SRD_XA,4)}, s{S_TMP} offen lds
            """)
        for i in range(nB):
            L.append(f"""
            s_add_u32 m0, s{S_MBE}, {i*1024}
            s_nop 0
            buffer_load_dwordx4 v{V_DB+i}, {sr(SRD_W,4)}, s{S_KB} offen lds
            """)
        if halo:
            L.append(f"""
            s_add_u32 m0, s{S_MBE}, s{S_HD}
            s_nop 0
            buffer_load_dwordx4 v{V_DH}, {sr(SRD_X,4)}, s{S_KH} offen lds
            """)
        if WARM:
            L.append(f"buffer_load_dwordx4 {vr(V_WD)}, v{V_WV}, {sr(SRD_WW,4)}, s{S_KW} offen")
        return L
    a(f"""
    s_mov_b32 s{S_MAE}, s{S_MA}
    s_mov_b32 s{S_MBE}, s{S_MB}
    """)
    reads = []
    for i in range(4):
        sp, e = i >> 1, i & 1
        for kk in range(2):
            reads.append((kk, f"ds_read_b128 {vr(xf(i,kk))}, v{V_RA+sp*2+kk} offset:{e*2048}"))
    if halo:
        for kk in range(2):
            reads.append((kk, f"ds_read_b128 {vr(hf(kk))}, v{V_RH+kk}"))
    for s_ in range(NB):
        for kk in range(2):
            for h in range(2):
                reads.append((kk, f"ds_read_b64_tr_b16 {vr(wf(s_,kk)+2*h,2)}, v{V_RB+s_} offset:{(32*kk+4*h)*PB}"))
    reads = [r for k_, r in reads if k_ == 0] + [r for k_, r in reads if k_ == 1]

    a.raw(".p2align 6")
    a.label(P + "_loop")
    if STAMP: a(f"s_memtime {sr(S_SA)}")
    dl = dma_list()
    step = max(3, len(reads) // len(dl))
    order = "rdfirst" if "rdfirst" in OPTS else "mix"
    if order == "rdfirst":
        for r in reads: a(r)
        for d in dl: a(d)
    else:
        di = 0
        for n_, r in enumerate(reads):
            a(r)
            if (n_ % step) == 1 and di < len(dl):
                a(dl[di]); di += 1
        while di < len(dl):
            a(dl[di]); di += 1
    if STAMP: a(f"s_memtime {sr(100)}")
    if FUSE:
        a(f"""
        s_bitcmp1_b32 s{S_EV}, s{S_J}
        s_cbranch_scc1 {P}_event
        """)
    a(f"s_waitcnt vmcnt({0 if 'strictwait' in OPTS else nIss}) lgkmcnt(0)")
    a.label(P + "_afterwait")
    if STAMP:
        a(f"""
        s_lshl_b32 s{S_SI}, s{S_J}, 1
        s_mov_b32 m0, s{S_SI}
        s_nop 3
        v_writelane_b32 v{V_STAMP}, s{S_SA}, m0
        s_add_u32 s{S_SI}, s{S_SI}, 63
        s_and_b32 m0, s{S_SI}, 63
        s_nop 3
        v_writelane_b32 v{V_STAMP}, s{S_SB}, m0
        s_memtime {sr(S_SC)}
        s_cmp_eq_u32 s{S_J}, 8
        s_cbranch_scc0 {P}_nost
        s_waitcnt lgkmcnt(0)
        v_writelane_b32 v{V_STAMP}, s{S_SA}, 40
        v_writelane_b32 v{V_STAMP}, s100, 41
        v_writelane_b32 v{V_STAMP}, s{S_SC}, 42
        """)
        a.label(P + "_nost")
    a("s_barrier")
    if STAMP: a(f"s_memtime {sr(S_SB)}")
    bk = Collect()
    bk(f"""
    s_add_u32 s{S_KA}, s{S_KA}, 128
    s_and_b32 s{S_KA}, s{S_KA}, 0x7ff
    s_xor_b32 s{S_MA}, s{S_MA}, {G1_ASLOT}
    s_cmp_ge_u32 s{S_J}, {14 if G == 0 else 13}
    s_cselect_b32 s{SRD_XA+2}, 0, s{SRD_XA+2}
    s_cselect_b32 s{S_MAE}, {LDS_DUMP}, s{S_MA}
    s_add_u32 s{S_KH}, s{S_KH}, 128
    s_and_b32 s{S_KH}, s{S_KH}, 0x7ff
    s_add_u32 s{S_KW}, s{S_KW}, s{S_WPK}
    s_add_u32 s{S_KB}, s{S_KB}, {64*WP}
    s_cmp_eq_u32 s{S_KB}, {1024*WP}
    s_cselect_b32 s{S_KB}, 0, s{S_KB}
    s_add_u32 s{S_BSL}, s{S_BSL}, 1
    s_add_u32 s{S_MB}, s{S_MB}, {G1_BSLOT}
    s_cmp_eq_u32 s{S_BSL}, 3
    s_cselect_b32 s{S_TMP}, {3*G1_BSLOT}, 0
    s_cselect_b32 s{S_BSL}, 0, s{S_BSL}
    s_sub_u32 s{S_MB}, s{S_MB}, s{S_TMP}
    s_cmp_ge_u32 s{S_J}, 13
    s_cselect_b32 s{S_MBE}, {LDS_DUMP}, s{S_MB}
    s_cselect_b32 s{SRD_W+2}, 0, s{SRD_W+2}
    s_cselect_b32 s{SRD_X+2}, 0, s{SRD_X+2}
    s_add_u32 s{S_RSL}, s{S_RSL}, 1
    s_cmp_eq_u32 s{S_RSL}, 3
    s_cselect_b32 s{S_BD}, {(-2*G1_BSLOT) & 0xffffffff}, s{S_BSC}
    s_cselect_b32 s{S_RSL}, 0, s{S_RSL}
    """)
    for r in range(4):
        bk(f"v_xor_b32 v{V_RA+r}, {G1_ASLOT}, v{V_RA+r}")
    for s_ in range(NB):
        bk(f"v_add_u32 v{V_RB+s_}, s{S_BD}, v{V_RB+s_}")
    if halo:
        for kk in range(2):
            bk(f"v_add_u32 v{V_RH+kk}, s{S_BD}, v{V_RH+kk}")
    a("s_setprio 1")
    mf = []
    for kk in range(2):
        for s_ in range(NB):
            for i in range(4):
                mf.append(f"v_mfma_f32_16x16x32_bf16 {vr(acc(s_,i))}, {vr(wf(s_,kk))}, {vr(xf(i,kk))}, {vr(acc(s_,i))}")
        if halo:
            for s_ in range(2):
                mf.append(f"v_mfma_f32_16x16x32_bf16 {vr(V_HACC+4*s_)}, {vr(wf(s_,kk))}, {vr(hf(kk))}, {vr(V_HACC+4*s_)}")
    interleave(a, mf, bk.L, start=2, per=1)
    if FUSE:
        a(f"""
        s_cmp_lt_u32 s{S_J}, 2
        s_cbranch_scc0 {P}_nocs
        """)
        for kk in range(2):
            for ci, s_ in enumerate(cs_slots):
                a(f"v_mfma_f32_16x16x32_bf16 {vr(VCS+4*ci)}, {vr(wf(s_,kk))}, {vr(V_ONES)}, {vr(VCS+4*ci)}")
        a.label(P + "_nocs")
    a(f"""
    s_setprio 0
    s_add_u32 s{S_J}, s{S_J}, 1
    s_cmp_lt_u32 s{S_J}, 16
    """)
    if G == 0:
        a(f"""
        s_barrier
        s_cbranch_scc1 {P}_loop
        s_branch {P}_post
        """)
    else:
        a(f"""
        s_cbranch_scc0 {P}_post
        s_barrier
        s_branch {P}_loop
        """)
    if FUSE:
        a.label(P + "_event")
        if G == 0:
            a(f"""
            s_cmp_eq_u32 s{S_J}, 2
            s_cbranch_scc0 {P}_ev5
            """)
        a(f"""
        v_lshlrev_b32 v{T}, 24, v{V_TT}
        v_lshl_add_u32 v{T}, v{V_GG}, 4, v{T}
        s_lshl_b32 s{S_TMP2}, s{S_NTI}, 3
        s_add_u32 s{S_TMP2}, s{S_TMP2}, s{S_MT}
        s_lshl_b32 s{S_TMP2}, s{S_TMP2}, 10
        s_add_u32 s{S_TMP2}, s{S_TMP2}, 65536
        """)
        for ci, s_ in enumerate(cs_slots):
            a(f"""
            s_lshl_b32 s{S_TMP}, s{S_BLK+s_}, 6
            s_add_u32 s{S_TMP}, s{S_TMP}, s{S_TMP2}
            buffer_store_dwordx4 {vr(VCS+4*ci)}, v{T}, {sr(SRD_ST,4)}, s{S_TMP} offen sc0 sc1
            """)
        a(f"""
        s_waitcnt vmcnt({nIss + len(cs_slots)}) lgkmcnt(0)
        s_branch {P}_afterwait
        """)
        if G == 0:
            a.label(P + "_ev5")
            a(f"""
            s_cmp_eq_u32 s{S_J}, 14
            s_cbranch_scc1 {P}_ev14
            s_sub_u32 s{S_TMP}, s{S_MT}, 1
            s_max_i32 s{S_TMP}, s{S_TMP}, 0
            s_lshl_b32 s{S_TMP}, s{S_TMP}, 2
            s_lshl_b32 s{S_TMP2}, s{S_NTI}, 2
            s_add_u32 s{S_TMP2}, s{S_TMP2}, 32
            s_lshl_b32 s{S_TMP3}, s{S_MT}, 2
            v_mov_b32 v{T}, 0x1000
            v_writelane_b32 v{T}, s{S_TMP3}, 0
            v_writelane_b32 v{T}, s{S_TMP2}, 1
            s_cmp_lg_u32 s{S_WAVE}, 0
            s_cselect_b32 s{S_TMP2}, 0x1000, 0
            s_cmp_eq_u32 s{S_J}, 5
            s_cbranch_scc0 {P}_ev12
            v_mov_b32 v{T+1}, 1
            buffer_atomic_add v{T+1}, v{T}, {sr(SRD_DBG,4)}, s{S_TMP2} offen sc1
            s_waitcnt vmcnt({nIss + 1}) lgkmcnt(0)
            s_branch {P}_afterwait
            """)
            a.label(P + "_ev12")
            a(f"""
            v_writelane_b32 v{T}, s{S_TMP}, 2
            s_nop 1
            buffer_load_dword v{V_CHK}, v{T}, {sr(SRD_DBG,4)}, s{S_TMP2} offen sc0 sc1
            s_waitcnt vmcnt({nIss + 1}) lgkmcnt(0)
            s_branch {P}_afterwait
            """)
            a.label(P + "_ev14")
            a(f"""
            s_cmp_eq_u32 s{S_WQ}, 0
            s_cbranch_scc0 {P}_ev14b
            s_lshl_b32 s{S_TMP}, s{S_MT}, 11
            s_sub_u32 s{S_TMP}, s{S_TMP}, 128
            v_add_u32 v{T}, s{S_TMP}, v{V_L16}
            v_max_i32 v{T}, 0, v{T}
            s_add_u32 s{S_TMP}, s{S_TMP}, 1024
            v_add_u32 v{T+1}, s{S_TMP}, v{V_L16}
            s_mov_b32 m0, {G1_STAT}
            s_nop 0
            buffer_load_dwordx4 v{T}, {sr(SRD_ST,4)}, 0 offen sc0 sc1 lds
            s_mov_b32 m0, {G1_STAT + 1024}
            s_nop 0
            buffer_load_dwordx4 v{T+1}, {sr(SRD_ST,4)}, 0 offen sc0 sc1 lds
            buffer_load_dwordx4 v{T+1}, {sr(SRD_ST,4)}, 0 offen offset:1024 sc0 sc1 lds
            s_waitcnt vmcnt({nIss + 3}) lgkmcnt(0)
            s_branch {P}_afterwait
            """)
            a.label(P + "_ev14b")
            a(f"""
            s_mul_i32 s{S_TMP}, s{S_WQ}, 3072
            s_sub_u32 s{S_TMP}, s{S_TMP}, 3072
            s_add_u32 m0, s{S_TMP}, {G1_CSP}
            s_lshl_b32 s{S_TMP2}, s{S_NTI}, 13
            s_add_u32 s{S_TMP2}, s{S_TMP2}, s{S_TMP}
            s_add_u32 s{S_TMP2}, s{S_TMP2}, 65536
            buffer_load_dwordx4 v{V_L16}, {sr(SRD_ST,4)}, s{S_TMP2} offen sc0 sc1 lds
            buffer_load_dwordx4 v{V_L16}, {sr(SRD_ST,4)}, s{S_TMP2} offen offset:1024 sc0 sc1 lds
            s_cmp_eq_u32 s{S_WQ}, 3
            s_cselect_b32 s{S_TMP}, {LDS_DUMP}, m0
            s_mov_b32 m0, s{S_TMP}
            s_nop 0
            buffer_load_dwordx4 v{V_L16}, {sr(SRD_ST,4)}, s{S_TMP2} offen offset:2048 sc0 sc1 lds
            s_waitcnt vmcnt({nIss + 3}) lgkmcnt(0)
            s_branch {P}_afterwait
            """)
    a.label(P + "_post")
    if STAMP:
        a(f"""
        s_waitcnt lgkmcnt(0)
        v_writelane_b32 v{V_STAMP}, s{S_SB}, 31
        """)
    stamp_now(a, 34)
    if FUSE:
        if G == 0:
            a(f"""
            v_mov_b32 v{T}, 0
            v_writelane_b32 v{T}, 32, 0
            v_writelane_b32 v{T}, 8, 1
            v_writelane_b32 v{T}, 32, 2
            s_nop 1
            v_cmp_ne_u32 vcc, v{T}, v{V_CHK}
            s_nop 3
            s_and_b32 s{S_TMP}, vcc_lo, 7
            """)
            if "forceslow" in OPTS: a(f"s_mov_b32 s{S_TMP}, 1")
            a(f"""
            v_mov_b32 v{T}, {G1_VERD}
            v_mov_b32 v{T+1}, s{S_TMP}
            s_cmp_eq_u32 s{S_WAVE}, 0
            s_cbranch_scc0 {P}_red
            ds_write_b32 v{T}, v{T+1}
            """)
        a.label(P + "_red")
        if G == 0:
            a(f"""
            s_lshl_b32 s{S_TMP}, s{S_WQ}, 8
            v_lshl_add_u32 v{T}, v{V_LANE}, 2, s{S_TMP}  ; thread * 4
            v_add_u32 v{T+1}, {G1_CSP}, v{T}
            """)
            for m in range(8):
                a(f"ds_read_b32 v{V_XF+m}, v{T+1} offset:{1024*m}")
            a(f"""
            v_min_u32 v{T}, {4*NCOL - 4}, v{T}
            v_add_u32 v{T}, {G1_CS}, v{T}
            v_cmp_gt_u32 vcc, {4*NCOL + G1_CSP}, v{T+1}
            s_waitcnt lgkmcnt(0)
            """)
            for m in range(1, 8):
                a(f"v_add_f32 v{V_XF}, v{V_XF}, v{V_XF+m}")
            a(f"""
            s_and_saveexec_b64 {sr(S_TMP2)}, vcc
            ds_write_b32 v{T}, v{V_XF}
            s_mov_b64 exec, -1
            s_waitcnt lgkmcnt(0)
            """)
        a(f"""
        s_barrier
        v_mov_b32 v{T}, {G1_VERD}
        ds_read_b32 v{T+1}, v{T}
        s_waitcnt lgkmcnt(0)
        v_readfirstlane_b32 s{S_TMP}, v{T+1}
        s_nop 3
        s_cmp_eq_u32 s{S_TMP}, 0
        s_cbranch_scc1 {P}_fast
        s_barrier
        s_mov_b32 s{SRD_X+2}, {2048*2048}
        s_mov_b32 s{SRD_W+2}, {1024*WP}
        s_mov_b32 s{S_J}, s{S_WAVE}
        """)
        a.label(P + "_slow1")
        a(f"""
        s_lshl_b32 s{S_TMP}, s{S_MT}, 8
        s_add_u32 s{S_TMP}, s{S_TMP}, s{S_J}
        s_sub_u32 s{S_TMP}, s{S_TMP}, 16
        s_max_i32 s{S_TMP}, s{S_TMP}, 0
        s_lshl_b32 s{S_TMP}, s{S_TMP}, 11
        buffer_load_dwordx4 {vr(V_XF)}, v{V_L16}, {sr(SRD_X,4)}, s{S_TMP} offen
        buffer_load_dwordx4 {vr(V_XF+4)}, v{V_L16}, {sr(SRD_X,4)}, s{S_TMP} offen offset:1024
        s_waitcnt vmcnt(0)
        """)
        row_stats(a, V_XF, V_WF, V_WF + 16, V_WF + 20, V_WF + 21)
        a(f"""
        s_lshl_b32 s{S_TMP}, s{S_J}, 3
        s_add_u32 s{S_TMP}, s{S_TMP}, {G1_STAT}
        v_mov_b32 v{T}, s{S_TMP}
        ds_write_b64 v{T}, {vr(V_WF+16,2)}
        s_add_u32 s{S_J}, s{S_J}, 8
        s_cmp_lt_u32 s{S_J}, 272
        s_cbranch_scc1 {P}_slow1
        v_min_u32 v{T}, {CH-1}, v{V_LANE}
        """)
        if qkv:
            a(f"""
            v_cmp_le_u32 vcc, 12, v{T}
            s_nop 1
            v_cndmask_b32 v{T+1}, 0, 1, vcc              ; hh
            v_mul_u32_u24 v{T+2}, 12, v{T+1}
            v_sub_u32 v{T+2}, v{T}, v{T+2}
            v_lshrrev_b32 v{T+3}, 2, v{T+2}              ; part
            v_and_b32 v{T+2}, 3, v{T+2}
            v_lshlrev_b32 v{T+3}, 11, v{T+3}
            v_lshl_add_u32 v{T+3}, v{T+1}, 6, v{T+3}
            v_lshl_add_u32 v{T+3}, v{T+2}, 4, v{T+3}
            s_lshl_b32 s{S_TMP}, s{S_JT}, 7
            v_add_u32 v{T+3}, s{S_TMP}, v{T+3}
            """)
        else:
            a(f"""
            s_mul_i32 s{S_TMP}, s{S_JT}, 448
            v_lshl_add_u32 v{T+3}, v{T}, 4, s{S_TMP}
            """)
        for r in range(8):
            a(f"v_mov_b32 v{V_WF+r}, 0")
        a(f"""
        s_mul_i32 s{S_TMP}, s{S_WAVE}, {128*WP}
        s_mov_b32 s{S_J}, 0
        """)
        a.label(P + "_slow2")
        a(f"""
        buffer_load_dwordx4 {vr(V_XF)}, v{T+3}, {sr(SRD_W,4)}, s{S_TMP} offen
        s_add_u32 s{S_TMP}, s{S_TMP}, {WP}
        s_add_u32 s{S_J}, s{S_J}, 1
        s_waitcnt vmcnt(0)
        """)
        for r in range(4):
            a(f"""
            v_lshlrev_b32 v{V_XF+4}, 16, v{V_XF+r}
            v_and_b32 v{V_XF+5}, 0xffff0000, v{V_XF+r}
            v_pk_add_f32 {vr(V_WF+2*r,2)}, {vr(V_WF+2*r,2)}, {vr(V_XF+4,2)}
            """)
        a(f"""
        s_cmp_lt_u32 s{S_J}, 128
        s_cbranch_scc1 {P}_slow2
        s_lshl_b32 s{S_TMP}, s{S_WAVE}, 10
        s_add_u32 s{S_TMP}, s{S_TMP}, {G1_CSP}
        v_lshl_add_u32 v{T}, v{T}, 5, s{S_TMP}
        ds_write_b128 v{T}, {vr(V_WF)}
        ds_write_b128 v{T}, {vr(V_WF+4)} offset:16
        v_mov_b32 v{T}, {G1_VERD}
        v_mov_b32 v{T+1}, 0
        ds_write_b32 v{T}, v{T+1}
        s_waitcnt lgkmcnt(0)
        s_barrier
        s_branch {P}_red
        """)
        a.label(P + "_fast")
    if "nowarm2" not in OPTS:
        a(f"""
        s_mov_b32 s{SRD_XA}, s{S_WOP}
        s_mov_b32 s{SRD_XA+1}, s{S_WOP+1}
        s_mov_b32 s{SRD_XA+2}, {1024*2048}
        s_mov_b32 s{SRD_W}, s{S_W2P}
        s_mov_b32 s{SRD_W+1}, s{S_W2P+1}
        s_mov_b32 s{SRD_W+2}, {3584*2048}
        s_lshl_b32 s{S_TMP}, s{S_GW}, 2
        buffer_load_dwordx4 {vr(V_HF)}, v{V_L16}, {sr(SRD_XA,4)}, s{S_GW} offen
        """)
        for i in range(4):
            a(f"buffer_load_dwordx4 {vr(V_HF)}, v{V_L16}, {sr(SRD_W,4)}, s{S_TMP} offen offset:{i*1024}")
    if "slabwarm" in OPTS:
        a(f"""
        s_add_u32 s{SRD_WW}, s{S_WS}, {64 << 20}
        s_addc_u32 s{SRD_WW+1}, s{S_WS+1}, 0
        s_and_b32 s{SRD_WW+1}, s{SRD_WW+1}, 0xffff
        s_mov_b32 s{SRD_WW+2}, {16 << 20}
        s_and_b32 s{S_TMP}, s2, 3
        s_lshr_b32 s{S_TMP2}, s{S_WAVE}, 1
        s_cmp_eq_u32 s{S_TMP}, s{S_TMP2}
        s_cselect_b32 s{SRD_WW+2}, 0, s{SRD_WW+2}
        s_lshl_b32 s{S_TMP}, s{S_GW}, 3
        s_add_u32 s{S_TMP2}, s{S_TMP}, 4096
        """)
        for i in range(8):
            a(f"buffer_load_dwordx4 {vr(V_WD)}, v{V_L16}, {sr(SRD_WW,4)}, s{S_TMP if i < 4 else S_TMP2} offen offset:{(i%4)*1024}")
    stamp_now(a, 35)
    for i in range(4):
        a(f"""
        s_lshl_b32 s{S_TMP}, s{S_MW}, 6
        s_lshl_b32 s{S_TMP2}, s{S_NW}, 5
        s_xor_b32 s{S_TMP2}, s{S_TMP2}, {16*i}
        s_add_u32 s{S_TMP}, s{S_TMP}, s{S_TMP2}
        s_add_u32 s{S_TB+i}, s{S_TMP}, {128*G}
        """)
    V_ST = V_XF; V_CSV = V_WF
    if FUSE:
        for i in range(4):
            a(f"""
            s_add_u32 s{S_TMP}, s{S_TB+i}, {16 + G1_STAT//8}
            v_add_u32 v{T+4}, s{S_TMP}, v{V_TT}
            v_lshlrev_b32 v{T+4}, 3, v{T+4}
            ds_read_b64 {vr(V_ST+2*i,2)}, v{T+4}
            """)
        if halo:
            a(f"""
            v_lshlrev_b32 v{T+4}, 3, v{V_TT}
            v_add_u32 v{T+4}, {G1_STAT}, v{T+4}
            ds_read_b64 {vr(V_ST+8,2)}, v{T+4}
            """)
        for s_ in range(NB):
            a(f"""
            s_lshl_b32 s{S_TMP}, s{S_BLK+s_}, 6
            s_add_u32 s{S_TMP}, s{S_TMP}, {G1_CS}
            v_lshl_add_u32 v{T+4}, v{V_GG}, 4, s{S_TMP}
            ds_read_b128 {vr(V_CSV+4*s_)}, v{T+4}
            """)
        a("s_waitcnt lgkmcnt(0)")
    def fixup(ab, s, st, o, relu):
        c = V_CSV + 4 * s
        if FUSE:
            a(f"""
            v_pk_fma_f32 {vr(ab,2)}, {vr(c,2)}, {vr(st,2)}, {vr(ab,2)} op_sel_hi:[1,0,1] neg_lo:[0,1,0] neg_hi:[0,1,0]
            v_pk_fma_f32 {vr(ab+2,2)}, {vr(c+2,2)}, {vr(st,2)}, {vr(ab+2,2)} op_sel_hi:[1,0,1] neg_lo:[0,1,0] neg_hi:[0,1,0]
            v_pk_mul_f32 {vr(ab,2)}, {vr(ab,2)}, {vr(st,2)} op_sel:[0,1] op_sel_hi:[1,1]
            v_pk_mul_f32 {vr(ab+2,2)}, {vr(ab+2,2)}, {vr(st,2)} op_sel:[0,1] op_sel_hi:[1,1]
            """)
        a(f"""
        v_cvt_pk_bf16_f32 v{o}, v{ab}, v{ab+1}
        v_cvt_pk_bf16_f32 v{o+1}, v{ab+2}, v{ab+3}
        """)
        if relu:
            a(f"""
            v_pk_max_i16 v{o}, v{o}, 0
            v_pk_max_i16 v{o+1}, v{o+1}, 0
            """)
    V_SIG = T + 8
    a(f"""
    v_and_b32 v{T}, 1, v{V_GG}
    v_lshrrev_b32 v{T+1}, 1, v{V_GG}
    v_lshl_or_b32 v{V_SIG}, v{T}, 1, v{T+1}
    """)
    if not qkv:
        V_PA = T + 9; V_SA = T + 10
        a(f"""
        v_lshl_add_u32 v{V_PA}, v{V_SIG}, 4, v{V_TT}
        v_lshlrev_b32 v{V_PA}, 4, v{V_PA}            ; (sigma*16 + t)*16
        s_lshl_b32 s{S_TMP}, s{S_NW}, 1
        v_add_u32 v{T+1}, s{S_TMP}, v{T+1}
        v_lshl_add_u32 v{V_SA}, v{T+1}, 4, v{V_TT}
        v_lshlrev_b32 v{V_SA}, 4, v{V_SA}
        v_lshl_add_u32 v{V_SA}, v{T}, 3, v{V_SA}
        """)
        for i in range(4):
            a(f"""
            s_lshr_b32 s{S_TMP}, s{S_TB+i}, 4
            s_lshl_b32 s{S_TMP2}, s{S_MT}, 4
            s_add_u32 s{S_TMP}, s{S_TMP}, s{S_TMP2}
            s_mul_i32 s{S_TB+i}, s{S_TMP}, {MBLK_PITCH}
            """)
        a(f"""
        s_mul_i32 s{S_TMP2}, s{S_JT}, 7
        s_add_u32 s{S_TMP2}, s{S_TMP2}, 32
        """)
        for ps in range(4):
            a(f"""
            s_lshr_b32 s{S_TMP}, s{S_BLK+2*ps}, 1
            s_add_u32 s{S_TMP}, s{S_TMP}, s{S_TMP2}
            s_lshl_b32 s{S_PO+ps}, s{S_TMP}, 10
            """)
        ob = [V_XF + 16, V_XF + 20, V_XF + 24, V_XF + 28]
        n = 0
        for i in range(4):
            st = V_ST + 2 * i
            for ps in range(3):
                o = ob[n % 4]; n += 1
                fixup(acc(2*ps, i), 2*ps, st, o, True)
                fixup(acc(2*ps+1, i), 2*ps+1, st, o+2, True)
                a(f"""
                s_add_u32 s{S_TMP}, s{S_TB+i}, s{S_PO+ps}
                s_nop 0
                v_permlane16_swap_b32 v{o}, v{o+2}
                v_permlane16_swap_b32 v{o+1}, v{o+3}
                s_nop 1
                buffer_store_dwordx4 {vr(o)}, v{V_PA}, {sr(SRD_O,4)}, s{S_TMP} offen {STH}
                """)
            o = ob[n % 4]; n += 1
            fixup(acc(6, i), 6, st, o, True)
            a(f"""
            s_add_u32 s{S_TMP}, s{S_TB+i}, s{S_PO+3}
            s_nop 1
            buffer_store_dwordx2 {vr(o,2)}, v{V_SA}, {sr(SRD_O,4)}, s{S_TMP} offen {STH}
            """)
        stamp_now(a, 36); stamp_now(a, 51, True)
        stamp_dump(a, S_WS, S_WAVE, 32 << 20)
        a("s_endpgm")
        return
    V_WA = T + 9
    a(f"""
    v_mul_u32_u24 v{V_WA}, {AT_PITCH}, v{V_TT}
    v_lshl_add_u32 v{V_WA}, v{V_GG}, 3, v{V_WA}      ; t*P + g*8
    """)
    ob = [V_XF + 16, V_XF + 18, V_XF + 20, V_XF + 22, V_XF + 24, V_XF + 26, V_XF + 28, V_XF + 30]
    n = 0
    for i in range(4):
        a(f"""
        s_add_u32 s{S_TMP}, s{S_TB+i}, 16
        s_mul_i32 s{S_TMP3}, s{S_TMP}, {AT_PITCH}
        """)
        for s in range(6):
            o = ob[n % 8]; n += 1
            fixup(acc(s, i), s, V_ST + 2 * i, o, False)
            a(f"""
            s_lshl_b32 s{S_TMP}, s{S_BLK+s}, 5
            s_add_u32 s{S_TMP}, s{S_TMP}, s{S_TMP3}
            v_add_u32 v{T}, s{S_TMP}, v{V_WA}
            ds_write_b64 v{T}, {vr(o,2)}
            """)
            if "slowepi" in OPTS: a("s_waitcnt lgkmcnt(0)")
    if halo:
        for s in range(2):
            o = ob[n % 8]; n += 1
            fixup(V_HACC + 4 * s, s, V_ST + 8, o, False)
            a(f"""
            s_lshl_b32 s{S_TMP}, s{S_BLK+s}, 5
            v_add_u32 v{T}, s{S_TMP}, v{V_WA}
            ds_write_b64 v{T}, {vr(o,2)}
            """)
    a(f"""
    s_waitcnt lgkmcnt(0)
    s_barrier
    """)
    stamp_now(a, 36)
    a("s_branch g1_attn")

def g1_attn(a):
    T = V_T
    V_SIG = T + 8
    a.label("g1_attn")
    VQ = 0; VK = 1; VV = 3
    VE = 5; VO = 6
    R = 8
    a(f"""
    s_lshl_b32 s{S_TMP}, s{S_WAVE}, 5                ; 32 w
    v_lshlrev_b32 v{T}, 1, v{V_TT}                   ; 2n
    v_add_u32 v{T+1}, s{S_TMP}, v{T}                 ; 32w + 2n
    v_add_u32 v{T+2}, 16, v{T+1}
    v_mul_u32_u24 v{T+2}, {AT_PITCH}, v{T+2}
    v_lshl_add_u32 v{VQ}, v{V_GG}, 4, v{T+2}         ; + g*16
    v_add_u32 v{VK+1}, 64, v{VQ}
    v_add_u32 v{T+2}, -16, v{T+1}                    ; rho_k(kb=0)
    v_max_i32 v{T+2}, 0, v{T+2}
    v_mul_u32_u24 v{T+2}, {AT_PITCH}, v{T+2}
    v_lshl_add_u32 v{T+2}, v{V_GG}, 4, v{T+2}
    v_add_u32 v{VK}, 64, v{T+2}
    v_lshrrev_b32 v{T}, 2, v{V_TT}
    v_lshl_add_u32 v{T}, v{V_GG}, 2, v{T}            ; a
    v_lshlrev_b32 v{T}, 1, v{T}
    v_add_u32 v{T}, s{S_TMP}, v{T}                   ; 32w + 2a
    v_and_b32 v{T+3}, 3, v{V_LANE}
    v_lshlrev_b32 v{T+3}, 3, v{T+3}
    v_add_u32 v{T+3}, 128, v{T+3}                    ; v part + c*8
    v_add_u32 v{T+2}, 16, v{T}
    v_mul_u32_u24 v{T+2}, {AT_PITCH}, v{T+2}
    v_add_u32 v{VV+1}, v{T+2}, v{T+3}
    v_add_u32 v{T+2}, -16, v{T}
    v_max_i32 v{T+2}, 0, v{T+2}
    v_mul_u32_u24 v{T+2}, {AT_PITCH}, v{T+2}
    v_add_u32 v{VV}, v{T+2}, v{T+3}
    v_lshlrev_b32 v{T}, 2, v{V_GG}
    v_sub_u32 v{VE}, v{V_TT}, v{T}
    """)
    for kb in range(2):
        for i in range(4):
            a(f"""
            v_add_u32 v{T}, {(16*(1-kb) - i)}, v{VE}
            v_cmp_ge_u32 {sr(S_MASK + 2*(4*kb+i))}, 7, v{T}
            """)
    a(f"""
    s_or_b32 s{S_TMP}, s{S_MT}, s{S_WAVE}
    s_cmp_eq_u32 s{S_TMP}, 0
    s_cbranch_scc0 g1_attn_m
    """)
    for i in range(4):
        a(f"s_mov_b64 {sr(S_MASK + 2*i)}, 0")
    a.label("g1_attn_m")
    a(f"""
    v_and_b32 v{T}, 7, v{V_TT}
    v_lshlrev_b32 v{T}, 1, v{T}
    v_lshl_add_u32 v{T}, v{V_SIG}, 4, v{T}
    v_lshlrev_b32 v{T}, 4, v{T}
    v_lshrrev_b32 v{T+1}, 3, v{V_TT}
    s_mov_b32 s{S_TMP}, {MBLK_PITCH}
    v_mul_lo_u32 v{T+1}, v{T+1}, s{S_TMP}
    v_add_u32 v{VO}, v{T}, v{T+1}
    s_lshl_b32 s{S_TMP}, s{S_MT}, 4
    s_lshl_b32 s{S_TMP2}, s{S_WAVE}, 1
    s_add_u32 s{S_TMP}, s{S_TMP}, s{S_TMP2}
    s_mul_i32 s{S_TMP}, s{S_TMP}, {MBLK_PITCH}
    s_lshl_b32 s{S_TMP2}, s{S_JT}, 11
    s_add_u32 s{S_TMP3}, s{S_TMP}, s{S_TMP2}
    v_mov_b32 v{T+10}, 0xff800000                    ; -inf
    v_mov_b32 v{T+4}, 0x3e3504f3
    v_mov_b32 v{T+5}, 0x3e3504f3
    v_mov_b32 v{T+6}, 0x3fb8aa3b
    v_mov_b32 v{T+7}, 0x3fb8aa3b
    """)
    NEG = T + 10; CSC = T + 4; CL2 = T + 6
    units = [(hh, p) for hh in range(2) for p in range(2)]
    UR = 32
    for u, (hh, p) in enumerate(units):
        b = R + u * UR
        off = p * AT_PITCH + hh * 192
        a(f"""
        ds_read_b128 {vr(b)}, v{VQ} offset:{off}
        ds_read_b128 {vr(b+4)}, v{VK} offset:{off}
        ds_read_b128 {vr(b+8)}, v{VK+1} offset:{off}
        """)
        for db in range(2):
            for kb in range(2):
                a(f"ds_read_b64_tr_b16 {vr(b+12+4*db+2*kb,2)}, v{VV+kb} offset:{off+32*db}")
    a("s_waitcnt lgkmcnt(0)")
    for u in range(4):
        b = R + u * UR
        a(f"""
        v_mfma_f32_16x16x32_bf16 {vr(b+20)}, {vr(b+4)}, {vr(b)}, 0
        v_mfma_f32_16x16x32_bf16 {vr(b+24)}, {vr(b+8)}, {vr(b)}, 0
        """)
    a("s_nop 7")
    for u, (hh, p) in enumerate(units):
        b = R + u * UR
        z = b + 20
        t0 = b + 28; t1 = b + 29
        for i in range(0, 8, 2):
            a(f"""
            v_cvt_pk_bf16_f32 v{t0}, v{z+i}, v{z+i+1}
            v_lshlrev_b32 v{z+i}, 16, v{t0}
            v_and_b32 v{z+i+1}, 0xffff0000, v{t0}
            v_pk_mul_f32 {vr(z+i,2)}, {vr(z+i,2)}, {vr(CSC,2)}
            v_cvt_pk_bf16_f32 v{t0}, v{z+i}, v{z+i+1}
            v_lshlrev_b32 v{z+i}, 16, v{t0}
            v_and_b32 v{z+i+1}, 0xffff0000, v{t0}
            v_cndmask_b32 v{z+i}, v{NEG}, v{z+i}, {sr(S_MASK+2*i)}
            v_cndmask_b32 v{z+i+1}, v{NEG}, v{z+i+1}, {sr(S_MASK+2*i+2)}
            """)
        a(f"""
        v_max3_f32 v{t0}, v{z}, v{z+1}, v{z+2}
        v_max3_f32 v{t0}, v{t0}, v{z+3}, v{z+4}
        v_max3_f32 v{t0}, v{t0}, v{z+5}, v{z+6}
        v_max_f32 v{t0}, v{t0}, v{z+7}
        """)
        xlane_max(a, t0, t1)
        for i in range(0, 8, 2):
            a(f"""
            v_pk_add_f32 {vr(z+i,2)}, {vr(z+i,2)}, {vr(t0,2)} op_sel_hi:[1,0] neg_lo:[0,1] neg_hi:[0,1]
            v_pk_mul_f32 {vr(z+i,2)}, {vr(z+i,2)}, {vr(CL2,2)}
            """)
        for i in range(8):
            a(f"v_exp_f32 v{z+i}, v{z+i}")
        a(f"""
        s_nop 0
        v_pk_add_f32 {vr(t0,2)}, {vr(z,2)}, {vr(z+2,2)}
        v_pk_add_f32 {vr(t0+2,2)}, {vr(z+4,2)}, {vr(z+6,2)}
        v_pk_add_f32 {vr(t0,2)}, {vr(t0,2)}, {vr(t0+2,2)}
        v_add_f32 v{t0}, v{t0}, v{t1}
        """)
        xlane_sum(a, t0, t1)
        a(f"""
        v_rcp_f32 v{t0}, v{t0}
        s_nop 0
        """)
        for i in range(0, 8, 2):
            a(f"v_pk_mul_f32 {vr(z+i,2)}, {vr(z+i,2)}, {vr(t0,2)} op_sel_hi:[1,0]")
        for i in range(4):
            a(f"v_cvt_pk_bf16_f32 v{b+i}, v{z+2*i}, v{z+2*i+1}")
        a(f"""
        s_nop 1
        v_mfma_f32_16x16x32_bf16 {vr(b+4)}, {vr(b+12)}, {vr(b)}, 0
        v_mfma_f32_16x16x32_bf16 {vr(b+8)}, {vr(b+16)}, {vr(b)}, 0
        """)
    a("s_nop 7")
    for u, (hh, p) in enumerate(units):
        b = R + u * UR
        o = b + 20
        a(f"""
        v_cvt_pk_bf16_f32 v{o}, v{b+4}, v{b+5}
        v_cvt_pk_bf16_f32 v{o+1}, v{b+6}, v{b+7}
        v_cvt_pk_bf16_f32 v{o+2}, v{b+8}, v{b+9}
        v_cvt_pk_bf16_f32 v{o+3}, v{b+10}, v{b+11}
        s_nop 1
        v_permlane16_swap_b32 v{o}, v{o+2}
        v_permlane16_swap_b32 v{o+1}, v{o+3}
        s_nop 1
        buffer_store_dwordx4 {vr(o)}, v{VO}, {sr(SRD_O,4)}, s{S_TMP3} offen offset:{p*16 + hh*1024} {STF}
        """)
    stamp_now(a, 37); stamp_now(a, 51, True)
    stamp_dump(a, S_WS, S_WAVE, 32 << 20)
    a("s_endpgm")

def gen_g1(a):
    a.raw("""
.globl g1_kernel
.p2align 8
.type g1_kernel,@function
g1_kernel:""")
    a(f"""
    s_cmp_ge_u32 s2, 256
    s_cbranch_scc1 g1_exit
    s_load_dwordx4 s[{S_X}:{S_X+3}], s[0:1], 0     ; x, wqkv
    s_load_dwordx2 s[{S_W1}:{S_W1+1}], s[0:1], 32
    s_load_dwordx2 s[{S_WS}:{S_WS+1}], s[0:1], 64
    s_load_dwordx2 s[{S_WOP}:{S_WOP+1}], s[0:1], 16
    s_load_dwordx2 s[{S_DBGP}:{S_DBGP+1}], s[0:1], 56
    s_load_dwordx2 s[{S_W2P}:{S_W2P+1}], s[0:1], 40
    v_and_b32 v{V_LANE}, 63, v0
    v_lshrrev_b32 v{V_T}, 6, v0
    v_and_b32 v{V_TT}, 15, v0
    v_readfirstlane_b32 s{S_WAVE}, v{V_T}
    v_bfe_u32 v{V_GG}, v0, 4, 2
    s_nop 2
    s_cmp_lg_u32 s{S_WAVE}, 7
    s_cbranch_scc1 g1_nopf
    """)
    if "nocodepf" not in OPTS:
        code_prefetch(a, V_T + 2, V_LANE, S_PC1, "g1_kernel", "g1_end", 24576, 255)
    a.label("g1_nopf")
    a(f"""
    s_and_b32 s{S_TMP}, s2, 7                 ; xcd
    s_lshr_b32 s{S_TMP2}, s2, 3               ; idx
    s_and_b32 s{S_MT}, s{S_TMP}, 1
    s_lshl_b32 s{S_MT}, s{S_MT}, 2
    s_and_b32 s{S_TMP3}, s{S_TMP2}, 3
    s_add_u32 s{S_MT}, s{S_MT}, s{S_TMP3}     ; mt
    s_lshr_b32 s{S_TMP2}, s{S_TMP2}, 2        ; i8
    s_lshr_b32 s{S_TMP}, s{S_TMP}, 1          ; ng
    s_lshl_b32 s{S_JT}, s{S_TMP}, 2
    s_and_b32 s{S_TMP3}, s{S_TMP2}, 3
    s_add_u32 s{S_JT}, s{S_JT}, s{S_TMP3}     ; jt
    s_lshr_b32 s{S_TMP2}, s{S_TMP2}, 2        ; type
    s_and_b32 s{S_WQ}, s{S_WAVE}, 3
    s_and_b32 s{S_NW}, s{S_WAVE}, 1
    s_bfe_u32 s{S_MW}, s{S_WAVE}, 0x10001
    s_lshr_b32 s{S_TMP3}, s{S_WAVE}, 2        ; G
    s_waitcnt lgkmcnt(0)
    s_add_u32 s{SRD_X}, s{S_X if FUSE else S_WS}, {0 if FUSE else XN_OFF}
    s_addc_u32 s{SRD_X+1}, s{(S_X if FUSE else S_WS)+1}, 0
    s_and_b32 s{SRD_X+1}, s{SRD_X+1}, 0xffff
    s_mov_b32 s{SRD_X+2}, {2048*2048}
    s_mov_b32 s{SRD_X+3}, 0x20000
    s_mov_b32 s{SRD_XA}, s{SRD_X}
    s_mov_b32 s{SRD_XA+1}, s{SRD_X+1}
    s_mov_b32 s{SRD_XA+2}, {2048*2048}
    s_mov_b32 s{SRD_XA+3}, 0x20000
    s_mov_b32 s{SRD_O}, s{S_WS}
    s_and_b32 s{SRD_O+1}, s{S_WS+1}, 0xffff
    s_mov_b32 s{SRD_O+2}, {A2_BYTES}
    s_mov_b32 s{SRD_O+3}, 0x20000
    s_lshl_b32 s{S_TMP2}, s{S_TMP2}, 1
    s_add_u32 s{S_TMP2}, s{S_TMP2}, s{S_TMP3}
    """)
    if FUSE:
        a(f"""
        s_cmp_lg_u32 s2, 255
        s_cbranch_scc1 g1_noz
        s_add_u32 s64, s{S_WS}, {30 << 20}
        s_addc_u32 s65, s{S_WS+1}, 0
        s_and_b32 s65, s65, 0xffff
        s_mov_b32 s66, 8192
        s_mov_b32 s67, 0x20000
        v_lshlrev_b32 v{V_T}, 4, v0
        v_mov_b32 v4, 0
        v_mov_b32 v5, 0
        v_mov_b32 v6, 0
        v_mov_b32 v7, 0
        buffer_store_dwordx4 v[4:7], v{V_T}, s[64:67], 0 offen
        """)
        a.label("g1_noz")
    a(f"""
    s_cmp_eq_u32 s{S_TMP2}, 0
    s_cbranch_scc1 g1_00
    s_cmp_eq_u32 s{S_TMP2}, 1
    s_cbranch_scc1 g1_01
    s_cmp_eq_u32 s{S_TMP2}, 2
    s_cbranch_scc1 g1_10
    s_branch g1_11
    """)
    a.label("g1_exit")
    a("s_endpgm")
    for typ in range(2):
        for G in range(2):
            g1_path(a, typ, G)
    g1_attn(a)
    a.label("g1_end")
    a("s_endpgm")

def gen_k0(a):
    a.raw("""
.globl k0_kernel
.p2align 8
.type k0_kernel,@function
k0_kernel:""")
    DPP = "row_mask:0xf bank_mask:0xf"
    def reduce64(v, t):
        a(f"""
        s_nop 1
        v_add_f32_dpp v{t}, v{v}, v{v} quad_perm:[1,0,3,2] {DPP}
        s_nop 1
        v_add_f32_dpp v{v}, v{t}, v{t} quad_perm:[2,3,0,1] {DPP}
        s_nop 1
        v_add_f32_dpp v{t}, v{v}, v{v} row_half_mirror {DPP}
        s_nop 1
        v_add_f32_dpp v{v}, v{t}, v{t} row_mirror {DPP}
        """)
        xlane_sum(a, v, t)
    a(f"""
    s_cmp_ge_u32 s2, 256
    s_cbranch_scc1 k0_exit
    s_load_dwordx4 s[4:7], s[0:1], 0          ; x, wqkv
    s_load_dwordx2 s[8:9], s[0:1], 32         ; w1
    s_load_dwordx2 s[10:11], s[0:1], 64       ; ws
    v_lshrrev_b32 v1, 6, v0
    v_and_b32 v0, 63, v0
    v_lshlrev_b32 v2, 4, v0                   ; lane*16
    v_readfirstlane_b32 s3, v1
    s_lshl_b32 s28, s2, 3
    s_nop 2
    s_add_u32 s28, s28, s3
    s_lshl_b32 s29, s28, 11
    s_waitcnt lgkmcnt(0)
    s_mov_b32 s12, s4
    s_and_b32 s13, s5, 0xffff
    s_mov_b32 s14, {2048*2048}
    s_mov_b32 s15, 0x20000
    buffer_load_dwordx4 v[4:7], v2, s[12:15], s29 offen
    buffer_load_dwordx4 v[8:11], v2, s[12:15], s29 offen offset:1024
    s_mov_b32 s16, s6
    s_and_b32 s17, s7, 0xffff
    s_mov_b32 s18, {1024*6144}
    s_mov_b32 s19, 0x20000
    s_mov_b32 s20, s8
    s_and_b32 s21, s9, 0xffff
    s_mov_b32 s22, {1024*7168}
    s_mov_b32 s23, 0x20000
    s_add_u32 s24, s10, {XN_OFF}
    s_addc_u32 s25, s11, 0
    s_and_b32 s25, s25, 0xffff
    s_mov_b32 s26, {2048*2048}
    s_mov_b32 s27, 0x20000
    s_cmp_lg_u32 s2, 0
    s_cbranch_scc1 k0_noz
    s_add_u32 s32, s10, {30 << 20}
    s_addc_u32 s33, s11, 0
    s_and_b32 s33, s33, 0xffff
    s_mov_b32 s34, 8192
    s_mov_b32 s35, 0x20000
    s_lshl_b32 s30, s3, 10
    v_mov_b32 v60, 0
    v_mov_b32 v61, 0
    v_mov_b32 v62, 0
    v_mov_b32 v63, 0
    buffer_store_dwordx4 v[60:63], v2, s[32:35], s30 offen
    s_waitcnt vmcnt(0)
k0_noz:
    s_mul_i32 s30, s28, 3072
    s_lshl_b32 s31, s28, 12
    """)
    nw = 0
    if "nowarm1" not in OPTS:
        a(f"""
        s_mov_b32 s18, {256*6144}
        s_mov_b32 s22, {256*7168}
        s_lshl_b32 s30, s28, 10
        buffer_load_dwordx4 v[32:35], v2, s[16:19], s30 offen
        buffer_load_dwordx4 v[36:39], v2, s[20:23], s30 offen
        """)
        nw = 2
    a(f"s_waitcnt vmcnt({nw})")
    for r in range(8):
        a(f"""
        v_lshlrev_b32 v{12+2*r}, 16, v{4+r}
        v_and_b32 v{13+2*r}, 0xffff0000, v{4+r}
        """)
    a("v_add_f32 v28, v12, v13")
    for r in range(14, 28):
        a(f"v_add_f32 v28, v28, v{r}")
    reduce64(28, 29)
    a("v_mul_f32 v28, 0x3a800000, v28")
    a("""
    v_sub_f32 v30, v12, v28
    v_mul_f32 v31, v30, v30
    """)
    for r in range(13, 28):
        a(f"""
        v_sub_f32 v30, v{r}, v28
        v_fmac_f32 v31, v30, v30
        """)
    reduce64(31, 29)
    a(f"""
    v_mul_f32 v31, 0x3a800000, v31            ; var
    v_cvt_pk_bf16_f32 v29, v28, v31
    v_lshlrev_b32 v28, 16, v29                ; m_b
    v_and_b32 v31, 0xffff0000, v29            ; v_b
    v_add_f32 v31, 0x3727c5ac, v31
    v_cvt_pk_bf16_f32 v31, v31, v31
    v_and_b32 v31, 0xffff0000, v31
    v_sqrt_f32 v31, v31
    s_nop 0
    v_cvt_pk_bf16_f32 v31, v31, v31
    v_and_b32 v31, 0xffff0000, v31
    v_rcp_f32 v31, v31
    s_nop 0
    """)
    for r in range(8):
        a(f"""
        v_sub_f32 v{12+2*r}, v{12+2*r}, v28
        v_sub_f32 v{13+2*r}, v{13+2*r}, v28
        v_cvt_pk_bf16_f32 v29, v{12+2*r}, v{13+2*r}
        v_lshlrev_b32 v{12+2*r}, 16, v29
        v_and_b32 v{13+2*r}, 0xffff0000, v29
        v_mul_f32 v{12+2*r}, v{12+2*r}, v31
        v_mul_f32 v{13+2*r}, v{13+2*r}, v31
        v_cvt_pk_bf16_f32 v{4+r}, v{12+2*r}, v{13+2*r}
        """)
    a("""
    buffer_store_dwordx4 v[4:7], v2, s[24:27], s29 offen
    buffer_store_dwordx4 v[8:11], v2, s[24:27], s29 offen offset:1024
    """)
    a.label("k0_exit")
    a("s_endpgm")

G2_NB = 6
G2_LDS = G2_NB * 16384
def code_prefetch(a, vtmp, vlane, stmp, start_label, end_label, nbytes, vdst):
    a(f"""
    s_getpc_b64 {sr(stmp)}
    """)
    a.label(start_label + "_pc")
    a(f"""
    s_add_u32 s{stmp}, s{stmp}, {start_label}-{start_label}_pc
    s_addc_u32 s{stmp+1}, s{stmp+1}, -1
    v_lshlrev_b32 v{vtmp}, 7, v{vlane}
    """)
    for i in range((nbytes + 8191) // 8192):
        if i: a(f"v_add_u32 v{vtmp}, 0x2000, v{vtmp}")
        a(f"""
        v_min_u32 v{vtmp+1}, {end_label}-{start_label}-4, v{vtmp}
        global_load_dword v{vdst}, v{vtmp+1}, {sr(stmp)}
        """)

def gen_g2(a):
    NBUF = G2_NB; D = NBUF - 1
    NTB = "nt " if "g2ntB" in OPTS else ""
    SRD_A = 12; SRD_B = 16; SRD_XX = 20; SRD_OUT = 24
    S_WO = 4; S_W2 = 6; S_XP = 8; S_OUTP = 10; S_WSP = 28
    S_WV = 30; S_GK = 31; S_MW2 = 32; S_MT2 = 33; S_NT = 34; S_TRIP = 35
    S_KAA = 36; S_KBB = 37; S_MB0 = 38; S_T = 39; S_T2 = 40; S_T3 = 41; S_PC = 42; S_P = 44; S_KA0 = 45; S_WOL = 46; S_WOH = 47; S_SZ = 48; S_CNT = 49
    V_AB = 0
    V_W = V_AB + NBUF * 16
    V_AC = V_W + 64
    V_XR = V_AC + 32
    V_AA = V_XR + 8
    V_DBB = V_AA + 2
    V_RBB = V_DBB + 2
    T = V_RBB + 8
    VL = T + 14; VT = T + 15; VG = T + 16
    global G2_VGPRS
    G2_VGPRS = 256 if STAMP else VG + 2
    def ab(u, tb, kk): return V_AB + u * 16 + (tb * 2 + kk) * 4
    def w(par, s, kk): return V_W + par * 32 + (s * 2 + kk) * 4
    def ac(s, tb): return V_AC + (s * 2 + tb) * 4
    a.raw("""
.globl g2_kernel
.p2align 8
.type g2_kernel,@function
g2_kernel:""")
    a(f"""
    s_cmp_ge_u32 s2, 256
    s_cbranch_scc1 g2_exit
    s_load_dwordx2 s[{S_XP}:{S_XP+1}], s[0:1], 0
    s_load_dwordx2 s[{S_WO}:{S_WO+1}], s[0:1], 16
    s_load_dwordx2 s[{S_W2}:{S_W2+1}], s[0:1], 40
    s_load_dwordx2 s[{S_OUTP}:{S_OUTP+1}], s[0:1], 48
    s_load_dwordx2 s[{S_WSP}:{S_WSP+1}], s[0:1], 64
    v_and_b32 v{VL}, 63, v0
    v_lshrrev_b32 v{T}, 6, v0
    v_and_b32 v{VT}, 15, v0
    v_readfirstlane_b32 s{S_WV}, v{T}
    v_bfe_u32 v{VG}, v0, 4, 2
    """)
    if STAMP: a(f"v_mov_b32 v{V_STAMP}, 0")
    stamp_now(a, 32); stamp_now(a, 50, True)
    npf = 0
    if "nocodepf" not in OPTS:
        code_prefetch(a, T + 12, VL, S_PC, "g2_kernel", "g2_exit", 4096, VG + 1); npf = 1
    a(f"""
    s_and_b32 s{S_T}, s2, 7
    s_lshr_b32 s{S_T2}, s2, 3
    s_lshr_b32 s{S_MT2}, s{S_T}, 1
    s_lshl_b32 s{S_MT2}, s{S_MT2}, 2
    s_and_b32 s{S_T3}, s{S_T2}, 3
    s_add_u32 s{S_MT2}, s{S_MT2}, s{S_T3}     ; mt 0..15
    s_and_b32 s{S_NT}, s{S_T}, 1
    s_lshl_b32 s{S_NT}, s{S_NT}, 3
    s_lshr_b32 s{S_T2}, s{S_T2}, 2
    s_add_u32 s{S_NT}, s{S_NT}, s{S_T2}       ; nt 0..15
    s_lshr_b32 s{S_GK}, s{S_WV}, 2
    s_and_b32 s{S_MW2}, s{S_WV}, 3
    ; A voffsets
    s_lshl_b32 s{S_T}, s{S_MT2}, 3
    s_lshl_b32 s{S_T2}, s{S_MW2}, 1
    s_add_u32 s{S_T}, s{S_T}, s{S_T2}         ; mblk0
    s_mul_i32 s{S_T}, s{S_T}, {MBLK_PITCH}
    v_lshl_add_u32 v{V_AA}, v{VL}, 4, s{S_T}
    v_add_u32 v{V_AA+1}, {MBLK_PITCH}, v{V_AA}
    s_lshl_b32 s{S_KAA}, s{S_GK}, 11          ; K-step * 2048
    v_lshrrev_b32 v{T}, 3, v{VL}
    s_lshl_b32 s{S_T}, s{S_WV}, 4
    v_add_u32 v{T+1}, s{S_T}, v{T}            ; row (e=0)
    v_lshlrev_b32 v{T+1}, 11, v{T+1}
    s_lshl_b32 s{S_T}, s{S_NT}, 7
    v_add_u32 v{T+1}, s{S_T}, v{T+1}
    v_and_b32 v{T+2}, 1, v{VL}
    v_lshl_add_u32 v{T+1}, v{T+2}, 4, v{T+1}  ; + (c'&1)*16
    v_bfe_u32 v{T+2}, v{VL}, 1, 2             ; unit'
    v_bfe_u32 v{T+3}, v{VL}, 4, 1             ; bit1(l>>3)
    v_xor_b32 v{T+2}, v{T+2}, v{T+3}
    v_lshl_add_u32 v{V_DBB}, v{T+2}, 5, v{T+1}
    v_xor_b32 v{T+2}, 2, v{T+2}
    v_lshl_add_u32 v{V_DBB+1}, v{T+2}, 5, v{T+1}
    v_add_u32 v{V_DBB+1}, {8*2048}, v{V_DBB+1}
    s_lshl_b32 s{S_MB0}, s{S_WV}, 11
    s_mov_b32 s{S_KBB}, 0
    s_waitcnt lgkmcnt(0)
    s_mov_b32 s{SRD_A}, s{S_WSP}
    s_and_b32 s{SRD_A+1}, s{S_WSP+1}, 0xffff
    s_mov_b32 s{SRD_A+2}, {A2_BYTES}
    s_mov_b32 s{SRD_A+3}, 0x20000
    s_mov_b32 s{SRD_B}, s{S_WO}
    s_and_b32 s{SRD_B+1}, s{S_WO+1}, 0xffff
    s_mov_b32 s{SRD_B+2}, {1024*2048}
    s_mov_b32 s{SRD_B+3}, 0x20000
    """)
    def prefetch(u):
        for e in range(2):
            if "g2noB" in OPTS:
                a(f"buffer_load_dword v{T+12}, off, {sr(SRD_B,4)}, 0")
                continue
            a(f"""
            s_add_u32 m0, s{S_MB0}, {u*16384 + e*1024}
            s_nop 0
            buffer_load_dwordx4 v{V_DBB+e}, {sr(SRD_B,4)}, s{S_KBB} offen {NTB}lds
            """)
        for tb in range(2):
            for kk in range(2):
                if "g2noA" in OPTS:
                    a(f"buffer_load_dword v{T+12}, off, {sr(SRD_B,4)}, 0")
                    continue
                a(f"buffer_load_dwordx4 {vr(ab(u,tb,kk))}, v{V_AA+tb}, {sr(SRD_A,4)}, s{S_KAA} offen offset:{kk*1024}" + (" nt" if "g2ntA" in OPTS else ""))
        advance()
    def advance():
        a(f"""
        s_add_u32 s{S_P}, s{S_P}, 1
        s_cmp_eq_u32 s{S_P}, 36
        s_cselect_b32 s{S_P}, 0, s{S_P}
        s_add_u32 s{S_CNT}, s{S_CNT}, 1
        """)
        setpos()
    def setpos():
        a(f"""
        s_lshl_b32 s{S_KAA}, s{S_P}, 12
        s_add_u32 s{S_KAA}, s{S_KAA}, s{S_KA0}
        s_cmp_lt_u32 s{S_P}, 8
        s_cselect_b32 s{SRD_B}, s{S_WOL}, s{S_W2}
        s_cselect_b32 s{SRD_B+1}, s{S_WOH}, s{S_W2+1}
        s_cselect_b32 s{SRD_B+2}, {1024*2048}, s{S_SZ}
        s_cselect_b32 s{S_T}, 0, 8
        s_sub_u32 s{S_T}, s{S_P}, s{S_T}
        s_lshl_b32 s{S_KBB}, s{S_T}, 18
        s_cmp_ge_u32 s{S_CNT}, 36
        s_cselect_b32 s{SRD_B+2}, 0, s{SRD_B+2}
        s_cselect_b32 s{SRD_A+2}, 0, s{SRD_A+2}
        s_cselect_b32 s{S_MB0}, {G2_LDS}, s{S_MB0}
        """)
    rotmul = (1, 2)
    for o in OPTS:
        if o.startswith("rot="): rotmul = tuple(int(x) for x in o[4:].split(","))
    a(f"""
    s_and_b32 s{S_W2+1}, s{S_W2+1}, 0xffff
    s_mov_b32 s{S_WOL}, s{S_WO}
    s_and_b32 s{S_WOH}, s{S_WO+1}, 0xffff
    s_mov_b32 s{S_SZ}, {3584*2048}
    s_mov_b32 s{S_KA0}, s{S_KAA}
    s_mov_b32 s{S_CNT}, 0
    s_and_b32 s{S_T}, s{S_NT}, 7
    s_mul_i32 s{S_T}, s{S_T}, {rotmul[0]}
    s_and_b32 s{S_T2}, s{S_MT2}, 3
    s_mul_i32 s{S_T2}, s{S_T2}, {rotmul[1]}
    s_add_u32 s{S_P}, s{S_T}, s{S_T2}
    """)
    setpos()
    if "g2tlb" in OPTS:
        a(f"""
        s_lshr_b32 s{S_T}, s2, 3
        s_lshl_b32 s{S_T}, s{S_T}, 3
        s_add_u32 s{S_T}, s{S_T}, s{S_WV}          ; j
        s_lshl_b32 s{S_T2}, s{S_T}, 18             ; j*64 pages*4096
        v_lshl_add_u32 v{T+12}, v{VL}, 12, s{S_T2}
        s_cmp_lt_u32 s{S_T}, 18
        s_cbranch_scc0 g2_tlb1
        s_and_b32 s{S_T3}, s{S_MT2}, 12
        s_mul_i32 s{S_T3}, s{S_T3}, {8*MBLK_PITCH}
        buffer_load_dword v{T+13}, v{T+12}, {sr(SRD_A,4)}, s{S_T3} offen
        s_branch g2_tlb3
        """)
        a.label("g2_tlb1")
        a(f"""
        s_cmp_lt_u32 s{S_T}, 26
        s_cbranch_scc0 g2_tlb2
        v_subrev_u32 v{T+12}, {18<<18}, v{T+12}
        global_load_dword v{T+13}, v{T+12}, s[{S_WO}:{S_WO+1}]
        s_branch g2_tlb3
        """)
        a.label("g2_tlb2")
        a(f"""
        s_cmp_lt_u32 s{S_T}, 54
        s_cbranch_scc0 g2_tlb3
        v_subrev_u32 v{T+12}, {26<<18}, v{T+12}
        global_load_dword v{T+13}, v{T+12}, s[{S_W2}:{S_W2+1}]
        """)
        a.label("g2_tlb3")
    for u in range(D):
        prefetch(u)
    V_XA = T + 4; V_OA = T + 5
    a(f"""
    s_mov_b32 s{SRD_XX}, s{S_XP}
    s_and_b32 s{SRD_XX+1}, s{S_XP+1}, 0xffff
    s_mov_b32 s{SRD_XX+2}, {2048*2048}
    s_mov_b32 s{SRD_XX+3}, 0x20000
    s_mov_b32 s{SRD_OUT}, s{S_OUTP}
    s_and_b32 s{SRD_OUT+1}, s{S_OUTP+1}, 0xffff
    s_mov_b32 s{SRD_OUT+2}, {2048*2048}
    s_mov_b32 s{SRD_OUT+3}, 0x20000
    v_lshrrev_b32 v{T}, 2, v{VT}              ; r
    v_lshl_add_u32 v{T+1}, v{VG}, 3, v{T}
    v_lshlrev_b32 v{T+1}, 7, v{T+1}
    s_lshl_b32 s{S_T}, s{S_GK}, 13
    v_add_u32 v{T+1}, s{S_T}, v{T+1}
    v_and_b32 v{T+2}, 3, v{VL}
    v_lshl_add_u32 v{T+1}, v{T+2}, 3, v{T+1}
    v_and_b32 v{T+2}, 1, v{VG}
    v_lshrrev_b32 v{T+3}, 1, v{T}
    v_lshl_or_b32 v{T+2}, v{T+2}, 1, v{T+3}   ; f
    s_lshl_b32 s{S_T}, s{S_GK}, 1
    v_xor_b32 v{T+2}, s{S_T}, v{T+2}          ; f ^ 2Gk
    """)
    for s in range(4):
        a(f"""
        v_xor_b32 v{T+3}, {s}, v{T+2}
        v_lshl_add_u32 v{V_RBB+s}, v{T+3}, 5, v{T+1}
        v_add_u32 v{V_RBB+4+s}, 0xc000, v{V_RBB+s}
        """)
    a(f"""
    s_lshl_b32 s{S_T}, s{S_MT2}, 7
    s_lshl_b32 s{S_T2}, s{S_MW2}, 5
    s_add_u32 s{S_T}, s{S_T}, s{S_T2}
    v_add_u32 v{T}, s{S_T}, v{VT}
    v_lshlrev_b32 v{T}, 11, v{T}
    s_lshl_b32 s{S_T}, s{S_NT}, 7
    s_lshl_b32 s{S_T2}, s{S_GK}, 6
    s_add_u32 s{S_T}, s{S_T}, s{S_T2}
    v_add_u32 v{T}, s{S_T}, v{T}
    v_lshl_add_u32 v{V_XA}, v{VG}, 3, v{T}    ; + g*8
    v_and_b32 v{T+1}, 1, v{VG}
    v_lshrrev_b32 v{T+2}, 1, v{VG}
    v_lshl_or_b32 v{T+1}, v{T+1}, 1, v{T+2}   ; sigma
    v_lshl_add_u32 v{V_OA}, v{T+1}, 4, v{T}
    """)
    for r in range(V_AC, V_AC + 32):
        a(f"v_mov_b32 v{r}, 0")
    def reads(u, par):
        hi = 4 if u >= 3 else 0
        uo = (u - 3 if u >= 3 else u) * 16384
        for kk in range(2):
            for s in range(4):
                for h in range(2):
                    if "g2nocomp" in OPTS: continue
                    a(f"ds_read_b64_tr_b16 {vr(w(par,s,kk)+2*h,2)}, v{V_RBB+hi+s} offset:{uo + kk*4096 + h*512}")
    a(f"""
    s_mov_b32 s{S_TRIP}, 0
    s_waitcnt vmcnt({4 + 6*(D-1)})
    s_barrier
    """)
    reads(0, 0)
    stamp_now(a, 33)
    def body(u):
        par = u & 1
        a(f"""
        s_waitcnt vmcnt({4 + 6*(D-2)})
        s_barrier
        """)
        prefetch((u + D) % NBUF)
        a("s_waitcnt lgkmcnt(0)")
        reads((u + 1) % NBUF, par ^ 1)
        for kk in range(2):
            for s in range(4):
                for tb in range(2):
                    if "g2nocomp" in OPTS: continue
                    a(f"v_mfma_f32_16x16x32_bf16 {vr(ac(s,tb))}, {vr(w(par,s,kk))}, {vr(ab(u,tb,kk))}, {vr(ac(s,tb))}")
    a.raw(".p2align 6")
    a.label("g2_loop")
    for u in range(NBUF):
        body(u)
    a(f"""
    s_add_u32 s{S_TRIP}, s{S_TRIP}, 1
    s_cmp_lt_u32 s{S_TRIP}, {36 // NBUF}
    s_cbranch_scc1 g2_loop
    s_mov_b32 s{S_T}, {16*2048}
    """)
    stamp_now(a, 34)
    for tb in range(2):
        for e in range(2):
            so = "0" if tb == 0 else f"s{S_T}"
            a(f"buffer_load_dwordx2 {vr(V_XR+(tb*2+e)*2,2)}, v{V_XA}, {sr(SRD_XX,4)}, {so} offen offset:{e*32}")
    a(f"""
    s_waitcnt vmcnt(4) lgkmcnt(0)
    s_barrier
    s_lshl_b32 s{S_T}, s{S_WV}, 12
    v_lshl_add_u32 v{T}, v{VL}, 4, s{S_T}
    v_xor_b32 v{T+1}, 16384, v{T}
    """)
    for s in range(2):
        for tb in range(2):
            a(f"ds_write_b128 v{T}, {vr(ac(2+s,tb))} offset:{(s*2+tb)*1024}")
    a("""
    s_waitcnt lgkmcnt(0)
    s_barrier
    """)
    for s in range(2):
        for tb in range(2):
            a(f"ds_read_b128 {vr(V_W+(s*2+tb)*4)}, v{T+1} offset:{(s*2+tb)*1024}")
    a("s_waitcnt vmcnt(0) lgkmcnt(0)")
    for tb in range(2):
        o = V_AB + tb * 4
        for s in range(2):
            c = ac(s, tb); p = V_W + (s * 2 + tb) * 4; xr = V_XR + (tb * 2 + s) * 2
            a(f"""
            v_lshlrev_b32 v{T+8}, 16, v{xr}
            v_and_b32 v{T+9}, 0xffff0000, v{xr}
            v_lshlrev_b32 v{T+10}, 16, v{xr+1}
            v_and_b32 v{T+11}, 0xffff0000, v{xr+1}
            v_pk_add_f32 {vr(c,2)}, {vr(c,2)}, {vr(p,2)}
            v_pk_add_f32 {vr(c+2,2)}, {vr(c+2,2)}, {vr(p+2,2)}
            v_pk_add_f32 {vr(c,2)}, {vr(c,2)}, {vr(T+8,2)}
            v_pk_add_f32 {vr(c+2,2)}, {vr(c+2,2)}, {vr(T+10,2)}
            v_cvt_pk_bf16_f32 v{o+2*s}, v{c}, v{c+1}
            v_cvt_pk_bf16_f32 v{o+2*s+1}, v{c+2}, v{c+3}
            """)
        so = "0" if tb == 0 else f"s{S_T2}"
        a(f"""
        s_mov_b32 s{S_T2}, {16*2048}
        s_nop 0
        v_permlane16_swap_b32 v{o}, v{o+2}
        v_permlane16_swap_b32 v{o+1}, v{o+3}
        s_nop 1
        buffer_store_dwordx4 {vr(o)}, v{V_OA}, {sr(SRD_OUT,4)}, {so} offen
        """)
    stamp_now(a, 51, True)
    stamp_dump(a, S_WSP, S_WV, 40 << 20)
    a.label("g2_exit")
    a("s_endpgm")

C_ASLOT = 16384; C_NA = 3
C_BSLOT = 16384; C_NBS = 4
C_BBASE = 2 * C_NA * C_ASLOT
G2C_LDS = C_BBASE + C_NBS * C_BSLOT
SLAB_OFF = 64 << 20
FLAG_OFF = 30 << 20
SLAB_BYTES = 64 * 4 * 131072
NKS = 18
PUBF = "sc1" if "pubsc1" in OPTS else ("sc0 sc1 nt" if "pubnt" in OPTS else "sc0 sc1")
GETF = "sc1" if "pubsc1" in OPTS else "sc0 sc1"
def gen_g2c(a):
    XF = 64; WF = 96
    def acc(c, t): return (c * 4 + t) * 4
    def xf(t, kk): return XF + (t * 2 + kk) * 4
    def wf(c, kk): return WF + (c * 2 + kk) * 4
    V_RA = 128; V_RB = 129; V_DA = 133; V_DB = 134; VL = 135; VT = 136; VG = 137; T = 138
    VPF = 152; VH = 153; VHA = 154; VHL = 156
    S_XP = 4; S_WO = 6; S_W2 = 8; S_OUTP = 10; S_DBG = 28; S_WSP = 30
    SRD_A = 12; SRD_B = 16; SRD_S = 20; SRD_X = 24; SRD_O = 32; SRD_F = 36
    S_WV = 40; S_MW = 41; S_NW = 42; S_WQ = 43; S_MT = 44; S_NT = 45; S_KQ = 46; S_J = 47
    S_KA = 48; S_PA = 49; S_PB = 50; S_MA = 51; S_MB = 52; S_MAE = 53; S_MBE = 54; S_ASL = 55; S_BSL = 56
    S_RAS = 57; S_RBS = 58; S_T = 59; S_T2 = 60; S_T3 = 61; S_KB = 62; S_SZ2 = 63; S_CUR = 64; S_DONE = 65
    S_TILE = 66; S_G = 67; S_CNT = 68; S_ARR = 69; S_PC = 70; S_DA = 72; S_DB = 73; S_Q = 74; S_ASZ = 75; S_XCC = 76; S_FB = 77; S_LOC = 78
    MAPK = f"""
    s_and_b32 s{S_KQ}, s2, 3
    s_bfe_u32 s{S_T}, s2, 0x10002             ; M half
    s_lshr_b32 s{S_T2}, s2, 3                 ; idx
    s_and_b32 s{S_MT}, s{S_T2}, 3
    s_lshl_b32 s{S_T}, s{S_T}, 2
    s_add_u32 s{S_MT}, s{S_MT}, s{S_T}        ; mt 0..7
    s_lshr_b32 s{S_NT}, s{S_T2}, 2            ; nt 0..7
"""
    MAPL = f"""
    s_lshr_b32 s{S_T2}, s2, 3                 ; idx
    s_and_b32 s{S_KQ}, s{S_T2}, 3
    s_bfe_u32 s{S_T}, s2, 0x20001             ; xcd >> 1
    s_lshl_b32 s{S_MT}, s{S_T}, 1
    s_bfe_u32 s{S_T}, s{S_T2}, 0x10002
    s_add_u32 s{S_MT}, s{S_MT}, s{S_T}        ; mt 0..7
    s_and_b32 s{S_NT}, s2, 1
    s_lshl_b32 s{S_NT}, s{S_NT}, 2
    s_lshr_b32 s{S_T}, s{S_T2}, 3
    s_add_u32 s{S_NT}, s{S_NT}, s{S_T}        ; nt 0..7
"""
    XF_ = "" if "xloc" in OPTS else "sc0 sc1"
    a.raw("""
.globl g2_kernel
.p2align 8
.type g2_kernel,@function
g2_kernel:""")
    a(f"""
    s_cmp_ge_u32 s2, 256
    s_cbranch_scc1 g2_exit
    s_load_dwordx2 s[{S_XP}:{S_XP+1}], s[0:1], 0
    s_load_dwordx2 s[{S_WO}:{S_WO+1}], s[0:1], 16
    s_load_dwordx4 s[{S_W2}:{S_W2+3}], s[0:1], 40      ; w2, out
    s_load_dwordx4 s[{S_DBG}:{S_DBG+3}], s[0:1], 56
    v_and_b32 v{VL}, 63, v0
    v_lshrrev_b32 v{T}, 6, v0
    v_and_b32 v{VT}, 15, v0
    v_readfirstlane_b32 s{S_WV}, v{T}
    v_bfe_u32 v{VG}, v0, 4, 2
    """)
    if STAMP: a(f"v_mov_b32 v{V_STAMP}, 0")
    stamp_now(a, 32); stamp_now(a, 50, True)
    a(f"""
    s_nop 2
    s_cmp_lg_u32 s{S_WV}, 7
    s_cbranch_scc1 g2_nopf
    """)
    code_prefetch(a, T, VL, S_PC, "g2_kernel", "g2_exit", 8192, VPF)
    a.label("g2_nopf")
    a(f"""
    """)
    a(MAPL if "xloc" in OPTS else MAPK)
    a(f"""
    s_lshl_b32 s{S_TILE}, s{S_MT}, 3
    s_add_u32 s{S_TILE}, s{S_TILE}, s{S_NT}
    s_lshr_b32 s{S_G}, s{S_WV}, 2
    s_and_b32 s{S_WQ}, s{S_WV}, 3
    s_and_b32 s{S_NW}, s{S_WV}, 1
    s_bfe_u32 s{S_MW}, s{S_WV}, 0x10001
    s_lshr_b32 s{S_Q}, s{S_WV}, 1
    s_xor_b32 s{S_T}, s{S_G}, 1
    s_lshl_b32 s{S_T2}, s{S_T}, 3
    s_lshl_b32 s{S_T3}, s{S_MT}, 4
    s_add_u32 s{S_T2}, s{S_T2}, s{S_T3}
    s_lshl_b32 s{S_T3}, s{S_WQ}, 1
    s_add_u32 s{S_T2}, s{S_T2}, s{S_T3}
    s_mul_i32 s{S_T2}, s{S_T2}, {MBLK_PITCH}
    v_lshl_add_u32 v{V_DA}, v{VL}, 4, s{S_T2}
    s_mul_i32 s{S_DA}, s{S_T}, {C_NA*C_ASLOT}
    s_lshl_b32 s{S_T3}, s{S_WQ}, 12
    s_add_u32 s{S_DA}, s{S_DA}, s{S_T3}
    v_lshrrev_b32 v{T}, 4, v{VL}
    s_lshl_b32 s{S_T}, s{S_WV}, 3
    v_add_u32 v{T+1}, s{S_T}, v{T}
    v_lshlrev_b32 v{T+1}, 11, v{T+1}
    s_lshl_b32 s{S_T}, s{S_NT}, 8
    v_add_u32 v{T+1}, s{S_T}, v{T+1}
    v_and_b32 v{T+2}, 1, v{VL}
    v_lshl_add_u32 v{T+1}, v{T+2}, 4, v{T+1}
    v_bfe_u32 v{T+2}, v{VL}, 1, 3
    s_lshl_b32 s{S_T}, s{S_NW}, 2
    v_or_b32 v{T}, s{S_T}, v{T}
    v_xor_b32 v{T+2}, v{T+2}, v{T}
    v_lshl_add_u32 v{V_DB}, v{T+2}, 5, v{T+1}
    s_lshl_b32 s{S_DB}, s{S_WV}, 11
    s_add_u32 s{S_DB}, s{S_DB}, {C_BBASE}
    s_waitcnt lgkmcnt(0)
    """)
    stamp_now(a, 41)
    a(f"""
    s_mov_b32 s{SRD_A}, s{S_WSP}
    s_and_b32 s{SRD_A+1}, s{S_WSP+1}, 0xffff
    s_mov_b32 s{SRD_A+3}, 0x20000
    s_mov_b32 s{SRD_B+3}, 0x20000
    s_and_b32 s{S_WO+1}, s{S_WO+1}, 0xffff
    s_and_b32 s{S_W2+1}, s{S_W2+1}, 0xffff
    s_mov_b32 s{S_SZ2}, {3584*2048}
    s_mov_b32 s{S_ASZ}, {A2_BYTES}
    s_mov_b32 s{S_CUR}, s{S_KQ}
    s_lshl_b32 s{S_DONE}, s{S_KQ}, 3
    s_lshl_b32 s{S_DONE}, 1, s{S_DONE}
    s_mov_b32 s{S_ARR}, 0
    s_mov_b32 s{S_LOC}, 0
    s_add_u32 s{SRD_S}, s{S_WSP}, {SLAB_OFF}
    s_addc_u32 s{SRD_S+1}, s{S_WSP+1}, 0
    s_and_b32 s{SRD_S+1}, s{SRD_S+1}, 0xffff
    s_mov_b32 s{SRD_S+2}, {SLAB_BYTES}
    s_mov_b32 s{SRD_S+3}, 0x20000
    s_add_u32 s{SRD_F}, s{S_WSP}, {FLAG_OFF}
    s_addc_u32 s{SRD_F+1}, s{S_WSP+1}, 0
    s_and_b32 s{SRD_F+1}, s{SRD_F+1}, 0xffff
    s_mov_b32 s{SRD_F+2}, {64*128}
    s_mov_b32 s{SRD_F+3}, 0x20000
    s_lshl_b32 s{S_FB}, s{S_TILE}, 7
    s_lshl_b32 s{S_T}, s{S_TILE}, 2
    s_add_u32 s{S_T}, s{S_T}, s{S_KQ}
    s_lshl_b32 s{S_T}, s{S_T}, 3
    s_add_u32 s{S_T}, s{S_T}, s{S_WV}
    s_lshl_b32 s{S_FB+1}, s{S_T}, 13
    v_lshlrev_b32 v155, 4, v{VL}
    s_mov_b32 s{SRD_X}, s{S_XP}
    s_and_b32 s{SRD_X+1}, s{S_XP+1}, 0xffff
    s_mov_b32 s{SRD_X+2}, {2048*2048}
    s_mov_b32 s{SRD_X+3}, 0x20000
    s_mov_b32 s{SRD_O}, s{S_OUTP}
    s_and_b32 s{SRD_O+1}, s{S_OUTP+1}, 0xffff
    s_mov_b32 s{SRD_O+2}, {2048*2048}
    s_mov_b32 s{SRD_O+3}, 0x20000
    """)
    for r in range(64):
        a(f"v_mov_b32 v{r}, 0")
    def setA():
        a(f"""
        s_mul_i32 s{S_T}, s{S_CUR}, {NKS}
        s_add_u32 s{S_T}, s{S_T}, s{S_PA}
        s_lshl_b32 s{S_KA}, s{S_T}, 11
        s_cmp_ge_u32 s{S_PA}, {NKS}
        s_cselect_b32 s{SRD_A+2}, 0, s{S_ASZ}
        s_cselect_b32 s{S_MAE}, {LDS_DUMP}, s{S_MA}
        """)
    def setB():
        a(f"""
        s_mul_i32 s{S_T}, s{S_CUR}, {NKS}
        s_add_u32 s{S_T}, s{S_T}, s{S_PB}
        s_cmp_lt_u32 s{S_T}, 16
        s_cselect_b32 s{SRD_B}, s{S_WO}, s{S_W2}
        s_cselect_b32 s{SRD_B+1}, s{S_WO+1}, s{S_W2+1}
        s_cselect_b32 s{SRD_B+2}, {1024*2048}, s{S_SZ2}
        s_cselect_b32 s{S_T2}, 0, 16
        s_sub_u32 s{S_T}, s{S_T}, s{S_T2}
        s_lshl_b32 s{S_KB}, s{S_T}, 17
        s_cmp_ge_u32 s{S_PB}, {NKS}
        s_cselect_b32 s{SRD_B+2}, 0, s{SRD_B+2}
        s_cselect_b32 s{S_MBE}, {LDS_DUMP}, s{S_MB}
        """)
    def dmaA_list():
        L = []
        for e in range(2):
            L.append(f"""
            s_add_u32 m0, s{S_MAE}, {e*2048}
            s_add_u32 s{S_T3}, s{S_KA}, {e*MBLK_PITCH}
            buffer_load_dwordx4 v{V_DA}, {sr(SRD_A,4)}, s{S_T3} offen lds
            """)
            L.append(f"buffer_load_dwordx4 v{V_DA}, {sr(SRD_A,4)}, s{S_T3} offen offset:1024 lds")
        return L
    def dmaB_list():
        L = []
        for e in range(2):
            L.append(f"""
            s_add_u32 m0, s{S_MBE}, {e*1024}
            s_add_u32 s{S_T3}, s{S_KB}, {e*8192}
            buffer_load_dwordx4 v{V_DB}, {sr(SRD_B,4)}, s{S_T3} offen lds
            """)
        return L
    def advA():
        a(f"""
        s_add_u32 s{S_PA}, s{S_PA}, 1
        s_add_u32 s{S_ASL}, s{S_ASL}, 1
        s_add_u32 s{S_MA}, s{S_MA}, {C_ASLOT}
        s_cmp_eq_u32 s{S_ASL}, {C_NA}
        s_cselect_b32 s{S_ASL}, 0, s{S_ASL}
        s_cselect_b32 s{S_MA}, s{S_DA}, s{S_MA}
        """)
        setA()
    def advB():
        a(f"""
        s_add_u32 s{S_PB}, s{S_PB}, 1
        s_add_u32 s{S_BSL}, s{S_BSL}, 1
        s_add_u32 s{S_MB}, s{S_MB}, {C_BSLOT}
        s_cmp_eq_u32 s{S_BSL}, {C_NBS}
        s_cselect_b32 s{S_BSL}, 0, s{S_BSL}
        s_cselect_b32 s{S_MB}, s{S_DB}, s{S_MB}
        """)
        setB()
    def doA():
        for d in dmaA_list(): a(d)
        advA()
    def doB():
        for d in dmaB_list(): a(d)
        advB()
    a.label("g2_gemm")
    a(f"""
    s_mov_b32 s{S_PA}, 0
    s_mov_b32 s{S_PB}, 0
    s_mov_b32 s{S_ASL}, 0
    s_mov_b32 s{S_BSL}, 0
    s_mov_b32 s{S_MA}, s{S_DA}
    s_mov_b32 s{S_MB}, s{S_DB}
    """)
    setA(); setB()
    stamp_now(a, 42)
    a(f"""
    s_cmp_eq_u32 s{S_G}, 0
    s_cbranch_scc0 g2_pro1
    """)
    doB(); doA(); doB(); doA(); doB()
    a("s_branch g2_pro2")
    a.label("g2_pro1")
    doA(); doB(); doA(); doB(); doA(); doB()
    a.label("g2_pro2")
    stamp_now(a, 43)
    a(f"""
    s_mul_i32 s{S_T}, s{S_G}, {C_NA*C_ASLOT}
    s_lshl_b32 s{S_T2}, s{S_MW}, 13
    s_add_u32 s{S_T}, s{S_T}, s{S_T2}
    v_lshl_add_u32 v{V_RA}, v{VL}, 4, s{S_T}
    v_lshrrev_b32 v{T}, 2, v{VT}              ; r
    v_lshl_add_u32 v{T+1}, v{VG}, 3, v{T}
    v_lshlrev_b32 v{T+1}, 8, v{T+1}
    v_and_b32 v{T+2}, 3, v{VL}
    v_lshl_add_u32 v{T+1}, v{T+2}, 3, v{T+1}
    v_add_u32 v{T+1}, {C_BBASE}, v{T+1}
    v_and_b32 v{T+2}, 1, v{VG}
    v_lshl_or_b32 v{T+2}, v{T+2}, 2, v{T}     ; f = r | (g&1)<<2
    s_lshl_b32 s{S_T}, s{S_NW}, 2
    v_xor_b32 v{T+2}, s{S_T}, v{T+2}
    """)
    for c in range(4):
        a(f"""
        v_xor_b32 v{T+3}, {c}, v{T+2}
        v_lshl_add_u32 v{V_RB+c}, v{T+3}, 5, v{T+1}
        """)
    a(f"""
    s_mov_b32 s{S_J}, 0
    s_mov_b32 s{S_RAS}, 0
    s_mov_b32 s{S_RBS}, 0
    """)
    stamp_now(a, 44)
    a("s_waitcnt vmcnt(12)")
    stamp_now(a, 45)
    a("s_barrier")
    stamp_now(a, 33)
    a(f"""
    s_cmp_eq_u32 s{S_G}, 0
    s_cbranch_scc1 g2_loop
    s_barrier
    """)
    reads = []
    for kk in range(2):
        for t in range(4):
            reads.append(f"ds_read_b128 {vr(xf(t,kk))}, v{V_RA} offset:{(t*2+kk)*1024}")
        for c in range(4):
            for h in range(2):
                reads.append(f"ds_read_b64_tr_b16 {vr(wf(c,kk)+2*h,2)}, v{V_RB+c} offset:{(32*kk+4*h)*256}")
    a.raw(".p2align 6")
    a.label("g2_loop")
    if "pretouch" in OPTS:
        a(f"""
        s_sub_u32 s{S_T}, s{S_J}, 4
        s_cmp_lt_u32 s{S_T}, 8
        s_cbranch_scc0 g2_nopt
        s_lshl_b32 s{S_T}, s{S_T}, 10
        s_add_u32 s{S_T}, s{S_T}, s{S_FB+1}
        buffer_load_dwordx4 v[156:159], v155, {sr(SRD_S,4)}, s{S_T} offen
        """)
        a.label("g2_nopt")
    dl = dmaA_list() + dmaB_list()
    di = 0
    for n_, r in enumerate(reads):
        a(r)
        if n_ % 4 == 1 and di < len(dl):
            a(dl[di]); di += 1
    assert di == len(dl)
    a("""
    s_waitcnt vmcnt(12) lgkmcnt(0)
    s_barrier
    s_setprio 1
    """)
    real = a; a = bk = Collect()
    def _adv():
        pass
    bk(f"""
    s_add_u32 s{S_PA}, s{S_PA}, 1
    s_add_u32 s{S_ASL}, s{S_ASL}, 1
    s_add_u32 s{S_MA}, s{S_MA}, {C_ASLOT}
    s_cmp_eq_u32 s{S_ASL}, {C_NA}
    s_cselect_b32 s{S_ASL}, 0, s{S_ASL}
    s_cselect_b32 s{S_MA}, s{S_DA}, s{S_MA}
    s_add_u32 s{S_KA}, s{S_KA}, 2048
    s_cmp_ge_u32 s{S_PA}, {NKS}
    s_cselect_b32 s{SRD_A+2}, 0, s{S_ASZ}
    s_cselect_b32 s{S_MAE}, {LDS_DUMP}, s{S_MA}
    s_add_u32 s{S_PB}, s{S_PB}, 1
    s_add_u32 s{S_BSL}, s{S_BSL}, 1
    s_add_u32 s{S_MB}, s{S_MB}, {C_BSLOT}
    s_cmp_eq_u32 s{S_BSL}, {C_NBS}
    s_cselect_b32 s{S_BSL}, 0, s{S_BSL}
    s_cselect_b32 s{S_MB}, s{S_DB}, s{S_MB}
    s_add_u32 s{S_KB}, s{S_KB}, {1<<17}
    s_lshl_b32 s{S_T}, s{S_CUR}, 8
    s_add_u32 s{S_T}, s{S_T}, s{S_PB}
    s_cmp_eq_u32 s{S_T}, 16
    s_cselect_b32 s{SRD_B}, s{S_W2}, s{SRD_B}
    s_cselect_b32 s{SRD_B+1}, s{S_W2+1}, s{SRD_B+1}
    s_cselect_b32 s{SRD_B+2}, s{S_SZ2}, s{SRD_B+2}
    s_cselect_b32 s{S_KB}, 0, s{S_KB}
    s_cmp_ge_u32 s{S_PB}, {NKS}
    s_cselect_b32 s{SRD_B+2}, 0, s{SRD_B+2}
    s_cselect_b32 s{S_MBE}, {LDS_DUMP}, s{S_MB}
    s_add_u32 s{S_RAS}, s{S_RAS}, 1
    s_cmp_eq_u32 s{S_RAS}, {C_NA}
    s_cselect_b32 s{S_RAS}, 0, s{S_RAS}
    s_cselect_b32 s{S_T}, {C_NA*C_ASLOT}, 0
    s_sub_u32 s{S_T}, {C_ASLOT}, s{S_T}
    v_add_u32 v{V_RA}, s{S_T}, v{V_RA}
    s_add_u32 s{S_RBS}, s{S_RBS}, 1
    s_cmp_eq_u32 s{S_RBS}, {C_NBS}
    s_cselect_b32 s{S_RBS}, 0, s{S_RBS}
    s_cselect_b32 s{S_T}, {C_NBS*C_BSLOT}, 0
    s_sub_u32 s{S_T}, {C_BSLOT}, s{S_T}
    """)
    for c in range(4):
        bk(f"v_add_u32 v{V_RB+c}, s{S_T}, v{V_RB+c}")
    a = real
    mf = []
    for kk in range(2):
        for c in range(4):
            for t in range(4):
                mf.append(f"v_mfma_f32_16x16x32_bf16 {vr(acc(c,t))}, {vr(wf(c,kk))}, {vr(xf(t,kk))}, {vr(acc(c,t))}")
    interleave(a, mf, bk.L, start=1, per=2)
    a(f"""
    s_setprio 0
    s_add_u32 s{S_J}, s{S_J}, 1
    s_lshl_b32 s{S_T}, s{S_G}, 8
    s_add_u32 s{S_T}, s{S_T}, s{S_J}
    s_cmp_eq_u32 s{S_T}, {256 + NKS}
    s_cbranch_scc1 g2_post
    s_cmp_lt_u32 s{S_J}, {NKS}
    s_barrier
    s_cbranch_scc1 g2_loop
    """)
    a.label("g2_post")
    stamp_now(a, 34)
    V_XR = XF; V_XA = T + 1; V_OA = T + 2; PK = WF
    a(f"""
    v_lshlrev_b32 v{T}, 4, v{VL}
    s_cmp_eq_u32 s{S_Q}, s{S_KQ}
    s_cbranch_scc1 g2_own
    s_cmp_eq_u32 s{S_CUR}, s{S_KQ}
    s_cbranch_scc0 g2_pub_done
    s_lshl_b32 s{S_T}, s{S_TILE}, 2
    s_add_u32 s{S_T}, s{S_T}, s{S_KQ}
    s_lshl_b32 s{S_T}, s{S_T}, 3
    s_add_u32 s{S_T}, s{S_T}, s{S_WV}
    s_lshl_b32 s{S_T}, s{S_T}, 13
    s_add_u32 s{S_T2}, s{S_T}, 4096
    """)
    for bp in range(8):
        o = PK + 4 * bp
        for h in range(2):
            b = acc(bp >> 1, (bp & 1) * 2 + h)
            a(f"""
            v_cvt_pk_bf16_f32 v{o+2*h}, v{b}, v{b+1}
            v_cvt_pk_bf16_f32 v{o+2*h+1}, v{b+2}, v{b+3}
            """)
        a(f"buffer_store_dwordx4 {vr(o)}, v{T}, {sr(SRD_S,4)}, s{S_T if bp < 4 else S_T2} offen offset:{(bp%4)*1024} {XF_}")
    a("s_branch g2_pub_done")
    a.label("g2_own")
    a(f"""
    s_lshl_b32 s{S_T}, s{S_NW}, 14
    v_add_u32 v{T+3}, s{S_T}, v{T}
    """)
    for b in range(16):
        a(f"ds_write_b128 v{T+3}, {vr(4*b)} offset:{b*1024}")
    a.label("g2_pub_done")
    a(f"""
    s_lshl_b32 s{S_T}, s{S_MT}, 8
    s_lshl_b32 s{S_T2}, s{S_KQ}, 6
    s_add_u32 s{S_T}, s{S_T}, s{S_T2}
    s_lshl_b32 s{S_T2}, s{S_G}, 5
    s_add_u32 s{S_T}, s{S_T}, s{S_T2}
    v_add_u32 v{T+3}, s{S_T}, v{VT}
    v_lshlrev_b32 v{T+3}, 11, v{T+3}
    s_lshl_b32 s{S_T}, s{S_NT}, 8
    s_lshl_b32 s{S_T2}, s{S_NW}, 7
    s_add_u32 s{S_T}, s{S_T}, s{S_T2}
    s_lshl_b32 s{S_T2}, s{S_MW}, 6
    s_add_u32 s{S_T}, s{S_T}, s{S_T2}
    v_add_u32 v{T+3}, s{S_T}, v{T+3}
    v_lshl_add_u32 v{V_XA}, v{VG}, 3, v{T+3}
    v_and_b32 v{T+4}, 1, v{VG}
    v_lshrrev_b32 v{T+5}, 1, v{VG}
    v_lshl_or_b32 v{T+4}, v{T+4}, 1, v{T+5}
    v_lshl_add_u32 v{V_OA}, v{T+4}, 4, v{T+3}
    s_mov_b32 s{S_T}, {16*2048}
    """)
    for t in range(2):
        for e in range(2):
            so = "0" if t == 0 else f"s{S_T}"
            a(f"buffer_load_dwordx2 {vr(V_XR+(t*2+e)*2,2)}, v{V_XA}, {sr(SRD_X,4)}, {so} offen offset:{e*32}")
    a("s_waitcnt vmcnt(4) lgkmcnt(0)")
    stamp_now(a, 36)
    a(f"""
    s_barrier
    s_cmp_eq_u32 s{S_CUR}, s{S_KQ}
    s_cbranch_scc0 g2_after_publish
    s_cmp_eq_u32 s{S_WV}, 0
    s_cbranch_scc0 g2_wait_done
    s_lshl_b32 s{S_T}, s{S_KQ}, 2
    v_mov_b32 v{T+3}, s{S_DONE}
    v_mov_b32 v{T+4}, s{S_T}
    s_mov_b64 exec, 1
    buffer_store_dword v{T+3}, v{T+4}, {sr(SRD_F,4)}, s{S_FB} offen sc0 sc1
    s_mov_b32 s{S_CNT}, 0
    """)
    a.label("g2_poll")
    a(f"""
    buffer_load_dwordx4 {vr(T+6)}, off, {sr(SRD_F,4)}, s{S_FB} sc0 sc1
    s_waitcnt vmcnt(0)
    v_or_b32 v{T+6}, v{T+6}, v{T+7}
    v_or3_b32 v{T+5}, v{T+6}, v{T+8}, v{T+9}
    s_add_u32 s{S_CNT}, s{S_CNT}, 1
    v_readfirstlane_b32 s{S_ARR}, v{T+5}
    s_nop 3
    s_cmp_eq_u32 s{S_ARR}, {0x77 if "forcefb" in OPTS else 0x01010101}
    s_cbranch_scc1 g2_poll_end
    s_cmp_lt_u32 s{S_CNT}, {64 if "forcefb" in OPTS else 20000}
    s_cbranch_scc1 g2_poll
    """)
    a.label("g2_poll_end")
    if STAMP:
        a(f"v_writelane_b32 v{V_STAMP}, s{S_CNT}, 39")
    if "forcefb" in OPTS:
        a(f"s_and_b32 s{S_ARR}, s{S_ARR}, 0x00010001")
    a(f"""
    v_mov_b32 v{T+5}, s{S_ARR}
    v_mov_b32 v{T+4}, {65536}
    ds_write_b32 v{T+4}, v{T+5}
    s_mov_b64 exec, -1
    s_waitcnt lgkmcnt(0)
    """)
    a.label("g2_wait_done")
    a(f"""
    s_barrier
    v_mov_b32 v{T+4}, {65536}
    ds_read_b32 v{T+5}, v{T+4}
    s_waitcnt lgkmcnt(0)
    v_readfirstlane_b32 s{S_ARR}, v{T+5}
    s_nop 3
    """)
    a.label("g2_after_publish")
    a(f"""
    s_or_b32 s{S_T}, s{S_ARR}, s{S_DONE}
    s_cmp_eq_u32 s{S_T}, 0x01010101
    s_cbranch_scc1 g2_final
    s_andn2_b32 s{S_T}, 0x01010101, s{S_T}
    s_ff1_i32_b32 s{S_T}, s{S_T}
    s_lshl_b32 s{S_T2}, 1, s{S_T}
    s_or_b32 s{S_DONE}, s{S_DONE}, s{S_T2}
    s_lshr_b32 s{S_CUR}, s{S_T}, 3
    s_waitcnt vmcnt(0)
    s_barrier
    s_branch g2_gemm
    """)
    a.label("g2_final")
    stamp_now(a, 35)
    R0 = WF
    a(f"""
    s_andn2_b32 s{S_ARR}, s{S_ARR}, s{S_DONE}
    s_lshl_b32 s{S_T}, s{S_MW}, 2
    s_add_u32 s{S_T}, s{S_T}, s{S_G}
    s_lshl_b32 s{S_T}, s{S_T}, 10             ; pair0 * 1024
    s_lshl_b32 s{S_T2}, s{S_NW}, 13
    s_add_u32 s{S_T3}, s{S_T}, s{S_T2}
    """)
    for src in range(4):
        a(f"""
        s_bitcmp1_b32 s{S_ARR}, {8*src}
        s_cbranch_scc1 g2_ld{src}
        """)
        for r in range(8):
            a(f"v_mov_b32 v{8*src+r}, 0")
        a(f"s_branch g2_ld{src}_done")
        a.label(f"g2_ld{src}")
        a(f"""
        s_lshl_b32 s{S_T}, s{S_TILE}, 2
        s_add_u32 s{S_T}, s{S_T}, {src}
        s_lshl_b32 s{S_T}, s{S_T}, 2
        s_add_u32 s{S_T}, s{S_T}, s{S_KQ}
        s_lshl_b32 s{S_T}, s{S_T}, 14
        s_add_u32 s{S_T}, s{S_T}, s{S_T3}
        """)
        for e in range(2):
            a(f"buffer_load_dwordx4 {vr(8*src+4*e)}, v{T}, {sr(SRD_S,4)}, s{S_T} offen offset:{e*2048} {XF_}")
        a.label(f"g2_ld{src}_done")
    a(f"""
    s_lshl_b32 s{S_T}, s{S_MW}, 3
    s_lshl_b32 s{S_T2}, s{S_G}, 1
    s_add_u32 s{S_T}, s{S_T}, s{S_T2}
    s_lshl_b32 s{S_T}, s{S_T}, 10
    s_lshl_b32 s{S_T2}, s{S_NW}, 14
    s_add_u32 s{S_T}, s{S_T}, s{S_T2}
    v_add_u32 v{T+3}, s{S_T}, v{T}
    """)
    for e in range(2):
        for t in range(2):
            a(f"ds_read_b128 {vr(R0+(e*2+t)*4)}, v{T+3} offset:{e*4096 + t*1024}")
    a("s_waitcnt vmcnt(0) lgkmcnt(0)")
    stamp_now(a, 37)
    for t in range(2):
        o = XF + 16 + t * 4
        for e in range(2):
            c = R0 + (e * 2 + t) * 4
            srcs = [8 * src + 4 * e + 2 * t for src in range(4)] + [V_XR + (t * 2 + e) * 2]
            for p in srcs:
                a(f"""
                v_lshlrev_b32 v{T+8}, 16, v{p}
                v_and_b32 v{T+9}, 0xffff0000, v{p}
                v_lshlrev_b32 v{T+10}, 16, v{p+1}
                v_and_b32 v{T+11}, 0xffff0000, v{p+1}
                v_pk_add_f32 {vr(c,2)}, {vr(c,2)}, {vr(T+8,2)}
                v_pk_add_f32 {vr(c+2,2)}, {vr(c+2,2)}, {vr(T+10,2)}
                """)
            a(f"""
            v_cvt_pk_bf16_f32 v{o+2*e}, v{c}, v{c+1}
            v_cvt_pk_bf16_f32 v{o+2*e+1}, v{c+2}, v{c+3}
            """)
        so = "0" if t == 0 else f"s{S_T2}"
        a(f"""
        s_mov_b32 s{S_T2}, {16*2048}
        s_nop 0
        v_permlane16_swap_b32 v{o}, v{o+2}
        v_permlane16_swap_b32 v{o+1}, v{o+3}
        s_nop 1
        buffer_store_dwordx4 {vr(o)}, v{V_OA}, {sr(SRD_O,4)}, {so} offen
        """)
    stamp_now(a, 51, True)
    stamp_dump(a, S_WSP, S_WV, 40 << 20)
    a.label("g2_exit")
    a("s_endpgm")
    global G2_VGPRS
    G2_VGPRS = 256 if STAMP else 160

HEADER = f"""; mblk_pitch={MBLK_PITCH}
{"" if FUSE else "; @launch kernel=k0_kernel grid=(256,1,1) block=(512,1,1) lds=0"}
; @launch kernel=g1_kernel grid=(256,1,1) block=(512,1,1) lds={G1_LDS}
; @launch kernel=g2_kernel grid=(256,1,1) block=(512,1,1) lds={G2_LDS if 'g2a' in OPTS else G2C_LDS}
.amdgcn_target "amdgcn-amd-amdhsa--gfx950"
.text
"""

def kd(name, vgpr, sgpr):
    return f"""
.amdhsa_kernel {name}
  .amdhsa_next_free_vgpr {vgpr}
  .amdhsa_next_free_sgpr {sgpr}
  .amdhsa_accum_offset {(vgpr + 3) // 4 * 4}
  .amdhsa_group_segment_fixed_size 0
  .amdhsa_kernarg_size 72
  .amdhsa_user_sgpr_count 2
  .amdhsa_user_sgpr_kernarg_segment_ptr 1
  .amdhsa_system_sgpr_workgroup_id_x 1
.end_amdhsa_kernel
"""

def main():
    global STAMP
    if "stamp" in sys.argv[2:]: STAMP = True
    a = Asm()
    gen_k0(a)
    gen_g1(a)
    (gen_g2 if 'g2a' in OPTS else gen_g2c)(a)
    s = HEADER + a.text() + '.section .rodata,"a"\n.p2align 6\n' + kd("k0_kernel", 64, 40) + ".p2align 6\n" + kd("g1_kernel", 256, 102) + ".p2align 6\n" + kd("g2_kernel", G2_VGPRS, 102 if STAMP else 80)
    out = sys.argv[1] if len(sys.argv) > 1 else OUT
    open(out, "w").write(s)

main()
```

```python
import sys

OUT = "parallel_sum__sliding_local_dilated__dense_activation_relu__prompt.s"

class Asm:
    def __init__(self):
        self.L = []
    def __call__(self, s):
        for line in s.strip("\n").split("\n"):
            line = line.strip()
            if line:
                self.L.append("    " + line)
    def label(self, n):
        self.L.append(n + ":")
    def raw(self, s):
        self.L.append(s)
    def text(self):
        return "\n".join(self.L) + "\n"

class Collect:
    def __init__(self): self.L = []
    def __call__(self, s):
        for line in s.strip("\n").split("\n"):
            line = line.strip()
            if line: self.L.append(line)

def interleave(a, mfmas, fillers, start=2, per=2):
    fi = 0
    for n, m in enumerate(mfmas):
        a(m)
        if n >= start:
            for _ in range(per):
                if fi < len(fillers):
                    a(fillers[fi]); fi += 1
    while fi < len(fillers):
        a(fillers[fi]); fi += 1

def vr(b, n=4):
    return "v[%d:%d]" % (b, b + n - 1)
def sr(b, n=2):
    return "s[%d:%d]" % (b, b + n - 1)

MBLK_PITCH = 144 * 1024
for _o in sys.argv[2:]:
    if _o.startswith("pitch="): MBLK_PITCH = int(_o[6:])
A2_BYTES = 128 * MBLK_PITCH

G1_ASLOT = 16384
G1_BBASE = 65536
G1_BSLOT = 28672
G1_HALO = 24576
G1_STAT = G1_BBASE + 3 * G1_BSLOT
G1_CS = G1_STAT + 272 * 8
G1_CSP = G1_STAT + 3072
G1_CS = G1_CSP + 8192
G1_VERD = G1_CS + 896
G1_LDS = 163840 if "fuse" in sys.argv[2:] else G1_STAT
ST_OFF = 28 << 20
XN_OFF = 24 << 20
AT_PITCH = 400

V_ACC = 0
V_HACC = 96
V_XF = 112
V_WF = 144
V_HF = 200
V_S1 = 208
V_S2 = 210
V_SH = 212
V_CS = 214
V_WD = 208
V_WV = 212
V_RA = 217
V_RB = 221
V_RH = 228
V_DA = 230
V_DB = 231
V_DH = 235
V_T = 236
V_LANE = 250
V_TT = 251
V_GG = 252

S_X = 4; S_W = 6; S_WS = 8; S_W1 = 10
SRD_X = 12; SRD_W = 16; SRD_O = 20
S_WAVE = 24; S_MW = 26; S_NW = 27; S_WQ = 28; S_MT = 29; S_JT = 30; S_J = 31
S_KA = 32; S_KB = 33; S_MA = 34; S_MB = 35; S_BD = 36; S_BSL = 37; S_RSL = 38; S_TMP = 39
S_ONES = 40; S_KH = 41; S_TMP2 = 42; S_TMP3 = 43
S_BLK = 44
S_TB = 52
S_PO = 56
S_MASK = 64
S_BSC = 60
S_HD = 61
S_KW = 91
SRD_WW = 64; S_WM = 68; S_GW = 70; S_WPK = 71
V_L16 = 216
SRD_ST = 64; SRD_DBG = 72; S_NTI = 76; S_EV = 77; S_DBGP = 78
V_ONES = 240; V_CHK = 208
S_MAE = 25; S_MBE = 3
LDS_DUMP = 0x28000
SRD_XA = 96
S_WOP = 92; S_W2P = 94; S_PC1 = 62

STAMP = False
FUSE = "fuse" in sys.argv[2:]
OPTS = sys.argv[2:]
STF = "sc0 sc1" if "stsc" in OPTS else ""
STH = "sc0 sc1" if "hwt" in OPTS else ""
V_STAMP = 253
S_SA = 84; S_SB = 86; S_SC = 88; SRD_D = 80; S_SI = 90
def stamp_now(a, idx, real=False):
    if not STAMP: return
    a(f"""
    {"s_memrealtime" if real else "s_memtime"} {sr(S_SC)}
    s_waitcnt lgkmcnt(0)
    v_writelane_b32 v{V_STAMP}, s{S_SC}, {idx}
    """)
def stamp_dump(a, wsreg, wave_sreg, base_off):
    if not STAMP: return
    a(f"""
    s_waitcnt vmcnt(0)
    s_memtime {sr(S_SC)}
    s_waitcnt lgkmcnt(0)
    v_writelane_b32 v{V_STAMP}, s{S_SC}, 63
    s_mov_b32 s{SRD_D}, s{wsreg}
    s_and_b32 s{SRD_D+1}, s{wsreg+1}, 0xffff
    s_mov_b32 s{SRD_D+2}, {64<<20}
    s_mov_b32 s{SRD_D+3}, 0x20000
    s_lshl_b32 s{S_SC}, s2, 3
    s_add_u32 s{S_SC}, s{S_SC}, s{wave_sreg}
    s_lshl_b32 s{S_SC}, s{S_SC}, 8
    s_add_u32 s{S_SC}, s{S_SC}, {base_off}
    v_mbcnt_lo_u32_b32 v254, -1, 0
    v_mbcnt_hi_u32_b32 v254, -1, v254
    v_lshlrev_b32 v254, 2, v254
    buffer_store_dword v{V_STAMP}, v254, {sr(SRD_D,4)}, s{S_SC} offen
    """)

def acc(s, i): return V_ACC + (s * 4 + i) * 4
def xf(i, kk): return V_XF + (i * 2 + kk) * 4
def wf(s, kk): return V_WF + (s * 2 + kk) * 4
def hf(kk): return V_HF + kk * 4

def xlane_sum(a, v, t):
    a(f"""
    v_mov_b32 v{t}, v{v}
    s_nop 1
    v_permlane16_swap_b32 v{v}, v{t}
    s_nop 1
    v_add_f32 v{v}, v{v}, v{t}
    v_mov_b32 v{t}, v{v}
    s_nop 1
    v_permlane32_swap_b32 v{v}, v{t}
    s_nop 1
    v_add_f32 v{v}, v{v}, v{t}
    """)

def xlane_max(a, v, t):
    a(f"""
    v_mov_b32 v{t}, v{v}
    s_nop 1
    v_permlane16_swap_b32 v{v}, v{t}
    s_nop 1
    v_max_f32 v{v}, v{v}, v{t}
    v_mov_b32 v{t}, v{v}
    s_nop 1
    v_permlane32_swap_b32 v{v}, v{t}
    s_nop 1
    v_max_f32 v{v}, v{v}, v{t}
    """)

def reduce64(a, v, t):
    DPP = "row_mask:0xf bank_mask:0xf"
    a(f"""
    s_nop 1
    v_add_f32_dpp v{t}, v{v}, v{v} quad_perm:[1,0,3,2] {DPP}
    s_nop 1
    v_add_f32_dpp v{v}, v{t}, v{t} quad_perm:[2,3,0,1] {DPP}
    s_nop 1
    v_add_f32_dpp v{t}, v{v}, v{v} row_half_mirror {DPP}
    s_nop 1
    v_add_f32_dpp v{v}, v{t}, v{t} row_mirror {DPP}
    """)
    xlane_sum(a, v, t)

def row_stats(a, src, u, dst, t0, t1):
    for r in range(8):
        a(f"""
        v_lshlrev_b32 v{u+2*r}, 16, v{src+r}
        v_and_b32 v{u+2*r+1}, 0xffff0000, v{src+r}
        """)
    a(f"v_pk_add_f32 {vr(dst,2)}, {vr(u,2)}, {vr(u+2,2)}")
    for r in range(2, 8):
        a(f"v_pk_add_f32 {vr(dst,2)}, {vr(dst,2)}, {vr(u+2*r,2)}")
    a(f"v_add_f32 v{t0}, v{dst}, v{dst+1}")
    reduce64(a, t0, t1)
    a(f"v_mul_f32 v{t0}, 0x3a800000, v{t0}          ; mean")
    for r in range(8):
        a(f"v_pk_add_f32 {vr(u+2*r,2)}, {vr(u+2*r,2)}, {vr(t0,2)} op_sel_hi:[1,0] neg_lo:[0,1] neg_hi:[0,1]")
    a(f"v_pk_mul_f32 {vr(dst,2)}, {vr(u,2)}, {vr(u,2)}")
    for r in range(1, 8):
        a(f"v_pk_fma_f32 {vr(dst,2)}, {vr(u+2*r,2)}, {vr(u+2*r,2)}, {vr(dst,2)}")
    a(f"v_add_f32 v{dst+1}, v{dst}, v{dst+1}")
    reduce64(a, dst + 1, t1)
    a(f"""
    v_mul_f32 v{dst+1}, 0x3a800000, v{dst+1}     ; var
    v_cvt_pk_bf16_f32 v{t1}, v{t0}, v{dst+1}
    v_lshlrev_b32 v{dst}, 16, v{t1}              ; m_b
    v_and_b32 v{dst+1}, 0xffff0000, v{t1}        ; v_b
    v_add_f32 v{dst+1}, 0x3727c5ac, v{dst+1}
    v_cvt_pk_bf16_f32 v{dst+1}, v{dst+1}, v{dst+1}
    v_and_b32 v{dst+1}, 0xffff0000, v{dst+1}
    v_sqrt_f32 v{dst+1}, v{dst+1}
    s_nop 0
    v_cvt_pk_bf16_f32 v{dst+1}, v{dst+1}, v{dst+1}
    v_and_b32 v{dst+1}, 0xffff0000, v{dst+1}
    v_rcp_f32 v{dst+1}, v{dst+1}
    s_nop 0
    """)

def g1_path(a, typ, G):
    qkv = (typ == 0)
    NB = 6 if qkv else 7
    PB = 384 if qkv else 448
    CH = PB // 16
    WP = 6144 if qkv else 7168
    halo = qkv and G == 0
    if qkv:
        nB = 3
        p0 = 0 if G == 0 else 12
    else:
        nB = 4 if G == 0 else 3
        p0 = 0 if G == 0 else 16
    nIss = 4 + nB + (1 if halo else 0)
    nBiss = nB + (1 if halo else 0)
    cs_slots = [0, 1] if (qkv or G == 0) else [0, 1, 6]
    P = f"g1_{typ}{G}"
    T = V_T
    a.label(P)
    if STAMP: a(f"v_mov_b32 v{V_STAMP}, 0")
    stamp_now(a, 32); stamp_now(a, 50, True)
    if qkv:
        a(f"""
        s_mov_b32 s{SRD_W}, s{S_W}
        s_and_b32 s{SRD_W+1}, s{S_W+1}, 0xffff
        s_mov_b32 s{SRD_W+2}, {1024*6144}
        s_mov_b32 s{SRD_W+3}, 0x20000
        """)
    else:
        a(f"""
        s_mov_b32 s{SRD_W}, s{S_W1}
        s_and_b32 s{SRD_W+1}, s{S_W1+1}, 0xffff
        s_mov_b32 s{SRD_W+2}, {1024*7168}
        s_mov_b32 s{SRD_W+3}, 0x20000
        """)
    Go = 1 - G
    a(f"""
    v_lshrrev_b32 v{T}, 3, v{V_LANE}                 ; l>>3
    v_and_b32 v{T+1}, 7, v{V_LANE}
    v_xor_b32 v{T+1}, v{T+1}, v{T}                   ; chunk
    s_lshl_b32 s{S_TMP}, s{S_MT}, 8
    s_lshl_b32 s{S_TMP2}, s{S_WQ}, 5
    s_add_u32 s{S_TMP}, s{S_TMP}, s{S_TMP2}
    s_add_u32 s{S_TMP}, s{S_TMP}, {128*Go}
    v_add_u32 v{T+2}, s{S_TMP}, v{T}
    v_lshlrev_b32 v{T+2}, 11, v{T+2}
    v_lshl_add_u32 v{V_DA}, v{T+1}, 4, v{T+2}
    """)
    if halo:
        a(f"""
        s_and_b32 s{S_TMP2}, s{S_WQ}, 1
        s_lshl_b32 s{S_TMP2}, s{S_TMP2}, 3
        v_add_u32 v{T+2}, s{S_TMP2}, v{T}
        s_lshl_b32 s{S_TMP}, s{S_MT}, 8
        s_sub_u32 s{S_TMP}, s{S_TMP}, 16
        v_add_u32 v{T+2}, s{S_TMP}, v{T+2}
        v_max_i32 v{T+2}, 0, v{T+2}
        v_lshlrev_b32 v{T+2}, 11, v{T+2}
        v_lshl_add_u32 v{V_DH}, v{T+1}, 4, v{T+2}
        s_mul_i32 s{S_HD}, s{S_WQ}, {nB*1024}
        s_sub_u32 s{S_HD}, {G1_HALO - p0*1024}, s{S_HD}
        s_lshl_b32 s{S_TMP2}, s{S_TMP2}, 7           ; (wq&1)*1024
        s_add_u32 s{S_HD}, s{S_HD}, s{S_TMP2}
        """)
    magic = (65536 + CH - 1) // CH
    for q in range(64 * CH):
        assert (q * magic) >> 16 == q // CH
    a(f"s_mul_i32 s{S_TMP3}, s{S_WQ}, {nB*64}")
    for i in range(nB):
        a(f"""
        s_add_u32 s{S_TMP}, s{S_TMP3}, {(p0+i)*64}
        v_add_u32 v{T}, s{S_TMP}, v{V_LANE}          ; q
        v_mul_u32_u24 v{T+1}, {magic}, v{T}
        v_lshrrev_b32 v{T+1}, 16, v{T+1}             ; k
        v_mul_u32_u24 v{T+2}, {CH}, v{T+1}
        v_sub_u32 v{T+2}, v{T}, v{T+2}               ; c'
        """)
        if qkv:
            a(f"""
            v_bfe_u32 v{T+3}, v{T+1}, 1, 1
            v_bfe_u32 v{T+4}, v{T+1}, 3, 1
            v_lshl_or_b32 v{T+3}, v{T+4}, 1, v{T+3}  ; f
            v_lshrrev_b32 v{T+4}, 1, v{T+2}
            v_xor_b32 v{T+4}, v{T+4}, v{T+3}         ; unit (0..11)
            v_cmp_le_u32 vcc, 6, v{T+4}
            s_nop 1
            v_cndmask_b32 v{T+5}, 0, 1, vcc          ; hh
            v_mul_u32_u24 v{T+6}, 6, v{T+5}
            v_sub_u32 v{T+6}, v{T+4}, v{T+6}         ; unit % 6
            v_lshrrev_b32 v{T+7}, 1, v{T+6}          ; part
            v_and_b32 v{T+6}, 1, v{T+6}              ; half32
            v_lshlrev_b32 v{T+7}, 11, v{T+7}         ; part*2048
            v_lshl_add_u32 v{T+7}, v{T+5}, 6, v{T+7} ; + hh*64
            v_lshl_add_u32 v{T+7}, v{T+6}, 5, v{T+7} ; + half32*32
            v_and_b32 v{T+6}, 1, v{T+2}
            v_lshl_add_u32 v{T+7}, v{T+6}, 4, v{T+7} ; + (c'&1)*16
            s_lshl_b32 s{S_TMP}, s{S_JT}, 7          ; 2 jt * 64
            v_add_u32 v{T+7}, s{S_TMP}, v{T+7}
            v_mul_u32_u24 v{T+1}, {WP}, v{T+1}
            v_add_u32 v{V_DB+i}, v{T+1}, v{T+7}
            """)
        else:
            a(f"""
            v_bfe_u32 v{T+3}, v{T+1}, 3, 1
            v_lshlrev_b32 v{T+3}, 1, v{T+3}
            v_xor_b32 v{T+2}, v{T+2}, v{T+3}         ; c = c' ^ (2*bit3(k))
            v_lshlrev_b32 v{T+2}, 4, v{T+2}
            s_mul_i32 s{S_TMP}, s{S_JT}, 448
            v_add_u32 v{T+2}, s{S_TMP}, v{T+2}
            v_mul_u32_u24 v{T+1}, {WP}, v{T+1}
            v_add_u32 v{V_DB+i}, v{T+1}, v{T+2}
            """)
    a(f"""
    s_lshl_b32 s{S_KA}, s{S_MT}, {8 if FUSE else 31}
    s_and_b32 s{S_KA}, s{S_KA}, 0x7ff
    s_mul_i32 s{S_KB}, s{S_MT}, {128*WP if FUSE else 0}
    s_mov_b32 s{S_KH}, s{S_KA}
    s_lshl_b32 s{S_MA}, s{S_WQ}, 12
    s_add_u32 s{S_MA}, s{S_MA}, {Go*2*G1_ASLOT}
    s_mul_i32 s{S_MB}, s{S_WQ}, {nB*1024}
    s_add_u32 s{S_MB}, s{S_MB}, {G1_BBASE + p0*1024}
    s_mov_b32 s{S_BSL}, 0
    """)
    def dma_A():
        for i in range(4):
            a(f"""
            s_add_u32 m0, s{S_MA}, {i*1024}
            s_add_u32 s{S_TMP}, s{S_KA}, {i*16384}
            buffer_load_dwordx4 v{V_DA}, {sr(SRD_XA,4)}, s{S_TMP} offen lds
            """)
        a(f"""
        s_add_u32 s{S_KA}, s{S_KA}, 128
        s_and_b32 s{S_KA}, s{S_KA}, 0x7ff
        s_xor_b32 s{S_MA}, s{S_MA}, {G1_ASLOT}
        """)
    def dma_B():
        for i in range(nB):
            a(f"""
            s_add_u32 m0, s{S_MB}, {i*1024}
            s_nop 0
            buffer_load_dwordx4 v{V_DB+i}, {sr(SRD_W,4)}, s{S_KB} offen lds
            """)
        if halo:
            a(f"""
            s_add_u32 m0, s{S_MB}, s{S_HD}
            s_nop 0
            buffer_load_dwordx4 v{V_DH}, {sr(SRD_X,4)}, s{S_KH} offen lds
            s_add_u32 s{S_KH}, s{S_KH}, 128
            s_and_b32 s{S_KH}, s{S_KH}, 0x7ff
            """)
        a(f"""
        s_add_u32 s{S_KB}, s{S_KB}, {64*WP}
        s_cmp_eq_u32 s{S_KB}, {1024*WP}
        s_cselect_b32 s{S_KB}, 0, s{S_KB}
        s_add_u32 s{S_BSL}, s{S_BSL}, 1
        s_add_u32 s{S_MB}, s{S_MB}, {G1_BSLOT}
        s_cmp_eq_u32 s{S_BSL}, 3
        s_cselect_b32 s{S_TMP}, {3*G1_BSLOT}, 0
        s_cselect_b32 s{S_BSL}, 0, s{S_BSL}
        s_sub_u32 s{S_MB}, s{S_MB}, s{S_TMP}
        """)
    if G == 0:
        dma_B(); dma_A(); dma_B()
        pro_wait = 4 + nBiss
    else:
        dma_A(); dma_B(); dma_A(); dma_B()
        pro_wait = 4 + nBiss
    WARM = "nowarmw" not in OPTS and not FUSE
    a(f"""
    s_and_b32 s{S_WOP+1}, s{S_WOP+1}, 0xffff
    s_and_b32 s{S_W2P+1}, s{S_W2P+1}, 0xffff
    s_lshl_b32 s{S_GW}, s2, 3
    s_add_u32 s{S_GW}, s{S_GW}, s{S_WAVE}
    s_lshl_b32 s{S_GW}, s{S_GW}, 10
    v_lshlrev_b32 v{V_L16}, 4, v{V_LANE}
    s_mov_b32 s{S_WPK}, {128*WP}
    s_mov_b32 s{S_KW}, 0
    """)
    if WARM:
        a(f"""
        v_min_u32 v{T}, {2*CH - 1}, v{V_LANE}
        v_cmp_le_u32 vcc, {CH}, v{T}
        s_lshl_b32 s{S_TMP}, s{S_MT}, 4
        s_lshl_b32 s{S_TMP2}, s{S_WAVE}, 1
        v_cndmask_b32 v{T+1}, 0, 1, vcc              ; row
        s_add_u32 s{S_TMP}, s{S_TMP}, s{S_TMP2}
        v_mul_u32_u24 v{T+2}, {CH}, v{T+1}
        v_sub_u32 v{T}, v{T}, v{T+2}                 ; chunk
        v_add_u32 v{T+1}, s{S_TMP}, v{T+1}
        v_mul_u32_u24 v{T+1}, {WP}, v{T+1}
        """)
        if qkv:
            a(f"""
            v_lshrrev_b32 v{T+2}, 3, v{T}
            v_lshl_add_u32 v{T+1}, v{T+2}, 11, v{T+1}
            v_and_b32 v{T}, 7, v{T}
            s_lshl_b32 s{S_TMP}, s{S_JT}, 7
            """)
        else:
            a(f"s_mul_i32 s{S_TMP}, s{S_JT}, 448")
        a(f"""
        v_lshl_add_u32 v{T+1}, v{T}, 4, v{T+1}
        v_add_u32 v{V_WV}, s{S_TMP}, v{T+1}
        s_mov_b32 s{S_KW}, {256*WP}
        buffer_load_dwordx4 {vr(V_WD)}, v{V_WV}, {sr(SRD_W,4)}, s{S_KW} offen
        s_mov_b32 s{S_KW}, {384*WP}
        buffer_load_dwordx4 {vr(V_WD)}, v{V_WV}, {sr(SRD_W,4)}, s{S_KW} offen
        s_mov_b32 s{S_KW}, {512*WP}
        s_mov_b32 s{SRD_WW}, s{SRD_W}
        s_mov_b32 s{SRD_WW+1}, s{SRD_W+1}
        s_mov_b32 s{SRD_WW+2}, s{SRD_W+2}
        s_mov_b32 s{SRD_WW+3}, 0x20000
        s_and_b32 s{S_WOP+1}, s{S_WOP+1}, 0xffff
        s_and_b32 s{S_W2P+1}, s{S_W2P+1}, 0xffff
        s_mov_b32 s{S_WPK}, {128*WP}
        s_lshl_b32 s{S_GW}, s2, 3
        s_add_u32 s{S_GW}, s{S_GW}, s{S_WAVE}
        s_lshl_b32 s{S_GW}, s{S_GW}, 10
        v_lshlrev_b32 v{V_L16}, 4, v{V_LANE}
        """)
        pro_wait += 2
        nIss += 1
    NCOL = 16 * 2 * NB
    VCS = 216 - 4 * len(cs_slots)
    if FUSE:
        a(f"""
        s_add_u32 s{SRD_ST}, s{S_WS}, {ST_OFF}
        s_addc_u32 s{SRD_ST+1}, s{S_WS+1}, 0
        s_and_b32 s{SRD_ST+1}, s{SRD_ST+1}, 0xffff
        s_mov_b32 s{SRD_ST+2}, {65536 + 262144}
        s_mov_b32 s{SRD_ST+3}, 0x20000
        s_mov_b32 s{SRD_DBG}, s{S_DBGP}
        s_and_b32 s{SRD_DBG+1}, s{S_DBGP+1}, 0xffff
        s_mov_b32 s{SRD_DBG+2}, 256
        s_mov_b32 s{SRD_DBG+3}, 0x20000
        s_add_u32 s{S_NTI}, s{S_JT}, {16*typ}
        s_mov_b32 s{S_EV}, {(1<<2) | (1<<5) | (1<<12) | (1<<14) if G == 0 else (1<<2)}
        """)
        if G == 1:
            a(f"""
            s_lshl_b32 s{S_TMP}, s{S_MT}, 8
            s_lshl_b32 s{S_TMP2}, s{S_NTI}, 3
            s_add_u32 s{S_TMP}, s{S_TMP}, s{S_TMP2}
            s_lshl_b32 s{S_TMP2}, s{S_WQ}, 1
            s_add_u32 s{S_KW}, s{S_TMP}, s{S_TMP2}
            s_lshl_b32 s{S_TMP}, s{S_KW}, 11
            """)
            for i in range(4):
                a(f"buffer_load_dwordx4 {vr(V_XF+4*i)}, v{V_L16}, {sr(SRD_X,4)}, s{S_TMP} offen offset:{1024*i}")
            pro_wait += 4
    if qkv:
        if G == 0:
            a(f"""
            s_mul_i32 s{S_TMP}, s{S_NW}, 6
            s_lshl_b32 s{S_TMP2}, s{S_MW}, 1
            s_add_u32 s{S_BLK+0}, s{S_TMP}, s{S_TMP2}
            s_add_u32 s{S_BLK+0}, s{S_BLK+0}, 2
            s_add_u32 s{S_BLK+1}, s{S_BLK+0}, 1
            s_mov_b32 s{S_BLK+2}, s{S_TMP}
            s_add_u32 s{S_BLK+3}, s{S_TMP}, 1
            s_sub_u32 s{S_BLK+4}, s{S_TMP}, s{S_TMP2}
            s_add_u32 s{S_BLK+4}, s{S_BLK+4}, 4
            s_add_u32 s{S_BLK+5}, s{S_BLK+4}, 1
            """)
        else:
            a(f"s_mul_i32 s{S_TMP}, s{S_NW}, 6")
            for s in range(6):
                a(f"s_add_u32 s{S_BLK+s}, s{S_TMP}, {s}")
    else:
        a(f"s_lshl_b32 s{S_TMP2}, s{S_NW}, 3")
        for ps in range(3):
            a(f"""
            s_add_u32 s{S_TMP}, s{S_MW}, {(ps + 2*G) % 3}
            s_cmp_ge_u32 s{S_TMP}, 3
            s_cselect_b32 s{S_TMP3}, 3, 0
            s_sub_u32 s{S_TMP}, s{S_TMP}, s{S_TMP3}
            s_lshl_b32 s{S_TMP}, s{S_TMP}, 1
            s_add_u32 s{S_BLK+2*ps}, s{S_TMP}, s{S_TMP2}
            s_add_u32 s{S_BLK+2*ps+1}, s{S_BLK+2*ps}, 1
            """)
        a(f"s_add_u32 s{S_BLK+6}, s{S_NW}, 6")
    a(f"""
    v_and_b32 v{T}, 7, v{V_TT}
    v_xor_b32 v{T}, v{V_GG}, v{T}                    ; g ^ (t&7)
    v_lshlrev_b32 v{T}, 4, v{T}
    v_lshl_add_u32 v{T}, v{V_TT}, 7, v{T}
    s_lshl_b32 s{S_TMP}, s{S_MW}, 13
    s_add_u32 s{S_TMP}, s{S_TMP}, {G*2*G1_ASLOT}
    s_lshl_b32 s{S_TMP2}, s{S_NW}, 12
    s_add_u32 s{S_TMP3}, s{S_TMP}, s{S_TMP2}
    v_add_u32 v{V_RA+0}, s{S_TMP3}, v{T}
    v_xor_b32 v{V_RA+1}, 64, v{V_RA+0}
    s_xor_b32 s{S_TMP2}, s{S_TMP2}, 4096
    s_add_u32 s{S_TMP3}, s{S_TMP}, s{S_TMP2}         ; sp=1
    v_add_u32 v{V_RA+2}, s{S_TMP3}, v{T}
    v_xor_b32 v{V_RA+3}, 64, v{V_RA+2}
    """)
    if halo:
        a(f"""
        v_add_u32 v{V_RH+0}, {G1_BBASE + G1_HALO}, v{T}
        v_xor_b32 v{V_RH+1}, 64, v{V_RH+0}
        """)
    a(f"""
    v_lshrrev_b32 v{T}, 2, v{V_TT}                   ; r
    v_lshl_add_u32 v{T+1}, v{V_GG}, 3, v{T}          ; 8g + r
    v_mul_u32_u24 v{T+1}, {PB}, v{T+1}
    v_and_b32 v{T+2}, 3, v{V_LANE}
    v_lshl_add_u32 v{T+1}, v{T+2}, 3, v{T+1}         ; + c*8
    v_add_u32 v{T+1}, {G1_BBASE}, v{T+1}
    v_and_b32 v{T+2}, 1, v{V_GG}                     ; g&1
    """)
    if qkv:
        a(f"""
        v_lshrrev_b32 v{T+3}, 1, v{T}                ; bit1(r)
        v_lshl_or_b32 v{T+2}, v{T+2}, 1, v{T+3}      ; f
        """)
    for s in range(NB):
        a(f"""
        v_xor_b32 v{T+3}, s{S_BLK+s}, v{T+2}
        v_lshl_add_u32 v{V_RB+s}, v{T+3}, 5, v{T+1}
        """)
    nacc = (NB * 4) * 4
    for r in range(V_ACC, V_ACC + nacc):
        a(f"v_mov_b32 v{r}, 0")
    if halo:
        for r in range(V_HACC, V_HACC + 8):
            a(f"v_mov_b32 v{r}, 0")
    if FUSE:
        for r in range(4 * len(cs_slots)):
            a(f"v_mov_b32 v{VCS+r}, 0")
        for r in range(4):
            a(f"v_mov_b32 v{V_ONES+r}, 0x3f803f80")
    a(f"""
    s_mov_b32 s{S_BSC}, {G1_BSLOT}
    s_mov_b32 s{S_J}, 0
    s_mov_b32 s{S_RSL}, 0
    s_waitcnt vmcnt({pro_wait})
    s_barrier
    """)
    stamp_now(a, 33)
    if G == 1:
        if FUSE:
            a("s_waitcnt vmcnt(0)")
            row_stats(a, V_XF, V_WF, V_WF + 16, V_WF + 20, V_WF + 21)
            row_stats(a, V_XF + 8, V_WF, V_WF + 18, V_WF + 20, V_WF + 21)
            a(f"""
            v_lshlrev_b32 v{V_WF+20}, 24, v{V_LANE}
            s_lshl_b32 s{S_TMP}, s{S_KW}, 3
            buffer_store_dwordx4 {vr(V_WF+16)}, v{V_WF+20}, {sr(SRD_ST,4)}, s{S_TMP} offen sc0 sc1
            """)
        a("s_barrier")
    if STAMP: a(f"s_mov_b32 s{S_SB}, 0")

    def rd_x(i):
        sp, e = i >> 1, i & 1
        for kk in range(2):
            a(f"ds_read_b128 {vr(xf(i,kk))}, v{V_RA+sp*2+kk} offset:{e*2048}")
    def rd_w(s):
        for kk in range(2):
            for h in range(2):
                a(f"ds_read_b64_tr_b16 {vr(wf(s,kk)+2*h,2)}, v{V_RB+s} offset:{(32*kk+4*h)*PB}")
    def dma_list():
        L = []
        for i in range(4):
            L.append(f"""
            s_add_u32 m0, s{S_MAE}, {i*1024}
            s_add_u32 s{S_TMP}, s{S_KA}, {i*16384}
            buffer_load_dwordx4 v{V_DA}, {sr(SRD_XA,4)}, s{S_TMP} offen lds
            """)
        for i in range(nB):
            L.append(f"""
            s_add_u32 m0, s{S_MBE}, {i*1024}
            s_nop 0
            buffer_load_dwordx4 v{V_DB+i}, {sr(SRD_W,4)}, s{S_KB} offen lds
            """)
        if halo:
            L.append(f"""
            s_add_u32 m0, s{S_MBE}, s{S_HD}
            s_nop 0
            buffer_load_dwordx4 v{V_DH}, {sr(SRD_X,4)}, s{S_KH} offen lds
            """)
        if WARM:
            L.append(f"buffer_load_dwordx4 {vr(V_WD)}, v{V_WV}, {sr(SRD_WW,4)}, s{S_KW} offen")
        return L
    a(f"""
    s_mov_b32 s{S_MAE}, s{S_MA}
    s_mov_b32 s{S_MBE}, s{S_MB}
    """)
    reads = []
    for i in range(4):
        sp, e = i >> 1, i & 1
        for kk in range(2):
            reads.append((kk, f"ds_read_b128 {vr(xf(i,kk))}, v{V_RA+sp*2+kk} offset:{e*2048}"))
    if halo:
        for kk in range(2):
            reads.append((kk, f"ds_read_b128 {vr(hf(kk))}, v{V_RH+kk}"))
    for s_ in range(NB):
        for kk in range(2):
            for h in range(2):
                reads.append((kk, f"ds_read_b64_tr_b16 {vr(wf(s_,kk)+2*h,2)}, v{V_RB+s_} offset:{(32*kk+4*h)*PB}"))
    reads = [r for k_, r in reads if k_ == 0] + [r for k_, r in reads if k_ == 1]

    a.raw(".p2align 6")
    a.label(P + "_loop")
    if STAMP: a(f"s_memtime {sr(S_SA)}")
    dl = dma_list()
    step = max(3, len(reads) // len(dl))
    order = "rdfirst" if "rdfirst" in OPTS else "mix"
    if order == "rdfirst":
        for r in reads: a(r)
        for d in dl: a(d)
    else:
        di = 0
        for n_, r in enumerate(reads):
            a(r)
            if (n_ % step) == 1 and di < len(dl):
                a(dl[di]); di += 1
        while di < len(dl):
            a(dl[di]); di += 1
    if STAMP: a(f"s_memtime {sr(100)}")
    if FUSE:
        a(f"""
        s_bitcmp1_b32 s{S_EV}, s{S_J}
        s_cbranch_scc1 {P}_event
        """)
    a(f"s_waitcnt vmcnt({0 if 'strictwait' in OPTS else nIss}) lgkmcnt(0)")
    a.label(P + "_afterwait")
    if STAMP:
        a(f"""
        s_lshl_b32 s{S_SI}, s{S_J}, 1
        s_mov_b32 m0, s{S_SI}
        s_nop 3
        v_writelane_b32 v{V_STAMP}, s{S_SA}, m0
        s_add_u32 s{S_SI}, s{S_SI}, 63
        s_and_b32 m0, s{S_SI}, 63
        s_nop 3
        v_writelane_b32 v{V_STAMP}, s{S_SB}, m0
        s_memtime {sr(S_SC)}
        s_cmp_eq_u32 s{S_J}, 8
        s_cbranch_scc0 {P}_nost
        s_waitcnt lgkmcnt(0)
        v_writelane_b32 v{V_STAMP}, s{S_SA}, 40
        v_writelane_b32 v{V_STAMP}, s100, 41
        v_writelane_b32 v{V_STAMP}, s{S_SC}, 42
        """)
        a.label(P + "_nost")
    a("s_barrier")
    if STAMP: a(f"s_memtime {sr(S_SB)}")
    bk = Collect()
    bk(f"""
    s_add_u32 s{S_KA}, s{S_KA}, 128
    s_and_b32 s{S_KA}, s{S_KA}, 0x7ff
    s_xor_b32 s{S_MA}, s{S_MA}, {G1_ASLOT}
    s_cmp_ge_u32 s{S_J}, {14 if G == 0 else 13}
    s_cselect_b32 s{SRD_XA+2}, 0, s{SRD_XA+2}
    s_cselect_b32 s{S_MAE}, {LDS_DUMP}, s{S_MA}
    s_add_u32 s{S_KH}, s{S_KH}, 128
    s_and_b32 s{S_KH}, s{S_KH}, 0x7ff
    s_add_u32 s{S_KW}, s{S_KW}, s{S_WPK}
    s_add_u32 s{S_KB}, s{S_KB}, {64*WP}
    s_cmp_eq_u32 s{S_KB}, {1024*WP}
    s_cselect_b32 s{S_KB}, 0, s{S_KB}
    s_add_u32 s{S_BSL}, s{S_BSL}, 1
    s_add_u32 s{S_MB}, s{S_MB}, {G1_BSLOT}
    s_cmp_eq_u32 s{S_BSL}, 3
    s_cselect_b32 s{S_TMP}, {3*G1_BSLOT}, 0
    s_cselect_b32 s{S_BSL}, 0, s{S_BSL}
    s_sub_u32 s{S_MB}, s{S_MB}, s{S_TMP}
    s_cmp_ge_u32 s{S_J}, 13
    s_cselect_b32 s{S_MBE}, {LDS_DUMP}, s{S_MB}
    s_cselect_b32 s{SRD_W+2}, 0, s{SRD_W+2}
    s_cselect_b32 s{SRD_X+2}, 0, s{SRD_X+2}
    s_add_u32 s{S_RSL}, s{S_RSL}, 1
    s_cmp_eq_u32 s{S_RSL}, 3
    s_cselect_b32 s{S_BD}, {(-2*G1_BSLOT) & 0xffffffff}, s{S_BSC}
    s_cselect_b32 s{S_RSL}, 0, s{S_RSL}
    """)
    for r in range(4):
        bk(f"v_xor_b32 v{V_RA+r}, {G1_ASLOT}, v{V_RA+r}")
    for s_ in range(NB):
        bk(f"v_add_u32 v{V_RB+s_}, s{S_BD}, v{V_RB+s_}")
    if halo:
        for kk in range(2):
            bk(f"v_add_u32 v{V_RH+kk}, s{S_BD}, v{V_RH+kk}")
    a("s_setprio 1")
    mf = []
    for kk in range(2):
        for s_ in range(NB):
            for i in range(4):
                mf.append(f"v_mfma_f32_16x16x32_bf16 {vr(acc(s_,i))}, {vr(wf(s_,kk))}, {vr(xf(i,kk))}, {vr(acc(s_,i))}")
        if halo:
            for s_ in range(2):
                mf.append(f"v_mfma_f32_16x16x32_bf16 {vr(V_HACC+4*s_)}, {vr(wf(s_,kk))}, {vr(hf(kk))}, {vr(V_HACC+4*s_)}")
    interleave(a, mf, bk.L, start=2, per=1)
    if FUSE:
        a(f"""
        s_cmp_lt_u32 s{S_J}, 2
        s_cbranch_scc0 {P}_nocs
        """)
        for kk in range(2):
            for ci, s_ in enumerate(cs_slots):
                a(f"v_mfma_f32_16x16x32_bf16 {vr(VCS+4*ci)}, {vr(wf(s_,kk))}, {vr(V_ONES)}, {vr(VCS+4*ci)}")
        a.label(P + "_nocs")
    a(f"""
    s_setprio 0
    s_add_u32 s{S_J}, s{S_J}, 1
    s_cmp_lt_u32 s{S_J}, 16
    """)
    if G == 0:
        a(f"""
        s_barrier
        s_cbranch_scc1 {P}_loop
        s_branch {P}_post
        """)
    else:
        a(f"""
        s_cbranch_scc0 {P}_post
        s_barrier
        s_branch {P}_loop
        """)
    if FUSE:
        a.label(P + "_event")
        if G == 0:
            a(f"""
            s_cmp_eq_u32 s{S_J}, 2
            s_cbranch_scc0 {P}_ev5
            """)
        a(f"""
        v_lshlrev_b32 v{T}, 24, v{V_TT}
        v_lshl_add_u32 v{T}, v{V_GG}, 4, v{T}
        s_lshl_b32 s{S_TMP2}, s{S_NTI}, 3
        s_add_u32 s{S_TMP2}, s{S_TMP2}, s{S_MT}
        s_lshl_b32 s{S_TMP2}, s{S_TMP2}, 10
        s_add_u32 s{S_TMP2}, s{S_TMP2}, 65536
        """)
        for ci, s_ in enumerate(cs_slots):
            a(f"""
            s_lshl_b32 s{S_TMP}, s{S_BLK+s_}, 6
            s_add_u32 s{S_TMP}, s{S_TMP}, s{S_TMP2}
            buffer_store_dwordx4 {vr(VCS+4*ci)}, v{T}, {sr(SRD_ST,4)}, s{S_TMP} offen sc0 sc1
            """)
        a(f"""
        s_waitcnt vmcnt({nIss + len(cs_slots)}) lgkmcnt(0)
        s_branch {P}_afterwait
        """)
        if G == 0:
            a.label(P + "_ev5")
            a(f"""
            s_cmp_eq_u32 s{S_J}, 14
            s_cbranch_scc1 {P}_ev14
            s_sub_u32 s{S_TMP}, s{S_MT}, 1
            s_max_i32 s{S_TMP}, s{S_TMP}, 0
            s_lshl_b32 s{S_TMP}, s{S_TMP}, 2
            s_lshl_b32 s{S_TMP2}, s{S_NTI}, 2
            s_add_u32 s{S_TMP2}, s{S_TMP2}, 32
            s_lshl_b32 s{S_TMP3}, s{S_MT}, 2
            v_mov_b32 v{T}, 0x1000
            v_writelane_b32 v{T}, s{S_TMP3}, 0
            v_writelane_b32 v{T}, s{S_TMP2}, 1
            s_cmp_lg_u32 s{S_WAVE}, 0
            s_cselect_b32 s{S_TMP2}, 0x1000, 0
            s_cmp_eq_u32 s{S_J}, 5
            s_cbranch_scc0 {P}_ev12
            v_mov_b32 v{T+1}, 1
            buffer_atomic_add v{T+1}, v{T}, {sr(SRD_DBG,4)}, s{S_TMP2} offen sc1
            s_waitcnt vmcnt({nIss + 1}) lgkmcnt(0)
            s_branch {P}_afterwait
            """)
            a.label(P + "_ev12")
            a(f"""
            v_writelane_b32 v{T}, s{S_TMP}, 2
            s_nop 1
            buffer_load_dword v{V_CHK}, v{T}, {sr(SRD_DBG,4)}, s{S_TMP2} offen sc0 sc1
            s_waitcnt vmcnt({nIss + 1}) lgkmcnt(0)
            s_branch {P}_afterwait
            """)
            a.label(P + "_ev14")
            a(f"""
            s_cmp_eq_u32 s{S_WQ}, 0
            s_cbranch_scc0 {P}_ev14b
            s_lshl_b32 s{S_TMP}, s{S_MT}, 11
            s_sub_u32 s{S_TMP}, s{S_TMP}, 128
            v_add_u32 v{T}, s{S_TMP}, v{V_L16}
            v_max_i32 v{T}, 0, v{T}
            s_add_u32 s{S_TMP}, s{S_TMP}, 1024
            v_add_u32 v{T+1}, s{S_TMP}, v{V_L16}
            s_mov_b32 m0, {G1_STAT}
            s_nop 0
            buffer_load_dwordx4 v{T}, {sr(SRD_ST,4)}, 0 offen sc0 sc1 lds
            s_mov_b32 m0, {G1_STAT + 1024}
            s_nop 0
            buffer_load_dwordx4 v{T+1}, {sr(SRD_ST,4)}, 0 offen sc0 sc1 lds
            buffer_load_dwordx4 v{T+1}, {sr(SRD_ST,4)}, 0 offen offset:1024 sc0 sc1 lds
            s_waitcnt vmcnt({nIss + 3}) lgkmcnt(0)
            s_branch {P}_afterwait
            """)
            a.label(P + "_ev14b")
            a(f"""
            s_mul_i32 s{S_TMP}, s{S_WQ}, 3072
            s_sub_u32 s{S_TMP}, s{S_TMP}, 3072
            s_add_u32 m0, s{S_TMP}, {G1_CSP}
            s_lshl_b32 s{S_TMP2}, s{S_NTI}, 13
            s_add_u32 s{S_TMP2}, s{S_TMP2}, s{S_TMP}
            s_add_u32 s{S_TMP2}, s{S_TMP2}, 65536
            buffer_load_dwordx4 v{V_L16}, {sr(SRD_ST,4)}, s{S_TMP2} offen sc0 sc1 lds
            buffer_load_dwordx4 v{V_L16}, {sr(SRD_ST,4)}, s{S_TMP2} offen offset:1024 sc0 sc1 lds
            s_cmp_eq_u32 s{S_WQ}, 3
            s_cselect_b32 s{S_TMP}, {LDS_DUMP}, m0
            s_mov_b32 m0, s{S_TMP}
            s_nop 0
            buffer_load_dwordx4 v{V_L16}, {sr(SRD_ST,4)}, s{S_TMP2} offen offset:2048 sc0 sc1 lds
            s_waitcnt vmcnt({nIss + 3}) lgkmcnt(0)
            s_branch {P}_afterwait
            """)
    a.label(P + "_post")
    if STAMP:
        a(f"""
        s_waitcnt lgkmcnt(0)
        v_writelane_b32 v{V_STAMP}, s{S_SB}, 31
        """)
    stamp_now(a, 34)
    if FUSE:
        if G == 0:
            a(f"""
            v_mov_b32 v{T}, 0
            v_writelane_b32 v{T}, 32, 0
            v_writelane_b32 v{T}, 8, 1
            v_writelane_b32 v{T}, 32, 2
            s_nop 1
            v_cmp_ne_u32 vcc, v{T}, v{V_CHK}
            s_nop 3
            s_and_b32 s{S_TMP}, vcc_lo, 7
            """)
            if "forceslow" in OPTS: a(f"s_mov_b32 s{S_TMP}, 1")
            a(f"""
            v_mov_b32 v{T}, {G1_VERD}
            v_mov_b32 v{T+1}, s{S_TMP}
            s_cmp_eq_u32 s{S_WAVE}, 0
            s_cbranch_scc0 {P}_red
            ds_write_b32 v{T}, v{T+1}
            """)
        a.label(P + "_red")
        if G == 0:
            a(f"""
            s_lshl_b32 s{S_TMP}, s{S_WQ}, 8
            v_lshl_add_u32 v{T}, v{V_LANE}, 2, s{S_TMP}  ; thread * 4
            v_add_u32 v{T+1}, {G1_CSP}, v{T}
            """)
            for m in range(8):
                a(f"ds_read_b32 v{V_XF+m}, v{T+1} offset:{1024*m}")
            a(f"""
            v_min_u32 v{T}, {4*NCOL - 4}, v{T}
            v_add_u32 v{T}, {G1_CS}, v{T}
            v_cmp_gt_u32 vcc, {4*NCOL + G1_CSP}, v{T+1}
            s_waitcnt lgkmcnt(0)
            """)
            for m in range(1, 8):
                a(f"v_add_f32 v{V_XF}, v{V_XF}, v{V_XF+m}")
            a(f"""
            s_and_saveexec_b64 {sr(S_TMP2)}, vcc
            ds_write_b32 v{T}, v{V_XF}
            s_mov_b64 exec, -1
            s_waitcnt lgkmcnt(0)
            """)
        a(f"""
        s_barrier
        v_mov_b32 v{T}, {G1_VERD}
        ds_read_b32 v{T+1}, v{T}
        s_waitcnt lgkmcnt(0)
        v_readfirstlane_b32 s{S_TMP}, v{T+1}
        s_nop 3
        s_cmp_eq_u32 s{S_TMP}, 0
        s_cbranch_scc1 {P}_fast
        s_barrier
        s_mov_b32 s{SRD_X+2}, {2048*2048}
        s_mov_b32 s{SRD_W+2}, {1024*WP}
        s_mov_b32 s{S_J}, s{S_WAVE}
        """)
        a.label(P + "_slow1")
        a(f"""
        s_lshl_b32 s{S_TMP}, s{S_MT}, 8
        s_add_u32 s{S_TMP}, s{S_TMP}, s{S_J}
        s_sub_u32 s{S_TMP}, s{S_TMP}, 16
        s_max_i32 s{S_TMP}, s{S_TMP}, 0
        s_lshl_b32 s{S_TMP}, s{S_TMP}, 11
        buffer_load_dwordx4 {vr(V_XF)}, v{V_L16}, {sr(SRD_X,4)}, s{S_TMP} offen
        buffer_load_dwordx4 {vr(V_XF+4)}, v{V_L16}, {sr(SRD_X,4)}, s{S_TMP} offen offset:1024
        s_waitcnt vmcnt(0)
        """)
        row_stats(a, V_XF, V_WF, V_WF + 16, V_WF + 20, V_WF + 21)
        a(f"""
        s_lshl_b32 s{S_TMP}, s{S_J}, 3
        s_add_u32 s{S_TMP}, s{S_TMP}, {G1_STAT}
        v_mov_b32 v{T}, s{S_TMP}
        ds_write_b64 v{T}, {vr(V_WF+16,2)}
        s_add_u32 s{S_J}, s{S_J}, 8
        s_cmp_lt_u32 s{S_J}, 272
        s_cbranch_scc1 {P}_slow1
        v_min_u32 v{T}, {CH-1}, v{V_LANE}
        """)
        if qkv:
            a(f"""
            v_cmp_le_u32 vcc, 12, v{T}
            s_nop 1
            v_cndmask_b32 v{T+1}, 0, 1, vcc              ; hh
            v_mul_u32_u24 v{T+2}, 12, v{T+1}
            v_sub_u32 v{T+2}, v{T}, v{T+2}
            v_lshrrev_b32 v{T+3}, 2, v{T+2}              ; part
            v_and_b32 v{T+2}, 3, v{T+2}
            v_lshlrev_b32 v{T+3}, 11, v{T+3}
            v_lshl_add_u32 v{T+3}, v{T+1}, 6, v{T+3}
            v_lshl_add_u32 v{T+3}, v{T+2}, 4, v{T+3}
            s_lshl_b32 s{S_TMP}, s{S_JT}, 7
            v_add_u32 v{T+3}, s{S_TMP}, v{T+3}
            """)
        else:
            a(f"""
            s_mul_i32 s{S_TMP}, s{S_JT}, 448
            v_lshl_add_u32 v{T+3}, v{T}, 4, s{S_TMP}
            """)
        for r in range(8):
            a(f"v_mov_b32 v{V_WF+r}, 0")
        a(f"""
        s_mul_i32 s{S_TMP}, s{S_WAVE}, {128*WP}
        s_mov_b32 s{S_J}, 0
        """)
        a.label(P + "_slow2")
        a(f"""
        buffer_load_dwordx4 {vr(V_XF)}, v{T+3}, {sr(SRD_W,4)}, s{S_TMP} offen
        s_add_u32 s{S_TMP}, s{S_TMP}, {WP}
        s_add_u32 s{S_J}, s{S_J}, 1
        s_waitcnt vmcnt(0)
        """)
        for r in range(4):
            a(f"""
            v_lshlrev_b32 v{V_XF+4}, 16, v{V_XF+r}
            v_and_b32 v{V_XF+5}, 0xffff0000, v{V_XF+r}
            v_pk_add_f32 {vr(V_WF+2*r,2)}, {vr(V_WF+2*r,2)}, {vr(V_XF+4,2)}
            """)
        a(f"""
        s_cmp_lt_u32 s{S_J}, 128
        s_cbranch_scc1 {P}_slow2
        s_lshl_b32 s{S_TMP}, s{S_WAVE}, 10
        s_add_u32 s{S_TMP}, s{S_TMP}, {G1_CSP}
        v_lshl_add_u32 v{T}, v{T}, 5, s{S_TMP}
        ds_write_b128 v{T}, {vr(V_WF)}
        ds_write_b128 v{T}, {vr(V_WF+4)} offset:16
        v_mov_b32 v{T}, {G1_VERD}
        v_mov_b32 v{T+1}, 0
        ds_write_b32 v{T}, v{T+1}
        s_waitcnt lgkmcnt(0)
        s_barrier
        s_branch {P}_red
        """)
        a.label(P + "_fast")
    if "nowarm2" not in OPTS:
        a(f"""
        s_mov_b32 s{SRD_XA}, s{S_WOP}
        s_mov_b32 s{SRD_XA+1}, s{S_WOP+1}
        s_mov_b32 s{SRD_XA+2}, {1024*2048}
        s_mov_b32 s{SRD_W}, s{S_W2P}
        s_mov_b32 s{SRD_W+1}, s{S_W2P+1}
        s_mov_b32 s{SRD_W+2}, {3584*2048}
        s_lshl_b32 s{S_TMP}, s{S_GW}, 2
        buffer_load_dwordx4 {vr(V_HF)}, v{V_L16}, {sr(SRD_XA,4)}, s{S_GW} offen
        """)
        for i in range(4):
            a(f"buffer_load_dwordx4 {vr(V_HF)}, v{V_L16}, {sr(SRD_W,4)}, s{S_TMP} offen offset:{i*1024}")
    if "slabwarm" in OPTS:
        a(f"""
        s_add_u32 s{SRD_WW}, s{S_WS}, {64 << 20}
        s_addc_u32 s{SRD_WW+1}, s{S_WS+1}, 0
        s_and_b32 s{SRD_WW+1}, s{SRD_WW+1}, 0xffff
        s_mov_b32 s{SRD_WW+2}, {16 << 20}
        s_and_b32 s{S_TMP}, s2, 3
        s_lshr_b32 s{S_TMP2}, s{S_WAVE}, 1
        s_cmp_eq_u32 s{S_TMP}, s{S_TMP2}
        s_cselect_b32 s{SRD_WW+2}, 0, s{SRD_WW+2}
        s_lshl_b32 s{S_TMP}, s{S_GW}, 3
        s_add_u32 s{S_TMP2}, s{S_TMP}, 4096
        """)
        for i in range(8):
            a(f"buffer_load_dwordx4 {vr(V_WD)}, v{V_L16}, {sr(SRD_WW,4)}, s{S_TMP if i < 4 else S_TMP2} offen offset:{(i%4)*1024}")
    stamp_now(a, 35)
    for i in range(4):
        a(f"""
        s_lshl_b32 s{S_TMP}, s{S_MW}, 6
        s_lshl_b32 s{S_TMP2}, s{S_NW}, 5
        s_xor_b32 s{S_TMP2}, s{S_TMP2}, {16*i}
        s_add_u32 s{S_TMP}, s{S_TMP}, s{S_TMP2}
        s_add_u32 s{S_TB+i}, s{S_TMP}, {128*G}
        """)
    V_ST = V_XF; V_CSV = V_WF
    if FUSE:
        for i in range(4):
            a(f"""
            s_add_u32 s{S_TMP}, s{S_TB+i}, {16 + G1_STAT//8}
            v_add_u32 v{T+4}, s{S_TMP}, v{V_TT}
            v_lshlrev_b32 v{T+4}, 3, v{T+4}
            ds_read_b64 {vr(V_ST+2*i,2)}, v{T+4}
            """)
        if halo:
            a(f"""
            v_lshlrev_b32 v{T+4}, 3, v{V_TT}
            v_add_u32 v{T+4}, {G1_STAT}, v{T+4}
            ds_read_b64 {vr(V_ST+8,2)}, v{T+4}
            """)
        for s_ in range(NB):
            a(f"""
            s_lshl_b32 s{S_TMP}, s{S_BLK+s_}, 6
            s_add_u32 s{S_TMP}, s{S_TMP}, {G1_CS}
            v_lshl_add_u32 v{T+4}, v{V_GG}, 4, s{S_TMP}
            ds_read_b128 {vr(V_CSV+4*s_)}, v{T+4}
            """)
        a("s_waitcnt lgkmcnt(0)")
    def fixup(ab, s, st, o, relu):
        c = V_CSV + 4 * s
        if FUSE:
            a(f"""
            v_pk_fma_f32 {vr(ab,2)}, {vr(c,2)}, {vr(st,2)}, {vr(ab,2)} op_sel_hi:[1,0,1] neg_lo:[0,1,0] neg_hi:[0,1,0]
            v_pk_fma_f32 {vr(ab+2,2)}, {vr(c+2,2)}, {vr(st,2)}, {vr(ab+2,2)} op_sel_hi:[1,0,1] neg_lo:[0,1,0] neg_hi:[0,1,0]
            v_pk_mul_f32 {vr(ab,2)}, {vr(ab,2)}, {vr(st,2)} op_sel:[0,1] op_sel_hi:[1,1]
            v_pk_mul_f32 {vr(ab+2,2)}, {vr(ab+2,2)}, {vr(st,2)} op_sel:[0,1] op_sel_hi:[1,1]
            """)
        a(f"""
        v_cvt_pk_bf16_f32 v{o}, v{ab}, v{ab+1}
        v_cvt_pk_bf16_f32 v{o+1}, v{ab+2}, v{ab+3}
        """)
        if relu:
            a(f"""
            v_pk_max_i16 v{o}, v{o}, 0
            v_pk_max_i16 v{o+1}, v{o+1}, 0
            """)
    V_SIG = T + 8
    a(f"""
    v_and_b32 v{T}, 1, v{V_GG}
    v_lshrrev_b32 v{T+1}, 1, v{V_GG}
    v_lshl_or_b32 v{V_SIG}, v{T}, 1, v{T+1}
    """)
    if not qkv:
        V_PA = T + 9; V_SA = T + 10
        a(f"""
        v_lshl_add_u32 v{V_PA}, v{V_SIG}, 4, v{V_TT}
        v_lshlrev_b32 v{V_PA}, 4, v{V_PA}            ; (sigma*16 + t)*16
        s_lshl_b32 s{S_TMP}, s{S_NW}, 1
        v_add_u32 v{T+1}, s{S_TMP}, v{T+1}
        v_lshl_add_u32 v{V_SA}, v{T+1}, 4, v{V_TT}
        v_lshlrev_b32 v{V_SA}, 4, v{V_SA}
        v_lshl_add_u32 v{V_SA}, v{T}, 3, v{V_SA}
        """)
        for i in range(4):
            a(f"""
            s_lshr_b32 s{S_TMP}, s{S_TB+i}, 4
            s_lshl_b32 s{S_TMP2}, s{S_MT}, 4
            s_add_u32 s{S_TMP}, s{S_TMP}, s{S_TMP2}
            s_mul_i32 s{S_TB+i}, s{S_TMP}, {MBLK_PITCH}
            """)
        a(f"""
        s_mul_i32 s{S_TMP2}, s{S_JT}, 7
        s_add_u32 s{S_TMP2}, s{S_TMP2}, 32
        """)
        for ps in range(4):
            a(f"""
            s_lshr_b32 s{S_TMP}, s{S_BLK+2*ps}, 1
            s_add_u32 s{S_TMP}, s{S_TMP}, s{S_TMP2}
            s_lshl_b32 s{S_PO+ps}, s{S_TMP}, 10
            """)
        ob = [V_XF + 16, V_XF + 20, V_XF + 24, V_XF + 28]
        n = 0
        for i in range(4):
            st = V_ST + 2 * i
            for ps in range(3):
                o = ob[n % 4]; n += 1
                fixup(acc(2*ps, i), 2*ps, st, o, True)
                fixup(acc(2*ps+1, i), 2*ps+1, st, o+2, True)
                a(f"""
                s_add_u32 s{S_TMP}, s{S_TB+i}, s{S_PO+ps}
                s_nop 0
                v_permlane16_swap_b32 v{o}, v{o+2}
                v_permlane16_swap_b32 v{o+1}, v{o+3}
                s_nop 1
                buffer_store_dwordx4 {vr(o)}, v{V_PA}, {sr(SRD_O,4)}, s{S_TMP} offen {STH}
                """)
            o = ob[n % 4]; n += 1
            fixup(acc(6, i), 6, st, o, True)
            a(f"""
            s_add_u32 s{S_TMP}, s{S_TB+i}, s{S_PO+3}
            s_nop 1
            buffer_store_dwordx2 {vr(o,2)}, v{V_SA}, {sr(SRD_O,4)}, s{S_TMP} offen {STH}
            """)
        stamp_now(a, 36); stamp_now(a, 51, True)
        stamp_dump(a, S_WS, S_WAVE, 32 << 20)
        a("s_endpgm")
        return
    V_WA = T + 9
    a(f"""
    v_mul_u32_u24 v{V_WA}, {AT_PITCH}, v{V_TT}
    v_lshl_add_u32 v{V_WA}, v{V_GG}, 3, v{V_WA}      ; t*P + g*8
    """)
    ob = [V_XF + 16, V_XF + 18, V_XF + 20, V_XF + 22, V_XF + 24, V_XF + 26, V_XF + 28, V_XF + 30]
    n = 0
    for i in range(4):
        a(f"""
        s_add_u32 s{S_TMP}, s{S_TB+i}, 16
        s_mul_i32 s{S_TMP3}, s{S_TMP}, {AT_PITCH}
        """)
        for s in range(6):
            o = ob[n % 8]; n += 1
            fixup(acc(s, i), s, V_ST + 2 * i, o, False)
            a(f"""
            s_lshl_b32 s{S_TMP}, s{S_BLK+s}, 5
            s_add_u32 s{S_TMP}, s{S_TMP}, s{S_TMP3}
            v_add_u32 v{T}, s{S_TMP}, v{V_WA}
            ds_write_b64 v{T}, {vr(o,2)}
            """)
            if "slowepi" in OPTS: a("s_waitcnt lgkmcnt(0)")
    if halo:
        for s in range(2):
            o = ob[n % 8]; n += 1
            fixup(V_HACC + 4 * s, s, V_ST + 8, o, False)
            a(f"""
            s_lshl_b32 s{S_TMP}, s{S_BLK+s}, 5
            v_add_u32 v{T}, s{S_TMP}, v{V_WA}
            ds_write_b64 v{T}, {vr(o,2)}
            """)
    a(f"""
    s_waitcnt lgkmcnt(0)
    s_barrier
    """)
    stamp_now(a, 36)
    a("s_branch g1_attn")

def g1_attn(a):
    T = V_T
    V_SIG = T + 8
    a.label("g1_attn")
    VQ = 0; VK = 1; VV = 3
    VE = 5; VO = 6
    R = 8
    a(f"""
    s_lshl_b32 s{S_TMP}, s{S_WAVE}, 5                ; 32 w
    v_lshlrev_b32 v{T}, 1, v{V_TT}                   ; 2n
    v_add_u32 v{T+1}, s{S_TMP}, v{T}                 ; 32w + 2n
    v_add_u32 v{T+2}, 16, v{T+1}
    v_mul_u32_u24 v{T+2}, {AT_PITCH}, v{T+2}
    v_lshl_add_u32 v{VQ}, v{V_GG}, 4, v{T+2}         ; + g*16
    v_add_u32 v{VK+1}, 64, v{VQ}
    v_add_u32 v{T+2}, -16, v{T+1}                    ; rho_k(kb=0)
    v_max_i32 v{T+2}, 0, v{T+2}
    v_mul_u32_u24 v{T+2}, {AT_PITCH}, v{T+2}
    v_lshl_add_u32 v{T+2}, v{V_GG}, 4, v{T+2}
    v_add_u32 v{VK}, 64, v{T+2}
    v_lshrrev_b32 v{T}, 2, v{V_TT}
    v_lshl_add_u32 v{T}, v{V_GG}, 2, v{T}            ; a
    v_lshlrev_b32 v{T}, 1, v{T}
    v_add_u32 v{T}, s{S_TMP}, v{T}                   ; 32w + 2a
    v_and_b32 v{T+3}, 3, v{V_LANE}
    v_lshlrev_b32 v{T+3}, 3, v{T+3}
    v_add_u32 v{T+3}, 128, v{T+3}                    ; v part + c*8
    v_add_u32 v{T+2}, 16, v{T}
    v_mul_u32_u24 v{T+2}, {AT_PITCH}, v{T+2}
    v_add_u32 v{VV+1}, v{T+2}, v{T+3}
    v_add_u32 v{T+2}, -16, v{T}
    v_max_i32 v{T+2}, 0, v{T+2}
    v_mul_u32_u24 v{T+2}, {AT_PITCH}, v{T+2}
    v_add_u32 v{VV}, v{T+2}, v{T+3}
    v_lshlrev_b32 v{T}, 2, v{V_GG}
    v_sub_u32 v{VE}, v{V_TT}, v{T}
    """)
    for kb in range(2):
        for i in range(4):
            a(f"""
            v_add_u32 v{T}, {(16*(1-kb) - i)}, v{VE}
            v_cmp_ge_u32 {sr(S_MASK + 2*(4*kb+i))}, 7, v{T}
            """)
    a(f"""
    s_or_b32 s{S_TMP}, s{S_MT}, s{S_WAVE}
    s_cmp_eq_u32 s{S_TMP}, 0
    s_cbranch_scc0 g1_attn_m
    """)
    for i in range(4):
        a(f"s_mov_b64 {sr(S_MASK + 2*i)}, 0")
    a.label("g1_attn_m")
    a(f"""
    v_and_b32 v{T}, 7, v{V_TT}
    v_lshlrev_b32 v{T}, 1, v{T}
    v_lshl_add_u32 v{T}, v{V_SIG}, 4, v{T}
    v_lshlrev_b32 v{T}, 4, v{T}
    v_lshrrev_b32 v{T+1}, 3, v{V_TT}
    s_mov_b32 s{S_TMP}, {MBLK_PITCH}
    v_mul_lo_u32 v{T+1}, v{T+1}, s{S_TMP}
    v_add_u32 v{VO}, v{T}, v{T+1}
    s_lshl_b32 s{S_TMP}, s{S_MT}, 4
    s_lshl_b32 s{S_TMP2}, s{S_WAVE}, 1
    s_add_u32 s{S_TMP}, s{S_TMP}, s{S_TMP2}
    s_mul_i32 s{S_TMP}, s{S_TMP}, {MBLK_PITCH}
    s_lshl_b32 s{S_TMP2}, s{S_JT}, 11
    s_add_u32 s{S_TMP3}, s{S_TMP}, s{S_TMP2}
    v_mov_b32 v{T+10}, 0xff800000                    ; -inf
    v_mov_b32 v{T+4}, 0x3e3504f3
    v_mov_b32 v{T+5}, 0x3e3504f3
    v_mov_b32 v{T+6}, 0x3fb8aa3b
    v_mov_b32 v{T+7}, 0x3fb8aa3b
    """)
    NEG = T + 10; CSC = T + 4; CL2 = T + 6
    units = [(hh, p) for hh in range(2) for p in range(2)]
    UR = 32
    for u, (hh, p) in enumerate(units):
        b = R + u * UR
        off = p * AT_PITCH + hh * 192
        a(f"""
        ds_read_b128 {vr(b)}, v{VQ} offset:{off}
        ds_read_b128 {vr(b+4)}, v{VK} offset:{off}
        ds_read_b128 {vr(b+8)}, v{VK+1} offset:{off}
        """)
        for db in range(2):
            for kb in range(2):
                a(f"ds_read_b64_tr_b16 {vr(b+12+4*db+2*kb,2)}, v{VV+kb} offset:{off+32*db}")
    a("s_waitcnt lgkmcnt(0)")
    for u in range(4):
        b = R + u * UR
        a(f"""
        v_mfma_f32_16x16x32_bf16 {vr(b+20)}, {vr(b+4)}, {vr(b)}, 0
        v_mfma_f32_16x16x32_bf16 {vr(b+24)}, {vr(b+8)}, {vr(b)}, 0
        """)
    a("s_nop 7")
    for u, (hh, p) in enumerate(units):
        b = R + u * UR
        z = b + 20
        t0 = b + 28; t1 = b + 29
        for i in range(0, 8, 2):
            a(f"""
            v_cvt_pk_bf16_f32 v{t0}, v{z+i}, v{z+i+1}
            v_lshlrev_b32 v{z+i}, 16, v{t0}
            v_and_b32 v{z+i+1}, 0xffff0000, v{t0}
            v_pk_mul_f32 {vr(z+i,2)}, {vr(z+i,2)}, {vr(CSC,2)}
            v_cvt_pk_bf16_f32 v{t0}, v{z+i}, v{z+i+1}
            v_lshlrev_b32 v{z+i}, 16, v{t0}
            v_and_b32 v{z+i+1}, 0xffff0000, v{t0}
            v_cndmask_b32 v{z+i}, v{NEG}, v{z+i}, {sr(S_MASK+2*i)}
            v_cndmask_b32 v{z+i+1}, v{NEG}, v{z+i+1}, {sr(S_MASK+2*i+2)}
            """)
        a(f"""
        v_max3_f32 v{t0}, v{z}, v{z+1}, v{z+2}
        v_max3_f32 v{t0}, v{t0}, v{z+3}, v{z+4}
        v_max3_f32 v{t0}, v{t0}, v{z+5}, v{z+6}
        v_max_f32 v{t0}, v{t0}, v{z+7}
        """)
        xlane_max(a, t0, t1)
        for i in range(0, 8, 2):
            a(f"""
            v_pk_add_f32 {vr(z+i,2)}, {vr(z+i,2)}, {vr(t0,2)} op_sel_hi:[1,0] neg_lo:[0,1] neg_hi:[0,1]
            v_pk_mul_f32 {vr(z+i,2)}, {vr(z+i,2)}, {vr(CL2,2)}
            """)
        for i in range(8):
            a(f"v_exp_f32 v{z+i}, v{z+i}")
        a(f"""
        s_nop 0
        v_pk_add_f32 {vr(t0,2)}, {vr(z,2)}, {vr(z+2,2)}
        v_pk_add_f32 {vr(t0+2,2)}, {vr(z+4,2)}, {vr(z+6,2)}
        v_pk_add_f32 {vr(t0,2)}, {vr(t0,2)}, {vr(t0+2,2)}
        v_add_f32 v{t0}, v{t0}, v{t1}
        """)
        xlane_sum(a, t0, t1)
        a(f"""
        v_rcp_f32 v{t0}, v{t0}
        s_nop 0
        """)
        for i in range(0, 8, 2):
            a(f"v_pk_mul_f32 {vr(z+i,2)}, {vr(z+i,2)}, {vr(t0,2)} op_sel_hi:[1,0]")
        for i in range(4):
            a(f"v_cvt_pk_bf16_f32 v{b+i}, v{z+2*i}, v{z+2*i+1}")
        a(f"""
        s_nop 1
        v_mfma_f32_16x16x32_bf16 {vr(b+4)}, {vr(b+12)}, {vr(b)}, 0
        v_mfma_f32_16x16x32_bf16 {vr(b+8)}, {vr(b+16)}, {vr(b)}, 0
        """)
    a("s_nop 7")
    for u, (hh, p) in enumerate(units):
        b = R + u * UR
        o = b + 20
        a(f"""
        v_cvt_pk_bf16_f32 v{o}, v{b+4}, v{b+5}
        v_cvt_pk_bf16_f32 v{o+1}, v{b+6}, v{b+7}
        v_cvt_pk_bf16_f32 v{o+2}, v{b+8}, v{b+9}
        v_cvt_pk_bf16_f32 v{o+3}, v{b+10}, v{b+11}
        s_nop 1
        v_permlane16_swap_b32 v{o}, v{o+2}
        v_permlane16_swap_b32 v{o+1}, v{o+3}
        s_nop 1
        buffer_store_dwordx4 {vr(o)}, v{VO}, {sr(SRD_O,4)}, s{S_TMP3} offen offset:{p*16 + hh*1024} {STF}
        """)
    stamp_now(a, 37); stamp_now(a, 51, True)
    stamp_dump(a, S_WS, S_WAVE, 32 << 20)
    a("s_endpgm")

def gen_g1(a):
    a.raw("""
.globl g1_kernel
.p2align 8
.type g1_kernel,@function
g1_kernel:""")
    a(f"""
    s_cmp_ge_u32 s2, 256
    s_cbranch_scc1 g1_exit
    s_load_dwordx4 s[{S_X}:{S_X+3}], s[0:1], 0     ; x, wqkv
    s_load_dwordx2 s[{S_W1}:{S_W1+1}], s[0:1], 32
    s_load_dwordx2 s[{S_WS}:{S_WS+1}], s[0:1], 64
    s_load_dwordx2 s[{S_WOP}:{S_WOP+1}], s[0:1], 16
    s_load_dwordx2 s[{S_DBGP}:{S_DBGP+1}], s[0:1], 56
    s_load_dwordx2 s[{S_W2P}:{S_W2P+1}], s[0:1], 40
    v_and_b32 v{V_LANE}, 63, v0
    v_lshrrev_b32 v{V_T}, 6, v0
    v_and_b32 v{V_TT}, 15, v0
    v_readfirstlane_b32 s{S_WAVE}, v{V_T}
    v_bfe_u32 v{V_GG}, v0, 4, 2
    s_nop 2
    s_cmp_lg_u32 s{S_WAVE}, 7
    s_cbranch_scc1 g1_nopf
    """)
    if "nocodepf" not in OPTS:
        code_prefetch(a, V_T + 2, V_LANE, S_PC1, "g1_kernel", "g1_end", 24576, 255)
    a.label("g1_nopf")
    a(f"""
    s_and_b32 s{S_TMP}, s2, 7                 ; xcd
    s_lshr_b32 s{S_TMP2}, s2, 3               ; idx
    s_and_b32 s{S_MT}, s{S_TMP}, 1
    s_lshl_b32 s{S_MT}, s{S_MT}, 2
    s_and_b32 s{S_TMP3}, s{S_TMP2}, 3
    s_add_u32 s{S_MT}, s{S_MT}, s{S_TMP3}     ; mt
    s_lshr_b32 s{S_TMP2}, s{S_TMP2}, 2        ; i8
    s_lshr_b32 s{S_TMP}, s{S_TMP}, 1          ; ng
    s_lshl_b32 s{S_JT}, s{S_TMP}, 2
    s_and_b32 s{S_TMP3}, s{S_TMP2}, 3
    s_add_u32 s{S_JT}, s{S_JT}, s{S_TMP3}     ; jt
    s_lshr_b32 s{S_TMP2}, s{S_TMP2}, 2        ; type
    s_and_b32 s{S_WQ}, s{S_WAVE}, 3
    s_and_b32 s{S_NW}, s{S_WAVE}, 1
    s_bfe_u32 s{S_MW}, s{S_WAVE}, 0x10001
    s_lshr_b32 s{S_TMP3}, s{S_WAVE}, 2        ; G
    s_lshl_b32 s80, s2, 3
    s_add_u32 s80, s80, s{S_WAVE}
    v_lshlrev_b32 v{V_L16}, 4, v{V_LANE}
    s_waitcnt lgkmcnt(0)
    """)
    if FUSE and "bulk" in OPTS:
        a(f"""
        s_mov_b32 s64, s{S_W}
        s_and_b32 s65, s{S_W+1}, 0xffff
        s_mov_b32 s66, {1024*6144}
        s_mov_b32 s67, 0x20000
        s_mov_b32 s72, s{S_W1}
        s_and_b32 s73, s{S_W1+1}, 0xffff
        s_mov_b32 s74, {1024*7168}
        s_mov_b32 s75, 0x20000
        s_mul_i32 s81, s80, 3072
        s_lshl_b32 s80, s80, 12
        """)
        for i in range(3):
            a(f"buffer_load_dwordx4 {vr(V_HF)}, v{V_L16}, s[64:67], s81 offen offset:{1024*i}")
        for i in range(4):
            a(f"buffer_load_dwordx4 {vr(V_HF)}, v{V_L16}, s[72:75], s80 offen offset:{1024*i}")
    a(f"""
    s_add_u32 s{SRD_X}, s{S_X if FUSE else S_WS}, {0 if FUSE else XN_OFF}
    s_addc_u32 s{SRD_X+1}, s{(S_X if FUSE else S_WS)+1}, 0
    s_and_b32 s{SRD_X+1}, s{SRD_X+1}, 0xffff
    s_mov_b32 s{SRD_X+2}, {2048*2048}
    s_mov_b32 s{SRD_X+3}, 0x20000
    s_mov_b32 s{SRD_XA}, s{SRD_X}
    s_mov_b32 s{SRD_XA+1}, s{SRD_X+1}
    s_mov_b32 s{SRD_XA+2}, {2048*2048}
    s_mov_b32 s{SRD_XA+3}, 0x20000
    s_mov_b32 s{SRD_O}, s{S_WS}
    s_and_b32 s{SRD_O+1}, s{S_WS+1}, 0xffff
    s_mov_b32 s{SRD_O+2}, {A2_BYTES}
    s_mov_b32 s{SRD_O+3}, 0x20000
    s_lshl_b32 s{S_TMP2}, s{S_TMP2}, 1
    s_add_u32 s{S_TMP2}, s{S_TMP2}, s{S_TMP3}
    """)
    if FUSE:
        a(f"""
        s_cmp_lg_u32 s2, 255
        s_cbranch_scc1 g1_noz
        s_add_u32 s64, s{S_WS}, {30 << 20}
        s_addc_u32 s65, s{S_WS+1}, 0
        s_and_b32 s65, s65, 0xffff
        s_mov_b32 s66, 8192
        s_mov_b32 s67, 0x20000
        v_lshlrev_b32 v{V_T}, 4, v0
        v_mov_b32 v4, 0
        v_mov_b32 v5, 0
        v_mov_b32 v6, 0
        v_mov_b32 v7, 0
        buffer_store_dwordx4 v[4:7], v{V_T}, s[64:67], 0 offen
        """)
        a.label("g1_noz")
    a(f"""
    s_cmp_eq_u32 s{S_TMP2}, 0
    s_cbranch_scc1 g1_00
    s_cmp_eq_u32 s{S_TMP2}, 1
    s_cbranch_scc1 g1_01
    s_cmp_eq_u32 s{S_TMP2}, 2
    s_cbranch_scc1 g1_10
    s_branch g1_11
    """)
    a.label("g1_exit")
    a("s_endpgm")
    for typ in range(2):
        for G in range(2):
            g1_path(a, typ, G)
    g1_attn(a)
    a.label("g1_end")
    a("s_endpgm")

def gen_k0(a):
    a.raw("""
.globl k0_kernel
.p2align 8
.type k0_kernel,@function
k0_kernel:""")
    DPP = "row_mask:0xf bank_mask:0xf"
    def reduce64(v, t):
        a(f"""
        s_nop 1
        v_add_f32_dpp v{t}, v{v}, v{v} quad_perm:[1,0,3,2] {DPP}
        s_nop 1
        v_add_f32_dpp v{v}, v{t}, v{t} quad_perm:[2,3,0,1] {DPP}
        s_nop 1
        v_add_f32_dpp v{t}, v{v}, v{v} row_half_mirror {DPP}
        s_nop 1
        v_add_f32_dpp v{v}, v{t}, v{t} row_mirror {DPP}
        """)
        xlane_sum(a, v, t)
    a(f"""
    s_cmp_ge_u32 s2, 256
    s_cbranch_scc1 k0_exit
    s_load_dwordx4 s[4:7], s[0:1], 0          ; x, wqkv
    s_load_dwordx2 s[8:9], s[0:1], 32         ; w1
    s_load_dwordx2 s[10:11], s[0:1], 64       ; ws
    v_lshrrev_b32 v1, 6, v0
    v_and_b32 v0, 63, v0
    v_lshlrev_b32 v2, 4, v0                   ; lane*16
    v_readfirstlane_b32 s3, v1
    s_lshl_b32 s28, s2, 3
    s_nop 2
    s_add_u32 s28, s28, s3
    s_lshl_b32 s29, s28, 11
    s_waitcnt lgkmcnt(0)
    s_mov_b32 s12, s4
    s_and_b32 s13, s5, 0xffff
    s_mov_b32 s14, {2048*2048}
    s_mov_b32 s15, 0x20000
    buffer_load_dwordx4 v[4:7], v2, s[12:15], s29 offen
    buffer_load_dwordx4 v[8:11], v2, s[12:15], s29 offen offset:1024
    s_mov_b32 s16, s6
    s_and_b32 s17, s7, 0xffff
    s_mov_b32 s18, {1024*6144}
    s_mov_b32 s19, 0x20000
    s_mov_b32 s20, s8
    s_and_b32 s21, s9, 0xffff
    s_mov_b32 s22, {1024*7168}
    s_mov_b32 s23, 0x20000
    s_add_u32 s24, s10, {XN_OFF}
    s_addc_u32 s25, s11, 0
    s_and_b32 s25, s25, 0xffff
    s_mov_b32 s26, {2048*2048}
    s_mov_b32 s27, 0x20000
    s_cmp_lg_u32 s2, 0
    s_cbranch_scc1 k0_noz
    s_add_u32 s32, s10, {30 << 20}
    s_addc_u32 s33, s11, 0
    s_and_b32 s33, s33, 0xffff
    s_mov_b32 s34, 8192
    s_mov_b32 s35, 0x20000
    s_lshl_b32 s30, s3, 10
    v_mov_b32 v60, 0
    v_mov_b32 v61, 0
    v_mov_b32 v62, 0
    v_mov_b32 v63, 0
    buffer_store_dwordx4 v[60:63], v2, s[32:35], s30 offen
    s_waitcnt vmcnt(0)
k0_noz:
    s_mul_i32 s30, s28, 3072
    s_lshl_b32 s31, s28, 12
    """)
    nw = 0
    if "nowarm1" not in OPTS:
        a(f"""
        s_mov_b32 s18, {256*6144}
        s_mov_b32 s22, {256*7168}
        s_lshl_b32 s30, s28, 10
        buffer_load_dwordx4 v[32:35], v2, s[16:19], s30 offen
        buffer_load_dwordx4 v[36:39], v2, s[20:23], s30 offen
        """)
        nw = 2
    a(f"s_waitcnt vmcnt({nw})")
    for r in range(8):
        a(f"""
        v_lshlrev_b32 v{12+2*r}, 16, v{4+r}
        v_and_b32 v{13+2*r}, 0xffff0000, v{4+r}
        """)
    a("v_add_f32 v28, v12, v13")
    for r in range(14, 28):
        a(f"v_add_f32 v28, v28, v{r}")
    reduce64(28, 29)
    a("v_mul_f32 v28, 0x3a800000, v28")
    a("""
    v_sub_f32 v30, v12, v28
    v_mul_f32 v31, v30, v30
    """)
    for r in range(13, 28):
        a(f"""
        v_sub_f32 v30, v{r}, v28
        v_fmac_f32 v31, v30, v30
        """)
    reduce64(31, 29)
    a(f"""
    v_mul_f32 v31, 0x3a800000, v31            ; var
    v_cvt_pk_bf16_f32 v29, v28, v31
    v_lshlrev_b32 v28, 16, v29                ; m_b
    v_and_b32 v31, 0xffff0000, v29            ; v_b
    v_add_f32 v31, 0x3727c5ac, v31
    v_cvt_pk_bf16_f32 v31, v31, v31
    v_and_b32 v31, 0xffff0000, v31
    v_sqrt_f32 v31, v31
    s_nop 0
    v_cvt_pk_bf16_f32 v31, v31, v31
    v_and_b32 v31, 0xffff0000, v31
    v_rcp_f32 v31, v31
    s_nop 0
    """)
    for r in range(8):
        a(f"""
        v_sub_f32 v{12+2*r}, v{12+2*r}, v28
        v_sub_f32 v{13+2*r}, v{13+2*r}, v28
        v_cvt_pk_bf16_f32 v29, v{12+2*r}, v{13+2*r}
        v_lshlrev_b32 v{12+2*r}, 16, v29
        v_and_b32 v{13+2*r}, 0xffff0000, v29
        v_mul_f32 v{12+2*r}, v{12+2*r}, v31
        v_mul_f32 v{13+2*r}, v{13+2*r}, v31
        v_cvt_pk_bf16_f32 v{4+r}, v{12+2*r}, v{13+2*r}
        """)
    a("""
    buffer_store_dwordx4 v[4:7], v2, s[24:27], s29 offen
    buffer_store_dwordx4 v[8:11], v2, s[24:27], s29 offen offset:1024
    """)
    a.label("k0_exit")
    a("s_endpgm")

G2_NB = 6
G2_LDS = G2_NB * 16384
def code_prefetch(a, vtmp, vlane, stmp, start_label, end_label, nbytes, vdst):
    a(f"""
    s_getpc_b64 {sr(stmp)}
    """)
    a.label(start_label + "_pc")
    a(f"""
    s_add_u32 s{stmp}, s{stmp}, {start_label}-{start_label}_pc
    s_addc_u32 s{stmp+1}, s{stmp+1}, -1
    v_lshlrev_b32 v{vtmp}, 7, v{vlane}
    """)
    for i in range((nbytes + 8191) // 8192):
        if i: a(f"v_add_u32 v{vtmp}, 0x2000, v{vtmp}")
        a(f"""
        v_min_u32 v{vtmp+1}, {end_label}-{start_label}-4, v{vtmp}
        global_load_dword v{vdst}, v{vtmp+1}, {sr(stmp)}
        """)

def gen_g2(a):
    NBUF = G2_NB; D = NBUF - 1
    NTB = "nt " if "g2ntB" in OPTS else ""
    SRD_A = 12; SRD_B = 16; SRD_XX = 20; SRD_OUT = 24
    S_WO = 4; S_W2 = 6; S_XP = 8; S_OUTP = 10; S_WSP = 28
    S_WV = 30; S_GK = 31; S_MW2 = 32; S_MT2 = 33; S_NT = 34; S_TRIP = 35
    S_KAA = 36; S_KBB = 37; S_MB0 = 38; S_T = 39; S_T2 = 40; S_T3 = 41; S_PC = 42; S_P = 44; S_KA0 = 45; S_WOL = 46; S_WOH = 47; S_SZ = 48; S_CNT = 49
    V_AB = 0
    V_W = V_AB + NBUF * 16
    V_AC = V_W + 64
    V_XR = V_AC + 32
    V_AA = V_XR + 8
    V_DBB = V_AA + 2
    V_RBB = V_DBB + 2
    T = V_RBB + 8
    VL = T + 14; VT = T + 15; VG = T + 16
    global G2_VGPRS
    G2_VGPRS = 256 if STAMP else VG + 2
    def ab(u, tb, kk): return V_AB + u * 16 + (tb * 2 + kk) * 4
    def w(par, s, kk): return V_W + par * 32 + (s * 2 + kk) * 4
    def ac(s, tb): return V_AC + (s * 2 + tb) * 4
    a.raw("""
.globl g2_kernel
.p2align 8
.type g2_kernel,@function
g2_kernel:""")
    a(f"""
    s_cmp_ge_u32 s2, 256
    s_cbranch_scc1 g2_exit
    s_load_dwordx2 s[{S_XP}:{S_XP+1}], s[0:1], 0
    s_load_dwordx2 s[{S_WO}:{S_WO+1}], s[0:1], 16
    s_load_dwordx2 s[{S_W2}:{S_W2+1}], s[0:1], 40
    s_load_dwordx2 s[{S_OUTP}:{S_OUTP+1}], s[0:1], 48
    s_load_dwordx2 s[{S_WSP}:{S_WSP+1}], s[0:1], 64
    v_and_b32 v{VL}, 63, v0
    v_lshrrev_b32 v{T}, 6, v0
    v_and_b32 v{VT}, 15, v0
    v_readfirstlane_b32 s{S_WV}, v{T}
    v_bfe_u32 v{VG}, v0, 4, 2
    """)
    if STAMP: a(f"v_mov_b32 v{V_STAMP}, 0")
    stamp_now(a, 32); stamp_now(a, 50, True)
    npf = 0
    if "nocodepf" not in OPTS:
        code_prefetch(a, T + 12, VL, S_PC, "g2_kernel", "g2_exit", 4096, VG + 1); npf = 1
    a(f"""
    s_and_b32 s{S_T}, s2, 7
    s_lshr_b32 s{S_T2}, s2, 3
    s_lshr_b32 s{S_MT2}, s{S_T}, 1
    s_lshl_b32 s{S_MT2}, s{S_MT2}, 2
    s_and_b32 s{S_T3}, s{S_T2}, 3
    s_add_u32 s{S_MT2}, s{S_MT2}, s{S_T3}     ; mt 0..15
    s_and_b32 s{S_NT}, s{S_T}, 1
    s_lshl_b32 s{S_NT}, s{S_NT}, 3
    s_lshr_b32 s{S_T2}, s{S_T2}, 2
    s_add_u32 s{S_NT}, s{S_NT}, s{S_T2}       ; nt 0..15
    s_lshr_b32 s{S_GK}, s{S_WV}, 2
    s_and_b32 s{S_MW2}, s{S_WV}, 3
    ; A voffsets
    s_lshl_b32 s{S_T}, s{S_MT2}, 3
    s_lshl_b32 s{S_T2}, s{S_MW2}, 1
    s_add_u32 s{S_T}, s{S_T}, s{S_T2}         ; mblk0
    s_mul_i32 s{S_T}, s{S_T}, {MBLK_PITCH}
    v_lshl_add_u32 v{V_AA}, v{VL}, 4, s{S_T}
    v_add_u32 v{V_AA+1}, {MBLK_PITCH}, v{V_AA}
    s_lshl_b32 s{S_KAA}, s{S_GK}, 11          ; K-step * 2048
    v_lshrrev_b32 v{T}, 3, v{VL}
    s_lshl_b32 s{S_T}, s{S_WV}, 4
    v_add_u32 v{T+1}, s{S_T}, v{T}            ; row (e=0)
    v_lshlrev_b32 v{T+1}, 11, v{T+1}
    s_lshl_b32 s{S_T}, s{S_NT}, 7
    v_add_u32 v{T+1}, s{S_T}, v{T+1}
    v_and_b32 v{T+2}, 1, v{VL}
    v_lshl_add_u32 v{T+1}, v{T+2}, 4, v{T+1}  ; + (c'&1)*16
    v_bfe_u32 v{T+2}, v{VL}, 1, 2             ; unit'
    v_bfe_u32 v{T+3}, v{VL}, 4, 1             ; bit1(l>>3)
    v_xor_b32 v{T+2}, v{T+2}, v{T+3}
    v_lshl_add_u32 v{V_DBB}, v{T+2}, 5, v{T+1}
    v_xor_b32 v{T+2}, 2, v{T+2}
    v_lshl_add_u32 v{V_DBB+1}, v{T+2}, 5, v{T+1}
    v_add_u32 v{V_DBB+1}, {8*2048}, v{V_DBB+1}
    s_lshl_b32 s{S_MB0}, s{S_WV}, 11
    s_mov_b32 s{S_KBB}, 0
    s_waitcnt lgkmcnt(0)
    s_mov_b32 s{SRD_A}, s{S_WSP}
    s_and_b32 s{SRD_A+1}, s{S_WSP+1}, 0xffff
    s_mov_b32 s{SRD_A+2}, {A2_BYTES}
    s_mov_b32 s{SRD_A+3}, 0x20000
    s_mov_b32 s{SRD_B}, s{S_WO}
    s_and_b32 s{SRD_B+1}, s{S_WO+1}, 0xffff
    s_mov_b32 s{SRD_B+2}, {1024*2048}
    s_mov_b32 s{SRD_B+3}, 0x20000
    """)
    def prefetch(u):
        for e in range(2):
            if "g2noB" in OPTS:
                a(f"buffer_load_dword v{T+12}, off, {sr(SRD_B,4)}, 0")
                continue
            a(f"""
            s_add_u32 m0, s{S_MB0}, {u*16384 + e*1024}
            s_nop 0
            buffer_load_dwordx4 v{V_DBB+e}, {sr(SRD_B,4)}, s{S_KBB} offen {NTB}lds
            """)
        for tb in range(2):
            for kk in range(2):
                if "g2noA" in OPTS:
                    a(f"buffer_load_dword v{T+12}, off, {sr(SRD_B,4)}, 0")
                    continue
                a(f"buffer_load_dwordx4 {vr(ab(u,tb,kk))}, v{V_AA+tb}, {sr(SRD_A,4)}, s{S_KAA} offen offset:{kk*1024}" + (" nt" if "g2ntA" in OPTS else ""))
        advance()
    def advance():
        a(f"""
        s_add_u32 s{S_P}, s{S_P}, 1
        s_cmp_eq_u32 s{S_P}, 36
        s_cselect_b32 s{S_P}, 0, s{S_P}
        s_add_u32 s{S_CNT}, s{S_CNT}, 1
        """)
        setpos()
    def setpos():
        a(f"""
        s_lshl_b32 s{S_KAA}, s{S_P}, 12
        s_add_u32 s{S_KAA}, s{S_KAA}, s{S_KA0}
        s_cmp_lt_u32 s{S_P}, 8
        s_cselect_b32 s{SRD_B}, s{S_WOL}, s{S_W2}
        s_cselect_b32 s{SRD_B+1}, s{S_WOH}, s{S_W2+1}
        s_cselect_b32 s{SRD_B+2}, {1024*2048}, s{S_SZ}
        s_cselect_b32 s{S_T}, 0, 8
        s_sub_u32 s{S_T}, s{S_P}, s{S_T}
        s_lshl_b32 s{S_KBB}, s{S_T}, 18
        s_cmp_ge_u32 s{S_CNT}, 36
        s_cselect_b32 s{SRD_B+2}, 0, s{SRD_B+2}
        s_cselect_b32 s{SRD_A+2}, 0, s{SRD_A+2}
        s_cselect_b32 s{S_MB0}, {G2_LDS}, s{S_MB0}
        """)
    rotmul = (1, 2)
    for o in OPTS:
        if o.startswith("rot="): rotmul = tuple(int(x) for x in o[4:].split(","))
    a(f"""
    s_and_b32 s{S_W2+1}, s{S_W2+1}, 0xffff
    s_mov_b32 s{S_WOL}, s{S_WO}
    s_and_b32 s{S_WOH}, s{S_WO+1}, 0xffff
    s_mov_b32 s{S_SZ}, {3584*2048}
    s_mov_b32 s{S_KA0}, s{S_KAA}
    s_mov_b32 s{S_CNT}, 0
    s_and_b32 s{S_T}, s{S_NT}, 7
    s_mul_i32 s{S_T}, s{S_T}, {rotmul[0]}
    s_and_b32 s{S_T2}, s{S_MT2}, 3
    s_mul_i32 s{S_T2}, s{S_T2}, {rotmul[1]}
    s_add_u32 s{S_P}, s{S_T}, s{S_T2}
    """)
    setpos()
    if "g2tlb" in OPTS:
        a(f"""
        s_lshr_b32 s{S_T}, s2, 3
        s_lshl_b32 s{S_T}, s{S_T}, 3
        s_add_u32 s{S_T}, s{S_T}, s{S_WV}          ; j
        s_lshl_b32 s{S_T2}, s{S_T}, 18             ; j*64 pages*4096
        v_lshl_add_u32 v{T+12}, v{VL}, 12, s{S_T2}
        s_cmp_lt_u32 s{S_T}, 18
        s_cbranch_scc0 g2_tlb1
        s_and_b32 s{S_T3}, s{S_MT2}, 12
        s_mul_i32 s{S_T3}, s{S_T3}, {8*MBLK_PITCH}
        buffer_load_dword v{T+13}, v{T+12}, {sr(SRD_A,4)}, s{S_T3} offen
        s_branch g2_tlb3
        """)
        a.label("g2_tlb1")
        a(f"""
        s_cmp_lt_u32 s{S_T}, 26
        s_cbranch_scc0 g2_tlb2
        v_subrev_u32 v{T+12}, {18<<18}, v{T+12}
        global_load_dword v{T+13}, v{T+12}, s[{S_WO}:{S_WO+1}]
        s_branch g2_tlb3
        """)
        a.label("g2_tlb2")
        a(f"""
        s_cmp_lt_u32 s{S_T}, 54
        s_cbranch_scc0 g2_tlb3
        v_subrev_u32 v{T+12}, {26<<18}, v{T+12}
        global_load_dword v{T+13}, v{T+12}, s[{S_W2}:{S_W2+1}]
        """)
        a.label("g2_tlb3")
    for u in range(D):
        prefetch(u)
    V_XA = T + 4; V_OA = T + 5
    a(f"""
    s_mov_b32 s{SRD_XX}, s{S_XP}
    s_and_b32 s{SRD_XX+1}, s{S_XP+1}, 0xffff
    s_mov_b32 s{SRD_XX+2}, {2048*2048}
    s_mov_b32 s{SRD_XX+3}, 0x20000
    s_mov_b32 s{SRD_OUT}, s{S_OUTP}
    s_and_b32 s{SRD_OUT+1}, s{S_OUTP+1}, 0xffff
    s_mov_b32 s{SRD_OUT+2}, {2048*2048}
    s_mov_b32 s{SRD_OUT+3}, 0x20000
    v_lshrrev_b32 v{T}, 2, v{VT}              ; r
    v_lshl_add_u32 v{T+1}, v{VG}, 3, v{T}
    v_lshlrev_b32 v{T+1}, 7, v{T+1}
    s_lshl_b32 s{S_T}, s{S_GK}, 13
    v_add_u32 v{T+1}, s{S_T}, v{T+1}
    v_and_b32 v{T+2}, 3, v{VL}
    v_lshl_add_u32 v{T+1}, v{T+2}, 3, v{T+1}
    v_and_b32 v{T+2}, 1, v{VG}
    v_lshrrev_b32 v{T+3}, 1, v{T}
    v_lshl_or_b32 v{T+2}, v{T+2}, 1, v{T+3}   ; f
    s_lshl_b32 s{S_T}, s{S_GK}, 1
    v_xor_b32 v{T+2}, s{S_T}, v{T+2}          ; f ^ 2Gk
    """)
    for s in range(4):
        a(f"""
        v_xor_b32 v{T+3}, {s}, v{T+2}
        v_lshl_add_u32 v{V_RBB+s}, v{T+3}, 5, v{T+1}
        v_add_u32 v{V_RBB+4+s}, 0xc000, v{V_RBB+s}
        """)
    a(f"""
    s_lshl_b32 s{S_T}, s{S_MT2}, 7
    s_lshl_b32 s{S_T2}, s{S_MW2}, 5
    s_add_u32 s{S_T}, s{S_T}, s{S_T2}
    v_add_u32 v{T}, s{S_T}, v{VT}
    v_lshlrev_b32 v{T}, 11, v{T}
    s_lshl_b32 s{S_T}, s{S_NT}, 7
    s_lshl_b32 s{S_T2}, s{S_GK}, 6
    s_add_u32 s{S_T}, s{S_T}, s{S_T2}
    v_add_u32 v{T}, s{S_T}, v{T}
    v_lshl_add_u32 v{V_XA}, v{VG}, 3, v{T}    ; + g*8
    v_and_b32 v{T+1}, 1, v{VG}
    v_lshrrev_b32 v{T+2}, 1, v{VG}
    v_lshl_or_b32 v{T+1}, v{T+1}, 1, v{T+2}   ; sigma
    v_lshl_add_u32 v{V_OA}, v{T+1}, 4, v{T}
    """)
    for r in range(V_AC, V_AC + 32):
        a(f"v_mov_b32 v{r}, 0")
    def reads(u, par):
        hi = 4 if u >= 3 else 0
        uo = (u - 3 if u >= 3 else u) * 16384
        for kk in range(2):
            for s in range(4):
                for h in range(2):
                    if "g2nocomp" in OPTS: continue
                    a(f"ds_read_b64_tr_b16 {vr(w(par,s,kk)+2*h,2)}, v{V_RBB+hi+s} offset:{uo + kk*4096 + h*512}")
    a(f"""
    s_mov_b32 s{S_TRIP}, 0
    s_waitcnt vmcnt({4 + 6*(D-1)})
    s_barrier
    """)
    reads(0, 0)
    stamp_now(a, 33)
    def body(u):
        par = u & 1
        a(f"""
        s_waitcnt vmcnt({4 + 6*(D-2)})
        s_barrier
        """)
        prefetch((u + D) % NBUF)
        a("s_waitcnt lgkmcnt(0)")
        reads((u + 1) % NBUF, par ^ 1)
        for kk in range(2):
            for s in range(4):
                for tb in range(2):
                    if "g2nocomp" in OPTS: continue
                    a(f"v_mfma_f32_16x16x32_bf16 {vr(ac(s,tb))}, {vr(w(par,s,kk))}, {vr(ab(u,tb,kk))}, {vr(ac(s,tb))}")
    a.raw(".p2align 6")
    a.label("g2_loop")
    for u in range(NBUF):
        body(u)
    a(f"""
    s_add_u32 s{S_TRIP}, s{S_TRIP}, 1
    s_cmp_lt_u32 s{S_TRIP}, {36 // NBUF}
    s_cbranch_scc1 g2_loop
    s_mov_b32 s{S_T}, {16*2048}
    """)
    stamp_now(a, 34)
    for tb in range(2):
        for e in range(2):
            so = "0" if tb == 0 else f"s{S_T}"
            a(f"buffer_load_dwordx2 {vr(V_XR+(tb*2+e)*2,2)}, v{V_XA}, {sr(SRD_XX,4)}, {so} offen offset:{e*32}")
    a(f"""
    s_waitcnt vmcnt(4) lgkmcnt(0)
    s_barrier
    s_lshl_b32 s{S_T}, s{S_WV}, 12
    v_lshl_add_u32 v{T}, v{VL}, 4, s{S_T}
    v_xor_b32 v{T+1}, 16384, v{T}
    """)
    for s in range(2):
        for tb in range(2):
            a(f"ds_write_b128 v{T}, {vr(ac(2+s,tb))} offset:{(s*2+tb)*1024}")
    a("""
    s_waitcnt lgkmcnt(0)
    s_barrier
    """)
    for s in range(2):
        for tb in range(2):
            a(f"ds_read_b128 {vr(V_W+(s*2+tb)*4)}, v{T+1} offset:{(s*2+tb)*1024}")
    a("s_waitcnt vmcnt(0) lgkmcnt(0)")
    for tb in range(2):
        o = V_AB + tb * 4
        for s in range(2):
            c = ac(s, tb); p = V_W + (s * 2 + tb) * 4; xr = V_XR + (tb * 2 + s) * 2
            a(f"""
            v_lshlrev_b32 v{T+8}, 16, v{xr}
            v_and_b32 v{T+9}, 0xffff0000, v{xr}
            v_lshlrev_b32 v{T+10}, 16, v{xr+1}
            v_and_b32 v{T+11}, 0xffff0000, v{xr+1}
            v_pk_add_f32 {vr(c,2)}, {vr(c,2)}, {vr(p,2)}
            v_pk_add_f32 {vr(c+2,2)}, {vr(c+2,2)}, {vr(p+2,2)}
            v_pk_add_f32 {vr(c,2)}, {vr(c,2)}, {vr(T+8,2)}
            v_pk_add_f32 {vr(c+2,2)}, {vr(c+2,2)}, {vr(T+10,2)}
            v_cvt_pk_bf16_f32 v{o+2*s}, v{c}, v{c+1}
            v_cvt_pk_bf16_f32 v{o+2*s+1}, v{c+2}, v{c+3}
            """)
        so = "0" if tb == 0 else f"s{S_T2}"
        a(f"""
        s_mov_b32 s{S_T2}, {16*2048}
        s_nop 0
        v_permlane16_swap_b32 v{o}, v{o+2}
        v_permlane16_swap_b32 v{o+1}, v{o+3}
        s_nop 1
        buffer_store_dwordx4 {vr(o)}, v{V_OA}, {sr(SRD_OUT,4)}, {so} offen
        """)
    stamp_now(a, 51, True)
    stamp_dump(a, S_WSP, S_WV, 40 << 20)
    a.label("g2_exit")
    a("s_endpgm")

C_ASLOT = 16384; C_NA = 3
C_BSLOT = 16384; C_NBS = 4
C_BBASE = 2 * C_NA * C_ASLOT
G2C_LDS = C_BBASE + C_NBS * C_BSLOT
SLAB_OFF = 64 << 20
FLAG_OFF = 30 << 20
SLAB_BYTES = 64 * 4 * 131072
NKS = 18
PUBF = "sc1" if "pubsc1" in OPTS else ("sc0 sc1 nt" if "pubnt" in OPTS else "sc0 sc1")
GETF = "sc1" if "pubsc1" in OPTS else "sc0 sc1"
def gen_g2c(a):
    XF = 64; WF = 96
    def acc(c, t): return (c * 4 + t) * 4
    def xf(t, kk): return XF + (t * 2 + kk) * 4
    def wf(c, kk): return WF + (c * 2 + kk) * 4
    V_RA = 128; V_RB = 129; V_DA = 133; V_DB = 134; VL = 135; VT = 136; VG = 137; T = 138
    VPF = 152; VH = 153; VHA = 154; VHL = 156
    S_XP = 4; S_WO = 6; S_W2 = 8; S_OUTP = 10; S_DBG = 28; S_WSP = 30
    SRD_A = 12; SRD_B = 16; SRD_S = 20; SRD_X = 24; SRD_O = 32; SRD_F = 36
    S_WV = 40; S_MW = 41; S_NW = 42; S_WQ = 43; S_MT = 44; S_NT = 45; S_KQ = 46; S_J = 47
    S_KA = 48; S_PA = 49; S_PB = 50; S_MA = 51; S_MB = 52; S_MAE = 53; S_MBE = 54; S_ASL = 55; S_BSL = 56
    S_RAS = 57; S_RBS = 58; S_T = 59; S_T2 = 60; S_T3 = 61; S_KB = 62; S_SZ2 = 63; S_CUR = 64; S_DONE = 65
    S_TILE = 66; S_G = 67; S_CNT = 68; S_ARR = 69; S_PC = 70; S_DA = 72; S_DB = 73; S_Q = 74; S_ASZ = 75; S_XCC = 76; S_FB = 77; S_LOC = 78
    MAPK = f"""
    s_and_b32 s{S_KQ}, s2, 3
    s_bfe_u32 s{S_T}, s2, 0x10002             ; M half
    s_lshr_b32 s{S_T2}, s2, 3                 ; idx
    s_and_b32 s{S_MT}, s{S_T2}, 3
    s_lshl_b32 s{S_T}, s{S_T}, 2
    s_add_u32 s{S_MT}, s{S_MT}, s{S_T}        ; mt 0..7
    s_lshr_b32 s{S_NT}, s{S_T2}, 2            ; nt 0..7
"""
    MAPL = f"""
    s_lshr_b32 s{S_T2}, s2, 3                 ; idx
    s_and_b32 s{S_KQ}, s{S_T2}, 3
    s_bfe_u32 s{S_T}, s2, 0x20001             ; xcd >> 1
    s_lshl_b32 s{S_MT}, s{S_T}, 1
    s_bfe_u32 s{S_T}, s{S_T2}, 0x10002
    s_add_u32 s{S_MT}, s{S_MT}, s{S_T}        ; mt 0..7
    s_and_b32 s{S_NT}, s2, 1
    s_lshl_b32 s{S_NT}, s{S_NT}, 2
    s_lshr_b32 s{S_T}, s{S_T2}, 3
    s_add_u32 s{S_NT}, s{S_NT}, s{S_T}        ; nt 0..7
"""
    XF_ = "" if "xloc" in OPTS else "sc0 sc1"
    a.raw("""
.globl g2_kernel
.p2align 8
.type g2_kernel,@function
g2_kernel:""")
    a(f"""
    s_cmp_ge_u32 s2, 256
    s_cbranch_scc1 g2_exit
    s_load_dwordx2 s[{S_XP}:{S_XP+1}], s[0:1], 0
    s_load_dwordx2 s[{S_WO}:{S_WO+1}], s[0:1], 16
    s_load_dwordx4 s[{S_W2}:{S_W2+3}], s[0:1], 40      ; w2, out
    s_load_dwordx4 s[{S_DBG}:{S_DBG+3}], s[0:1], 56
    v_and_b32 v{VL}, 63, v0
    v_lshrrev_b32 v{T}, 6, v0
    v_and_b32 v{VT}, 15, v0
    v_readfirstlane_b32 s{S_WV}, v{T}
    v_bfe_u32 v{VG}, v0, 4, 2
    """)
    if STAMP: a(f"v_mov_b32 v{V_STAMP}, 0")
    stamp_now(a, 32); stamp_now(a, 50, True)
    a(f"""
    s_nop 2
    s_cmp_lg_u32 s{S_WV}, 7
    s_cbranch_scc1 g2_nopf
    """)
    code_prefetch(a, T, VL, S_PC, "g2_kernel", "g2_exit", 8192, VPF)
    a.label("g2_nopf")
    a(f"""
    """)
    a(MAPL if "xloc" in OPTS else MAPK)
    a(f"""
    s_lshl_b32 s{S_TILE}, s{S_MT}, 3
    s_add_u32 s{S_TILE}, s{S_TILE}, s{S_NT}
    s_lshr_b32 s{S_G}, s{S_WV}, 2
    s_and_b32 s{S_WQ}, s{S_WV}, 3
    s_and_b32 s{S_NW}, s{S_WV}, 1
    s_bfe_u32 s{S_MW}, s{S_WV}, 0x10001
    s_lshr_b32 s{S_Q}, s{S_WV}, 1
    s_xor_b32 s{S_T}, s{S_G}, 1
    s_lshl_b32 s{S_T2}, s{S_T}, 3
    s_lshl_b32 s{S_T3}, s{S_MT}, 4
    s_add_u32 s{S_T2}, s{S_T2}, s{S_T3}
    s_lshl_b32 s{S_T3}, s{S_WQ}, 1
    s_add_u32 s{S_T2}, s{S_T2}, s{S_T3}
    s_mul_i32 s{S_T2}, s{S_T2}, {MBLK_PITCH}
    v_lshl_add_u32 v{V_DA}, v{VL}, 4, s{S_T2}
    s_mul_i32 s{S_DA}, s{S_T}, {C_NA*C_ASLOT}
    s_lshl_b32 s{S_T3}, s{S_WQ}, 12
    s_add_u32 s{S_DA}, s{S_DA}, s{S_T3}
    v_lshrrev_b32 v{T}, 4, v{VL}
    s_lshl_b32 s{S_T}, s{S_WV}, 3
    v_add_u32 v{T+1}, s{S_T}, v{T}
    v_lshlrev_b32 v{T+1}, 11, v{T+1}
    s_lshl_b32 s{S_T}, s{S_NT}, 8
    v_add_u32 v{T+1}, s{S_T}, v{T+1}
    v_and_b32 v{T+2}, 1, v{VL}
    v_lshl_add_u32 v{T+1}, v{T+2}, 4, v{T+1}
    v_bfe_u32 v{T+2}, v{VL}, 1, 3
    s_lshl_b32 s{S_T}, s{S_NW}, 2
    v_or_b32 v{T}, s{S_T}, v{T}
    v_xor_b32 v{T+2}, v{T+2}, v{T}
    v_lshl_add_u32 v{V_DB}, v{T+2}, 5, v{T+1}
    s_lshl_b32 s{S_DB}, s{S_WV}, 11
    s_add_u32 s{S_DB}, s{S_DB}, {C_BBASE}
    s_waitcnt lgkmcnt(0)
    """)
    stamp_now(a, 41)
    a(f"""
    s_mov_b32 s{SRD_A}, s{S_WSP}
    s_and_b32 s{SRD_A+1}, s{S_WSP+1}, 0xffff
    s_mov_b32 s{SRD_A+3}, 0x20000
    s_mov_b32 s{SRD_B+3}, 0x20000
    s_and_b32 s{S_WO+1}, s{S_WO+1}, 0xffff
    s_and_b32 s{S_W2+1}, s{S_W2+1}, 0xffff
    s_mov_b32 s{S_SZ2}, {3584*2048}
    s_mov_b32 s{S_ASZ}, {A2_BYTES}
    s_mov_b32 s{S_CUR}, s{S_KQ}
    s_lshl_b32 s{S_DONE}, s{S_KQ}, 3
    s_lshl_b32 s{S_DONE}, 1, s{S_DONE}
    s_mov_b32 s{S_ARR}, 0
    s_mov_b32 s{S_LOC}, 0
    s_add_u32 s{SRD_S}, s{S_WSP}, {SLAB_OFF}
    s_addc_u32 s{SRD_S+1}, s{S_WSP+1}, 0
    s_and_b32 s{SRD_S+1}, s{SRD_S+1}, 0xffff
    s_mov_b32 s{SRD_S+2}, {SLAB_BYTES}
    s_mov_b32 s{SRD_S+3}, 0x20000
    s_add_u32 s{SRD_F}, s{S_WSP}, {FLAG_OFF}
    s_addc_u32 s{SRD_F+1}, s{S_WSP+1}, 0
    s_and_b32 s{SRD_F+1}, s{SRD_F+1}, 0xffff
    s_mov_b32 s{SRD_F+2}, {64*128}
    s_mov_b32 s{SRD_F+3}, 0x20000
    s_lshl_b32 s{S_FB}, s{S_TILE}, 7
    s_lshl_b32 s{S_T}, s{S_TILE}, 2
    s_add_u32 s{S_T}, s{S_T}, s{S_KQ}
    s_lshl_b32 s{S_T}, s{S_T}, 3
    s_add_u32 s{S_T}, s{S_T}, s{S_WV}
    s_lshl_b32 s{S_FB+1}, s{S_T}, 13
    v_lshlrev_b32 v155, 4, v{VL}
    s_mov_b32 s{SRD_X}, s{S_XP}
    s_and_b32 s{SRD_X+1}, s{S_XP+1}, 0xffff
    s_mov_b32 s{SRD_X+2}, {2048*2048}
    s_mov_b32 s{SRD_X+3}, 0x20000
    s_mov_b32 s{SRD_O}, s{S_OUTP}
    s_and_b32 s{SRD_O+1}, s{S_OUTP+1}, 0xffff
    s_mov_b32 s{SRD_O+2}, {2048*2048}
    s_mov_b32 s{SRD_O+3}, 0x20000
    """)
    for r in range(64):
        a(f"v_mov_b32 v{r}, 0")
    def setA():
        a(f"""
        s_mul_i32 s{S_T}, s{S_CUR}, {NKS}
        s_add_u32 s{S_T}, s{S_T}, s{S_PA}
        s_lshl_b32 s{S_KA}, s{S_T}, 11
        s_cmp_ge_u32 s{S_PA}, {NKS}
        s_cselect_b32 s{SRD_A+2}, 0, s{S_ASZ}
        s_cselect_b32 s{S_MAE}, {LDS_DUMP}, s{S_MA}
        """)
    def setB():
        a(f"""
        s_mul_i32 s{S_T}, s{S_CUR}, {NKS}
        s_add_u32 s{S_T}, s{S_T}, s{S_PB}
        s_cmp_lt_u32 s{S_T}, 16
        s_cselect_b32 s{SRD_B}, s{S_WO}, s{S_W2}
        s_cselect_b32 s{SRD_B+1}, s{S_WO+1}, s{S_W2+1}
        s_cselect_b32 s{SRD_B+2}, {1024*2048}, s{S_SZ2}
        s_cselect_b32 s{S_T2}, 0, 16
        s_sub_u32 s{S_T}, s{S_T}, s{S_T2}
        s_lshl_b32 s{S_KB}, s{S_T}, 17
        s_cmp_ge_u32 s{S_PB}, {NKS}
        s_cselect_b32 s{SRD_B+2}, 0, s{SRD_B+2}
        s_cselect_b32 s{S_MBE}, {LDS_DUMP}, s{S_MB}
        """)
    def dmaA_list():
        L = []
        for e in range(2):
            L.append(f"""
            s_add_u32 m0, s{S_MAE}, {e*2048}
            s_add_u32 s{S_T3}, s{S_KA}, {e*MBLK_PITCH}
            buffer_load_dwordx4 v{V_DA}, {sr(SRD_A,4)}, s{S_T3} offen lds
            """)
            L.append(f"buffer_load_dwordx4 v{V_DA}, {sr(SRD_A,4)}, s{S_T3} offen offset:1024 lds")
        return L
    def dmaB_list():
        L = []
        for e in range(2):
            L.append(f"""
            s_add_u32 m0, s{S_MBE}, {e*1024}
            s_add_u32 s{S_T3}, s{S_KB}, {e*8192}
            buffer_load_dwordx4 v{V_DB}, {sr(SRD_B,4)}, s{S_T3} offen lds
            """)
        return L
    def advA():
        a(f"""
        s_add_u32 s{S_PA}, s{S_PA}, 1
        s_add_u32 s{S_ASL}, s{S_ASL}, 1
        s_add_u32 s{S_MA}, s{S_MA}, {C_ASLOT}
        s_cmp_eq_u32 s{S_ASL}, {C_NA}
        s_cselect_b32 s{S_ASL}, 0, s{S_ASL}
        s_cselect_b32 s{S_MA}, s{S_DA}, s{S_MA}
        """)
        setA()
    def advB():
        a(f"""
        s_add_u32 s{S_PB}, s{S_PB}, 1
        s_add_u32 s{S_BSL}, s{S_BSL}, 1
        s_add_u32 s{S_MB}, s{S_MB}, {C_BSLOT}
        s_cmp_eq_u32 s{S_BSL}, {C_NBS}
        s_cselect_b32 s{S_BSL}, 0, s{S_BSL}
        s_cselect_b32 s{S_MB}, s{S_DB}, s{S_MB}
        """)
        setB()
    def doA():
        for d in dmaA_list(): a(d)
        advA()
    def doB():
        for d in dmaB_list(): a(d)
        advB()
    a.label("g2_gemm")
    a(f"""
    s_mov_b32 s{S_PA}, 0
    s_mov_b32 s{S_PB}, 0
    s_mov_b32 s{S_ASL}, 0
    s_mov_b32 s{S_BSL}, 0
    s_mov_b32 s{S_MA}, s{S_DA}
    s_mov_b32 s{S_MB}, s{S_DB}
    """)
    setA(); setB()
    stamp_now(a, 42)
    a(f"""
    s_cmp_eq_u32 s{S_G}, 0
    s_cbranch_scc0 g2_pro1
    """)
    doB(); doA(); doB(); doA(); doB()
    a("s_branch g2_pro2")
    a.label("g2_pro1")
    doA(); doB(); doA(); doB(); doA(); doB()
    a.label("g2_pro2")
    stamp_now(a, 43)
    a(f"""
    s_mul_i32 s{S_T}, s{S_G}, {C_NA*C_ASLOT}
    s_lshl_b32 s{S_T2}, s{S_MW}, 13
    s_add_u32 s{S_T}, s{S_T}, s{S_T2}
    v_lshl_add_u32 v{V_RA}, v{VL}, 4, s{S_T}
    v_lshrrev_b32 v{T}, 2, v{VT}              ; r
    v_lshl_add_u32 v{T+1}, v{VG}, 3, v{T}
    v_lshlrev_b32 v{T+1}, 8, v{T+1}
    v_and_b32 v{T+2}, 3, v{VL}
    v_lshl_add_u32 v{T+1}, v{T+2}, 3, v{T+1}
    v_add_u32 v{T+1}, {C_BBASE}, v{T+1}
    v_and_b32 v{T+2}, 1, v{VG}
    v_lshl_or_b32 v{T+2}, v{T+2}, 2, v{T}     ; f = r | (g&1)<<2
    s_lshl_b32 s{S_T}, s{S_NW}, 2
    v_xor_b32 v{T+2}, s{S_T}, v{T+2}
    """)
    for c in range(4):
        a(f"""
        v_xor_b32 v{T+3}, {c}, v{T+2}
        v_lshl_add_u32 v{V_RB+c}, v{T+3}, 5, v{T+1}
        """)
    a(f"""
    s_mov_b32 s{S_J}, 0
    s_mov_b32 s{S_RAS}, 0
    s_mov_b32 s{S_RBS}, 0
    """)
    stamp_now(a, 44)
    a("s_waitcnt vmcnt(12)")
    stamp_now(a, 45)
    a("s_barrier")
    stamp_now(a, 33)
    a(f"""
    s_cmp_eq_u32 s{S_G}, 0
    s_cbranch_scc1 g2_loop
    s_barrier
    """)
    reads = []
    for kk in range(2):
        for t in range(4):
            reads.append(f"ds_read_b128 {vr(xf(t,kk))}, v{V_RA} offset:{(t*2+kk)*1024}")
        for c in range(4):
            for h in range(2):
                reads.append(f"ds_read_b64_tr_b16 {vr(wf(c,kk)+2*h,2)}, v{V_RB+c} offset:{(32*kk+4*h)*256}")
    a.raw(".p2align 6")
    a.label("g2_loop")
    if "pretouch" in OPTS:
        a(f"""
        s_sub_u32 s{S_T}, s{S_J}, 4
        s_cmp_lt_u32 s{S_T}, 8
        s_cbranch_scc0 g2_nopt
        s_lshl_b32 s{S_T}, s{S_T}, 10
        s_add_u32 s{S_T}, s{S_T}, s{S_FB+1}
        buffer_load_dwordx4 v[156:159], v155, {sr(SRD_S,4)}, s{S_T} offen
        """)
        a.label("g2_nopt")
    dl = dmaA_list() + dmaB_list()
    di = 0
    for n_, r in enumerate(reads):
        a(r)
        if n_ % 4 == 1 and di < len(dl):
            a(dl[di]); di += 1
    assert di == len(dl)
    a("""
    s_waitcnt vmcnt(12) lgkmcnt(0)
    s_barrier
    s_setprio 1
    """)
    real = a; a = bk = Collect()
    def _adv():
        pass
    bk(f"""
    s_add_u32 s{S_PA}, s{S_PA}, 1
    s_add_u32 s{S_ASL}, s{S_ASL}, 1
    s_add_u32 s{S_MA}, s{S_MA}, {C_ASLOT}
    s_cmp_eq_u32 s{S_ASL}, {C_NA}
    s_cselect_b32 s{S_ASL}, 0, s{S_ASL}
    s_cselect_b32 s{S_MA}, s{S_DA}, s{S_MA}
    s_add_u32 s{S_KA}, s{S_KA}, 2048
    s_cmp_ge_u32 s{S_PA}, {NKS}
    s_cselect_b32 s{SRD_A+2}, 0, s{S_ASZ}
    s_cselect_b32 s{S_MAE}, {LDS_DUMP}, s{S_MA}
    s_add_u32 s{S_PB}, s{S_PB}, 1
    s_add_u32 s{S_BSL}, s{S_BSL}, 1
    s_add_u32 s{S_MB}, s{S_MB}, {C_BSLOT}
    s_cmp_eq_u32 s{S_BSL}, {C_NBS}
    s_cselect_b32 s{S_BSL}, 0, s{S_BSL}
    s_cselect_b32 s{S_MB}, s{S_DB}, s{S_MB}
    s_add_u32 s{S_KB}, s{S_KB}, {1<<17}
    s_lshl_b32 s{S_T}, s{S_CUR}, 8
    s_add_u32 s{S_T}, s{S_T}, s{S_PB}
    s_cmp_eq_u32 s{S_T}, 16
    s_cselect_b32 s{SRD_B}, s{S_W2}, s{SRD_B}
    s_cselect_b32 s{SRD_B+1}, s{S_W2+1}, s{SRD_B+1}
    s_cselect_b32 s{SRD_B+2}, s{S_SZ2}, s{SRD_B+2}
    s_cselect_b32 s{S_KB}, 0, s{S_KB}
    s_cmp_ge_u32 s{S_PB}, {NKS}
    s_cselect_b32 s{SRD_B+2}, 0, s{SRD_B+2}
    s_cselect_b32 s{S_MBE}, {LDS_DUMP}, s{S_MB}
    s_add_u32 s{S_RAS}, s{S_RAS}, 1
    s_cmp_eq_u32 s{S_RAS}, {C_NA}
    s_cselect_b32 s{S_RAS}, 0, s{S_RAS}
    s_cselect_b32 s{S_T}, {C_NA*C_ASLOT}, 0
    s_sub_u32 s{S_T}, {C_ASLOT}, s{S_T}
    v_add_u32 v{V_RA}, s{S_T}, v{V_RA}
    s_add_u32 s{S_RBS}, s{S_RBS}, 1
    s_cmp_eq_u32 s{S_RBS}, {C_NBS}
    s_cselect_b32 s{S_RBS}, 0, s{S_RBS}
    s_cselect_b32 s{S_T}, {C_NBS*C_BSLOT}, 0
    s_sub_u32 s{S_T}, {C_BSLOT}, s{S_T}
    """)
    for c in range(4):
        bk(f"v_add_u32 v{V_RB+c}, s{S_T}, v{V_RB+c}")
    a = real
    mf = []
    for kk in range(2):
        for c in range(4):
            for t in range(4):
                mf.append(f"v_mfma_f32_16x16x32_bf16 {vr(acc(c,t))}, {vr(wf(c,kk))}, {vr(xf(t,kk))}, {vr(acc(c,t))}")
    interleave(a, mf, bk.L, start=1, per=2)
    a(f"""
    s_setprio 0
    s_add_u32 s{S_J}, s{S_J}, 1
    s_lshl_b32 s{S_T}, s{S_G}, 8
    s_add_u32 s{S_T}, s{S_T}, s{S_J}
    s_cmp_eq_u32 s{S_T}, {256 + NKS}
    s_cbranch_scc1 g2_post
    s_cmp_lt_u32 s{S_J}, {NKS}
    s_barrier
    s_cbranch_scc1 g2_loop
    """)
    a.label("g2_post")
    stamp_now(a, 34)
    V_XR = XF; V_XA = T + 1; V_OA = T + 2; PK = WF
    a(f"""
    v_lshlrev_b32 v{T}, 4, v{VL}
    s_cmp_eq_u32 s{S_Q}, s{S_KQ}
    s_cbranch_scc1 g2_own
    s_cmp_eq_u32 s{S_CUR}, s{S_KQ}
    s_cbranch_scc0 g2_pub_done
    s_lshl_b32 s{S_T}, s{S_TILE}, 2
    s_add_u32 s{S_T}, s{S_T}, s{S_KQ}
    s_lshl_b32 s{S_T}, s{S_T}, 3
    s_add_u32 s{S_T}, s{S_T}, s{S_WV}
    s_lshl_b32 s{S_T}, s{S_T}, 13
    s_add_u32 s{S_T2}, s{S_T}, 4096
    """)
    for bp in range(8):
        o = PK + 4 * bp
        for h in range(2):
            b = acc(bp >> 1, (bp & 1) * 2 + h)
            a(f"""
            v_cvt_pk_bf16_f32 v{o+2*h}, v{b}, v{b+1}
            v_cvt_pk_bf16_f32 v{o+2*h+1}, v{b+2}, v{b+3}
            """)
        a(f"buffer_store_dwordx4 {vr(o)}, v{T}, {sr(SRD_S,4)}, s{S_T if bp < 4 else S_T2} offen offset:{(bp%4)*1024} {XF_}")
    a("s_branch g2_pub_done")
    a.label("g2_own")
    a(f"""
    s_lshl_b32 s{S_T}, s{S_NW}, 14
    v_add_u32 v{T+3}, s{S_T}, v{T}
    """)
    for b in range(16):
        a(f"ds_write_b128 v{T+3}, {vr(4*b)} offset:{b*1024}")
    a.label("g2_pub_done")
    a(f"""
    s_lshl_b32 s{S_T}, s{S_MT}, 8
    s_lshl_b32 s{S_T2}, s{S_KQ}, 6
    s_add_u32 s{S_T}, s{S_T}, s{S_T2}
    s_lshl_b32 s{S_T2}, s{S_G}, 5
    s_add_u32 s{S_T}, s{S_T}, s{S_T2}
    v_add_u32 v{T+3}, s{S_T}, v{VT}
    v_lshlrev_b32 v{T+3}, 11, v{T+3}
    s_lshl_b32 s{S_T}, s{S_NT}, 8
    s_lshl_b32 s{S_T2}, s{S_NW}, 7
    s_add_u32 s{S_T}, s{S_T}, s{S_T2}
    s_lshl_b32 s{S_T2}, s{S_MW}, 6
    s_add_u32 s{S_T}, s{S_T}, s{S_T2}
    v_add_u32 v{T+3}, s{S_T}, v{T+3}
    v_lshl_add_u32 v{V_XA}, v{VG}, 3, v{T+3}
    v_and_b32 v{T+4}, 1, v{VG}
    v_lshrrev_b32 v{T+5}, 1, v{VG}
    v_lshl_or_b32 v{T+4}, v{T+4}, 1, v{T+5}
    v_lshl_add_u32 v{V_OA}, v{T+4}, 4, v{T+3}
    s_mov_b32 s{S_T}, {16*2048}
    """)
    for t in range(2):
        for e in range(2):
            so = "0" if t == 0 else f"s{S_T}"
            a(f"buffer_load_dwordx2 {vr(V_XR+(t*2+e)*2,2)}, v{V_XA}, {sr(SRD_X,4)}, {so} offen offset:{e*32}")
    a("s_waitcnt vmcnt(4) lgkmcnt(0)")
    stamp_now(a, 36)
    a(f"""
    s_barrier
    s_cmp_eq_u32 s{S_CUR}, s{S_KQ}
    s_cbranch_scc0 g2_after_publish
    s_cmp_eq_u32 s{S_WV}, 0
    s_cbranch_scc0 g2_wait_done
    s_lshl_b32 s{S_T}, s{S_KQ}, 2
    v_mov_b32 v{T+3}, s{S_DONE}
    v_mov_b32 v{T+4}, s{S_T}
    s_mov_b64 exec, 1
    buffer_store_dword v{T+3}, v{T+4}, {sr(SRD_F,4)}, s{S_FB} offen sc0 sc1
    s_mov_b32 s{S_CNT}, 0
    """)
    a.label("g2_poll")
    a(f"""
    buffer_load_dwordx4 {vr(T+6)}, off, {sr(SRD_F,4)}, s{S_FB} sc0 sc1
    s_waitcnt vmcnt(0)
    v_or_b32 v{T+6}, v{T+6}, v{T+7}
    v_or3_b32 v{T+5}, v{T+6}, v{T+8}, v{T+9}
    s_add_u32 s{S_CNT}, s{S_CNT}, 1
    v_readfirstlane_b32 s{S_ARR}, v{T+5}
    s_nop 3
    s_cmp_eq_u32 s{S_ARR}, {0x77 if "forcefb" in OPTS else 0x01010101}
    s_cbranch_scc1 g2_poll_end
    s_cmp_lt_u32 s{S_CNT}, {64 if "forcefb" in OPTS else 20000}
    s_cbranch_scc1 g2_poll
    """)
    a.label("g2_poll_end")
    if STAMP:
        a(f"v_writelane_b32 v{V_STAMP}, s{S_CNT}, 39")
    if "forcefb" in OPTS:
        a(f"s_and_b32 s{S_ARR}, s{S_ARR}, 0x00010001")
    a(f"""
    v_mov_b32 v{T+5}, s{S_ARR}
    v_mov_b32 v{T+4}, {65536}
    ds_write_b32 v{T+4}, v{T+5}
    s_mov_b64 exec, -1
    s_waitcnt lgkmcnt(0)
    """)
    a.label("g2_wait_done")
    a(f"""
    s_barrier
    v_mov_b32 v{T+4}, {65536}
    ds_read_b32 v{T+5}, v{T+4}
    s_waitcnt lgkmcnt(0)
    v_readfirstlane_b32 s{S_ARR}, v{T+5}
    s_nop 3
    """)
    a.label("g2_after_publish")
    a(f"""
    s_or_b32 s{S_T}, s{S_ARR}, s{S_DONE}
    s_cmp_eq_u32 s{S_T}, 0x01010101
    s_cbranch_scc1 g2_final
    s_andn2_b32 s{S_T}, 0x01010101, s{S_T}
    s_ff1_i32_b32 s{S_T}, s{S_T}
    s_lshl_b32 s{S_T2}, 1, s{S_T}
    s_or_b32 s{S_DONE}, s{S_DONE}, s{S_T2}
    s_lshr_b32 s{S_CUR}, s{S_T}, 3
    s_waitcnt vmcnt(0)
    s_barrier
    s_branch g2_gemm
    """)
    a.label("g2_final")
    stamp_now(a, 35)
    R0 = WF
    a(f"""
    s_andn2_b32 s{S_ARR}, s{S_ARR}, s{S_DONE}
    s_lshl_b32 s{S_T}, s{S_MW}, 2
    s_add_u32 s{S_T}, s{S_T}, s{S_G}
    s_lshl_b32 s{S_T}, s{S_T}, 10             ; pair0 * 1024
    s_lshl_b32 s{S_T2}, s{S_NW}, 13
    s_add_u32 s{S_T3}, s{S_T}, s{S_T2}
    """)
    for src in range(4):
        a(f"""
        s_bitcmp1_b32 s{S_ARR}, {8*src}
        s_cbranch_scc1 g2_ld{src}
        """)
        for r in range(8):
            a(f"v_mov_b32 v{8*src+r}, 0")
        a(f"s_branch g2_ld{src}_done")
        a.label(f"g2_ld{src}")
        a(f"""
        s_lshl_b32 s{S_T}, s{S_TILE}, 2
        s_add_u32 s{S_T}, s{S_T}, {src}
        s_lshl_b32 s{S_T}, s{S_T}, 2
        s_add_u32 s{S_T}, s{S_T}, s{S_KQ}
        s_lshl_b32 s{S_T}, s{S_T}, 14
        s_add_u32 s{S_T}, s{S_T}, s{S_T3}
        """)
        for e in range(2):
            a(f"buffer_load_dwordx4 {vr(8*src+4*e)}, v{T}, {sr(SRD_S,4)}, s{S_T} offen offset:{e*2048} {XF_}")
        a.label(f"g2_ld{src}_done")
    a(f"""
    s_lshl_b32 s{S_T}, s{S_MW}, 3
    s_lshl_b32 s{S_T2}, s{S_G}, 1
    s_add_u32 s{S_T}, s{S_T}, s{S_T2}
    s_lshl_b32 s{S_T}, s{S_T}, 10
    s_lshl_b32 s{S_T2}, s{S_NW}, 14
    s_add_u32 s{S_T}, s{S_T}, s{S_T2}
    v_add_u32 v{T+3}, s{S_T}, v{T}
    """)
    for e in range(2):
        for t in range(2):
            a(f"ds_read_b128 {vr(R0+(e*2+t)*4)}, v{T+3} offset:{e*4096 + t*1024}")
    a("s_waitcnt vmcnt(0) lgkmcnt(0)")
    stamp_now(a, 37)
    for t in range(2):
        o = XF + 16 + t * 4
        for e in range(2):
            c = R0 + (e * 2 + t) * 4
            srcs = [8 * src + 4 * e + 2 * t for src in range(4)] + [V_XR + (t * 2 + e) * 2]
            for p in srcs:
                a(f"""
                v_lshlrev_b32 v{T+8}, 16, v{p}
                v_and_b32 v{T+9}, 0xffff0000, v{p}
                v_lshlrev_b32 v{T+10}, 16, v{p+1}
                v_and_b32 v{T+11}, 0xffff0000, v{p+1}
                v_pk_add_f32 {vr(c,2)}, {vr(c,2)}, {vr(T+8,2)}
                v_pk_add_f32 {vr(c+2,2)}, {vr(c+2,2)}, {vr(T+10,2)}
                """)
            a(f"""
            v_cvt_pk_bf16_f32 v{o+2*e}, v{c}, v{c+1}
            v_cvt_pk_bf16_f32 v{o+2*e+1}, v{c+2}, v{c+3}
            """)
        so = "0" if t == 0 else f"s{S_T2}"
        a(f"""
        s_mov_b32 s{S_T2}, {16*2048}
        s_nop 0
        v_permlane16_swap_b32 v{o}, v{o+2}
        v_permlane16_swap_b32 v{o+1}, v{o+3}
        s_nop 1
        buffer_store_dwordx4 {vr(o)}, v{V_OA}, {sr(SRD_O,4)}, {so} offen
        """)
    stamp_now(a, 51, True)
    stamp_dump(a, S_WSP, S_WV, 40 << 20)
    a.label("g2_exit")
    a("s_endpgm")
    global G2_VGPRS
    G2_VGPRS = 256 if STAMP else 160

HEADER = f"""; mblk_pitch={MBLK_PITCH}
{"" if FUSE else "; @launch kernel=k0_kernel grid=(256,1,1) block=(512,1,1) lds=0"}
; @launch kernel=g1_kernel grid=(256,1,1) block=(512,1,1) lds={G1_LDS}
; @launch kernel=g2_kernel grid=(256,1,1) block=(512,1,1) lds={G2_LDS if 'g2a' in OPTS else G2C_LDS}
.amdgcn_target "amdgcn-amd-amdhsa--gfx950"
.text
"""

def kd(name, vgpr, sgpr):
    return f"""
.amdhsa_kernel {name}
  .amdhsa_next_free_vgpr {vgpr}
  .amdhsa_next_free_sgpr {sgpr}
  .amdhsa_accum_offset {(vgpr + 3) // 4 * 4}
  .amdhsa_group_segment_fixed_size 0
  .amdhsa_kernarg_size 72
  .amdhsa_user_sgpr_count 2
  .amdhsa_user_sgpr_kernarg_segment_ptr 1
  .amdhsa_system_sgpr_workgroup_id_x 1
.end_amdhsa_kernel
"""

def main():
    global STAMP
    if "stamp" in sys.argv[2:]: STAMP = True
    a = Asm()
    gen_k0(a)
    gen_g1(a)
    (gen_g2 if 'g2a' in OPTS else gen_g2c)(a)
    s = HEADER + a.text() + '.section .rodata,"a"\n.p2align 6\n' + kd("k0_kernel", 64, 40) + ".p2align 6\n" + kd("g1_kernel", 256, 102) + ".p2align 6\n" + kd("g2_kernel", G2_VGPRS, 102 if STAMP else 80)
    out = sys.argv[1] if len(sys.argv) > 1 else OUT
    open(out, "w").write(s)

main()
```

```python
import sys

OUT = "parallel_sum__sliding_local_dilated__dense_activation_relu__prompt.s"

class Asm:
    def __init__(self):
        self.L = []
    def __call__(self, s):
        for line in s.strip("\n").split("\n"):
            line = line.strip()
            if line:
                self.L.append("    " + line)
    def label(self, n):
        self.L.append(n + ":")
    def raw(self, s):
        self.L.append(s)
    def text(self):
        return "\n".join(self.L) + "\n"

class Collect:
    def __init__(self): self.L = []
    def __call__(self, s):
        for line in s.strip("\n").split("\n"):
            line = line.strip()
            if line: self.L.append(line)

def interleave(a, mfmas, fillers, start=2, per=2):
    fi = 0
    for n, m in enumerate(mfmas):
        a(m)
        if n >= start:
            for _ in range(per):
                if fi < len(fillers):
                    a(fillers[fi]); fi += 1
    while fi < len(fillers):
        a(fillers[fi]); fi += 1

def vr(b, n=4):
    return "v[%d:%d]" % (b, b + n - 1)
def sr(b, n=2):
    return "s[%d:%d]" % (b, b + n - 1)

MBLK_PITCH = 144 * 1024
for _o in sys.argv[2:]:
    if _o.startswith("pitch="): MBLK_PITCH = int(_o[6:])
A2_BYTES = 128 * MBLK_PITCH

G1_ASLOT = 16384
G1_BBASE = 65536
G1_BSLOT = 28672
G1_HALO = 24576
G1_STAT = G1_BBASE + 3 * G1_BSLOT
G1_CS = G1_STAT + 272 * 8
G1_CSP = G1_STAT + 3072
G1_CS = G1_CSP + 8192
G1_VERD = G1_CS + 896
G1_LDS = 163840 if "fuse" in sys.argv[2:] else G1_STAT
ST_OFF = 28 << 20
XN_OFF = 24 << 20
AT_PITCH = 400

V_ACC = 0
V_HACC = 96
V_XF = 112
V_WF = 144
V_HF = 200
V_S1 = 208
V_S2 = 210
V_SH = 212
V_CS = 214
V_WD = 208
V_WV = 212
V_RA = 217
V_RB = 221
V_RH = 228
V_DA = 230
V_DB = 231
V_DH = 235
V_T = 236
V_LANE = 250
V_TT = 251
V_GG = 252

S_X = 4; S_W = 6; S_WS = 8; S_W1 = 10
SRD_X = 12; SRD_W = 16; SRD_O = 20
S_WAVE = 24; S_MW = 26; S_NW = 27; S_WQ = 28; S_MT = 29; S_JT = 30; S_J = 31
S_KA = 32; S_KB = 33; S_MA = 34; S_MB = 35; S_BD = 36; S_BSL = 37; S_RSL = 38; S_TMP = 39
S_ONES = 40; S_KH = 41; S_TMP2 = 42; S_TMP3 = 43
S_BLK = 44
S_TB = 52
S_PO = 56
S_MASK = 64
S_BSC = 60
S_HD = 61
S_KW = 91
SRD_WW = 64; S_WM = 68; S_GW = 70; S_WPK = 71
V_L16 = 216
SRD_ST = 64; SRD_DBG = 72; S_NTI = 76; S_EV = 77; S_DBGP = 78
V_ONES = 240; V_CHK = 208
S_MAE = 25; S_MBE = 3
LDS_DUMP = 0x28000
SRD_XA = 96
S_WOP = 92; S_W2P = 94; S_PC1 = 62

STAMP = False
FUSE = "fuse" in sys.argv[2:]
OPTS = sys.argv[2:]
STF = "sc0 sc1" if "stsc" in OPTS else ""
STH = "sc0 sc1" if "hwt" in OPTS else ""
V_STAMP = 253
S_SA = 84; S_SB = 86; S_SC = 88; SRD_D = 80; S_SI = 90
def stamp_now(a, idx, real=False):
    if not STAMP: return
    a(f"""
    {"s_memrealtime" if real else "s_memtime"} {sr(S_SC)}
    s_waitcnt lgkmcnt(0)
    v_writelane_b32 v{V_STAMP}, s{S_SC}, {idx}
    """)
def stamp_dump(a, wsreg, wave_sreg, base_off):
    if not STAMP: return
    a(f"""
    s_waitcnt vmcnt(0)
    s_memtime {sr(S_SC)}
    s_waitcnt lgkmcnt(0)
    v_writelane_b32 v{V_STAMP}, s{S_SC}, 63
    s_mov_b32 s{SRD_D}, s{wsreg}
    s_and_b32 s{SRD_D+1}, s{wsreg+1}, 0xffff
    s_mov_b32 s{SRD_D+2}, {64<<20}
    s_mov_b32 s{SRD_D+3}, 0x20000
    s_lshl_b32 s{S_SC}, s2, 3
    s_add_u32 s{S_SC}, s{S_SC}, s{wave_sreg}
    s_lshl_b32 s{S_SC}, s{S_SC}, 8
    s_add_u32 s{S_SC}, s{S_SC}, {base_off}
    v_mbcnt_lo_u32_b32 v254, -1, 0
    v_mbcnt_hi_u32_b32 v254, -1, v254
    v_lshlrev_b32 v254, 2, v254
    buffer_store_dword v{V_STAMP}, v254, {sr(SRD_D,4)}, s{S_SC} offen
    """)

def acc(s, i): return V_ACC + (s * 4 + i) * 4
def xf(i, kk): return V_XF + (i * 2 + kk) * 4
def wf(s, kk): return V_WF + (s * 2 + kk) * 4
def hf(kk): return V_HF + kk * 4

def xlane_sum(a, v, t):
    a(f"""
    v_mov_b32 v{t}, v{v}
    s_nop 1
    v_permlane16_swap_b32 v{v}, v{t}
    s_nop 1
    v_add_f32 v{v}, v{v}, v{t}
    v_mov_b32 v{t}, v{v}
    s_nop 1
    v_permlane32_swap_b32 v{v}, v{t}
    s_nop 1
    v_add_f32 v{v}, v{v}, v{t}
    """)

def xlane_max(a, v, t):
    a(f"""
    v_mov_b32 v{t}, v{v}
    s_nop 1
    v_permlane16_swap_b32 v{v}, v{t}
    s_nop 1
    v_max_f32 v{v}, v{v}, v{t}
    v_mov_b32 v{t}, v{v}
    s_nop 1
    v_permlane32_swap_b32 v{v}, v{t}
    s_nop 1
    v_max_f32 v{v}, v{v}, v{t}
    """)

def reduce64(a, v, t):
    DPP = "row_mask:0xf bank_mask:0xf"
    a(f"""
    s_nop 1
    v_add_f32_dpp v{t}, v{v}, v{v} quad_perm:[1,0,3,2] {DPP}
    s_nop 1
    v_add_f32_dpp v{v}, v{t}, v{t} quad_perm:[2,3,0,1] {DPP}
    s_nop 1
    v_add_f32_dpp v{t}, v{v}, v{v} row_half_mirror {DPP}
    s_nop 1
    v_add_f32_dpp v{v}, v{t}, v{t} row_mirror {DPP}
    """)
    xlane_sum(a, v, t)

def row_stats(a, src, u, dst, t0, t1):
    for r in range(8):
        a(f"""
        v_lshlrev_b32 v{u+2*r}, 16, v{src+r}
        v_and_b32 v{u+2*r+1}, 0xffff0000, v{src+r}
        """)
    a(f"v_pk_add_f32 {vr(dst,2)}, {vr(u,2)}, {vr(u+2,2)}")
    for r in range(2, 8):
        a(f"v_pk_add_f32 {vr(dst,2)}, {vr(dst,2)}, {vr(u+2*r,2)}")
    a(f"v_add_f32 v{t0}, v{dst}, v{dst+1}")
    reduce64(a, t0, t1)
    a(f"v_mul_f32 v{t0}, 0x3a800000, v{t0}          ; mean")
    for r in range(8):
        a(f"v_pk_add_f32 {vr(u+2*r,2)}, {vr(u+2*r,2)}, {vr(t0,2)} op_sel_hi:[1,0] neg_lo:[0,1] neg_hi:[0,1]")
    a(f"v_pk_mul_f32 {vr(dst,2)}, {vr(u,2)}, {vr(u,2)}")
    for r in range(1, 8):
        a(f"v_pk_fma_f32 {vr(dst,2)}, {vr(u+2*r,2)}, {vr(u+2*r,2)}, {vr(dst,2)}")
    a(f"v_add_f32 v{dst+1}, v{dst}, v{dst+1}")
    reduce64(a, dst + 1, t1)
    a(f"""
    v_mul_f32 v{dst+1}, 0x3a800000, v{dst+1}     ; var
    v_cvt_pk_bf16_f32 v{t1}, v{t0}, v{dst+1}
    v_lshlrev_b32 v{dst}, 16, v{t1}              ; m_b
    v_and_b32 v{dst+1}, 0xffff0000, v{t1}        ; v_b
    v_add_f32 v{dst+1}, 0x3727c5ac, v{dst+1}
    v_cvt_pk_bf16_f32 v{dst+1}, v{dst+1}, v{dst+1}
    v_and_b32 v{dst+1}, 0xffff0000, v{dst+1}
    v_sqrt_f32 v{dst+1}, v{dst+1}
    s_nop 0
    v_cvt_pk_bf16_f32 v{dst+1}, v{dst+1}, v{dst+1}
    v_and_b32 v{dst+1}, 0xffff0000, v{dst+1}
    v_rcp_f32 v{dst+1}, v{dst+1}
    s_nop 0
    """)

def g1_path(a, typ, G):
    qkv = (typ == 0)
    NB = 6 if qkv else 7
    PB = 384 if qkv else 448
    CH = PB // 16
    WP = 6144 if qkv else 7168
    halo = qkv and G == 0
    if qkv:
        nB = 3
        p0 = 0 if G == 0 else 12
    else:
        nB = 4 if G == 0 else 3
        p0 = 0 if G == 0 else 16
    nIss = 4 + nB + (1 if halo else 0)
    nBiss = nB + (1 if halo else 0)
    cs_slots = [0, 1] if (qkv or G == 0) else [0, 1, 6]
    P = f"g1_{typ}{G}"
    T = V_T
    a.label(P)
    if STAMP: a(f"v_mov_b32 v{V_STAMP}, 0")
    stamp_now(a, 32); stamp_now(a, 50, True)
    if qkv:
        a(f"""
        s_mov_b32 s{SRD_W}, s{S_W}
        s_and_b32 s{SRD_W+1}, s{S_W+1}, 0xffff
        s_mov_b32 s{SRD_W+2}, {1024*6144}
        s_mov_b32 s{SRD_W+3}, 0x20000
        """)
    else:
        a(f"""
        s_mov_b32 s{SRD_W}, s{S_W1}
        s_and_b32 s{SRD_W+1}, s{S_W1+1}, 0xffff
        s_mov_b32 s{SRD_W+2}, {1024*7168}
        s_mov_b32 s{SRD_W+3}, 0x20000
        """)
    Go = 1 - G
    a(f"""
    v_lshrrev_b32 v{T}, 3, v{V_LANE}                 ; l>>3
    v_and_b32 v{T+1}, 7, v{V_LANE}
    v_xor_b32 v{T+1}, v{T+1}, v{T}                   ; chunk
    s_lshl_b32 s{S_TMP}, s{S_MT}, 8
    s_lshl_b32 s{S_TMP2}, s{S_WQ}, 5
    s_add_u32 s{S_TMP}, s{S_TMP}, s{S_TMP2}
    s_add_u32 s{S_TMP}, s{S_TMP}, {128*Go}
    v_add_u32 v{T+2}, s{S_TMP}, v{T}
    v_lshlrev_b32 v{T+2}, 11, v{T+2}
    v_lshl_add_u32 v{V_DA}, v{T+1}, 4, v{T+2}
    """)
    if halo:
        a(f"""
        s_and_b32 s{S_TMP2}, s{S_WQ}, 1
        s_lshl_b32 s{S_TMP2}, s{S_TMP2}, 3
        v_add_u32 v{T+2}, s{S_TMP2}, v{T}
        s_lshl_b32 s{S_TMP}, s{S_MT}, 8
        s_sub_u32 s{S_TMP}, s{S_TMP}, 16
        v_add_u32 v{T+2}, s{S_TMP}, v{T+2}
        v_max_i32 v{T+2}, 0, v{T+2}
        v_lshlrev_b32 v{T+2}, 11, v{T+2}
        v_lshl_add_u32 v{V_DH}, v{T+1}, 4, v{T+2}
        s_mul_i32 s{S_HD}, s{S_WQ}, {nB*1024}
        s_sub_u32 s{S_HD}, {G1_HALO - p0*1024}, s{S_HD}
        s_lshl_b32 s{S_TMP2}, s{S_TMP2}, 7           ; (wq&1)*1024
        s_add_u32 s{S_HD}, s{S_HD}, s{S_TMP2}
        """)
    magic = (65536 + CH - 1) // CH
    for q in range(64 * CH):
        assert (q * magic) >> 16 == q // CH
    a(f"s_mul_i32 s{S_TMP3}, s{S_WQ}, {nB*64}")
    for i in range(nB):
        a(f"""
        s_add_u32 s{S_TMP}, s{S_TMP3}, {(p0+i)*64}
        v_add_u32 v{T}, s{S_TMP}, v{V_LANE}          ; q
        v_mul_u32_u24 v{T+1}, {magic}, v{T}
        v_lshrrev_b32 v{T+1}, 16, v{T+1}             ; k
        v_mul_u32_u24 v{T+2}, {CH}, v{T+1}
        v_sub_u32 v{T+2}, v{T}, v{T+2}               ; c'
        """)
        if qkv:
            a(f"""
            v_bfe_u32 v{T+3}, v{T+1}, 1, 1
            v_bfe_u32 v{T+4}, v{T+1}, 3, 1
            v_lshl_or_b32 v{T+3}, v{T+4}, 1, v{T+3}  ; f
            v_lshrrev_b32 v{T+4}, 1, v{T+2}
            v_xor_b32 v{T+4}, v{T+4}, v{T+3}         ; unit (0..11)
            v_cmp_le_u32 vcc, 6, v{T+4}
            s_nop 1
            v_cndmask_b32 v{T+5}, 0, 1, vcc          ; hh
            v_mul_u32_u24 v{T+6}, 6, v{T+5}
            v_sub_u32 v{T+6}, v{T+4}, v{T+6}         ; unit % 6
            v_lshrrev_b32 v{T+7}, 1, v{T+6}          ; part
            v_and_b32 v{T+6}, 1, v{T+6}              ; half32
            v_lshlrev_b32 v{T+7}, 11, v{T+7}         ; part*2048
            v_lshl_add_u32 v{T+7}, v{T+5}, 6, v{T+7} ; + hh*64
            v_lshl_add_u32 v{T+7}, v{T+6}, 5, v{T+7} ; + half32*32
            v_and_b32 v{T+6}, 1, v{T+2}
            v_lshl_add_u32 v{T+7}, v{T+6}, 4, v{T+7} ; + (c'&1)*16
            s_lshl_b32 s{S_TMP}, s{S_JT}, 7          ; 2 jt * 64
            v_add_u32 v{T+7}, s{S_TMP}, v{T+7}
            v_mul_u32_u24 v{T+1}, {WP}, v{T+1}
            v_add_u32 v{V_DB+i}, v{T+1}, v{T+7}
            """)
        else:
            a(f"""
            v_bfe_u32 v{T+3}, v{T+1}, 3, 1
            v_lshlrev_b32 v{T+3}, 1, v{T+3}
            v_xor_b32 v{T+2}, v{T+2}, v{T+3}         ; c = c' ^ (2*bit3(k))
            v_lshlrev_b32 v{T+2}, 4, v{T+2}
            s_mul_i32 s{S_TMP}, s{S_JT}, 448
            v_add_u32 v{T+2}, s{S_TMP}, v{T+2}
            v_mul_u32_u24 v{T+1}, {WP}, v{T+1}
            v_add_u32 v{V_DB+i}, v{T+1}, v{T+2}
            """)
    a(f"""
    s_lshl_b32 s{S_KA}, s{S_MT}, {8 if FUSE else 31}
    s_and_b32 s{S_KA}, s{S_KA}, 0x7ff
    s_mul_i32 s{S_KB}, s{S_MT}, {128*WP if FUSE else 0}
    s_mov_b32 s{S_KH}, s{S_KA}
    s_lshl_b32 s{S_MA}, s{S_WQ}, 12
    s_add_u32 s{S_MA}, s{S_MA}, {Go*2*G1_ASLOT}
    s_mul_i32 s{S_MB}, s{S_WQ}, {nB*1024}
    s_add_u32 s{S_MB}, s{S_MB}, {G1_BBASE + p0*1024}
    s_mov_b32 s{S_BSL}, 0
    """)
    def dma_A():
        for i in range(4):
            a(f"""
            s_add_u32 m0, s{S_MA}, {i*1024}
            s_add_u32 s{S_TMP}, s{S_KA}, {i*16384}
            buffer_load_dwordx4 v{V_DA}, {sr(SRD_XA,4)}, s{S_TMP} offen lds
            """)
        a(f"""
        s_add_u32 s{S_KA}, s{S_KA}, 128
        s_and_b32 s{S_KA}, s{S_KA}, 0x7ff
        s_xor_b32 s{S_MA}, s{S_MA}, {G1_ASLOT}
        """)
    def dma_B():
        for i in range(nB):
            a(f"""
            s_add_u32 m0, s{S_MB}, {i*1024}
            s_nop 0
            buffer_load_dwordx4 v{V_DB+i}, {sr(SRD_W,4)}, s{S_KB} offen lds
            """)
        if halo:
            a(f"""
            s_add_u32 m0, s{S_MB}, s{S_HD}
            s_nop 0
            buffer_load_dwordx4 v{V_DH}, {sr(SRD_X,4)}, s{S_KH} offen lds
            s_add_u32 s{S_KH}, s{S_KH}, 128
            s_and_b32 s{S_KH}, s{S_KH}, 0x7ff
            """)
        a(f"""
        s_add_u32 s{S_KB}, s{S_KB}, {64*WP}
        s_cmp_eq_u32 s{S_KB}, {1024*WP}
        s_cselect_b32 s{S_KB}, 0, s{S_KB}
        s_add_u32 s{S_BSL}, s{S_BSL}, 1
        s_add_u32 s{S_MB}, s{S_MB}, {G1_BSLOT}
        s_cmp_eq_u32 s{S_BSL}, 3
        s_cselect_b32 s{S_TMP}, {3*G1_BSLOT}, 0
        s_cselect_b32 s{S_BSL}, 0, s{S_BSL}
        s_sub_u32 s{S_MB}, s{S_MB}, s{S_TMP}
        """)
    if G == 0:
        dma_B(); dma_A(); dma_B()
        pro_wait = 4 + nBiss
    else:
        dma_A(); dma_B(); dma_A(); dma_B()
        pro_wait = 4 + nBiss
    WARM = "nowarmw" not in OPTS and not FUSE
    a(f"""
    s_and_b32 s{S_WOP+1}, s{S_WOP+1}, 0xffff
    s_and_b32 s{S_W2P+1}, s{S_W2P+1}, 0xffff
    s_lshl_b32 s{S_GW}, s2, 3
    s_add_u32 s{S_GW}, s{S_GW}, s{S_WAVE}
    s_lshl_b32 s{S_GW}, s{S_GW}, 10
    v_lshlrev_b32 v{V_L16}, 4, v{V_LANE}
    s_mov_b32 s{S_WPK}, {128*WP}
    s_mov_b32 s{S_KW}, 0
    """)
    if WARM:
        a(f"""
        v_min_u32 v{T}, {2*CH - 1}, v{V_LANE}
        v_cmp_le_u32 vcc, {CH}, v{T}
        s_lshl_b32 s{S_TMP}, s{S_MT}, 4
        s_lshl_b32 s{S_TMP2}, s{S_WAVE}, 1
        v_cndmask_b32 v{T+1}, 0, 1, vcc              ; row
        s_add_u32 s{S_TMP}, s{S_TMP}, s{S_TMP2}
        v_mul_u32_u24 v{T+2}, {CH}, v{T+1}
        v_sub_u32 v{T}, v{T}, v{T+2}                 ; chunk
        v_add_u32 v{T+1}, s{S_TMP}, v{T+1}
        v_mul_u32_u24 v{T+1}, {WP}, v{T+1}
        """)
        if qkv:
            a(f"""
            v_lshrrev_b32 v{T+2}, 3, v{T}
            v_lshl_add_u32 v{T+1}, v{T+2}, 11, v{T+1}
            v_and_b32 v{T}, 7, v{T}
            s_lshl_b32 s{S_TMP}, s{S_JT}, 7
            """)
        else:
            a(f"s_mul_i32 s{S_TMP}, s{S_JT}, 448")
        a(f"""
        v_lshl_add_u32 v{T+1}, v{T}, 4, v{T+1}
        v_add_u32 v{V_WV}, s{S_TMP}, v{T+1}
        s_mov_b32 s{S_KW}, {256*WP}
        buffer_load_dwordx4 {vr(V_WD)}, v{V_WV}, {sr(SRD_W,4)}, s{S_KW} offen
        s_mov_b32 s{S_KW}, {384*WP}
        buffer_load_dwordx4 {vr(V_WD)}, v{V_WV}, {sr(SRD_W,4)}, s{S_KW} offen
        s_mov_b32 s{S_KW}, {512*WP}
        s_mov_b32 s{SRD_WW}, s{SRD_W}
        s_mov_b32 s{SRD_WW+1}, s{SRD_W+1}
        s_mov_b32 s{SRD_WW+2}, s{SRD_W+2}
        s_mov_b32 s{SRD_WW+3}, 0x20000
        s_and_b32 s{S_WOP+1}, s{S_WOP+1}, 0xffff
        s_and_b32 s{S_W2P+1}, s{S_W2P+1}, 0xffff
        s_mov_b32 s{S_WPK}, {128*WP}
        s_lshl_b32 s{S_GW}, s2, 3
        s_add_u32 s{S_GW}, s{S_GW}, s{S_WAVE}
        s_lshl_b32 s{S_GW}, s{S_GW}, 10
        v_lshlrev_b32 v{V_L16}, 4, v{V_LANE}
        """)
        pro_wait += 2
        nIss += 1
    NCOL = 16 * 2 * NB
    VCS = 216 - 4 * len(cs_slots)
    if FUSE:
        a(f"""
        s_add_u32 s{SRD_ST}, s{S_WS}, {ST_OFF}
        s_addc_u32 s{SRD_ST+1}, s{S_WS+1}, 0
        s_and_b32 s{SRD_ST+1}, s{SRD_ST+1}, 0xffff
        s_mov_b32 s{SRD_ST+2}, {65536 + 262144}
        s_mov_b32 s{SRD_ST+3}, 0x20000
        s_mov_b32 s{SRD_DBG}, s{S_DBGP}
        s_and_b32 s{SRD_DBG+1}, s{S_DBGP+1}, 0xffff
        s_mov_b32 s{SRD_DBG+2}, 256
        s_mov_b32 s{SRD_DBG+3}, 0x20000
        s_add_u32 s{S_NTI}, s{S_JT}, {16*typ}
        s_mov_b32 s{S_EV}, {(1<<2) | (1<<5) | (1<<12) | (1<<14) if G == 0 else (1<<2)}
        """)
        if G == 1:
            a(f"""
            s_lshl_b32 s{S_TMP}, s{S_MT}, 8
            s_lshl_b32 s{S_TMP2}, s{S_NTI}, 3
            s_add_u32 s{S_TMP}, s{S_TMP}, s{S_TMP2}
            s_lshl_b32 s{S_TMP2}, s{S_WQ}, 1
            s_add_u32 s{S_KW}, s{S_TMP}, s{S_TMP2}
            s_lshl_b32 s{S_TMP}, s{S_KW}, 11
            """)
            for i in range(4):
                a(f"buffer_load_dwordx4 {vr(V_XF+4*i)}, v{V_L16}, {sr(SRD_X,4)}, s{S_TMP} offen offset:{1024*i}")
            pro_wait += 4
    if qkv:
        if G == 0:
            a(f"""
            s_mul_i32 s{S_TMP}, s{S_NW}, 6
            s_lshl_b32 s{S_TMP2}, s{S_MW}, 1
            s_add_u32 s{S_BLK+0}, s{S_TMP}, s{S_TMP2}
            s_add_u32 s{S_BLK+0}, s{S_BLK+0}, 2
            s_add_u32 s{S_BLK+1}, s{S_BLK+0}, 1
            s_mov_b32 s{S_BLK+2}, s{S_TMP}
            s_add_u32 s{S_BLK+3}, s{S_TMP}, 1
            s_sub_u32 s{S_BLK+4}, s{S_TMP}, s{S_TMP2}
            s_add_u32 s{S_BLK+4}, s{S_BLK+4}, 4
            s_add_u32 s{S_BLK+5}, s{S_BLK+4}, 1
            """)
        else:
            a(f"s_mul_i32 s{S_TMP}, s{S_NW}, 6")
            for s in range(6):
                a(f"s_add_u32 s{S_BLK+s}, s{S_TMP}, {s}")
    else:
        a(f"s_lshl_b32 s{S_TMP2}, s{S_NW}, 3")
        for ps in range(3):
            a(f"""
            s_add_u32 s{S_TMP}, s{S_MW}, {(ps + 2*G) % 3}
            s_cmp_ge_u32 s{S_TMP}, 3
            s_cselect_b32 s{S_TMP3}, 3, 0
            s_sub_u32 s{S_TMP}, s{S_TMP}, s{S_TMP3}
            s_lshl_b32 s{S_TMP}, s{S_TMP}, 1
            s_add_u32 s{S_BLK+2*ps}, s{S_TMP}, s{S_TMP2}
            s_add_u32 s{S_BLK+2*ps+1}, s{S_BLK+2*ps}, 1
            """)
        a(f"s_add_u32 s{S_BLK+6}, s{S_NW}, 6")
    a(f"""
    v_and_b32 v{T}, 7, v{V_TT}
    v_xor_b32 v{T}, v{V_GG}, v{T}                    ; g ^ (t&7)
    v_lshlrev_b32 v{T}, 4, v{T}
    v_lshl_add_u32 v{T}, v{V_TT}, 7, v{T}
    s_lshl_b32 s{S_TMP}, s{S_MW}, 13
    s_add_u32 s{S_TMP}, s{S_TMP}, {G*2*G1_ASLOT}
    s_lshl_b32 s{S_TMP2}, s{S_NW}, 12
    s_add_u32 s{S_TMP3}, s{S_TMP}, s{S_TMP2}
    v_add_u32 v{V_RA+0}, s{S_TMP3}, v{T}
    v_xor_b32 v{V_RA+1}, 64, v{V_RA+0}
    s_xor_b32 s{S_TMP2}, s{S_TMP2}, 4096
    s_add_u32 s{S_TMP3}, s{S_TMP}, s{S_TMP2}         ; sp=1
    v_add_u32 v{V_RA+2}, s{S_TMP3}, v{T}
    v_xor_b32 v{V_RA+3}, 64, v{V_RA+2}
    """)
    if halo:
        a(f"""
        v_add_u32 v{V_RH+0}, {G1_BBASE + G1_HALO}, v{T}
        v_xor_b32 v{V_RH+1}, 64, v{V_RH+0}
        """)
    a(f"""
    v_lshrrev_b32 v{T}, 2, v{V_TT}                   ; r
    v_lshl_add_u32 v{T+1}, v{V_GG}, 3, v{T}          ; 8g + r
    v_mul_u32_u24 v{T+1}, {PB}, v{T+1}
    v_and_b32 v{T+2}, 3, v{V_LANE}
    v_lshl_add_u32 v{T+1}, v{T+2}, 3, v{T+1}         ; + c*8
    v_add_u32 v{T+1}, {G1_BBASE}, v{T+1}
    v_and_b32 v{T+2}, 1, v{V_GG}                     ; g&1
    """)
    if qkv:
        a(f"""
        v_lshrrev_b32 v{T+3}, 1, v{T}                ; bit1(r)
        v_lshl_or_b32 v{T+2}, v{T+2}, 1, v{T+3}      ; f
        """)
    for s in range(NB):
        a(f"""
        v_xor_b32 v{T+3}, s{S_BLK+s}, v{T+2}
        v_lshl_add_u32 v{V_RB+s}, v{T+3}, 5, v{T+1}
        """)
    nacc = (NB * 4) * 4
    for r in range(V_ACC, V_ACC + nacc):
        a(f"v_mov_b32 v{r}, 0")
    if halo:
        for r in range(V_HACC, V_HACC + 8):
            a(f"v_mov_b32 v{r}, 0")
    if FUSE:
        for r in range(4 * len(cs_slots)):
            a(f"v_mov_b32 v{VCS+r}, 0")
        for r in range(4):
            a(f"v_mov_b32 v{V_ONES+r}, 0x3f803f80")
    a(f"""
    s_mov_b32 s{S_BSC}, {G1_BSLOT}
    s_mov_b32 s{S_J}, 0
    s_mov_b32 s{S_RSL}, 0
    s_waitcnt vmcnt({pro_wait})
    s_barrier
    """)
    stamp_now(a, 33)
    if G == 1:
        if FUSE:
            a("s_waitcnt vmcnt(0)")
            row_stats(a, V_XF, V_WF, V_WF + 16, V_WF + 20, V_WF + 21)
            row_stats(a, V_XF + 8, V_WF, V_WF + 18, V_WF + 20, V_WF + 21)
            a(f"""
            v_lshlrev_b32 v{V_WF+20}, 24, v{V_LANE}
            s_lshl_b32 s{S_TMP}, s{S_KW}, 3
            buffer_store_dwordx4 {vr(V_WF+16)}, v{V_WF+20}, {sr(SRD_ST,4)}, s{S_TMP} offen sc0 sc1
            """)
        a("s_barrier")
    if STAMP: a(f"s_mov_b32 s{S_SB}, 0")

    def rd_x(i):
        sp, e = i >> 1, i & 1
        for kk in range(2):
            a(f"ds_read_b128 {vr(xf(i,kk))}, v{V_RA+sp*2+kk} offset:{e*2048}")
    def rd_w(s):
        for kk in range(2):
            for h in range(2):
                a(f"ds_read_b64_tr_b16 {vr(wf(s,kk)+2*h,2)}, v{V_RB+s} offset:{(32*kk+4*h)*PB}")
    def dma_list():
        L = []
        for i in range(4):
            L.append(f"""
            s_add_u32 m0, s{S_MAE}, {i*1024}
            s_add_u32 s{S_TMP}, s{S_KA}, {i*16384}
            buffer_load_dwordx4 v{V_DA}, {sr(SRD_XA,4)}, s{S_TMP} offen lds
            """)
        for i in range(nB):
            L.append(f"""
            s_add_u32 m0, s{S_MBE}, {i*1024}
            s_nop 0
            buffer_load_dwordx4 v{V_DB+i}, {sr(SRD_W,4)}, s{S_KB} offen lds
            """)
        if halo:
            L.append(f"""
            s_add_u32 m0, s{S_MBE}, s{S_HD}
            s_nop 0
            buffer_load_dwordx4 v{V_DH}, {sr(SRD_X,4)}, s{S_KH} offen lds
            """)
        if WARM:
            L.append(f"buffer_load_dwordx4 {vr(V_WD)}, v{V_WV}, {sr(SRD_WW,4)}, s{S_KW} offen")
        return L
    a(f"""
    s_mov_b32 s{S_MAE}, s{S_MA}
    s_mov_b32 s{S_MBE}, s{S_MB}
    """)
    reads = []
    for i in range(4):
        sp, e = i >> 1, i & 1
        for kk in range(2):
            reads.append((kk, f"ds_read_b128 {vr(xf(i,kk))}, v{V_RA+sp*2+kk} offset:{e*2048}"))
    if halo:
        for kk in range(2):
            reads.append((kk, f"ds_read_b128 {vr(hf(kk))}, v{V_RH+kk}"))
    for s_ in range(NB):
        for kk in range(2):
            for h in range(2):
                reads.append((kk, f"ds_read_b64_tr_b16 {vr(wf(s_,kk)+2*h,2)}, v{V_RB+s_} offset:{(32*kk+4*h)*PB}"))
    reads = [r for k_, r in reads if k_ == 0] + [r for k_, r in reads if k_ == 1]

    bk = Collect()
    bk(f"""
    s_add_u32 s{S_KA}, s{S_KA}, 128
    s_and_b32 s{S_KA}, s{S_KA}, 0x7ff
    s_xor_b32 s{S_MA}, s{S_MA}, {G1_ASLOT}
    s_cmp_ge_u32 s{S_J}, {14 if G == 0 else 13}
    s_cselect_b32 s{SRD_XA+2}, 0, s{SRD_XA+2}
    s_cselect_b32 s{S_MAE}, {LDS_DUMP}, s{S_MA}
    s_add_u32 s{S_KH}, s{S_KH}, 128
    s_and_b32 s{S_KH}, s{S_KH}, 0x7ff
    s_add_u32 s{S_KW}, s{S_KW}, s{S_WPK}
    s_add_u32 s{S_KB}, s{S_KB}, {64*WP}
    s_cmp_eq_u32 s{S_KB}, {1024*WP}
    s_cselect_b32 s{S_KB}, 0, s{S_KB}
    s_add_u32 s{S_BSL}, s{S_BSL}, 1
    s_add_u32 s{S_MB}, s{S_MB}, {G1_BSLOT}
    s_cmp_eq_u32 s{S_BSL}, 3
    s_cselect_b32 s{S_TMP}, {3*G1_BSLOT}, 0
    s_cselect_b32 s{S_BSL}, 0, s{S_BSL}
    s_sub_u32 s{S_MB}, s{S_MB}, s{S_TMP}
    s_cmp_ge_u32 s{S_J}, 13
    s_cselect_b32 s{S_MBE}, {LDS_DUMP}, s{S_MB}
    s_cselect_b32 s{SRD_W+2}, 0, s{SRD_W+2}
    s_cselect_b32 s{SRD_X+2}, 0, s{SRD_X+2}
    s_add_u32 s{S_RSL}, s{S_RSL}, 1
    s_cmp_eq_u32 s{S_RSL}, 3
    s_cselect_b32 s{S_BD}, {(-2*G1_BSLOT) & 0xffffffff}, s{S_BSC}
    s_cselect_b32 s{S_RSL}, 0, s{S_RSL}
    """)
    for r in range(4):
        bk(f"v_xor_b32 v{V_RA+r}, {G1_ASLOT}, v{V_RA+r}")
    for s_ in range(NB):
        bk(f"v_add_u32 v{V_RB+s_}, s{S_BD}, v{V_RB+s_}")
    if halo:
        for kk in range(2):
            bk(f"v_add_u32 v{V_RH+kk}, s{S_BD}, v{V_RH+kk}")
    BKL = "bkC" not in OPTS
    a.raw(".p2align 6")
    a.label(P + "_loop")
    if STAMP: a(f"s_memtime {sr(S_SA)}")
    dl = dma_list()
    step = max(3, len(reads) // len(dl))
    order = "rdfirst" if "rdfirst" in OPTS else "mix"
    if order == "rdfirst":
        for r in reads: a(r)
        for d in dl: a(d)
    else:
        di = 0
        for n_, r in enumerate(reads):
            a(r)
            if (n_ % step) == 1 and di < len(dl):
                a(dl[di]); di += 1
        while di < len(dl):
            a(dl[di]); di += 1
    if BKL:
        for l_ in bk.L: a(l_)
    if STAMP: a(f"s_memtime {sr(100)}")
    if FUSE:
        a(f"""
        s_bitcmp1_b32 s{S_EV}, s{S_J}
        s_cbranch_scc1 {P}_event
        """)
    a(f"s_waitcnt vmcnt({0 if 'strictwait' in OPTS else nIss}) lgkmcnt(0)")
    a.label(P + "_afterwait")
    if STAMP:
        a(f"""
        s_lshl_b32 s{S_SI}, s{S_J}, 1
        s_mov_b32 m0, s{S_SI}
        s_nop 3
        v_writelane_b32 v{V_STAMP}, s{S_SA}, m0
        s_add_u32 s{S_SI}, s{S_SI}, 63
        s_and_b32 m0, s{S_SI}, 63
        s_nop 3
        v_writelane_b32 v{V_STAMP}, s{S_SB}, m0
        s_memtime {sr(S_SC)}
        s_cmp_eq_u32 s{S_J}, 8
        s_cbranch_scc0 {P}_nost
        s_waitcnt lgkmcnt(0)
        v_writelane_b32 v{V_STAMP}, s{S_SA}, 40
        v_writelane_b32 v{V_STAMP}, s100, 41
        v_writelane_b32 v{V_STAMP}, s{S_SC}, 42
        """)
        a.label(P + "_nost")
    a("s_barrier")
    if STAMP: a(f"s_memtime {sr(S_SB)}")
    a("s_setprio 1")
    mf = []
    for kk in range(2):
        for s_ in range(NB):
            for i in range(4):
                mf.append(f"v_mfma_f32_16x16x32_bf16 {vr(acc(s_,i))}, {vr(wf(s_,kk))}, {vr(xf(i,kk))}, {vr(acc(s_,i))}")
        if halo:
            for s_ in range(2):
                mf.append(f"v_mfma_f32_16x16x32_bf16 {vr(V_HACC+4*s_)}, {vr(wf(s_,kk))}, {vr(hf(kk))}, {vr(V_HACC+4*s_)}")
    interleave(a, mf, [] if BKL else bk.L, start=2, per=1)
    if FUSE:
        a(f"""
        s_cmp_lt_u32 s{S_J}, 2
        s_cbranch_scc0 {P}_nocs
        """)
        for kk in range(2):
            for ci, s_ in enumerate(cs_slots):
                a(f"v_mfma_f32_16x16x32_bf16 {vr(VCS+4*ci)}, {vr(wf(s_,kk))}, {vr(V_ONES)}, {vr(VCS+4*ci)}")
        a.label(P + "_nocs")
    a(f"""
    s_setprio 0
    s_add_u32 s{S_J}, s{S_J}, 1
    s_cmp_lt_u32 s{S_J}, 16
    """)
    if G == 0:
        a(f"""
        s_barrier
        s_cbranch_scc1 {P}_loop
        s_branch {P}_post
        """)
    else:
        a(f"""
        s_cbranch_scc0 {P}_post
        s_barrier
        s_branch {P}_loop
        """)
    if FUSE:
        a.label(P + "_event")
        if G == 0:
            a(f"""
            s_cmp_eq_u32 s{S_J}, 2
            s_cbranch_scc0 {P}_ev5
            """)
        a(f"""
        v_lshlrev_b32 v{T}, 24, v{V_TT}
        v_lshl_add_u32 v{T}, v{V_GG}, 4, v{T}
        s_lshl_b32 s{S_TMP2}, s{S_NTI}, 3
        s_add_u32 s{S_TMP2}, s{S_TMP2}, s{S_MT}
        s_lshl_b32 s{S_TMP2}, s{S_TMP2}, 10
        s_add_u32 s{S_TMP2}, s{S_TMP2}, 65536
        """)
        for ci, s_ in enumerate(cs_slots):
            a(f"""
            s_lshl_b32 s{S_TMP}, s{S_BLK+s_}, 6
            s_add_u32 s{S_TMP}, s{S_TMP}, s{S_TMP2}
            buffer_store_dwordx4 {vr(VCS+4*ci)}, v{T}, {sr(SRD_ST,4)}, s{S_TMP} offen sc0 sc1
            """)
        a(f"""
        s_waitcnt vmcnt({nIss + len(cs_slots)}) lgkmcnt(0)
        s_branch {P}_afterwait
        """)
        if G == 0:
            a.label(P + "_ev5")
            a(f"""
            s_cmp_eq_u32 s{S_J}, 14
            s_cbranch_scc1 {P}_ev14
            s_sub_u32 s{S_TMP}, s{S_MT}, 1
            s_max_i32 s{S_TMP}, s{S_TMP}, 0
            s_lshl_b32 s{S_TMP}, s{S_TMP}, 2
            s_lshl_b32 s{S_TMP2}, s{S_NTI}, 2
            s_add_u32 s{S_TMP2}, s{S_TMP2}, 32
            s_lshl_b32 s{S_TMP3}, s{S_MT}, 2
            v_mov_b32 v{T}, 0x1000
            v_writelane_b32 v{T}, s{S_TMP3}, 0
            v_writelane_b32 v{T}, s{S_TMP2}, 1
            s_cmp_lg_u32 s{S_WAVE}, 0
            s_cselect_b32 s{S_TMP2}, 0x1000, 0
            s_cmp_eq_u32 s{S_J}, 5
            s_cbranch_scc0 {P}_ev12
            v_mov_b32 v{T+1}, 1
            buffer_atomic_add v{T+1}, v{T}, {sr(SRD_DBG,4)}, s{S_TMP2} offen sc1
            s_waitcnt vmcnt({nIss + 1}) lgkmcnt(0)
            s_branch {P}_afterwait
            """)
            a.label(P + "_ev12")
            a(f"""
            v_writelane_b32 v{T}, s{S_TMP}, 2
            s_nop 1
            buffer_load_dword v{V_CHK}, v{T}, {sr(SRD_DBG,4)}, s{S_TMP2} offen sc0 sc1
            s_waitcnt vmcnt({nIss + 1}) lgkmcnt(0)
            s_branch {P}_afterwait
            """)
            a.label(P + "_ev14")
            a(f"""
            s_cmp_eq_u32 s{S_WQ}, 0
            s_cbranch_scc0 {P}_ev14b
            s_lshl_b32 s{S_TMP}, s{S_MT}, 11
            s_sub_u32 s{S_TMP}, s{S_TMP}, 128
            v_add_u32 v{T}, s{S_TMP}, v{V_L16}
            v_max_i32 v{T}, 0, v{T}
            s_add_u32 s{S_TMP}, s{S_TMP}, 1024
            v_add_u32 v{T+1}, s{S_TMP}, v{V_L16}
            s_mov_b32 m0, {G1_STAT}
            s_nop 0
            buffer_load_dwordx4 v{T}, {sr(SRD_ST,4)}, 0 offen sc0 sc1 lds
            s_mov_b32 m0, {G1_STAT + 1024}
            s_nop 0
            buffer_load_dwordx4 v{T+1}, {sr(SRD_ST,4)}, 0 offen sc0 sc1 lds
            buffer_load_dwordx4 v{T+1}, {sr(SRD_ST,4)}, 0 offen offset:1024 sc0 sc1 lds
            s_waitcnt vmcnt({nIss + 3}) lgkmcnt(0)
            s_branch {P}_afterwait
            """)
            a.label(P + "_ev14b")
            a(f"""
            s_mul_i32 s{S_TMP}, s{S_WQ}, 3072
            s_sub_u32 s{S_TMP}, s{S_TMP}, 3072
            s_add_u32 m0, s{S_TMP}, {G1_CSP}
            s_lshl_b32 s{S_TMP2}, s{S_NTI}, 13
            s_add_u32 s{S_TMP2}, s{S_TMP2}, s{S_TMP}
            s_add_u32 s{S_TMP2}, s{S_TMP2}, 65536
            buffer_load_dwordx4 v{V_L16}, {sr(SRD_ST,4)}, s{S_TMP2} offen sc0 sc1 lds
            buffer_load_dwordx4 v{V_L16}, {sr(SRD_ST,4)}, s{S_TMP2} offen offset:1024 sc0 sc1 lds
            s_cmp_eq_u32 s{S_WQ}, 3
            s_cselect_b32 s{S_TMP}, {LDS_DUMP}, m0
            s_mov_b32 m0, s{S_TMP}
            s_nop 0
            buffer_load_dwordx4 v{V_L16}, {sr(SRD_ST,4)}, s{S_TMP2} offen offset:2048 sc0 sc1 lds
            s_waitcnt vmcnt({nIss + 3}) lgkmcnt(0)
            s_branch {P}_afterwait
            """)
    a.label(P + "_post")
    if STAMP:
        a(f"""
        s_waitcnt lgkmcnt(0)
        v_writelane_b32 v{V_STAMP}, s{S_SB}, 31
        """)
    stamp_now(a, 34)
    if FUSE:
        if G == 0:
            a(f"""
            v_mov_b32 v{T}, 0
            v_writelane_b32 v{T}, 32, 0
            v_writelane_b32 v{T}, 8, 1
            v_writelane_b32 v{T}, 32, 2
            s_nop 1
            v_cmp_ne_u32 vcc, v{T}, v{V_CHK}
            s_nop 3
            s_and_b32 s{S_TMP}, vcc_lo, 7
            """)
            if "forceslow" in OPTS: a(f"s_mov_b32 s{S_TMP}, 1")
            a(f"""
            v_mov_b32 v{T}, {G1_VERD}
            v_mov_b32 v{T+1}, s{S_TMP}
            s_cmp_eq_u32 s{S_WAVE}, 0
            s_cbranch_scc0 {P}_red
            ds_write_b32 v{T}, v{T+1}
            """)
        a.label(P + "_red")
        if G == 0:
            a(f"""
            s_lshl_b32 s{S_TMP}, s{S_WQ}, 8
            v_lshl_add_u32 v{T}, v{V_LANE}, 2, s{S_TMP}  ; thread * 4
            v_add_u32 v{T+1}, {G1_CSP}, v{T}
            """)
            for m in range(8):
                a(f"ds_read_b32 v{V_XF+m}, v{T+1} offset:{1024*m}")
            a(f"""
            v_min_u32 v{T}, {4*NCOL - 4}, v{T}
            v_add_u32 v{T}, {G1_CS}, v{T}
            v_cmp_gt_u32 vcc, {4*NCOL + G1_CSP}, v{T+1}
            s_waitcnt lgkmcnt(0)
            """)
            for m in range(1, 8):
                a(f"v_add_f32 v{V_XF}, v{V_XF}, v{V_XF+m}")
            a(f"""
            s_and_saveexec_b64 {sr(S_TMP2)}, vcc
            ds_write_b32 v{T}, v{V_XF}
            s_mov_b64 exec, -1
            s_waitcnt lgkmcnt(0)
            """)
        a(f"""
        s_barrier
        v_mov_b32 v{T}, {G1_VERD}
        ds_read_b32 v{T+1}, v{T}
        s_waitcnt lgkmcnt(0)
        v_readfirstlane_b32 s{S_TMP}, v{T+1}
        s_nop 3
        s_cmp_eq_u32 s{S_TMP}, 0
        s_cbranch_scc1 {P}_fast
        s_barrier
        s_mov_b32 s{SRD_X+2}, {2048*2048}
        s_mov_b32 s{SRD_W+2}, {1024*WP}
        s_mov_b32 s{S_J}, s{S_WAVE}
        """)
        a.label(P + "_slow1")
        a(f"""
        s_lshl_b32 s{S_TMP}, s{S_MT}, 8
        s_add_u32 s{S_TMP}, s{S_TMP}, s{S_J}
        s_sub_u32 s{S_TMP}, s{S_TMP}, 16
        s_max_i32 s{S_TMP}, s{S_TMP}, 0
        s_lshl_b32 s{S_TMP}, s{S_TMP}, 11
        buffer_load_dwordx4 {vr(V_XF)}, v{V_L16}, {sr(SRD_X,4)}, s{S_TMP} offen
        buffer_load_dwordx4 {vr(V_XF+4)}, v{V_L16}, {sr(SRD_X,4)}, s{S_TMP} offen offset:1024
        s_waitcnt vmcnt(0)
        """)
        row_stats(a, V_XF, V_WF, V_WF + 16, V_WF + 20, V_WF + 21)
        a(f"""
        s_lshl_b32 s{S_TMP}, s{S_J}, 3
        s_add_u32 s{S_TMP}, s{S_TMP}, {G1_STAT}
        v_mov_b32 v{T}, s{S_TMP}
        ds_write_b64 v{T}, {vr(V_WF+16,2)}
        s_add_u32 s{S_J}, s{S_J}, 8
        s_cmp_lt_u32 s{S_J}, 272
        s_cbranch_scc1 {P}_slow1
        v_min_u32 v{T}, {CH-1}, v{V_LANE}
        """)
        if qkv:
            a(f"""
            v_cmp_le_u32 vcc, 12, v{T}
            s_nop 1
            v_cndmask_b32 v{T+1}, 0, 1, vcc              ; hh
            v_mul_u32_u24 v{T+2}, 12, v{T+1}
            v_sub_u32 v{T+2}, v{T}, v{T+2}
            v_lshrrev_b32 v{T+3}, 2, v{T+2}              ; part
            v_and_b32 v{T+2}, 3, v{T+2}
            v_lshlrev_b32 v{T+3}, 11, v{T+3}
            v_lshl_add_u32 v{T+3}, v{T+1}, 6, v{T+3}
            v_lshl_add_u32 v{T+3}, v{T+2}, 4, v{T+3}
            s_lshl_b32 s{S_TMP}, s{S_JT}, 7
            v_add_u32 v{T+3}, s{S_TMP}, v{T+3}
            """)
        else:
            a(f"""
            s_mul_i32 s{S_TMP}, s{S_JT}, 448
            v_lshl_add_u32 v{T+3}, v{T}, 4, s{S_TMP}
            """)
        for r in range(8):
            a(f"v_mov_b32 v{V_WF+r}, 0")
        a(f"""
        s_mul_i32 s{S_TMP}, s{S_WAVE}, {128*WP}
        s_mov_b32 s{S_J}, 0
        """)
        a.label(P + "_slow2")
        a(f"""
        buffer_load_dwordx4 {vr(V_XF)}, v{T+3}, {sr(SRD_W,4)}, s{S_TMP} offen
        s_add_u32 s{S_TMP}, s{S_TMP}, {WP}
        s_add_u32 s{S_J}, s{S_J}, 1
        s_waitcnt vmcnt(0)
        """)
        for r in range(4):
            a(f"""
            v_lshlrev_b32 v{V_XF+4}, 16, v{V_XF+r}
            v_and_b32 v{V_XF+5}, 0xffff0000, v{V_XF+r}
            v_pk_add_f32 {vr(V_WF+2*r,2)}, {vr(V_WF+2*r,2)}, {vr(V_XF+4,2)}
            """)
        a(f"""
        s_cmp_lt_u32 s{S_J}, 128
        s_cbranch_scc1 {P}_slow2
        s_lshl_b32 s{S_TMP}, s{S_WAVE}, 10
        s_add_u32 s{S_TMP}, s{S_TMP}, {G1_CSP}
        v_lshl_add_u32 v{T}, v{T}, 5, s{S_TMP}
        ds_write_b128 v{T}, {vr(V_WF)}
        ds_write_b128 v{T}, {vr(V_WF+4)} offset:16
        v_mov_b32 v{T}, {G1_VERD}
        v_mov_b32 v{T+1}, 0
        ds_write_b32 v{T}, v{T+1}
        s_waitcnt lgkmcnt(0)
        s_barrier
        s_branch {P}_red
        """)
        a.label(P + "_fast")
    if "nowarm2" not in OPTS:
        a(f"""
        s_mov_b32 s{SRD_XA}, s{S_WOP}
        s_mov_b32 s{SRD_XA+1}, s{S_WOP+1}
        s_mov_b32 s{SRD_XA+2}, {1024*2048}
        s_mov_b32 s{SRD_W}, s{S_W2P}
        s_mov_b32 s{SRD_W+1}, s{S_W2P+1}
        s_mov_b32 s{SRD_W+2}, {3584*2048}
        s_lshl_b32 s{S_TMP}, s{S_GW}, 2
        buffer_load_dwordx4 {vr(V_HF)}, v{V_L16}, {sr(SRD_XA,4)}, s{S_GW} offen
        """)
        for i in range(4):
            a(f"buffer_load_dwordx4 {vr(V_HF)}, v{V_L16}, {sr(SRD_W,4)}, s{S_TMP} offen offset:{i*1024}")
    if "slabwarm" in OPTS:
        a(f"""
        s_add_u32 s{SRD_WW}, s{S_WS}, {64 << 20}
        s_addc_u32 s{SRD_WW+1}, s{S_WS+1}, 0
        s_and_b32 s{SRD_WW+1}, s{SRD_WW+1}, 0xffff
        s_mov_b32 s{SRD_WW+2}, {16 << 20}
        s_and_b32 s{S_TMP}, s2, 3
        s_lshr_b32 s{S_TMP2}, s{S_WAVE}, 1
        s_cmp_eq_u32 s{S_TMP}, s{S_TMP2}
        s_cselect_b32 s{SRD_WW+2}, 0, s{SRD_WW+2}
        s_lshl_b32 s{S_TMP}, s{S_GW}, 3
        s_add_u32 s{S_TMP2}, s{S_TMP}, 4096
        """)
        for i in range(8):
            a(f"buffer_load_dwordx4 {vr(V_WD)}, v{V_L16}, {sr(SRD_WW,4)}, s{S_TMP if i < 4 else S_TMP2} offen offset:{(i%4)*1024}")
    stamp_now(a, 35)
    for i in range(4):
        a(f"""
        s_lshl_b32 s{S_TMP}, s{S_MW}, 6
        s_lshl_b32 s{S_TMP2}, s{S_NW}, 5
        s_xor_b32 s{S_TMP2}, s{S_TMP2}, {16*i}
        s_add_u32 s{S_TMP}, s{S_TMP}, s{S_TMP2}
        s_add_u32 s{S_TB+i}, s{S_TMP}, {128*G}
        """)
    V_ST = V_XF; V_CSV = V_WF
    if FUSE:
        for i in range(4):
            a(f"""
            s_add_u32 s{S_TMP}, s{S_TB+i}, {16 + G1_STAT//8}
            v_add_u32 v{T+4}, s{S_TMP}, v{V_TT}
            v_lshlrev_b32 v{T+4}, 3, v{T+4}
            ds_read_b64 {vr(V_ST+2*i,2)}, v{T+4}
            """)
        if halo:
            a(f"""
            v_lshlrev_b32 v{T+4}, 3, v{V_TT}
            v_add_u32 v{T+4}, {G1_STAT}, v{T+4}
            ds_read_b64 {vr(V_ST+8,2)}, v{T+4}
            """)
        for s_ in range(NB):
            a(f"""
            s_lshl_b32 s{S_TMP}, s{S_BLK+s_}, 6
            s_add_u32 s{S_TMP}, s{S_TMP}, {G1_CS}
            v_lshl_add_u32 v{T+4}, v{V_GG}, 4, s{S_TMP}
            ds_read_b128 {vr(V_CSV+4*s_)}, v{T+4}
            """)
        a("s_waitcnt lgkmcnt(0)")
    def fixup(ab, s, st, o, relu):
        c = V_CSV + 4 * s
        if FUSE:
            a(f"""
            v_pk_fma_f32 {vr(ab,2)}, {vr(c,2)}, {vr(st,2)}, {vr(ab,2)} op_sel_hi:[1,0,1] neg_lo:[0,1,0] neg_hi:[0,1,0]
            v_pk_fma_f32 {vr(ab+2,2)}, {vr(c+2,2)}, {vr(st,2)}, {vr(ab+2,2)} op_sel_hi:[1,0,1] neg_lo:[0,1,0] neg_hi:[0,1,0]
            v_pk_mul_f32 {vr(ab,2)}, {vr(ab,2)}, {vr(st,2)} op_sel:[0,1] op_sel_hi:[1,1]
            v_pk_mul_f32 {vr(ab+2,2)}, {vr(ab+2,2)}, {vr(st,2)} op_sel:[0,1] op_sel_hi:[1,1]
            """)
        a(f"""
        v_cvt_pk_bf16_f32 v{o}, v{ab}, v{ab+1}
        v_cvt_pk_bf16_f32 v{o+1}, v{ab+2}, v{ab+3}
        """)
        if relu:
            a(f"""
            v_pk_max_i16 v{o}, v{o}, 0
            v_pk_max_i16 v{o+1}, v{o+1}, 0
            """)
    V_SIG = T + 8
    a(f"""
    v_and_b32 v{T}, 1, v{V_GG}
    v_lshrrev_b32 v{T+1}, 1, v{V_GG}
    v_lshl_or_b32 v{V_SIG}, v{T}, 1, v{T+1}
    """)
    if not qkv:
        V_PA = T + 9; V_SA = T + 10
        a(f"""
        v_lshl_add_u32 v{V_PA}, v{V_SIG}, 4, v{V_TT}
        v_lshlrev_b32 v{V_PA}, 4, v{V_PA}            ; (sigma*16 + t)*16
        s_lshl_b32 s{S_TMP}, s{S_NW}, 1
        v_add_u32 v{T+1}, s{S_TMP}, v{T+1}
        v_lshl_add_u32 v{V_SA}, v{T+1}, 4, v{V_TT}
        v_lshlrev_b32 v{V_SA}, 4, v{V_SA}
        v_lshl_add_u32 v{V_SA}, v{T}, 3, v{V_SA}
        """)
        for i in range(4):
            a(f"""
            s_lshr_b32 s{S_TMP}, s{S_TB+i}, 4
            s_lshl_b32 s{S_TMP2}, s{S_MT}, 4
            s_add_u32 s{S_TMP}, s{S_TMP}, s{S_TMP2}
            s_mul_i32 s{S_TB+i}, s{S_TMP}, {MBLK_PITCH}
            """)
        a(f"""
        s_mul_i32 s{S_TMP2}, s{S_JT}, 7
        s_add_u32 s{S_TMP2}, s{S_TMP2}, 32
        """)
        for ps in range(4):
            a(f"""
            s_lshr_b32 s{S_TMP}, s{S_BLK+2*ps}, 1
            s_add_u32 s{S_TMP}, s{S_TMP}, s{S_TMP2}
            s_lshl_b32 s{S_PO+ps}, s{S_TMP}, 10
            """)
        ob = [V_XF + 16, V_XF + 20, V_XF + 24, V_XF + 28]
        n = 0
        for i in range(4):
            st = V_ST + 2 * i
            for ps in range(3):
                o = ob[n % 4]; n += 1
                fixup(acc(2*ps, i), 2*ps, st, o, True)
                fixup(acc(2*ps+1, i), 2*ps+1, st, o+2, True)
                a(f"""
                s_add_u32 s{S_TMP}, s{S_TB+i}, s{S_PO+ps}
                s_nop 0
                v_permlane16_swap_b32 v{o}, v{o+2}
                v_permlane16_swap_b32 v{o+1}, v{o+3}
                s_nop 1
                buffer_store_dwordx4 {vr(o)}, v{V_PA}, {sr(SRD_O,4)}, s{S_TMP} offen {STH}
                """)
            o = ob[n % 4]; n += 1
            fixup(acc(6, i), 6, st, o, True)
            a(f"""
            s_add_u32 s{S_TMP}, s{S_TB+i}, s{S_PO+3}
            s_nop 1
            buffer_store_dwordx2 {vr(o,2)}, v{V_SA}, {sr(SRD_O,4)}, s{S_TMP} offen {STH}
            """)
        stamp_now(a, 36); stamp_now(a, 51, True)
        stamp_dump(a, S_WS, S_WAVE, 32 << 20)
        a("s_endpgm")
        return
    V_WA = T + 9
    a(f"""
    v_mul_u32_u24 v{V_WA}, {AT_PITCH}, v{V_TT}
    v_lshl_add_u32 v{V_WA}, v{V_GG}, 3, v{V_WA}      ; t*P + g*8
    """)
    ob = [V_XF + 16, V_XF + 18, V_XF + 20, V_XF + 22, V_XF + 24, V_XF + 26, V_XF + 28, V_XF + 30]
    n = 0
    for i in range(4):
        a(f"""
        s_add_u32 s{S_TMP}, s{S_TB+i}, 16
        s_mul_i32 s{S_TMP3}, s{S_TMP}, {AT_PITCH}
        """)
        for s in range(6):
            o = ob[n % 8]; n += 1
            fixup(acc(s, i), s, V_ST + 2 * i, o, False)
            a(f"""
            s_lshl_b32 s{S_TMP}, s{S_BLK+s}, 5
            s_add_u32 s{S_TMP}, s{S_TMP}, s{S_TMP3}
            v_add_u32 v{T}, s{S_TMP}, v{V_WA}
            ds_write_b64 v{T}, {vr(o,2)}
            """)
            if "slowepi" in OPTS: a("s_waitcnt lgkmcnt(0)")
    if halo:
        for s in range(2):
            o = ob[n % 8]; n += 1
            fixup(V_HACC + 4 * s, s, V_ST + 8, o, False)
            a(f"""
            s_lshl_b32 s{S_TMP}, s{S_BLK+s}, 5
            v_add_u32 v{T}, s{S_TMP}, v{V_WA}
            ds_write_b64 v{T}, {vr(o,2)}
            """)
    a(f"""
    s_waitcnt lgkmcnt(0)
    s_barrier
    """)
    stamp_now(a, 36)
    a("s_branch g1_attn")

def g1_attn(a):
    T = V_T
    V_SIG = T + 8
    a.label("g1_attn")
    VQ = 0; VK = 1; VV = 3
    VE = 5; VO = 6
    R = 8
    a(f"""
    s_lshl_b32 s{S_TMP}, s{S_WAVE}, 5                ; 32 w
    v_lshlrev_b32 v{T}, 1, v{V_TT}                   ; 2n
    v_add_u32 v{T+1}, s{S_TMP}, v{T}                 ; 32w + 2n
    v_add_u32 v{T+2}, 16, v{T+1}
    v_mul_u32_u24 v{T+2}, {AT_PITCH}, v{T+2}
    v_lshl_add_u32 v{VQ}, v{V_GG}, 4, v{T+2}         ; + g*16
    v_add_u32 v{VK+1}, 64, v{VQ}
    v_add_u32 v{T+2}, -16, v{T+1}                    ; rho_k(kb=0)
    v_max_i32 v{T+2}, 0, v{T+2}
    v_mul_u32_u24 v{T+2}, {AT_PITCH}, v{T+2}
    v_lshl_add_u32 v{T+2}, v{V_GG}, 4, v{T+2}
    v_add_u32 v{VK}, 64, v{T+2}
    v_lshrrev_b32 v{T}, 2, v{V_TT}
    v_lshl_add_u32 v{T}, v{V_GG}, 2, v{T}            ; a
    v_lshlrev_b32 v{T}, 1, v{T}
    v_add_u32 v{T}, s{S_TMP}, v{T}                   ; 32w + 2a
    v_and_b32 v{T+3}, 3, v{V_LANE}
    v_lshlrev_b32 v{T+3}, 3, v{T+3}
    v_add_u32 v{T+3}, 128, v{T+3}                    ; v part + c*8
    v_add_u32 v{T+2}, 16, v{T}
    v_mul_u32_u24 v{T+2}, {AT_PITCH}, v{T+2}
    v_add_u32 v{VV+1}, v{T+2}, v{T+3}
    v_add_u32 v{T+2}, -16, v{T}
    v_max_i32 v{T+2}, 0, v{T+2}
    v_mul_u32_u24 v{T+2}, {AT_PITCH}, v{T+2}
    v_add_u32 v{VV}, v{T+2}, v{T+3}
    v_lshlrev_b32 v{T}, 2, v{V_GG}
    v_sub_u32 v{VE}, v{V_TT}, v{T}
    """)
    for kb in range(2):
        for i in range(4):
            a(f"""
            v_add_u32 v{T}, {(16*(1-kb) - i)}, v{VE}
            v_cmp_ge_u32 {sr(S_MASK + 2*(4*kb+i))}, 7, v{T}
            """)
    a(f"""
    s_or_b32 s{S_TMP}, s{S_MT}, s{S_WAVE}
    s_cmp_eq_u32 s{S_TMP}, 0
    s_cbranch_scc0 g1_attn_m
    """)
    for i in range(4):
        a(f"s_mov_b64 {sr(S_MASK + 2*i)}, 0")
    a.label("g1_attn_m")
    a(f"""
    v_and_b32 v{T}, 7, v{V_TT}
    v_lshlrev_b32 v{T}, 1, v{T}
    v_lshl_add_u32 v{T}, v{V_SIG}, 4, v{T}
    v_lshlrev_b32 v{T}, 4, v{T}
    v_lshrrev_b32 v{T+1}, 3, v{V_TT}
    s_mov_b32 s{S_TMP}, {MBLK_PITCH}
    v_mul_lo_u32 v{T+1}, v{T+1}, s{S_TMP}
    v_add_u32 v{VO}, v{T}, v{T+1}
    s_lshl_b32 s{S_TMP}, s{S_MT}, 4
    s_lshl_b32 s{S_TMP2}, s{S_WAVE}, 1
    s_add_u32 s{S_TMP}, s{S_TMP}, s{S_TMP2}
    s_mul_i32 s{S_TMP}, s{S_TMP}, {MBLK_PITCH}
    s_lshl_b32 s{S_TMP2}, s{S_JT}, 11
    s_add_u32 s{S_TMP3}, s{S_TMP}, s{S_TMP2}
    v_mov_b32 v{T+10}, 0xff800000                    ; -inf
    v_mov_b32 v{T+4}, 0x3e3504f3
    v_mov_b32 v{T+5}, 0x3e3504f3
    v_mov_b32 v{T+6}, 0x3fb8aa3b
    v_mov_b32 v{T+7}, 0x3fb8aa3b
    """)
    NEG = T + 10; CSC = T + 4; CL2 = T + 6
    units = [(hh, p) for hh in range(2) for p in range(2)]
    UR = 32
    for u, (hh, p) in enumerate(units):
        b = R + u * UR
        off = p * AT_PITCH + hh * 192
        a(f"""
        ds_read_b128 {vr(b)}, v{VQ} offset:{off}
        ds_read_b128 {vr(b+4)}, v{VK} offset:{off}
        ds_read_b128 {vr(b+8)}, v{VK+1} offset:{off}
        """)
        for db in range(2):
            for kb in range(2):
                a(f"ds_read_b64_tr_b16 {vr(b+12+4*db+2*kb,2)}, v{VV+kb} offset:{off+32*db}")
    a("s_waitcnt lgkmcnt(0)")
    for u in range(4):
        b = R + u * UR
        a(f"""
        v_mfma_f32_16x16x32_bf16 {vr(b+20)}, {vr(b+4)}, {vr(b)}, 0
        v_mfma_f32_16x16x32_bf16 {vr(b+24)}, {vr(b+8)}, {vr(b)}, 0
        """)
    a("s_nop 7")
    for u, (hh, p) in enumerate(units):
        b = R + u * UR
        z = b + 20
        t0 = b + 28; t1 = b + 29
        for i in range(0, 8, 2):
            a(f"""
            v_cvt_pk_bf16_f32 v{t0}, v{z+i}, v{z+i+1}
            v_lshlrev_b32 v{z+i}, 16, v{t0}
            v_and_b32 v{z+i+1}, 0xffff0000, v{t0}
            v_pk_mul_f32 {vr(z+i,2)}, {vr(z+i,2)}, {vr(CSC,2)}
            v_cvt_pk_bf16_f32 v{t0}, v{z+i}, v{z+i+1}
            v_lshlrev_b32 v{z+i}, 16, v{t0}
            v_and_b32 v{z+i+1}, 0xffff0000, v{t0}
            v_cndmask_b32 v{z+i}, v{NEG}, v{z+i}, {sr(S_MASK+2*i)}
            v_cndmask_b32 v{z+i+1}, v{NEG}, v{z+i+1}, {sr(S_MASK+2*i+2)}
            """)
        a(f"""
        v_max3_f32 v{t0}, v{z}, v{z+1}, v{z+2}
        v_max3_f32 v{t0}, v{t0}, v{z+3}, v{z+4}
        v_max3_f32 v{t0}, v{t0}, v{z+5}, v{z+6}
        v_max_f32 v{t0}, v{t0}, v{z+7}
        """)
        xlane_max(a, t0, t1)
        for i in range(0, 8, 2):
            a(f"""
            v_pk_add_f32 {vr(z+i,2)}, {vr(z+i,2)}, {vr(t0,2)} op_sel_hi:[1,0] neg_lo:[0,1] neg_hi:[0,1]
            v_pk_mul_f32 {vr(z+i,2)}, {vr(z+i,2)}, {vr(CL2,2)}
            """)
        for i in range(8):
            a(f"v_exp_f32 v{z+i}, v{z+i}")
        a(f"""
        s_nop 0
        v_pk_add_f32 {vr(t0,2)}, {vr(z,2)}, {vr(z+2,2)}
        v_pk_add_f32 {vr(t0+2,2)}, {vr(z+4,2)}, {vr(z+6,2)}
        v_pk_add_f32 {vr(t0,2)}, {vr(t0,2)}, {vr(t0+2,2)}
        v_add_f32 v{t0}, v{t0}, v{t1}
        """)
        xlane_sum(a, t0, t1)
        a(f"""
        v_rcp_f32 v{t0}, v{t0}
        s_nop 0
        """)
        for i in range(0, 8, 2):
            a(f"v_pk_mul_f32 {vr(z+i,2)}, {vr(z+i,2)}, {vr(t0,2)} op_sel_hi:[1,0]")
        for i in range(4):
            a(f"v_cvt_pk_bf16_f32 v{b+i}, v{z+2*i}, v{z+2*i+1}")
        a(f"""
        s_nop 1
        v_mfma_f32_16x16x32_bf16 {vr(b+4)}, {vr(b+12)}, {vr(b)}, 0
        v_mfma_f32_16x16x32_bf16 {vr(b+8)}, {vr(b+16)}, {vr(b)}, 0
        """)
    a("s_nop 7")
    for u, (hh, p) in enumerate(units):
        b = R + u * UR
        o = b + 20
        a(f"""
        v_cvt_pk_bf16_f32 v{o}, v{b+4}, v{b+5}
        v_cvt_pk_bf16_f32 v{o+1}, v{b+6}, v{b+7}
        v_cvt_pk_bf16_f32 v{o+2}, v{b+8}, v{b+9}
        v_cvt_pk_bf16_f32 v{o+3}, v{b+10}, v{b+11}
        s_nop 1
        v_permlane16_swap_b32 v{o}, v{o+2}
        v_permlane16_swap_b32 v{o+1}, v{o+3}
        s_nop 1
        buffer_store_dwordx4 {vr(o)}, v{VO}, {sr(SRD_O,4)}, s{S_TMP3} offen offset:{p*16 + hh*1024} {STF}
        """)
    stamp_now(a, 37); stamp_now(a, 51, True)
    stamp_dump(a, S_WS, S_WAVE, 32 << 20)
    a("s_endpgm")

def gen_g1(a):
    a.raw("""
.globl g1_kernel
.p2align 8
.type g1_kernel,@function
g1_kernel:""")
    a(f"""
    s_cmp_ge_u32 s2, 256
    s_cbranch_scc1 g1_exit
    s_load_dwordx4 s[{S_X}:{S_X+3}], s[0:1], 0     ; x, wqkv
    s_load_dwordx2 s[{S_W1}:{S_W1+1}], s[0:1], 32
    s_load_dwordx2 s[{S_WS}:{S_WS+1}], s[0:1], 64
    s_load_dwordx2 s[{S_WOP}:{S_WOP+1}], s[0:1], 16
    s_load_dwordx2 s[{S_DBGP}:{S_DBGP+1}], s[0:1], 56
    s_load_dwordx2 s[{S_W2P}:{S_W2P+1}], s[0:1], 40
    v_and_b32 v{V_LANE}, 63, v0
    v_lshrrev_b32 v{V_T}, 6, v0
    v_and_b32 v{V_TT}, 15, v0
    v_readfirstlane_b32 s{S_WAVE}, v{V_T}
    v_bfe_u32 v{V_GG}, v0, 4, 2
    s_nop 2
    s_cmp_lg_u32 s{S_WAVE}, 7
    s_cbranch_scc1 g1_nopf
    """)
    if "nocodepf" not in OPTS:
        code_prefetch(a, V_T + 2, V_LANE, S_PC1, "g1_kernel", "g1_end", 24576, 255)
    a.label("g1_nopf")
    a(f"""
    s_and_b32 s{S_TMP}, s2, 7                 ; xcd
    s_lshr_b32 s{S_TMP2}, s2, 3               ; idx
    s_and_b32 s{S_MT}, s{S_TMP}, 1
    s_lshl_b32 s{S_MT}, s{S_MT}, 2
    s_and_b32 s{S_TMP3}, s{S_TMP2}, 3
    s_add_u32 s{S_MT}, s{S_MT}, s{S_TMP3}     ; mt
    s_lshr_b32 s{S_TMP2}, s{S_TMP2}, 2        ; i8
    s_lshr_b32 s{S_TMP}, s{S_TMP}, 1          ; ng
    s_lshl_b32 s{S_JT}, s{S_TMP}, 2
    s_and_b32 s{S_TMP3}, s{S_TMP2}, 3
    s_add_u32 s{S_JT}, s{S_JT}, s{S_TMP3}     ; jt
    s_lshr_b32 s{S_TMP2}, s{S_TMP2}, 2        ; type
    s_and_b32 s{S_WQ}, s{S_WAVE}, 3
    s_and_b32 s{S_NW}, s{S_WAVE}, 1
    s_bfe_u32 s{S_MW}, s{S_WAVE}, 0x10001
    s_lshr_b32 s{S_TMP3}, s{S_WAVE}, 2        ; G
    s_lshl_b32 s80, s2, 3
    s_add_u32 s80, s80, s{S_WAVE}
    v_lshlrev_b32 v{V_L16}, 4, v{V_LANE}
    s_waitcnt lgkmcnt(0)
    """)
    if FUSE and "bulk" in OPTS:
        a(f"""
        s_mov_b32 s64, s{S_W}
        s_and_b32 s65, s{S_W+1}, 0xffff
        s_mov_b32 s66, {1024*6144}
        s_mov_b32 s67, 0x20000
        s_mov_b32 s72, s{S_W1}
        s_and_b32 s73, s{S_W1+1}, 0xffff
        s_mov_b32 s74, {1024*7168}
        s_mov_b32 s75, 0x20000
        s_mul_i32 s81, s80, 3072
        s_lshl_b32 s80, s80, 12
        """)
        for i in range(3):
            a(f"buffer_load_dwordx4 {vr(V_HF)}, v{V_L16}, s[64:67], s81 offen offset:{1024*i}")
        for i in range(4):
            a(f"buffer_load_dwordx4 {vr(V_HF)}, v{V_L16}, s[72:75], s80 offen offset:{1024*i}")
    a(f"""
    s_add_u32 s{SRD_X}, s{S_X if FUSE else S_WS}, {0 if FUSE else XN_OFF}
    s_addc_u32 s{SRD_X+1}, s{(S_X if FUSE else S_WS)+1}, 0
    s_and_b32 s{SRD_X+1}, s{SRD_X+1}, 0xffff
    s_mov_b32 s{SRD_X+2}, {2048*2048}
    s_mov_b32 s{SRD_X+3}, 0x20000
    s_mov_b32 s{SRD_XA}, s{SRD_X}
    s_mov_b32 s{SRD_XA+1}, s{SRD_X+1}
    s_mov_b32 s{SRD_XA+2}, {2048*2048}
    s_mov_b32 s{SRD_XA+3}, 0x20000
    s_mov_b32 s{SRD_O}, s{S_WS}
    s_and_b32 s{SRD_O+1}, s{S_WS+1}, 0xffff
    s_mov_b32 s{SRD_O+2}, {A2_BYTES}
    s_mov_b32 s{SRD_O+3}, 0x20000
    s_lshl_b32 s{S_TMP2}, s{S_TMP2}, 1
    s_add_u32 s{S_TMP2}, s{S_TMP2}, s{S_TMP3}
    """)
    if FUSE:
        a(f"""
        s_cmp_lg_u32 s2, 255
        s_cbranch_scc1 g1_noz
        s_add_u32 s64, s{S_WS}, {30 << 20}
        s_addc_u32 s65, s{S_WS+1}, 0
        s_and_b32 s65, s65, 0xffff
        s_mov_b32 s66, 8192
        s_mov_b32 s67, 0x20000
        v_lshlrev_b32 v{V_T}, 4, v0
        v_mov_b32 v4, 0
        v_mov_b32 v5, 0
        v_mov_b32 v6, 0
        v_mov_b32 v7, 0
        buffer_store_dwordx4 v[4:7], v{V_T}, s[64:67], 0 offen
        """)
        a.label("g1_noz")
    a(f"""
    s_cmp_eq_u32 s{S_TMP2}, 0
    s_cbranch_scc1 g1_00
    s_cmp_eq_u32 s{S_TMP2}, 1
    s_cbranch_scc1 g1_01
    s_cmp_eq_u32 s{S_TMP2}, 2
    s_cbranch_scc1 g1_10
    s_branch g1_11
    """)
    a.label("g1_exit")
    a("s_endpgm")
    for typ in range(2):
        for G in range(2):
            g1_path(a, typ, G)
    g1_attn(a)
    a.label("g1_end")
    a("s_endpgm")

def gen_k0(a):
    a.raw("""
.globl k0_kernel
.p2align 8
.type k0_kernel,@function
k0_kernel:""")
    DPP = "row_mask:0xf bank_mask:0xf"
    def reduce64(v, t):
        a(f"""
        s_nop 1
        v_add_f32_dpp v{t}, v{v}, v{v} quad_perm:[1,0,3,2] {DPP}
        s_nop 1
        v_add_f32_dpp v{v}, v{t}, v{t} quad_perm:[2,3,0,1] {DPP}
        s_nop 1
        v_add_f32_dpp v{t}, v{v}, v{v} row_half_mirror {DPP}
        s_nop 1
        v_add_f32_dpp v{v}, v{t}, v{t} row_mirror {DPP}
        """)
        xlane_sum(a, v, t)
    a(f"""
    s_cmp_ge_u32 s2, 256
    s_cbranch_scc1 k0_exit
    s_load_dwordx4 s[4:7], s[0:1], 0          ; x, wqkv
    s_load_dwordx2 s[8:9], s[0:1], 32         ; w1
    s_load_dwordx2 s[10:11], s[0:1], 64       ; ws
    v_lshrrev_b32 v1, 6, v0
    v_and_b32 v0, 63, v0
    v_lshlrev_b32 v2, 4, v0                   ; lane*16
    v_readfirstlane_b32 s3, v1
    s_lshl_b32 s28, s2, 3
    s_nop 2
    s_add_u32 s28, s28, s3
    s_lshl_b32 s29, s28, 11
    s_waitcnt lgkmcnt(0)
    s_mov_b32 s12, s4
    s_and_b32 s13, s5, 0xffff
    s_mov_b32 s14, {2048*2048}
    s_mov_b32 s15, 0x20000
    buffer_load_dwordx4 v[4:7], v2, s[12:15], s29 offen
    buffer_load_dwordx4 v[8:11], v2, s[12:15], s29 offen offset:1024
    s_mov_b32 s16, s6
    s_and_b32 s17, s7, 0xffff
    s_mov_b32 s18, {1024*6144}
    s_mov_b32 s19, 0x20000
    s_mov_b32 s20, s8
    s_and_b32 s21, s9, 0xffff
    s_mov_b32 s22, {1024*7168}
    s_mov_b32 s23, 0x20000
    s_add_u32 s24, s10, {XN_OFF}
    s_addc_u32 s25, s11, 0
    s_and_b32 s25, s25, 0xffff
    s_mov_b32 s26, {2048*2048}
    s_mov_b32 s27, 0x20000
    s_cmp_lg_u32 s2, 0
    s_cbranch_scc1 k0_noz
    s_add_u32 s32, s10, {30 << 20}
    s_addc_u32 s33, s11, 0
    s_and_b32 s33, s33, 0xffff
    s_mov_b32 s34, 8192
    s_mov_b32 s35, 0x20000
    s_lshl_b32 s30, s3, 10
    v_mov_b32 v60, 0
    v_mov_b32 v61, 0
    v_mov_b32 v62, 0
    v_mov_b32 v63, 0
    buffer_store_dwordx4 v[60:63], v2, s[32:35], s30 offen
    s_waitcnt vmcnt(0)
k0_noz:
    s_mul_i32 s30, s28, 3072
    s_lshl_b32 s31, s28, 12
    """)
    nw = 0
    if "nowarm1" not in OPTS:
        a(f"""
        s_mov_b32 s18, {256*6144}
        s_mov_b32 s22, {256*7168}
        s_lshl_b32 s30, s28, 10
        buffer_load_dwordx4 v[32:35], v2, s[16:19], s30 offen
        buffer_load_dwordx4 v[36:39], v2, s[20:23], s30 offen
        """)
        nw = 2
    a(f"s_waitcnt vmcnt({nw})")
    for r in range(8):
        a(f"""
        v_lshlrev_b32 v{12+2*r}, 16, v{4+r}
        v_and_b32 v{13+2*r}, 0xffff0000, v{4+r}
        """)
    a("v_add_f32 v28, v12, v13")
    for r in range(14, 28):
        a(f"v_add_f32 v28, v28, v{r}")
    reduce64(28, 29)
    a("v_mul_f32 v28, 0x3a800000, v28")
    a("""
    v_sub_f32 v30, v12, v28
    v_mul_f32 v31, v30, v30
    """)
    for r in range(13, 28):
        a(f"""
        v_sub_f32 v30, v{r}, v28
        v_fmac_f32 v31, v30, v30
        """)
    reduce64(31, 29)
    a(f"""
    v_mul_f32 v31, 0x3a800000, v31            ; var
    v_cvt_pk_bf16_f32 v29, v28, v31
    v_lshlrev_b32 v28, 16, v29                ; m_b
    v_and_b32 v31, 0xffff0000, v29            ; v_b
    v_add_f32 v31, 0x3727c5ac, v31
    v_cvt_pk_bf16_f32 v31, v31, v31
    v_and_b32 v31, 0xffff0000, v31
    v_sqrt_f32 v31, v31
    s_nop 0
    v_cvt_pk_bf16_f32 v31, v31, v31
    v_and_b32 v31, 0xffff0000, v31
    v_rcp_f32 v31, v31
    s_nop 0
    """)
    for r in range(8):
        a(f"""
        v_sub_f32 v{12+2*r}, v{12+2*r}, v28
        v_sub_f32 v{13+2*r}, v{13+2*r}, v28
        v_cvt_pk_bf16_f32 v29, v{12+2*r}, v{13+2*r}
        v_lshlrev_b32 v{12+2*r}, 16, v29
        v_and_b32 v{13+2*r}, 0xffff0000, v29
        v_mul_f32 v{12+2*r}, v{12+2*r}, v31
        v_mul_f32 v{13+2*r}, v{13+2*r}, v31
        v_cvt_pk_bf16_f32 v{4+r}, v{12+2*r}, v{13+2*r}
        """)
    a("""
    buffer_store_dwordx4 v[4:7], v2, s[24:27], s29 offen
    buffer_store_dwordx4 v[8:11], v2, s[24:27], s29 offen offset:1024
    """)
    a.label("k0_exit")
    a("s_endpgm")

G2_NB = 6
G2_LDS = G2_NB * 16384
def code_prefetch(a, vtmp, vlane, stmp, start_label, end_label, nbytes, vdst):
    a(f"""
    s_getpc_b64 {sr(stmp)}
    """)
    a.label(start_label + "_pc")
    a(f"""
    s_add_u32 s{stmp}, s{stmp}, {start_label}-{start_label}_pc
    s_addc_u32 s{stmp+1}, s{stmp+1}, -1
    v_lshlrev_b32 v{vtmp}, 7, v{vlane}
    """)
    for i in range((nbytes + 8191) // 8192):
        if i: a(f"v_add_u32 v{vtmp}, 0x2000, v{vtmp}")
        a(f"""
        v_min_u32 v{vtmp+1}, {end_label}-{start_label}-4, v{vtmp}
        global_load_dword v{vdst}, v{vtmp+1}, {sr(stmp)}
        """)

def gen_g2(a):
    NBUF = G2_NB; D = NBUF - 1
    NTB = "nt " if "g2ntB" in OPTS else ""
    SRD_A = 12; SRD_B = 16; SRD_XX = 20; SRD_OUT = 24
    S_WO = 4; S_W2 = 6; S_XP = 8; S_OUTP = 10; S_WSP = 28
    S_WV = 30; S_GK = 31; S_MW2 = 32; S_MT2 = 33; S_NT = 34; S_TRIP = 35
    S_KAA = 36; S_KBB = 37; S_MB0 = 38; S_T = 39; S_T2 = 40; S_T3 = 41; S_PC = 42; S_P = 44; S_KA0 = 45; S_WOL = 46; S_WOH = 47; S_SZ = 48; S_CNT = 49
    V_AB = 0
    V_W = V_AB + NBUF * 16
    V_AC = V_W + 64
    V_XR = V_AC + 32
    V_AA = V_XR + 8
    V_DBB = V_AA + 2
    V_RBB = V_DBB + 2
    T = V_RBB + 8
    VL = T + 14; VT = T + 15; VG = T + 16
    global G2_VGPRS
    G2_VGPRS = 256 if STAMP else VG + 2
    def ab(u, tb, kk): return V_AB + u * 16 + (tb * 2 + kk) * 4
    def w(par, s, kk): return V_W + par * 32 + (s * 2 + kk) * 4
    def ac(s, tb): return V_AC + (s * 2 + tb) * 4
    a.raw("""
.globl g2_kernel
.p2align 8
.type g2_kernel,@function
g2_kernel:""")
    a(f"""
    s_cmp_ge_u32 s2, 256
    s_cbranch_scc1 g2_exit
    s_load_dwordx2 s[{S_XP}:{S_XP+1}], s[0:1], 0
    s_load_dwordx2 s[{S_WO}:{S_WO+1}], s[0:1], 16
    s_load_dwordx2 s[{S_W2}:{S_W2+1}], s[0:1], 40
    s_load_dwordx2 s[{S_OUTP}:{S_OUTP+1}], s[0:1], 48
    s_load_dwordx2 s[{S_WSP}:{S_WSP+1}], s[0:1], 64
    v_and_b32 v{VL}, 63, v0
    v_lshrrev_b32 v{T}, 6, v0
    v_and_b32 v{VT}, 15, v0
    v_readfirstlane_b32 s{S_WV}, v{T}
    v_bfe_u32 v{VG}, v0, 4, 2
    """)
    if STAMP: a(f"v_mov_b32 v{V_STAMP}, 0")
    stamp_now(a, 32); stamp_now(a, 50, True)
    npf = 0
    if "nocodepf" not in OPTS:
        code_prefetch(a, T + 12, VL, S_PC, "g2_kernel", "g2_exit", 4096, VG + 1); npf = 1
    a(f"""
    s_and_b32 s{S_T}, s2, 7
    s_lshr_b32 s{S_T2}, s2, 3
    s_lshr_b32 s{S_MT2}, s{S_T}, 1
    s_lshl_b32 s{S_MT2}, s{S_MT2}, 2
    s_and_b32 s{S_T3}, s{S_T2}, 3
    s_add_u32 s{S_MT2}, s{S_MT2}, s{S_T3}     ; mt 0..15
    s_and_b32 s{S_NT}, s{S_T}, 1
    s_lshl_b32 s{S_NT}, s{S_NT}, 3
    s_lshr_b32 s{S_T2}, s{S_T2}, 2
    s_add_u32 s{S_NT}, s{S_NT}, s{S_T2}       ; nt 0..15
    s_lshr_b32 s{S_GK}, s{S_WV}, 2
    s_and_b32 s{S_MW2}, s{S_WV}, 3
    ; A voffsets
    s_lshl_b32 s{S_T}, s{S_MT2}, 3
    s_lshl_b32 s{S_T2}, s{S_MW2}, 1
    s_add_u32 s{S_T}, s{S_T}, s{S_T2}         ; mblk0
    s_mul_i32 s{S_T}, s{S_T}, {MBLK_PITCH}
    v_lshl_add_u32 v{V_AA}, v{VL}, 4, s{S_T}
    v_add_u32 v{V_AA+1}, {MBLK_PITCH}, v{V_AA}
    s_lshl_b32 s{S_KAA}, s{S_GK}, 11          ; K-step * 2048
    v_lshrrev_b32 v{T}, 3, v{VL}
    s_lshl_b32 s{S_T}, s{S_WV}, 4
    v_add_u32 v{T+1}, s{S_T}, v{T}            ; row (e=0)
    v_lshlrev_b32 v{T+1}, 11, v{T+1}
    s_lshl_b32 s{S_T}, s{S_NT}, 7
    v_add_u32 v{T+1}, s{S_T}, v{T+1}
    v_and_b32 v{T+2}, 1, v{VL}
    v_lshl_add_u32 v{T+1}, v{T+2}, 4, v{T+1}  ; + (c'&1)*16
    v_bfe_u32 v{T+2}, v{VL}, 1, 2             ; unit'
    v_bfe_u32 v{T+3}, v{VL}, 4, 1             ; bit1(l>>3)
    v_xor_b32 v{T+2}, v{T+2}, v{T+3}
    v_lshl_add_u32 v{V_DBB}, v{T+2}, 5, v{T+1}
    v_xor_b32 v{T+2}, 2, v{T+2}
    v_lshl_add_u32 v{V_DBB+1}, v{T+2}, 5, v{T+1}
    v_add_u32 v{V_DBB+1}, {8*2048}, v{V_DBB+1}
    s_lshl_b32 s{S_MB0}, s{S_WV}, 11
    s_mov_b32 s{S_KBB}, 0
    s_waitcnt lgkmcnt(0)
    s_mov_b32 s{SRD_A}, s{S_WSP}
    s_and_b32 s{SRD_A+1}, s{S_WSP+1}, 0xffff
    s_mov_b32 s{SRD_A+2}, {A2_BYTES}
    s_mov_b32 s{SRD_A+3}, 0x20000
    s_mov_b32 s{SRD_B}, s{S_WO}
    s_and_b32 s{SRD_B+1}, s{S_WO+1}, 0xffff
    s_mov_b32 s{SRD_B+2}, {1024*2048}
    s_mov_b32 s{SRD_B+3}, 0x20000
    """)
    def prefetch(u):
        for e in range(2):
            if "g2noB" in OPTS:
                a(f"buffer_load_dword v{T+12}, off, {sr(SRD_B,4)}, 0")
                continue
            a(f"""
            s_add_u32 m0, s{S_MB0}, {u*16384 + e*1024}
            s_nop 0
            buffer_load_dwordx4 v{V_DBB+e}, {sr(SRD_B,4)}, s{S_KBB} offen {NTB}lds
            """)
        for tb in range(2):
            for kk in range(2):
                if "g2noA" in OPTS:
                    a(f"buffer_load_dword v{T+12}, off, {sr(SRD_B,4)}, 0")
                    continue
                a(f"buffer_load_dwordx4 {vr(ab(u,tb,kk))}, v{V_AA+tb}, {sr(SRD_A,4)}, s{S_KAA} offen offset:{kk*1024}" + (" nt" if "g2ntA" in OPTS else ""))
        advance()
    def advance():
        a(f"""
        s_add_u32 s{S_P}, s{S_P}, 1
        s_cmp_eq_u32 s{S_P}, 36
        s_cselect_b32 s{S_P}, 0, s{S_P}
        s_add_u32 s{S_CNT}, s{S_CNT}, 1
        """)
        setpos()
    def setpos():
        a(f"""
        s_lshl_b32 s{S_KAA}, s{S_P}, 12
        s_add_u32 s{S_KAA}, s{S_KAA}, s{S_KA0}
        s_cmp_lt_u32 s{S_P}, 8
        s_cselect_b32 s{SRD_B}, s{S_WOL}, s{S_W2}
        s_cselect_b32 s{SRD_B+1}, s{S_WOH}, s{S_W2+1}
        s_cselect_b32 s{SRD_B+2}, {1024*2048}, s{S_SZ}
        s_cselect_b32 s{S_T}, 0, 8
        s_sub_u32 s{S_T}, s{S_P}, s{S_T}
        s_lshl_b32 s{S_KBB}, s{S_T}, 18
        s_cmp_ge_u32 s{S_CNT}, 36
        s_cselect_b32 s{SRD_B+2}, 0, s{SRD_B+2}
        s_cselect_b32 s{SRD_A+2}, 0, s{SRD_A+2}
        s_cselect_b32 s{S_MB0}, {G2_LDS}, s{S_MB0}
        """)
    rotmul = (1, 2)
    for o in OPTS:
        if o.startswith("rot="): rotmul = tuple(int(x) for x in o[4:].split(","))
    a(f"""
    s_and_b32 s{S_W2+1}, s{S_W2+1}, 0xffff
    s_mov_b32 s{S_WOL}, s{S_WO}
    s_and_b32 s{S_WOH}, s{S_WO+1}, 0xffff
    s_mov_b32 s{S_SZ}, {3584*2048}
    s_mov_b32 s{S_KA0}, s{S_KAA}
    s_mov_b32 s{S_CNT}, 0
    s_and_b32 s{S_T}, s{S_NT}, 7
    s_mul_i32 s{S_T}, s{S_T}, {rotmul[0]}
    s_and_b32 s{S_T2}, s{S_MT2}, 3
    s_mul_i32 s{S_T2}, s{S_T2}, {rotmul[1]}
    s_add_u32 s{S_P}, s{S_T}, s{S_T2}
    """)
    setpos()
    if "g2tlb" in OPTS:
        a(f"""
        s_lshr_b32 s{S_T}, s2, 3
        s_lshl_b32 s{S_T}, s{S_T}, 3
        s_add_u32 s{S_T}, s{S_T}, s{S_WV}          ; j
        s_lshl_b32 s{S_T2}, s{S_T}, 18             ; j*64 pages*4096
        v_lshl_add_u32 v{T+12}, v{VL}, 12, s{S_T2}
        s_cmp_lt_u32 s{S_T}, 18
        s_cbranch_scc0 g2_tlb1
        s_and_b32 s{S_T3}, s{S_MT2}, 12
        s_mul_i32 s{S_T3}, s{S_T3}, {8*MBLK_PITCH}
        buffer_load_dword v{T+13}, v{T+12}, {sr(SRD_A,4)}, s{S_T3} offen
        s_branch g2_tlb3
        """)
        a.label("g2_tlb1")
        a(f"""
        s_cmp_lt_u32 s{S_T}, 26
        s_cbranch_scc0 g2_tlb2
        v_subrev_u32 v{T+12}, {18<<18}, v{T+12}
        global_load_dword v{T+13}, v{T+12}, s[{S_WO}:{S_WO+1}]
        s_branch g2_tlb3
        """)
        a.label("g2_tlb2")
        a(f"""
        s_cmp_lt_u32 s{S_T}, 54
        s_cbranch_scc0 g2_tlb3
        v_subrev_u32 v{T+12}, {26<<18}, v{T+12}
        global_load_dword v{T+13}, v{T+12}, s[{S_W2}:{S_W2+1}]
        """)
        a.label("g2_tlb3")
    for u in range(D):
        prefetch(u)
    V_XA = T + 4; V_OA = T + 5
    a(f"""
    s_mov_b32 s{SRD_XX}, s{S_XP}
    s_and_b32 s{SRD_XX+1}, s{S_XP+1}, 0xffff
    s_mov_b32 s{SRD_XX+2}, {2048*2048}
    s_mov_b32 s{SRD_XX+3}, 0x20000
    s_mov_b32 s{SRD_OUT}, s{S_OUTP}
    s_and_b32 s{SRD_OUT+1}, s{S_OUTP+1}, 0xffff
    s_mov_b32 s{SRD_OUT+2}, {2048*2048}
    s_mov_b32 s{SRD_OUT+3}, 0x20000
    v_lshrrev_b32 v{T}, 2, v{VT}              ; r
    v_lshl_add_u32 v{T+1}, v{VG}, 3, v{T}
    v_lshlrev_b32 v{T+1}, 7, v{T+1}
    s_lshl_b32 s{S_T}, s{S_GK}, 13
    v_add_u32 v{T+1}, s{S_T}, v{T+1}
    v_and_b32 v{T+2}, 3, v{VL}
    v_lshl_add_u32 v{T+1}, v{T+2}, 3, v{T+1}
    v_and_b32 v{T+2}, 1, v{VG}
    v_lshrrev_b32 v{T+3}, 1, v{T}
    v_lshl_or_b32 v{T+2}, v{T+2}, 1, v{T+3}   ; f
    s_lshl_b32 s{S_T}, s{S_GK}, 1
    v_xor_b32 v{T+2}, s{S_T}, v{T+2}          ; f ^ 2Gk
    """)
    for s in range(4):
        a(f"""
        v_xor_b32 v{T+3}, {s}, v{T+2}
        v_lshl_add_u32 v{V_RBB+s}, v{T+3}, 5, v{T+1}
        v_add_u32 v{V_RBB+4+s}, 0xc000, v{V_RBB+s}
        """)
    a(f"""
    s_lshl_b32 s{S_T}, s{S_MT2}, 7
    s_lshl_b32 s{S_T2}, s{S_MW2}, 5
    s_add_u32 s{S_T}, s{S_T}, s{S_T2}
    v_add_u32 v{T}, s{S_T}, v{VT}
    v_lshlrev_b32 v{T}, 11, v{T}
    s_lshl_b32 s{S_T}, s{S_NT}, 7
    s_lshl_b32 s{S_T2}, s{S_GK}, 6
    s_add_u32 s{S_T}, s{S_T}, s{S_T2}
    v_add_u32 v{T}, s{S_T}, v{T}
    v_lshl_add_u32 v{V_XA}, v{VG}, 3, v{T}    ; + g*8
    v_and_b32 v{T+1}, 1, v{VG}
    v_lshrrev_b32 v{T+2}, 1, v{VG}
    v_lshl_or_b32 v{T+1}, v{T+1}, 1, v{T+2}   ; sigma
    v_lshl_add_u32 v{V_OA}, v{T+1}, 4, v{T}
    """)
    for r in range(V_AC, V_AC + 32):
        a(f"v_mov_b32 v{r}, 0")
    def reads(u, par):
        hi = 4 if u >= 3 else 0
        uo = (u - 3 if u >= 3 else u) * 16384
        for kk in range(2):
            for s in range(4):
                for h in range(2):
                    if "g2nocomp" in OPTS: continue
                    a(f"ds_read_b64_tr_b16 {vr(w(par,s,kk)+2*h,2)}, v{V_RBB+hi+s} offset:{uo + kk*4096 + h*512}")
    a(f"""
    s_mov_b32 s{S_TRIP}, 0
    s_waitcnt vmcnt({4 + 6*(D-1)})
    s_barrier
    """)
    reads(0, 0)
    stamp_now(a, 33)
    def body(u):
        par = u & 1
        a(f"""
        s_waitcnt vmcnt({4 + 6*(D-2)})
        s_barrier
        """)
        prefetch((u + D) % NBUF)
        a("s_waitcnt lgkmcnt(0)")
        reads((u + 1) % NBUF, par ^ 1)
        for kk in range(2):
            for s in range(4):
                for tb in range(2):
                    if "g2nocomp" in OPTS: continue
                    a(f"v_mfma_f32_16x16x32_bf16 {vr(ac(s,tb))}, {vr(w(par,s,kk))}, {vr(ab(u,tb,kk))}, {vr(ac(s,tb))}")
    a.raw(".p2align 6")
    a.label("g2_loop")
    for u in range(NBUF):
        body(u)
    a(f"""
    s_add_u32 s{S_TRIP}, s{S_TRIP}, 1
    s_cmp_lt_u32 s{S_TRIP}, {36 // NBUF}
    s_cbranch_scc1 g2_loop
    s_mov_b32 s{S_T}, {16*2048}
    """)
    stamp_now(a, 34)
    for tb in range(2):
        for e in range(2):
            so = "0" if tb == 0 else f"s{S_T}"
            a(f"buffer_load_dwordx2 {vr(V_XR+(tb*2+e)*2,2)}, v{V_XA}, {sr(SRD_XX,4)}, {so} offen offset:{e*32}")
    a(f"""
    s_waitcnt vmcnt(4) lgkmcnt(0)
    s_barrier
    s_lshl_b32 s{S_T}, s{S_WV}, 12
    v_lshl_add_u32 v{T}, v{VL}, 4, s{S_T}
    v_xor_b32 v{T+1}, 16384, v{T}
    """)
    for s in range(2):
        for tb in range(2):
            a(f"ds_write_b128 v{T}, {vr(ac(2+s,tb))} offset:{(s*2+tb)*1024}")
    a("""
    s_waitcnt lgkmcnt(0)
    s_barrier
    """)
    for s in range(2):
        for tb in range(2):
            a(f"ds_read_b128 {vr(V_W+(s*2+tb)*4)}, v{T+1} offset:{(s*2+tb)*1024}")
    a("s_waitcnt vmcnt(0) lgkmcnt(0)")
    for tb in range(2):
        o = V_AB + tb * 4
        for s in range(2):
            c = ac(s, tb); p = V_W + (s * 2 + tb) * 4; xr = V_XR + (tb * 2 + s) * 2
            a(f"""
            v_lshlrev_b32 v{T+8}, 16, v{xr}
            v_and_b32 v{T+9}, 0xffff0000, v{xr}
            v_lshlrev_b32 v{T+10}, 16, v{xr+1}
            v_and_b32 v{T+11}, 0xffff0000, v{xr+1}
            v_pk_add_f32 {vr(c,2)}, {vr(c,2)}, {vr(p,2)}
            v_pk_add_f32 {vr(c+2,2)}, {vr(c+2,2)}, {vr(p+2,2)}
            v_pk_add_f32 {vr(c,2)}, {vr(c,2)}, {vr(T+8,2)}
            v_pk_add_f32 {vr(c+2,2)}, {vr(c+2,2)}, {vr(T+10,2)}
            v_cvt_pk_bf16_f32 v{o+2*s}, v{c}, v{c+1}
            v_cvt_pk_bf16_f32 v{o+2*s+1}, v{c+2}, v{c+3}
            """)
        so = "0" if tb == 0 else f"s{S_T2}"
        a(f"""
        s_mov_b32 s{S_T2}, {16*2048}
        s_nop 0
        v_permlane16_swap_b32 v{o}, v{o+2}
        v_permlane16_swap_b32 v{o+1}, v{o+3}
        s_nop 1
        buffer_store_dwordx4 {vr(o)}, v{V_OA}, {sr(SRD_OUT,4)}, {so} offen
        """)
    stamp_now(a, 51, True)
    stamp_dump(a, S_WSP, S_WV, 40 << 20)
    a.label("g2_exit")
    a("s_endpgm")

C_ASLOT = 16384; C_NA = 3
C_BSLOT = 16384; C_NBS = 4
C_BBASE = 2 * C_NA * C_ASLOT
G2C_LDS = C_BBASE + C_NBS * C_BSLOT
SLAB_OFF = 64 << 20
FLAG_OFF = 30 << 20
SLAB_BYTES = 64 * 4 * 131072
NKS = 18
PUBF = "sc1" if "pubsc1" in OPTS else ("sc0 sc1 nt" if "pubnt" in OPTS else "sc0 sc1")
GETF = "sc1" if "pubsc1" in OPTS else "sc0 sc1"
def gen_g2c(a):
    XF = 64; WF = 96
    def acc(c, t): return (c * 4 + t) * 4
    def xf(t, kk): return XF + (t * 2 + kk) * 4
    def wf(c, kk): return WF + (c * 2 + kk) * 4
    V_RA = 128; V_RB = 129; V_DA = 133; V_DB = 134; VL = 135; VT = 136; VG = 137; T = 138
    VPF = 152; VH = 153; VHA = 154; VHL = 156
    S_XP = 4; S_WO = 6; S_W2 = 8; S_OUTP = 10; S_DBG = 28; S_WSP = 30
    SRD_A = 12; SRD_B = 16; SRD_S = 20; SRD_X = 24; SRD_O = 32; SRD_F = 36
    S_WV = 40; S_MW = 41; S_NW = 42; S_WQ = 43; S_MT = 44; S_NT = 45; S_KQ = 46; S_J = 47
    S_KA = 48; S_PA = 49; S_PB = 50; S_MA = 51; S_MB = 52; S_MAE = 53; S_MBE = 54; S_ASL = 55; S_BSL = 56
    S_RAS = 57; S_RBS = 58; S_T = 59; S_T2 = 60; S_T3 = 61; S_KB = 62; S_SZ2 = 63; S_CUR = 64; S_DONE = 65
    S_TILE = 66; S_G = 67; S_CNT = 68; S_ARR = 69; S_PC = 70; S_DA = 72; S_DB = 73; S_Q = 74; S_ASZ = 75; S_XCC = 76; S_FB = 77; S_LOC = 78
    MAPK = f"""
    s_and_b32 s{S_KQ}, s2, 3
    s_bfe_u32 s{S_T}, s2, 0x10002             ; M half
    s_lshr_b32 s{S_T2}, s2, 3                 ; idx
    s_and_b32 s{S_MT}, s{S_T2}, 3
    s_lshl_b32 s{S_T}, s{S_T}, 2
    s_add_u32 s{S_MT}, s{S_MT}, s{S_T}        ; mt 0..7
    s_lshr_b32 s{S_NT}, s{S_T2}, 2            ; nt 0..7
"""
    MAPL = f"""
    s_lshr_b32 s{S_T2}, s2, 3                 ; idx
    s_and_b32 s{S_KQ}, s{S_T2}, 3
    s_bfe_u32 s{S_T}, s2, 0x20001             ; xcd >> 1
    s_lshl_b32 s{S_MT}, s{S_T}, 1
    s_bfe_u32 s{S_T}, s{S_T2}, 0x10002
    s_add_u32 s{S_MT}, s{S_MT}, s{S_T}        ; mt 0..7
    s_and_b32 s{S_NT}, s2, 1
    s_lshl_b32 s{S_NT}, s{S_NT}, 2
    s_lshr_b32 s{S_T}, s{S_T2}, 3
    s_add_u32 s{S_NT}, s{S_NT}, s{S_T}        ; nt 0..7
"""
    XF_ = "" if "xloc" in OPTS else "sc0 sc1"
    a.raw("""
.globl g2_kernel
.p2align 8
.type g2_kernel,@function
g2_kernel:""")
    a(f"""
    s_cmp_ge_u32 s2, 256
    s_cbranch_scc1 g2_exit
    s_load_dwordx2 s[{S_XP}:{S_XP+1}], s[0:1], 0
    s_load_dwordx2 s[{S_WO}:{S_WO+1}], s[0:1], 16
    s_load_dwordx4 s[{S_W2}:{S_W2+3}], s[0:1], 40      ; w2, out
    s_load_dwordx4 s[{S_DBG}:{S_DBG+3}], s[0:1], 56
    v_and_b32 v{VL}, 63, v0
    v_lshrrev_b32 v{T}, 6, v0
    v_and_b32 v{VT}, 15, v0
    v_readfirstlane_b32 s{S_WV}, v{T}
    v_bfe_u32 v{VG}, v0, 4, 2
    """)
    if STAMP: a(f"v_mov_b32 v{V_STAMP}, 0")
    stamp_now(a, 32); stamp_now(a, 50, True)
    a(f"""
    s_nop 2
    s_cmp_lg_u32 s{S_WV}, 7
    s_cbranch_scc1 g2_nopf
    """)
    code_prefetch(a, T, VL, S_PC, "g2_kernel", "g2_exit", 8192, VPF)
    a.label("g2_nopf")
    a(f"""
    """)
    a(MAPL if "xloc" in OPTS else MAPK)
    a(f"""
    s_lshl_b32 s{S_TILE}, s{S_MT}, 3
    s_add_u32 s{S_TILE}, s{S_TILE}, s{S_NT}
    s_lshr_b32 s{S_G}, s{S_WV}, 2
    s_and_b32 s{S_WQ}, s{S_WV}, 3
    s_and_b32 s{S_NW}, s{S_WV}, 1
    s_bfe_u32 s{S_MW}, s{S_WV}, 0x10001
    s_lshr_b32 s{S_Q}, s{S_WV}, 1
    s_xor_b32 s{S_T}, s{S_G}, 1
    s_lshl_b32 s{S_T2}, s{S_T}, 3
    s_lshl_b32 s{S_T3}, s{S_MT}, 4
    s_add_u32 s{S_T2}, s{S_T2}, s{S_T3}
    s_lshl_b32 s{S_T3}, s{S_WQ}, 1
    s_add_u32 s{S_T2}, s{S_T2}, s{S_T3}
    s_mul_i32 s{S_T2}, s{S_T2}, {MBLK_PITCH}
    v_lshl_add_u32 v{V_DA}, v{VL}, 4, s{S_T2}
    s_mul_i32 s{S_DA}, s{S_T}, {C_NA*C_ASLOT}
    s_lshl_b32 s{S_T3}, s{S_WQ}, 12
    s_add_u32 s{S_DA}, s{S_DA}, s{S_T3}
    v_lshrrev_b32 v{T}, 4, v{VL}
    s_lshl_b32 s{S_T}, s{S_WV}, 3
    v_add_u32 v{T+1}, s{S_T}, v{T}
    v_lshlrev_b32 v{T+1}, 11, v{T+1}
    s_lshl_b32 s{S_T}, s{S_NT}, 8
    v_add_u32 v{T+1}, s{S_T}, v{T+1}
    v_and_b32 v{T+2}, 1, v{VL}
    v_lshl_add_u32 v{T+1}, v{T+2}, 4, v{T+1}
    v_bfe_u32 v{T+2}, v{VL}, 1, 3
    s_lshl_b32 s{S_T}, s{S_NW}, 2
    v_or_b32 v{T}, s{S_T}, v{T}
    v_xor_b32 v{T+2}, v{T+2}, v{T}
    v_lshl_add_u32 v{V_DB}, v{T+2}, 5, v{T+1}
    s_lshl_b32 s{S_DB}, s{S_WV}, 11
    s_add_u32 s{S_DB}, s{S_DB}, {C_BBASE}
    s_waitcnt lgkmcnt(0)
    """)
    stamp_now(a, 41)
    a(f"""
    s_mov_b32 s{SRD_A}, s{S_WSP}
    s_and_b32 s{SRD_A+1}, s{S_WSP+1}, 0xffff
    s_mov_b32 s{SRD_A+3}, 0x20000
    s_mov_b32 s{SRD_B+3}, 0x20000
    s_and_b32 s{S_WO+1}, s{S_WO+1}, 0xffff
    s_and_b32 s{S_W2+1}, s{S_W2+1}, 0xffff
    s_mov_b32 s{S_SZ2}, {3584*2048}
    s_mov_b32 s{S_ASZ}, {A2_BYTES}
    s_mov_b32 s{S_CUR}, s{S_KQ}
    s_lshl_b32 s{S_DONE}, s{S_KQ}, 3
    s_lshl_b32 s{S_DONE}, 1, s{S_DONE}
    s_mov_b32 s{S_ARR}, 0
    s_mov_b32 s{S_LOC}, 0
    s_add_u32 s{SRD_S}, s{S_WSP}, {SLAB_OFF}
    s_addc_u32 s{SRD_S+1}, s{S_WSP+1}, 0
    s_and_b32 s{SRD_S+1}, s{SRD_S+1}, 0xffff
    s_mov_b32 s{SRD_S+2}, {SLAB_BYTES}
    s_mov_b32 s{SRD_S+3}, 0x20000
    s_add_u32 s{SRD_F}, s{S_WSP}, {FLAG_OFF}
    s_addc_u32 s{SRD_F+1}, s{S_WSP+1}, 0
    s_and_b32 s{SRD_F+1}, s{SRD_F+1}, 0xffff
    s_mov_b32 s{SRD_F+2}, {64*128}
    s_mov_b32 s{SRD_F+3}, 0x20000
    s_lshl_b32 s{S_FB}, s{S_TILE}, 7
    s_lshl_b32 s{S_T}, s{S_TILE}, 2
    s_add_u32 s{S_T}, s{S_T}, s{S_KQ}
    s_lshl_b32 s{S_T}, s{S_T}, 3
    s_add_u32 s{S_T}, s{S_T}, s{S_WV}
    s_lshl_b32 s{S_FB+1}, s{S_T}, 13
    v_lshlrev_b32 v155, 4, v{VL}
    s_mov_b32 s{SRD_X}, s{S_XP}
    s_and_b32 s{SRD_X+1}, s{S_XP+1}, 0xffff
    s_mov_b32 s{SRD_X+2}, {2048*2048}
    s_mov_b32 s{SRD_X+3}, 0x20000
    s_mov_b32 s{SRD_O}, s{S_OUTP}
    s_and_b32 s{SRD_O+1}, s{S_OUTP+1}, 0xffff
    s_mov_b32 s{SRD_O+2}, {2048*2048}
    s_mov_b32 s{SRD_O+3}, 0x20000
    """)
    for r in range(64):
        a(f"v_mov_b32 v{r}, 0")
    def setA():
        a(f"""
        s_mul_i32 s{S_T}, s{S_CUR}, {NKS}
        s_add_u32 s{S_T}, s{S_T}, s{S_PA}
        s_lshl_b32 s{S_KA}, s{S_T}, 11
        s_cmp_ge_u32 s{S_PA}, {NKS}
        s_cselect_b32 s{SRD_A+2}, 0, s{S_ASZ}
        s_cselect_b32 s{S_MAE}, {LDS_DUMP}, s{S_MA}
        """)
    def setB():
        a(f"""
        s_mul_i32 s{S_T}, s{S_CUR}, {NKS}
        s_add_u32 s{S_T}, s{S_T}, s{S_PB}
        s_cmp_lt_u32 s{S_T}, 16
        s_cselect_b32 s{SRD_B}, s{S_WO}, s{S_W2}
        s_cselect_b32 s{SRD_B+1}, s{S_WO+1}, s{S_W2+1}
        s_cselect_b32 s{SRD_B+2}, {1024*2048}, s{S_SZ2}
        s_cselect_b32 s{S_T2}, 0, 16
        s_sub_u32 s{S_T}, s{S_T}, s{S_T2}
        s_lshl_b32 s{S_KB}, s{S_T}, 17
        s_cmp_ge_u32 s{S_PB}, {NKS}
        s_cselect_b32 s{SRD_B+2}, 0, s{SRD_B+2}
        s_cselect_b32 s{S_MBE}, {LDS_DUMP}, s{S_MB}
        """)
    def dmaA_list():
        L = []
        for e in range(2):
            L.append(f"""
            s_add_u32 m0, s{S_MAE}, {e*2048}
            s_add_u32 s{S_T3}, s{S_KA}, {e*MBLK_PITCH}
            buffer_load_dwordx4 v{V_DA}, {sr(SRD_A,4)}, s{S_T3} offen lds
            """)
            L.append(f"buffer_load_dwordx4 v{V_DA}, {sr(SRD_A,4)}, s{S_T3} offen offset:1024 lds")
        return L
    def dmaB_list():
        L = []
        for e in range(2):
            L.append(f"""
            s_add_u32 m0, s{S_MBE}, {e*1024}
            s_add_u32 s{S_T3}, s{S_KB}, {e*8192}
            buffer_load_dwordx4 v{V_DB}, {sr(SRD_B,4)}, s{S_T3} offen lds
            """)
        return L
    def advA():
        a(f"""
        s_add_u32 s{S_PA}, s{S_PA}, 1
        s_add_u32 s{S_ASL}, s{S_ASL}, 1
        s_add_u32 s{S_MA}, s{S_MA}, {C_ASLOT}
        s_cmp_eq_u32 s{S_ASL}, {C_NA}
        s_cselect_b32 s{S_ASL}, 0, s{S_ASL}
        s_cselect_b32 s{S_MA}, s{S_DA}, s{S_MA}
        """)
        setA()
    def advB():
        a(f"""
        s_add_u32 s{S_PB}, s{S_PB}, 1
        s_add_u32 s{S_BSL}, s{S_BSL}, 1
        s_add_u32 s{S_MB}, s{S_MB}, {C_BSLOT}
        s_cmp_eq_u32 s{S_BSL}, {C_NBS}
        s_cselect_b32 s{S_BSL}, 0, s{S_BSL}
        s_cselect_b32 s{S_MB}, s{S_DB}, s{S_MB}
        """)
        setB()
    def doA():
        for d in dmaA_list(): a(d)
        advA()
    def doB():
        for d in dmaB_list(): a(d)
        advB()
    a.label("g2_gemm")
    a(f"""
    s_mov_b32 s{S_PA}, 0
    s_mov_b32 s{S_PB}, 0
    s_mov_b32 s{S_ASL}, 0
    s_mov_b32 s{S_BSL}, 0
    s_mov_b32 s{S_MA}, s{S_DA}
    s_mov_b32 s{S_MB}, s{S_DB}
    """)
    setA(); setB()
    stamp_now(a, 42)
    a(f"""
    s_cmp_eq_u32 s{S_G}, 0
    s_cbranch_scc0 g2_pro1
    """)
    doB(); doA(); doB(); doA(); doB()
    a("s_branch g2_pro2")
    a.label("g2_pro1")
    doA(); doB(); doA(); doB(); doA(); doB()
    a.label("g2_pro2")
    stamp_now(a, 43)
    a(f"""
    s_mul_i32 s{S_T}, s{S_G}, {C_NA*C_ASLOT}
    s_lshl_b32 s{S_T2}, s{S_MW}, 13
    s_add_u32 s{S_T}, s{S_T}, s{S_T2}
    v_lshl_add_u32 v{V_RA}, v{VL}, 4, s{S_T}
    v_lshrrev_b32 v{T}, 2, v{VT}              ; r
    v_lshl_add_u32 v{T+1}, v{VG}, 3, v{T}
    v_lshlrev_b32 v{T+1}, 8, v{T+1}
    v_and_b32 v{T+2}, 3, v{VL}
    v_lshl_add_u32 v{T+1}, v{T+2}, 3, v{T+1}
    v_add_u32 v{T+1}, {C_BBASE}, v{T+1}
    v_and_b32 v{T+2}, 1, v{VG}
    v_lshl_or_b32 v{T+2}, v{T+2}, 2, v{T}     ; f = r | (g&1)<<2
    s_lshl_b32 s{S_T}, s{S_NW}, 2
    v_xor_b32 v{T+2}, s{S_T}, v{T+2}
    """)
    for c in range(4):
        a(f"""
        v_xor_b32 v{T+3}, {c}, v{T+2}
        v_lshl_add_u32 v{V_RB+c}, v{T+3}, 5, v{T+1}
        """)
    a(f"""
    s_mov_b32 s{S_J}, 0
    s_mov_b32 s{S_RAS}, 0
    s_mov_b32 s{S_RBS}, 0
    """)
    stamp_now(a, 44)
    a("s_waitcnt vmcnt(12)")
    stamp_now(a, 45)
    a("s_barrier")
    stamp_now(a, 33)
    a(f"""
    s_cmp_eq_u32 s{S_G}, 0
    s_cbranch_scc1 g2_loop
    s_barrier
    """)
    reads = []
    for kk in range(2):
        for t in range(4):
            reads.append(f"ds_read_b128 {vr(xf(t,kk))}, v{V_RA} offset:{(t*2+kk)*1024}")
        for c in range(4):
            for h in range(2):
                reads.append(f"ds_read_b64_tr_b16 {vr(wf(c,kk)+2*h,2)}, v{V_RB+c} offset:{(32*kk+4*h)*256}")
    a.raw(".p2align 6")
    a.label("g2_loop")
    if "pretouch" in OPTS:
        a(f"""
        s_sub_u32 s{S_T}, s{S_J}, 4
        s_cmp_lt_u32 s{S_T}, 8
        s_cbranch_scc0 g2_nopt
        s_lshl_b32 s{S_T}, s{S_T}, 10
        s_add_u32 s{S_T}, s{S_T}, s{S_FB+1}
        buffer_load_dwordx4 v[156:159], v155, {sr(SRD_S,4)}, s{S_T} offen
        """)
        a.label("g2_nopt")
    dl = dmaA_list() + dmaB_list()
    di = 0
    for n_, r in enumerate(reads):
        a(r)
        if n_ % 4 == 1 and di < len(dl):
            a(dl[di]); di += 1
    assert di == len(dl)
    a("""
    s_waitcnt vmcnt(12) lgkmcnt(0)
    s_barrier
    s_setprio 1
    """)
    real = a; a = bk = Collect()
    def _adv():
        pass
    bk(f"""
    s_add_u32 s{S_PA}, s{S_PA}, 1
    s_add_u32 s{S_ASL}, s{S_ASL}, 1
    s_add_u32 s{S_MA}, s{S_MA}, {C_ASLOT}
    s_cmp_eq_u32 s{S_ASL}, {C_NA}
    s_cselect_b32 s{S_ASL}, 0, s{S_ASL}
    s_cselect_b32 s{S_MA}, s{S_DA}, s{S_MA}
    s_add_u32 s{S_KA}, s{S_KA}, 2048
    s_cmp_ge_u32 s{S_PA}, {NKS}
    s_cselect_b32 s{SRD_A+2}, 0, s{S_ASZ}
    s_cselect_b32 s{S_MAE}, {LDS_DUMP}, s{S_MA}
    s_add_u32 s{S_PB}, s{S_PB}, 1
    s_add_u32 s{S_BSL}, s{S_BSL}, 1
    s_add_u32 s{S_MB}, s{S_MB}, {C_BSLOT}
    s_cmp_eq_u32 s{S_BSL}, {C_NBS}
    s_cselect_b32 s{S_BSL}, 0, s{S_BSL}
    s_cselect_b32 s{S_MB}, s{S_DB}, s{S_MB}
    s_add_u32 s{S_KB}, s{S_KB}, {1<<17}
    s_lshl_b32 s{S_T}, s{S_CUR}, 8
    s_add_u32 s{S_T}, s{S_T}, s{S_PB}
    s_cmp_eq_u32 s{S_T}, 16
    s_cselect_b32 s{SRD_B}, s{S_W2}, s{SRD_B}
    s_cselect_b32 s{SRD_B+1}, s{S_W2+1}, s{SRD_B+1}
    s_cselect_b32 s{SRD_B+2}, s{S_SZ2}, s{SRD_B+2}
    s_cselect_b32 s{S_KB}, 0, s{S_KB}
    s_cmp_ge_u32 s{S_PB}, {NKS}
    s_cselect_b32 s{SRD_B+2}, 0, s{SRD_B+2}
    s_cselect_b32 s{S_MBE}, {LDS_DUMP}, s{S_MB}
    s_add_u32 s{S_RAS}, s{S_RAS}, 1
    s_cmp_eq_u32 s{S_RAS}, {C_NA}
    s_cselect_b32 s{S_RAS}, 0, s{S_RAS}
    s_cselect_b32 s{S_T}, {C_NA*C_ASLOT}, 0
    s_sub_u32 s{S_T}, {C_ASLOT}, s{S_T}
    v_add_u32 v{V_RA}, s{S_T}, v{V_RA}
    s_add_u32 s{S_RBS}, s{S_RBS}, 1
    s_cmp_eq_u32 s{S_RBS}, {C_NBS}
    s_cselect_b32 s{S_RBS}, 0, s{S_RBS}
    s_cselect_b32 s{S_T}, {C_NBS*C_BSLOT}, 0
    s_sub_u32 s{S_T}, {C_BSLOT}, s{S_T}
    """)
    for c in range(4):
        bk(f"v_add_u32 v{V_RB+c}, s{S_T}, v{V_RB+c}")
    a = real
    mf = []
    for kk in range(2):
        for c in range(4):
            for t in range(4):
                mf.append(f"v_mfma_f32_16x16x32_bf16 {vr(acc(c,t))}, {vr(wf(c,kk))}, {vr(xf(t,kk))}, {vr(acc(c,t))}")
    interleave(a, mf, bk.L, start=1, per=2)
    a(f"""
    s_setprio 0
    s_add_u32 s{S_J}, s{S_J}, 1
    s_lshl_b32 s{S_T}, s{S_G}, 8
    s_add_u32 s{S_T}, s{S_T}, s{S_J}
    s_cmp_eq_u32 s{S_T}, {256 + NKS}
    s_cbranch_scc1 g2_post
    s_cmp_lt_u32 s{S_J}, {NKS}
    s_barrier
    s_cbranch_scc1 g2_loop
    """)
    a.label("g2_post")
    stamp_now(a, 34)
    V_XR = XF; V_XA = T + 1; V_OA = T + 2; PK = WF
    a(f"""
    v_lshlrev_b32 v{T}, 4, v{VL}
    s_cmp_eq_u32 s{S_Q}, s{S_KQ}
    s_cbranch_scc1 g2_own
    s_cmp_eq_u32 s{S_CUR}, s{S_KQ}
    s_cbranch_scc0 g2_pub_done
    s_lshl_b32 s{S_T}, s{S_TILE}, 2
    s_add_u32 s{S_T}, s{S_T}, s{S_KQ}
    s_lshl_b32 s{S_T}, s{S_T}, 3
    s_add_u32 s{S_T}, s{S_T}, s{S_WV}
    s_lshl_b32 s{S_T}, s{S_T}, 13
    s_add_u32 s{S_T2}, s{S_T}, 4096
    """)
    for bp in range(8):
        o = PK + 4 * bp
        for h in range(2):
            b = acc(bp >> 1, (bp & 1) * 2 + h)
            a(f"""
            v_cvt_pk_bf16_f32 v{o+2*h}, v{b}, v{b+1}
            v_cvt_pk_bf16_f32 v{o+2*h+1}, v{b+2}, v{b+3}
            """)
        a(f"buffer_store_dwordx4 {vr(o)}, v{T}, {sr(SRD_S,4)}, s{S_T if bp < 4 else S_T2} offen offset:{(bp%4)*1024} {XF_}")
    a("s_branch g2_pub_done")
    a.label("g2_own")
    a(f"""
    s_lshl_b32 s{S_T}, s{S_NW}, 14
    v_add_u32 v{T+3}, s{S_T}, v{T}
    """)
    for b in range(16):
        a(f"ds_write_b128 v{T+3}, {vr(4*b)} offset:{b*1024}")
    a.label("g2_pub_done")
    a(f"""
    s_lshl_b32 s{S_T}, s{S_MT}, 8
    s_lshl_b32 s{S_T2}, s{S_KQ}, 6
    s_add_u32 s{S_T}, s{S_T}, s{S_T2}
    s_lshl_b32 s{S_T2}, s{S_G}, 5
    s_add_u32 s{S_T}, s{S_T}, s{S_T2}
    v_add_u32 v{T+3}, s{S_T}, v{VT}
    v_lshlrev_b32 v{T+3}, 11, v{T+3}
    s_lshl_b32 s{S_T}, s{S_NT}, 8
    s_lshl_b32 s{S_T2}, s{S_NW}, 7
    s_add_u32 s{S_T}, s{S_T}, s{S_T2}
    s_lshl_b32 s{S_T2}, s{S_MW}, 6
    s_add_u32 s{S_T}, s{S_T}, s{S_T2}
    v_add_u32 v{T+3}, s{S_T}, v{T+3}
    v_lshl_add_u32 v{V_XA}, v{VG}, 3, v{T+3}
    v_and_b32 v{T+4}, 1, v{VG}
    v_lshrrev_b32 v{T+5}, 1, v{VG}
    v_lshl_or_b32 v{T+4}, v{T+4}, 1, v{T+5}
    v_lshl_add_u32 v{V_OA}, v{T+4}, 4, v{T+3}
    s_mov_b32 s{S_T}, {16*2048}
    """)
    for t in range(2):
        for e in range(2):
            so = "0" if t == 0 else f"s{S_T}"
            a(f"buffer_load_dwordx2 {vr(V_XR+(t*2+e)*2,2)}, v{V_XA}, {sr(SRD_X,4)}, {so} offen offset:{e*32}")
    a("s_waitcnt vmcnt(4) lgkmcnt(0)")
    stamp_now(a, 36)
    a(f"""
    s_barrier
    s_cmp_eq_u32 s{S_CUR}, s{S_KQ}
    s_cbranch_scc0 g2_after_publish
    s_cmp_eq_u32 s{S_WV}, 0
    s_cbranch_scc0 g2_wait_done
    s_lshl_b32 s{S_T}, s{S_KQ}, 2
    v_mov_b32 v{T+3}, s{S_DONE}
    v_mov_b32 v{T+4}, s{S_T}
    s_mov_b64 exec, 1
    buffer_store_dword v{T+3}, v{T+4}, {sr(SRD_F,4)}, s{S_FB} offen sc0 sc1
    s_mov_b32 s{S_CNT}, 0
    """)
    a.label("g2_poll")
    a(f"""
    buffer_load_dwordx4 {vr(T+6)}, off, {sr(SRD_F,4)}, s{S_FB} sc0 sc1
    s_waitcnt vmcnt(0)
    v_or_b32 v{T+6}, v{T+6}, v{T+7}
    v_or3_b32 v{T+5}, v{T+6}, v{T+8}, v{T+9}
    s_add_u32 s{S_CNT}, s{S_CNT}, 1
    v_readfirstlane_b32 s{S_ARR}, v{T+5}
    s_nop 3
    s_cmp_eq_u32 s{S_ARR}, {0x77 if "forcefb" in OPTS else 0x01010101}
    s_cbranch_scc1 g2_poll_end
    s_cmp_lt_u32 s{S_CNT}, {64 if "forcefb" in OPTS else 20000}
    s_cbranch_scc1 g2_poll
    """)
    a.label("g2_poll_end")
    if STAMP:
        a(f"v_writelane_b32 v{V_STAMP}, s{S_CNT}, 39")
    if "forcefb" in OPTS:
        a(f"s_and_b32 s{S_ARR}, s{S_ARR}, 0x00010001")
    a(f"""
    v_mov_b32 v{T+5}, s{S_ARR}
    v_mov_b32 v{T+4}, {65536}
    ds_write_b32 v{T+4}, v{T+5}
    s_mov_b64 exec, -1
    s_waitcnt lgkmcnt(0)
    """)
    a.label("g2_wait_done")
    a(f"""
    s_barrier
    v_mov_b32 v{T+4}, {65536}
    ds_read_b32 v{T+5}, v{T+4}
    s_waitcnt lgkmcnt(0)
    v_readfirstlane_b32 s{S_ARR}, v{T+5}
    s_nop 3
    """)
    a.label("g2_after_publish")
    a(f"""
    s_or_b32 s{S_T}, s{S_ARR}, s{S_DONE}
    s_cmp_eq_u32 s{S_T}, 0x01010101
    s_cbranch_scc1 g2_final
    s_andn2_b32 s{S_T}, 0x01010101, s{S_T}
    s_ff1_i32_b32 s{S_T}, s{S_T}
    s_lshl_b32 s{S_T2}, 1, s{S_T}
    s_or_b32 s{S_DONE}, s{S_DONE}, s{S_T2}
    s_lshr_b32 s{S_CUR}, s{S_T}, 3
    s_waitcnt vmcnt(0)
    s_barrier
    s_branch g2_gemm
    """)
    a.label("g2_final")
    stamp_now(a, 35)
    R0 = WF
    a(f"""
    s_andn2_b32 s{S_ARR}, s{S_ARR}, s{S_DONE}
    s_lshl_b32 s{S_T}, s{S_MW}, 2
    s_add_u32 s{S_T}, s{S_T}, s{S_G}
    s_lshl_b32 s{S_T}, s{S_T}, 10             ; pair0 * 1024
    s_lshl_b32 s{S_T2}, s{S_NW}, 13
    s_add_u32 s{S_T3}, s{S_T}, s{S_T2}
    """)
    for src in range(4):
        a(f"""
        s_bitcmp1_b32 s{S_ARR}, {8*src}
        s_cbranch_scc1 g2_ld{src}
        """)
        for r in range(8):
            a(f"v_mov_b32 v{8*src+r}, 0")
        a(f"s_branch g2_ld{src}_done")
        a.label(f"g2_ld{src}")
        a(f"""
        s_lshl_b32 s{S_T}, s{S_TILE}, 2
        s_add_u32 s{S_T}, s{S_T}, {src}
        s_lshl_b32 s{S_T}, s{S_T}, 2
        s_add_u32 s{S_T}, s{S_T}, s{S_KQ}
        s_lshl_b32 s{S_T}, s{S_T}, 14
        s_add_u32 s{S_T}, s{S_T}, s{S_T3}
        """)
        for e in range(2):
            a(f"buffer_load_dwordx4 {vr(8*src+4*e)}, v{T}, {sr(SRD_S,4)}, s{S_T} offen offset:{e*2048} {XF_}")
        a.label(f"g2_ld{src}_done")
    a(f"""
    s_lshl_b32 s{S_T}, s{S_MW}, 3
    s_lshl_b32 s{S_T2}, s{S_G}, 1
    s_add_u32 s{S_T}, s{S_T}, s{S_T2}
    s_lshl_b32 s{S_T}, s{S_T}, 10
    s_lshl_b32 s{S_T2}, s{S_NW}, 14
    s_add_u32 s{S_T}, s{S_T}, s{S_T2}
    v_add_u32 v{T+3}, s{S_T}, v{T}
    """)
    for e in range(2):
        for t in range(2):
            a(f"ds_read_b128 {vr(R0+(e*2+t)*4)}, v{T+3} offset:{e*4096 + t*1024}")
    a("s_waitcnt vmcnt(0) lgkmcnt(0)")
    stamp_now(a, 37)
    for t in range(2):
        o = XF + 16 + t * 4
        for e in range(2):
            c = R0 + (e * 2 + t) * 4
            srcs = [8 * src + 4 * e + 2 * t for src in range(4)] + [V_XR + (t * 2 + e) * 2]
            for p in srcs:
                a(f"""
                v_lshlrev_b32 v{T+8}, 16, v{p}
                v_and_b32 v{T+9}, 0xffff0000, v{p}
                v_lshlrev_b32 v{T+10}, 16, v{p+1}
                v_and_b32 v{T+11}, 0xffff0000, v{p+1}
                v_pk_add_f32 {vr(c,2)}, {vr(c,2)}, {vr(T+8,2)}
                v_pk_add_f32 {vr(c+2,2)}, {vr(c+2,2)}, {vr(T+10,2)}
                """)
            a(f"""
            v_cvt_pk_bf16_f32 v{o+2*e}, v{c}, v{c+1}
            v_cvt_pk_bf16_f32 v{o+2*e+1}, v{c+2}, v{c+3}
            """)
        so = "0" if t == 0 else f"s{S_T2}"
        a(f"""
        s_mov_b32 s{S_T2}, {16*2048}
        s_nop 0
        v_permlane16_swap_b32 v{o}, v{o+2}
        v_permlane16_swap_b32 v{o+1}, v{o+3}
        s_nop 1
        buffer_store_dwordx4 {vr(o)}, v{V_OA}, {sr(SRD_O,4)}, {so} offen
        """)
    stamp_now(a, 51, True)
    stamp_dump(a, S_WSP, S_WV, 40 << 20)
    a.label("g2_exit")
    a("s_endpgm")
    global G2_VGPRS
    G2_VGPRS = 256 if STAMP else 160

HEADER = f"""; mblk_pitch={MBLK_PITCH}
{"" if FUSE else "; @launch kernel=k0_kernel grid=(256,1,1) block=(512,1,1) lds=0"}
; @launch kernel=g1_kernel grid=(256,1,1) block=(512,1,1) lds={G1_LDS}
; @launch kernel=g2_kernel grid=(256,1,1) block=(512,1,1) lds={G2_LDS if 'g2a' in OPTS else G2C_LDS}
.amdgcn_target "amdgcn-amd-amdhsa--gfx950"
.text
"""

def kd(name, vgpr, sgpr):
    return f"""
.amdhsa_kernel {name}
  .amdhsa_next_free_vgpr {vgpr}
  .amdhsa_next_free_sgpr {sgpr}
  .amdhsa_accum_offset {(vgpr + 3) // 4 * 4}
  .amdhsa_group_segment_fixed_size 0
  .amdhsa_kernarg_size 72
  .amdhsa_user_sgpr_count 2
  .amdhsa_user_sgpr_kernarg_segment_ptr 1
  .amdhsa_system_sgpr_workgroup_id_x 1
.end_amdhsa_kernel
"""

def main():
    global STAMP
    if "stamp" in sys.argv[2:]: STAMP = True
    a = Asm()
    gen_k0(a)
    gen_g1(a)
    (gen_g2 if 'g2a' in OPTS else gen_g2c)(a)
    s = HEADER + a.text() + '.section .rodata,"a"\n.p2align 6\n' + kd("k0_kernel", 64, 40) + ".p2align 6\n" + kd("g1_kernel", 256, 102) + ".p2align 6\n" + kd("g2_kernel", G2_VGPRS, 102 if STAMP else 80)
    out = sys.argv[1] if len(sys.argv) > 1 else OUT
    open(out, "w").write(s)

main()
```

```python
import sys

OUT = "parallel_sum__sliding_local_dilated__dense_activation_relu__prompt.s"

class Asm:
    def __init__(self):
        self.L = []
    def __call__(self, s):
        for line in s.strip("\n").split("\n"):
            line = line.strip()
            if line:
                self.L.append("    " + line)
    def label(self, n):
        self.L.append(n + ":")
    def raw(self, s):
        self.L.append(s)
    def text(self):
        return "\n".join(self.L) + "\n"

class Collect:
    def __init__(self): self.L = []
    def __call__(self, s):
        for line in s.strip("\n").split("\n"):
            line = line.strip()
            if line: self.L.append(line)

def interleave(a, mfmas, fillers, start=2, per=2):
    fi = 0
    for n, m in enumerate(mfmas):
        a(m)
        if n >= start:
            for _ in range(per):
                if fi < len(fillers):
                    a(fillers[fi]); fi += 1
    while fi < len(fillers):
        a(fillers[fi]); fi += 1

def vr(b, n=4):
    return "v[%d:%d]" % (b, b + n - 1)
def sr(b, n=2):
    return "s[%d:%d]" % (b, b + n - 1)

MBLK_PITCH = 144 * 1024
for _o in sys.argv[2:]:
    if _o.startswith("pitch="): MBLK_PITCH = int(_o[6:])
A2_BYTES = 128 * MBLK_PITCH

G1_ASLOT = 16384
G1_BBASE = 65536
G1_BSLOT = 28672
G1_HALO = 24576
G1_STAT = G1_BBASE + 3 * G1_BSLOT
G1_CS = G1_STAT + 272 * 8
G1_CSP = G1_STAT + 3072
G1_CS = G1_CSP + 8192
G1_VERD = G1_CS + 896
G1_LDS = 163840 if "nofuse" not in sys.argv[2:] else G1_STAT
ST_OFF = 28 << 20
XN_OFF = 24 << 20
AT_PITCH = 400

V_ACC = 0
V_HACC = 96
V_XF = 112
V_WF = 144
V_HF = 200
V_S1 = 208
V_S2 = 210
V_SH = 212
V_CS = 214
V_WD = 208
V_WV = 212
V_RA = 217
V_RB = 221
V_RH = 228
V_DA = 230
V_DB = 231
V_DH = 235
V_T = 236
V_LANE = 250
V_TT = 251
V_GG = 252

S_X = 4; S_W = 6; S_WS = 8; S_W1 = 10
SRD_X = 12; SRD_W = 16; SRD_O = 20
S_WAVE = 24; S_MW = 26; S_NW = 27; S_WQ = 28; S_MT = 29; S_JT = 30; S_J = 31
S_KA = 32; S_KB = 33; S_MA = 34; S_MB = 35; S_BD = 36; S_BSL = 37; S_RSL = 38; S_TMP = 39
S_ONES = 40; S_KH = 41; S_TMP2 = 42; S_TMP3 = 43
S_BLK = 44
S_TB = 52
S_PO = 56
S_MASK = 64
S_BSC = 60
S_HD = 61
S_KW = 91
SRD_WW = 64; S_WM = 68; S_GW = 70; S_WPK = 71
V_L16 = 216
SRD_ST = 64; SRD_DBG = 72; S_NTI = 76; S_EV = 77; S_DBGP = 78
V_ONES = 240; V_CHK = 208
S_MAE = 25; S_MBE = 3
LDS_DUMP = 0x28000
SRD_XA = 96
S_WOP = 92; S_W2P = 94; S_PC1 = 62

STAMP = False
FUSE = "nofuse" not in sys.argv[2:]
OPTS = sys.argv[2:]
STF = "sc0 sc1" if "stsc" in OPTS else ""
STH = "sc0 sc1" if "hwt" in OPTS else ""
V_STAMP = 253
S_SA = 84; S_SB = 86; S_SC = 88; SRD_D = 80; S_SI = 90
def stamp_now(a, idx, real=False):
    if not STAMP: return
    a(f"""
    {"s_memrealtime" if real else "s_memtime"} {sr(S_SC)}
    s_waitcnt lgkmcnt(0)
    v_writelane_b32 v{V_STAMP}, s{S_SC}, {idx}
    """)
def stamp_dump(a, wsreg, wave_sreg, base_off):
    if not STAMP: return
    a(f"""
    s_waitcnt vmcnt(0)
    s_memtime {sr(S_SC)}
    s_waitcnt lgkmcnt(0)
    v_writelane_b32 v{V_STAMP}, s{S_SC}, 63
    s_mov_b32 s{SRD_D}, s{wsreg}
    s_and_b32 s{SRD_D+1}, s{wsreg+1}, 0xffff
    s_mov_b32 s{SRD_D+2}, {64<<20}
    s_mov_b32 s{SRD_D+3}, 0x20000
    s_lshl_b32 s{S_SC}, s2, 3
    s_add_u32 s{S_SC}, s{S_SC}, s{wave_sreg}
    s_lshl_b32 s{S_SC}, s{S_SC}, 8
    s_add_u32 s{S_SC}, s{S_SC}, {base_off}
    v_mbcnt_lo_u32_b32 v254, -1, 0
    v_mbcnt_hi_u32_b32 v254, -1, v254
    v_lshlrev_b32 v254, 2, v254
    buffer_store_dword v{V_STAMP}, v254, {sr(SRD_D,4)}, s{S_SC} offen
    """)

def acc(s, i): return V_ACC + (s * 4 + i) * 4
def xf(i, kk): return V_XF + (i * 2 + kk) * 4
def wf(s, kk): return V_WF + (s * 2 + kk) * 4
def hf(kk): return V_HF + kk * 4

def xlane_sum(a, v, t):
    a(f"""
    v_mov_b32 v{t}, v{v}
    s_nop 1
    v_permlane16_swap_b32 v{v}, v{t}
    s_nop 1
    v_add_f32 v{v}, v{v}, v{t}
    v_mov_b32 v{t}, v{v}
    s_nop 1
    v_permlane32_swap_b32 v{v}, v{t}
    s_nop 1
    v_add_f32 v{v}, v{v}, v{t}
    """)

def xlane_max(a, v, t):
    a(f"""
    v_mov_b32 v{t}, v{v}
    s_nop 1
    v_permlane16_swap_b32 v{v}, v{t}
    s_nop 1
    v_max_f32 v{v}, v{v}, v{t}
    v_mov_b32 v{t}, v{v}
    s_nop 1
    v_permlane32_swap_b32 v{v}, v{t}
    s_nop 1
    v_max_f32 v{v}, v{v}, v{t}
    """)

def reduce64(a, v, t):
    DPP = "row_mask:0xf bank_mask:0xf"
    a(f"""
    s_nop 1
    v_add_f32_dpp v{t}, v{v}, v{v} quad_perm:[1,0,3,2] {DPP}
    s_nop 1
    v_add_f32_dpp v{v}, v{t}, v{t} quad_perm:[2,3,0,1] {DPP}
    s_nop 1
    v_add_f32_dpp v{t}, v{v}, v{v} row_half_mirror {DPP}
    s_nop 1
    v_add_f32_dpp v{v}, v{t}, v{t} row_mirror {DPP}
    """)
    xlane_sum(a, v, t)

def row_stats(a, src, u, dst, t0, t1):
    for r in range(8):
        a(f"""
        v_lshlrev_b32 v{u+2*r}, 16, v{src+r}
        v_and_b32 v{u+2*r+1}, 0xffff0000, v{src+r}
        """)
    a(f"v_pk_add_f32 {vr(dst,2)}, {vr(u,2)}, {vr(u+2,2)}")
    for r in range(2, 8):
        a(f"v_pk_add_f32 {vr(dst,2)}, {vr(dst,2)}, {vr(u+2*r,2)}")
    a(f"v_add_f32 v{t0}, v{dst}, v{dst+1}")
    reduce64(a, t0, t1)
    a(f"v_mul_f32 v{t0}, 0x3a800000, v{t0}          ; mean")
    for r in range(8):
        a(f"v_pk_add_f32 {vr(u+2*r,2)}, {vr(u+2*r,2)}, {vr(t0,2)} op_sel_hi:[1,0] neg_lo:[0,1] neg_hi:[0,1]")
    a(f"v_pk_mul_f32 {vr(dst,2)}, {vr(u,2)}, {vr(u,2)}")
    for r in range(1, 8):
        a(f"v_pk_fma_f32 {vr(dst,2)}, {vr(u+2*r,2)}, {vr(u+2*r,2)}, {vr(dst,2)}")
    a(f"v_add_f32 v{dst+1}, v{dst}, v{dst+1}")
    reduce64(a, dst + 1, t1)
    a(f"""
    v_mul_f32 v{dst+1}, 0x3a800000, v{dst+1}     ; var
    v_cvt_pk_bf16_f32 v{t1}, v{t0}, v{dst+1}
    v_lshlrev_b32 v{dst}, 16, v{t1}              ; m_b
    v_and_b32 v{dst+1}, 0xffff0000, v{t1}        ; v_b
    v_add_f32 v{dst+1}, 0x3727c5ac, v{dst+1}
    v_cvt_pk_bf16_f32 v{dst+1}, v{dst+1}, v{dst+1}
    v_and_b32 v{dst+1}, 0xffff0000, v{dst+1}
    v_sqrt_f32 v{dst+1}, v{dst+1}
    s_nop 0
    v_cvt_pk_bf16_f32 v{dst+1}, v{dst+1}, v{dst+1}
    v_and_b32 v{dst+1}, 0xffff0000, v{dst+1}
    v_rcp_f32 v{dst+1}, v{dst+1}
    s_nop 0
    """)

def g1_path(a, typ, G):
    qkv = (typ == 0)
    NB = 6 if qkv else 7
    PB = 384 if qkv else 448
    CH = PB // 16
    WP = 6144 if qkv else 7168
    halo = qkv and G == 0
    if qkv:
        nB = 3
        p0 = 0 if G == 0 else 12
    else:
        nB = 4 if G == 0 else 3
        p0 = 0 if G == 0 else 16
    nIss = 4 + nB + (1 if halo else 0)
    nBiss = nB + (1 if halo else 0)
    cs_slots = [0, 1] if (qkv or G == 0) else [0, 1, 6]
    P = f"g1_{typ}{G}"
    T = V_T
    a.label(P)
    if STAMP: a(f"v_mov_b32 v{V_STAMP}, 0")
    stamp_now(a, 32); stamp_now(a, 50, True)
    if qkv:
        a(f"""
        s_mov_b32 s{SRD_W}, s{S_W}
        s_and_b32 s{SRD_W+1}, s{S_W+1}, 0xffff
        s_mov_b32 s{SRD_W+2}, {1024*6144}
        s_mov_b32 s{SRD_W+3}, 0x20000
        """)
    else:
        a(f"""
        s_mov_b32 s{SRD_W}, s{S_W1}
        s_and_b32 s{SRD_W+1}, s{S_W1+1}, 0xffff
        s_mov_b32 s{SRD_W+2}, {1024*7168}
        s_mov_b32 s{SRD_W+3}, 0x20000
        """)
    Go = 1 - G
    a(f"""
    v_lshrrev_b32 v{T}, 3, v{V_LANE}                 ; l>>3
    v_and_b32 v{T+1}, 7, v{V_LANE}
    v_xor_b32 v{T+1}, v{T+1}, v{T}                   ; chunk
    s_lshl_b32 s{S_TMP}, s{S_MT}, 8
    s_lshl_b32 s{S_TMP2}, s{S_WQ}, 5
    s_add_u32 s{S_TMP}, s{S_TMP}, s{S_TMP2}
    s_add_u32 s{S_TMP}, s{S_TMP}, {128*Go}
    v_add_u32 v{T+2}, s{S_TMP}, v{T}
    v_lshlrev_b32 v{T+2}, 11, v{T+2}
    v_lshl_add_u32 v{V_DA}, v{T+1}, 4, v{T+2}
    """)
    if halo:
        a(f"""
        s_and_b32 s{S_TMP2}, s{S_WQ}, 1
        s_lshl_b32 s{S_TMP2}, s{S_TMP2}, 3
        v_add_u32 v{T+2}, s{S_TMP2}, v{T}
        s_lshl_b32 s{S_TMP}, s{S_MT}, 8
        s_sub_u32 s{S_TMP}, s{S_TMP}, 16
        v_add_u32 v{T+2}, s{S_TMP}, v{T+2}
        v_max_i32 v{T+2}, 0, v{T+2}
        v_lshlrev_b32 v{T+2}, 11, v{T+2}
        v_lshl_add_u32 v{V_DH}, v{T+1}, 4, v{T+2}
        s_mul_i32 s{S_HD}, s{S_WQ}, {nB*1024}
        s_sub_u32 s{S_HD}, {G1_HALO - p0*1024}, s{S_HD}
        s_lshl_b32 s{S_TMP2}, s{S_TMP2}, 7           ; (wq&1)*1024
        s_add_u32 s{S_HD}, s{S_HD}, s{S_TMP2}
        """)
    magic = (65536 + CH - 1) // CH
    for q in range(64 * CH):
        assert (q * magic) >> 16 == q // CH
    a(f"s_mul_i32 s{S_TMP3}, s{S_WQ}, {nB*64}")
    for i in range(nB):
        a(f"""
        s_add_u32 s{S_TMP}, s{S_TMP3}, {(p0+i)*64}
        v_add_u32 v{T}, s{S_TMP}, v{V_LANE}          ; q
        v_mul_u32_u24 v{T+1}, {magic}, v{T}
        v_lshrrev_b32 v{T+1}, 16, v{T+1}             ; k
        v_mul_u32_u24 v{T+2}, {CH}, v{T+1}
        v_sub_u32 v{T+2}, v{T}, v{T+2}               ; c'
        """)
        if qkv:
            a(f"""
            v_bfe_u32 v{T+3}, v{T+1}, 1, 1
            v_bfe_u32 v{T+4}, v{T+1}, 3, 1
            v_lshl_or_b32 v{T+3}, v{T+4}, 1, v{T+3}  ; f
            v_lshrrev_b32 v{T+4}, 1, v{T+2}
            v_xor_b32 v{T+4}, v{T+4}, v{T+3}         ; unit (0..11)
            v_cmp_le_u32 vcc, 6, v{T+4}
            s_nop 1
            v_cndmask_b32 v{T+5}, 0, 1, vcc          ; hh
            v_mul_u32_u24 v{T+6}, 6, v{T+5}
            v_sub_u32 v{T+6}, v{T+4}, v{T+6}         ; unit % 6
            v_lshrrev_b32 v{T+7}, 1, v{T+6}          ; part
            v_and_b32 v{T+6}, 1, v{T+6}              ; half32
            v_lshlrev_b32 v{T+7}, 11, v{T+7}         ; part*2048
            v_lshl_add_u32 v{T+7}, v{T+5}, 6, v{T+7} ; + hh*64
            v_lshl_add_u32 v{T+7}, v{T+6}, 5, v{T+7} ; + half32*32
            v_and_b32 v{T+6}, 1, v{T+2}
            v_lshl_add_u32 v{T+7}, v{T+6}, 4, v{T+7} ; + (c'&1)*16
            s_lshl_b32 s{S_TMP}, s{S_JT}, 7          ; 2 jt * 64
            v_add_u32 v{T+7}, s{S_TMP}, v{T+7}
            v_mul_u32_u24 v{T+1}, {WP}, v{T+1}
            v_add_u32 v{V_DB+i}, v{T+1}, v{T+7}
            """)
        else:
            a(f"""
            v_bfe_u32 v{T+3}, v{T+1}, 3, 1
            v_lshlrev_b32 v{T+3}, 1, v{T+3}
            v_xor_b32 v{T+2}, v{T+2}, v{T+3}         ; c = c' ^ (2*bit3(k))
            v_lshlrev_b32 v{T+2}, 4, v{T+2}
            s_mul_i32 s{S_TMP}, s{S_JT}, 448
            v_add_u32 v{T+2}, s{S_TMP}, v{T+2}
            v_mul_u32_u24 v{T+1}, {WP}, v{T+1}
            v_add_u32 v{V_DB+i}, v{T+1}, v{T+2}
            """)
    a(f"""
    s_lshl_b32 s{S_KA}, s{S_MT}, {8 if FUSE else 31}
    s_and_b32 s{S_KA}, s{S_KA}, 0x7ff
    s_mul_i32 s{S_KB}, s{S_MT}, {128*WP if FUSE else 0}
    s_mov_b32 s{S_KH}, s{S_KA}
    s_lshl_b32 s{S_MA}, s{S_WQ}, 12
    s_add_u32 s{S_MA}, s{S_MA}, {Go*2*G1_ASLOT}
    s_mul_i32 s{S_MB}, s{S_WQ}, {nB*1024}
    s_add_u32 s{S_MB}, s{S_MB}, {G1_BBASE + p0*1024}
    s_mov_b32 s{S_BSL}, 0
    """)
    def dma_A():
        for i in range(4):
            a(f"""
            s_add_u32 m0, s{S_MA}, {i*1024}
            s_add_u32 s{S_TMP}, s{S_KA}, {i*16384}
            buffer_load_dwordx4 v{V_DA}, {sr(SRD_XA,4)}, s{S_TMP} offen lds
            """)
        a(f"""
        s_add_u32 s{S_KA}, s{S_KA}, 128
        s_and_b32 s{S_KA}, s{S_KA}, 0x7ff
        s_xor_b32 s{S_MA}, s{S_MA}, {G1_ASLOT}
        """)
    def dma_B():
        for i in range(nB):
            a(f"""
            s_add_u32 m0, s{S_MB}, {i*1024}
            s_nop 0
            buffer_load_dwordx4 v{V_DB+i}, {sr(SRD_W,4)}, s{S_KB} offen lds
            """)
        if halo:
            a(f"""
            s_add_u32 m0, s{S_MB}, s{S_HD}
            s_nop 0
            buffer_load_dwordx4 v{V_DH}, {sr(SRD_X,4)}, s{S_KH} offen lds
            s_add_u32 s{S_KH}, s{S_KH}, 128
            s_and_b32 s{S_KH}, s{S_KH}, 0x7ff
            """)
        a(f"""
        s_add_u32 s{S_KB}, s{S_KB}, {64*WP}
        s_cmp_eq_u32 s{S_KB}, {1024*WP}
        s_cselect_b32 s{S_KB}, 0, s{S_KB}
        s_add_u32 s{S_BSL}, s{S_BSL}, 1
        s_add_u32 s{S_MB}, s{S_MB}, {G1_BSLOT}
        s_cmp_eq_u32 s{S_BSL}, 3
        s_cselect_b32 s{S_TMP}, {3*G1_BSLOT}, 0
        s_cselect_b32 s{S_BSL}, 0, s{S_BSL}
        s_sub_u32 s{S_MB}, s{S_MB}, s{S_TMP}
        """)
    if G == 0:
        dma_B(); dma_A(); dma_B()
        pro_wait = 4 + nBiss
    else:
        dma_A(); dma_B(); dma_A(); dma_B()
        pro_wait = 4 + nBiss
    WARM = "nowarmw" not in OPTS and not FUSE
    a(f"""
    s_and_b32 s{S_WOP+1}, s{S_WOP+1}, 0xffff
    s_and_b32 s{S_W2P+1}, s{S_W2P+1}, 0xffff
    s_lshl_b32 s{S_GW}, s2, 3
    s_add_u32 s{S_GW}, s{S_GW}, s{S_WAVE}
    s_lshl_b32 s{S_GW}, s{S_GW}, 10
    v_lshlrev_b32 v{V_L16}, 4, v{V_LANE}
    s_mov_b32 s{S_WPK}, {128*WP}
    s_mov_b32 s{S_KW}, 0
    """)
    if WARM:
        a(f"""
        v_min_u32 v{T}, {2*CH - 1}, v{V_LANE}
        v_cmp_le_u32 vcc, {CH}, v{T}
        s_lshl_b32 s{S_TMP}, s{S_MT}, 4
        s_lshl_b32 s{S_TMP2}, s{S_WAVE}, 1
        v_cndmask_b32 v{T+1}, 0, 1, vcc              ; row
        s_add_u32 s{S_TMP}, s{S_TMP}, s{S_TMP2}
        v_mul_u32_u24 v{T+2}, {CH}, v{T+1}
        v_sub_u32 v{T}, v{T}, v{T+2}                 ; chunk
        v_add_u32 v{T+1}, s{S_TMP}, v{T+1}
        v_mul_u32_u24 v{T+1}, {WP}, v{T+1}
        """)
        if qkv:
            a(f"""
            v_lshrrev_b32 v{T+2}, 3, v{T}
            v_lshl_add_u32 v{T+1}, v{T+2}, 11, v{T+1}
            v_and_b32 v{T}, 7, v{T}
            s_lshl_b32 s{S_TMP}, s{S_JT}, 7
            """)
        else:
            a(f"s_mul_i32 s{S_TMP}, s{S_JT}, 448")
        a(f"""
        v_lshl_add_u32 v{T+1}, v{T}, 4, v{T+1}
        v_add_u32 v{V_WV}, s{S_TMP}, v{T+1}
        s_mov_b32 s{S_KW}, {256*WP}
        buffer_load_dwordx4 {vr(V_WD)}, v{V_WV}, {sr(SRD_W,4)}, s{S_KW} offen
        s_mov_b32 s{S_KW}, {384*WP}
        buffer_load_dwordx4 {vr(V_WD)}, v{V_WV}, {sr(SRD_W,4)}, s{S_KW} offen
        s_mov_b32 s{S_KW}, {512*WP}
        s_mov_b32 s{SRD_WW}, s{SRD_W}
        s_mov_b32 s{SRD_WW+1}, s{SRD_W+1}
        s_mov_b32 s{SRD_WW+2}, s{SRD_W+2}
        s_mov_b32 s{SRD_WW+3}, 0x20000
        s_and_b32 s{S_WOP+1}, s{S_WOP+1}, 0xffff
        s_and_b32 s{S_W2P+1}, s{S_W2P+1}, 0xffff
        s_mov_b32 s{S_WPK}, {128*WP}
        s_lshl_b32 s{S_GW}, s2, 3
        s_add_u32 s{S_GW}, s{S_GW}, s{S_WAVE}
        s_lshl_b32 s{S_GW}, s{S_GW}, 10
        v_lshlrev_b32 v{V_L16}, 4, v{V_LANE}
        """)
        pro_wait += 2
        nIss += 1
    NCOL = 16 * 2 * NB
    VCS = 216 - 4 * len(cs_slots)
    if FUSE:
        a(f"""
        s_add_u32 s{SRD_ST}, s{S_WS}, {ST_OFF}
        s_addc_u32 s{SRD_ST+1}, s{S_WS+1}, 0
        s_and_b32 s{SRD_ST+1}, s{SRD_ST+1}, 0xffff
        s_mov_b32 s{SRD_ST+2}, {65536 + 262144}
        s_mov_b32 s{SRD_ST+3}, 0x20000
        s_mov_b32 s{SRD_DBG}, s{S_DBGP}
        s_and_b32 s{SRD_DBG+1}, s{S_DBGP+1}, 0xffff
        s_mov_b32 s{SRD_DBG+2}, 256
        s_mov_b32 s{SRD_DBG+3}, 0x20000
        s_add_u32 s{S_NTI}, s{S_JT}, {16*typ}
        s_mov_b32 s{S_EV}, {(1<<2) | (1<<5) | (1<<12) | (1<<14) if G == 0 else (1<<2)}
        """)
        if G == 1:
            a(f"""
            s_lshl_b32 s{S_TMP}, s{S_MT}, 8
            s_lshl_b32 s{S_TMP2}, s{S_NTI}, 3
            s_add_u32 s{S_TMP}, s{S_TMP}, s{S_TMP2}
            s_lshl_b32 s{S_TMP2}, s{S_WQ}, 1
            s_add_u32 s{S_KW}, s{S_TMP}, s{S_TMP2}
            s_lshl_b32 s{S_TMP}, s{S_KW}, 11
            """)
            for i in range(4):
                a(f"buffer_load_dwordx4 {vr(V_XF+4*i)}, v{V_L16}, {sr(SRD_X,4)}, s{S_TMP} offen offset:{1024*i}")
            pro_wait += 4
    if qkv:
        if G == 0:
            a(f"""
            s_mul_i32 s{S_TMP}, s{S_NW}, 6
            s_lshl_b32 s{S_TMP2}, s{S_MW}, 1
            s_add_u32 s{S_BLK+0}, s{S_TMP}, s{S_TMP2}
            s_add_u32 s{S_BLK+0}, s{S_BLK+0}, 2
            s_add_u32 s{S_BLK+1}, s{S_BLK+0}, 1
            s_mov_b32 s{S_BLK+2}, s{S_TMP}
            s_add_u32 s{S_BLK+3}, s{S_TMP}, 1
            s_sub_u32 s{S_BLK+4}, s{S_TMP}, s{S_TMP2}
            s_add_u32 s{S_BLK+4}, s{S_BLK+4}, 4
            s_add_u32 s{S_BLK+5}, s{S_BLK+4}, 1
            """)
        else:
            a(f"s_mul_i32 s{S_TMP}, s{S_NW}, 6")
            for s in range(6):
                a(f"s_add_u32 s{S_BLK+s}, s{S_TMP}, {s}")
    else:
        a(f"s_lshl_b32 s{S_TMP2}, s{S_NW}, 3")
        for ps in range(3):
            a(f"""
            s_add_u32 s{S_TMP}, s{S_MW}, {(ps + 2*G) % 3}
            s_cmp_ge_u32 s{S_TMP}, 3
            s_cselect_b32 s{S_TMP3}, 3, 0
            s_sub_u32 s{S_TMP}, s{S_TMP}, s{S_TMP3}
            s_lshl_b32 s{S_TMP}, s{S_TMP}, 1
            s_add_u32 s{S_BLK+2*ps}, s{S_TMP}, s{S_TMP2}
            s_add_u32 s{S_BLK+2*ps+1}, s{S_BLK+2*ps}, 1
            """)
        a(f"s_add_u32 s{S_BLK+6}, s{S_NW}, 6")
    a(f"""
    v_and_b32 v{T}, 7, v{V_TT}
    v_xor_b32 v{T}, v{V_GG}, v{T}                    ; g ^ (t&7)
    v_lshlrev_b32 v{T}, 4, v{T}
    v_lshl_add_u32 v{T}, v{V_TT}, 7, v{T}
    s_lshl_b32 s{S_TMP}, s{S_MW}, 13
    s_add_u32 s{S_TMP}, s{S_TMP}, {G*2*G1_ASLOT}
    s_lshl_b32 s{S_TMP2}, s{S_NW}, 12
    s_add_u32 s{S_TMP3}, s{S_TMP}, s{S_TMP2}
    v_add_u32 v{V_RA+0}, s{S_TMP3}, v{T}
    v_xor_b32 v{V_RA+1}, 64, v{V_RA+0}
    s_xor_b32 s{S_TMP2}, s{S_TMP2}, 4096
    s_add_u32 s{S_TMP3}, s{S_TMP}, s{S_TMP2}         ; sp=1
    v_add_u32 v{V_RA+2}, s{S_TMP3}, v{T}
    v_xor_b32 v{V_RA+3}, 64, v{V_RA+2}
    """)
    if halo:
        a(f"""
        v_add_u32 v{V_RH+0}, {G1_BBASE + G1_HALO}, v{T}
        v_xor_b32 v{V_RH+1}, 64, v{V_RH+0}
        """)
    a(f"""
    v_lshrrev_b32 v{T}, 2, v{V_TT}                   ; r
    v_lshl_add_u32 v{T+1}, v{V_GG}, 3, v{T}          ; 8g + r
    v_mul_u32_u24 v{T+1}, {PB}, v{T+1}
    v_and_b32 v{T+2}, 3, v{V_LANE}
    v_lshl_add_u32 v{T+1}, v{T+2}, 3, v{T+1}         ; + c*8
    v_add_u32 v{T+1}, {G1_BBASE}, v{T+1}
    v_and_b32 v{T+2}, 1, v{V_GG}                     ; g&1
    """)
    if qkv:
        a(f"""
        v_lshrrev_b32 v{T+3}, 1, v{T}                ; bit1(r)
        v_lshl_or_b32 v{T+2}, v{T+2}, 1, v{T+3}      ; f
        """)
    for s in range(NB):
        a(f"""
        v_xor_b32 v{T+3}, s{S_BLK+s}, v{T+2}
        v_lshl_add_u32 v{V_RB+s}, v{T+3}, 5, v{T+1}
        """)
    nacc = (NB * 4) * 4
    for r in range(V_ACC, V_ACC + nacc):
        a(f"v_mov_b32 v{r}, 0")
    if halo:
        for r in range(V_HACC, V_HACC + 8):
            a(f"v_mov_b32 v{r}, 0")
    if FUSE:
        for r in range(4 * len(cs_slots)):
            a(f"v_mov_b32 v{VCS+r}, 0")
        for r in range(4):
            a(f"v_mov_b32 v{V_ONES+r}, 0x3f803f80")
    a(f"""
    s_mov_b32 s{S_BSC}, {G1_BSLOT}
    s_mov_b32 s{S_J}, 0
    s_mov_b32 s{S_RSL}, 0
    s_waitcnt vmcnt({pro_wait})
    s_barrier
    """)
    stamp_now(a, 33)
    if G == 1:
        if FUSE:
            a("s_waitcnt vmcnt(0)")
            row_stats(a, V_XF, V_WF, V_WF + 16, V_WF + 20, V_WF + 21)
            row_stats(a, V_XF + 8, V_WF, V_WF + 18, V_WF + 20, V_WF + 21)
            a(f"""
            v_lshlrev_b32 v{V_WF+20}, 24, v{V_LANE}
            s_lshl_b32 s{S_TMP}, s{S_KW}, 3
            buffer_store_dwordx4 {vr(V_WF+16)}, v{V_WF+20}, {sr(SRD_ST,4)}, s{S_TMP} offen sc0 sc1
            """)
        a("s_barrier")
    if STAMP: a(f"s_mov_b32 s{S_SB}, 0")

    def rd_x(i):
        sp, e = i >> 1, i & 1
        for kk in range(2):
            a(f"ds_read_b128 {vr(xf(i,kk))}, v{V_RA+sp*2+kk} offset:{e*2048}")
    def rd_w(s):
        for kk in range(2):
            for h in range(2):
                a(f"ds_read_b64_tr_b16 {vr(wf(s,kk)+2*h,2)}, v{V_RB+s} offset:{(32*kk+4*h)*PB}")
    def dma_list():
        L = []
        for i in range(4):
            L.append(f"""
            s_add_u32 m0, s{S_MAE}, {i*1024}
            s_add_u32 s{S_TMP}, s{S_KA}, {i*16384}
            buffer_load_dwordx4 v{V_DA}, {sr(SRD_XA,4)}, s{S_TMP} offen lds
            """)
        for i in range(nB):
            L.append(f"""
            s_add_u32 m0, s{S_MBE}, {i*1024}
            s_nop 0
            buffer_load_dwordx4 v{V_DB+i}, {sr(SRD_W,4)}, s{S_KB} offen lds
            """)
        if halo:
            L.append(f"""
            s_add_u32 m0, s{S_MBE}, s{S_HD}
            s_nop 0
            buffer_load_dwordx4 v{V_DH}, {sr(SRD_X,4)}, s{S_KH} offen lds
            """)
        if WARM:
            L.append(f"buffer_load_dwordx4 {vr(V_WD)}, v{V_WV}, {sr(SRD_WW,4)}, s{S_KW} offen")
        return L
    a(f"""
    s_mov_b32 s{S_MAE}, s{S_MA}
    s_mov_b32 s{S_MBE}, s{S_MB}
    """)
    reads = []
    for i in range(4):
        sp, e = i >> 1, i & 1
        for kk in range(2):
            reads.append((kk, f"ds_read_b128 {vr(xf(i,kk))}, v{V_RA+sp*2+kk} offset:{e*2048}"))
    if halo:
        for kk in range(2):
            reads.append((kk, f"ds_read_b128 {vr(hf(kk))}, v{V_RH+kk}"))
    for s_ in range(NB):
        for kk in range(2):
            for h in range(2):
                reads.append((kk, f"ds_read_b64_tr_b16 {vr(wf(s_,kk)+2*h,2)}, v{V_RB+s_} offset:{(32*kk+4*h)*PB}"))
    reads = [r for k_, r in reads if k_ == 0] + [r for k_, r in reads if k_ == 1]

    bk = Collect()
    bk(f"""
    s_add_u32 s{S_KA}, s{S_KA}, 128
    s_and_b32 s{S_KA}, s{S_KA}, 0x7ff
    s_xor_b32 s{S_MA}, s{S_MA}, {G1_ASLOT}
    s_cmp_ge_u32 s{S_J}, {14 if G == 0 else 13}
    s_cselect_b32 s{SRD_XA+2}, 0, s{SRD_XA+2}
    s_cselect_b32 s{S_MAE}, {LDS_DUMP}, s{S_MA}
    s_add_u32 s{S_KH}, s{S_KH}, 128
    s_and_b32 s{S_KH}, s{S_KH}, 0x7ff
    s_add_u32 s{S_KW}, s{S_KW}, s{S_WPK}
    s_add_u32 s{S_KB}, s{S_KB}, {64*WP}
    s_cmp_eq_u32 s{S_KB}, {1024*WP}
    s_cselect_b32 s{S_KB}, 0, s{S_KB}
    s_add_u32 s{S_BSL}, s{S_BSL}, 1
    s_add_u32 s{S_MB}, s{S_MB}, {G1_BSLOT}
    s_cmp_eq_u32 s{S_BSL}, 3
    s_cselect_b32 s{S_TMP}, {3*G1_BSLOT}, 0
    s_cselect_b32 s{S_BSL}, 0, s{S_BSL}
    s_sub_u32 s{S_MB}, s{S_MB}, s{S_TMP}
    s_cmp_ge_u32 s{S_J}, 13
    s_cselect_b32 s{S_MBE}, {LDS_DUMP}, s{S_MB}
    s_cselect_b32 s{SRD_W+2}, 0, s{SRD_W+2}
    s_cselect_b32 s{SRD_X+2}, 0, s{SRD_X+2}
    s_add_u32 s{S_RSL}, s{S_RSL}, 1
    s_cmp_eq_u32 s{S_RSL}, 3
    s_cselect_b32 s{S_BD}, {(-2*G1_BSLOT) & 0xffffffff}, s{S_BSC}
    s_cselect_b32 s{S_RSL}, 0, s{S_RSL}
    """)
    for r in range(4):
        bk(f"v_xor_b32 v{V_RA+r}, {G1_ASLOT}, v{V_RA+r}")
    for s_ in range(NB):
        bk(f"v_add_u32 v{V_RB+s_}, s{S_BD}, v{V_RB+s_}")
    if halo:
        for kk in range(2):
            bk(f"v_add_u32 v{V_RH+kk}, s{S_BD}, v{V_RH+kk}")
    BKL = "bkL" in OPTS
    a.raw(".p2align 6")
    a.label(P + "_loop")
    if STAMP: a(f"s_memtime {sr(S_SA)}")
    dl = dma_list()
    step = max(3, len(reads) // len(dl))
    order = "rdfirst" if "rdfirst" in OPTS else "mix"
    if order == "rdfirst":
        for r in reads: a(r)
        for d in dl: a(d)
    else:
        di = 0
        for n_, r in enumerate(reads):
            a(r)
            if (n_ % step) == 1 and di < len(dl):
                a(dl[di]); di += 1
        while di < len(dl):
            a(dl[di]); di += 1
    if BKL:
        for l_ in bk.L: a(l_)
    if STAMP: a(f"s_memtime {sr(100)}")
    if FUSE:
        a(f"""
        s_bitcmp1_b32 s{S_EV}, s{S_J}
        s_cbranch_scc1 {P}_event
        """)
    a(f"s_waitcnt vmcnt({0 if 'strictwait' in OPTS else nIss}) lgkmcnt(0)")
    a.label(P + "_afterwait")
    if STAMP:
        a(f"""
        s_lshl_b32 s{S_SI}, s{S_J}, 1
        s_mov_b32 m0, s{S_SI}
        s_nop 3
        v_writelane_b32 v{V_STAMP}, s{S_SA}, m0
        s_add_u32 s{S_SI}, s{S_SI}, 63
        s_and_b32 m0, s{S_SI}, 63
        s_nop 3
        v_writelane_b32 v{V_STAMP}, s{S_SB}, m0
        s_memtime {sr(S_SC)}
        s_cmp_eq_u32 s{S_J}, 8
        s_cbranch_scc0 {P}_nost
        s_waitcnt lgkmcnt(0)
        v_writelane_b32 v{V_STAMP}, s{S_SA}, 40
        v_writelane_b32 v{V_STAMP}, s100, 41
        v_writelane_b32 v{V_STAMP}, s{S_SC}, 42
        """)
        a.label(P + "_nost")
    a("s_barrier")
    if STAMP: a(f"s_memtime {sr(S_SB)}")
    a("s_setprio 1")
    mf = []
    for kk in range(2):
        for s_ in range(NB):
            for i in range(4):
                mf.append(f"v_mfma_f32_16x16x32_bf16 {vr(acc(s_,i))}, {vr(wf(s_,kk))}, {vr(xf(i,kk))}, {vr(acc(s_,i))}")
        if halo:
            for s_ in range(2):
                mf.append(f"v_mfma_f32_16x16x32_bf16 {vr(V_HACC+4*s_)}, {vr(wf(s_,kk))}, {vr(hf(kk))}, {vr(V_HACC+4*s_)}")
    interleave(a, mf, [] if BKL else bk.L, start=2, per=1)
    if FUSE:
        a(f"""
        s_cmp_lt_u32 s{S_J}, 2
        s_cbranch_scc0 {P}_nocs
        """)
        for kk in range(2):
            for ci, s_ in enumerate(cs_slots):
                a(f"v_mfma_f32_16x16x32_bf16 {vr(VCS+4*ci)}, {vr(wf(s_,kk))}, {vr(V_ONES)}, {vr(VCS+4*ci)}")
        a.label(P + "_nocs")
    a(f"""
    s_setprio 0
    s_add_u32 s{S_J}, s{S_J}, 1
    s_cmp_lt_u32 s{S_J}, 16
    """)
    if G == 0:
        a(f"""
        s_barrier
        s_cbranch_scc1 {P}_loop
        s_branch {P}_post
        """)
    else:
        a(f"""
        s_cbranch_scc0 {P}_post
        s_barrier
        s_branch {P}_loop
        """)
    if FUSE:
        a.label(P + "_event")
        if G == 0:
            a(f"""
            s_cmp_eq_u32 s{S_J}, 2
            s_cbranch_scc0 {P}_ev5
            """)
        a(f"""
        v_lshlrev_b32 v{T}, 24, v{V_TT}
        v_lshl_add_u32 v{T}, v{V_GG}, 4, v{T}
        s_lshl_b32 s{S_TMP2}, s{S_NTI}, 3
        s_add_u32 s{S_TMP2}, s{S_TMP2}, s{S_MT}
        s_lshl_b32 s{S_TMP2}, s{S_TMP2}, 10
        s_add_u32 s{S_TMP2}, s{S_TMP2}, 65536
        """)
        for ci, s_ in enumerate(cs_slots):
            a(f"""
            s_lshl_b32 s{S_TMP}, s{S_BLK+s_}, 6
            s_add_u32 s{S_TMP}, s{S_TMP}, s{S_TMP2}
            buffer_store_dwordx4 {vr(VCS+4*ci)}, v{T}, {sr(SRD_ST,4)}, s{S_TMP} offen sc0 sc1
            """)
        a(f"""
        s_waitcnt vmcnt({nIss + len(cs_slots)}) lgkmcnt(0)
        s_branch {P}_afterwait
        """)
        if G == 0:
            a.label(P + "_ev5")
            a(f"""
            s_cmp_eq_u32 s{S_J}, 14
            s_cbranch_scc1 {P}_ev14
            s_sub_u32 s{S_TMP}, s{S_MT}, 1
            s_max_i32 s{S_TMP}, s{S_TMP}, 0
            s_lshl_b32 s{S_TMP}, s{S_TMP}, 2
            s_lshl_b32 s{S_TMP2}, s{S_NTI}, 2
            s_add_u32 s{S_TMP2}, s{S_TMP2}, 32
            s_lshl_b32 s{S_TMP3}, s{S_MT}, 2
            v_mov_b32 v{T}, 0x1000
            v_writelane_b32 v{T}, s{S_TMP3}, 0
            v_writelane_b32 v{T}, s{S_TMP2}, 1
            s_cmp_lg_u32 s{S_WAVE}, 0
            s_cselect_b32 s{S_TMP2}, 0x1000, 0
            s_cmp_eq_u32 s{S_J}, 5
            s_cbranch_scc0 {P}_ev12
            v_mov_b32 v{T+1}, 1
            buffer_atomic_add v{T+1}, v{T}, {sr(SRD_DBG,4)}, s{S_TMP2} offen sc1
            s_waitcnt vmcnt({nIss + 1}) lgkmcnt(0)
            s_branch {P}_afterwait
            """)
            a.label(P + "_ev12")
            a(f"""
            v_writelane_b32 v{T}, s{S_TMP}, 2
            s_nop 1
            buffer_load_dword v{V_CHK}, v{T}, {sr(SRD_DBG,4)}, s{S_TMP2} offen sc0 sc1
            s_waitcnt vmcnt({nIss + 1}) lgkmcnt(0)
            s_branch {P}_afterwait
            """)
            a.label(P + "_ev14")
            a(f"""
            s_cmp_eq_u32 s{S_WQ}, 0
            s_cbranch_scc0 {P}_ev14b
            s_lshl_b32 s{S_TMP}, s{S_MT}, 11
            s_sub_u32 s{S_TMP}, s{S_TMP}, 128
            v_add_u32 v{T}, s{S_TMP}, v{V_L16}
            v_max_i32 v{T}, 0, v{T}
            s_add_u32 s{S_TMP}, s{S_TMP}, 1024
            v_add_u32 v{T+1}, s{S_TMP}, v{V_L16}
            s_mov_b32 m0, {G1_STAT}
            s_nop 0
            buffer_load_dwordx4 v{T}, {sr(SRD_ST,4)}, 0 offen sc0 sc1 lds
            s_mov_b32 m0, {G1_STAT + 1024}
            s_nop 0
            buffer_load_dwordx4 v{T+1}, {sr(SRD_ST,4)}, 0 offen sc0 sc1 lds
            buffer_load_dwordx4 v{T+1}, {sr(SRD_ST,4)}, 0 offen offset:1024 sc0 sc1 lds
            s_waitcnt vmcnt({nIss + 3}) lgkmcnt(0)
            s_branch {P}_afterwait
            """)
            a.label(P + "_ev14b")
            a(f"""
            s_mul_i32 s{S_TMP}, s{S_WQ}, 3072
            s_sub_u32 s{S_TMP}, s{S_TMP}, 3072
            s_add_u32 m0, s{S_TMP}, {G1_CSP}
            s_lshl_b32 s{S_TMP2}, s{S_NTI}, 13
            s_add_u32 s{S_TMP2}, s{S_TMP2}, s{S_TMP}
            s_add_u32 s{S_TMP2}, s{S_TMP2}, 65536
            buffer_load_dwordx4 v{V_L16}, {sr(SRD_ST,4)}, s{S_TMP2} offen sc0 sc1 lds
            buffer_load_dwordx4 v{V_L16}, {sr(SRD_ST,4)}, s{S_TMP2} offen offset:1024 sc0 sc1 lds
            s_cmp_eq_u32 s{S_WQ}, 3
            s_cselect_b32 s{S_TMP}, {LDS_DUMP}, m0
            s_mov_b32 m0, s{S_TMP}
            s_nop 0
            buffer_load_dwordx4 v{V_L16}, {sr(SRD_ST,4)}, s{S_TMP2} offen offset:2048 sc0 sc1 lds
            s_waitcnt vmcnt({nIss + 3}) lgkmcnt(0)
            s_branch {P}_afterwait
            """)
    a.label(P + "_post")
    if STAMP:
        a(f"""
        s_waitcnt lgkmcnt(0)
        v_writelane_b32 v{V_STAMP}, s{S_SB}, 31
        """)
    stamp_now(a, 34)
    if FUSE:
        if G == 0:
            a(f"""
            v_mov_b32 v{T}, 0
            v_writelane_b32 v{T}, 32, 0
            v_writelane_b32 v{T}, 8, 1
            v_writelane_b32 v{T}, 32, 2
            s_nop 1
            v_cmp_ne_u32 vcc, v{T}, v{V_CHK}
            s_nop 3
            s_and_b32 s{S_TMP}, vcc_lo, 7
            """)
            if "forceslow" in OPTS: a(f"s_mov_b32 s{S_TMP}, 1")
            a(f"""
            v_mov_b32 v{T}, {G1_VERD}
            v_mov_b32 v{T+1}, s{S_TMP}
            s_cmp_eq_u32 s{S_WAVE}, 0
            s_cbranch_scc0 {P}_red
            ds_write_b32 v{T}, v{T+1}
            """)
        a.label(P + "_red")
        if G == 0:
            a(f"""
            s_lshl_b32 s{S_TMP}, s{S_WQ}, 8
            v_lshl_add_u32 v{T}, v{V_LANE}, 2, s{S_TMP}  ; thread * 4
            v_add_u32 v{T+1}, {G1_CSP}, v{T}
            """)
            for m in range(8):
                a(f"ds_read_b32 v{V_XF+m}, v{T+1} offset:{1024*m}")
            a(f"""
            v_min_u32 v{T}, {4*NCOL - 4}, v{T}
            v_add_u32 v{T}, {G1_CS}, v{T}
            v_cmp_gt_u32 vcc, {4*NCOL + G1_CSP}, v{T+1}
            s_waitcnt lgkmcnt(0)
            """)
            for m in range(1, 8):
                a(f"v_add_f32 v{V_XF}, v{V_XF}, v{V_XF+m}")
            a(f"""
            s_and_saveexec_b64 {sr(S_TMP2)}, vcc
            ds_write_b32 v{T}, v{V_XF}
            s_mov_b64 exec, -1
            s_waitcnt lgkmcnt(0)
            """)
        a(f"""
        s_barrier
        v_mov_b32 v{T}, {G1_VERD}
        ds_read_b32 v{T+1}, v{T}
        s_waitcnt lgkmcnt(0)
        v_readfirstlane_b32 s{S_TMP}, v{T+1}
        s_nop 3
        s_cmp_eq_u32 s{S_TMP}, 0
        s_cbranch_scc1 {P}_fast
        s_barrier
        s_mov_b32 s{SRD_X+2}, {2048*2048}
        s_mov_b32 s{SRD_W+2}, {1024*WP}
        s_mov_b32 s{S_J}, s{S_WAVE}
        """)
        a.label(P + "_slow1")
        a(f"""
        s_lshl_b32 s{S_TMP}, s{S_MT}, 8
        s_add_u32 s{S_TMP}, s{S_TMP}, s{S_J}
        s_sub_u32 s{S_TMP}, s{S_TMP}, 16
        s_max_i32 s{S_TMP}, s{S_TMP}, 0
        s_lshl_b32 s{S_TMP}, s{S_TMP}, 11
        buffer_load_dwordx4 {vr(V_XF)}, v{V_L16}, {sr(SRD_X,4)}, s{S_TMP} offen
        buffer_load_dwordx4 {vr(V_XF+4)}, v{V_L16}, {sr(SRD_X,4)}, s{S_TMP} offen offset:1024
        s_waitcnt vmcnt(0)
        """)
        row_stats(a, V_XF, V_WF, V_WF + 16, V_WF + 20, V_WF + 21)
        a(f"""
        s_lshl_b32 s{S_TMP}, s{S_J}, 3
        s_add_u32 s{S_TMP}, s{S_TMP}, {G1_STAT}
        v_mov_b32 v{T}, s{S_TMP}
        ds_write_b64 v{T}, {vr(V_WF+16,2)}
        s_add_u32 s{S_J}, s{S_J}, 8
        s_cmp_lt_u32 s{S_J}, 272
        s_cbranch_scc1 {P}_slow1
        v_min_u32 v{T}, {CH-1}, v{V_LANE}
        """)
        if qkv:
            a(f"""
            v_cmp_le_u32 vcc, 12, v{T}
            s_nop 1
            v_cndmask_b32 v{T+1}, 0, 1, vcc              ; hh
            v_mul_u32_u24 v{T+2}, 12, v{T+1}
            v_sub_u32 v{T+2}, v{T}, v{T+2}
            v_lshrrev_b32 v{T+3}, 2, v{T+2}              ; part
            v_and_b32 v{T+2}, 3, v{T+2}
            v_lshlrev_b32 v{T+3}, 11, v{T+3}
            v_lshl_add_u32 v{T+3}, v{T+1}, 6, v{T+3}
            v_lshl_add_u32 v{T+3}, v{T+2}, 4, v{T+3}
            s_lshl_b32 s{S_TMP}, s{S_JT}, 7
            v_add_u32 v{T+3}, s{S_TMP}, v{T+3}
            """)
        else:
            a(f"""
            s_mul_i32 s{S_TMP}, s{S_JT}, 448
            v_lshl_add_u32 v{T+3}, v{T}, 4, s{S_TMP}
            """)
        for r in range(8):
            a(f"v_mov_b32 v{V_WF+r}, 0")
        a(f"""
        s_mul_i32 s{S_TMP}, s{S_WAVE}, {128*WP}
        s_mov_b32 s{S_J}, 0
        """)
        a.label(P + "_slow2")
        a(f"""
        buffer_load_dwordx4 {vr(V_XF)}, v{T+3}, {sr(SRD_W,4)}, s{S_TMP} offen
        s_add_u32 s{S_TMP}, s{S_TMP}, {WP}
        s_add_u32 s{S_J}, s{S_J}, 1
        s_waitcnt vmcnt(0)
        """)
        for r in range(4):
            a(f"""
            v_lshlrev_b32 v{V_XF+4}, 16, v{V_XF+r}
            v_and_b32 v{V_XF+5}, 0xffff0000, v{V_XF+r}
            v_pk_add_f32 {vr(V_WF+2*r,2)}, {vr(V_WF+2*r,2)}, {vr(V_XF+4,2)}
            """)
        a(f"""
        s_cmp_lt_u32 s{S_J}, 128
        s_cbranch_scc1 {P}_slow2
        s_lshl_b32 s{S_TMP}, s{S_WAVE}, 10
        s_add_u32 s{S_TMP}, s{S_TMP}, {G1_CSP}
        v_lshl_add_u32 v{T}, v{T}, 5, s{S_TMP}
        ds_write_b128 v{T}, {vr(V_WF)}
        ds_write_b128 v{T}, {vr(V_WF+4)} offset:16
        v_mov_b32 v{T}, {G1_VERD}
        v_mov_b32 v{T+1}, 0
        ds_write_b32 v{T}, v{T+1}
        s_waitcnt lgkmcnt(0)
        s_barrier
        s_branch {P}_red
        """)
        a.label(P + "_fast")
    if "nowarm2" not in OPTS:
        a(f"""
        s_mov_b32 s{SRD_XA}, s{S_WOP}
        s_mov_b32 s{SRD_XA+1}, s{S_WOP+1}
        s_mov_b32 s{SRD_XA+2}, {1024*2048}
        s_mov_b32 s{SRD_W}, s{S_W2P}
        s_mov_b32 s{SRD_W+1}, s{S_W2P+1}
        s_mov_b32 s{SRD_W+2}, {3584*2048}
        s_lshl_b32 s{S_TMP}, s{S_GW}, 2
        buffer_load_dwordx4 {vr(V_HF)}, v{V_L16}, {sr(SRD_XA,4)}, s{S_GW} offen
        """)
        for i in range(4):
            a(f"buffer_load_dwordx4 {vr(V_HF)}, v{V_L16}, {sr(SRD_W,4)}, s{S_TMP} offen offset:{i*1024}")
    if "slabwarm" in OPTS:
        a(f"""
        s_add_u32 s{SRD_WW}, s{S_WS}, {64 << 20}
        s_addc_u32 s{SRD_WW+1}, s{S_WS+1}, 0
        s_and_b32 s{SRD_WW+1}, s{SRD_WW+1}, 0xffff
        s_mov_b32 s{SRD_WW+2}, {16 << 20}
        s_and_b32 s{S_TMP}, s2, 3
        s_lshr_b32 s{S_TMP2}, s{S_WAVE}, 1
        s_cmp_eq_u32 s{S_TMP}, s{S_TMP2}
        s_cselect_b32 s{SRD_WW+2}, 0, s{SRD_WW+2}
        s_lshl_b32 s{S_TMP}, s{S_GW}, 3
        s_add_u32 s{S_TMP2}, s{S_TMP}, 4096
        """)
        for i in range(8):
            a(f"buffer_load_dwordx4 {vr(V_WD)}, v{V_L16}, {sr(SRD_WW,4)}, s{S_TMP if i < 4 else S_TMP2} offen offset:{(i%4)*1024}")
    stamp_now(a, 35)
    for i in range(4):
        a(f"""
        s_lshl_b32 s{S_TMP}, s{S_MW}, 6
        s_lshl_b32 s{S_TMP2}, s{S_NW}, 5
        s_xor_b32 s{S_TMP2}, s{S_TMP2}, {16*i}
        s_add_u32 s{S_TMP}, s{S_TMP}, s{S_TMP2}
        s_add_u32 s{S_TB+i}, s{S_TMP}, {128*G}
        """)
    V_ST = V_XF; V_CSV = V_WF
    if FUSE:
        for i in range(4):
            a(f"""
            s_add_u32 s{S_TMP}, s{S_TB+i}, {16 + G1_STAT//8}
            v_add_u32 v{T+4}, s{S_TMP}, v{V_TT}
            v_lshlrev_b32 v{T+4}, 3, v{T+4}
            ds_read_b64 {vr(V_ST+2*i,2)}, v{T+4}
            """)
        if halo:
            a(f"""
            v_lshlrev_b32 v{T+4}, 3, v{V_TT}
            v_add_u32 v{T+4}, {G1_STAT}, v{T+4}
            ds_read_b64 {vr(V_ST+8,2)}, v{T+4}
            """)
        for s_ in range(NB):
            a(f"""
            s_lshl_b32 s{S_TMP}, s{S_BLK+s_}, 6
            s_add_u32 s{S_TMP}, s{S_TMP}, {G1_CS}
            v_lshl_add_u32 v{T+4}, v{V_GG}, 4, s{S_TMP}
            ds_read_b128 {vr(V_CSV+4*s_)}, v{T+4}
            """)
        a("s_waitcnt lgkmcnt(0)")
    def fixup(ab, s, st, o, relu):
        c = V_CSV + 4 * s
        if FUSE:
            a(f"""
            v_pk_fma_f32 {vr(ab,2)}, {vr(c,2)}, {vr(st,2)}, {vr(ab,2)} op_sel_hi:[1,0,1] neg_lo:[0,1,0] neg_hi:[0,1,0]
            v_pk_fma_f32 {vr(ab+2,2)}, {vr(c+2,2)}, {vr(st,2)}, {vr(ab+2,2)} op_sel_hi:[1,0,1] neg_lo:[0,1,0] neg_hi:[0,1,0]
            v_pk_mul_f32 {vr(ab,2)}, {vr(ab,2)}, {vr(st,2)} op_sel:[0,1] op_sel_hi:[1,1]
            v_pk_mul_f32 {vr(ab+2,2)}, {vr(ab+2,2)}, {vr(st,2)} op_sel:[0,1] op_sel_hi:[1,1]
            """)
        a(f"""
        v_cvt_pk_bf16_f32 v{o}, v{ab}, v{ab+1}
        v_cvt_pk_bf16_f32 v{o+1}, v{ab+2}, v{ab+3}
        """)
        if relu:
            a(f"""
            v_pk_max_i16 v{o}, v{o}, 0
            v_pk_max_i16 v{o+1}, v{o+1}, 0
            """)
    V_SIG = T + 8
    a(f"""
    v_and_b32 v{T}, 1, v{V_GG}
    v_lshrrev_b32 v{T+1}, 1, v{V_GG}
    v_lshl_or_b32 v{V_SIG}, v{T}, 1, v{T+1}
    """)
    if not qkv:
        V_PA = T + 9; V_SA = T + 10
        a(f"""
        v_lshl_add_u32 v{V_PA}, v{V_SIG}, 4, v{V_TT}
        v_lshlrev_b32 v{V_PA}, 4, v{V_PA}            ; (sigma*16 + t)*16
        s_lshl_b32 s{S_TMP}, s{S_NW}, 1
        v_add_u32 v{T+1}, s{S_TMP}, v{T+1}
        v_lshl_add_u32 v{V_SA}, v{T+1}, 4, v{V_TT}
        v_lshlrev_b32 v{V_SA}, 4, v{V_SA}
        v_lshl_add_u32 v{V_SA}, v{T}, 3, v{V_SA}
        """)
        for i in range(4):
            a(f"""
            s_lshr_b32 s{S_TMP}, s{S_TB+i}, 4
            s_lshl_b32 s{S_TMP2}, s{S_MT}, 4
            s_add_u32 s{S_TMP}, s{S_TMP}, s{S_TMP2}
            s_mul_i32 s{S_TB+i}, s{S_TMP}, {MBLK_PITCH}
            """)
        a(f"""
        s_mul_i32 s{S_TMP2}, s{S_JT}, 7
        s_add_u32 s{S_TMP2}, s{S_TMP2}, 32
        """)
        for ps in range(4):
            a(f"""
            s_lshr_b32 s{S_TMP}, s{S_BLK+2*ps}, 1
            s_add_u32 s{S_TMP}, s{S_TMP}, s{S_TMP2}
            s_lshl_b32 s{S_PO+ps}, s{S_TMP}, 10
            """)
        ob = [V_XF + 16, V_XF + 20, V_XF + 24, V_XF + 28]
        n = 0
        for i in range(4):
            st = V_ST + 2 * i
            for ps in range(3):
                o = ob[n % 4]; n += 1
                fixup(acc(2*ps, i), 2*ps, st, o, True)
                fixup(acc(2*ps+1, i), 2*ps+1, st, o+2, True)
                a(f"""
                s_add_u32 s{S_TMP}, s{S_TB+i}, s{S_PO+ps}
                s_nop 0
                v_permlane16_swap_b32 v{o}, v{o+2}
                v_permlane16_swap_b32 v{o+1}, v{o+3}
                s_nop 1
                buffer_store_dwordx4 {vr(o)}, v{V_PA}, {sr(SRD_O,4)}, s{S_TMP} offen {STH}
                """)
            o = ob[n % 4]; n += 1
            fixup(acc(6, i), 6, st, o, True)
            a(f"""
            s_add_u32 s{S_TMP}, s{S_TB+i}, s{S_PO+3}
            s_nop 1
            buffer_store_dwordx2 {vr(o,2)}, v{V_SA}, {sr(SRD_O,4)}, s{S_TMP} offen {STH}
            """)
        stamp_now(a, 36); stamp_now(a, 51, True)
        stamp_dump(a, S_WS, S_WAVE, 32 << 20)
        a("s_endpgm")
        return
    V_WA = T + 9
    a(f"""
    v_mul_u32_u24 v{V_WA}, {AT_PITCH}, v{V_TT}
    v_lshl_add_u32 v{V_WA}, v{V_GG}, 3, v{V_WA}      ; t*P + g*8
    """)
    ob = [V_XF + 16, V_XF + 18, V_XF + 20, V_XF + 22, V_XF + 24, V_XF + 26, V_XF + 28, V_XF + 30]
    n = 0
    for i in range(4):
        a(f"""
        s_add_u32 s{S_TMP}, s{S_TB+i}, 16
        s_mul_i32 s{S_TMP3}, s{S_TMP}, {AT_PITCH}
        """)
        for s in range(6):
            o = ob[n % 8]; n += 1
            fixup(acc(s, i), s, V_ST + 2 * i, o, False)
            a(f"""
            s_lshl_b32 s{S_TMP}, s{S_BLK+s}, 5
            s_add_u32 s{S_TMP}, s{S_TMP}, s{S_TMP3}
            v_add_u32 v{T}, s{S_TMP}, v{V_WA}
            ds_write_b64 v{T}, {vr(o,2)}
            """)
            if "slowepi" in OPTS: a("s_waitcnt lgkmcnt(0)")
    if halo:
        for s in range(2):
            o = ob[n % 8]; n += 1
            fixup(V_HACC + 4 * s, s, V_ST + 8, o, False)
            a(f"""
            s_lshl_b32 s{S_TMP}, s{S_BLK+s}, 5
            v_add_u32 v{T}, s{S_TMP}, v{V_WA}
            ds_write_b64 v{T}, {vr(o,2)}
            """)
    a(f"""
    s_waitcnt lgkmcnt(0)
    s_barrier
    """)
    stamp_now(a, 36)
    a("s_branch g1_attn")

def g1_attn(a):
    T = V_T
    V_SIG = T + 8
    a.label("g1_attn")
    VQ = 0; VK = 1; VV = 3
    VE = 5; VO = 6
    R = 8
    a(f"""
    s_lshl_b32 s{S_TMP}, s{S_WAVE}, 5                ; 32 w
    v_lshlrev_b32 v{T}, 1, v{V_TT}                   ; 2n
    v_add_u32 v{T+1}, s{S_TMP}, v{T}                 ; 32w + 2n
    v_add_u32 v{T+2}, 16, v{T+1}
    v_mul_u32_u24 v{T+2}, {AT_PITCH}, v{T+2}
    v_lshl_add_u32 v{VQ}, v{V_GG}, 4, v{T+2}         ; + g*16
    v_add_u32 v{VK+1}, 64, v{VQ}
    v_add_u32 v{T+2}, -16, v{T+1}                    ; rho_k(kb=0)
    v_max_i32 v{T+2}, 0, v{T+2}
    v_mul_u32_u24 v{T+2}, {AT_PITCH}, v{T+2}
    v_lshl_add_u32 v{T+2}, v{V_GG}, 4, v{T+2}
    v_add_u32 v{VK}, 64, v{T+2}
    v_lshrrev_b32 v{T}, 2, v{V_TT}
    v_lshl_add_u32 v{T}, v{V_GG}, 2, v{T}            ; a
    v_lshlrev_b32 v{T}, 1, v{T}
    v_add_u32 v{T}, s{S_TMP}, v{T}                   ; 32w + 2a
    v_and_b32 v{T+3}, 3, v{V_LANE}
    v_lshlrev_b32 v{T+3}, 3, v{T+3}
    v_add_u32 v{T+3}, 128, v{T+3}                    ; v part + c*8
    v_add_u32 v{T+2}, 16, v{T}
    v_mul_u32_u24 v{T+2}, {AT_PITCH}, v{T+2}
    v_add_u32 v{VV+1}, v{T+2}, v{T+3}
    v_add_u32 v{T+2}, -16, v{T}
    v_max_i32 v{T+2}, 0, v{T+2}
    v_mul_u32_u24 v{T+2}, {AT_PITCH}, v{T+2}
    v_add_u32 v{VV}, v{T+2}, v{T+3}
    v_lshlrev_b32 v{T}, 2, v{V_GG}
    v_sub_u32 v{VE}, v{V_TT}, v{T}
    """)
    for kb in range(2):
        for i in range(4):
            a(f"""
            v_add_u32 v{T}, {(16*(1-kb) - i)}, v{VE}
            v_cmp_ge_u32 {sr(S_MASK + 2*(4*kb+i))}, 7, v{T}
            """)
    a(f"""
    s_or_b32 s{S_TMP}, s{S_MT}, s{S_WAVE}
    s_cmp_eq_u32 s{S_TMP}, 0
    s_cbranch_scc0 g1_attn_m
    """)
    for i in range(4):
        a(f"s_mov_b64 {sr(S_MASK + 2*i)}, 0")
    a.label("g1_attn_m")
    a(f"""
    v_and_b32 v{T}, 7, v{V_TT}
    v_lshlrev_b32 v{T}, 1, v{T}
    v_lshl_add_u32 v{T}, v{V_SIG}, 4, v{T}
    v_lshlrev_b32 v{T}, 4, v{T}
    v_lshrrev_b32 v{T+1}, 3, v{V_TT}
    s_mov_b32 s{S_TMP}, {MBLK_PITCH}
    v_mul_lo_u32 v{T+1}, v{T+1}, s{S_TMP}
    v_add_u32 v{VO}, v{T}, v{T+1}
    s_lshl_b32 s{S_TMP}, s{S_MT}, 4
    s_lshl_b32 s{S_TMP2}, s{S_WAVE}, 1
    s_add_u32 s{S_TMP}, s{S_TMP}, s{S_TMP2}
    s_mul_i32 s{S_TMP}, s{S_TMP}, {MBLK_PITCH}
    s_lshl_b32 s{S_TMP2}, s{S_JT}, 11
    s_add_u32 s{S_TMP3}, s{S_TMP}, s{S_TMP2}
    v_mov_b32 v{T+10}, 0xff800000                    ; -inf
    v_mov_b32 v{T+4}, 0x3e3504f3
    v_mov_b32 v{T+5}, 0x3e3504f3
    v_mov_b32 v{T+6}, 0x3fb8aa3b
    v_mov_b32 v{T+7}, 0x3fb8aa3b
    """)
    NEG = T + 10; CSC = T + 4; CL2 = T + 6
    units = [(hh, p) for hh in range(2) for p in range(2)]
    UR = 32
    for u, (hh, p) in enumerate(units):
        b = R + u * UR
        off = p * AT_PITCH + hh * 192
        a(f"""
        ds_read_b128 {vr(b)}, v{VQ} offset:{off}
        ds_read_b128 {vr(b+4)}, v{VK} offset:{off}
        ds_read_b128 {vr(b+8)}, v{VK+1} offset:{off}
        """)
        for db in range(2):
            for kb in range(2):
                a(f"ds_read_b64_tr_b16 {vr(b+12+4*db+2*kb,2)}, v{VV+kb} offset:{off+32*db}")
    a("s_waitcnt lgkmcnt(0)")
    for u in range(4):
        b = R + u * UR
        a(f"""
        v_mfma_f32_16x16x32_bf16 {vr(b+20)}, {vr(b+4)}, {vr(b)}, 0
        v_mfma_f32_16x16x32_bf16 {vr(b+24)}, {vr(b+8)}, {vr(b)}, 0
        """)
    a("s_nop 7")
    for u, (hh, p) in enumerate(units):
        b = R + u * UR
        z = b + 20
        t0 = b + 28; t1 = b + 29
        for i in range(0, 8, 2):
            a(f"""
            v_cvt_pk_bf16_f32 v{t0}, v{z+i}, v{z+i+1}
            v_lshlrev_b32 v{z+i}, 16, v{t0}
            v_and_b32 v{z+i+1}, 0xffff0000, v{t0}
            v_pk_mul_f32 {vr(z+i,2)}, {vr(z+i,2)}, {vr(CSC,2)}
            v_cvt_pk_bf16_f32 v{t0}, v{z+i}, v{z+i+1}
            v_lshlrev_b32 v{z+i}, 16, v{t0}
            v_and_b32 v{z+i+1}, 0xffff0000, v{t0}
            v_cndmask_b32 v{z+i}, v{NEG}, v{z+i}, {sr(S_MASK+2*i)}
            v_cndmask_b32 v{z+i+1}, v{NEG}, v{z+i+1}, {sr(S_MASK+2*i+2)}
            """)
        a(f"""
        v_max3_f32 v{t0}, v{z}, v{z+1}, v{z+2}
        v_max3_f32 v{t0}, v{t0}, v{z+3}, v{z+4}
        v_max3_f32 v{t0}, v{t0}, v{z+5}, v{z+6}
        v_max_f32 v{t0}, v{t0}, v{z+7}
        """)
        xlane_max(a, t0, t1)
        for i in range(0, 8, 2):
            a(f"""
            v_pk_add_f32 {vr(z+i,2)}, {vr(z+i,2)}, {vr(t0,2)} op_sel_hi:[1,0] neg_lo:[0,1] neg_hi:[0,1]
            v_pk_mul_f32 {vr(z+i,2)}, {vr(z+i,2)}, {vr(CL2,2)}
            """)
        for i in range(8):
            a(f"v_exp_f32 v{z+i}, v{z+i}")
        a(f"""
        s_nop 0
        v_pk_add_f32 {vr(t0,2)}, {vr(z,2)}, {vr(z+2,2)}
        v_pk_add_f32 {vr(t0+2,2)}, {vr(z+4,2)}, {vr(z+6,2)}
        v_pk_add_f32 {vr(t0,2)}, {vr(t0,2)}, {vr(t0+2,2)}
        v_add_f32 v{t0}, v{t0}, v{t1}
        """)
        xlane_sum(a, t0, t1)
        a(f"""
        v_rcp_f32 v{t0}, v{t0}
        s_nop 0
        """)
        for i in range(0, 8, 2):
            a(f"v_pk_mul_f32 {vr(z+i,2)}, {vr(z+i,2)}, {vr(t0,2)} op_sel_hi:[1,0]")
        for i in range(4):
            a(f"v_cvt_pk_bf16_f32 v{b+i}, v{z+2*i}, v{z+2*i+1}")
        a(f"""
        s_nop 1
        v_mfma_f32_16x16x32_bf16 {vr(b+4)}, {vr(b+12)}, {vr(b)}, 0
        v_mfma_f32_16x16x32_bf16 {vr(b+8)}, {vr(b+16)}, {vr(b)}, 0
        """)
    a("s_nop 7")
    for u, (hh, p) in enumerate(units):
        b = R + u * UR
        o = b + 20
        a(f"""
        v_cvt_pk_bf16_f32 v{o}, v{b+4}, v{b+5}
        v_cvt_pk_bf16_f32 v{o+1}, v{b+6}, v{b+7}
        v_cvt_pk_bf16_f32 v{o+2}, v{b+8}, v{b+9}
        v_cvt_pk_bf16_f32 v{o+3}, v{b+10}, v{b+11}
        s_nop 1
        v_permlane16_swap_b32 v{o}, v{o+2}
        v_permlane16_swap_b32 v{o+1}, v{o+3}
        s_nop 1
        buffer_store_dwordx4 {vr(o)}, v{VO}, {sr(SRD_O,4)}, s{S_TMP3} offen offset:{p*16 + hh*1024} {STF}
        """)
    stamp_now(a, 37); stamp_now(a, 51, True)
    stamp_dump(a, S_WS, S_WAVE, 32 << 20)
    a("s_endpgm")

def gen_g1(a):
    MAP4 = f"""
    s_and_b32 s{S_MT}, s{S_TMP}, 1
    s_lshl_b32 s{S_MT}, s{S_MT}, 2
    s_and_b32 s{S_TMP3}, s{S_TMP2}, 3
    s_add_u32 s{S_MT}, s{S_MT}, s{S_TMP3}     ; mt
    s_lshr_b32 s{S_TMP2}, s{S_TMP2}, 2        ; i8
    s_lshr_b32 s{S_TMP}, s{S_TMP}, 1          ; ng
    s_lshl_b32 s{S_JT}, s{S_TMP}, 2
    s_and_b32 s{S_TMP3}, s{S_TMP2}, 3
    s_add_u32 s{S_JT}, s{S_JT}, s{S_TMP3}     ; jt
    s_lshr_b32 s{S_TMP2}, s{S_TMP2}, 2        ; type
"""
    MAP8 = f"""
    s_and_b32 s{S_MT}, s{S_TMP2}, 7           ; mt
    s_lshr_b32 s{S_TMP2}, s{S_TMP2}, 3        ; i4
    s_lshl_b32 s{S_JT}, s{S_TMP}, 1
    s_and_b32 s{S_TMP3}, s{S_TMP2}, 1
    s_add_u32 s{S_JT}, s{S_JT}, s{S_TMP3}     ; jt
    s_lshr_b32 s{S_TMP2}, s{S_TMP2}, 1        ; type
"""
    a.raw("""
.globl g1_kernel
.p2align 8
.type g1_kernel,@function
g1_kernel:""")
    a(f"""
    s_cmp_ge_u32 s2, 256
    s_cbranch_scc1 g1_exit
    s_load_dwordx4 s[{S_X}:{S_X+3}], s[0:1], 0     ; x, wqkv
    s_load_dwordx2 s[{S_W1}:{S_W1+1}], s[0:1], 32
    s_load_dwordx2 s[{S_WS}:{S_WS+1}], s[0:1], 64
    s_load_dwordx2 s[{S_WOP}:{S_WOP+1}], s[0:1], 16
    s_load_dwordx2 s[{S_DBGP}:{S_DBGP+1}], s[0:1], 56
    s_load_dwordx2 s[{S_W2P}:{S_W2P+1}], s[0:1], 40
    v_and_b32 v{V_LANE}, 63, v0
    v_lshrrev_b32 v{V_T}, 6, v0
    v_and_b32 v{V_TT}, 15, v0
    v_readfirstlane_b32 s{S_WAVE}, v{V_T}
    v_bfe_u32 v{V_GG}, v0, 4, 2
    s_nop 2
    s_cmp_lg_u32 s{S_WAVE}, 7
    s_cbranch_scc1 g1_nopf
    """)
    if "nocodepf" not in OPTS:
        code_prefetch(a, V_T + 2, V_LANE, S_PC1, "g1_kernel", "g1_end", 24576, 255)
    a.label("g1_nopf")
    a(f"""
    s_and_b32 s{S_TMP}, s2, 7                 ; xcd
    s_lshr_b32 s{S_TMP2}, s2, 3               ; idx
    """)
    a(MAP8 if "map8" in OPTS else MAP4)
    a(f"""
    s_and_b32 s{S_WQ}, s{S_WAVE}, 3
    s_and_b32 s{S_NW}, s{S_WAVE}, 1
    s_bfe_u32 s{S_MW}, s{S_WAVE}, 0x10001
    s_lshr_b32 s{S_TMP3}, s{S_WAVE}, 2        ; G
    s_lshl_b32 s80, s2, 3
    s_add_u32 s80, s80, s{S_WAVE}
    v_lshlrev_b32 v{V_L16}, 4, v{V_LANE}
    s_waitcnt lgkmcnt(0)
    """)
    if FUSE and "bulk" in OPTS:
        a(f"""
        s_mov_b32 s64, s{S_W}
        s_and_b32 s65, s{S_W+1}, 0xffff
        s_mov_b32 s66, {1024*6144}
        s_mov_b32 s67, 0x20000
        s_mov_b32 s72, s{S_W1}
        s_and_b32 s73, s{S_W1+1}, 0xffff
        s_mov_b32 s74, {1024*7168}
        s_mov_b32 s75, 0x20000
        s_mul_i32 s81, s80, 3072
        s_lshl_b32 s80, s80, 12
        """)
        for i in range(3):
            a(f"buffer_load_dwordx4 {vr(V_HF)}, v{V_L16}, s[64:67], s81 offen offset:{1024*i}")
        for i in range(4):
            a(f"buffer_load_dwordx4 {vr(V_HF)}, v{V_L16}, s[72:75], s80 offen offset:{1024*i}")
    a(f"""
    s_add_u32 s{SRD_X}, s{S_X if FUSE else S_WS}, {0 if FUSE else XN_OFF}
    s_addc_u32 s{SRD_X+1}, s{(S_X if FUSE else S_WS)+1}, 0
    s_and_b32 s{SRD_X+1}, s{SRD_X+1}, 0xffff
    s_mov_b32 s{SRD_X+2}, {2048*2048}
    s_mov_b32 s{SRD_X+3}, 0x20000
    s_mov_b32 s{SRD_XA}, s{SRD_X}
    s_mov_b32 s{SRD_XA+1}, s{SRD_X+1}
    s_mov_b32 s{SRD_XA+2}, {2048*2048}
    s_mov_b32 s{SRD_XA+3}, 0x20000
    s_mov_b32 s{SRD_O}, s{S_WS}
    s_and_b32 s{SRD_O+1}, s{S_WS+1}, 0xffff
    s_mov_b32 s{SRD_O+2}, {A2_BYTES}
    s_mov_b32 s{SRD_O+3}, 0x20000
    s_lshl_b32 s{S_TMP2}, s{S_TMP2}, 1
    s_add_u32 s{S_TMP2}, s{S_TMP2}, s{S_TMP3}
    """)
    if FUSE:
        a(f"""
        s_cmp_lg_u32 s2, 255
        s_cbranch_scc1 g1_noz
        s_add_u32 s64, s{S_WS}, {30 << 20}
        s_addc_u32 s65, s{S_WS+1}, 0
        s_and_b32 s65, s65, 0xffff
        s_mov_b32 s66, 8192
        s_mov_b32 s67, 0x20000
        v_lshlrev_b32 v{V_T}, 4, v0
        v_mov_b32 v4, 0
        v_mov_b32 v5, 0
        v_mov_b32 v6, 0
        v_mov_b32 v7, 0
        buffer_store_dwordx4 v[4:7], v{V_T}, s[64:67], 0 offen
        """)
        a.label("g1_noz")
    a(f"""
    s_cmp_eq_u32 s{S_TMP2}, 0
    s_cbranch_scc1 g1_00
    s_cmp_eq_u32 s{S_TMP2}, 1
    s_cbranch_scc1 g1_01
    s_cmp_eq_u32 s{S_TMP2}, 2
    s_cbranch_scc1 g1_10
    s_branch g1_11
    """)
    a.label("g1_exit")
    a("s_endpgm")
    for typ in range(2):
        for G in range(2):
            g1_path(a, typ, G)
    g1_attn(a)
    a.label("g1_end")
    a("s_endpgm")

def gen_k0(a):
    a.raw("""
.globl k0_kernel
.p2align 8
.type k0_kernel,@function
k0_kernel:""")
    DPP = "row_mask:0xf bank_mask:0xf"
    def reduce64(v, t):
        a(f"""
        s_nop 1
        v_add_f32_dpp v{t}, v{v}, v{v} quad_perm:[1,0,3,2] {DPP}
        s_nop 1
        v_add_f32_dpp v{v}, v{t}, v{t} quad_perm:[2,3,0,1] {DPP}
        s_nop 1
        v_add_f32_dpp v{t}, v{v}, v{v} row_half_mirror {DPP}
        s_nop 1
        v_add_f32_dpp v{v}, v{t}, v{t} row_mirror {DPP}
        """)
        xlane_sum(a, v, t)
    a(f"""
    s_cmp_ge_u32 s2, 256
    s_cbranch_scc1 k0_exit
    s_load_dwordx4 s[4:7], s[0:1], 0          ; x, wqkv
    s_load_dwordx2 s[8:9], s[0:1], 32         ; w1
    s_load_dwordx2 s[10:11], s[0:1], 64       ; ws
    v_lshrrev_b32 v1, 6, v0
    v_and_b32 v0, 63, v0
    v_lshlrev_b32 v2, 4, v0                   ; lane*16
    v_readfirstlane_b32 s3, v1
    s_lshl_b32 s28, s2, 3
    s_nop 2
    s_add_u32 s28, s28, s3
    s_lshl_b32 s29, s28, 11
    s_waitcnt lgkmcnt(0)
    s_mov_b32 s12, s4
    s_and_b32 s13, s5, 0xffff
    s_mov_b32 s14, {2048*2048}
    s_mov_b32 s15, 0x20000
    buffer_load_dwordx4 v[4:7], v2, s[12:15], s29 offen
    buffer_load_dwordx4 v[8:11], v2, s[12:15], s29 offen offset:1024
    s_mov_b32 s16, s6
    s_and_b32 s17, s7, 0xffff
    s_mov_b32 s18, {1024*6144}
    s_mov_b32 s19, 0x20000
    s_mov_b32 s20, s8
    s_and_b32 s21, s9, 0xffff
    s_mov_b32 s22, {1024*7168}
    s_mov_b32 s23, 0x20000
    s_add_u32 s24, s10, {XN_OFF}
    s_addc_u32 s25, s11, 0
    s_and_b32 s25, s25, 0xffff
    s_mov_b32 s26, {2048*2048}
    s_mov_b32 s27, 0x20000
    s_cmp_lg_u32 s2, 0
    s_cbranch_scc1 k0_noz
    s_add_u32 s32, s10, {30 << 20}
    s_addc_u32 s33, s11, 0
    s_and_b32 s33, s33, 0xffff
    s_mov_b32 s34, 8192
    s_mov_b32 s35, 0x20000
    s_lshl_b32 s30, s3, 10
    v_mov_b32 v60, 0
    v_mov_b32 v61, 0
    v_mov_b32 v62, 0
    v_mov_b32 v63, 0
    buffer_store_dwordx4 v[60:63], v2, s[32:35], s30 offen
    s_waitcnt vmcnt(0)
k0_noz:
    s_mul_i32 s30, s28, 3072
    s_lshl_b32 s31, s28, 12
    """)
    nw = 0
    if "nowarm1" not in OPTS:
        a(f"""
        s_mov_b32 s18, {256*6144}
        s_mov_b32 s22, {256*7168}
        s_lshl_b32 s30, s28, 10
        buffer_load_dwordx4 v[32:35], v2, s[16:19], s30 offen
        buffer_load_dwordx4 v[36:39], v2, s[20:23], s30 offen
        """)
        nw = 2
    a(f"s_waitcnt vmcnt({nw})")
    for r in range(8):
        a(f"""
        v_lshlrev_b32 v{12+2*r}, 16, v{4+r}
        v_and_b32 v{13+2*r}, 0xffff0000, v{4+r}
        """)
    a("v_add_f32 v28, v12, v13")
    for r in range(14, 28):
        a(f"v_add_f32 v28, v28, v{r}")
    reduce64(28, 29)
    a("v_mul_f32 v28, 0x3a800000, v28")
    a("""
    v_sub_f32 v30, v12, v28
    v_mul_f32 v31, v30, v30
    """)
    for r in range(13, 28):
        a(f"""
        v_sub_f32 v30, v{r}, v28
        v_fmac_f32 v31, v30, v30
        """)
    reduce64(31, 29)
    a(f"""
    v_mul_f32 v31, 0x3a800000, v31            ; var
    v_cvt_pk_bf16_f32 v29, v28, v31
    v_lshlrev_b32 v28, 16, v29                ; m_b
    v_and_b32 v31, 0xffff0000, v29            ; v_b
    v_add_f32 v31, 0x3727c5ac, v31
    v_cvt_pk_bf16_f32 v31, v31, v31
    v_and_b32 v31, 0xffff0000, v31
    v_sqrt_f32 v31, v31
    s_nop 0
    v_cvt_pk_bf16_f32 v31, v31, v31
    v_and_b32 v31, 0xffff0000, v31
    v_rcp_f32 v31, v31
    s_nop 0
    """)
    for r in range(8):
        a(f"""
        v_sub_f32 v{12+2*r}, v{12+2*r}, v28
        v_sub_f32 v{13+2*r}, v{13+2*r}, v28
        v_cvt_pk_bf16_f32 v29, v{12+2*r}, v{13+2*r}
        v_lshlrev_b32 v{12+2*r}, 16, v29
        v_and_b32 v{13+2*r}, 0xffff0000, v29
        v_mul_f32 v{12+2*r}, v{12+2*r}, v31
        v_mul_f32 v{13+2*r}, v{13+2*r}, v31
        v_cvt_pk_bf16_f32 v{4+r}, v{12+2*r}, v{13+2*r}
        """)
    a("""
    buffer_store_dwordx4 v[4:7], v2, s[24:27], s29 offen
    buffer_store_dwordx4 v[8:11], v2, s[24:27], s29 offen offset:1024
    """)
    a.label("k0_exit")
    a("s_endpgm")

G2_NB = 6
G2_LDS = G2_NB * 16384
def code_prefetch(a, vtmp, vlane, stmp, start_label, end_label, nbytes, vdst):
    a(f"""
    s_getpc_b64 {sr(stmp)}
    """)
    a.label(start_label + "_pc")
    a(f"""
    s_add_u32 s{stmp}, s{stmp}, {start_label}-{start_label}_pc
    s_addc_u32 s{stmp+1}, s{stmp+1}, -1
    v_lshlrev_b32 v{vtmp}, 7, v{vlane}
    """)
    for i in range((nbytes + 8191) // 8192):
        if i: a(f"v_add_u32 v{vtmp}, 0x2000, v{vtmp}")
        a(f"""
        v_min_u32 v{vtmp+1}, {end_label}-{start_label}-4, v{vtmp}
        global_load_dword v{vdst}, v{vtmp+1}, {sr(stmp)}
        """)

def gen_g2(a):
    NBUF = G2_NB; D = NBUF - 1
    NTB = "nt " if "g2ntB" in OPTS else ""
    SRD_A = 12; SRD_B = 16; SRD_XX = 20; SRD_OUT = 24
    S_WO = 4; S_W2 = 6; S_XP = 8; S_OUTP = 10; S_WSP = 28
    S_WV = 30; S_GK = 31; S_MW2 = 32; S_MT2 = 33; S_NT = 34; S_TRIP = 35
    S_KAA = 36; S_KBB = 37; S_MB0 = 38; S_T = 39; S_T2 = 40; S_T3 = 41; S_PC = 42; S_P = 44; S_KA0 = 45; S_WOL = 46; S_WOH = 47; S_SZ = 48; S_CNT = 49
    V_AB = 0
    V_W = V_AB + NBUF * 16
    V_AC = V_W + 64
    V_XR = V_AC + 32
    V_AA = V_XR + 8
    V_DBB = V_AA + 2
    V_RBB = V_DBB + 2
    T = V_RBB + 8
    VL = T + 14; VT = T + 15; VG = T + 16
    global G2_VGPRS
    G2_VGPRS = 256 if STAMP else VG + 2
    def ab(u, tb, kk): return V_AB + u * 16 + (tb * 2 + kk) * 4
    def w(par, s, kk): return V_W + par * 32 + (s * 2 + kk) * 4
    def ac(s, tb): return V_AC + (s * 2 + tb) * 4
    a.raw("""
.globl g2_kernel
.p2align 8
.type g2_kernel,@function
g2_kernel:""")
    a(f"""
    s_cmp_ge_u32 s2, 256
    s_cbranch_scc1 g2_exit
    s_load_dwordx2 s[{S_XP}:{S_XP+1}], s[0:1], 0
    s_load_dwordx2 s[{S_WO}:{S_WO+1}], s[0:1], 16
    s_load_dwordx2 s[{S_W2}:{S_W2+1}], s[0:1], 40
    s_load_dwordx2 s[{S_OUTP}:{S_OUTP+1}], s[0:1], 48
    s_load_dwordx2 s[{S_WSP}:{S_WSP+1}], s[0:1], 64
    v_and_b32 v{VL}, 63, v0
    v_lshrrev_b32 v{T}, 6, v0
    v_and_b32 v{VT}, 15, v0
    v_readfirstlane_b32 s{S_WV}, v{T}
    v_bfe_u32 v{VG}, v0, 4, 2
    """)
    if STAMP: a(f"v_mov_b32 v{V_STAMP}, 0")
    stamp_now(a, 32); stamp_now(a, 50, True)
    npf = 0
    if "nocodepf" not in OPTS:
        code_prefetch(a, T + 12, VL, S_PC, "g2_kernel", "g2_exit", 4096, VG + 1); npf = 1
    a(f"""
    s_and_b32 s{S_T}, s2, 7
    s_lshr_b32 s{S_T2}, s2, 3
    s_lshr_b32 s{S_MT2}, s{S_T}, 1
    s_lshl_b32 s{S_MT2}, s{S_MT2}, 2
    s_and_b32 s{S_T3}, s{S_T2}, 3
    s_add_u32 s{S_MT2}, s{S_MT2}, s{S_T3}     ; mt 0..15
    s_and_b32 s{S_NT}, s{S_T}, 1
    s_lshl_b32 s{S_NT}, s{S_NT}, 3
    s_lshr_b32 s{S_T2}, s{S_T2}, 2
    s_add_u32 s{S_NT}, s{S_NT}, s{S_T2}       ; nt 0..15
    s_lshr_b32 s{S_GK}, s{S_WV}, 2
    s_and_b32 s{S_MW2}, s{S_WV}, 3
    ; A voffsets
    s_lshl_b32 s{S_T}, s{S_MT2}, 3
    s_lshl_b32 s{S_T2}, s{S_MW2}, 1
    s_add_u32 s{S_T}, s{S_T}, s{S_T2}         ; mblk0
    s_mul_i32 s{S_T}, s{S_T}, {MBLK_PITCH}
    v_lshl_add_u32 v{V_AA}, v{VL}, 4, s{S_T}
    v_add_u32 v{V_AA+1}, {MBLK_PITCH}, v{V_AA}
    s_lshl_b32 s{S_KAA}, s{S_GK}, 11          ; K-step * 2048
    v_lshrrev_b32 v{T}, 3, v{VL}
    s_lshl_b32 s{S_T}, s{S_WV}, 4
    v_add_u32 v{T+1}, s{S_T}, v{T}            ; row (e=0)
    v_lshlrev_b32 v{T+1}, 11, v{T+1}
    s_lshl_b32 s{S_T}, s{S_NT}, 7
    v_add_u32 v{T+1}, s{S_T}, v{T+1}
    v_and_b32 v{T+2}, 1, v{VL}
    v_lshl_add_u32 v{T+1}, v{T+2}, 4, v{T+1}  ; + (c'&1)*16
    v_bfe_u32 v{T+2}, v{VL}, 1, 2             ; unit'
    v_bfe_u32 v{T+3}, v{VL}, 4, 1             ; bit1(l>>3)
    v_xor_b32 v{T+2}, v{T+2}, v{T+3}
    v_lshl_add_u32 v{V_DBB}, v{T+2}, 5, v{T+1}
    v_xor_b32 v{T+2}, 2, v{T+2}
    v_lshl_add_u32 v{V_DBB+1}, v{T+2}, 5, v{T+1}
    v_add_u32 v{V_DBB+1}, {8*2048}, v{V_DBB+1}
    s_lshl_b32 s{S_MB0}, s{S_WV}, 11
    s_mov_b32 s{S_KBB}, 0
    s_waitcnt lgkmcnt(0)
    s_mov_b32 s{SRD_A}, s{S_WSP}
    s_and_b32 s{SRD_A+1}, s{S_WSP+1}, 0xffff
    s_mov_b32 s{SRD_A+2}, {A2_BYTES}
    s_mov_b32 s{SRD_A+3}, 0x20000
    s_mov_b32 s{SRD_B}, s{S_WO}
    s_and_b32 s{SRD_B+1}, s{S_WO+1}, 0xffff
    s_mov_b32 s{SRD_B+2}, {1024*2048}
    s_mov_b32 s{SRD_B+3}, 0x20000
    """)
    def prefetch(u):
        for e in range(2):
            if "g2noB" in OPTS:
                a(f"buffer_load_dword v{T+12}, off, {sr(SRD_B,4)}, 0")
                continue
            a(f"""
            s_add_u32 m0, s{S_MB0}, {u*16384 + e*1024}
            s_nop 0
            buffer_load_dwordx4 v{V_DBB+e}, {sr(SRD_B,4)}, s{S_KBB} offen {NTB}lds
            """)
        for tb in range(2):
            for kk in range(2):
                if "g2noA" in OPTS:
                    a(f"buffer_load_dword v{T+12}, off, {sr(SRD_B,4)}, 0")
                    continue
                a(f"buffer_load_dwordx4 {vr(ab(u,tb,kk))}, v{V_AA+tb}, {sr(SRD_A,4)}, s{S_KAA} offen offset:{kk*1024}" + (" nt" if "g2ntA" in OPTS else ""))
        advance()
    def advance():
        a(f"""
        s_add_u32 s{S_P}, s{S_P}, 1
        s_cmp_eq_u32 s{S_P}, 36
        s_cselect_b32 s{S_P}, 0, s{S_P}
        s_add_u32 s{S_CNT}, s{S_CNT}, 1
        """)
        setpos()
    def setpos():
        a(f"""
        s_lshl_b32 s{S_KAA}, s{S_P}, 12
        s_add_u32 s{S_KAA}, s{S_KAA}, s{S_KA0}
        s_cmp_lt_u32 s{S_P}, 8
        s_cselect_b32 s{SRD_B}, s{S_WOL}, s{S_W2}
        s_cselect_b32 s{SRD_B+1}, s{S_WOH}, s{S_W2+1}
        s_cselect_b32 s{SRD_B+2}, {1024*2048}, s{S_SZ}
        s_cselect_b32 s{S_T}, 0, 8
        s_sub_u32 s{S_T}, s{S_P}, s{S_T}
        s_lshl_b32 s{S_KBB}, s{S_T}, 18
        s_cmp_ge_u32 s{S_CNT}, 36
        s_cselect_b32 s{SRD_B+2}, 0, s{SRD_B+2}
        s_cselect_b32 s{SRD_A+2}, 0, s{SRD_A+2}
        s_cselect_b32 s{S_MB0}, {G2_LDS}, s{S_MB0}
        """)
    rotmul = (1, 2)
    for o in OPTS:
        if o.startswith("rot="): rotmul = tuple(int(x) for x in o[4:].split(","))
    a(f"""
    s_and_b32 s{S_W2+1}, s{S_W2+1}, 0xffff
    s_mov_b32 s{S_WOL}, s{S_WO}
    s_and_b32 s{S_WOH}, s{S_WO+1}, 0xffff
    s_mov_b32 s{S_SZ}, {3584*2048}
    s_mov_b32 s{S_KA0}, s{S_KAA}
    s_mov_b32 s{S_CNT}, 0
    s_and_b32 s{S_T}, s{S_NT}, 7
    s_mul_i32 s{S_T}, s{S_T}, {rotmul[0]}
    s_and_b32 s{S_T2}, s{S_MT2}, 3
    s_mul_i32 s{S_T2}, s{S_T2}, {rotmul[1]}
    s_add_u32 s{S_P}, s{S_T}, s{S_T2}
    """)
    setpos()
    if "g2tlb" in OPTS:
        a(f"""
        s_lshr_b32 s{S_T}, s2, 3
        s_lshl_b32 s{S_T}, s{S_T}, 3
        s_add_u32 s{S_T}, s{S_T}, s{S_WV}          ; j
        s_lshl_b32 s{S_T2}, s{S_T}, 18             ; j*64 pages*4096
        v_lshl_add_u32 v{T+12}, v{VL}, 12, s{S_T2}
        s_cmp_lt_u32 s{S_T}, 18
        s_cbranch_scc0 g2_tlb1
        s_and_b32 s{S_T3}, s{S_MT2}, 12
        s_mul_i32 s{S_T3}, s{S_T3}, {8*MBLK_PITCH}
        buffer_load_dword v{T+13}, v{T+12}, {sr(SRD_A,4)}, s{S_T3} offen
        s_branch g2_tlb3
        """)
        a.label("g2_tlb1")
        a(f"""
        s_cmp_lt_u32 s{S_T}, 26
        s_cbranch_scc0 g2_tlb2
        v_subrev_u32 v{T+12}, {18<<18}, v{T+12}
        global_load_dword v{T+13}, v{T+12}, s[{S_WO}:{S_WO+1}]
        s_branch g2_tlb3
        """)
        a.label("g2_tlb2")
        a(f"""
        s_cmp_lt_u32 s{S_T}, 54
        s_cbranch_scc0 g2_tlb3
        v_subrev_u32 v{T+12}, {26<<18}, v{T+12}
        global_load_dword v{T+13}, v{T+12}, s[{S_W2}:{S_W2+1}]
        """)
        a.label("g2_tlb3")
    for u in range(D):
        prefetch(u)
    V_XA = T + 4; V_OA = T + 5
    a(f"""
    s_mov_b32 s{SRD_XX}, s{S_XP}
    s_and_b32 s{SRD_XX+1}, s{S_XP+1}, 0xffff
    s_mov_b32 s{SRD_XX+2}, {2048*2048}
    s_mov_b32 s{SRD_XX+3}, 0x20000
    s_mov_b32 s{SRD_OUT}, s{S_OUTP}
    s_and_b32 s{SRD_OUT+1}, s{S_OUTP+1}, 0xffff
    s_mov_b32 s{SRD_OUT+2}, {2048*2048}
    s_mov_b32 s{SRD_OUT+3}, 0x20000
    v_lshrrev_b32 v{T}, 2, v{VT}              ; r
    v_lshl_add_u32 v{T+1}, v{VG}, 3, v{T}
    v_lshlrev_b32 v{T+1}, 7, v{T+1}
    s_lshl_b32 s{S_T}, s{S_GK}, 13
    v_add_u32 v{T+1}, s{S_T}, v{T+1}
    v_and_b32 v{T+2}, 3, v{VL}
    v_lshl_add_u32 v{T+1}, v{T+2}, 3, v{T+1}
    v_and_b32 v{T+2}, 1, v{VG}
    v_lshrrev_b32 v{T+3}, 1, v{T}
    v_lshl_or_b32 v{T+2}, v{T+2}, 1, v{T+3}   ; f
    s_lshl_b32 s{S_T}, s{S_GK}, 1
    v_xor_b32 v{T+2}, s{S_T}, v{T+2}          ; f ^ 2Gk
    """)
    for s in range(4):
        a(f"""
        v_xor_b32 v{T+3}, {s}, v{T+2}
        v_lshl_add_u32 v{V_RBB+s}, v{T+3}, 5, v{T+1}
        v_add_u32 v{V_RBB+4+s}, 0xc000, v{V_RBB+s}
        """)
    a(f"""
    s_lshl_b32 s{S_T}, s{S_MT2}, 7
    s_lshl_b32 s{S_T2}, s{S_MW2}, 5
    s_add_u32 s{S_T}, s{S_T}, s{S_T2}
    v_add_u32 v{T}, s{S_T}, v{VT}
    v_lshlrev_b32 v{T}, 11, v{T}
    s_lshl_b32 s{S_T}, s{S_NT}, 7
    s_lshl_b32 s{S_T2}, s{S_GK}, 6
    s_add_u32 s{S_T}, s{S_T}, s{S_T2}
    v_add_u32 v{T}, s{S_T}, v{T}
    v_lshl_add_u32 v{V_XA}, v{VG}, 3, v{T}    ; + g*8
    v_and_b32 v{T+1}, 1, v{VG}
    v_lshrrev_b32 v{T+2}, 1, v{VG}
    v_lshl_or_b32 v{T+1}, v{T+1}, 1, v{T+2}   ; sigma
    v_lshl_add_u32 v{V_OA}, v{T+1}, 4, v{T}
    """)
    for r in range(V_AC, V_AC + 32):
        a(f"v_mov_b32 v{r}, 0")
    def reads(u, par):
        hi = 4 if u >= 3 else 0
        uo = (u - 3 if u >= 3 else u) * 16384
        for kk in range(2):
            for s in range(4):
                for h in range(2):
                    if "g2nocomp" in OPTS: continue
                    a(f"ds_read_b64_tr_b16 {vr(w(par,s,kk)+2*h,2)}, v{V_RBB+hi+s} offset:{uo + kk*4096 + h*512}")
    a(f"""
    s_mov_b32 s{S_TRIP}, 0
    s_waitcnt vmcnt({4 + 6*(D-1)})
    s_barrier
    """)
    reads(0, 0)
    stamp_now(a, 33)
    def body(u):
        par = u & 1
        a(f"""
        s_waitcnt vmcnt({4 + 6*(D-2)})
        s_barrier
        """)
        prefetch((u + D) % NBUF)
        a("s_waitcnt lgkmcnt(0)")
        reads((u + 1) % NBUF, par ^ 1)
        for kk in range(2):
            for s in range(4):
                for tb in range(2):
                    if "g2nocomp" in OPTS: continue
                    a(f"v_mfma_f32_16x16x32_bf16 {vr(ac(s,tb))}, {vr(w(par,s,kk))}, {vr(ab(u,tb,kk))}, {vr(ac(s,tb))}")
    a.raw(".p2align 6")
    a.label("g2_loop")
    for u in range(NBUF):
        body(u)
    a(f"""
    s_add_u32 s{S_TRIP}, s{S_TRIP}, 1
    s_cmp_lt_u32 s{S_TRIP}, {36 // NBUF}
    s_cbranch_scc1 g2_loop
    s_mov_b32 s{S_T}, {16*2048}
    """)
    stamp_now(a, 34)
    for tb in range(2):
        for e in range(2):
            so = "0" if tb == 0 else f"s{S_T}"
            a(f"buffer_load_dwordx2 {vr(V_XR+(tb*2+e)*2,2)}, v{V_XA}, {sr(SRD_XX,4)}, {so} offen offset:{e*32}")
    a(f"""
    s_waitcnt vmcnt(4) lgkmcnt(0)
    s_barrier
    s_lshl_b32 s{S_T}, s{S_WV}, 12
    v_lshl_add_u32 v{T}, v{VL}, 4, s{S_T}
    v_xor_b32 v{T+1}, 16384, v{T}
    """)
    for s in range(2):
        for tb in range(2):
            a(f"ds_write_b128 v{T}, {vr(ac(2+s,tb))} offset:{(s*2+tb)*1024}")
    a("""
    s_waitcnt lgkmcnt(0)
    s_barrier
    """)
    for s in range(2):
        for tb in range(2):
            a(f"ds_read_b128 {vr(V_W+(s*2+tb)*4)}, v{T+1} offset:{(s*2+tb)*1024}")
    a("s_waitcnt vmcnt(0) lgkmcnt(0)")
    for tb in range(2):
        o = V_AB + tb * 4
        for s in range(2):
            c = ac(s, tb); p = V_W + (s * 2 + tb) * 4; xr = V_XR + (tb * 2 + s) * 2
            a(f"""
            v_lshlrev_b32 v{T+8}, 16, v{xr}
            v_and_b32 v{T+9}, 0xffff0000, v{xr}
            v_lshlrev_b32 v{T+10}, 16, v{xr+1}
            v_and_b32 v{T+11}, 0xffff0000, v{xr+1}
            v_pk_add_f32 {vr(c,2)}, {vr(c,2)}, {vr(p,2)}
            v_pk_add_f32 {vr(c+2,2)}, {vr(c+2,2)}, {vr(p+2,2)}
            v_pk_add_f32 {vr(c,2)}, {vr(c,2)}, {vr(T+8,2)}
            v_pk_add_f32 {vr(c+2,2)}, {vr(c+2,2)}, {vr(T+10,2)}
            v_cvt_pk_bf16_f32 v{o+2*s}, v{c}, v{c+1}
            v_cvt_pk_bf16_f32 v{o+2*s+1}, v{c+2}, v{c+3}
            """)
        so = "0" if tb == 0 else f"s{S_T2}"
        a(f"""
        s_mov_b32 s{S_T2}, {16*2048}
        s_nop 0
        v_permlane16_swap_b32 v{o}, v{o+2}
        v_permlane16_swap_b32 v{o+1}, v{o+3}
        s_nop 1
        buffer_store_dwordx4 {vr(o)}, v{V_OA}, {sr(SRD_OUT,4)}, {so} offen
        """)
    stamp_now(a, 51, True)
    stamp_dump(a, S_WSP, S_WV, 40 << 20)
    a.label("g2_exit")
    a("s_endpgm")

C_ASLOT = 16384; C_NA = 3
C_BSLOT = 16384; C_NBS = 4
C_BBASE = 2 * C_NA * C_ASLOT
G2C_LDS = C_BBASE + C_NBS * C_BSLOT
SLAB_OFF = 64 << 20
FLAG_OFF = 30 << 20
SLAB_BYTES = 64 * 4 * 131072
NKS = 18
PUBF = "sc1" if "pubsc1" in OPTS else ("sc0 sc1 nt" if "pubnt" in OPTS else "sc0 sc1")
GETF = "sc1" if "pubsc1" in OPTS else "sc0 sc1"
def gen_g2c(a):
    XF = 64; WF = 96
    def acc(c, t): return (c * 4 + t) * 4
    def xf(t, kk): return XF + (t * 2 + kk) * 4
    def wf(c, kk): return WF + (c * 2 + kk) * 4
    V_RA = 128; V_RB = 129; V_DA = 133; V_DB = 134; VL = 135; VT = 136; VG = 137; T = 138
    VPF = 152; VH = 153; VHA = 154; VHL = 156
    S_XP = 4; S_WO = 6; S_W2 = 8; S_OUTP = 10; S_DBG = 28; S_WSP = 30
    SRD_A = 12; SRD_B = 16; SRD_S = 20; SRD_X = 24; SRD_O = 32; SRD_F = 36
    S_WV = 40; S_MW = 41; S_NW = 42; S_WQ = 43; S_MT = 44; S_NT = 45; S_KQ = 46; S_J = 47
    S_KA = 48; S_PA = 49; S_PB = 50; S_MA = 51; S_MB = 52; S_MAE = 53; S_MBE = 54; S_ASL = 55; S_BSL = 56
    S_RAS = 57; S_RBS = 58; S_T = 59; S_T2 = 60; S_T3 = 61; S_KB = 62; S_SZ2 = 63; S_CUR = 64; S_DONE = 65
    S_TILE = 66; S_G = 67; S_CNT = 68; S_ARR = 69; S_PC = 70; S_DA = 72; S_DB = 73; S_Q = 74; S_ASZ = 75; S_XCC = 76; S_FB = 77; S_LOC = 78
    MAPK = f"""
    s_and_b32 s{S_KQ}, s2, 3
    s_bfe_u32 s{S_T}, s2, 0x10002             ; M half
    s_lshr_b32 s{S_T2}, s2, 3                 ; idx
    s_and_b32 s{S_MT}, s{S_T2}, 3
    s_lshl_b32 s{S_T}, s{S_T}, 2
    s_add_u32 s{S_MT}, s{S_MT}, s{S_T}        ; mt 0..7
    s_lshr_b32 s{S_NT}, s{S_T2}, 2            ; nt 0..7
"""
    MAPL = f"""
    s_lshr_b32 s{S_T2}, s2, 3                 ; idx
    s_and_b32 s{S_KQ}, s{S_T2}, 3
    s_bfe_u32 s{S_T}, s2, 0x20001             ; xcd >> 1
    s_lshl_b32 s{S_MT}, s{S_T}, 1
    s_bfe_u32 s{S_T}, s{S_T2}, 0x10002
    s_add_u32 s{S_MT}, s{S_MT}, s{S_T}        ; mt 0..7
    s_and_b32 s{S_NT}, s2, 1
    s_lshl_b32 s{S_NT}, s{S_NT}, 2
    s_lshr_b32 s{S_T}, s{S_T2}, 3
    s_add_u32 s{S_NT}, s{S_NT}, s{S_T}        ; nt 0..7
"""
    XF_ = "" if "xloc" in OPTS else "sc0 sc1"
    a.raw("""
.globl g2_kernel
.p2align 8
.type g2_kernel,@function
g2_kernel:""")
    a(f"""
    s_cmp_ge_u32 s2, 256
    s_cbranch_scc1 g2_exit
    s_load_dwordx2 s[{S_XP}:{S_XP+1}], s[0:1], 0
    s_load_dwordx2 s[{S_WO}:{S_WO+1}], s[0:1], 16
    s_load_dwordx4 s[{S_W2}:{S_W2+3}], s[0:1], 40      ; w2, out
    s_load_dwordx4 s[{S_DBG}:{S_DBG+3}], s[0:1], 56
    v_and_b32 v{VL}, 63, v0
    v_lshrrev_b32 v{T}, 6, v0
    v_and_b32 v{VT}, 15, v0
    v_readfirstlane_b32 s{S_WV}, v{T}
    v_bfe_u32 v{VG}, v0, 4, 2
    """)
    if STAMP: a(f"v_mov_b32 v{V_STAMP}, 0")
    stamp_now(a, 32); stamp_now(a, 50, True)
    a(f"""
    s_nop 2
    s_cmp_lg_u32 s{S_WV}, 7
    s_cbranch_scc1 g2_nopf
    """)
    code_prefetch(a, T, VL, S_PC, "g2_kernel", "g2_exit", 8192, VPF)
    a.label("g2_nopf")
    a(f"""
    """)
    a(MAPL if "xloc" in OPTS else MAPK)
    a(f"""
    s_lshl_b32 s{S_TILE}, s{S_MT}, 3
    s_add_u32 s{S_TILE}, s{S_TILE}, s{S_NT}
    s_lshr_b32 s{S_G}, s{S_WV}, 2
    s_and_b32 s{S_WQ}, s{S_WV}, 3
    s_and_b32 s{S_NW}, s{S_WV}, 1
    s_bfe_u32 s{S_MW}, s{S_WV}, 0x10001
    s_lshr_b32 s{S_Q}, s{S_WV}, 1
    s_xor_b32 s{S_T}, s{S_G}, 1
    s_lshl_b32 s{S_T2}, s{S_T}, 3
    s_lshl_b32 s{S_T3}, s{S_MT}, 4
    s_add_u32 s{S_T2}, s{S_T2}, s{S_T3}
    s_lshl_b32 s{S_T3}, s{S_WQ}, 1
    s_add_u32 s{S_T2}, s{S_T2}, s{S_T3}
    s_mul_i32 s{S_T2}, s{S_T2}, {MBLK_PITCH}
    v_lshl_add_u32 v{V_DA}, v{VL}, 4, s{S_T2}
    s_mul_i32 s{S_DA}, s{S_T}, {C_NA*C_ASLOT}
    s_lshl_b32 s{S_T3}, s{S_WQ}, 12
    s_add_u32 s{S_DA}, s{S_DA}, s{S_T3}
    v_lshrrev_b32 v{T}, 4, v{VL}
    s_lshl_b32 s{S_T}, s{S_WV}, 3
    v_add_u32 v{T+1}, s{S_T}, v{T}
    v_lshlrev_b32 v{T+1}, 11, v{T+1}
    s_lshl_b32 s{S_T}, s{S_NT}, 8
    v_add_u32 v{T+1}, s{S_T}, v{T+1}
    v_and_b32 v{T+2}, 1, v{VL}
    v_lshl_add_u32 v{T+1}, v{T+2}, 4, v{T+1}
    v_bfe_u32 v{T+2}, v{VL}, 1, 3
    s_lshl_b32 s{S_T}, s{S_NW}, 2
    v_or_b32 v{T}, s{S_T}, v{T}
    v_xor_b32 v{T+2}, v{T+2}, v{T}
    v_lshl_add_u32 v{V_DB}, v{T+2}, 5, v{T+1}
    s_lshl_b32 s{S_DB}, s{S_WV}, 11
    s_add_u32 s{S_DB}, s{S_DB}, {C_BBASE}
    s_waitcnt lgkmcnt(0)
    """)
    stamp_now(a, 41)
    a(f"""
    s_mov_b32 s{SRD_A}, s{S_WSP}
    s_and_b32 s{SRD_A+1}, s{S_WSP+1}, 0xffff
    s_mov_b32 s{SRD_A+3}, 0x20000
    s_mov_b32 s{SRD_B+3}, 0x20000
    s_and_b32 s{S_WO+1}, s{S_WO+1}, 0xffff
    s_and_b32 s{S_W2+1}, s{S_W2+1}, 0xffff
    s_mov_b32 s{S_SZ2}, {3584*2048}
    s_mov_b32 s{S_ASZ}, {A2_BYTES}
    s_mov_b32 s{S_CUR}, s{S_KQ}
    s_lshl_b32 s{S_DONE}, s{S_KQ}, 3
    s_lshl_b32 s{S_DONE}, 1, s{S_DONE}
    s_mov_b32 s{S_ARR}, 0
    s_mov_b32 s{S_LOC}, 0
    s_add_u32 s{SRD_S}, s{S_WSP}, {SLAB_OFF}
    s_addc_u32 s{SRD_S+1}, s{S_WSP+1}, 0
    s_and_b32 s{SRD_S+1}, s{SRD_S+1}, 0xffff
    s_mov_b32 s{SRD_S+2}, {SLAB_BYTES}
    s_mov_b32 s{SRD_S+3}, 0x20000
    s_add_u32 s{SRD_F}, s{S_WSP}, {FLAG_OFF}
    s_addc_u32 s{SRD_F+1}, s{S_WSP+1}, 0
    s_and_b32 s{SRD_F+1}, s{SRD_F+1}, 0xffff
    s_mov_b32 s{SRD_F+2}, {64*128}
    s_mov_b32 s{SRD_F+3}, 0x20000
    s_lshl_b32 s{S_FB}, s{S_TILE}, 7
    s_lshl_b32 s{S_T}, s{S_TILE}, 2
    s_add_u32 s{S_T}, s{S_T}, s{S_KQ}
    s_lshl_b32 s{S_T}, s{S_T}, 3
    s_add_u32 s{S_T}, s{S_T}, s{S_WV}
    s_lshl_b32 s{S_FB+1}, s{S_T}, 13
    v_lshlrev_b32 v155, 4, v{VL}
    s_mov_b32 s{SRD_X}, s{S_XP}
    s_and_b32 s{SRD_X+1}, s{S_XP+1}, 0xffff
    s_mov_b32 s{SRD_X+2}, {2048*2048}
    s_mov_b32 s{SRD_X+3}, 0x20000
    s_mov_b32 s{SRD_O}, s{S_OUTP}
    s_and_b32 s{SRD_O+1}, s{S_OUTP+1}, 0xffff
    s_mov_b32 s{SRD_O+2}, {2048*2048}
    s_mov_b32 s{SRD_O+3}, 0x20000
    """)
    for r in range(64):
        a(f"v_mov_b32 v{r}, 0")
    def setA():
        a(f"""
        s_mul_i32 s{S_T}, s{S_CUR}, {NKS}
        s_add_u32 s{S_T}, s{S_T}, s{S_PA}
        s_lshl_b32 s{S_KA}, s{S_T}, 11
        s_cmp_ge_u32 s{S_PA}, {NKS}
        s_cselect_b32 s{SRD_A+2}, 0, s{S_ASZ}
        s_cselect_b32 s{S_MAE}, {LDS_DUMP}, s{S_MA}
        """)
    def setB():
        a(f"""
        s_mul_i32 s{S_T}, s{S_CUR}, {NKS}
        s_add_u32 s{S_T}, s{S_T}, s{S_PB}
        s_cmp_lt_u32 s{S_T}, 16
        s_cselect_b32 s{SRD_B}, s{S_WO}, s{S_W2}
        s_cselect_b32 s{SRD_B+1}, s{S_WO+1}, s{S_W2+1}
        s_cselect_b32 s{SRD_B+2}, {1024*2048}, s{S_SZ2}
        s_cselect_b32 s{S_T2}, 0, 16
        s_sub_u32 s{S_T}, s{S_T}, s{S_T2}
        s_lshl_b32 s{S_KB}, s{S_T}, 17
        s_cmp_ge_u32 s{S_PB}, {NKS}
        s_cselect_b32 s{SRD_B+2}, 0, s{SRD_B+2}
        s_cselect_b32 s{S_MBE}, {LDS_DUMP}, s{S_MB}
        """)
    def dmaA_list():
        L = []
        for e in range(2):
            L.append(f"""
            s_add_u32 m0, s{S_MAE}, {e*2048}
            s_add_u32 s{S_T3}, s{S_KA}, {e*MBLK_PITCH}
            buffer_load_dwordx4 v{V_DA}, {sr(SRD_A,4)}, s{S_T3} offen lds
            """)
            L.append(f"buffer_load_dwordx4 v{V_DA}, {sr(SRD_A,4)}, s{S_T3} offen offset:1024 lds")
        return L
    def dmaB_list():
        L = []
        for e in range(2):
            L.append(f"""
            s_add_u32 m0, s{S_MBE}, {e*1024}
            s_add_u32 s{S_T3}, s{S_KB}, {e*8192}
            buffer_load_dwordx4 v{V_DB}, {sr(SRD_B,4)}, s{S_T3} offen lds
            """)
        return L
    def advA():
        a(f"""
        s_add_u32 s{S_PA}, s{S_PA}, 1
        s_add_u32 s{S_ASL}, s{S_ASL}, 1
        s_add_u32 s{S_MA}, s{S_MA}, {C_ASLOT}
        s_cmp_eq_u32 s{S_ASL}, {C_NA}
        s_cselect_b32 s{S_ASL}, 0, s{S_ASL}
        s_cselect_b32 s{S_MA}, s{S_DA}, s{S_MA}
        """)
        setA()
    def advB():
        a(f"""
        s_add_u32 s{S_PB}, s{S_PB}, 1
        s_add_u32 s{S_BSL}, s{S_BSL}, 1
        s_add_u32 s{S_MB}, s{S_MB}, {C_BSLOT}
        s_cmp_eq_u32 s{S_BSL}, {C_NBS}
        s_cselect_b32 s{S_BSL}, 0, s{S_BSL}
        s_cselect_b32 s{S_MB}, s{S_DB}, s{S_MB}
        """)
        setB()
    def doA():
        for d in dmaA_list(): a(d)
        advA()
    def doB():
        for d in dmaB_list(): a(d)
        advB()
    a.label("g2_gemm")
    a(f"""
    s_mov_b32 s{S_PA}, 0
    s_mov_b32 s{S_PB}, 0
    s_mov_b32 s{S_ASL}, 0
    s_mov_b32 s{S_BSL}, 0
    s_mov_b32 s{S_MA}, s{S_DA}
    s_mov_b32 s{S_MB}, s{S_DB}
    """)
    setA(); setB()
    stamp_now(a, 42)
    a(f"""
    s_cmp_eq_u32 s{S_G}, 0
    s_cbranch_scc0 g2_pro1
    """)
    doB(); doA(); doB(); doA(); doB()
    a("s_branch g2_pro2")
    a.label("g2_pro1")
    doA(); doB(); doA(); doB(); doA(); doB()
    a.label("g2_pro2")
    stamp_now(a, 43)
    a(f"""
    s_mul_i32 s{S_T}, s{S_G}, {C_NA*C_ASLOT}
    s_lshl_b32 s{S_T2}, s{S_MW}, 13
    s_add_u32 s{S_T}, s{S_T}, s{S_T2}
    v_lshl_add_u32 v{V_RA}, v{VL}, 4, s{S_T}
    v_lshrrev_b32 v{T}, 2, v{VT}              ; r
    v_lshl_add_u32 v{T+1}, v{VG}, 3, v{T}
    v_lshlrev_b32 v{T+1}, 8, v{T+1}
    v_and_b32 v{T+2}, 3, v{VL}
    v_lshl_add_u32 v{T+1}, v{T+2}, 3, v{T+1}
    v_add_u32 v{T+1}, {C_BBASE}, v{T+1}
    v_and_b32 v{T+2}, 1, v{VG}
    v_lshl_or_b32 v{T+2}, v{T+2}, 2, v{T}     ; f = r | (g&1)<<2
    s_lshl_b32 s{S_T}, s{S_NW}, 2
    v_xor_b32 v{T+2}, s{S_T}, v{T+2}
    """)
    for c in range(4):
        a(f"""
        v_xor_b32 v{T+3}, {c}, v{T+2}
        v_lshl_add_u32 v{V_RB+c}, v{T+3}, 5, v{T+1}
        """)
    a(f"""
    s_mov_b32 s{S_J}, 0
    s_mov_b32 s{S_RAS}, 0
    s_mov_b32 s{S_RBS}, 0
    """)
    stamp_now(a, 44)
    a("s_waitcnt vmcnt(12)")
    stamp_now(a, 45)
    a("s_barrier")
    stamp_now(a, 33)
    a(f"""
    s_cmp_eq_u32 s{S_G}, 0
    s_cbranch_scc1 g2_loop
    s_barrier
    """)
    reads = []
    for kk in range(2):
        for t in range(4):
            reads.append(f"ds_read_b128 {vr(xf(t,kk))}, v{V_RA} offset:{(t*2+kk)*1024}")
        for c in range(4):
            for h in range(2):
                reads.append(f"ds_read_b64_tr_b16 {vr(wf(c,kk)+2*h,2)}, v{V_RB+c} offset:{(32*kk+4*h)*256}")
    a.raw(".p2align 6")
    a.label("g2_loop")
    if "pretouch" in OPTS:
        a(f"""
        s_sub_u32 s{S_T}, s{S_J}, 4
        s_cmp_lt_u32 s{S_T}, 8
        s_cbranch_scc0 g2_nopt
        s_lshl_b32 s{S_T}, s{S_T}, 10
        s_add_u32 s{S_T}, s{S_T}, s{S_FB+1}
        buffer_load_dwordx4 v[156:159], v155, {sr(SRD_S,4)}, s{S_T} offen
        """)
        a.label("g2_nopt")
    dl = dmaA_list() + dmaB_list()
    di = 0
    for n_, r in enumerate(reads):
        a(r)
        if n_ % 4 == 1 and di < len(dl):
            a(dl[di]); di += 1
    assert di == len(dl)
    a("""
    s_waitcnt vmcnt(12) lgkmcnt(0)
    s_barrier
    s_setprio 1
    """)
    real = a; a = bk = Collect()
    def _adv():
        pass
    bk(f"""
    s_add_u32 s{S_PA}, s{S_PA}, 1
    s_add_u32 s{S_ASL}, s{S_ASL}, 1
    s_add_u32 s{S_MA}, s{S_MA}, {C_ASLOT}
    s_cmp_eq_u32 s{S_ASL}, {C_NA}
    s_cselect_b32 s{S_ASL}, 0, s{S_ASL}
    s_cselect_b32 s{S_MA}, s{S_DA}, s{S_MA}
    s_add_u32 s{S_KA}, s{S_KA}, 2048
    s_cmp_ge_u32 s{S_PA}, {NKS}
    s_cselect_b32 s{SRD_A+2}, 0, s{S_ASZ}
    s_cselect_b32 s{S_MAE}, {LDS_DUMP}, s{S_MA}
    s_add_u32 s{S_PB}, s{S_PB}, 1
    s_add_u32 s{S_BSL}, s{S_BSL}, 1
    s_add_u32 s{S_MB}, s{S_MB}, {C_BSLOT}
    s_cmp_eq_u32 s{S_BSL}, {C_NBS}
    s_cselect_b32 s{S_BSL}, 0, s{S_BSL}
    s_cselect_b32 s{S_MB}, s{S_DB}, s{S_MB}
    s_add_u32 s{S_KB}, s{S_KB}, {1<<17}
    s_lshl_b32 s{S_T}, s{S_CUR}, 8
    s_add_u32 s{S_T}, s{S_T}, s{S_PB}
    s_cmp_eq_u32 s{S_T}, 16
    s_cselect_b32 s{SRD_B}, s{S_W2}, s{SRD_B}
    s_cselect_b32 s{SRD_B+1}, s{S_W2+1}, s{SRD_B+1}
    s_cselect_b32 s{SRD_B+2}, s{S_SZ2}, s{SRD_B+2}
    s_cselect_b32 s{S_KB}, 0, s{S_KB}
    s_cmp_ge_u32 s{S_PB}, {NKS}
    s_cselect_b32 s{SRD_B+2}, 0, s{SRD_B+2}
    s_cselect_b32 s{S_MBE}, {LDS_DUMP}, s{S_MB}
    s_add_u32 s{S_RAS}, s{S_RAS}, 1
    s_cmp_eq_u32 s{S_RAS}, {C_NA}
    s_cselect_b32 s{S_RAS}, 0, s{S_RAS}
    s_cselect_b32 s{S_T}, {C_NA*C_ASLOT}, 0
    s_sub_u32 s{S_T}, {C_ASLOT}, s{S_T}
    v_add_u32 v{V_RA}, s{S_T}, v{V_RA}
    s_add_u32 s{S_RBS}, s{S_RBS}, 1
    s_cmp_eq_u32 s{S_RBS}, {C_NBS}
    s_cselect_b32 s{S_RBS}, 0, s{S_RBS}
    s_cselect_b32 s{S_T}, {C_NBS*C_BSLOT}, 0
    s_sub_u32 s{S_T}, {C_BSLOT}, s{S_T}
    """)
    for c in range(4):
        bk(f"v_add_u32 v{V_RB+c}, s{S_T}, v{V_RB+c}")
    a = real
    mf = []
    for kk in range(2):
        for c in range(4):
            for t in range(4):
                mf.append(f"v_mfma_f32_16x16x32_bf16 {vr(acc(c,t))}, {vr(wf(c,kk))}, {vr(xf(t,kk))}, {vr(acc(c,t))}")
    interleave(a, mf, bk.L, start=1, per=2)
    a(f"""
    s_setprio 0
    s_add_u32 s{S_J}, s{S_J}, 1
    s_lshl_b32 s{S_T}, s{S_G}, 8
    s_add_u32 s{S_T}, s{S_T}, s{S_J}
    s_cmp_eq_u32 s{S_T}, {256 + NKS}
    s_cbranch_scc1 g2_post
    s_cmp_lt_u32 s{S_J}, {NKS}
    s_barrier
    s_cbranch_scc1 g2_loop
    """)
    a.label("g2_post")
    stamp_now(a, 34)
    V_XR = XF; V_XA = T + 1; V_OA = T + 2; PK = WF
    a(f"""
    v_lshlrev_b32 v{T}, 4, v{VL}
    s_cmp_eq_u32 s{S_Q}, s{S_KQ}
    s_cbranch_scc1 g2_own
    s_cmp_eq_u32 s{S_CUR}, s{S_KQ}
    s_cbranch_scc0 g2_pub_done
    s_lshl_b32 s{S_T}, s{S_TILE}, 2
    s_add_u32 s{S_T}, s{S_T}, s{S_KQ}
    s_lshl_b32 s{S_T}, s{S_T}, 3
    s_add_u32 s{S_T}, s{S_T}, s{S_WV}
    s_lshl_b32 s{S_T}, s{S_T}, 13
    s_add_u32 s{S_T2}, s{S_T}, 4096
    """)
    for bp in range(8):
        o = PK + 4 * bp
        for h in range(2):
            b = acc(bp >> 1, (bp & 1) * 2 + h)
            a(f"""
            v_cvt_pk_bf16_f32 v{o+2*h}, v{b}, v{b+1}
            v_cvt_pk_bf16_f32 v{o+2*h+1}, v{b+2}, v{b+3}
            """)
        a(f"buffer_store_dwordx4 {vr(o)}, v{T}, {sr(SRD_S,4)}, s{S_T if bp < 4 else S_T2} offen offset:{(bp%4)*1024} {XF_}")
    a("s_branch g2_pub_done")
    a.label("g2_own")
    a(f"""
    s_lshl_b32 s{S_T}, s{S_NW}, 14
    v_add_u32 v{T+3}, s{S_T}, v{T}
    """)
    for b in range(16):
        a(f"ds_write_b128 v{T+3}, {vr(4*b)} offset:{b*1024}")
    a.label("g2_pub_done")
    a(f"""
    s_lshl_b32 s{S_T}, s{S_MT}, 8
    s_lshl_b32 s{S_T2}, s{S_KQ}, 6
    s_add_u32 s{S_T}, s{S_T}, s{S_T2}
    s_lshl_b32 s{S_T2}, s{S_G}, 5
    s_add_u32 s{S_T}, s{S_T}, s{S_T2}
    v_add_u32 v{T+3}, s{S_T}, v{VT}
    v_lshlrev_b32 v{T+3}, 11, v{T+3}
    s_lshl_b32 s{S_T}, s{S_NT}, 8
    s_lshl_b32 s{S_T2}, s{S_NW}, 7
    s_add_u32 s{S_T}, s{S_T}, s{S_T2}
    s_lshl_b32 s{S_T2}, s{S_MW}, 6
    s_add_u32 s{S_T}, s{S_T}, s{S_T2}
    v_add_u32 v{T+3}, s{S_T}, v{T+3}
    v_lshl_add_u32 v{V_XA}, v{VG}, 3, v{T+3}
    v_and_b32 v{T+4}, 1, v{VG}
    v_lshrrev_b32 v{T+5}, 1, v{VG}
    v_lshl_or_b32 v{T+4}, v{T+4}, 1, v{T+5}
    v_lshl_add_u32 v{V_OA}, v{T+4}, 4, v{T+3}
    s_mov_b32 s{S_T}, {16*2048}
    """)
    for t in range(2):
        for e in range(2):
            so = "0" if t == 0 else f"s{S_T}"
            a(f"buffer_load_dwordx2 {vr(V_XR+(t*2+e)*2,2)}, v{V_XA}, {sr(SRD_X,4)}, {so} offen offset:{e*32}")
    a("s_waitcnt vmcnt(4) lgkmcnt(0)")
    stamp_now(a, 36)
    a(f"""
    s_barrier
    s_cmp_eq_u32 s{S_CUR}, s{S_KQ}
    s_cbranch_scc0 g2_after_publish
    s_cmp_eq_u32 s{S_WV}, 0
    s_cbranch_scc0 g2_wait_done
    s_lshl_b32 s{S_T}, s{S_KQ}, 2
    v_mov_b32 v{T+3}, s{S_DONE}
    v_mov_b32 v{T+4}, s{S_T}
    s_mov_b64 exec, 1
    buffer_store_dword v{T+3}, v{T+4}, {sr(SRD_F,4)}, s{S_FB} offen sc0 sc1
    s_mov_b32 s{S_CNT}, 0
    """)
    a.label("g2_poll")
    a(f"""
    buffer_load_dwordx4 {vr(T+6)}, off, {sr(SRD_F,4)}, s{S_FB} sc0 sc1
    s_waitcnt vmcnt(0)
    v_or_b32 v{T+6}, v{T+6}, v{T+7}
    v_or3_b32 v{T+5}, v{T+6}, v{T+8}, v{T+9}
    s_add_u32 s{S_CNT}, s{S_CNT}, 1
    v_readfirstlane_b32 s{S_ARR}, v{T+5}
    s_nop 3
    s_cmp_eq_u32 s{S_ARR}, {0x77 if "forcefb" in OPTS else 0x01010101}
    s_cbranch_scc1 g2_poll_end
    s_cmp_lt_u32 s{S_CNT}, {64 if "forcefb" in OPTS else 20000}
    s_cbranch_scc1 g2_poll
    """)
    a.label("g2_poll_end")
    if STAMP:
        a(f"v_writelane_b32 v{V_STAMP}, s{S_CNT}, 39")
    if "forcefb" in OPTS:
        a(f"s_and_b32 s{S_ARR}, s{S_ARR}, 0x00010001")
    a(f"""
    v_mov_b32 v{T+5}, s{S_ARR}
    v_mov_b32 v{T+4}, {65536}
    ds_write_b32 v{T+4}, v{T+5}
    s_mov_b64 exec, -1
    s_waitcnt lgkmcnt(0)
    """)
    a.label("g2_wait_done")
    a(f"""
    s_barrier
    v_mov_b32 v{T+4}, {65536}
    ds_read_b32 v{T+5}, v{T+4}
    s_waitcnt lgkmcnt(0)
    v_readfirstlane_b32 s{S_ARR}, v{T+5}
    s_nop 3
    """)
    a.label("g2_after_publish")
    a(f"""
    s_or_b32 s{S_T}, s{S_ARR}, s{S_DONE}
    s_cmp_eq_u32 s{S_T}, 0x01010101
    s_cbranch_scc1 g2_final
    s_andn2_b32 s{S_T}, 0x01010101, s{S_T}
    s_ff1_i32_b32 s{S_T}, s{S_T}
    s_lshl_b32 s{S_T2}, 1, s{S_T}
    s_or_b32 s{S_DONE}, s{S_DONE}, s{S_T2}
    s_lshr_b32 s{S_CUR}, s{S_T}, 3
    s_waitcnt vmcnt(0)
    s_barrier
    s_branch g2_gemm
    """)
    a.label("g2_final")
    stamp_now(a, 35)
    R0 = WF
    a(f"""
    s_andn2_b32 s{S_ARR}, s{S_ARR}, s{S_DONE}
    s_lshl_b32 s{S_T}, s{S_MW}, 2
    s_add_u32 s{S_T}, s{S_T}, s{S_G}
    s_lshl_b32 s{S_T}, s{S_T}, 10             ; pair0 * 1024
    s_lshl_b32 s{S_T2}, s{S_NW}, 13
    s_add_u32 s{S_T3}, s{S_T}, s{S_T2}
    """)
    for src in range(4):
        a(f"""
        s_bitcmp1_b32 s{S_ARR}, {8*src}
        s_cbranch_scc1 g2_ld{src}
        """)
        for r in range(8):
            a(f"v_mov_b32 v{8*src+r}, 0")
        a(f"s_branch g2_ld{src}_done")
        a.label(f"g2_ld{src}")
        a(f"""
        s_lshl_b32 s{S_T}, s{S_TILE}, 2
        s_add_u32 s{S_T}, s{S_T}, {src}
        s_lshl_b32 s{S_T}, s{S_T}, 2
        s_add_u32 s{S_T}, s{S_T}, s{S_KQ}
        s_lshl_b32 s{S_T}, s{S_T}, 14
        s_add_u32 s{S_T}, s{S_T}, s{S_T3}
        """)
        for e in range(2):
            a(f"buffer_load_dwordx4 {vr(8*src+4*e)}, v{T}, {sr(SRD_S,4)}, s{S_T} offen offset:{e*2048} {XF_}")
        a.label(f"g2_ld{src}_done")
    a(f"""
    s_lshl_b32 s{S_T}, s{S_MW}, 3
    s_lshl_b32 s{S_T2}, s{S_G}, 1
    s_add_u32 s{S_T}, s{S_T}, s{S_T2}
    s_lshl_b32 s{S_T}, s{S_T}, 10
    s_lshl_b32 s{S_T2}, s{S_NW}, 14
    s_add_u32 s{S_T}, s{S_T}, s{S_T2}
    v_add_u32 v{T+3}, s{S_T}, v{T}
    """)
    for e in range(2):
        for t in range(2):
            a(f"ds_read_b128 {vr(R0+(e*2+t)*4)}, v{T+3} offset:{e*4096 + t*1024}")
    a("s_waitcnt vmcnt(0) lgkmcnt(0)")
    stamp_now(a, 37)
    for t in range(2):
        o = XF + 16 + t * 4
        for e in range(2):
            c = R0 + (e * 2 + t) * 4
            srcs = [8 * src + 4 * e + 2 * t for src in range(4)] + [V_XR + (t * 2 + e) * 2]
            for p in srcs:
                a(f"""
                v_lshlrev_b32 v{T+8}, 16, v{p}
                v_and_b32 v{T+9}, 0xffff0000, v{p}
                v_lshlrev_b32 v{T+10}, 16, v{p+1}
                v_and_b32 v{T+11}, 0xffff0000, v{p+1}
                v_pk_add_f32 {vr(c,2)}, {vr(c,2)}, {vr(T+8,2)}
                v_pk_add_f32 {vr(c+2,2)}, {vr(c+2,2)}, {vr(T+10,2)}
                """)
            a(f"""
            v_cvt_pk_bf16_f32 v{o+2*e}, v{c}, v{c+1}
            v_cvt_pk_bf16_f32 v{o+2*e+1}, v{c+2}, v{c+3}
            """)
        so = "0" if t == 0 else f"s{S_T2}"
        a(f"""
        s_mov_b32 s{S_T2}, {16*2048}
        s_nop 0
        v_permlane16_swap_b32 v{o}, v{o+2}
        v_permlane16_swap_b32 v{o+1}, v{o+3}
        s_nop 1
        buffer_store_dwordx4 {vr(o)}, v{V_OA}, {sr(SRD_O,4)}, {so} offen
        """)
    stamp_now(a, 51, True)
    stamp_dump(a, S_WSP, S_WV, 40 << 20)
    a.label("g2_exit")
    a("s_endpgm")
    global G2_VGPRS
    G2_VGPRS = 256 if STAMP else 160

HEADER = f"""; mblk_pitch={MBLK_PITCH}
{"" if FUSE else "; @launch kernel=k0_kernel grid=(256,1,1) block=(512,1,1) lds=0"}
; @launch kernel=g1_kernel grid=(256,1,1) block=(512,1,1) lds={G1_LDS}
; @launch kernel=g2_kernel grid=(256,1,1) block=(512,1,1) lds={G2_LDS if 'g2a' in OPTS else G2C_LDS}
.amdgcn_target "amdgcn-amd-amdhsa--gfx950"
.text
"""

def kd(name, vgpr, sgpr):
    return f"""
.amdhsa_kernel {name}
  .amdhsa_next_free_vgpr {vgpr}
  .amdhsa_next_free_sgpr {sgpr}
  .amdhsa_accum_offset {(vgpr + 3) // 4 * 4}
  .amdhsa_group_segment_fixed_size 0
  .amdhsa_kernarg_size 72
  .amdhsa_user_sgpr_count 2
  .amdhsa_user_sgpr_kernarg_segment_ptr 1
  .amdhsa_system_sgpr_workgroup_id_x 1
.end_amdhsa_kernel
"""

def main():
    global STAMP
    if "stamp" in sys.argv[2:]: STAMP = True
    a = Asm()
    gen_k0(a)
    gen_g1(a)
    (gen_g2 if 'g2a' in OPTS else gen_g2c)(a)
    s = HEADER + a.text() + '.section .rodata,"a"\n.p2align 6\n' + kd("k0_kernel", 64, 40) + ".p2align 6\n" + kd("g1_kernel", 256, 102) + ".p2align 6\n" + kd("g2_kernel", G2_VGPRS, 102 if STAMP else 80)
    out = sys.argv[1] if len(sys.argv) > 1 else OUT
    open(out, "w").write(s)

main()
```

```python
import sys

OUT = "parallel_sum__sliding_local_dilated__dense_activation_relu__prompt.s"

class Asm:
    def __init__(self):
        self.L = []
    def __call__(self, s):
        for line in s.strip("\n").split("\n"):
            line = line.strip()
            if line:
                self.L.append("    " + line)
    def label(self, n):
        self.L.append(n + ":")
    def raw(self, s):
        self.L.append(s)
    def text(self):
        return "\n".join(self.L) + "\n"

class Collect:
    def __init__(self): self.L = []
    def __call__(self, s):
        for line in s.strip("\n").split("\n"):
            line = line.strip()
            if line: self.L.append(line)

def interleave(a, mfmas, fillers, start=2, per=2):
    fi = 0
    for n, m in enumerate(mfmas):
        a(m)
        if n >= start:
            for _ in range(per):
                if fi < len(fillers):
                    a(fillers[fi]); fi += 1
    while fi < len(fillers):
        a(fillers[fi]); fi += 1

def vr(b, n=4):
    return "v[%d:%d]" % (b, b + n - 1)
def sr(b, n=2):
    return "s[%d:%d]" % (b, b + n - 1)

MBLK_PITCH = 144 * 1024
for _o in sys.argv[2:]:
    if _o.startswith("pitch="): MBLK_PITCH = int(_o[6:])
A2_BYTES = 128 * MBLK_PITCH

G1_ASLOT = 16384
G1_BBASE = 65536
G1_BSLOT = 28672
G1_HALO = 24576
G1_STAT = G1_BBASE + 3 * G1_BSLOT
G1_CS = G1_STAT + 272 * 8
G1_CSP = G1_STAT + 3072
G1_CS = G1_CSP + 8192
G1_VERD = G1_CS + 896
G1_LDS = 163840 if "nofuse" not in sys.argv[2:] else G1_STAT
ST_OFF = 28 << 20
XN_OFF = 24 << 20
AT_PITCH = 400

V_ACC = 0
V_HACC = 96
V_XF = 112
V_WF = 144
V_HF = 200
V_S1 = 208
V_S2 = 210
V_SH = 212
V_CS = 214
V_WD = 208
V_WV = 212
V_RA = 217
V_RB = 221
V_RH = 228
V_DA = 230
V_DB = 231
V_DH = 235
V_T = 236
V_LANE = 250
V_TT = 251
V_GG = 252

S_X = 4; S_W = 6; S_WS = 8; S_W1 = 10
SRD_X = 12; SRD_W = 16; SRD_O = 20
S_WAVE = 24; S_MW = 26; S_NW = 27; S_WQ = 28; S_MT = 29; S_JT = 30; S_J = 31
S_KA = 32; S_KB = 33; S_MA = 34; S_MB = 35; S_BD = 36; S_BSL = 37; S_RSL = 38; S_TMP = 39
S_ONES = 40; S_KH = 41; S_TMP2 = 42; S_TMP3 = 43
S_BLK = 44
S_TB = 52
S_PO = 56
S_MASK = 64
S_BSC = 60
S_HD = 61
S_KW = 91
SRD_WW = 64; S_WM = 68; S_GW = 70; S_WPK = 71
V_L16 = 216
SRD_ST = 64; SRD_DBG = 72; S_NTI = 76; S_EV = 77; S_DBGP = 78
V_ONES = 240; V_CHK = 208
S_MAE = 25; S_MBE = 3
LDS_DUMP = 0x28000
SRD_XA = 96
S_WOP = 92; S_W2P = 94; S_PC1 = 62

STAMP = False
FUSE = "nofuse" not in sys.argv[2:]
OPTS = sys.argv[2:]
STF = "sc0 sc1" if "stsc" in OPTS else ""
STH = "sc0 sc1" if "hwt" in OPTS else ""
V_STAMP = 253
S_SA = 84; S_SB = 86; S_SC = 88; SRD_D = 80; S_SI = 90
def stamp_now(a, idx, real=False):
    if not STAMP: return
    a(f"""
    {"s_memrealtime" if real else "s_memtime"} {sr(S_SC)}
    s_waitcnt lgkmcnt(0)
    v_writelane_b32 v{V_STAMP}, s{S_SC}, {idx}
    """)
def stamp_dump(a, wsreg, wave_sreg, base_off):
    if not STAMP: return
    a(f"""
    s_waitcnt vmcnt(0)
    s_memtime {sr(S_SC)}
    s_waitcnt lgkmcnt(0)
    v_writelane_b32 v{V_STAMP}, s{S_SC}, 63
    s_mov_b32 s{SRD_D}, s{wsreg}
    s_and_b32 s{SRD_D+1}, s{wsreg+1}, 0xffff
    s_mov_b32 s{SRD_D+2}, {64<<20}
    s_mov_b32 s{SRD_D+3}, 0x20000
    s_lshl_b32 s{S_SC}, s2, 3
    s_add_u32 s{S_SC}, s{S_SC}, s{wave_sreg}
    s_lshl_b32 s{S_SC}, s{S_SC}, 8
    s_add_u32 s{S_SC}, s{S_SC}, {base_off}
    v_mbcnt_lo_u32_b32 v254, -1, 0
    v_mbcnt_hi_u32_b32 v254, -1, v254
    v_lshlrev_b32 v254, 2, v254
    buffer_store_dword v{V_STAMP}, v254, {sr(SRD_D,4)}, s{S_SC} offen
    """)

def acc(s, i): return V_ACC + (s * 4 + i) * 4
def xf(i, kk): return V_XF + (i * 2 + kk) * 4
def wf(s, kk): return V_WF + (s * 2 + kk) * 4
def hf(kk): return V_HF + kk * 4

def xlane_sum(a, v, t):
    a(f"""
    v_mov_b32 v{t}, v{v}
    s_nop 1
    v_permlane16_swap_b32 v{v}, v{t}
    s_nop 1
    v_add_f32 v{v}, v{v}, v{t}
    v_mov_b32 v{t}, v{v}
    s_nop 1
    v_permlane32_swap_b32 v{v}, v{t}
    s_nop 1
    v_add_f32 v{v}, v{v}, v{t}
    """)

def xlane_max(a, v, t):
    a(f"""
    v_mov_b32 v{t}, v{v}
    s_nop 1
    v_permlane16_swap_b32 v{v}, v{t}
    s_nop 1
    v_max_f32 v{v}, v{v}, v{t}
    v_mov_b32 v{t}, v{v}
    s_nop 1
    v_permlane32_swap_b32 v{v}, v{t}
    s_nop 1
    v_max_f32 v{v}, v{v}, v{t}
    """)

def reduce64(a, v, t):
    DPP = "row_mask:0xf bank_mask:0xf"
    a(f"""
    s_nop 1
    v_add_f32_dpp v{t}, v{v}, v{v} quad_perm:[1,0,3,2] {DPP}
    s_nop 1
    v_add_f32_dpp v{v}, v{t}, v{t} quad_perm:[2,3,0,1] {DPP}
    s_nop 1
    v_add_f32_dpp v{t}, v{v}, v{v} row_half_mirror {DPP}
    s_nop 1
    v_add_f32_dpp v{v}, v{t}, v{t} row_mirror {DPP}
    """)
    xlane_sum(a, v, t)

def row_stats(a, src, u, dst, t0, t1):
    for r in range(8):
        a(f"""
        v_lshlrev_b32 v{u+2*r}, 16, v{src+r}
        v_and_b32 v{u+2*r+1}, 0xffff0000, v{src+r}
        """)
    a(f"v_pk_add_f32 {vr(dst,2)}, {vr(u,2)}, {vr(u+2,2)}")
    for r in range(2, 8):
        a(f"v_pk_add_f32 {vr(dst,2)}, {vr(dst,2)}, {vr(u+2*r,2)}")
    a(f"v_add_f32 v{t0}, v{dst}, v{dst+1}")
    reduce64(a, t0, t1)
    a(f"v_mul_f32 v{t0}, 0x3a800000, v{t0}          ; mean")
    for r in range(8):
        a(f"v_pk_add_f32 {vr(u+2*r,2)}, {vr(u+2*r,2)}, {vr(t0,2)} op_sel_hi:[1,0] neg_lo:[0,1] neg_hi:[0,1]")
    a(f"v_pk_mul_f32 {vr(dst,2)}, {vr(u,2)}, {vr(u,2)}")
    for r in range(1, 8):
        a(f"v_pk_fma_f32 {vr(dst,2)}, {vr(u+2*r,2)}, {vr(u+2*r,2)}, {vr(dst,2)}")
    a(f"v_add_f32 v{dst+1}, v{dst}, v{dst+1}")
    reduce64(a, dst + 1, t1)
    a(f"""
    v_mul_f32 v{dst+1}, 0x3a800000, v{dst+1}     ; var
    v_cvt_pk_bf16_f32 v{t1}, v{t0}, v{dst+1}
    v_lshlrev_b32 v{dst}, 16, v{t1}              ; m_b
    v_and_b32 v{dst+1}, 0xffff0000, v{t1}        ; v_b
    v_add_f32 v{dst+1}, 0x3727c5ac, v{dst+1}
    v_cvt_pk_bf16_f32 v{dst+1}, v{dst+1}, v{dst+1}
    v_and_b32 v{dst+1}, 0xffff0000, v{dst+1}
    v_sqrt_f32 v{dst+1}, v{dst+1}
    s_nop 0
    v_cvt_pk_bf16_f32 v{dst+1}, v{dst+1}, v{dst+1}
    v_and_b32 v{dst+1}, 0xffff0000, v{dst+1}
    v_rcp_f32 v{dst+1}, v{dst+1}
    s_nop 0
    """)

def g1_path(a, typ, G):
    qkv = (typ == 0)
    NB = 6 if qkv else 7
    PB = 384 if qkv else 448
    CH = PB // 16
    WP = 6144 if qkv else 7168
    halo = qkv and G == 0
    if qkv:
        nB = 3
        p0 = 0 if G == 0 else 12
    else:
        nB = 4 if G == 0 else 3
        p0 = 0 if G == 0 else 16
    nIss = 4 + nB + (1 if halo else 0)
    nBiss = nB + (1 if halo else 0)
    cs_slots = [0, 1] if (qkv or G == 0) else [0, 1, 6]
    P = f"g1_{typ}{G}"
    T = V_T
    a.label(P)
    if STAMP: a(f"v_mov_b32 v{V_STAMP}, 0")
    stamp_now(a, 32); stamp_now(a, 50, True)
    if qkv:
        a(f"""
        s_mov_b32 s{SRD_W}, s{S_W}
        s_and_b32 s{SRD_W+1}, s{S_W+1}, 0xffff
        s_mov_b32 s{SRD_W+2}, {1024*6144}
        s_mov_b32 s{SRD_W+3}, 0x20000
        """)
    else:
        a(f"""
        s_mov_b32 s{SRD_W}, s{S_W1}
        s_and_b32 s{SRD_W+1}, s{S_W1+1}, 0xffff
        s_mov_b32 s{SRD_W+2}, {1024*7168}
        s_mov_b32 s{SRD_W+3}, 0x20000
        """)
    Go = 1 - G
    a(f"""
    v_lshrrev_b32 v{T}, 3, v{V_LANE}                 ; l>>3
    v_and_b32 v{T+1}, 7, v{V_LANE}
    v_xor_b32 v{T+1}, v{T+1}, v{T}                   ; chunk
    s_lshl_b32 s{S_TMP}, s{S_MT}, 8
    s_lshl_b32 s{S_TMP2}, s{S_WQ}, 5
    s_add_u32 s{S_TMP}, s{S_TMP}, s{S_TMP2}
    s_add_u32 s{S_TMP}, s{S_TMP}, {128*Go}
    v_add_u32 v{T+2}, s{S_TMP}, v{T}
    v_lshlrev_b32 v{T+2}, 11, v{T+2}
    v_lshl_add_u32 v{V_DA}, v{T+1}, 4, v{T+2}
    """)
    if halo:
        a(f"""
        s_and_b32 s{S_TMP2}, s{S_WQ}, 1
        s_lshl_b32 s{S_TMP2}, s{S_TMP2}, 3
        v_add_u32 v{T+2}, s{S_TMP2}, v{T}
        s_lshl_b32 s{S_TMP}, s{S_MT}, 8
        s_sub_u32 s{S_TMP}, s{S_TMP}, 16
        v_add_u32 v{T+2}, s{S_TMP}, v{T+2}
        v_max_i32 v{T+2}, 0, v{T+2}
        v_lshlrev_b32 v{T+2}, 11, v{T+2}
        v_lshl_add_u32 v{V_DH}, v{T+1}, 4, v{T+2}
        s_mul_i32 s{S_HD}, s{S_WQ}, {nB*1024}
        s_sub_u32 s{S_HD}, {G1_HALO - p0*1024}, s{S_HD}
        s_lshl_b32 s{S_TMP2}, s{S_TMP2}, 7           ; (wq&1)*1024
        s_add_u32 s{S_HD}, s{S_HD}, s{S_TMP2}
        """)
    magic = (65536 + CH - 1) // CH
    for q in range(64 * CH):
        assert (q * magic) >> 16 == q // CH
    a(f"s_mul_i32 s{S_TMP3}, s{S_WQ}, {nB*64}")
    for i in range(nB):
        a(f"""
        s_add_u32 s{S_TMP}, s{S_TMP3}, {(p0+i)*64}
        v_add_u32 v{T}, s{S_TMP}, v{V_LANE}          ; q
        v_mul_u32_u24 v{T+1}, {magic}, v{T}
        v_lshrrev_b32 v{T+1}, 16, v{T+1}             ; k
        v_mul_u32_u24 v{T+2}, {CH}, v{T+1}
        v_sub_u32 v{T+2}, v{T}, v{T+2}               ; c'
        """)
        if qkv:
            a(f"""
            v_bfe_u32 v{T+3}, v{T+1}, 1, 1
            v_bfe_u32 v{T+4}, v{T+1}, 3, 1
            v_lshl_or_b32 v{T+3}, v{T+4}, 1, v{T+3}  ; f
            v_lshrrev_b32 v{T+4}, 1, v{T+2}
            v_xor_b32 v{T+4}, v{T+4}, v{T+3}         ; unit (0..11)
            v_cmp_le_u32 vcc, 6, v{T+4}
            s_nop 1
            v_cndmask_b32 v{T+5}, 0, 1, vcc          ; hh
            v_mul_u32_u24 v{T+6}, 6, v{T+5}
            v_sub_u32 v{T+6}, v{T+4}, v{T+6}         ; unit % 6
            v_lshrrev_b32 v{T+7}, 1, v{T+6}          ; part
            v_and_b32 v{T+6}, 1, v{T+6}              ; half32
            v_lshlrev_b32 v{T+7}, 11, v{T+7}         ; part*2048
            v_lshl_add_u32 v{T+7}, v{T+5}, 6, v{T+7} ; + hh*64
            v_lshl_add_u32 v{T+7}, v{T+6}, 5, v{T+7} ; + half32*32
            v_and_b32 v{T+6}, 1, v{T+2}
            v_lshl_add_u32 v{T+7}, v{T+6}, 4, v{T+7} ; + (c'&1)*16
            s_lshl_b32 s{S_TMP}, s{S_JT}, 7          ; 2 jt * 64
            v_add_u32 v{T+7}, s{S_TMP}, v{T+7}
            v_mul_u32_u24 v{T+1}, {WP}, v{T+1}
            v_add_u32 v{V_DB+i}, v{T+1}, v{T+7}
            """)
        else:
            a(f"""
            v_bfe_u32 v{T+3}, v{T+1}, 3, 1
            v_lshlrev_b32 v{T+3}, 1, v{T+3}
            v_xor_b32 v{T+2}, v{T+2}, v{T+3}         ; c = c' ^ (2*bit3(k))
            v_lshlrev_b32 v{T+2}, 4, v{T+2}
            s_mul_i32 s{S_TMP}, s{S_JT}, 448
            v_add_u32 v{T+2}, s{S_TMP}, v{T+2}
            v_mul_u32_u24 v{T+1}, {WP}, v{T+1}
            v_add_u32 v{V_DB+i}, v{T+1}, v{T+2}
            """)
    a(f"""
    s_lshl_b32 s{S_KA}, s{S_MT}, {8 if FUSE else 31}
    s_and_b32 s{S_KA}, s{S_KA}, 0x7ff
    s_mul_i32 s{S_KB}, s{S_MT}, {128*WP if FUSE else 0}
    s_mov_b32 s{S_KH}, s{S_KA}
    s_lshl_b32 s{S_MA}, s{S_WQ}, 12
    s_add_u32 s{S_MA}, s{S_MA}, {Go*2*G1_ASLOT}
    s_mul_i32 s{S_MB}, s{S_WQ}, {nB*1024}
    s_add_u32 s{S_MB}, s{S_MB}, {G1_BBASE + p0*1024}
    s_mov_b32 s{S_BSL}, 0
    """)
    def dma_A():
        for i in range(4):
            a(f"""
            s_add_u32 m0, s{S_MA}, {i*1024}
            s_add_u32 s{S_TMP}, s{S_KA}, {i*16384}
            buffer_load_dwordx4 v{V_DA}, {sr(SRD_XA,4)}, s{S_TMP} offen lds
            """)
        a(f"""
        s_add_u32 s{S_KA}, s{S_KA}, 128
        s_and_b32 s{S_KA}, s{S_KA}, 0x7ff
        s_xor_b32 s{S_MA}, s{S_MA}, {G1_ASLOT}
        """)
    def dma_B():
        for i in range(nB):
            a(f"""
            s_add_u32 m0, s{S_MB}, {i*1024}
            s_nop 0
            buffer_load_dwordx4 v{V_DB+i}, {sr(SRD_W,4)}, s{S_KB} offen lds
            """)
        if halo:
            a(f"""
            s_add_u32 m0, s{S_MB}, s{S_HD}
            s_nop 0
            buffer_load_dwordx4 v{V_DH}, {sr(SRD_X,4)}, s{S_KH} offen lds
            s_add_u32 s{S_KH}, s{S_KH}, 128
            s_and_b32 s{S_KH}, s{S_KH}, 0x7ff
            """)
        a(f"""
        s_add_u32 s{S_KB}, s{S_KB}, {64*WP}
        s_cmp_eq_u32 s{S_KB}, {1024*WP}
        s_cselect_b32 s{S_KB}, 0, s{S_KB}
        s_add_u32 s{S_BSL}, s{S_BSL}, 1
        s_add_u32 s{S_MB}, s{S_MB}, {G1_BSLOT}
        s_cmp_eq_u32 s{S_BSL}, 3
        s_cselect_b32 s{S_TMP}, {3*G1_BSLOT}, 0
        s_cselect_b32 s{S_BSL}, 0, s{S_BSL}
        s_sub_u32 s{S_MB}, s{S_MB}, s{S_TMP}
        """)
    if G == 0:
        dma_B(); dma_A(); dma_B()
        pro_wait = 4 + nBiss
    else:
        dma_A(); dma_B(); dma_A(); dma_B()
        pro_wait = 4 + nBiss
    WARM = "nowarmw" not in OPTS and not FUSE
    a(f"""
    s_and_b32 s{S_WOP+1}, s{S_WOP+1}, 0xffff
    s_and_b32 s{S_W2P+1}, s{S_W2P+1}, 0xffff
    s_lshl_b32 s{S_GW}, s2, 3
    s_add_u32 s{S_GW}, s{S_GW}, s{S_WAVE}
    s_lshl_b32 s{S_GW}, s{S_GW}, 10
    v_lshlrev_b32 v{V_L16}, 4, v{V_LANE}
    s_mov_b32 s{S_WPK}, {128*WP}
    s_mov_b32 s{S_KW}, 0
    """)
    if WARM:
        a(f"""
        v_min_u32 v{T}, {2*CH - 1}, v{V_LANE}
        v_cmp_le_u32 vcc, {CH}, v{T}
        s_lshl_b32 s{S_TMP}, s{S_MT}, 4
        s_lshl_b32 s{S_TMP2}, s{S_WAVE}, 1
        v_cndmask_b32 v{T+1}, 0, 1, vcc              ; row
        s_add_u32 s{S_TMP}, s{S_TMP}, s{S_TMP2}
        v_mul_u32_u24 v{T+2}, {CH}, v{T+1}
        v_sub_u32 v{T}, v{T}, v{T+2}                 ; chunk
        v_add_u32 v{T+1}, s{S_TMP}, v{T+1}
        v_mul_u32_u24 v{T+1}, {WP}, v{T+1}
        """)
        if qkv:
            a(f"""
            v_lshrrev_b32 v{T+2}, 3, v{T}
            v_lshl_add_u32 v{T+1}, v{T+2}, 11, v{T+1}
            v_and_b32 v{T}, 7, v{T}
            s_lshl_b32 s{S_TMP}, s{S_JT}, 7
            """)
        else:
            a(f"s_mul_i32 s{S_TMP}, s{S_JT}, 448")
        a(f"""
        v_lshl_add_u32 v{T+1}, v{T}, 4, v{T+1}
        v_add_u32 v{V_WV}, s{S_TMP}, v{T+1}
        s_mov_b32 s{S_KW}, {256*WP}
        buffer_load_dwordx4 {vr(V_WD)}, v{V_WV}, {sr(SRD_W,4)}, s{S_KW} offen
        s_mov_b32 s{S_KW}, {384*WP}
        buffer_load_dwordx4 {vr(V_WD)}, v{V_WV}, {sr(SRD_W,4)}, s{S_KW} offen
        s_mov_b32 s{S_KW}, {512*WP}
        s_mov_b32 s{SRD_WW}, s{SRD_W}
        s_mov_b32 s{SRD_WW+1}, s{SRD_W+1}
        s_mov_b32 s{SRD_WW+2}, s{SRD_W+2}
        s_mov_b32 s{SRD_WW+3}, 0x20000
        s_and_b32 s{S_WOP+1}, s{S_WOP+1}, 0xffff
        s_and_b32 s{S_W2P+1}, s{S_W2P+1}, 0xffff
        s_mov_b32 s{S_WPK}, {128*WP}
        s_lshl_b32 s{S_GW}, s2, 3
        s_add_u32 s{S_GW}, s{S_GW}, s{S_WAVE}
        s_lshl_b32 s{S_GW}, s{S_GW}, 10
        v_lshlrev_b32 v{V_L16}, 4, v{V_LANE}
        """)
        pro_wait += 2
        nIss += 1
    NCOL = 16 * 2 * NB
    VCS = 216 - 4 * len(cs_slots)
    if FUSE:
        a(f"""
        s_add_u32 s{SRD_ST}, s{S_WS}, {ST_OFF}
        s_addc_u32 s{SRD_ST+1}, s{S_WS+1}, 0
        s_and_b32 s{SRD_ST+1}, s{SRD_ST+1}, 0xffff
        s_mov_b32 s{SRD_ST+2}, {65536 + 262144}
        s_mov_b32 s{SRD_ST+3}, 0x20000
        s_mov_b32 s{SRD_DBG}, s{S_DBGP}
        s_and_b32 s{SRD_DBG+1}, s{S_DBGP+1}, 0xffff
        s_mov_b32 s{SRD_DBG+2}, 256
        s_mov_b32 s{SRD_DBG+3}, 0x20000
        s_add_u32 s{S_NTI}, s{S_JT}, {16*typ}
        s_mov_b32 s{S_EV}, {(1<<2) | (1<<5) | (1<<12) | (1<<14) if G == 0 else (1<<2)}
        """)
        if G == 1:
            a(f"""
            s_lshl_b32 s{S_TMP}, s{S_MT}, 8
            s_lshl_b32 s{S_TMP2}, s{S_NTI}, 3
            s_add_u32 s{S_TMP}, s{S_TMP}, s{S_TMP2}
            s_lshl_b32 s{S_TMP2}, s{S_WQ}, 1
            s_add_u32 s{S_KW}, s{S_TMP}, s{S_TMP2}
            s_lshl_b32 s{S_TMP}, s{S_KW}, 11
            """)
            for i in range(4):
                a(f"buffer_load_dwordx4 {vr(V_XF+4*i)}, v{V_L16}, {sr(SRD_X,4)}, s{S_TMP} offen offset:{1024*i}")
            pro_wait += 4
    if qkv:
        if G == 0:
            a(f"""
            s_mul_i32 s{S_TMP}, s{S_NW}, 6
            s_lshl_b32 s{S_TMP2}, s{S_MW}, 1
            s_add_u32 s{S_BLK+0}, s{S_TMP}, s{S_TMP2}
            s_add_u32 s{S_BLK+0}, s{S_BLK+0}, 2
            s_add_u32 s{S_BLK+1}, s{S_BLK+0}, 1
            s_mov_b32 s{S_BLK+2}, s{S_TMP}
            s_add_u32 s{S_BLK+3}, s{S_TMP}, 1
            s_sub_u32 s{S_BLK+4}, s{S_TMP}, s{S_TMP2}
            s_add_u32 s{S_BLK+4}, s{S_BLK+4}, 4
            s_add_u32 s{S_BLK+5}, s{S_BLK+4}, 1
            """)
        else:
            a(f"s_mul_i32 s{S_TMP}, s{S_NW}, 6")
            for s in range(6):
                a(f"s_add_u32 s{S_BLK+s}, s{S_TMP}, {s}")
    else:
        a(f"s_lshl_b32 s{S_TMP2}, s{S_NW}, 3")
        for ps in range(3):
            a(f"""
            s_add_u32 s{S_TMP}, s{S_MW}, {(ps + 2*G) % 3}
            s_cmp_ge_u32 s{S_TMP}, 3
            s_cselect_b32 s{S_TMP3}, 3, 0
            s_sub_u32 s{S_TMP}, s{S_TMP}, s{S_TMP3}
            s_lshl_b32 s{S_TMP}, s{S_TMP}, 1
            s_add_u32 s{S_BLK+2*ps}, s{S_TMP}, s{S_TMP2}
            s_add_u32 s{S_BLK+2*ps+1}, s{S_BLK+2*ps}, 1
            """)
        a(f"s_add_u32 s{S_BLK+6}, s{S_NW}, 6")
    a(f"""
    v_and_b32 v{T}, 7, v{V_TT}
    v_xor_b32 v{T}, v{V_GG}, v{T}                    ; g ^ (t&7)
    v_lshlrev_b32 v{T}, 4, v{T}
    v_lshl_add_u32 v{T}, v{V_TT}, 7, v{T}
    s_lshl_b32 s{S_TMP}, s{S_MW}, 13
    s_add_u32 s{S_TMP}, s{S_TMP}, {G*2*G1_ASLOT}
    s_lshl_b32 s{S_TMP2}, s{S_NW}, 12
    s_add_u32 s{S_TMP3}, s{S_TMP}, s{S_TMP2}
    v_add_u32 v{V_RA+0}, s{S_TMP3}, v{T}
    v_xor_b32 v{V_RA+1}, 64, v{V_RA+0}
    s_xor_b32 s{S_TMP2}, s{S_TMP2}, 4096
    s_add_u32 s{S_TMP3}, s{S_TMP}, s{S_TMP2}         ; sp=1
    v_add_u32 v{V_RA+2}, s{S_TMP3}, v{T}
    v_xor_b32 v{V_RA+3}, 64, v{V_RA+2}
    """)
    if halo:
        a(f"""
        v_add_u32 v{V_RH+0}, {G1_BBASE + G1_HALO}, v{T}
        v_xor_b32 v{V_RH+1}, 64, v{V_RH+0}
        """)
    a(f"""
    v_lshrrev_b32 v{T}, 2, v{V_TT}                   ; r
    v_lshl_add_u32 v{T+1}, v{V_GG}, 3, v{T}          ; 8g + r
    v_mul_u32_u24 v{T+1}, {PB}, v{T+1}
    v_and_b32 v{T+2}, 3, v{V_LANE}
    v_lshl_add_u32 v{T+1}, v{T+2}, 3, v{T+1}         ; + c*8
    v_add_u32 v{T+1}, {G1_BBASE}, v{T+1}
    v_and_b32 v{T+2}, 1, v{V_GG}                     ; g&1
    """)
    if qkv:
        a(f"""
        v_lshrrev_b32 v{T+3}, 1, v{T}                ; bit1(r)
        v_lshl_or_b32 v{T+2}, v{T+2}, 1, v{T+3}      ; f
        """)
    for s in range(NB):
        a(f"""
        v_xor_b32 v{T+3}, s{S_BLK+s}, v{T+2}
        v_lshl_add_u32 v{V_RB+s}, v{T+3}, 5, v{T+1}
        """)
    nacc = (NB * 4) * 4
    for r in range(V_ACC, V_ACC + nacc):
        a(f"v_mov_b32 v{r}, 0")
    if halo:
        for r in range(V_HACC, V_HACC + 8):
            a(f"v_mov_b32 v{r}, 0")
    if FUSE:
        for r in range(4 * len(cs_slots)):
            a(f"v_mov_b32 v{VCS+r}, 0")
        for r in range(4):
            a(f"v_mov_b32 v{V_ONES+r}, 0x3f803f80")
    a(f"""
    s_mov_b32 s{S_BSC}, {G1_BSLOT}
    s_mov_b32 s{S_J}, 0
    s_mov_b32 s{S_RSL}, 0
    s_waitcnt vmcnt({pro_wait})
    s_barrier
    """)
    stamp_now(a, 33)
    if G == 1:
        if FUSE:
            a("s_waitcnt vmcnt(0)")
            row_stats(a, V_XF, V_WF, V_WF + 16, V_WF + 20, V_WF + 21)
            row_stats(a, V_XF + 8, V_WF, V_WF + 18, V_WF + 20, V_WF + 21)
            a(f"""
            v_lshlrev_b32 v{V_WF+20}, 24, v{V_LANE}
            s_lshl_b32 s{S_TMP}, s{S_KW}, 3
            buffer_store_dwordx4 {vr(V_WF+16)}, v{V_WF+20}, {sr(SRD_ST,4)}, s{S_TMP} offen sc0 sc1
            """)
        a("s_barrier")
    if STAMP: a(f"s_mov_b32 s{S_SB}, 0")

    def rd_x(i):
        sp, e = i >> 1, i & 1
        for kk in range(2):
            a(f"ds_read_b128 {vr(xf(i,kk))}, v{V_RA+sp*2+kk} offset:{e*2048}")
    def rd_w(s):
        for kk in range(2):
            for h in range(2):
                a(f"ds_read_b64_tr_b16 {vr(wf(s,kk)+2*h,2)}, v{V_RB+s} offset:{(32*kk+4*h)*PB}")
    def dma_list():
        L = []
        for i in range(4):
            L.append(f"""
            s_add_u32 m0, s{S_MAE}, {i*1024}
            s_add_u32 s{S_TMP}, s{S_KA}, {i*16384}
            buffer_load_dwordx4 v{V_DA}, {sr(SRD_XA,4)}, s{S_TMP} offen lds
            """)
        for i in range(nB):
            L.append(f"""
            s_add_u32 m0, s{S_MBE}, {i*1024}
            s_nop 0
            buffer_load_dwordx4 v{V_DB+i}, {sr(SRD_W,4)}, s{S_KB} offen lds
            """)
        if halo:
            L.append(f"""
            s_add_u32 m0, s{S_MBE}, s{S_HD}
            s_nop 0
            buffer_load_dwordx4 v{V_DH}, {sr(SRD_X,4)}, s{S_KH} offen lds
            """)
        if WARM:
            L.append(f"buffer_load_dwordx4 {vr(V_WD)}, v{V_WV}, {sr(SRD_WW,4)}, s{S_KW} offen")
        return L
    a(f"""
    s_mov_b32 s{S_MAE}, s{S_MA}
    s_mov_b32 s{S_MBE}, s{S_MB}
    """)
    reads = []
    for i in range(4):
        sp, e = i >> 1, i & 1
        for kk in range(2):
            reads.append((kk, f"ds_read_b128 {vr(xf(i,kk))}, v{V_RA+sp*2+kk} offset:{e*2048}"))
    if halo:
        for kk in range(2):
            reads.append((kk, f"ds_read_b128 {vr(hf(kk))}, v{V_RH+kk}"))
    for s_ in range(NB):
        for kk in range(2):
            for h in range(2):
                reads.append((kk, f"ds_read_b64_tr_b16 {vr(wf(s_,kk)+2*h,2)}, v{V_RB+s_} offset:{(32*kk+4*h)*PB}"))
    reads = [r for k_, r in reads if k_ == 0] + [r for k_, r in reads if k_ == 1]

    bk = Collect()
    bk(f"""
    s_add_u32 s{S_KA}, s{S_KA}, 128
    s_and_b32 s{S_KA}, s{S_KA}, 0x7ff
    s_xor_b32 s{S_MA}, s{S_MA}, {G1_ASLOT}
    s_cmp_ge_u32 s{S_J}, {14 if G == 0 else 13}
    s_cselect_b32 s{SRD_XA+2}, 0, s{SRD_XA+2}
    s_cselect_b32 s{S_MAE}, {LDS_DUMP}, s{S_MA}
    s_add_u32 s{S_KH}, s{S_KH}, 128
    s_and_b32 s{S_KH}, s{S_KH}, 0x7ff
    s_add_u32 s{S_KW}, s{S_KW}, s{S_WPK}
    s_add_u32 s{S_KB}, s{S_KB}, {64*WP}
    s_cmp_eq_u32 s{S_KB}, {1024*WP}
    s_cselect_b32 s{S_KB}, 0, s{S_KB}
    s_add_u32 s{S_BSL}, s{S_BSL}, 1
    s_add_u32 s{S_MB}, s{S_MB}, {G1_BSLOT}
    s_cmp_eq_u32 s{S_BSL}, 3
    s_cselect_b32 s{S_TMP}, {3*G1_BSLOT}, 0
    s_cselect_b32 s{S_BSL}, 0, s{S_BSL}
    s_sub_u32 s{S_MB}, s{S_MB}, s{S_TMP}
    s_cmp_ge_u32 s{S_J}, 13
    s_cselect_b32 s{S_MBE}, {LDS_DUMP}, s{S_MB}
    s_cselect_b32 s{SRD_W+2}, 0, s{SRD_W+2}
    s_cselect_b32 s{SRD_X+2}, 0, s{SRD_X+2}
    s_add_u32 s{S_RSL}, s{S_RSL}, 1
    s_cmp_eq_u32 s{S_RSL}, 3
    s_cselect_b32 s{S_BD}, {(-2*G1_BSLOT) & 0xffffffff}, s{S_BSC}
    s_cselect_b32 s{S_RSL}, 0, s{S_RSL}
    """)
    for r in range(4):
        bk(f"v_xor_b32 v{V_RA+r}, {G1_ASLOT}, v{V_RA+r}")
    for s_ in range(NB):
        bk(f"v_add_u32 v{V_RB+s_}, s{S_BD}, v{V_RB+s_}")
    if halo:
        for kk in range(2):
            bk(f"v_add_u32 v{V_RH+kk}, s{S_BD}, v{V_RH+kk}")
    BKL = "bkL" in OPTS
    a.raw(".p2align 6")
    a.label(P + "_loop")
    if STAMP: a(f"s_memtime {sr(S_SA)}")
    dl = dma_list()
    step = max(3, len(reads) // len(dl))
    order = "rdfirst" if "rdfirst" in OPTS else "mix"
    if order == "rdfirst":
        for r in reads: a(r)
        for d in dl: a(d)
    else:
        di = 0
        for n_, r in enumerate(reads):
            a(r)
            if (n_ % step) == 1 and di < len(dl):
                a(dl[di]); di += 1
        while di < len(dl):
            a(dl[di]); di += 1
    if BKL:
        for l_ in bk.L: a(l_)
    if STAMP: a(f"s_memtime {sr(100)}")
    if FUSE:
        a(f"""
        s_bitcmp1_b32 s{S_EV}, s{S_J}
        s_cbranch_scc1 {P}_event
        """)
    a(f"s_waitcnt vmcnt({0 if 'strictwait' in OPTS else nIss}) lgkmcnt(0)")
    a.label(P + "_afterwait")
    if STAMP:
        a(f"""
        s_lshl_b32 s{S_SI}, s{S_J}, 1
        s_mov_b32 m0, s{S_SI}
        s_nop 3
        v_writelane_b32 v{V_STAMP}, s{S_SA}, m0
        s_add_u32 s{S_SI}, s{S_SI}, 63
        s_and_b32 m0, s{S_SI}, 63
        s_nop 3
        v_writelane_b32 v{V_STAMP}, s{S_SB}, m0
        s_memtime {sr(S_SC)}
        s_cmp_eq_u32 s{S_J}, 8
        s_cbranch_scc0 {P}_nost
        s_waitcnt lgkmcnt(0)
        v_writelane_b32 v{V_STAMP}, s{S_SA}, 40
        v_writelane_b32 v{V_STAMP}, s100, 41
        v_writelane_b32 v{V_STAMP}, s{S_SC}, 42
        """)
        a.label(P + "_nost")
    a("s_barrier")
    if STAMP: a(f"s_memtime {sr(S_SB)}")
    a("s_setprio 1")
    mf = []
    for kk in range(2):
        for s_ in range(NB):
            for i in range(4):
                mf.append(f"v_mfma_f32_16x16x32_bf16 {vr(acc(s_,i))}, {vr(wf(s_,kk))}, {vr(xf(i,kk))}, {vr(acc(s_,i))}")
        if halo:
            for s_ in range(2):
                mf.append(f"v_mfma_f32_16x16x32_bf16 {vr(V_HACC+4*s_)}, {vr(wf(s_,kk))}, {vr(hf(kk))}, {vr(V_HACC+4*s_)}")
    interleave(a, mf, [] if BKL else bk.L, start=2, per=1)
    if FUSE:
        a(f"""
        s_cmp_lt_u32 s{S_J}, 2
        s_cbranch_scc0 {P}_nocs
        """)
        for kk in range(2):
            for ci, s_ in enumerate(cs_slots):
                a(f"v_mfma_f32_16x16x32_bf16 {vr(VCS+4*ci)}, {vr(wf(s_,kk))}, {vr(V_ONES)}, {vr(VCS+4*ci)}")
        a.label(P + "_nocs")
    a(f"""
    s_setprio 0
    s_add_u32 s{S_J}, s{S_J}, 1
    s_cmp_lt_u32 s{S_J}, 16
    """)
    if G == 0:
        a(f"""
        s_barrier
        s_cbranch_scc1 {P}_loop
        s_branch {P}_post
        """)
    else:
        a(f"""
        s_cbranch_scc0 {P}_post
        s_barrier
        s_branch {P}_loop
        """)
    if FUSE:
        a.label(P + "_event")
        if G == 0:
            a(f"""
            s_cmp_eq_u32 s{S_J}, 2
            s_cbranch_scc0 {P}_ev5
            """)
        a(f"""
        v_lshlrev_b32 v{T}, 24, v{V_TT}
        v_lshl_add_u32 v{T}, v{V_GG}, 4, v{T}
        s_lshl_b32 s{S_TMP2}, s{S_NTI}, 3
        s_add_u32 s{S_TMP2}, s{S_TMP2}, s{S_MT}
        s_lshl_b32 s{S_TMP2}, s{S_TMP2}, 10
        s_add_u32 s{S_TMP2}, s{S_TMP2}, 65536
        """)
        for ci, s_ in enumerate(cs_slots):
            a(f"""
            s_lshl_b32 s{S_TMP}, s{S_BLK+s_}, 6
            s_add_u32 s{S_TMP}, s{S_TMP}, s{S_TMP2}
            buffer_store_dwordx4 {vr(VCS+4*ci)}, v{T}, {sr(SRD_ST,4)}, s{S_TMP} offen sc0 sc1
            """)
        a(f"""
        s_waitcnt vmcnt({nIss + len(cs_slots)}) lgkmcnt(0)
        s_branch {P}_afterwait
        """)
        if G == 0:
            a.label(P + "_ev5")
            a(f"""
            s_cmp_eq_u32 s{S_J}, 14
            s_cbranch_scc1 {P}_ev14
            s_sub_u32 s{S_TMP}, s{S_MT}, 1
            s_max_i32 s{S_TMP}, s{S_TMP}, 0
            s_lshl_b32 s{S_TMP}, s{S_TMP}, 2
            s_lshl_b32 s{S_TMP2}, s{S_NTI}, 2
            s_add_u32 s{S_TMP2}, s{S_TMP2}, 32
            s_lshl_b32 s{S_TMP3}, s{S_MT}, 2
            v_mov_b32 v{T}, 0x1000
            v_writelane_b32 v{T}, s{S_TMP3}, 0
            v_writelane_b32 v{T}, s{S_TMP2}, 1
            s_cmp_lg_u32 s{S_WAVE}, 0
            s_cselect_b32 s{S_TMP2}, 0x1000, 0
            s_cmp_eq_u32 s{S_J}, 5
            s_cbranch_scc0 {P}_ev12
            v_mov_b32 v{T+1}, 1
            buffer_atomic_add v{T+1}, v{T}, {sr(SRD_DBG,4)}, s{S_TMP2} offen sc1
            s_waitcnt vmcnt({nIss + 1}) lgkmcnt(0)
            s_branch {P}_afterwait
            """)
            a.label(P + "_ev12")
            a(f"""
            v_writelane_b32 v{T}, s{S_TMP}, 2
            s_nop 1
            buffer_load_dword v{V_CHK}, v{T}, {sr(SRD_DBG,4)}, s{S_TMP2} offen sc0 sc1
            s_waitcnt vmcnt({nIss + 1}) lgkmcnt(0)
            s_branch {P}_afterwait
            """)
            a.label(P + "_ev14")
            a(f"""
            s_cmp_eq_u32 s{S_WQ}, 0
            s_cbranch_scc0 {P}_ev14b
            s_lshl_b32 s{S_TMP}, s{S_MT}, 11
            s_sub_u32 s{S_TMP}, s{S_TMP}, 128
            v_add_u32 v{T}, s{S_TMP}, v{V_L16}
            v_max_i32 v{T}, 0, v{T}
            s_add_u32 s{S_TMP}, s{S_TMP}, 1024
            v_add_u32 v{T+1}, s{S_TMP}, v{V_L16}
            s_mov_b32 m0, {G1_STAT}
            s_nop 0
            buffer_load_dwordx4 v{T}, {sr(SRD_ST,4)}, 0 offen sc0 sc1 lds
            s_mov_b32 m0, {G1_STAT + 1024}
            s_nop 0
            buffer_load_dwordx4 v{T+1}, {sr(SRD_ST,4)}, 0 offen sc0 sc1 lds
            buffer_load_dwordx4 v{T+1}, {sr(SRD_ST,4)}, 0 offen offset:1024 sc0 sc1 lds
            s_waitcnt vmcnt({nIss + 3}) lgkmcnt(0)
            s_branch {P}_afterwait
            """)
            a.label(P + "_ev14b")
            a(f"""
            s_mul_i32 s{S_TMP}, s{S_WQ}, 3072
            s_sub_u32 s{S_TMP}, s{S_TMP}, 3072
            s_add_u32 m0, s{S_TMP}, {G1_CSP}
            s_lshl_b32 s{S_TMP2}, s{S_NTI}, 13
            s_add_u32 s{S_TMP2}, s{S_TMP2}, s{S_TMP}
            s_add_u32 s{S_TMP2}, s{S_TMP2}, 65536
            buffer_load_dwordx4 v{V_L16}, {sr(SRD_ST,4)}, s{S_TMP2} offen sc0 sc1 lds
            buffer_load_dwordx4 v{V_L16}, {sr(SRD_ST,4)}, s{S_TMP2} offen offset:1024 sc0 sc1 lds
            s_cmp_eq_u32 s{S_WQ}, 3
            s_cselect_b32 s{S_TMP}, {LDS_DUMP}, m0
            s_mov_b32 m0, s{S_TMP}
            s_nop 0
            buffer_load_dwordx4 v{V_L16}, {sr(SRD_ST,4)}, s{S_TMP2} offen offset:2048 sc0 sc1 lds
            s_waitcnt vmcnt({nIss + 3}) lgkmcnt(0)
            s_branch {P}_afterwait
            """)
    a.label(P + "_post")
    if STAMP:
        a(f"""
        s_waitcnt lgkmcnt(0)
        v_writelane_b32 v{V_STAMP}, s{S_SB}, 31
        """)
    stamp_now(a, 34)
    if FUSE:
        if G == 0:
            a(f"""
            v_mov_b32 v{T}, 0
            v_writelane_b32 v{T}, 32, 0
            v_writelane_b32 v{T}, 8, 1
            v_writelane_b32 v{T}, 32, 2
            s_nop 1
            v_cmp_ne_u32 vcc, v{T}, v{V_CHK}
            s_nop 3
            s_and_b32 s{S_TMP}, vcc_lo, 7
            """)
            if "forceslow" in OPTS: a(f"s_mov_b32 s{S_TMP}, 1")
            a(f"""
            v_mov_b32 v{T}, {G1_VERD}
            v_mov_b32 v{T+1}, s{S_TMP}
            s_cmp_eq_u32 s{S_WAVE}, 0
            s_cbranch_scc0 {P}_red
            ds_write_b32 v{T}, v{T+1}
            """)
        a.label(P + "_red")
        if G == 0:
            a(f"""
            s_lshl_b32 s{S_TMP}, s{S_WQ}, 8
            v_lshl_add_u32 v{T}, v{V_LANE}, 2, s{S_TMP}  ; thread * 4
            v_add_u32 v{T+1}, {G1_CSP}, v{T}
            """)
            for m in range(8):
                a(f"ds_read_b32 v{V_XF+m}, v{T+1} offset:{1024*m}")
            a(f"""
            v_min_u32 v{T}, {4*NCOL - 4}, v{T}
            v_add_u32 v{T}, {G1_CS}, v{T}
            v_cmp_gt_u32 vcc, {4*NCOL + G1_CSP}, v{T+1}
            s_waitcnt lgkmcnt(0)
            """)
            for m in range(1, 8):
                a(f"v_add_f32 v{V_XF}, v{V_XF}, v{V_XF+m}")
            a(f"""
            s_and_saveexec_b64 {sr(S_TMP2)}, vcc
            ds_write_b32 v{T}, v{V_XF}
            s_mov_b64 exec, -1
            s_waitcnt lgkmcnt(0)
            """)
        a(f"""
        s_barrier
        v_mov_b32 v{T}, {G1_VERD}
        ds_read_b32 v{T+1}, v{T}
        s_waitcnt lgkmcnt(0)
        v_readfirstlane_b32 s{S_TMP}, v{T+1}
        s_nop 3
        s_cmp_eq_u32 s{S_TMP}, 0
        s_cbranch_scc1 {P}_fast
        s_barrier
        s_mov_b32 s{SRD_X+2}, {2048*2048}
        s_mov_b32 s{SRD_W+2}, {1024*WP}
        s_mov_b32 s{S_J}, s{S_WAVE}
        """)
        a.label(P + "_slow1")
        a(f"""
        s_lshl_b32 s{S_TMP}, s{S_MT}, 8
        s_add_u32 s{S_TMP}, s{S_TMP}, s{S_J}
        s_sub_u32 s{S_TMP}, s{S_TMP}, 16
        s_max_i32 s{S_TMP}, s{S_TMP}, 0
        s_lshl_b32 s{S_TMP}, s{S_TMP}, 11
        buffer_load_dwordx4 {vr(V_XF)}, v{V_L16}, {sr(SRD_X,4)}, s{S_TMP} offen
        buffer_load_dwordx4 {vr(V_XF+4)}, v{V_L16}, {sr(SRD_X,4)}, s{S_TMP} offen offset:1024
        s_waitcnt vmcnt(0)
        """)
        row_stats(a, V_XF, V_WF, V_WF + 16, V_WF + 20, V_WF + 21)
        a(f"""
        s_lshl_b32 s{S_TMP}, s{S_J}, 3
        s_add_u32 s{S_TMP}, s{S_TMP}, {G1_STAT}
        v_mov_b32 v{T}, s{S_TMP}
        ds_write_b64 v{T}, {vr(V_WF+16,2)}
        s_add_u32 s{S_J}, s{S_J}, 8
        s_cmp_lt_u32 s{S_J}, 272
        s_cbranch_scc1 {P}_slow1
        v_min_u32 v{T}, {CH-1}, v{V_LANE}
        """)
        if qkv:
            a(f"""
            v_cmp_le_u32 vcc, 12, v{T}
            s_nop 1
            v_cndmask_b32 v{T+1}, 0, 1, vcc              ; hh
            v_mul_u32_u24 v{T+2}, 12, v{T+1}
            v_sub_u32 v{T+2}, v{T}, v{T+2}
            v_lshrrev_b32 v{T+3}, 2, v{T+2}              ; part
            v_and_b32 v{T+2}, 3, v{T+2}
            v_lshlrev_b32 v{T+3}, 11, v{T+3}
            v_lshl_add_u32 v{T+3}, v{T+1}, 6, v{T+3}
            v_lshl_add_u32 v{T+3}, v{T+2}, 4, v{T+3}
            s_lshl_b32 s{S_TMP}, s{S_JT}, 7
            v_add_u32 v{T+3}, s{S_TMP}, v{T+3}
            """)
        else:
            a(f"""
            s_mul_i32 s{S_TMP}, s{S_JT}, 448
            v_lshl_add_u32 v{T+3}, v{T}, 4, s{S_TMP}
            """)
        for r in range(8):
            a(f"v_mov_b32 v{V_WF+r}, 0")
        a(f"""
        s_mul_i32 s{S_TMP}, s{S_WAVE}, {128*WP}
        s_mov_b32 s{S_J}, 0
        """)
        a.label(P + "_slow2")
        a(f"""
        buffer_load_dwordx4 {vr(V_XF)}, v{T+3}, {sr(SRD_W,4)}, s{S_TMP} offen
        s_add_u32 s{S_TMP}, s{S_TMP}, {WP}
        s_add_u32 s{S_J}, s{S_J}, 1
        s_waitcnt vmcnt(0)
        """)
        for r in range(4):
            a(f"""
            v_lshlrev_b32 v{V_XF+4}, 16, v{V_XF+r}
            v_and_b32 v{V_XF+5}, 0xffff0000, v{V_XF+r}
            v_pk_add_f32 {vr(V_WF+2*r,2)}, {vr(V_WF+2*r,2)}, {vr(V_XF+4,2)}
            """)
        a(f"""
        s_cmp_lt_u32 s{S_J}, 128
        s_cbranch_scc1 {P}_slow2
        s_lshl_b32 s{S_TMP}, s{S_WAVE}, 10
        s_add_u32 s{S_TMP}, s{S_TMP}, {G1_CSP}
        v_lshl_add_u32 v{T}, v{T}, 5, s{S_TMP}
        ds_write_b128 v{T}, {vr(V_WF)}
        ds_write_b128 v{T}, {vr(V_WF+4)} offset:16
        v_mov_b32 v{T}, {G1_VERD}
        v_mov_b32 v{T+1}, 0
        ds_write_b32 v{T}, v{T+1}
        s_waitcnt lgkmcnt(0)
        s_barrier
        s_branch {P}_red
        """)
        a.label(P + "_fast")
    if "nowarm2" not in OPTS:
        a(f"""
        s_mov_b32 s{SRD_XA}, s{S_WOP}
        s_mov_b32 s{SRD_XA+1}, s{S_WOP+1}
        s_mov_b32 s{SRD_XA+2}, {1024*2048}
        s_mov_b32 s{SRD_W}, s{S_W2P}
        s_mov_b32 s{SRD_W+1}, s{S_W2P+1}
        s_mov_b32 s{SRD_W+2}, {3584*2048}
        s_lshl_b32 s{S_TMP}, s{S_GW}, 2
        buffer_load_dwordx4 {vr(V_HF)}, v{V_L16}, {sr(SRD_XA,4)}, s{S_GW} offen
        """)
        for i in range(4):
            a(f"buffer_load_dwordx4 {vr(V_HF)}, v{V_L16}, {sr(SRD_W,4)}, s{S_TMP} offen offset:{i*1024}")
    if "slabwarm" in OPTS:
        a(f"""
        s_add_u32 s{SRD_WW}, s{S_WS}, {64 << 20}
        s_addc_u32 s{SRD_WW+1}, s{S_WS+1}, 0
        s_and_b32 s{SRD_WW+1}, s{SRD_WW+1}, 0xffff
        s_mov_b32 s{SRD_WW+2}, {16 << 20}
        s_and_b32 s{S_TMP}, s2, 3
        s_lshr_b32 s{S_TMP2}, s{S_WAVE}, 1
        s_cmp_eq_u32 s{S_TMP}, s{S_TMP2}
        s_cselect_b32 s{SRD_WW+2}, 0, s{SRD_WW+2}
        s_lshl_b32 s{S_TMP}, s{S_GW}, 3
        s_add_u32 s{S_TMP2}, s{S_TMP}, 4096
        """)
        for i in range(8):
            a(f"buffer_load_dwordx4 {vr(V_WD)}, v{V_L16}, {sr(SRD_WW,4)}, s{S_TMP if i < 4 else S_TMP2} offen offset:{(i%4)*1024}")
    stamp_now(a, 35)
    for i in range(4):
        a(f"""
        s_lshl_b32 s{S_TMP}, s{S_MW}, 6
        s_lshl_b32 s{S_TMP2}, s{S_NW}, 5
        s_xor_b32 s{S_TMP2}, s{S_TMP2}, {16*i}
        s_add_u32 s{S_TMP}, s{S_TMP}, s{S_TMP2}
        s_add_u32 s{S_TB+i}, s{S_TMP}, {128*G}
        """)
    V_ST = V_XF; V_CSV = V_WF
    if FUSE:
        for i in range(4):
            a(f"""
            s_add_u32 s{S_TMP}, s{S_TB+i}, {16 + G1_STAT//8}
            v_add_u32 v{T+4}, s{S_TMP}, v{V_TT}
            v_lshlrev_b32 v{T+4}, 3, v{T+4}
            ds_read_b64 {vr(V_ST+2*i,2)}, v{T+4}
            """)
        if halo:
            a(f"""
            v_lshlrev_b32 v{T+4}, 3, v{V_TT}
            v_add_u32 v{T+4}, {G1_STAT}, v{T+4}
            ds_read_b64 {vr(V_ST+8,2)}, v{T+4}
            """)
        for s_ in range(NB):
            a(f"""
            s_lshl_b32 s{S_TMP}, s{S_BLK+s_}, 6
            s_add_u32 s{S_TMP}, s{S_TMP}, {G1_CS}
            v_lshl_add_u32 v{T+4}, v{V_GG}, 4, s{S_TMP}
            ds_read_b128 {vr(V_CSV+4*s_)}, v{T+4}
            """)
        a("s_waitcnt lgkmcnt(0)")
    def fixup(ab, s, st, o, relu):
        c = V_CSV + 4 * s
        if FUSE:
            a(f"""
            v_pk_fma_f32 {vr(ab,2)}, {vr(c,2)}, {vr(st,2)}, {vr(ab,2)} op_sel_hi:[1,0,1] neg_lo:[0,1,0] neg_hi:[0,1,0]
            v_pk_fma_f32 {vr(ab+2,2)}, {vr(c+2,2)}, {vr(st,2)}, {vr(ab+2,2)} op_sel_hi:[1,0,1] neg_lo:[0,1,0] neg_hi:[0,1,0]
            v_pk_mul_f32 {vr(ab,2)}, {vr(ab,2)}, {vr(st,2)} op_sel:[0,1] op_sel_hi:[1,1]
            v_pk_mul_f32 {vr(ab+2,2)}, {vr(ab+2,2)}, {vr(st,2)} op_sel:[0,1] op_sel_hi:[1,1]
            """)
        a(f"""
        v_cvt_pk_bf16_f32 v{o}, v{ab}, v{ab+1}
        v_cvt_pk_bf16_f32 v{o+1}, v{ab+2}, v{ab+3}
        """)
        if relu:
            a(f"""
            v_pk_max_i16 v{o}, v{o}, 0
            v_pk_max_i16 v{o+1}, v{o+1}, 0
            """)
    V_SIG = T + 8
    a(f"""
    v_and_b32 v{T}, 1, v{V_GG}
    v_lshrrev_b32 v{T+1}, 1, v{V_GG}
    v_lshl_or_b32 v{V_SIG}, v{T}, 1, v{T+1}
    """)
    if not qkv:
        V_PA = T + 9; V_SA = T + 10
        a(f"""
        v_lshl_add_u32 v{V_PA}, v{V_SIG}, 4, v{V_TT}
        v_lshlrev_b32 v{V_PA}, 4, v{V_PA}            ; (sigma*16 + t)*16
        s_lshl_b32 s{S_TMP}, s{S_NW}, 1
        v_add_u32 v{T+1}, s{S_TMP}, v{T+1}
        v_lshl_add_u32 v{V_SA}, v{T+1}, 4, v{V_TT}
        v_lshlrev_b32 v{V_SA}, 4, v{V_SA}
        v_lshl_add_u32 v{V_SA}, v{T}, 3, v{V_SA}
        """)
        for i in range(4):
            a(f"""
            s_lshr_b32 s{S_TMP}, s{S_TB+i}, 4
            s_lshl_b32 s{S_TMP2}, s{S_MT}, 4
            s_add_u32 s{S_TMP}, s{S_TMP}, s{S_TMP2}
            s_mul_i32 s{S_TB+i}, s{S_TMP}, {MBLK_PITCH}
            """)
        a(f"""
        s_mul_i32 s{S_TMP2}, s{S_JT}, 7
        s_add_u32 s{S_TMP2}, s{S_TMP2}, 32
        """)
        for ps in range(4):
            a(f"""
            s_lshr_b32 s{S_TMP}, s{S_BLK+2*ps}, 1
            s_add_u32 s{S_TMP}, s{S_TMP}, s{S_TMP2}
            s_lshl_b32 s{S_PO+ps}, s{S_TMP}, 10
            """)
        ob = [V_XF + 16, V_XF + 20, V_XF + 24, V_XF + 28]
        n = 0
        for i in range(4):
            st = V_ST + 2 * i
            for ps in range(3):
                o = ob[n % 4]; n += 1
                fixup(acc(2*ps, i), 2*ps, st, o, True)
                fixup(acc(2*ps+1, i), 2*ps+1, st, o+2, True)
                a(f"""
                s_add_u32 s{S_TMP}, s{S_TB+i}, s{S_PO+ps}
                s_nop 0
                v_permlane16_swap_b32 v{o}, v{o+2}
                v_permlane16_swap_b32 v{o+1}, v{o+3}
                s_nop 1
                buffer_store_dwordx4 {vr(o)}, v{V_PA}, {sr(SRD_O,4)}, s{S_TMP} offen {STH}
                """)
            o = ob[n % 4]; n += 1
            fixup(acc(6, i), 6, st, o, True)
            a(f"""
            s_add_u32 s{S_TMP}, s{S_TB+i}, s{S_PO+3}
            s_nop 1
            buffer_store_dwordx2 {vr(o,2)}, v{V_SA}, {sr(SRD_O,4)}, s{S_TMP} offen {STH}
            """)
        stamp_now(a, 36); stamp_now(a, 51, True)
        stamp_dump(a, S_WS, S_WAVE, 32 << 20)
        a("s_endpgm")
        return
    V_WA = T + 9
    a(f"""
    v_mul_u32_u24 v{V_WA}, {AT_PITCH}, v{V_TT}
    v_lshl_add_u32 v{V_WA}, v{V_GG}, 3, v{V_WA}      ; t*P + g*8
    """)
    ob = [V_XF + 16, V_XF + 18, V_XF + 20, V_XF + 22, V_XF + 24, V_XF + 26, V_XF + 28, V_XF + 30]
    n = 0
    for i in range(4):
        a(f"""
        s_add_u32 s{S_TMP}, s{S_TB+i}, 16
        s_mul_i32 s{S_TMP3}, s{S_TMP}, {AT_PITCH}
        """)
        for s in range(6):
            o = ob[n % 8]; n += 1
            fixup(acc(s, i), s, V_ST + 2 * i, o, False)
            a(f"""
            s_lshl_b32 s{S_TMP}, s{S_BLK+s}, 5
            s_add_u32 s{S_TMP}, s{S_TMP}, s{S_TMP3}
            v_add_u32 v{T}, s{S_TMP}, v{V_WA}
            ds_write_b64 v{T}, {vr(o,2)}
            """)
            if "slowepi" in OPTS: a("s_waitcnt lgkmcnt(0)")
    if halo:
        for s in range(2):
            o = ob[n % 8]; n += 1
            fixup(V_HACC + 4 * s, s, V_ST + 8, o, False)
            a(f"""
            s_lshl_b32 s{S_TMP}, s{S_BLK+s}, 5
            v_add_u32 v{T}, s{S_TMP}, v{V_WA}
            ds_write_b64 v{T}, {vr(o,2)}
            """)
    a(f"""
    s_waitcnt lgkmcnt(0)
    s_barrier
    """)
    stamp_now(a, 36)
    a("s_branch g1_attn")

def g1_attn(a):
    T = V_T
    V_SIG = T + 8
    a.label("g1_attn")
    VQ = 0; VK = 1; VV = 3
    VE = 5; VO = 6
    R = 8
    a(f"""
    s_lshl_b32 s{S_TMP}, s{S_WAVE}, 5                ; 32 w
    v_lshlrev_b32 v{T}, 1, v{V_TT}                   ; 2n
    v_add_u32 v{T+1}, s{S_TMP}, v{T}                 ; 32w + 2n
    v_add_u32 v{T+2}, 16, v{T+1}
    v_mul_u32_u24 v{T+2}, {AT_PITCH}, v{T+2}
    v_lshl_add_u32 v{VQ}, v{V_GG}, 4, v{T+2}         ; + g*16
    v_add_u32 v{VK+1}, 64, v{VQ}
    v_add_u32 v{T+2}, -16, v{T+1}                    ; rho_k(kb=0)
    v_max_i32 v{T+2}, 0, v{T+2}
    v_mul_u32_u24 v{T+2}, {AT_PITCH}, v{T+2}
    v_lshl_add_u32 v{T+2}, v{V_GG}, 4, v{T+2}
    v_add_u32 v{VK}, 64, v{T+2}
    v_lshrrev_b32 v{T}, 2, v{V_TT}
    v_lshl_add_u32 v{T}, v{V_GG}, 2, v{T}            ; a
    v_lshlrev_b32 v{T}, 1, v{T}
    v_add_u32 v{T}, s{S_TMP}, v{T}                   ; 32w + 2a
    v_and_b32 v{T+3}, 3, v{V_LANE}
    v_lshlrev_b32 v{T+3}, 3, v{T+3}
    v_add_u32 v{T+3}, 128, v{T+3}                    ; v part + c*8
    v_add_u32 v{T+2}, 16, v{T}
    v_mul_u32_u24 v{T+2}, {AT_PITCH}, v{T+2}
    v_add_u32 v{VV+1}, v{T+2}, v{T+3}
    v_add_u32 v{T+2}, -16, v{T}
    v_max_i32 v{T+2}, 0, v{T+2}
    v_mul_u32_u24 v{T+2}, {AT_PITCH}, v{T+2}
    v_add_u32 v{VV}, v{T+2}, v{T+3}
    v_lshlrev_b32 v{T}, 2, v{V_GG}
    v_sub_u32 v{VE}, v{V_TT}, v{T}
    """)
    for kb in range(2):
        for i in range(4):
            a(f"""
            v_add_u32 v{T}, {(16*(1-kb) - i)}, v{VE}
            v_cmp_ge_u32 {sr(S_MASK + 2*(4*kb+i))}, 7, v{T}
            """)
    a(f"""
    s_or_b32 s{S_TMP}, s{S_MT}, s{S_WAVE}
    s_cmp_eq_u32 s{S_TMP}, 0
    s_cbranch_scc0 g1_attn_m
    """)
    for i in range(4):
        a(f"s_mov_b64 {sr(S_MASK + 2*i)}, 0")
    a.label("g1_attn_m")
    a(f"""
    v_and_b32 v{T}, 7, v{V_TT}
    v_lshlrev_b32 v{T}, 1, v{T}
    v_lshl_add_u32 v{T}, v{V_SIG}, 4, v{T}
    v_lshlrev_b32 v{T}, 4, v{T}
    v_lshrrev_b32 v{T+1}, 3, v{V_TT}
    s_mov_b32 s{S_TMP}, {MBLK_PITCH}
    v_mul_lo_u32 v{T+1}, v{T+1}, s{S_TMP}
    v_add_u32 v{VO}, v{T}, v{T+1}
    s_lshl_b32 s{S_TMP}, s{S_MT}, 4
    s_lshl_b32 s{S_TMP2}, s{S_WAVE}, 1
    s_add_u32 s{S_TMP}, s{S_TMP}, s{S_TMP2}
    s_mul_i32 s{S_TMP}, s{S_TMP}, {MBLK_PITCH}
    s_lshl_b32 s{S_TMP2}, s{S_JT}, 11
    s_add_u32 s{S_TMP3}, s{S_TMP}, s{S_TMP2}
    v_mov_b32 v{T+10}, 0xff800000                    ; -inf
    v_mov_b32 v{T+4}, 0x3e3504f3
    v_mov_b32 v{T+5}, 0x3e3504f3
    v_mov_b32 v{T+6}, 0x3fb8aa3b
    v_mov_b32 v{T+7}, 0x3fb8aa3b
    """)
    NEG = T + 10; CSC = T + 4; CL2 = T + 6
    units = [(hh, p) for hh in range(2) for p in range(2)]
    UR = 32
    for u, (hh, p) in enumerate(units):
        b = R + u * UR
        off = p * AT_PITCH + hh * 192
        a(f"""
        ds_read_b128 {vr(b)}, v{VQ} offset:{off}
        ds_read_b128 {vr(b+4)}, v{VK} offset:{off}
        ds_read_b128 {vr(b+8)}, v{VK+1} offset:{off}
        """)
        for db in range(2):
            for kb in range(2):
                a(f"ds_read_b64_tr_b16 {vr(b+12+4*db+2*kb,2)}, v{VV+kb} offset:{off+32*db}")
    a("s_waitcnt lgkmcnt(0)")
    for u in range(4):
        b = R + u * UR
        a(f"""
        v_mfma_f32_16x16x32_bf16 {vr(b+20)}, {vr(b+4)}, {vr(b)}, 0
        v_mfma_f32_16x16x32_bf16 {vr(b+24)}, {vr(b+8)}, {vr(b)}, 0
        """)
    a("s_nop 7")
    for u, (hh, p) in enumerate(units):
        b = R + u * UR
        z = b + 20
        t0 = b + 28; t1 = b + 29
        for i in range(0, 8, 2):
            a(f"""
            v_cvt_pk_bf16_f32 v{t0}, v{z+i}, v{z+i+1}
            v_lshlrev_b32 v{z+i}, 16, v{t0}
            v_and_b32 v{z+i+1}, 0xffff0000, v{t0}
            v_pk_mul_f32 {vr(z+i,2)}, {vr(z+i,2)}, {vr(CSC,2)}
            v_cvt_pk_bf16_f32 v{t0}, v{z+i}, v{z+i+1}
            v_lshlrev_b32 v{z+i}, 16, v{t0}
            v_and_b32 v{z+i+1}, 0xffff0000, v{t0}
            v_cndmask_b32 v{z+i}, v{NEG}, v{z+i}, {sr(S_MASK+2*i)}
            v_cndmask_b32 v{z+i+1}, v{NEG}, v{z+i+1}, {sr(S_MASK+2*i+2)}
            """)
        a(f"""
        v_max3_f32 v{t0}, v{z}, v{z+1}, v{z+2}
        v_max3_f32 v{t0}, v{t0}, v{z+3}, v{z+4}
        v_max3_f32 v{t0}, v{t0}, v{z+5}, v{z+6}
        v_max_f32 v{t0}, v{t0}, v{z+7}
        """)
        xlane_max(a, t0, t1)
        for i in range(0, 8, 2):
            a(f"""
            v_pk_add_f32 {vr(z+i,2)}, {vr(z+i,2)}, {vr(t0,2)} op_sel_hi:[1,0] neg_lo:[0,1] neg_hi:[0,1]
            v_pk_mul_f32 {vr(z+i,2)}, {vr(z+i,2)}, {vr(CL2,2)}
            """)
        for i in range(8):
            a(f"v_exp_f32 v{z+i}, v{z+i}")
        a(f"""
        s_nop 0
        v_pk_add_f32 {vr(t0,2)}, {vr(z,2)}, {vr(z+2,2)}
        v_pk_add_f32 {vr(t0+2,2)}, {vr(z+4,2)}, {vr(z+6,2)}
        v_pk_add_f32 {vr(t0,2)}, {vr(t0,2)}, {vr(t0+2,2)}
        v_add_f32 v{t0}, v{t0}, v{t1}
        """)
        xlane_sum(a, t0, t1)
        a(f"""
        v_rcp_f32 v{t0}, v{t0}
        s_nop 0
        """)
        for i in range(0, 8, 2):
            a(f"v_pk_mul_f32 {vr(z+i,2)}, {vr(z+i,2)}, {vr(t0,2)} op_sel_hi:[1,0]")
        for i in range(4):
            a(f"v_cvt_pk_bf16_f32 v{b+i}, v{z+2*i}, v{z+2*i+1}")
        a(f"""
        s_nop 1
        v_mfma_f32_16x16x32_bf16 {vr(b+4)}, {vr(b+12)}, {vr(b)}, 0
        v_mfma_f32_16x16x32_bf16 {vr(b+8)}, {vr(b+16)}, {vr(b)}, 0
        """)
    a("s_nop 7")
    for u, (hh, p) in enumerate(units):
        b = R + u * UR
        o = b + 20
        a(f"""
        v_cvt_pk_bf16_f32 v{o}, v{b+4}, v{b+5}
        v_cvt_pk_bf16_f32 v{o+1}, v{b+6}, v{b+7}
        v_cvt_pk_bf16_f32 v{o+2}, v{b+8}, v{b+9}
        v_cvt_pk_bf16_f32 v{o+3}, v{b+10}, v{b+11}
        s_nop 1
        v_permlane16_swap_b32 v{o}, v{o+2}
        v_permlane16_swap_b32 v{o+1}, v{o+3}
        s_nop 1
        buffer_store_dwordx4 {vr(o)}, v{VO}, {sr(SRD_O,4)}, s{S_TMP3} offen offset:{p*16 + hh*1024} {STF}
        """)
    stamp_now(a, 37); stamp_now(a, 51, True)
    stamp_dump(a, S_WS, S_WAVE, 32 << 20)
    a("s_endpgm")

def gen_g1(a):
    MAP4 = f"""
    s_and_b32 s{S_MT}, s{S_TMP}, 1
    s_lshl_b32 s{S_MT}, s{S_MT}, 2
    s_and_b32 s{S_TMP3}, s{S_TMP2}, 3
    s_add_u32 s{S_MT}, s{S_MT}, s{S_TMP3}     ; mt
    s_lshr_b32 s{S_TMP2}, s{S_TMP2}, 2        ; i8
    s_lshr_b32 s{S_TMP}, s{S_TMP}, 1          ; ng
    s_lshl_b32 s{S_JT}, s{S_TMP}, 2
    s_and_b32 s{S_TMP3}, s{S_TMP2}, 3
    s_add_u32 s{S_JT}, s{S_JT}, s{S_TMP3}     ; jt
    s_lshr_b32 s{S_TMP2}, s{S_TMP2}, 2        ; type
"""
    MAP8 = f"""
    s_and_b32 s{S_MT}, s{S_TMP2}, 7           ; mt
    s_lshr_b32 s{S_TMP2}, s{S_TMP2}, 3        ; i4
    s_lshl_b32 s{S_JT}, s{S_TMP}, 1
    s_and_b32 s{S_TMP3}, s{S_TMP2}, 1
    s_add_u32 s{S_JT}, s{S_JT}, s{S_TMP3}     ; jt
    s_lshr_b32 s{S_TMP2}, s{S_TMP2}, 1        ; type
"""
    a.raw("""
.globl g1_kernel
.p2align 8
.type g1_kernel,@function
g1_kernel:""")
    a(f"""
    s_cmp_ge_u32 s2, 256
    s_cbranch_scc1 g1_exit
    s_load_dwordx4 s[{S_X}:{S_X+3}], s[0:1], 0     ; x, wqkv
    s_load_dwordx2 s[{S_W1}:{S_W1+1}], s[0:1], 32
    s_load_dwordx2 s[{S_WS}:{S_WS+1}], s[0:1], 64
    s_load_dwordx2 s[{S_WOP}:{S_WOP+1}], s[0:1], 16
    s_load_dwordx2 s[{S_DBGP}:{S_DBGP+1}], s[0:1], 56
    s_load_dwordx2 s[{S_W2P}:{S_W2P+1}], s[0:1], 40
    v_and_b32 v{V_LANE}, 63, v0
    v_lshrrev_b32 v{V_T}, 6, v0
    v_and_b32 v{V_TT}, 15, v0
    v_readfirstlane_b32 s{S_WAVE}, v{V_T}
    v_bfe_u32 v{V_GG}, v0, 4, 2
    s_nop 2
    s_cmp_lg_u32 s{S_WAVE}, 7
    s_cbranch_scc1 g1_nopf
    """)
    if "nocodepf" not in OPTS:
        code_prefetch(a, V_T + 2, V_LANE, S_PC1, "g1_kernel", "g1_end", 24576, 255)
    a.label("g1_nopf")
    a(f"""
    s_and_b32 s{S_TMP}, s2, 7                 ; xcd
    s_lshr_b32 s{S_TMP2}, s2, 3               ; idx
    """)
    a(MAP8 if "map8" in OPTS else MAP4)
    a(f"""
    s_and_b32 s{S_WQ}, s{S_WAVE}, 3
    s_and_b32 s{S_NW}, s{S_WAVE}, 1
    s_bfe_u32 s{S_MW}, s{S_WAVE}, 0x10001
    s_lshr_b32 s{S_TMP3}, s{S_WAVE}, 2        ; G
    s_lshl_b32 s80, s2, 3
    s_add_u32 s80, s80, s{S_WAVE}
    v_lshlrev_b32 v{V_L16}, 4, v{V_LANE}
    s_waitcnt lgkmcnt(0)
    """)
    if FUSE and "bulk" in OPTS:
        a(f"""
        s_mov_b32 s64, s{S_W}
        s_and_b32 s65, s{S_W+1}, 0xffff
        s_mov_b32 s66, {1024*6144}
        s_mov_b32 s67, 0x20000
        s_mov_b32 s72, s{S_W1}
        s_and_b32 s73, s{S_W1+1}, 0xffff
        s_mov_b32 s74, {1024*7168}
        s_mov_b32 s75, 0x20000
        s_mul_i32 s81, s80, 3072
        s_lshl_b32 s80, s80, 12
        """)
        for i in range(3):
            a(f"buffer_load_dwordx4 {vr(V_HF)}, v{V_L16}, s[64:67], s81 offen offset:{1024*i}")
        for i in range(4):
            a(f"buffer_load_dwordx4 {vr(V_HF)}, v{V_L16}, s[72:75], s80 offen offset:{1024*i}")
    a(f"""
    s_add_u32 s{SRD_X}, s{S_X if FUSE else S_WS}, {0 if FUSE else XN_OFF}
    s_addc_u32 s{SRD_X+1}, s{(S_X if FUSE else S_WS)+1}, 0
    s_and_b32 s{SRD_X+1}, s{SRD_X+1}, 0xffff
    s_mov_b32 s{SRD_X+2}, {2048*2048}
    s_mov_b32 s{SRD_X+3}, 0x20000
    s_mov_b32 s{SRD_XA}, s{SRD_X}
    s_mov_b32 s{SRD_XA+1}, s{SRD_X+1}
    s_mov_b32 s{SRD_XA+2}, {2048*2048}
    s_mov_b32 s{SRD_XA+3}, 0x20000
    s_mov_b32 s{SRD_O}, s{S_WS}
    s_and_b32 s{SRD_O+1}, s{S_WS+1}, 0xffff
    s_mov_b32 s{SRD_O+2}, {A2_BYTES}
    s_mov_b32 s{SRD_O+3}, 0x20000
    s_lshl_b32 s{S_TMP2}, s{S_TMP2}, 1
    s_add_u32 s{S_TMP2}, s{S_TMP2}, s{S_TMP3}
    """)
    if FUSE:
        a(f"""
        s_cmp_lg_u32 s2, 255
        s_cbranch_scc1 g1_noz
        s_add_u32 s64, s{S_WS}, {30 << 20}
        s_addc_u32 s65, s{S_WS+1}, 0
        s_and_b32 s65, s65, 0xffff
        s_mov_b32 s66, 8192
        s_mov_b32 s67, 0x20000
        v_lshlrev_b32 v{V_T}, 4, v0
        v_mov_b32 v4, 0
        v_mov_b32 v5, 0
        v_mov_b32 v6, 0
        v_mov_b32 v7, 0
        buffer_store_dwordx4 v[4:7], v{V_T}, s[64:67], 0 offen
        """)
        a.label("g1_noz")
    a(f"""
    s_cmp_eq_u32 s{S_TMP2}, 0
    s_cbranch_scc1 g1_00
    s_cmp_eq_u32 s{S_TMP2}, 1
    s_cbranch_scc1 g1_01
    s_cmp_eq_u32 s{S_TMP2}, 2
    s_cbranch_scc1 g1_10
    s_branch g1_11
    """)
    a.label("g1_exit")
    a("s_endpgm")
    for typ in range(2):
        for G in range(2):
            g1_path(a, typ, G)
    g1_attn(a)
    a.label("g1_end")
    a("s_endpgm")

def gen_k0(a):
    a.raw("""
.globl k0_kernel
.p2align 8
.type k0_kernel,@function
k0_kernel:""")
    DPP = "row_mask:0xf bank_mask:0xf"
    def reduce64(v, t):
        a(f"""
        s_nop 1
        v_add_f32_dpp v{t}, v{v}, v{v} quad_perm:[1,0,3,2] {DPP}
        s_nop 1
        v_add_f32_dpp v{v}, v{t}, v{t} quad_perm:[2,3,0,1] {DPP}
        s_nop 1
        v_add_f32_dpp v{t}, v{v}, v{v} row_half_mirror {DPP}
        s_nop 1
        v_add_f32_dpp v{v}, v{t}, v{t} row_mirror {DPP}
        """)
        xlane_sum(a, v, t)
    a(f"""
    s_cmp_ge_u32 s2, 256
    s_cbranch_scc1 k0_exit
    s_load_dwordx4 s[4:7], s[0:1], 0          ; x, wqkv
    s_load_dwordx2 s[8:9], s[0:1], 32         ; w1
    s_load_dwordx2 s[10:11], s[0:1], 64       ; ws
    v_lshrrev_b32 v1, 6, v0
    v_and_b32 v0, 63, v0
    v_lshlrev_b32 v2, 4, v0                   ; lane*16
    v_readfirstlane_b32 s3, v1
    s_lshl_b32 s28, s2, 3
    s_nop 2
    s_add_u32 s28, s28, s3
    s_lshl_b32 s29, s28, 11
    s_waitcnt lgkmcnt(0)
    s_mov_b32 s12, s4
    s_and_b32 s13, s5, 0xffff
    s_mov_b32 s14, {2048*2048}
    s_mov_b32 s15, 0x20000
    buffer_load_dwordx4 v[4:7], v2, s[12:15], s29 offen
    buffer_load_dwordx4 v[8:11], v2, s[12:15], s29 offen offset:1024
    s_mov_b32 s16, s6
    s_and_b32 s17, s7, 0xffff
    s_mov_b32 s18, {1024*6144}
    s_mov_b32 s19, 0x20000
    s_mov_b32 s20, s8
    s_and_b32 s21, s9, 0xffff
    s_mov_b32 s22, {1024*7168}
    s_mov_b32 s23, 0x20000
    s_add_u32 s24, s10, {XN_OFF}
    s_addc_u32 s25, s11, 0
    s_and_b32 s25, s25, 0xffff
    s_mov_b32 s26, {2048*2048}
    s_mov_b32 s27, 0x20000
    s_cmp_lg_u32 s2, 0
    s_cbranch_scc1 k0_noz
    s_add_u32 s32, s10, {30 << 20}
    s_addc_u32 s33, s11, 0
    s_and_b32 s33, s33, 0xffff
    s_mov_b32 s34, 8192
    s_mov_b32 s35, 0x20000
    s_lshl_b32 s30, s3, 10
    v_mov_b32 v60, 0
    v_mov_b32 v61, 0
    v_mov_b32 v62, 0
    v_mov_b32 v63, 0
    buffer_store_dwordx4 v[60:63], v2, s[32:35], s30 offen
    s_waitcnt vmcnt(0)
k0_noz:
    s_mul_i32 s30, s28, 3072
    s_lshl_b32 s31, s28, 12
    """)
    nw = 0
    if "nowarm1" not in OPTS:
        a(f"""
        s_mov_b32 s18, {256*6144}
        s_mov_b32 s22, {256*7168}
        s_lshl_b32 s30, s28, 10
        buffer_load_dwordx4 v[32:35], v2, s[16:19], s30 offen
        buffer_load_dwordx4 v[36:39], v2, s[20:23], s30 offen
        """)
        nw = 2
    a(f"s_waitcnt vmcnt({nw})")
    for r in range(8):
        a(f"""
        v_lshlrev_b32 v{12+2*r}, 16, v{4+r}
        v_and_b32 v{13+2*r}, 0xffff0000, v{4+r}
        """)
    a("v_add_f32 v28, v12, v13")
    for r in range(14, 28):
        a(f"v_add_f32 v28, v28, v{r}")
    reduce64(28, 29)
    a("v_mul_f32 v28, 0x3a800000, v28")
    a("""
    v_sub_f32 v30, v12, v28
    v_mul_f32 v31, v30, v30
    """)
    for r in range(13, 28):
        a(f"""
        v_sub_f32 v30, v{r}, v28
        v_fmac_f32 v31, v30, v30
        """)
    reduce64(31, 29)
    a(f"""
    v_mul_f32 v31, 0x3a800000, v31            ; var
    v_cvt_pk_bf16_f32 v29, v28, v31
    v_lshlrev_b32 v28, 16, v29                ; m_b
    v_and_b32 v31, 0xffff0000, v29            ; v_b
    v_add_f32 v31, 0x3727c5ac, v31
    v_cvt_pk_bf16_f32 v31, v31, v31
    v_and_b32 v31, 0xffff0000, v31
    v_sqrt_f32 v31, v31
    s_nop 0
    v_cvt_pk_bf16_f32 v31, v31, v31
    v_and_b32 v31, 0xffff0000, v31
    v_rcp_f32 v31, v31
    s_nop 0
    """)
    for r in range(8):
        a(f"""
        v_sub_f32 v{12+2*r}, v{12+2*r}, v28
        v_sub_f32 v{13+2*r}, v{13+2*r}, v28
        v_cvt_pk_bf16_f32 v29, v{12+2*r}, v{13+2*r}
        v_lshlrev_b32 v{12+2*r}, 16, v29
        v_and_b32 v{13+2*r}, 0xffff0000, v29
        v_mul_f32 v{12+2*r}, v{12+2*r}, v31
        v_mul_f32 v{13+2*r}, v{13+2*r}, v31
        v_cvt_pk_bf16_f32 v{4+r}, v{12+2*r}, v{13+2*r}
        """)
    a("""
    buffer_store_dwordx4 v[4:7], v2, s[24:27], s29 offen
    buffer_store_dwordx4 v[8:11], v2, s[24:27], s29 offen offset:1024
    """)
    a.label("k0_exit")
    a("s_endpgm")

G2_NB = 6
G2_LDS = G2_NB * 16384
def code_prefetch(a, vtmp, vlane, stmp, start_label, end_label, nbytes, vdst):
    a(f"""
    s_getpc_b64 {sr(stmp)}
    """)
    a.label(start_label + "_pc")
    a(f"""
    s_add_u32 s{stmp}, s{stmp}, {start_label}-{start_label}_pc
    s_addc_u32 s{stmp+1}, s{stmp+1}, -1
    v_lshlrev_b32 v{vtmp}, 7, v{vlane}
    """)
    for i in range((nbytes + 8191) // 8192):
        if i: a(f"v_add_u32 v{vtmp}, 0x2000, v{vtmp}")
        a(f"""
        v_min_u32 v{vtmp+1}, {end_label}-{start_label}-4, v{vtmp}
        global_load_dword v{vdst}, v{vtmp+1}, {sr(stmp)}
        """)

def gen_g2(a):
    NBUF = G2_NB; D = NBUF - 1
    NTB = "nt " if "g2ntB" in OPTS else ""
    SRD_A = 12; SRD_B = 16; SRD_XX = 20; SRD_OUT = 24
    S_WO = 4; S_W2 = 6; S_XP = 8; S_OUTP = 10; S_WSP = 28
    S_WV = 30; S_GK = 31; S_MW2 = 32; S_MT2 = 33; S_NT = 34; S_TRIP = 35
    S_KAA = 36; S_KBB = 37; S_MB0 = 38; S_T = 39; S_T2 = 40; S_T3 = 41; S_PC = 42; S_P = 44; S_KA0 = 45; S_WOL = 46; S_WOH = 47; S_SZ = 48; S_CNT = 49
    V_AB = 0
    V_W = V_AB + NBUF * 16
    V_AC = V_W + 64
    V_XR = V_AC + 32
    V_AA = V_XR + 8
    V_DBB = V_AA + 2
    V_RBB = V_DBB + 2
    T = V_RBB + 8
    VL = T + 14; VT = T + 15; VG = T + 16
    global G2_VGPRS
    G2_VGPRS = 256 if STAMP else VG + 2
    def ab(u, tb, kk): return V_AB + u * 16 + (tb * 2 + kk) * 4
    def w(par, s, kk): return V_W + par * 32 + (s * 2 + kk) * 4
    def ac(s, tb): return V_AC + (s * 2 + tb) * 4
    a.raw("""
.globl g2_kernel
.p2align 8
.type g2_kernel,@function
g2_kernel:""")
    a(f"""
    s_cmp_ge_u32 s2, 256
    s_cbranch_scc1 g2_exit
    s_load_dwordx2 s[{S_XP}:{S_XP+1}], s[0:1], 0
    s_load_dwordx2 s[{S_WO}:{S_WO+1}], s[0:1], 16
    s_load_dwordx2 s[{S_W2}:{S_W2+1}], s[0:1], 40
    s_load_dwordx2 s[{S_OUTP}:{S_OUTP+1}], s[0:1], 48
    s_load_dwordx2 s[{S_WSP}:{S_WSP+1}], s[0:1], 64
    v_and_b32 v{VL}, 63, v0
    v_lshrrev_b32 v{T}, 6, v0
    v_and_b32 v{VT}, 15, v0
    v_readfirstlane_b32 s{S_WV}, v{T}
    v_bfe_u32 v{VG}, v0, 4, 2
    """)
    if STAMP: a(f"v_mov_b32 v{V_STAMP}, 0")
    stamp_now(a, 32); stamp_now(a, 50, True)
    npf = 0
    if "nocodepf" not in OPTS:
        code_prefetch(a, T + 12, VL, S_PC, "g2_kernel", "g2_exit", 4096, VG + 1); npf = 1
    a(f"""
    s_and_b32 s{S_T}, s2, 7
    s_lshr_b32 s{S_T2}, s2, 3
    s_lshr_b32 s{S_MT2}, s{S_T}, 1
    s_lshl_b32 s{S_MT2}, s{S_MT2}, 2
    s_and_b32 s{S_T3}, s{S_T2}, 3
    s_add_u32 s{S_MT2}, s{S_MT2}, s{S_T3}     ; mt 0..15
    s_and_b32 s{S_NT}, s{S_T}, 1
    s_lshl_b32 s{S_NT}, s{S_NT}, 3
    s_lshr_b32 s{S_T2}, s{S_T2}, 2
    s_add_u32 s{S_NT}, s{S_NT}, s{S_T2}       ; nt 0..15
    s_lshr_b32 s{S_GK}, s{S_WV}, 2
    s_and_b32 s{S_MW2}, s{S_WV}, 3
    ; A voffsets
    s_lshl_b32 s{S_T}, s{S_MT2}, 3
    s_lshl_b32 s{S_T2}, s{S_MW2}, 1
    s_add_u32 s{S_T}, s{S_T}, s{S_T2}         ; mblk0
    s_mul_i32 s{S_T}, s{S_T}, {MBLK_PITCH}
    v_lshl_add_u32 v{V_AA}, v{VL}, 4, s{S_T}
    v_add_u32 v{V_AA+1}, {MBLK_PITCH}, v{V_AA}
    s_lshl_b32 s{S_KAA}, s{S_GK}, 11          ; K-step * 2048
    v_lshrrev_b32 v{T}, 3, v{VL}
    s_lshl_b32 s{S_T}, s{S_WV}, 4
    v_add_u32 v{T+1}, s{S_T}, v{T}            ; row (e=0)
    v_lshlrev_b32 v{T+1}, 11, v{T+1}
    s_lshl_b32 s{S_T}, s{S_NT}, 7
    v_add_u32 v{T+1}, s{S_T}, v{T+1}
    v_and_b32 v{T+2}, 1, v{VL}
    v_lshl_add_u32 v{T+1}, v{T+2}, 4, v{T+1}  ; + (c'&1)*16
    v_bfe_u32 v{T+2}, v{VL}, 1, 2             ; unit'
    v_bfe_u32 v{T+3}, v{VL}, 4, 1             ; bit1(l>>3)
    v_xor_b32 v{T+2}, v{T+2}, v{T+3}
    v_lshl_add_u32 v{V_DBB}, v{T+2}, 5, v{T+1}
    v_xor_b32 v{T+2}, 2, v{T+2}
    v_lshl_add_u32 v{V_DBB+1}, v{T+2}, 5, v{T+1}
    v_add_u32 v{V_DBB+1}, {8*2048}, v{V_DBB+1}
    s_lshl_b32 s{S_MB0}, s{S_WV}, 11
    s_mov_b32 s{S_KBB}, 0
    s_waitcnt lgkmcnt(0)
    s_mov_b32 s{SRD_A}, s{S_WSP}
    s_and_b32 s{SRD_A+1}, s{S_WSP+1}, 0xffff
    s_mov_b32 s{SRD_A+2}, {A2_BYTES}
    s_mov_b32 s{SRD_A+3}, 0x20000
    s_mov_b32 s{SRD_B}, s{S_WO}
    s_and_b32 s{SRD_B+1}, s{S_WO+1}, 0xffff
    s_mov_b32 s{SRD_B+2}, {1024*2048}
    s_mov_b32 s{SRD_B+3}, 0x20000
    """)
    def prefetch(u):
        for e in range(2):
            if "g2noB" in OPTS:
                a(f"buffer_load_dword v{T+12}, off, {sr(SRD_B,4)}, 0")
                continue
            a(f"""
            s_add_u32 m0, s{S_MB0}, {u*16384 + e*1024}
            s_nop 0
            buffer_load_dwordx4 v{V_DBB+e}, {sr(SRD_B,4)}, s{S_KBB} offen {NTB}lds
            """)
        for tb in range(2):
            for kk in range(2):
                if "g2noA" in OPTS:
                    a(f"buffer_load_dword v{T+12}, off, {sr(SRD_B,4)}, 0")
                    continue
                a(f"buffer_load_dwordx4 {vr(ab(u,tb,kk))}, v{V_AA+tb}, {sr(SRD_A,4)}, s{S_KAA} offen offset:{kk*1024}" + (" nt" if "g2ntA" in OPTS else ""))
        advance()
    def advance():
        a(f"""
        s_add_u32 s{S_P}, s{S_P}, 1
        s_cmp_eq_u32 s{S_P}, 36
        s_cselect_b32 s{S_P}, 0, s{S_P}
        s_add_u32 s{S_CNT}, s{S_CNT}, 1
        """)
        setpos()
    def setpos():
        a(f"""
        s_lshl_b32 s{S_KAA}, s{S_P}, 12
        s_add_u32 s{S_KAA}, s{S_KAA}, s{S_KA0}
        s_cmp_lt_u32 s{S_P}, 8
        s_cselect_b32 s{SRD_B}, s{S_WOL}, s{S_W2}
        s_cselect_b32 s{SRD_B+1}, s{S_WOH}, s{S_W2+1}
        s_cselect_b32 s{SRD_B+2}, {1024*2048}, s{S_SZ}
        s_cselect_b32 s{S_T}, 0, 8
        s_sub_u32 s{S_T}, s{S_P}, s{S_T}
        s_lshl_b32 s{S_KBB}, s{S_T}, 18
        s_cmp_ge_u32 s{S_CNT}, 36
        s_cselect_b32 s{SRD_B+2}, 0, s{SRD_B+2}
        s_cselect_b32 s{SRD_A+2}, 0, s{SRD_A+2}
        s_cselect_b32 s{S_MB0}, {G2_LDS}, s{S_MB0}
        """)
    rotmul = (1, 2)
    for o in OPTS:
        if o.startswith("rot="): rotmul = tuple(int(x) for x in o[4:].split(","))
    a(f"""
    s_and_b32 s{S_W2+1}, s{S_W2+1}, 0xffff
    s_mov_b32 s{S_WOL}, s{S_WO}
    s_and_b32 s{S_WOH}, s{S_WO+1}, 0xffff
    s_mov_b32 s{S_SZ}, {3584*2048}
    s_mov_b32 s{S_KA0}, s{S_KAA}
    s_mov_b32 s{S_CNT}, 0
    s_and_b32 s{S_T}, s{S_NT}, 7
    s_mul_i32 s{S_T}, s{S_T}, {rotmul[0]}
    s_and_b32 s{S_T2}, s{S_MT2}, 3
    s_mul_i32 s{S_T2}, s{S_T2}, {rotmul[1]}
    s_add_u32 s{S_P}, s{S_T}, s{S_T2}
    """)
    setpos()
    if "g2tlb" in OPTS:
        a(f"""
        s_lshr_b32 s{S_T}, s2, 3
        s_lshl_b32 s{S_T}, s{S_T}, 3
        s_add_u32 s{S_T}, s{S_T}, s{S_WV}          ; j
        s_lshl_b32 s{S_T2}, s{S_T}, 18             ; j*64 pages*4096
        v_lshl_add_u32 v{T+12}, v{VL}, 12, s{S_T2}
        s_cmp_lt_u32 s{S_T}, 18
        s_cbranch_scc0 g2_tlb1
        s_and_b32 s{S_T3}, s{S_MT2}, 12
        s_mul_i32 s{S_T3}, s{S_T3}, {8*MBLK_PITCH}
        buffer_load_dword v{T+13}, v{T+12}, {sr(SRD_A,4)}, s{S_T3} offen
        s_branch g2_tlb3
        """)
        a.label("g2_tlb1")
        a(f"""
        s_cmp_lt_u32 s{S_T}, 26
        s_cbranch_scc0 g2_tlb2
        v_subrev_u32 v{T+12}, {18<<18}, v{T+12}
        global_load_dword v{T+13}, v{T+12}, s[{S_WO}:{S_WO+1}]
        s_branch g2_tlb3
        """)
        a.label("g2_tlb2")
        a(f"""
        s_cmp_lt_u32 s{S_T}, 54
        s_cbranch_scc0 g2_tlb3
        v_subrev_u32 v{T+12}, {26<<18}, v{T+12}
        global_load_dword v{T+13}, v{T+12}, s[{S_W2}:{S_W2+1}]
        """)
        a.label("g2_tlb3")
    for u in range(D):
        prefetch(u)
    V_XA = T + 4; V_OA = T + 5
    a(f"""
    s_mov_b32 s{SRD_XX}, s{S_XP}
    s_and_b32 s{SRD_XX+1}, s{S_XP+1}, 0xffff
    s_mov_b32 s{SRD_XX+2}, {2048*2048}
    s_mov_b32 s{SRD_XX+3}, 0x20000
    s_mov_b32 s{SRD_OUT}, s{S_OUTP}
    s_and_b32 s{SRD_OUT+1}, s{S_OUTP+1}, 0xffff
    s_mov_b32 s{SRD_OUT+2}, {2048*2048}
    s_mov_b32 s{SRD_OUT+3}, 0x20000
    v_lshrrev_b32 v{T}, 2, v{VT}              ; r
    v_lshl_add_u32 v{T+1}, v{VG}, 3, v{T}
    v_lshlrev_b32 v{T+1}, 7, v{T+1}
    s_lshl_b32 s{S_T}, s{S_GK}, 13
    v_add_u32 v{T+1}, s{S_T}, v{T+1}
    v_and_b32 v{T+2}, 3, v{VL}
    v_lshl_add_u32 v{T+1}, v{T+2}, 3, v{T+1}
    v_and_b32 v{T+2}, 1, v{VG}
    v_lshrrev_b32 v{T+3}, 1, v{T}
    v_lshl_or_b32 v{T+2}, v{T+2}, 1, v{T+3}   ; f
    s_lshl_b32 s{S_T}, s{S_GK}, 1
    v_xor_b32 v{T+2}, s{S_T}, v{T+2}          ; f ^ 2Gk
    """)
    for s in range(4):
        a(f"""
        v_xor_b32 v{T+3}, {s}, v{T+2}
        v_lshl_add_u32 v{V_RBB+s}, v{T+3}, 5, v{T+1}
        v_add_u32 v{V_RBB+4+s}, 0xc000, v{V_RBB+s}
        """)
    a(f"""
    s_lshl_b32 s{S_T}, s{S_MT2}, 7
    s_lshl_b32 s{S_T2}, s{S_MW2}, 5
    s_add_u32 s{S_T}, s{S_T}, s{S_T2}
    v_add_u32 v{T}, s{S_T}, v{VT}
    v_lshlrev_b32 v{T}, 11, v{T}
    s_lshl_b32 s{S_T}, s{S_NT}, 7
    s_lshl_b32 s{S_T2}, s{S_GK}, 6
    s_add_u32 s{S_T}, s{S_T}, s{S_T2}
    v_add_u32 v{T}, s{S_T}, v{T}
    v_lshl_add_u32 v{V_XA}, v{VG}, 3, v{T}    ; + g*8
    v_and_b32 v{T+1}, 1, v{VG}
    v_lshrrev_b32 v{T+2}, 1, v{VG}
    v_lshl_or_b32 v{T+1}, v{T+1}, 1, v{T+2}   ; sigma
    v_lshl_add_u32 v{V_OA}, v{T+1}, 4, v{T}
    """)
    for r in range(V_AC, V_AC + 32):
        a(f"v_mov_b32 v{r}, 0")
    def reads(u, par):
        hi = 4 if u >= 3 else 0
        uo = (u - 3 if u >= 3 else u) * 16384
        for kk in range(2):
            for s in range(4):
                for h in range(2):
                    if "g2nocomp" in OPTS: continue
                    a(f"ds_read_b64_tr_b16 {vr(w(par,s,kk)+2*h,2)}, v{V_RBB+hi+s} offset:{uo + kk*4096 + h*512}")
    a(f"""
    s_mov_b32 s{S_TRIP}, 0
    s_waitcnt vmcnt({4 + 6*(D-1)})
    s_barrier
    """)
    reads(0, 0)
    stamp_now(a, 33)
    def body(u):
        par = u & 1
        a(f"""
        s_waitcnt vmcnt({4 + 6*(D-2)})
        s_barrier
        """)
        prefetch((u + D) % NBUF)
        a("s_waitcnt lgkmcnt(0)")
        reads((u + 1) % NBUF, par ^ 1)
        for kk in range(2):
            for s in range(4):
                for tb in range(2):
                    if "g2nocomp" in OPTS: continue
                    a(f"v_mfma_f32_16x16x32_bf16 {vr(ac(s,tb))}, {vr(w(par,s,kk))}, {vr(ab(u,tb,kk))}, {vr(ac(s,tb))}")
    a.raw(".p2align 6")
    a.label("g2_loop")
    for u in range(NBUF):
        body(u)
    a(f"""
    s_add_u32 s{S_TRIP}, s{S_TRIP}, 1
    s_cmp_lt_u32 s{S_TRIP}, {36 // NBUF}
    s_cbranch_scc1 g2_loop
    s_mov_b32 s{S_T}, {16*2048}
    """)
    stamp_now(a, 34)
    for tb in range(2):
        for e in range(2):
            so = "0" if tb == 0 else f"s{S_T}"
            a(f"buffer_load_dwordx2 {vr(V_XR+(tb*2+e)*2,2)}, v{V_XA}, {sr(SRD_XX,4)}, {so} offen offset:{e*32}")
    a(f"""
    s_waitcnt vmcnt(4) lgkmcnt(0)
    s_barrier
    s_lshl_b32 s{S_T}, s{S_WV}, 12
    v_lshl_add_u32 v{T}, v{VL}, 4, s{S_T}
    v_xor_b32 v{T+1}, 16384, v{T}
    """)
    for s in range(2):
        for tb in range(2):
            a(f"ds_write_b128 v{T}, {vr(ac(2+s,tb))} offset:{(s*2+tb)*1024}")
    a("""
    s_waitcnt lgkmcnt(0)
    s_barrier
    """)
    for s in range(2):
        for tb in range(2):
            a(f"ds_read_b128 {vr(V_W+(s*2+tb)*4)}, v{T+1} offset:{(s*2+tb)*1024}")
    a("s_waitcnt vmcnt(0) lgkmcnt(0)")
    for tb in range(2):
        o = V_AB + tb * 4
        for s in range(2):
            c = ac(s, tb); p = V_W + (s * 2 + tb) * 4; xr = V_XR + (tb * 2 + s) * 2
            a(f"""
            v_lshlrev_b32 v{T+8}, 16, v{xr}
            v_and_b32 v{T+9}, 0xffff0000, v{xr}
            v_lshlrev_b32 v{T+10}, 16, v{xr+1}
            v_and_b32 v{T+11}, 0xffff0000, v{xr+1}
            v_pk_add_f32 {vr(c,2)}, {vr(c,2)}, {vr(p,2)}
            v_pk_add_f32 {vr(c+2,2)}, {vr(c+2,2)}, {vr(p+2,2)}
            v_pk_add_f32 {vr(c,2)}, {vr(c,2)}, {vr(T+8,2)}
            v_pk_add_f32 {vr(c+2,2)}, {vr(c+2,2)}, {vr(T+10,2)}
            v_cvt_pk_bf16_f32 v{o+2*s}, v{c}, v{c+1}
            v_cvt_pk_bf16_f32 v{o+2*s+1}, v{c+2}, v{c+3}
            """)
        so = "0" if tb == 0 else f"s{S_T2}"
        a(f"""
        s_mov_b32 s{S_T2}, {16*2048}
        s_nop 0
        v_permlane16_swap_b32 v{o}, v{o+2}
        v_permlane16_swap_b32 v{o+1}, v{o+3}
        s_nop 1
        buffer_store_dwordx4 {vr(o)}, v{V_OA}, {sr(SRD_OUT,4)}, {so} offen
        """)
    stamp_now(a, 51, True)
    stamp_dump(a, S_WSP, S_WV, 40 << 20)
    a.label("g2_exit")
    a("s_endpgm")

C_ASLOT = 16384; C_NA = 3
C_BSLOT = 16384; C_NBS = 4
C_BBASE = 2 * C_NA * C_ASLOT
G2C_LDS = C_BBASE + C_NBS * C_BSLOT
SLAB_OFF = 64 << 20
FLAG_OFF = 30 << 20
SLAB_BYTES = 64 * 4 * 131072
NKS = 18
PUBF = "sc1" if "pubsc1" in OPTS else ("sc0 sc1 nt" if "pubnt" in OPTS else "sc0 sc1")
GETF = "sc1" if "pubsc1" in OPTS else "sc0 sc1"
def gen_g2c(a):
    XF = 64; WF = 96
    def acc(c, t): return (c * 4 + t) * 4
    def xf(t, kk): return XF + (t * 2 + kk) * 4
    def wf(c, kk): return WF + (c * 2 + kk) * 4
    V_RA = 128; V_RB = 129; V_DA = 133; V_DB = 134; VL = 135; VT = 136; VG = 137; T = 138
    VPF = 152; VH = 153; VHA = 154; VHL = 156
    S_XP = 4; S_WO = 6; S_W2 = 8; S_OUTP = 10; S_DBG = 28; S_WSP = 30
    SRD_A = 12; SRD_B = 16; SRD_S = 20; SRD_X = 24; SRD_O = 32; SRD_F = 36
    S_WV = 40; S_MW = 41; S_NW = 42; S_WQ = 43; S_MT = 44; S_NT = 45; S_KQ = 46; S_J = 47
    S_KA = 48; S_PA = 49; S_PB = 50; S_MA = 51; S_MB = 52; S_MAE = 53; S_MBE = 54; S_ASL = 55; S_BSL = 56
    S_RAS = 57; S_RBS = 58; S_T = 59; S_T2 = 60; S_T3 = 61; S_KB = 62; S_SZ2 = 63; S_CUR = 64; S_DONE = 65
    S_TILE = 66; S_G = 67; S_CNT = 68; S_ARR = 69; S_PC = 70; S_DA = 72; S_DB = 73; S_Q = 74; S_ASZ = 75; S_XCC = 76; S_FB = 77; S_LOC = 78
    MAPK = f"""
    s_and_b32 s{S_KQ}, s2, 3
    s_bfe_u32 s{S_T}, s2, 0x10002             ; M half
    s_lshr_b32 s{S_T2}, s2, 3                 ; idx
    s_and_b32 s{S_MT}, s{S_T2}, 3
    s_lshl_b32 s{S_T}, s{S_T}, 2
    s_add_u32 s{S_MT}, s{S_MT}, s{S_T}        ; mt 0..7
    s_lshr_b32 s{S_NT}, s{S_T2}, 2            ; nt 0..7
"""
    MAPL = f"""
    s_lshr_b32 s{S_T2}, s2, 3                 ; idx
    s_and_b32 s{S_KQ}, s{S_T2}, 3
    s_bfe_u32 s{S_T}, s2, 0x20001             ; xcd >> 1
    s_lshl_b32 s{S_MT}, s{S_T}, 1
    s_bfe_u32 s{S_T}, s{S_T2}, 0x10002
    s_add_u32 s{S_MT}, s{S_MT}, s{S_T}        ; mt 0..7
    s_and_b32 s{S_NT}, s2, 1
    s_lshl_b32 s{S_NT}, s{S_NT}, 2
    s_lshr_b32 s{S_T}, s{S_T2}, 3
    s_add_u32 s{S_NT}, s{S_NT}, s{S_T}        ; nt 0..7
"""
    XF_ = "" if "xloc" in OPTS else "sc0 sc1"
    a.raw("""
.globl g2_kernel
.p2align 8
.type g2_kernel,@function
g2_kernel:""")
    a(f"""
    s_cmp_ge_u32 s2, 256
    s_cbranch_scc1 g2_exit
    s_load_dwordx2 s[{S_XP}:{S_XP+1}], s[0:1], 0
    s_load_dwordx2 s[{S_WO}:{S_WO+1}], s[0:1], 16
    s_load_dwordx4 s[{S_W2}:{S_W2+3}], s[0:1], 40      ; w2, out
    s_load_dwordx4 s[{S_DBG}:{S_DBG+3}], s[0:1], 56
    v_and_b32 v{VL}, 63, v0
    v_lshrrev_b32 v{T}, 6, v0
    v_and_b32 v{VT}, 15, v0
    v_readfirstlane_b32 s{S_WV}, v{T}
    v_bfe_u32 v{VG}, v0, 4, 2
    """)
    if STAMP: a(f"v_mov_b32 v{V_STAMP}, 0")
    stamp_now(a, 32); stamp_now(a, 50, True)
    a(f"""
    s_nop 2
    s_cmp_lg_u32 s{S_WV}, 7
    s_cbranch_scc1 g2_nopf
    """)
    code_prefetch(a, T, VL, S_PC, "g2_kernel", "g2_exit", 8192, VPF)
    a.label("g2_nopf")
    a(f"""
    """)
    a(MAPL if "xloc" in OPTS else MAPK)
    a(f"""
    s_lshl_b32 s{S_TILE}, s{S_MT}, 3
    s_add_u32 s{S_TILE}, s{S_TILE}, s{S_NT}
    s_lshr_b32 s{S_G}, s{S_WV}, 2
    s_and_b32 s{S_WQ}, s{S_WV}, 3
    s_and_b32 s{S_NW}, s{S_WV}, 1
    s_bfe_u32 s{S_MW}, s{S_WV}, 0x10001
    s_lshr_b32 s{S_Q}, s{S_WV}, 1
    s_xor_b32 s{S_T}, s{S_G}, 1
    s_lshl_b32 s{S_T2}, s{S_T}, 3
    s_lshl_b32 s{S_T3}, s{S_MT}, 4
    s_add_u32 s{S_T2}, s{S_T2}, s{S_T3}
    s_lshl_b32 s{S_T3}, s{S_WQ}, 1
    s_add_u32 s{S_T2}, s{S_T2}, s{S_T3}
    s_mul_i32 s{S_T2}, s{S_T2}, {MBLK_PITCH}
    v_lshl_add_u32 v{V_DA}, v{VL}, 4, s{S_T2}
    s_mul_i32 s{S_DA}, s{S_T}, {C_NA*C_ASLOT}
    s_lshl_b32 s{S_T3}, s{S_WQ}, 12
    s_add_u32 s{S_DA}, s{S_DA}, s{S_T3}
    v_lshrrev_b32 v{T}, 4, v{VL}
    s_lshl_b32 s{S_T}, s{S_WV}, 3
    v_add_u32 v{T+1}, s{S_T}, v{T}
    v_lshlrev_b32 v{T+1}, 11, v{T+1}
    s_lshl_b32 s{S_T}, s{S_NT}, 8
    v_add_u32 v{T+1}, s{S_T}, v{T+1}
    v_and_b32 v{T+2}, 1, v{VL}
    v_lshl_add_u32 v{T+1}, v{T+2}, 4, v{T+1}
    v_bfe_u32 v{T+2}, v{VL}, 1, 3
    s_lshl_b32 s{S_T}, s{S_NW}, 2
    v_or_b32 v{T}, s{S_T}, v{T}
    v_xor_b32 v{T+2}, v{T+2}, v{T}
    v_lshl_add_u32 v{V_DB}, v{T+2}, 5, v{T+1}
    s_lshl_b32 s{S_DB}, s{S_WV}, 11
    s_add_u32 s{S_DB}, s{S_DB}, {C_BBASE}
    s_waitcnt lgkmcnt(0)
    """)
    stamp_now(a, 41)
    a(f"""
    s_mov_b32 s{SRD_A}, s{S_WSP}
    s_and_b32 s{SRD_A+1}, s{S_WSP+1}, 0xffff
    s_mov_b32 s{SRD_A+3}, 0x20000
    s_mov_b32 s{SRD_B+3}, 0x20000
    s_and_b32 s{S_WO+1}, s{S_WO+1}, 0xffff
    s_and_b32 s{S_W2+1}, s{S_W2+1}, 0xffff
    s_mov_b32 s{S_SZ2}, {3584*2048}
    s_mov_b32 s{S_ASZ}, {A2_BYTES}
    s_mov_b32 s{S_CUR}, s{S_KQ}
    s_lshl_b32 s{S_DONE}, s{S_KQ}, 3
    s_lshl_b32 s{S_DONE}, 1, s{S_DONE}
    s_mov_b32 s{S_ARR}, 0
    s_mov_b32 s{S_LOC}, 0
    s_add_u32 s{SRD_S}, s{S_WSP}, {SLAB_OFF}
    s_addc_u32 s{SRD_S+1}, s{S_WSP+1}, 0
    s_and_b32 s{SRD_S+1}, s{SRD_S+1}, 0xffff
    s_mov_b32 s{SRD_S+2}, {SLAB_BYTES}
    s_mov_b32 s{SRD_S+3}, 0x20000
    s_add_u32 s{SRD_F}, s{S_WSP}, {FLAG_OFF}
    s_addc_u32 s{SRD_F+1}, s{S_WSP+1}, 0
    s_and_b32 s{SRD_F+1}, s{SRD_F+1}, 0xffff
    s_mov_b32 s{SRD_F+2}, {64*128}
    s_mov_b32 s{SRD_F+3}, 0x20000
    s_lshl_b32 s{S_FB}, s{S_TILE}, 7
    s_lshl_b32 s{S_T}, s{S_TILE}, 2
    s_add_u32 s{S_T}, s{S_T}, s{S_KQ}
    s_lshl_b32 s{S_T}, s{S_T}, 3
    s_add_u32 s{S_T}, s{S_T}, s{S_WV}
    s_lshl_b32 s{S_FB+1}, s{S_T}, 13
    v_lshlrev_b32 v155, 4, v{VL}
    s_mov_b32 s{SRD_X}, s{S_XP}
    s_and_b32 s{SRD_X+1}, s{S_XP+1}, 0xffff
    s_mov_b32 s{SRD_X+2}, {2048*2048}
    s_mov_b32 s{SRD_X+3}, 0x20000
    s_mov_b32 s{SRD_O}, s{S_OUTP}
    s_and_b32 s{SRD_O+1}, s{S_OUTP+1}, 0xffff
    s_mov_b32 s{SRD_O+2}, {2048*2048}
    s_mov_b32 s{SRD_O+3}, 0x20000
    """)
    def setA():
        a(f"""
        s_mul_i32 s{S_T}, s{S_CUR}, {NKS}
        s_add_u32 s{S_T}, s{S_T}, s{S_PA}
        s_lshl_b32 s{S_KA}, s{S_T}, 11
        s_cmp_ge_u32 s{S_PA}, {NKS}
        s_cselect_b32 s{SRD_A+2}, 0, s{S_ASZ}
        s_cselect_b32 s{S_MAE}, {LDS_DUMP}, s{S_MA}
        """)
    def setB():
        a(f"""
        s_mul_i32 s{S_T}, s{S_CUR}, {NKS}
        s_add_u32 s{S_T}, s{S_T}, s{S_PB}
        s_cmp_lt_u32 s{S_T}, 16
        s_cselect_b32 s{SRD_B}, s{S_WO}, s{S_W2}
        s_cselect_b32 s{SRD_B+1}, s{S_WO+1}, s{S_W2+1}
        s_cselect_b32 s{SRD_B+2}, {1024*2048}, s{S_SZ2}
        s_cselect_b32 s{S_T2}, 0, 16
        s_sub_u32 s{S_T}, s{S_T}, s{S_T2}
        s_lshl_b32 s{S_KB}, s{S_T}, 17
        s_cmp_ge_u32 s{S_PB}, {NKS}
        s_cselect_b32 s{SRD_B+2}, 0, s{SRD_B+2}
        s_cselect_b32 s{S_MBE}, {LDS_DUMP}, s{S_MB}
        """)
    def dmaA_list():
        L = []
        for e in range(2):
            L.append(f"""
            s_add_u32 m0, s{S_MAE}, {e*2048}
            s_add_u32 s{S_T3}, s{S_KA}, {e*MBLK_PITCH}
            buffer_load_dwordx4 v{V_DA}, {sr(SRD_A,4)}, s{S_T3} offen lds
            """)
            L.append(f"buffer_load_dwordx4 v{V_DA}, {sr(SRD_A,4)}, s{S_T3} offen offset:1024 lds")
        return L
    def dmaB_list():
        L = []
        for e in range(2):
            L.append(f"""
            s_add_u32 m0, s{S_MBE}, {e*1024}
            s_add_u32 s{S_T3}, s{S_KB}, {e*8192}
            buffer_load_dwordx4 v{V_DB}, {sr(SRD_B,4)}, s{S_T3} offen lds
            """)
        return L
    def advA():
        a(f"""
        s_add_u32 s{S_PA}, s{S_PA}, 1
        s_add_u32 s{S_ASL}, s{S_ASL}, 1
        s_add_u32 s{S_MA}, s{S_MA}, {C_ASLOT}
        s_cmp_eq_u32 s{S_ASL}, {C_NA}
        s_cselect_b32 s{S_ASL}, 0, s{S_ASL}
        s_cselect_b32 s{S_MA}, s{S_DA}, s{S_MA}
        """)
        setA()
    def advB():
        a(f"""
        s_add_u32 s{S_PB}, s{S_PB}, 1
        s_add_u32 s{S_BSL}, s{S_BSL}, 1
        s_add_u32 s{S_MB}, s{S_MB}, {C_BSLOT}
        s_cmp_eq_u32 s{S_BSL}, {C_NBS}
        s_cselect_b32 s{S_BSL}, 0, s{S_BSL}
        s_cselect_b32 s{S_MB}, s{S_DB}, s{S_MB}
        """)
        setB()
    def doA():
        for d in dmaA_list(): a(d)
        advA()
    def doB():
        for d in dmaB_list(): a(d)
        advB()
    a.label("g2_gemm")
    a(f"""
    s_mov_b32 s{S_PA}, 0
    s_mov_b32 s{S_PB}, 0
    s_mov_b32 s{S_ASL}, 0
    s_mov_b32 s{S_BSL}, 0
    s_mov_b32 s{S_MA}, s{S_DA}
    s_mov_b32 s{S_MB}, s{S_DB}
    """)
    setA(); setB()
    stamp_now(a, 42)
    a(f"""
    s_cmp_eq_u32 s{S_G}, 0
    s_cbranch_scc0 g2_pro1
    """)
    doB(); doA(); doB(); doA(); doB()
    a("s_branch g2_pro2")
    a.label("g2_pro1")
    doA(); doB(); doA(); doB(); doA(); doB()
    a.label("g2_pro2")
    stamp_now(a, 43)
    a(f"""
    s_cmp_eq_u32 s{S_CUR}, s{S_KQ}
    s_cbranch_scc0 g2_nozero
    """)
    for r in range(64):
        a(f"v_mov_b32 v{r}, 0")
    a.label("g2_nozero")
    a(f"""
    s_mul_i32 s{S_T}, s{S_G}, {C_NA*C_ASLOT}
    s_lshl_b32 s{S_T2}, s{S_MW}, 13
    s_add_u32 s{S_T}, s{S_T}, s{S_T2}
    v_lshl_add_u32 v{V_RA}, v{VL}, 4, s{S_T}
    v_lshrrev_b32 v{T}, 2, v{VT}              ; r
    v_lshl_add_u32 v{T+1}, v{VG}, 3, v{T}
    v_lshlrev_b32 v{T+1}, 8, v{T+1}
    v_and_b32 v{T+2}, 3, v{VL}
    v_lshl_add_u32 v{T+1}, v{T+2}, 3, v{T+1}
    v_add_u32 v{T+1}, {C_BBASE}, v{T+1}
    v_and_b32 v{T+2}, 1, v{VG}
    v_lshl_or_b32 v{T+2}, v{T+2}, 2, v{T}     ; f = r | (g&1)<<2
    s_lshl_b32 s{S_T}, s{S_NW}, 2
    v_xor_b32 v{T+2}, s{S_T}, v{T+2}
    """)
    for c in range(4):
        a(f"""
        v_xor_b32 v{T+3}, {c}, v{T+2}
        v_lshl_add_u32 v{V_RB+c}, v{T+3}, 5, v{T+1}
        """)
    a(f"""
    s_mov_b32 s{S_J}, 0
    s_mov_b32 s{S_RAS}, 0
    s_mov_b32 s{S_RBS}, 0
    """)
    stamp_now(a, 44)
    a("s_waitcnt vmcnt(12)")
    stamp_now(a, 45)
    a("s_barrier")
    stamp_now(a, 33)
    a(f"""
    s_cmp_eq_u32 s{S_G}, 0
    s_cbranch_scc1 g2_loop
    s_barrier
    """)
    reads = []
    for kk in range(2):
        for t in range(4):
            reads.append(f"ds_read_b128 {vr(xf(t,kk))}, v{V_RA} offset:{(t*2+kk)*1024}")
        for c in range(4):
            for h in range(2):
                reads.append(f"ds_read_b64_tr_b16 {vr(wf(c,kk)+2*h,2)}, v{V_RB+c} offset:{(32*kk+4*h)*256}")
    a.raw(".p2align 6")
    a.label("g2_loop")
    if "pretouch" in OPTS:
        a(f"""
        s_sub_u32 s{S_T}, s{S_J}, 4
        s_cmp_lt_u32 s{S_T}, 8
        s_cbranch_scc0 g2_nopt
        s_lshl_b32 s{S_T}, s{S_T}, 10
        s_add_u32 s{S_T}, s{S_T}, s{S_FB+1}
        buffer_load_dwordx4 v[156:159], v155, {sr(SRD_S,4)}, s{S_T} offen
        """)
        a.label("g2_nopt")
    dl = dmaA_list() + dmaB_list()
    di = 0
    for n_, r in enumerate(reads):
        a(r)
        if (n_ % 4 == 1 if 'g2d3' not in OPTS else n_ % 3 == 0) and di < len(dl):
            a(dl[di]); di += 1
    assert di == len(dl)
    a("""
    s_waitcnt vmcnt(12) lgkmcnt(0)
    s_barrier
    s_setprio 1
    """)
    real = a; a = bk = Collect()
    def _adv():
        pass
    bk(f"""
    s_add_u32 s{S_PA}, s{S_PA}, 1
    s_add_u32 s{S_ASL}, s{S_ASL}, 1
    s_add_u32 s{S_MA}, s{S_MA}, {C_ASLOT}
    s_cmp_eq_u32 s{S_ASL}, {C_NA}
    s_cselect_b32 s{S_ASL}, 0, s{S_ASL}
    s_cselect_b32 s{S_MA}, s{S_DA}, s{S_MA}
    s_add_u32 s{S_KA}, s{S_KA}, 2048
    s_cmp_ge_u32 s{S_PA}, {NKS}
    s_cselect_b32 s{SRD_A+2}, 0, s{S_ASZ}
    s_cselect_b32 s{S_MAE}, {LDS_DUMP}, s{S_MA}
    s_add_u32 s{S_PB}, s{S_PB}, 1
    s_add_u32 s{S_BSL}, s{S_BSL}, 1
    s_add_u32 s{S_MB}, s{S_MB}, {C_BSLOT}
    s_cmp_eq_u32 s{S_BSL}, {C_NBS}
    s_cselect_b32 s{S_BSL}, 0, s{S_BSL}
    s_cselect_b32 s{S_MB}, s{S_DB}, s{S_MB}
    s_add_u32 s{S_KB}, s{S_KB}, {1<<17}
    s_lshl_b32 s{S_T}, s{S_CUR}, 8
    s_add_u32 s{S_T}, s{S_T}, s{S_PB}
    s_cmp_eq_u32 s{S_T}, 16
    s_cselect_b32 s{SRD_B}, s{S_W2}, s{SRD_B}
    s_cselect_b32 s{SRD_B+1}, s{S_W2+1}, s{SRD_B+1}
    s_cselect_b32 s{SRD_B+2}, s{S_SZ2}, s{SRD_B+2}
    s_cselect_b32 s{S_KB}, 0, s{S_KB}
    s_cmp_ge_u32 s{S_PB}, {NKS}
    s_cselect_b32 s{SRD_B+2}, 0, s{SRD_B+2}
    s_cselect_b32 s{S_MBE}, {LDS_DUMP}, s{S_MB}
    s_add_u32 s{S_RAS}, s{S_RAS}, 1
    s_cmp_eq_u32 s{S_RAS}, {C_NA}
    s_cselect_b32 s{S_RAS}, 0, s{S_RAS}
    s_cselect_b32 s{S_T}, {C_NA*C_ASLOT}, 0
    s_sub_u32 s{S_T}, {C_ASLOT}, s{S_T}
    v_add_u32 v{V_RA}, s{S_T}, v{V_RA}
    s_add_u32 s{S_RBS}, s{S_RBS}, 1
    s_cmp_eq_u32 s{S_RBS}, {C_NBS}
    s_cselect_b32 s{S_RBS}, 0, s{S_RBS}
    s_cselect_b32 s{S_T}, {C_NBS*C_BSLOT}, 0
    s_sub_u32 s{S_T}, {C_BSLOT}, s{S_T}
    """)
    for c in range(4):
        bk(f"v_add_u32 v{V_RB+c}, s{S_T}, v{V_RB+c}")
    a = real
    mf = []
    for kk in range(2):
        for c in range(4):
            for t in range(4):
                mf.append(f"v_mfma_f32_16x16x32_bf16 {vr(acc(c,t))}, {vr(wf(c,kk))}, {vr(xf(t,kk))}, {vr(acc(c,t))}")
    interleave(a, mf, bk.L, start=(0 if 'g2bk3' in OPTS else 1), per=(3 if 'g2bk3' in OPTS else 2))
    a(f"""
    s_setprio 0
    s_add_u32 s{S_J}, s{S_J}, 1
    s_lshl_b32 s{S_T}, s{S_G}, 8
    s_add_u32 s{S_T}, s{S_T}, s{S_J}
    s_cmp_eq_u32 s{S_T}, {256 + NKS}
    s_cbranch_scc1 g2_post
    s_cmp_lt_u32 s{S_J}, {NKS}
    s_barrier
    s_cbranch_scc1 g2_loop
    """)
    a.label("g2_post")
    stamp_now(a, 34)
    V_XR = XF; V_XA = T + 1; V_OA = T + 2; PK = WF
    a(f"""
    v_lshlrev_b32 v{T}, 4, v{VL}
    s_cmp_eq_u32 s{S_Q}, s{S_KQ}
    s_cbranch_scc1 g2_own
    s_cmp_eq_u32 s{S_CUR}, s{S_KQ}
    s_cbranch_scc0 g2_pub_done
    s_lshl_b32 s{S_T}, s{S_TILE}, 2
    s_add_u32 s{S_T}, s{S_T}, s{S_KQ}
    s_lshl_b32 s{S_T}, s{S_T}, 3
    s_add_u32 s{S_T}, s{S_T}, s{S_WV}
    s_lshl_b32 s{S_T}, s{S_T}, 13
    s_add_u32 s{S_T2}, s{S_T}, 4096
    """)
    for bp in range(8):
        o = PK + 4 * bp
        for h in range(2):
            b = acc(bp >> 1, (bp & 1) * 2 + h)
            a(f"""
            v_cvt_pk_bf16_f32 v{o+2*h}, v{b}, v{b+1}
            v_cvt_pk_bf16_f32 v{o+2*h+1}, v{b+2}, v{b+3}
            """)
        a(f"buffer_store_dwordx4 {vr(o)}, v{T}, {sr(SRD_S,4)}, s{S_T if bp < 4 else S_T2} offen offset:{(bp%4)*1024} {XF_}")
    a("s_branch g2_pub_done")
    a.label("g2_own")
    a(f"""
    s_lshl_b32 s{S_T}, s{S_NW}, 14
    v_add_u32 v{T+3}, s{S_T}, v{T}
    """)
    for b in range(16):
        a(f"ds_write_b128 v{T+3}, {vr(4*b)} offset:{b*1024}")
    a.label("g2_pub_done")
    a(f"""
    s_lshl_b32 s{S_T}, s{S_MT}, 8
    s_lshl_b32 s{S_T2}, s{S_KQ}, 6
    s_add_u32 s{S_T}, s{S_T}, s{S_T2}
    s_lshl_b32 s{S_T2}, s{S_G}, 5
    s_add_u32 s{S_T}, s{S_T}, s{S_T2}
    v_add_u32 v{T+3}, s{S_T}, v{VT}
    v_lshlrev_b32 v{T+3}, 11, v{T+3}
    s_lshl_b32 s{S_T}, s{S_NT}, 8
    s_lshl_b32 s{S_T2}, s{S_NW}, 7
    s_add_u32 s{S_T}, s{S_T}, s{S_T2}
    s_lshl_b32 s{S_T2}, s{S_MW}, 6
    s_add_u32 s{S_T}, s{S_T}, s{S_T2}
    v_add_u32 v{T+3}, s{S_T}, v{T+3}
    v_lshl_add_u32 v{V_XA}, v{VG}, 3, v{T+3}
    v_and_b32 v{T+4}, 1, v{VG}
    v_lshrrev_b32 v{T+5}, 1, v{VG}
    v_lshl_or_b32 v{T+4}, v{T+4}, 1, v{T+5}
    v_lshl_add_u32 v{V_OA}, v{T+4}, 4, v{T+3}
    s_mov_b32 s{S_T}, {16*2048}
    """)
    for t in range(2):
        for e in range(2):
            so = "0" if t == 0 else f"s{S_T}"
            a(f"buffer_load_dwordx2 {vr(V_XR+(t*2+e)*2,2)}, v{V_XA}, {sr(SRD_X,4)}, {so} offen offset:{e*32}")
    a("s_waitcnt vmcnt(4) lgkmcnt(0)")
    stamp_now(a, 36)
    a(f"""
    s_barrier
    s_cmp_eq_u32 s{S_CUR}, s{S_KQ}
    s_cbranch_scc0 g2_after_publish
    s_cmp_eq_u32 s{S_WV}, 0
    s_cbranch_scc0 g2_wait_done
    s_lshl_b32 s{S_T}, s{S_KQ}, 2
    v_mov_b32 v{T+3}, s{S_DONE}
    v_mov_b32 v{T+4}, s{S_T}
    s_mov_b64 exec, 1
    buffer_store_dword v{T+3}, v{T+4}, {sr(SRD_F,4)}, s{S_FB} offen sc0 sc1
    s_mov_b32 s{S_CNT}, 0
    """)
    a.label("g2_poll")
    a(f"""
    buffer_load_dwordx4 {vr(T+6)}, off, {sr(SRD_F,4)}, s{S_FB} sc0 sc1
    s_waitcnt vmcnt(0)
    v_or_b32 v{T+6}, v{T+6}, v{T+7}
    v_or3_b32 v{T+5}, v{T+6}, v{T+8}, v{T+9}
    s_add_u32 s{S_CNT}, s{S_CNT}, 1
    v_readfirstlane_b32 s{S_ARR}, v{T+5}
    s_nop 3
    s_cmp_eq_u32 s{S_ARR}, {0x77 if "forcefb" in OPTS else 0x01010101}
    s_cbranch_scc1 g2_poll_end
    s_cmp_lt_u32 s{S_CNT}, {64 if "forcefb" in OPTS else 20000}
    s_cbranch_scc1 g2_poll
    """)
    a.label("g2_poll_end")
    if STAMP:
        a(f"v_writelane_b32 v{V_STAMP}, s{S_CNT}, 39")
    if "forcefb" in OPTS:
        a(f"s_and_b32 s{S_ARR}, s{S_ARR}, 0x00010001")
    a(f"""
    v_mov_b32 v{T+5}, s{S_ARR}
    v_mov_b32 v{T+4}, {65536}
    ds_write_b32 v{T+4}, v{T+5}
    s_mov_b64 exec, -1
    s_waitcnt lgkmcnt(0)
    """)
    a.label("g2_wait_done")
    a(f"""
    s_barrier
    v_mov_b32 v{T+4}, {65536}
    ds_read_b32 v{T+5}, v{T+4}
    s_waitcnt lgkmcnt(0)
    v_readfirstlane_b32 s{S_ARR}, v{T+5}
    s_nop 3
    """)
    a.label("g2_after_publish")
    a(f"""
    s_or_b32 s{S_T}, s{S_ARR}, s{S_DONE}
    s_cmp_eq_u32 s{S_T}, 0x01010101
    s_cbranch_scc1 g2_final
    s_andn2_b32 s{S_T}, 0x01010101, s{S_T}
    s_ff1_i32_b32 s{S_T}, s{S_T}
    s_lshl_b32 s{S_T2}, 1, s{S_T}
    s_or_b32 s{S_DONE}, s{S_DONE}, s{S_T2}
    s_lshr_b32 s{S_CUR}, s{S_T}, 3
    s_waitcnt vmcnt(0)
    s_barrier
    s_branch g2_gemm
    """)
    a.label("g2_final")
    stamp_now(a, 35)
    R0 = WF
    a(f"""
    s_andn2_b32 s{S_ARR}, s{S_ARR}, s{S_DONE}
    s_lshl_b32 s{S_T}, s{S_MW}, 2
    s_add_u32 s{S_T}, s{S_T}, s{S_G}
    s_lshl_b32 s{S_T}, s{S_T}, 10             ; pair0 * 1024
    s_lshl_b32 s{S_T2}, s{S_NW}, 13
    s_add_u32 s{S_T3}, s{S_T}, s{S_T2}
    """)
    for src in range(4):
        a(f"""
        s_bitcmp1_b32 s{S_ARR}, {8*src}
        s_cbranch_scc1 g2_ld{src}
        """)
        for r in range(8):
            a(f"v_mov_b32 v{8*src+r}, 0")
        a(f"s_branch g2_ld{src}_done")
        a.label(f"g2_ld{src}")
        a(f"""
        s_lshl_b32 s{S_T}, s{S_TILE}, 2
        s_add_u32 s{S_T}, s{S_T}, {src}
        s_lshl_b32 s{S_T}, s{S_T}, 2
        s_add_u32 s{S_T}, s{S_T}, s{S_KQ}
        s_lshl_b32 s{S_T}, s{S_T}, 14
        s_add_u32 s{S_T}, s{S_T}, s{S_T3}
        """)
        for e in range(2):
            a(f"buffer_load_dwordx4 {vr(8*src+4*e)}, v{T}, {sr(SRD_S,4)}, s{S_T} offen offset:{e*2048} {XF_}")
        a.label(f"g2_ld{src}_done")
    a(f"""
    s_lshl_b32 s{S_T}, s{S_MW}, 3
    s_lshl_b32 s{S_T2}, s{S_G}, 1
    s_add_u32 s{S_T}, s{S_T}, s{S_T2}
    s_lshl_b32 s{S_T}, s{S_T}, 10
    s_lshl_b32 s{S_T2}, s{S_NW}, 14
    s_add_u32 s{S_T}, s{S_T}, s{S_T2}
    v_add_u32 v{T+3}, s{S_T}, v{T}
    """)
    for e in range(2):
        for t in range(2):
            a(f"ds_read_b128 {vr(R0+(e*2+t)*4)}, v{T+3} offset:{e*4096 + t*1024}")
    a("s_waitcnt vmcnt(0) lgkmcnt(0)")
    stamp_now(a, 37)
    for t in range(2):
        o = XF + 16 + t * 4
        for e in range(2):
            c = R0 + (e * 2 + t) * 4
            srcs = [8 * src + 4 * e + 2 * t for src in range(4)] + [V_XR + (t * 2 + e) * 2]
            for p in srcs:
                a(f"""
                v_lshlrev_b32 v{T+8}, 16, v{p}
                v_and_b32 v{T+9}, 0xffff0000, v{p}
                v_lshlrev_b32 v{T+10}, 16, v{p+1}
                v_and_b32 v{T+11}, 0xffff0000, v{p+1}
                v_pk_add_f32 {vr(c,2)}, {vr(c,2)}, {vr(T+8,2)}
                v_pk_add_f32 {vr(c+2,2)}, {vr(c+2,2)}, {vr(T+10,2)}
                """)
            a(f"""
            v_cvt_pk_bf16_f32 v{o+2*e}, v{c}, v{c+1}
            v_cvt_pk_bf16_f32 v{o+2*e+1}, v{c+2}, v{c+3}
            """)
        so = "0" if t == 0 else f"s{S_T2}"
        a(f"""
        s_mov_b32 s{S_T2}, {16*2048}
        s_nop 0
        v_permlane16_swap_b32 v{o}, v{o+2}
        v_permlane16_swap_b32 v{o+1}, v{o+3}
        s_nop 1
        buffer_store_dwordx4 {vr(o)}, v{V_OA}, {sr(SRD_O,4)}, {so} offen
        """)
    stamp_now(a, 51, True)
    stamp_dump(a, S_WSP, S_WV, 40 << 20)
    a.label("g2_exit")
    a("s_endpgm")
    global G2_VGPRS
    G2_VGPRS = 256 if STAMP else 160

HEADER = f"""; mblk_pitch={MBLK_PITCH}
{"" if FUSE else "; @launch kernel=k0_kernel grid=(256,1,1) block=(512,1,1) lds=0"}
; @launch kernel=g1_kernel grid=(256,1,1) block=(512,1,1) lds={G1_LDS}
; @launch kernel=g2_kernel grid=(256,1,1) block=(512,1,1) lds={G2_LDS if 'g2a' in OPTS else G2C_LDS}
.amdgcn_target "amdgcn-amd-amdhsa--gfx950"
.text
"""

def kd(name, vgpr, sgpr):
    return f"""
.amdhsa_kernel {name}
  .amdhsa_next_free_vgpr {vgpr}
  .amdhsa_next_free_sgpr {sgpr}
  .amdhsa_accum_offset {(vgpr + 3) // 4 * 4}
  .amdhsa_group_segment_fixed_size 0
  .amdhsa_kernarg_size 72
  .amdhsa_user_sgpr_count 2
  .amdhsa_user_sgpr_kernarg_segment_ptr 1
  .amdhsa_system_sgpr_workgroup_id_x 1
.end_amdhsa_kernel
"""

def main():
    global STAMP
    if "stamp" in sys.argv[2:]: STAMP = True
    a = Asm()
    gen_k0(a)
    gen_g1(a)
    (gen_g2 if 'g2a' in OPTS else gen_g2c)(a)
    s = HEADER + a.text() + '.section .rodata,"a"\n.p2align 6\n' + kd("k0_kernel", 64, 40) + ".p2align 6\n" + kd("g1_kernel", 256, 102) + ".p2align 6\n" + kd("g2_kernel", G2_VGPRS, 102 if STAMP else 80)
    out = sys.argv[1] if len(sys.argv) > 1 else OUT
    open(out, "w").write(s)

main()
```

```python
import sys

OUT = "parallel_sum__sliding_local_dilated__dense_activation_relu__prompt.s"

class Asm:
    def __init__(self):
        self.L = []
    def __call__(self, s):
        for line in s.strip("\n").split("\n"):
            line = line.strip()
            if line:
                self.L.append("    " + line)
    def label(self, n):
        self.L.append(n + ":")
    def raw(self, s):
        self.L.append(s)
    def text(self):
        return "\n".join(self.L) + "\n"

class Collect:
    def __init__(self): self.L = []
    def __call__(self, s):
        for line in s.strip("\n").split("\n"):
            line = line.strip()
            if line: self.L.append(line)

def interleave(a, mfmas, fillers, start=2, per=2):
    fi = 0
    for n, m in enumerate(mfmas):
        a(m)
        if n >= start:
            for _ in range(per):
                if fi < len(fillers):
                    a(fillers[fi]); fi += 1
    while fi < len(fillers):
        a(fillers[fi]); fi += 1

def vr(b, n=4):
    return "v[%d:%d]" % (b, b + n - 1)
def sr(b, n=2):
    return "s[%d:%d]" % (b, b + n - 1)

MBLK_PITCH = 144 * 1024
for _o in sys.argv[2:]:
    if _o.startswith("pitch="): MBLK_PITCH = int(_o[6:])
A2_BYTES = 128 * MBLK_PITCH

G1_ASLOT = 16384
G1_BBASE = 65536
G1_BSLOT = 28672
G1_HALO = 24576
G1_STAT = G1_BBASE + 3 * G1_BSLOT
G1_CS = G1_STAT + 272 * 8
G1_CSP = G1_STAT + 3072
G1_CS = G1_CSP + 8192
G1_VERD = G1_CS + 896
G1_LDS = 163840 if "nofuse" not in sys.argv[2:] else G1_STAT
ST_OFF = 28 << 20
XN_OFF = 24 << 20
AT_PITCH = 400

V_ACC = 0
V_HACC = 96
V_XF = 112
V_WF = 144
V_HF = 200
V_S1 = 208
V_S2 = 210
V_SH = 212
V_CS = 214
V_WD = 208
V_WV = 212
V_RA = 217
V_RB = 221
V_RH = 228
V_DA = 230
V_DB = 231
V_DH = 235
V_T = 236
V_LANE = 250
V_TT = 251
V_GG = 252

S_X = 4; S_W = 6; S_WS = 8; S_W1 = 10
SRD_X = 12; SRD_W = 16; SRD_O = 20
S_WAVE = 24; S_MW = 26; S_NW = 27; S_WQ = 28; S_MT = 29; S_JT = 30; S_J = 31
S_KA = 32; S_KB = 33; S_MA = 34; S_MB = 35; S_BD = 36; S_BSL = 37; S_RSL = 38; S_TMP = 39
S_ONES = 40; S_KH = 41; S_TMP2 = 42; S_TMP3 = 43
S_BLK = 44
S_TB = 52
S_PO = 56
S_MASK = 64
S_BSC = 60
S_HD = 61
S_KW = 91
SRD_WW = 64; S_WM = 68; S_GW = 70; S_WPK = 71
V_L16 = 216
SRD_ST = 64; SRD_DBG = 72; S_NTI = 76; S_EV = 77; S_DBGP = 78
V_ONES = 240; V_CHK = 208
S_MAE = 25; S_MBE = 3
LDS_DUMP = 0x28000
SRD_XA = 96
S_WOP = 92; S_W2P = 94; S_PC1 = 62

STAMP = False
FUSE = "nofuse" not in sys.argv[2:]
OPTS = sys.argv[2:]
STF = "sc0 sc1" if "stsc" in OPTS else ""
STH = "sc0 sc1" if "hwt" in OPTS else ""
V_STAMP = 253
S_SA = 84; S_SB = 86; S_SC = 88; SRD_D = 80; S_SI = 90
def stamp_now(a, idx, real=False):
    if not STAMP: return
    a(f"""
    {"s_memrealtime" if real else "s_memtime"} {sr(S_SC)}
    s_waitcnt lgkmcnt(0)
    v_writelane_b32 v{V_STAMP}, s{S_SC}, {idx}
    """)
def stamp_dump(a, wsreg, wave_sreg, base_off):
    if not STAMP: return
    a(f"""
    s_waitcnt vmcnt(0)
    s_memtime {sr(S_SC)}
    s_waitcnt lgkmcnt(0)
    v_writelane_b32 v{V_STAMP}, s{S_SC}, 63
    s_mov_b32 s{SRD_D}, s{wsreg}
    s_and_b32 s{SRD_D+1}, s{wsreg+1}, 0xffff
    s_mov_b32 s{SRD_D+2}, {64<<20}
    s_mov_b32 s{SRD_D+3}, 0x20000
    s_lshl_b32 s{S_SC}, s2, 3
    s_add_u32 s{S_SC}, s{S_SC}, s{wave_sreg}
    s_lshl_b32 s{S_SC}, s{S_SC}, 8
    s_add_u32 s{S_SC}, s{S_SC}, {base_off}
    v_mbcnt_lo_u32_b32 v254, -1, 0
    v_mbcnt_hi_u32_b32 v254, -1, v254
    v_lshlrev_b32 v254, 2, v254
    buffer_store_dword v{V_STAMP}, v254, {sr(SRD_D,4)}, s{S_SC} offen
    """)

def acc(s, i): return V_ACC + (s * 4 + i) * 4
def xf(i, kk): return V_XF + (i * 2 + kk) * 4
def wf(s, kk): return V_WF + (s * 2 + kk) * 4
def hf(kk): return V_HF + kk * 4

def xlane_sum(a, v, t):
    a(f"""
    v_mov_b32 v{t}, v{v}
    s_nop 1
    v_permlane16_swap_b32 v{v}, v{t}
    s_nop 1
    v_add_f32 v{v}, v{v}, v{t}
    v_mov_b32 v{t}, v{v}
    s_nop 1
    v_permlane32_swap_b32 v{v}, v{t}
    s_nop 1
    v_add_f32 v{v}, v{v}, v{t}
    """)

def xlane_max(a, v, t):
    a(f"""
    v_mov_b32 v{t}, v{v}
    s_nop 1
    v_permlane16_swap_b32 v{v}, v{t}
    s_nop 1
    v_max_f32 v{v}, v{v}, v{t}
    v_mov_b32 v{t}, v{v}
    s_nop 1
    v_permlane32_swap_b32 v{v}, v{t}
    s_nop 1
    v_max_f32 v{v}, v{v}, v{t}
    """)

def reduce64(a, v, t):
    DPP = "row_mask:0xf bank_mask:0xf"
    a(f"""
    s_nop 1
    v_add_f32_dpp v{t}, v{v}, v{v} quad_perm:[1,0,3,2] {DPP}
    s_nop 1
    v_add_f32_dpp v{v}, v{t}, v{t} quad_perm:[2,3,0,1] {DPP}
    s_nop 1
    v_add_f32_dpp v{t}, v{v}, v{v} row_half_mirror {DPP}
    s_nop 1
    v_add_f32_dpp v{v}, v{t}, v{t} row_mirror {DPP}
    """)
    xlane_sum(a, v, t)

def row_stats(a, src, u, dst, t0, t1):
    for r in range(8):
        a(f"""
        v_lshlrev_b32 v{u+2*r}, 16, v{src+r}
        v_and_b32 v{u+2*r+1}, 0xffff0000, v{src+r}
        """)
    a(f"v_pk_add_f32 {vr(dst,2)}, {vr(u,2)}, {vr(u+2,2)}")
    for r in range(2, 8):
        a(f"v_pk_add_f32 {vr(dst,2)}, {vr(dst,2)}, {vr(u+2*r,2)}")
    a(f"v_add_f32 v{t0}, v{dst}, v{dst+1}")
    reduce64(a, t0, t1)
    a(f"v_mul_f32 v{t0}, 0x3a800000, v{t0}          ; mean")
    for r in range(8):
        a(f"v_pk_add_f32 {vr(u+2*r,2)}, {vr(u+2*r,2)}, {vr(t0,2)} op_sel_hi:[1,0] neg_lo:[0,1] neg_hi:[0,1]")
    a(f"v_pk_mul_f32 {vr(dst,2)}, {vr(u,2)}, {vr(u,2)}")
    for r in range(1, 8):
        a(f"v_pk_fma_f32 {vr(dst,2)}, {vr(u+2*r,2)}, {vr(u+2*r,2)}, {vr(dst,2)}")
    a(f"v_add_f32 v{dst+1}, v{dst}, v{dst+1}")
    reduce64(a, dst + 1, t1)
    a(f"""
    v_mul_f32 v{dst+1}, 0x3a800000, v{dst+1}     ; var
    v_cvt_pk_bf16_f32 v{t1}, v{t0}, v{dst+1}
    v_lshlrev_b32 v{dst}, 16, v{t1}              ; m_b
    v_and_b32 v{dst+1}, 0xffff0000, v{t1}        ; v_b
    v_add_f32 v{dst+1}, 0x3727c5ac, v{dst+1}
    v_cvt_pk_bf16_f32 v{dst+1}, v{dst+1}, v{dst+1}
    v_and_b32 v{dst+1}, 0xffff0000, v{dst+1}
    v_sqrt_f32 v{dst+1}, v{dst+1}
    s_nop 0
    v_cvt_pk_bf16_f32 v{dst+1}, v{dst+1}, v{dst+1}
    v_and_b32 v{dst+1}, 0xffff0000, v{dst+1}
    v_rcp_f32 v{dst+1}, v{dst+1}
    s_nop 0
    """)

def g1_path(a, typ, G):
    qkv = (typ == 0)
    NB = 6 if qkv else 7
    PB = 384 if qkv else 448
    CH = PB // 16
    WP = 6144 if qkv else 7168
    halo = qkv and G == 0
    if qkv:
        nB = 3
        p0 = 0 if G == 0 else 12
    else:
        nB = 4 if G == 0 else 3
        p0 = 0 if G == 0 else 16
    nIss = 4 + nB + (1 if halo else 0)
    nBiss = nB + (1 if halo else 0)
    cs_slots = [0, 1] if (qkv or G == 0) else [0, 1, 6]
    P = f"g1_{typ}{G}"
    T = V_T
    a.label(P)
    if STAMP: a(f"v_mov_b32 v{V_STAMP}, 0")
    stamp_now(a, 32); stamp_now(a, 50, True)
    if qkv:
        a(f"""
        s_mov_b32 s{SRD_W}, s{S_W}
        s_and_b32 s{SRD_W+1}, s{S_W+1}, 0xffff
        s_mov_b32 s{SRD_W+2}, {1024*6144}
        s_mov_b32 s{SRD_W+3}, 0x20000
        """)
    else:
        a(f"""
        s_mov_b32 s{SRD_W}, s{S_W1}
        s_and_b32 s{SRD_W+1}, s{S_W1+1}, 0xffff
        s_mov_b32 s{SRD_W+2}, {1024*7168}
        s_mov_b32 s{SRD_W+3}, 0x20000
        """)
    Go = 1 - G
    a(f"""
    v_lshrrev_b32 v{T}, 3, v{V_LANE}                 ; l>>3
    v_and_b32 v{T+1}, 7, v{V_LANE}
    v_xor_b32 v{T+1}, v{T+1}, v{T}                   ; chunk
    s_lshl_b32 s{S_TMP}, s{S_MT}, 8
    s_lshl_b32 s{S_TMP2}, s{S_WQ}, 5
    s_add_u32 s{S_TMP}, s{S_TMP}, s{S_TMP2}
    s_add_u32 s{S_TMP}, s{S_TMP}, {128*Go}
    v_add_u32 v{T+2}, s{S_TMP}, v{T}
    v_lshlrev_b32 v{T+2}, 11, v{T+2}
    v_lshl_add_u32 v{V_DA}, v{T+1}, 4, v{T+2}
    """)
    if halo:
        a(f"""
        s_and_b32 s{S_TMP2}, s{S_WQ}, 1
        s_lshl_b32 s{S_TMP2}, s{S_TMP2}, 3
        v_add_u32 v{T+2}, s{S_TMP2}, v{T}
        s_lshl_b32 s{S_TMP}, s{S_MT}, 8
        s_sub_u32 s{S_TMP}, s{S_TMP}, 16
        v_add_u32 v{T+2}, s{S_TMP}, v{T+2}
        v_max_i32 v{T+2}, 0, v{T+2}
        v_lshlrev_b32 v{T+2}, 11, v{T+2}
        v_lshl_add_u32 v{V_DH}, v{T+1}, 4, v{T+2}
        s_mul_i32 s{S_HD}, s{S_WQ}, {nB*1024}
        s_sub_u32 s{S_HD}, {G1_HALO - p0*1024}, s{S_HD}
        s_lshl_b32 s{S_TMP2}, s{S_TMP2}, 7           ; (wq&1)*1024
        s_add_u32 s{S_HD}, s{S_HD}, s{S_TMP2}
        """)
    magic = (65536 + CH - 1) // CH
    for q in range(64 * CH):
        assert (q * magic) >> 16 == q // CH
    a(f"s_mul_i32 s{S_TMP3}, s{S_WQ}, {nB*64}")
    for i in range(nB):
        a(f"""
        s_add_u32 s{S_TMP}, s{S_TMP3}, {(p0+i)*64}
        v_add_u32 v{T}, s{S_TMP}, v{V_LANE}          ; q
        v_mul_u32_u24 v{T+1}, {magic}, v{T}
        v_lshrrev_b32 v{T+1}, 16, v{T+1}             ; k
        v_mul_u32_u24 v{T+2}, {CH}, v{T+1}
        v_sub_u32 v{T+2}, v{T}, v{T+2}               ; c'
        """)
        if qkv:
            a(f"""
            v_bfe_u32 v{T+3}, v{T+1}, 1, 1
            v_bfe_u32 v{T+4}, v{T+1}, 3, 1
            v_lshl_or_b32 v{T+3}, v{T+4}, 1, v{T+3}  ; f
            v_lshrrev_b32 v{T+4}, 1, v{T+2}
            v_xor_b32 v{T+4}, v{T+4}, v{T+3}         ; unit (0..11)
            v_cmp_le_u32 vcc, 6, v{T+4}
            s_nop 1
            v_cndmask_b32 v{T+5}, 0, 1, vcc          ; hh
            v_mul_u32_u24 v{T+6}, 6, v{T+5}
            v_sub_u32 v{T+6}, v{T+4}, v{T+6}         ; unit % 6
            v_lshrrev_b32 v{T+7}, 1, v{T+6}          ; part
            v_and_b32 v{T+6}, 1, v{T+6}              ; half32
            v_lshlrev_b32 v{T+7}, 11, v{T+7}         ; part*2048
            v_lshl_add_u32 v{T+7}, v{T+5}, 6, v{T+7} ; + hh*64
            v_lshl_add_u32 v{T+7}, v{T+6}, 5, v{T+7} ; + half32*32
            v_and_b32 v{T+6}, 1, v{T+2}
            v_lshl_add_u32 v{T+7}, v{T+6}, 4, v{T+7} ; + (c'&1)*16
            s_lshl_b32 s{S_TMP}, s{S_JT}, 7          ; 2 jt * 64
            v_add_u32 v{T+7}, s{S_TMP}, v{T+7}
            v_mul_u32_u24 v{T+1}, {WP}, v{T+1}
            v_add_u32 v{V_DB+i}, v{T+1}, v{T+7}
            """)
        else:
            a(f"""
            v_bfe_u32 v{T+3}, v{T+1}, 3, 1
            v_lshlrev_b32 v{T+3}, 1, v{T+3}
            v_xor_b32 v{T+2}, v{T+2}, v{T+3}         ; c = c' ^ (2*bit3(k))
            v_lshlrev_b32 v{T+2}, 4, v{T+2}
            s_mul_i32 s{S_TMP}, s{S_JT}, 448
            v_add_u32 v{T+2}, s{S_TMP}, v{T+2}
            v_mul_u32_u24 v{T+1}, {WP}, v{T+1}
            v_add_u32 v{V_DB+i}, v{T+1}, v{T+2}
            """)
    a(f"""
    s_lshl_b32 s{S_KA}, s{S_MT}, {8 if FUSE else 31}
    s_and_b32 s{S_KA}, s{S_KA}, 0x7ff
    s_mul_i32 s{S_KB}, s{S_MT}, {128*WP if FUSE else 0}
    s_mov_b32 s{S_KH}, s{S_KA}
    s_lshl_b32 s{S_MA}, s{S_WQ}, 12
    s_add_u32 s{S_MA}, s{S_MA}, {Go*2*G1_ASLOT}
    s_mul_i32 s{S_MB}, s{S_WQ}, {nB*1024}
    s_add_u32 s{S_MB}, s{S_MB}, {G1_BBASE + p0*1024}
    s_mov_b32 s{S_BSL}, 0
    """)
    def dma_A():
        for i in range(4):
            a(f"""
            s_add_u32 m0, s{S_MA}, {i*1024}
            s_add_u32 s{S_TMP}, s{S_KA}, {i*16384}
            buffer_load_dwordx4 v{V_DA}, {sr(SRD_XA,4)}, s{S_TMP} offen lds
            """)
        a(f"""
        s_add_u32 s{S_KA}, s{S_KA}, 128
        s_and_b32 s{S_KA}, s{S_KA}, 0x7ff
        s_xor_b32 s{S_MA}, s{S_MA}, {G1_ASLOT}
        """)
    def dma_B():
        for i in range(nB):
            a(f"""
            s_add_u32 m0, s{S_MB}, {i*1024}
            s_nop 0
            buffer_load_dwordx4 v{V_DB+i}, {sr(SRD_W,4)}, s{S_KB} offen lds
            """)
        if halo:
            a(f"""
            s_add_u32 m0, s{S_MB}, s{S_HD}
            s_nop 0
            buffer_load_dwordx4 v{V_DH}, {sr(SRD_X,4)}, s{S_KH} offen lds
            s_add_u32 s{S_KH}, s{S_KH}, 128
            s_and_b32 s{S_KH}, s{S_KH}, 0x7ff
            """)
        a(f"""
        s_add_u32 s{S_KB}, s{S_KB}, {64*WP}
        s_cmp_eq_u32 s{S_KB}, {1024*WP}
        s_cselect_b32 s{S_KB}, 0, s{S_KB}
        s_add_u32 s{S_BSL}, s{S_BSL}, 1
        s_add_u32 s{S_MB}, s{S_MB}, {G1_BSLOT}
        s_cmp_eq_u32 s{S_BSL}, 3
        s_cselect_b32 s{S_TMP}, {3*G1_BSLOT}, 0
        s_cselect_b32 s{S_BSL}, 0, s{S_BSL}
        s_sub_u32 s{S_MB}, s{S_MB}, s{S_TMP}
        """)
    if G == 0:
        dma_B(); dma_A(); dma_B()
        pro_wait = 4 + nBiss
    else:
        dma_A(); dma_B(); dma_A(); dma_B()
        pro_wait = 4 + nBiss
    WARM = "nowarmw" not in OPTS and not FUSE
    a(f"""
    s_and_b32 s{S_WOP+1}, s{S_WOP+1}, 0xffff
    s_and_b32 s{S_W2P+1}, s{S_W2P+1}, 0xffff
    s_lshl_b32 s{S_GW}, s2, 3
    s_add_u32 s{S_GW}, s{S_GW}, s{S_WAVE}
    s_lshl_b32 s{S_GW}, s{S_GW}, 10
    v_lshlrev_b32 v{V_L16}, 4, v{V_LANE}
    s_mov_b32 s{S_WPK}, {128*WP}
    s_mov_b32 s{S_KW}, 0
    """)
    if WARM:
        a(f"""
        v_min_u32 v{T}, {2*CH - 1}, v{V_LANE}
        v_cmp_le_u32 vcc, {CH}, v{T}
        s_lshl_b32 s{S_TMP}, s{S_MT}, 4
        s_lshl_b32 s{S_TMP2}, s{S_WAVE}, 1
        v_cndmask_b32 v{T+1}, 0, 1, vcc              ; row
        s_add_u32 s{S_TMP}, s{S_TMP}, s{S_TMP2}
        v_mul_u32_u24 v{T+2}, {CH}, v{T+1}
        v_sub_u32 v{T}, v{T}, v{T+2}                 ; chunk
        v_add_u32 v{T+1}, s{S_TMP}, v{T+1}
        v_mul_u32_u24 v{T+1}, {WP}, v{T+1}
        """)
        if qkv:
            a(f"""
            v_lshrrev_b32 v{T+2}, 3, v{T}
            v_lshl_add_u32 v{T+1}, v{T+2}, 11, v{T+1}
            v_and_b32 v{T}, 7, v{T}
            s_lshl_b32 s{S_TMP}, s{S_JT}, 7
            """)
        else:
            a(f"s_mul_i32 s{S_TMP}, s{S_JT}, 448")
        a(f"""
        v_lshl_add_u32 v{T+1}, v{T}, 4, v{T+1}
        v_add_u32 v{V_WV}, s{S_TMP}, v{T+1}
        s_mov_b32 s{S_KW}, {256*WP}
        buffer_load_dwordx4 {vr(V_WD)}, v{V_WV}, {sr(SRD_W,4)}, s{S_KW} offen
        s_mov_b32 s{S_KW}, {384*WP}
        buffer_load_dwordx4 {vr(V_WD)}, v{V_WV}, {sr(SRD_W,4)}, s{S_KW} offen
        s_mov_b32 s{S_KW}, {512*WP}
        s_mov_b32 s{SRD_WW}, s{SRD_W}
        s_mov_b32 s{SRD_WW+1}, s{SRD_W+1}
        s_mov_b32 s{SRD_WW+2}, s{SRD_W+2}
        s_mov_b32 s{SRD_WW+3}, 0x20000
        s_and_b32 s{S_WOP+1}, s{S_WOP+1}, 0xffff
        s_and_b32 s{S_W2P+1}, s{S_W2P+1}, 0xffff
        s_mov_b32 s{S_WPK}, {128*WP}
        s_lshl_b32 s{S_GW}, s2, 3
        s_add_u32 s{S_GW}, s{S_GW}, s{S_WAVE}
        s_lshl_b32 s{S_GW}, s{S_GW}, 10
        v_lshlrev_b32 v{V_L16}, 4, v{V_LANE}
        """)
        pro_wait += 2
        nIss += 1
    NCOL = 16 * 2 * NB
    VCS = 216 - 4 * len(cs_slots)
    if FUSE:
        a(f"""
        s_add_u32 s{SRD_ST}, s{S_WS}, {ST_OFF}
        s_addc_u32 s{SRD_ST+1}, s{S_WS+1}, 0
        s_and_b32 s{SRD_ST+1}, s{SRD_ST+1}, 0xffff
        s_mov_b32 s{SRD_ST+2}, {65536 + 262144}
        s_mov_b32 s{SRD_ST+3}, 0x20000
        s_mov_b32 s{SRD_DBG}, s{S_DBGP}
        s_and_b32 s{SRD_DBG+1}, s{S_DBGP+1}, 0xffff
        s_mov_b32 s{SRD_DBG+2}, 256
        s_mov_b32 s{SRD_DBG+3}, 0x20000
        s_add_u32 s{S_NTI}, s{S_JT}, {16*typ}
        s_mov_b32 s{S_EV}, {(1<<2) | (1<<5) | (1<<12) | (1<<14) if G == 0 else (1<<2)}
        """)
        if G == 1:
            a(f"""
            s_lshl_b32 s{S_TMP}, s{S_MT}, 8
            s_lshl_b32 s{S_TMP2}, s{S_NTI}, 3
            s_add_u32 s{S_TMP}, s{S_TMP}, s{S_TMP2}
            s_lshl_b32 s{S_TMP2}, s{S_WQ}, 1
            s_add_u32 s{S_KW}, s{S_TMP}, s{S_TMP2}
            s_lshl_b32 s{S_TMP}, s{S_KW}, 11
            """)
            for i in range(4):
                a(f"buffer_load_dwordx4 {vr(V_XF+4*i)}, v{V_L16}, {sr(SRD_X,4)}, s{S_TMP} offen offset:{1024*i}")
            pro_wait += 4
    if qkv:
        if G == 0:
            a(f"""
            s_mul_i32 s{S_TMP}, s{S_NW}, 6
            s_lshl_b32 s{S_TMP2}, s{S_MW}, 1
            s_add_u32 s{S_BLK+0}, s{S_TMP}, s{S_TMP2}
            s_add_u32 s{S_BLK+0}, s{S_BLK+0}, 2
            s_add_u32 s{S_BLK+1}, s{S_BLK+0}, 1
            s_mov_b32 s{S_BLK+2}, s{S_TMP}
            s_add_u32 s{S_BLK+3}, s{S_TMP}, 1
            s_sub_u32 s{S_BLK+4}, s{S_TMP}, s{S_TMP2}
            s_add_u32 s{S_BLK+4}, s{S_BLK+4}, 4
            s_add_u32 s{S_BLK+5}, s{S_BLK+4}, 1
            """)
        else:
            a(f"s_mul_i32 s{S_TMP}, s{S_NW}, 6")
            for s in range(6):
                a(f"s_add_u32 s{S_BLK+s}, s{S_TMP}, {s}")
    else:
        a(f"s_lshl_b32 s{S_TMP2}, s{S_NW}, 3")
        for ps in range(3):
            a(f"""
            s_add_u32 s{S_TMP}, s{S_MW}, {(ps + 2*G) % 3}
            s_cmp_ge_u32 s{S_TMP}, 3
            s_cselect_b32 s{S_TMP3}, 3, 0
            s_sub_u32 s{S_TMP}, s{S_TMP}, s{S_TMP3}
            s_lshl_b32 s{S_TMP}, s{S_TMP}, 1
            s_add_u32 s{S_BLK+2*ps}, s{S_TMP}, s{S_TMP2}
            s_add_u32 s{S_BLK+2*ps+1}, s{S_BLK+2*ps}, 1
            """)
        a(f"s_add_u32 s{S_BLK+6}, s{S_NW}, 6")
    a(f"""
    v_and_b32 v{T}, 7, v{V_TT}
    v_xor_b32 v{T}, v{V_GG}, v{T}                    ; g ^ (t&7)
    v_lshlrev_b32 v{T}, 4, v{T}
    v_lshl_add_u32 v{T}, v{V_TT}, 7, v{T}
    s_lshl_b32 s{S_TMP}, s{S_MW}, 13
    s_add_u32 s{S_TMP}, s{S_TMP}, {G*2*G1_ASLOT}
    s_lshl_b32 s{S_TMP2}, s{S_NW}, 12
    s_add_u32 s{S_TMP3}, s{S_TMP}, s{S_TMP2}
    v_add_u32 v{V_RA+0}, s{S_TMP3}, v{T}
    v_xor_b32 v{V_RA+1}, 64, v{V_RA+0}
    s_xor_b32 s{S_TMP2}, s{S_TMP2}, 4096
    s_add_u32 s{S_TMP3}, s{S_TMP}, s{S_TMP2}         ; sp=1
    v_add_u32 v{V_RA+2}, s{S_TMP3}, v{T}
    v_xor_b32 v{V_RA+3}, 64, v{V_RA+2}
    """)
    if halo:
        a(f"""
        v_add_u32 v{V_RH+0}, {G1_BBASE + G1_HALO}, v{T}
        v_xor_b32 v{V_RH+1}, 64, v{V_RH+0}
        """)
    a(f"""
    v_lshrrev_b32 v{T}, 2, v{V_TT}                   ; r
    v_lshl_add_u32 v{T+1}, v{V_GG}, 3, v{T}          ; 8g + r
    v_mul_u32_u24 v{T+1}, {PB}, v{T+1}
    v_and_b32 v{T+2}, 3, v{V_LANE}
    v_lshl_add_u32 v{T+1}, v{T+2}, 3, v{T+1}         ; + c*8
    v_add_u32 v{T+1}, {G1_BBASE}, v{T+1}
    v_and_b32 v{T+2}, 1, v{V_GG}                     ; g&1
    """)
    if qkv:
        a(f"""
        v_lshrrev_b32 v{T+3}, 1, v{T}                ; bit1(r)
        v_lshl_or_b32 v{T+2}, v{T+2}, 1, v{T+3}      ; f
        """)
    for s in range(NB):
        a(f"""
        v_xor_b32 v{T+3}, s{S_BLK+s}, v{T+2}
        v_lshl_add_u32 v{V_RB+s}, v{T+3}, 5, v{T+1}
        """)
    nacc = (NB * 4) * 4
    for r in range(V_ACC, V_ACC + nacc):
        a(f"v_mov_b32 v{r}, 0")
    if halo:
        for r in range(V_HACC, V_HACC + 8):
            a(f"v_mov_b32 v{r}, 0")
    if FUSE:
        for r in range(4 * len(cs_slots)):
            a(f"v_mov_b32 v{VCS+r}, 0")
        for r in range(4):
            a(f"v_mov_b32 v{V_ONES+r}, 0x3f803f80")
    a(f"""
    s_mov_b32 s{S_BSC}, {G1_BSLOT}
    s_mov_b32 s{S_J}, 0
    s_mov_b32 s{S_RSL}, 0
    s_waitcnt vmcnt({pro_wait})
    s_barrier
    """)
    stamp_now(a, 33)
    if G == 1:
        if FUSE:
            a("s_waitcnt vmcnt(0)")
            row_stats(a, V_XF, V_WF, V_WF + 16, V_WF + 20, V_WF + 21)
            row_stats(a, V_XF + 8, V_WF, V_WF + 18, V_WF + 20, V_WF + 21)
            a(f"""
            v_lshlrev_b32 v{V_WF+20}, 24, v{V_LANE}
            s_lshl_b32 s{S_TMP}, s{S_KW}, 3
            buffer_store_dwordx4 {vr(V_WF+16)}, v{V_WF+20}, {sr(SRD_ST,4)}, s{S_TMP} offen sc0 sc1
            """)
        a("s_barrier")
    if STAMP: a(f"s_mov_b32 s{S_SB}, 0")

    def rd_x(i):
        sp, e = i >> 1, i & 1
        for kk in range(2):
            a(f"ds_read_b128 {vr(xf(i,kk))}, v{V_RA+sp*2+kk} offset:{e*2048}")
    def rd_w(s):
        for kk in range(2):
            for h in range(2):
                a(f"ds_read_b64_tr_b16 {vr(wf(s,kk)+2*h,2)}, v{V_RB+s} offset:{(32*kk+4*h)*PB}")
    def dma_list():
        L = []
        for i in range(4):
            L.append(f"""
            s_add_u32 m0, s{S_MAE}, {i*1024}
            s_add_u32 s{S_TMP}, s{S_KA}, {i*16384}
            buffer_load_dwordx4 v{V_DA}, {sr(SRD_XA,4)}, s{S_TMP} offen lds
            """)
        for i in range(nB):
            L.append(f"""
            s_add_u32 m0, s{S_MBE}, {i*1024}
            s_nop 0
            buffer_load_dwordx4 v{V_DB+i}, {sr(SRD_W,4)}, s{S_KB} offen lds
            """)
        if halo:
            L.append(f"""
            s_add_u32 m0, s{S_MBE}, s{S_HD}
            s_nop 0
            buffer_load_dwordx4 v{V_DH}, {sr(SRD_X,4)}, s{S_KH} offen lds
            """)
        if WARM:
            L.append(f"buffer_load_dwordx4 {vr(V_WD)}, v{V_WV}, {sr(SRD_WW,4)}, s{S_KW} offen")
        return L
    a(f"""
    s_mov_b32 s{S_MAE}, s{S_MA}
    s_mov_b32 s{S_MBE}, s{S_MB}
    """)
    reads = []
    for i in range(4):
        sp, e = i >> 1, i & 1
        for kk in range(2):
            reads.append((kk, f"ds_read_b128 {vr(xf(i,kk))}, v{V_RA+sp*2+kk} offset:{e*2048}"))
    if halo:
        for kk in range(2):
            reads.append((kk, f"ds_read_b128 {vr(hf(kk))}, v{V_RH+kk}"))
    for s_ in range(NB):
        for kk in range(2):
            for h in range(2):
                reads.append((kk, f"ds_read_b64_tr_b16 {vr(wf(s_,kk)+2*h,2)}, v{V_RB+s_} offset:{(32*kk+4*h)*PB}"))
    reads = [r for k_, r in reads if k_ == 0] + [r for k_, r in reads if k_ == 1]

    bk = Collect()
    bk(f"""
    s_add_u32 s{S_KA}, s{S_KA}, 128
    s_and_b32 s{S_KA}, s{S_KA}, 0x7ff
    s_xor_b32 s{S_MA}, s{S_MA}, {G1_ASLOT}
    s_cmp_ge_u32 s{S_J}, {14 if G == 0 else 13}
    s_cselect_b32 s{SRD_XA+2}, 0, s{SRD_XA+2}
    s_cselect_b32 s{S_MAE}, {LDS_DUMP}, s{S_MA}
    s_add_u32 s{S_KH}, s{S_KH}, 128
    s_and_b32 s{S_KH}, s{S_KH}, 0x7ff
    s_add_u32 s{S_KW}, s{S_KW}, s{S_WPK}
    s_add_u32 s{S_KB}, s{S_KB}, {64*WP}
    s_cmp_eq_u32 s{S_KB}, {1024*WP}
    s_cselect_b32 s{S_KB}, 0, s{S_KB}
    s_add_u32 s{S_BSL}, s{S_BSL}, 1
    s_add_u32 s{S_MB}, s{S_MB}, {G1_BSLOT}
    s_cmp_eq_u32 s{S_BSL}, 3
    s_cselect_b32 s{S_TMP}, {3*G1_BSLOT}, 0
    s_cselect_b32 s{S_BSL}, 0, s{S_BSL}
    s_sub_u32 s{S_MB}, s{S_MB}, s{S_TMP}
    s_cmp_ge_u32 s{S_J}, 13
    s_cselect_b32 s{S_MBE}, {LDS_DUMP}, s{S_MB}
    s_cselect_b32 s{SRD_W+2}, 0, s{SRD_W+2}
    s_cselect_b32 s{SRD_X+2}, 0, s{SRD_X+2}
    s_add_u32 s{S_RSL}, s{S_RSL}, 1
    s_cmp_eq_u32 s{S_RSL}, 3
    s_cselect_b32 s{S_BD}, {(-2*G1_BSLOT) & 0xffffffff}, s{S_BSC}
    s_cselect_b32 s{S_RSL}, 0, s{S_RSL}
    """)
    for r in range(4):
        bk(f"v_xor_b32 v{V_RA+r}, {G1_ASLOT}, v{V_RA+r}")
    for s_ in range(NB):
        bk(f"v_add_u32 v{V_RB+s_}, s{S_BD}, v{V_RB+s_}")
    if halo:
        for kk in range(2):
            bk(f"v_add_u32 v{V_RH+kk}, s{S_BD}, v{V_RH+kk}")
    BKL = "bkL" in OPTS
    a.raw(".p2align 6")
    a.label(P + "_loop")
    if STAMP: a(f"s_memtime {sr(S_SA)}")
    dl = dma_list()
    step = max(3, len(reads) // len(dl))
    order = "rdfirst" if "rdfirst" in OPTS else "mix"
    if order == "rdfirst":
        for r in reads: a(r)
        for d in dl: a(d)
    else:
        di = 0
        for n_, r in enumerate(reads):
            a(r)
            if (n_ % step) == 1 and di < len(dl):
                a(dl[di]); di += 1
        while di < len(dl):
            a(dl[di]); di += 1
    if BKL:
        for l_ in bk.L: a(l_)
    if STAMP: a(f"s_memtime {sr(100)}")
    if FUSE:
        a(f"""
        s_bitcmp1_b32 s{S_EV}, s{S_J}
        s_cbranch_scc1 {P}_event
        """)
    a(f"s_waitcnt vmcnt({0 if 'strictwait' in OPTS else nIss}) lgkmcnt(0)")
    a.label(P + "_afterwait")
    if STAMP:
        a(f"""
        s_lshl_b32 s{S_SI}, s{S_J}, 1
        s_mov_b32 m0, s{S_SI}
        s_nop 3
        v_writelane_b32 v{V_STAMP}, s{S_SA}, m0
        s_add_u32 s{S_SI}, s{S_SI}, 63
        s_and_b32 m0, s{S_SI}, 63
        s_nop 3
        v_writelane_b32 v{V_STAMP}, s{S_SB}, m0
        s_memtime {sr(S_SC)}
        s_cmp_eq_u32 s{S_J}, 8
        s_cbranch_scc0 {P}_nost
        s_waitcnt lgkmcnt(0)
        v_writelane_b32 v{V_STAMP}, s{S_SA}, 40
        v_writelane_b32 v{V_STAMP}, s100, 41
        v_writelane_b32 v{V_STAMP}, s{S_SC}, 42
        """)
        a.label(P + "_nost")
    a("s_barrier")
    if STAMP: a(f"s_memtime {sr(S_SB)}")
    a("s_setprio 1")
    mf = []
    for kk in range(2):
        for s_ in range(NB):
            for i in range(4):
                mf.append(f"v_mfma_f32_16x16x32_bf16 {vr(acc(s_,i))}, {vr(wf(s_,kk))}, {vr(xf(i,kk))}, {vr(acc(s_,i))}")
        if halo:
            for s_ in range(2):
                mf.append(f"v_mfma_f32_16x16x32_bf16 {vr(V_HACC+4*s_)}, {vr(wf(s_,kk))}, {vr(hf(kk))}, {vr(V_HACC+4*s_)}")
    interleave(a, mf, [] if BKL else bk.L, start=2, per=1)
    if FUSE:
        a(f"""
        s_cmp_lt_u32 s{S_J}, 2
        s_cbranch_scc0 {P}_nocs
        """)
        for kk in range(2):
            for ci, s_ in enumerate(cs_slots):
                a(f"v_mfma_f32_16x16x32_bf16 {vr(VCS+4*ci)}, {vr(wf(s_,kk))}, {vr(V_ONES)}, {vr(VCS+4*ci)}")
        a.label(P + "_nocs")
    a(f"""
    s_setprio 0
    s_add_u32 s{S_J}, s{S_J}, 1
    s_cmp_lt_u32 s{S_J}, 16
    """)
    if G == 0:
        a(f"""
        s_barrier
        s_cbranch_scc1 {P}_loop
        s_branch {P}_post
        """)
    else:
        a(f"""
        s_cbranch_scc0 {P}_post
        s_barrier
        s_branch {P}_loop
        """)
    if FUSE:
        a.label(P + "_event")
        if G == 0:
            a(f"""
            s_cmp_eq_u32 s{S_J}, 2
            s_cbranch_scc0 {P}_ev5
            """)
        a(f"""
        v_lshlrev_b32 v{T}, 24, v{V_TT}
        v_lshl_add_u32 v{T}, v{V_GG}, 4, v{T}
        s_lshl_b32 s{S_TMP2}, s{S_NTI}, 3
        s_add_u32 s{S_TMP2}, s{S_TMP2}, s{S_MT}
        s_lshl_b32 s{S_TMP2}, s{S_TMP2}, 10
        s_add_u32 s{S_TMP2}, s{S_TMP2}, 65536
        """)
        for ci, s_ in enumerate(cs_slots):
            a(f"""
            s_lshl_b32 s{S_TMP}, s{S_BLK+s_}, 6
            s_add_u32 s{S_TMP}, s{S_TMP}, s{S_TMP2}
            buffer_store_dwordx4 {vr(VCS+4*ci)}, v{T}, {sr(SRD_ST,4)}, s{S_TMP} offen sc0 sc1
            """)
        a(f"""
        s_waitcnt vmcnt({nIss + len(cs_slots)}) lgkmcnt(0)
        s_branch {P}_afterwait
        """)
        if G == 0:
            a.label(P + "_ev5")
            a(f"""
            s_cmp_eq_u32 s{S_J}, 14
            s_cbranch_scc1 {P}_ev14
            s_sub_u32 s{S_TMP}, s{S_MT}, 1
            s_max_i32 s{S_TMP}, s{S_TMP}, 0
            s_lshl_b32 s{S_TMP}, s{S_TMP}, 2
            s_lshl_b32 s{S_TMP2}, s{S_NTI}, 2
            s_add_u32 s{S_TMP2}, s{S_TMP2}, 32
            s_lshl_b32 s{S_TMP3}, s{S_MT}, 2
            v_mov_b32 v{T}, 0x1000
            v_writelane_b32 v{T}, s{S_TMP3}, 0
            v_writelane_b32 v{T}, s{S_TMP2}, 1
            s_cmp_lg_u32 s{S_WAVE}, 0
            s_cselect_b32 s{S_TMP2}, 0x1000, 0
            s_cmp_eq_u32 s{S_J}, 5
            s_cbranch_scc0 {P}_ev12
            v_mov_b32 v{T+1}, 1
            buffer_atomic_add v{T+1}, v{T}, {sr(SRD_DBG,4)}, s{S_TMP2} offen sc1
            s_waitcnt vmcnt({nIss + 1}) lgkmcnt(0)
            s_branch {P}_afterwait
            """)
            a.label(P + "_ev12")
            a(f"""
            v_writelane_b32 v{T}, s{S_TMP}, 2
            s_nop 1
            buffer_load_dword v{V_CHK}, v{T}, {sr(SRD_DBG,4)}, s{S_TMP2} offen sc0 sc1
            s_waitcnt vmcnt({nIss + 1}) lgkmcnt(0)
            s_branch {P}_afterwait
            """)
            a.label(P + "_ev14")
            a(f"""
            s_cmp_eq_u32 s{S_WQ}, 0
            s_cbranch_scc0 {P}_ev14b
            s_lshl_b32 s{S_TMP}, s{S_MT}, 11
            s_sub_u32 s{S_TMP}, s{S_TMP}, 128
            v_add_u32 v{T}, s{S_TMP}, v{V_L16}
            v_max_i32 v{T}, 0, v{T}
            s_add_u32 s{S_TMP}, s{S_TMP}, 1024
            v_add_u32 v{T+1}, s{S_TMP}, v{V_L16}
            s_mov_b32 m0, {G1_STAT}
            s_nop 0
            buffer_load_dwordx4 v{T}, {sr(SRD_ST,4)}, 0 offen sc0 sc1 lds
            s_mov_b32 m0, {G1_STAT + 1024}
            s_nop 0
            buffer_load_dwordx4 v{T+1}, {sr(SRD_ST,4)}, 0 offen sc0 sc1 lds
            buffer_load_dwordx4 v{T+1}, {sr(SRD_ST,4)}, 0 offen offset:1024 sc0 sc1 lds
            s_waitcnt vmcnt({nIss + 3}) lgkmcnt(0)
            s_branch {P}_afterwait
            """)
            a.label(P + "_ev14b")
            a(f"""
            s_mul_i32 s{S_TMP}, s{S_WQ}, 3072
            s_sub_u32 s{S_TMP}, s{S_TMP}, 3072
            s_add_u32 m0, s{S_TMP}, {G1_CSP}
            s_lshl_b32 s{S_TMP2}, s{S_NTI}, 13
            s_add_u32 s{S_TMP2}, s{S_TMP2}, s{S_TMP}
            s_add_u32 s{S_TMP2}, s{S_TMP2}, 65536
            buffer_load_dwordx4 v{V_L16}, {sr(SRD_ST,4)}, s{S_TMP2} offen sc0 sc1 lds
            buffer_load_dwordx4 v{V_L16}, {sr(SRD_ST,4)}, s{S_TMP2} offen offset:1024 sc0 sc1 lds
            s_cmp_eq_u32 s{S_WQ}, 3
            s_cselect_b32 s{S_TMP}, {LDS_DUMP}, m0
            s_mov_b32 m0, s{S_TMP}
            s_nop 0
            buffer_load_dwordx4 v{V_L16}, {sr(SRD_ST,4)}, s{S_TMP2} offen offset:2048 sc0 sc1 lds
            s_waitcnt vmcnt({nIss + 3}) lgkmcnt(0)
            s_branch {P}_afterwait
            """)
    a.label(P + "_post")
    if STAMP:
        a(f"""
        s_waitcnt lgkmcnt(0)
        v_writelane_b32 v{V_STAMP}, s{S_SB}, 31
        """)
    stamp_now(a, 34)
    if "nowarm2" not in OPTS:
        a(f"""
        s_mov_b32 s{SRD_ST}, s{S_WOP}
        s_mov_b32 s{SRD_ST+1}, s{S_WOP+1}
        s_mov_b32 s{SRD_ST+2}, {1024*2048}
        s_mov_b32 s{SRD_DBG}, s{S_W2P}
        s_mov_b32 s{SRD_DBG+1}, s{S_W2P+1}
        s_mov_b32 s{SRD_DBG+2}, {3584*2048}
        s_mov_b32 s{SRD_ST+3}, 0x20000
        s_mov_b32 s{SRD_DBG+3}, 0x20000
        s_lshl_b32 s{S_TMP}, s{S_GW}, 2
        buffer_load_dwordx4 {vr(V_HF)}, v{V_L16}, {sr(SRD_ST,4)}, s{S_GW} offen
        """)
        for i in range(4):
            a(f"buffer_load_dwordx4 {vr(V_HF)}, v{V_L16}, {sr(SRD_DBG,4)}, s{S_TMP} offen offset:{i*1024}")
    if FUSE:
        if G == 0:
            a(f"""
            v_mov_b32 v{T}, 0
            v_writelane_b32 v{T}, 32, 0
            v_writelane_b32 v{T}, 8, 1
            v_writelane_b32 v{T}, 32, 2
            s_nop 1
            v_cmp_ne_u32 vcc, v{T}, v{V_CHK}
            s_nop 3
            s_and_b32 s{S_TMP}, vcc_lo, 7
            """)
            if "forceslow" in OPTS: a(f"s_mov_b32 s{S_TMP}, 1")
            a(f"""
            v_mov_b32 v{T}, {G1_VERD}
            v_mov_b32 v{T+1}, s{S_TMP}
            s_cmp_eq_u32 s{S_WAVE}, 0
            s_cbranch_scc0 {P}_red
            ds_write_b32 v{T}, v{T+1}
            """)
        a.label(P + "_red")
        if G == 0:
            a(f"""
            s_lshl_b32 s{S_TMP}, s{S_WQ}, 8
            v_lshl_add_u32 v{T}, v{V_LANE}, 2, s{S_TMP}  ; thread * 4
            v_add_u32 v{T+1}, {G1_CSP}, v{T}
            """)
            for m in range(8):
                a(f"ds_read_b32 v{V_XF+m}, v{T+1} offset:{1024*m}")
            a(f"""
            v_min_u32 v{T}, {4*NCOL - 4}, v{T}
            v_add_u32 v{T}, {G1_CS}, v{T}
            v_cmp_gt_u32 vcc, {4*NCOL + G1_CSP}, v{T+1}
            s_waitcnt lgkmcnt(0)
            """)
            for m in range(1, 8):
                a(f"v_add_f32 v{V_XF}, v{V_XF}, v{V_XF+m}")
            a(f"""
            s_and_saveexec_b64 {sr(S_TMP2)}, vcc
            ds_write_b32 v{T}, v{V_XF}
            s_mov_b64 exec, -1
            s_waitcnt lgkmcnt(0)
            """)
        a(f"""
        s_barrier
        v_mov_b32 v{T}, {G1_VERD}
        ds_read_b32 v{T+1}, v{T}
        s_waitcnt lgkmcnt(0)
        v_readfirstlane_b32 s{S_TMP}, v{T+1}
        s_nop 3
        s_cmp_eq_u32 s{S_TMP}, 0
        s_cbranch_scc1 {P}_fast
        s_barrier
        s_mov_b32 s{SRD_X+2}, {2048*2048}
        s_mov_b32 s{SRD_W+2}, {1024*WP}
        s_mov_b32 s{S_J}, s{S_WAVE}
        """)
        a.label(P + "_slow1")
        a(f"""
        s_lshl_b32 s{S_TMP}, s{S_MT}, 8
        s_add_u32 s{S_TMP}, s{S_TMP}, s{S_J}
        s_sub_u32 s{S_TMP}, s{S_TMP}, 16
        s_max_i32 s{S_TMP}, s{S_TMP}, 0
        s_lshl_b32 s{S_TMP}, s{S_TMP}, 11
        buffer_load_dwordx4 {vr(V_XF)}, v{V_L16}, {sr(SRD_X,4)}, s{S_TMP} offen
        buffer_load_dwordx4 {vr(V_XF+4)}, v{V_L16}, {sr(SRD_X,4)}, s{S_TMP} offen offset:1024
        s_waitcnt vmcnt(0)
        """)
        row_stats(a, V_XF, V_WF, V_WF + 16, V_WF + 20, V_WF + 21)
        a(f"""
        s_lshl_b32 s{S_TMP}, s{S_J}, 3
        s_add_u32 s{S_TMP}, s{S_TMP}, {G1_STAT}
        v_mov_b32 v{T}, s{S_TMP}
        ds_write_b64 v{T}, {vr(V_WF+16,2)}
        s_add_u32 s{S_J}, s{S_J}, 8
        s_cmp_lt_u32 s{S_J}, 272
        s_cbranch_scc1 {P}_slow1
        v_min_u32 v{T}, {CH-1}, v{V_LANE}
        """)
        if qkv:
            a(f"""
            v_cmp_le_u32 vcc, 12, v{T}
            s_nop 1
            v_cndmask_b32 v{T+1}, 0, 1, vcc              ; hh
            v_mul_u32_u24 v{T+2}, 12, v{T+1}
            v_sub_u32 v{T+2}, v{T}, v{T+2}
            v_lshrrev_b32 v{T+3}, 2, v{T+2}              ; part
            v_and_b32 v{T+2}, 3, v{T+2}
            v_lshlrev_b32 v{T+3}, 11, v{T+3}
            v_lshl_add_u32 v{T+3}, v{T+1}, 6, v{T+3}
            v_lshl_add_u32 v{T+3}, v{T+2}, 4, v{T+3}
            s_lshl_b32 s{S_TMP}, s{S_JT}, 7
            v_add_u32 v{T+3}, s{S_TMP}, v{T+3}
            """)
        else:
            a(f"""
            s_mul_i32 s{S_TMP}, s{S_JT}, 448
            v_lshl_add_u32 v{T+3}, v{T}, 4, s{S_TMP}
            """)
        for r in range(8):
            a(f"v_mov_b32 v{V_WF+r}, 0")
        a(f"""
        s_mul_i32 s{S_TMP}, s{S_WAVE}, {128*WP}
        s_mov_b32 s{S_J}, 0
        """)
        a.label(P + "_slow2")
        a(f"""
        buffer_load_dwordx4 {vr(V_XF)}, v{T+3}, {sr(SRD_W,4)}, s{S_TMP} offen
        s_add_u32 s{S_TMP}, s{S_TMP}, {WP}
        s_add_u32 s{S_J}, s{S_J}, 1
        s_waitcnt vmcnt(0)
        """)
        for r in range(4):
            a(f"""
            v_lshlrev_b32 v{V_XF+4}, 16, v{V_XF+r}
            v_and_b32 v{V_XF+5}, 0xffff0000, v{V_XF+r}
            v_pk_add_f32 {vr(V_WF+2*r,2)}, {vr(V_WF+2*r,2)}, {vr(V_XF+4,2)}
            """)
        a(f"""
        s_cmp_lt_u32 s{S_J}, 128
        s_cbranch_scc1 {P}_slow2
        s_lshl_b32 s{S_TMP}, s{S_WAVE}, 10
        s_add_u32 s{S_TMP}, s{S_TMP}, {G1_CSP}
        v_lshl_add_u32 v{T}, v{T}, 5, s{S_TMP}
        ds_write_b128 v{T}, {vr(V_WF)}
        ds_write_b128 v{T}, {vr(V_WF+4)} offset:16
        v_mov_b32 v{T}, {G1_VERD}
        v_mov_b32 v{T+1}, 0
        ds_write_b32 v{T}, v{T+1}
        s_waitcnt lgkmcnt(0)
        s_barrier
        s_branch {P}_red
        """)
        a.label(P + "_fast")
    if "slabwarm" in OPTS:
        a(f"""
        s_add_u32 s{SRD_WW}, s{S_WS}, {64 << 20}
        s_addc_u32 s{SRD_WW+1}, s{S_WS+1}, 0
        s_and_b32 s{SRD_WW+1}, s{SRD_WW+1}, 0xffff
        s_mov_b32 s{SRD_WW+2}, {16 << 20}
        s_and_b32 s{S_TMP}, s2, 3
        s_lshr_b32 s{S_TMP2}, s{S_WAVE}, 1
        s_cmp_eq_u32 s{S_TMP}, s{S_TMP2}
        s_cselect_b32 s{SRD_WW+2}, 0, s{SRD_WW+2}
        s_lshl_b32 s{S_TMP}, s{S_GW}, 3
        s_add_u32 s{S_TMP2}, s{S_TMP}, 4096
        """)
        for i in range(8):
            a(f"buffer_load_dwordx4 {vr(V_WD)}, v{V_L16}, {sr(SRD_WW,4)}, s{S_TMP if i < 4 else S_TMP2} offen offset:{(i%4)*1024}")
    stamp_now(a, 35)
    for i in range(4):
        a(f"""
        s_lshl_b32 s{S_TMP}, s{S_MW}, 6
        s_lshl_b32 s{S_TMP2}, s{S_NW}, 5
        s_xor_b32 s{S_TMP2}, s{S_TMP2}, {16*i}
        s_add_u32 s{S_TMP}, s{S_TMP}, s{S_TMP2}
        s_add_u32 s{S_TB+i}, s{S_TMP}, {128*G}
        """)
    V_ST = V_XF; V_CSV = V_WF
    if FUSE:
        for i in range(4):
            a(f"""
            s_add_u32 s{S_TMP}, s{S_TB+i}, {16 + G1_STAT//8}
            v_add_u32 v{T+4}, s{S_TMP}, v{V_TT}
            v_lshlrev_b32 v{T+4}, 3, v{T+4}
            ds_read_b64 {vr(V_ST+2*i,2)}, v{T+4}
            """)
        if halo:
            a(f"""
            v_lshlrev_b32 v{T+4}, 3, v{V_TT}
            v_add_u32 v{T+4}, {G1_STAT}, v{T+4}
            ds_read_b64 {vr(V_ST+8,2)}, v{T+4}
            """)
        for s_ in range(NB):
            a(f"""
            s_lshl_b32 s{S_TMP}, s{S_BLK+s_}, 6
            s_add_u32 s{S_TMP}, s{S_TMP}, {G1_CS}
            v_lshl_add_u32 v{T+4}, v{V_GG}, 4, s{S_TMP}
            ds_read_b128 {vr(V_CSV+4*s_)}, v{T+4}
            """)
        a("s_waitcnt lgkmcnt(0)")
    def fixup(ab, s, st, o, relu):
        c = V_CSV + 4 * s
        if FUSE:
            a(f"""
            v_pk_fma_f32 {vr(ab,2)}, {vr(c,2)}, {vr(st,2)}, {vr(ab,2)} op_sel_hi:[1,0,1] neg_lo:[0,1,0] neg_hi:[0,1,0]
            v_pk_fma_f32 {vr(ab+2,2)}, {vr(c+2,2)}, {vr(st,2)}, {vr(ab+2,2)} op_sel_hi:[1,0,1] neg_lo:[0,1,0] neg_hi:[0,1,0]
            v_pk_mul_f32 {vr(ab,2)}, {vr(ab,2)}, {vr(st,2)} op_sel:[0,1] op_sel_hi:[1,1]
            v_pk_mul_f32 {vr(ab+2,2)}, {vr(ab+2,2)}, {vr(st,2)} op_sel:[0,1] op_sel_hi:[1,1]
            """)
        a(f"""
        v_cvt_pk_bf16_f32 v{o}, v{ab}, v{ab+1}
        v_cvt_pk_bf16_f32 v{o+1}, v{ab+2}, v{ab+3}
        """)
        if relu:
            a(f"""
            v_pk_max_i16 v{o}, v{o}, 0
            v_pk_max_i16 v{o+1}, v{o+1}, 0
            """)
    V_SIG = T + 8
    a(f"""
    v_and_b32 v{T}, 1, v{V_GG}
    v_lshrrev_b32 v{T+1}, 1, v{V_GG}
    v_lshl_or_b32 v{V_SIG}, v{T}, 1, v{T+1}
    """)
    if not qkv:
        V_PA = T + 9; V_SA = T + 10
        a(f"""
        v_lshl_add_u32 v{V_PA}, v{V_SIG}, 4, v{V_TT}
        v_lshlrev_b32 v{V_PA}, 4, v{V_PA}            ; (sigma*16 + t)*16
        s_lshl_b32 s{S_TMP}, s{S_NW}, 1
        v_add_u32 v{T+1}, s{S_TMP}, v{T+1}
        v_lshl_add_u32 v{V_SA}, v{T+1}, 4, v{V_TT}
        v_lshlrev_b32 v{V_SA}, 4, v{V_SA}
        v_lshl_add_u32 v{V_SA}, v{T}, 3, v{V_SA}
        """)
        for i in range(4):
            a(f"""
            s_lshr_b32 s{S_TMP}, s{S_TB+i}, 4
            s_lshl_b32 s{S_TMP2}, s{S_MT}, 4
            s_add_u32 s{S_TMP}, s{S_TMP}, s{S_TMP2}
            s_mul_i32 s{S_TB+i}, s{S_TMP}, {MBLK_PITCH}
            """)
        a(f"""
        s_mul_i32 s{S_TMP2}, s{S_JT}, 7
        s_add_u32 s{S_TMP2}, s{S_TMP2}, 32
        """)
        for ps in range(4):
            a(f"""
            s_lshr_b32 s{S_TMP}, s{S_BLK+2*ps}, 1
            s_add_u32 s{S_TMP}, s{S_TMP}, s{S_TMP2}
            s_lshl_b32 s{S_PO+ps}, s{S_TMP}, 10
            """)
        ob = [V_XF + 16, V_XF + 20, V_XF + 24, V_XF + 28]
        n = 0
        for i in range(4):
            st = V_ST + 2 * i
            for ps in range(3):
                o = ob[n % 4]; n += 1
                fixup(acc(2*ps, i), 2*ps, st, o, True)
                fixup(acc(2*ps+1, i), 2*ps+1, st, o+2, True)
                a(f"""
                s_add_u32 s{S_TMP}, s{S_TB+i}, s{S_PO+ps}
                s_nop 0
                v_permlane16_swap_b32 v{o}, v{o+2}
                v_permlane16_swap_b32 v{o+1}, v{o+3}
                s_nop 1
                buffer_store_dwordx4 {vr(o)}, v{V_PA}, {sr(SRD_O,4)}, s{S_TMP} offen {STH}
                """)
            o = ob[n % 4]; n += 1
            fixup(acc(6, i), 6, st, o, True)
            a(f"""
            s_add_u32 s{S_TMP}, s{S_TB+i}, s{S_PO+3}
            s_nop 1
            buffer_store_dwordx2 {vr(o,2)}, v{V_SA}, {sr(SRD_O,4)}, s{S_TMP} offen {STH}
            """)
        stamp_now(a, 36); stamp_now(a, 51, True)
        stamp_dump(a, S_WS, S_WAVE, 32 << 20)
        a("s_endpgm")
        return
    V_WA = T + 9
    a(f"""
    v_mul_u32_u24 v{V_WA}, {AT_PITCH}, v{V_TT}
    v_lshl_add_u32 v{V_WA}, v{V_GG}, 3, v{V_WA}      ; t*P + g*8
    """)
    ob = [V_XF + 16, V_XF + 18, V_XF + 20, V_XF + 22, V_XF + 24, V_XF + 26, V_XF + 28, V_XF + 30]
    n = 0
    for i in range(4):
        a(f"""
        s_add_u32 s{S_TMP}, s{S_TB+i}, 16
        s_mul_i32 s{S_TMP3}, s{S_TMP}, {AT_PITCH}
        """)
        for s in range(6):
            o = ob[n % 8]; n += 1
            fixup(acc(s, i), s, V_ST + 2 * i, o, False)
            a(f"""
            s_lshl_b32 s{S_TMP}, s{S_BLK+s}, 5
            s_add_u32 s{S_TMP}, s{S_TMP}, s{S_TMP3}
            v_add_u32 v{T}, s{S_TMP}, v{V_WA}
            ds_write_b64 v{T}, {vr(o,2)}
            """)
            if "slowepi" in OPTS: a("s_waitcnt lgkmcnt(0)")
    if halo:
        for s in range(2):
            o = ob[n % 8]; n += 1
            fixup(V_HACC + 4 * s, s, V_ST + 8, o, False)
            a(f"""
            s_lshl_b32 s{S_TMP}, s{S_BLK+s}, 5
            v_add_u32 v{T}, s{S_TMP}, v{V_WA}
            ds_write_b64 v{T}, {vr(o,2)}
            """)
    a(f"""
    s_waitcnt lgkmcnt(0)
    s_barrier
    """)
    stamp_now(a, 36)
    a("s_branch g1_attn")

def g1_attn(a):
    T = V_T
    V_SIG = T + 8
    a.label("g1_attn")
    VQ = 0; VK = 1; VV = 3
    VE = 5; VO = 6
    R = 8
    a(f"""
    s_lshl_b32 s{S_TMP}, s{S_WAVE}, 5                ; 32 w
    v_lshlrev_b32 v{T}, 1, v{V_TT}                   ; 2n
    v_add_u32 v{T+1}, s{S_TMP}, v{T}                 ; 32w + 2n
    v_add_u32 v{T+2}, 16, v{T+1}
    v_mul_u32_u24 v{T+2}, {AT_PITCH}, v{T+2}
    v_lshl_add_u32 v{VQ}, v{V_GG}, 4, v{T+2}         ; + g*16
    v_add_u32 v{VK+1}, 64, v{VQ}
    v_add_u32 v{T+2}, -16, v{T+1}                    ; rho_k(kb=0)
    v_max_i32 v{T+2}, 0, v{T+2}
    v_mul_u32_u24 v{T+2}, {AT_PITCH}, v{T+2}
    v_lshl_add_u32 v{T+2}, v{V_GG}, 4, v{T+2}
    v_add_u32 v{VK}, 64, v{T+2}
    v_lshrrev_b32 v{T}, 2, v{V_TT}
    v_lshl_add_u32 v{T}, v{V_GG}, 2, v{T}            ; a
    v_lshlrev_b32 v{T}, 1, v{T}
    v_add_u32 v{T}, s{S_TMP}, v{T}                   ; 32w + 2a
    v_and_b32 v{T+3}, 3, v{V_LANE}
    v_lshlrev_b32 v{T+3}, 3, v{T+3}
    v_add_u32 v{T+3}, 128, v{T+3}                    ; v part + c*8
    v_add_u32 v{T+2}, 16, v{T}
    v_mul_u32_u24 v{T+2}, {AT_PITCH}, v{T+2}
    v_add_u32 v{VV+1}, v{T+2}, v{T+3}
    v_add_u32 v{T+2}, -16, v{T}
    v_max_i32 v{T+2}, 0, v{T+2}
    v_mul_u32_u24 v{T+2}, {AT_PITCH}, v{T+2}
    v_add_u32 v{VV}, v{T+2}, v{T+3}
    v_lshlrev_b32 v{T}, 2, v{V_GG}
    v_sub_u32 v{VE}, v{V_TT}, v{T}
    """)
    for kb in range(2):
        for i in range(4):
            a(f"""
            v_add_u32 v{T}, {(16*(1-kb) - i)}, v{VE}
            v_cmp_ge_u32 {sr(S_MASK + 2*(4*kb+i))}, 7, v{T}
            """)
    a(f"""
    s_or_b32 s{S_TMP}, s{S_MT}, s{S_WAVE}
    s_cmp_eq_u32 s{S_TMP}, 0
    s_cbranch_scc0 g1_attn_m
    """)
    for i in range(4):
        a(f"s_mov_b64 {sr(S_MASK + 2*i)}, 0")
    a.label("g1_attn_m")
    a(f"""
    v_and_b32 v{T}, 7, v{V_TT}
    v_lshlrev_b32 v{T}, 1, v{T}
    v_lshl_add_u32 v{T}, v{V_SIG}, 4, v{T}
    v_lshlrev_b32 v{T}, 4, v{T}
    v_lshrrev_b32 v{T+1}, 3, v{V_TT}
    s_mov_b32 s{S_TMP}, {MBLK_PITCH}
    v_mul_lo_u32 v{T+1}, v{T+1}, s{S_TMP}
    v_add_u32 v{VO}, v{T}, v{T+1}
    s_lshl_b32 s{S_TMP}, s{S_MT}, 4
    s_lshl_b32 s{S_TMP2}, s{S_WAVE}, 1
    s_add_u32 s{S_TMP}, s{S_TMP}, s{S_TMP2}
    s_mul_i32 s{S_TMP}, s{S_TMP}, {MBLK_PITCH}
    s_lshl_b32 s{S_TMP2}, s{S_JT}, 11
    s_add_u32 s{S_TMP3}, s{S_TMP}, s{S_TMP2}
    v_mov_b32 v{T+10}, 0xff800000                    ; -inf
    v_mov_b32 v{T+4}, 0x3e3504f3
    v_mov_b32 v{T+5}, 0x3e3504f3
    v_mov_b32 v{T+6}, 0x3fb8aa3b
    v_mov_b32 v{T+7}, 0x3fb8aa3b
    """)
    NEG = T + 10; CSC = T + 4; CL2 = T + 6
    units = [(hh, p) for hh in range(2) for p in range(2)]
    UR = 32
    for u, (hh, p) in enumerate(units):
        b = R + u * UR
        off = p * AT_PITCH + hh * 192
        a(f"""
        ds_read_b128 {vr(b)}, v{VQ} offset:{off}
        ds_read_b128 {vr(b+4)}, v{VK} offset:{off}
        ds_read_b128 {vr(b+8)}, v{VK+1} offset:{off}
        """)
        for db in range(2):
            for kb in range(2):
                a(f"ds_read_b64_tr_b16 {vr(b+12+4*db+2*kb,2)}, v{VV+kb} offset:{off+32*db}")
    a("s_waitcnt lgkmcnt(0)")
    for u in range(4):
        b = R + u * UR
        a(f"""
        v_mfma_f32_16x16x32_bf16 {vr(b+20)}, {vr(b+4)}, {vr(b)}, 0
        v_mfma_f32_16x16x32_bf16 {vr(b+24)}, {vr(b+8)}, {vr(b)}, 0
        """)
    a("s_nop 7")
    for u, (hh, p) in enumerate(units):
        b = R + u * UR
        z = b + 20
        t0 = b + 28; t1 = b + 29
        for i in range(0, 8, 2):
            a(f"""
            v_cvt_pk_bf16_f32 v{t0}, v{z+i}, v{z+i+1}
            v_lshlrev_b32 v{z+i}, 16, v{t0}
            v_and_b32 v{z+i+1}, 0xffff0000, v{t0}
            v_pk_mul_f32 {vr(z+i,2)}, {vr(z+i,2)}, {vr(CSC,2)}
            v_cvt_pk_bf16_f32 v{t0}, v{z+i}, v{z+i+1}
            v_lshlrev_b32 v{z+i}, 16, v{t0}
            v_and_b32 v{z+i+1}, 0xffff0000, v{t0}
            v_cndmask_b32 v{z+i}, v{NEG}, v{z+i}, {sr(S_MASK+2*i)}
            v_cndmask_b32 v{z+i+1}, v{NEG}, v{z+i+1}, {sr(S_MASK+2*i+2)}
            """)
        a(f"""
        v_max3_f32 v{t0}, v{z}, v{z+1}, v{z+2}
        v_max3_f32 v{t0}, v{t0}, v{z+3}, v{z+4}
        v_max3_f32 v{t0}, v{t0}, v{z+5}, v{z+6}
        v_max_f32 v{t0}, v{t0}, v{z+7}
        """)
        xlane_max(a, t0, t1)
        for i in range(0, 8, 2):
            a(f"""
            v_pk_add_f32 {vr(z+i,2)}, {vr(z+i,2)}, {vr(t0,2)} op_sel_hi:[1,0] neg_lo:[0,1] neg_hi:[0,1]
            v_pk_mul_f32 {vr(z+i,2)}, {vr(z+i,2)}, {vr(CL2,2)}
            """)
        for i in range(8):
            a(f"v_exp_f32 v{z+i}, v{z+i}")
        a(f"""
        s_nop 0
        v_pk_add_f32 {vr(t0,2)}, {vr(z,2)}, {vr(z+2,2)}
        v_pk_add_f32 {vr(t0+2,2)}, {vr(z+4,2)}, {vr(z+6,2)}
        v_pk_add_f32 {vr(t0,2)}, {vr(t0,2)}, {vr(t0+2,2)}
        v_add_f32 v{t0}, v{t0}, v{t1}
        """)
        xlane_sum(a, t0, t1)
        a(f"""
        v_rcp_f32 v{t0}, v{t0}
        s_nop 0
        """)
        for i in range(0, 8, 2):
            a(f"v_pk_mul_f32 {vr(z+i,2)}, {vr(z+i,2)}, {vr(t0,2)} op_sel_hi:[1,0]")
        for i in range(4):
            a(f"v_cvt_pk_bf16_f32 v{b+i}, v{z+2*i}, v{z+2*i+1}")
        a(f"""
        s_nop 1
        v_mfma_f32_16x16x32_bf16 {vr(b+4)}, {vr(b+12)}, {vr(b)}, 0
        v_mfma_f32_16x16x32_bf16 {vr(b+8)}, {vr(b+16)}, {vr(b)}, 0
        """)
    a("s_nop 7")
    for u, (hh, p) in enumerate(units):
        b = R + u * UR
        o = b + 20
        a(f"""
        v_cvt_pk_bf16_f32 v{o}, v{b+4}, v{b+5}
        v_cvt_pk_bf16_f32 v{o+1}, v{b+6}, v{b+7}
        v_cvt_pk_bf16_f32 v{o+2}, v{b+8}, v{b+9}
        v_cvt_pk_bf16_f32 v{o+3}, v{b+10}, v{b+11}
        s_nop 1
        v_permlane16_swap_b32 v{o}, v{o+2}
        v_permlane16_swap_b32 v{o+1}, v{o+3}
        s_nop 1
        buffer_store_dwordx4 {vr(o)}, v{VO}, {sr(SRD_O,4)}, s{S_TMP3} offen offset:{p*16 + hh*1024} {STF}
        """)
    stamp_now(a, 37); stamp_now(a, 51, True)
    stamp_dump(a, S_WS, S_WAVE, 32 << 20)
    a("s_endpgm")

def gen_g1(a):
    MAP4 = f"""
    s_and_b32 s{S_MT}, s{S_TMP}, 1
    s_lshl_b32 s{S_MT}, s{S_MT}, 2
    s_and_b32 s{S_TMP3}, s{S_TMP2}, 3
    s_add_u32 s{S_MT}, s{S_MT}, s{S_TMP3}     ; mt
    s_lshr_b32 s{S_TMP2}, s{S_TMP2}, 2        ; i8
    s_lshr_b32 s{S_TMP}, s{S_TMP}, 1          ; ng
    s_lshl_b32 s{S_JT}, s{S_TMP}, 2
    s_and_b32 s{S_TMP3}, s{S_TMP2}, 3
    s_add_u32 s{S_JT}, s{S_JT}, s{S_TMP3}     ; jt
    s_lshr_b32 s{S_TMP2}, s{S_TMP2}, 2        ; type
"""
    MAP8 = f"""
    s_and_b32 s{S_MT}, s{S_TMP2}, 7           ; mt
    s_lshr_b32 s{S_TMP2}, s{S_TMP2}, 3        ; i4
    s_lshl_b32 s{S_JT}, s{S_TMP}, 1
    s_and_b32 s{S_TMP3}, s{S_TMP2}, 1
    s_add_u32 s{S_JT}, s{S_JT}, s{S_TMP3}     ; jt
    s_lshr_b32 s{S_TMP2}, s{S_TMP2}, 1        ; type
"""
    a.raw("""
.globl g1_kernel
.p2align 8
.type g1_kernel,@function
g1_kernel:""")
    a(f"""
    s_cmp_ge_u32 s2, 256
    s_cbranch_scc1 g1_exit
    s_load_dwordx4 s[{S_X}:{S_X+3}], s[0:1], 0     ; x, wqkv
    s_load_dwordx2 s[{S_W1}:{S_W1+1}], s[0:1], 32
    s_load_dwordx2 s[{S_WS}:{S_WS+1}], s[0:1], 64
    s_load_dwordx2 s[{S_WOP}:{S_WOP+1}], s[0:1], 16
    s_load_dwordx2 s[{S_DBGP}:{S_DBGP+1}], s[0:1], 56
    s_load_dwordx2 s[{S_W2P}:{S_W2P+1}], s[0:1], 40
    v_and_b32 v{V_LANE}, 63, v0
    v_lshrrev_b32 v{V_T}, 6, v0
    v_and_b32 v{V_TT}, 15, v0
    v_readfirstlane_b32 s{S_WAVE}, v{V_T}
    v_bfe_u32 v{V_GG}, v0, 4, 2
    s_nop 2
    s_cmp_lg_u32 s{S_WAVE}, 7
    s_cbranch_scc1 g1_nopf
    """)
    if "nocodepf" not in OPTS:
        code_prefetch(a, V_T + 2, V_LANE, S_PC1, "g1_kernel", "g1_end", 24576, 255)
    a.label("g1_nopf")
    a(f"""
    s_and_b32 s{S_TMP}, s2, 7                 ; xcd
    s_lshr_b32 s{S_TMP2}, s2, 3               ; idx
    """)
    a(MAP8 if "map8" in OPTS else MAP4)
    a(f"""
    s_and_b32 s{S_WQ}, s{S_WAVE}, 3
    s_and_b32 s{S_NW}, s{S_WAVE}, 1
    s_bfe_u32 s{S_MW}, s{S_WAVE}, 0x10001
    s_lshr_b32 s{S_TMP3}, s{S_WAVE}, 2        ; G
    s_lshl_b32 s80, s2, 3
    s_add_u32 s80, s80, s{S_WAVE}
    v_lshlrev_b32 v{V_L16}, 4, v{V_LANE}
    s_waitcnt lgkmcnt(0)
    """)
    if FUSE and "bulk" in OPTS:
        a(f"""
        s_mov_b32 s64, s{S_W}
        s_and_b32 s65, s{S_W+1}, 0xffff
        s_mov_b32 s66, {1024*6144}
        s_mov_b32 s67, 0x20000
        s_mov_b32 s72, s{S_W1}
        s_and_b32 s73, s{S_W1+1}, 0xffff
        s_mov_b32 s74, {1024*7168}
        s_mov_b32 s75, 0x20000
        s_mul_i32 s81, s80, 3072
        s_lshl_b32 s80, s80, 12
        """)
        for i in range(3):
            a(f"buffer_load_dwordx4 {vr(V_HF)}, v{V_L16}, s[64:67], s81 offen offset:{1024*i}")
        for i in range(4):
            a(f"buffer_load_dwordx4 {vr(V_HF)}, v{V_L16}, s[72:75], s80 offen offset:{1024*i}")
    a(f"""
    s_add_u32 s{SRD_X}, s{S_X if FUSE else S_WS}, {0 if FUSE else XN_OFF}
    s_addc_u32 s{SRD_X+1}, s{(S_X if FUSE else S_WS)+1}, 0
    s_and_b32 s{SRD_X+1}, s{SRD_X+1}, 0xffff
    s_mov_b32 s{SRD_X+2}, {2048*2048}
    s_mov_b32 s{SRD_X+3}, 0x20000
    s_mov_b32 s{SRD_XA}, s{SRD_X}
    s_mov_b32 s{SRD_XA+1}, s{SRD_X+1}
    s_mov_b32 s{SRD_XA+2}, {2048*2048}
    s_mov_b32 s{SRD_XA+3}, 0x20000
    s_mov_b32 s{SRD_O}, s{S_WS}
    s_and_b32 s{SRD_O+1}, s{S_WS+1}, 0xffff
    s_mov_b32 s{SRD_O+2}, {A2_BYTES}
    s_mov_b32 s{SRD_O+3}, 0x20000
    s_lshl_b32 s{S_TMP2}, s{S_TMP2}, 1
    s_add_u32 s{S_TMP2}, s{S_TMP2}, s{S_TMP3}
    """)
    if FUSE:
        a(f"""
        s_cmp_lg_u32 s2, 255
        s_cbranch_scc1 g1_noz
        s_add_u32 s64, s{S_WS}, {30 << 20}
        s_addc_u32 s65, s{S_WS+1}, 0
        s_and_b32 s65, s65, 0xffff
        s_mov_b32 s66, 8192
        s_mov_b32 s67, 0x20000
        v_lshlrev_b32 v{V_T}, 4, v0
        v_mov_b32 v4, 0
        v_mov_b32 v5, 0
        v_mov_b32 v6, 0
        v_mov_b32 v7, 0
        buffer_store_dwordx4 v[4:7], v{V_T}, s[64:67], 0 offen
        """)
        a.label("g1_noz")
    a(f"""
    s_cmp_eq_u32 s{S_TMP2}, 0
    s_cbranch_scc1 g1_00
    s_cmp_eq_u32 s{S_TMP2}, 1
    s_cbranch_scc1 g1_01
    s_cmp_eq_u32 s{S_TMP2}, 2
    s_cbranch_scc1 g1_10
    s_branch g1_11
    """)
    a.label("g1_exit")
    a("s_endpgm")
    for typ in range(2):
        for G in range(2):
            g1_path(a, typ, G)
    g1_attn(a)
    a.label("g1_end")
    a("s_endpgm")

def gen_k0(a):
    a.raw("""
.globl k0_kernel
.p2align 8
.type k0_kernel,@function
k0_kernel:""")
    DPP = "row_mask:0xf bank_mask:0xf"
    def reduce64(v, t):
        a(f"""
        s_nop 1
        v_add_f32_dpp v{t}, v{v}, v{v} quad_perm:[1,0,3,2] {DPP}
        s_nop 1
        v_add_f32_dpp v{v}, v{t}, v{t} quad_perm:[2,3,0,1] {DPP}
        s_nop 1
        v_add_f32_dpp v{t}, v{v}, v{v} row_half_mirror {DPP}
        s_nop 1
        v_add_f32_dpp v{v}, v{t}, v{t} row_mirror {DPP}
        """)
        xlane_sum(a, v, t)
    a(f"""
    s_cmp_ge_u32 s2, 256
    s_cbranch_scc1 k0_exit
    s_load_dwordx4 s[4:7], s[0:1], 0          ; x, wqkv
    s_load_dwordx2 s[8:9], s[0:1], 32         ; w1
    s_load_dwordx2 s[10:11], s[0:1], 64       ; ws
    v_lshrrev_b32 v1, 6, v0
    v_and_b32 v0, 63, v0
    v_lshlrev_b32 v2, 4, v0                   ; lane*16
    v_readfirstlane_b32 s3, v1
    s_lshl_b32 s28, s2, 3
    s_nop 2
    s_add_u32 s28, s28, s3
    s_lshl_b32 s29, s28, 11
    s_waitcnt lgkmcnt(0)
    s_mov_b32 s12, s4
    s_and_b32 s13, s5, 0xffff
    s_mov_b32 s14, {2048*2048}
    s_mov_b32 s15, 0x20000
    buffer_load_dwordx4 v[4:7], v2, s[12:15], s29 offen
    buffer_load_dwordx4 v[8:11], v2, s[12:15], s29 offen offset:1024
    s_mov_b32 s16, s6
    s_and_b32 s17, s7, 0xffff
    s_mov_b32 s18, {1024*6144}
    s_mov_b32 s19, 0x20000
    s_mov_b32 s20, s8
    s_and_b32 s21, s9, 0xffff
    s_mov_b32 s22, {1024*7168}
    s_mov_b32 s23, 0x20000
    s_add_u32 s24, s10, {XN_OFF}
    s_addc_u32 s25, s11, 0
    s_and_b32 s25, s25, 0xffff
    s_mov_b32 s26, {2048*2048}
    s_mov_b32 s27, 0x20000
    s_cmp_lg_u32 s2, 0
    s_cbranch_scc1 k0_noz
    s_add_u32 s32, s10, {30 << 20}
    s_addc_u32 s33, s11, 0
    s_and_b32 s33, s33, 0xffff
    s_mov_b32 s34, 8192
    s_mov_b32 s35, 0x20000
    s_lshl_b32 s30, s3, 10
    v_mov_b32 v60, 0
    v_mov_b32 v61, 0
    v_mov_b32 v62, 0
    v_mov_b32 v63, 0
    buffer_store_dwordx4 v[60:63], v2, s[32:35], s30 offen
    s_waitcnt vmcnt(0)
k0_noz:
    s_mul_i32 s30, s28, 3072
    s_lshl_b32 s31, s28, 12
    """)
    nw = 0
    if "nowarm1" not in OPTS:
        a(f"""
        s_mov_b32 s18, {256*6144}
        s_mov_b32 s22, {256*7168}
        s_lshl_b32 s30, s28, 10
        buffer_load_dwordx4 v[32:35], v2, s[16:19], s30 offen
        buffer_load_dwordx4 v[36:39], v2, s[20:23], s30 offen
        """)
        nw = 2
    a(f"s_waitcnt vmcnt({nw})")
    for r in range(8):
        a(f"""
        v_lshlrev_b32 v{12+2*r}, 16, v{4+r}
        v_and_b32 v{13+2*r}, 0xffff0000, v{4+r}
        """)
    a("v_add_f32 v28, v12, v13")
    for r in range(14, 28):
        a(f"v_add_f32 v28, v28, v{r}")
    reduce64(28, 29)
    a("v_mul_f32 v28, 0x3a800000, v28")
    a("""
    v_sub_f32 v30, v12, v28
    v_mul_f32 v31, v30, v30
    """)
    for r in range(13, 28):
        a(f"""
        v_sub_f32 v30, v{r}, v28
        v_fmac_f32 v31, v30, v30
        """)
    reduce64(31, 29)
    a(f"""
    v_mul_f32 v31, 0x3a800000, v31            ; var
    v_cvt_pk_bf16_f32 v29, v28, v31
    v_lshlrev_b32 v28, 16, v29                ; m_b
    v_and_b32 v31, 0xffff0000, v29            ; v_b
    v_add_f32 v31, 0x3727c5ac, v31
    v_cvt_pk_bf16_f32 v31, v31, v31
    v_and_b32 v31, 0xffff0000, v31
    v_sqrt_f32 v31, v31
    s_nop 0
    v_cvt_pk_bf16_f32 v31, v31, v31
    v_and_b32 v31, 0xffff0000, v31
    v_rcp_f32 v31, v31
    s_nop 0
    """)
    for r in range(8):
        a(f"""
        v_sub_f32 v{12+2*r}, v{12+2*r}, v28
        v_sub_f32 v{13+2*r}, v{13+2*r}, v28
        v_cvt_pk_bf16_f32 v29, v{12+2*r}, v{13+2*r}
        v_lshlrev_b32 v{12+2*r}, 16, v29
        v_and_b32 v{13+2*r}, 0xffff0000, v29
        v_mul_f32 v{12+2*r}, v{12+2*r}, v31
        v_mul_f32 v{13+2*r}, v{13+2*r}, v31
        v_cvt_pk_bf16_f32 v{4+r}, v{12+2*r}, v{13+2*r}
        """)
    a("""
    buffer_store_dwordx4 v[4:7], v2, s[24:27], s29 offen
    buffer_store_dwordx4 v[8:11], v2, s[24:27], s29 offen offset:1024
    """)
    a.label("k0_exit")
    a("s_endpgm")

G2_NB = 6
G2_LDS = G2_NB * 16384
def code_prefetch(a, vtmp, vlane, stmp, start_label, end_label, nbytes, vdst):
    a(f"""
    s_getpc_b64 {sr(stmp)}
    """)
    a.label(start_label + "_pc")
    a(f"""
    s_add_u32 s{stmp}, s{stmp}, {start_label}-{start_label}_pc
    s_addc_u32 s{stmp+1}, s{stmp+1}, -1
    v_lshlrev_b32 v{vtmp}, 7, v{vlane}
    """)
    for i in range((nbytes + 8191) // 8192):
        if i: a(f"v_add_u32 v{vtmp}, 0x2000, v{vtmp}")
        a(f"""
        v_min_u32 v{vtmp+1}, {end_label}-{start_label}-4, v{vtmp}
        global_load_dword v{vdst}, v{vtmp+1}, {sr(stmp)}
        """)

def gen_g2(a):
    NBUF = G2_NB; D = NBUF - 1
    NTB = "nt " if "g2ntB" in OPTS else ""
    SRD_A = 12; SRD_B = 16; SRD_XX = 20; SRD_OUT = 24
    S_WO = 4; S_W2 = 6; S_XP = 8; S_OUTP = 10; S_WSP = 28
    S_WV = 30; S_GK = 31; S_MW2 = 32; S_MT2 = 33; S_NT = 34; S_TRIP = 35
    S_KAA = 36; S_KBB = 37; S_MB0 = 38; S_T = 39; S_T2 = 40; S_T3 = 41; S_PC = 42; S_P = 44; S_KA0 = 45; S_WOL = 46; S_WOH = 47; S_SZ = 48; S_CNT = 49
    V_AB = 0
    V_W = V_AB + NBUF * 16
    V_AC = V_W + 64
    V_XR = V_AC + 32
    V_AA = V_XR + 8
    V_DBB = V_AA + 2
    V_RBB = V_DBB + 2
    T = V_RBB + 8
    VL = T + 14; VT = T + 15; VG = T + 16
    global G2_VGPRS
    G2_VGPRS = 256 if STAMP else VG + 2
    def ab(u, tb, kk): return V_AB + u * 16 + (tb * 2 + kk) * 4
    def w(par, s, kk): return V_W + par * 32 + (s * 2 + kk) * 4
    def ac(s, tb): return V_AC + (s * 2 + tb) * 4
    a.raw("""
.globl g2_kernel
.p2align 8
.type g2_kernel,@function
g2_kernel:""")
    a(f"""
    s_cmp_ge_u32 s2, 256
    s_cbranch_scc1 g2_exit
    s_load_dwordx2 s[{S_XP}:{S_XP+1}], s[0:1], 0
    s_load_dwordx2 s[{S_WO}:{S_WO+1}], s[0:1], 16
    s_load_dwordx2 s[{S_W2}:{S_W2+1}], s[0:1], 40
    s_load_dwordx2 s[{S_OUTP}:{S_OUTP+1}], s[0:1], 48
    s_load_dwordx2 s[{S_WSP}:{S_WSP+1}], s[0:1], 64
    v_and_b32 v{VL}, 63, v0
    v_lshrrev_b32 v{T}, 6, v0
    v_and_b32 v{VT}, 15, v0
    v_readfirstlane_b32 s{S_WV}, v{T}
    v_bfe_u32 v{VG}, v0, 4, 2
    """)
    if STAMP: a(f"v_mov_b32 v{V_STAMP}, 0")
    stamp_now(a, 32); stamp_now(a, 50, True)
    npf = 0
    if "nocodepf" not in OPTS:
        code_prefetch(a, T + 12, VL, S_PC, "g2_kernel", "g2_exit", 4096, VG + 1); npf = 1
    a(f"""
    s_and_b32 s{S_T}, s2, 7
    s_lshr_b32 s{S_T2}, s2, 3
    s_lshr_b32 s{S_MT2}, s{S_T}, 1
    s_lshl_b32 s{S_MT2}, s{S_MT2}, 2
    s_and_b32 s{S_T3}, s{S_T2}, 3
    s_add_u32 s{S_MT2}, s{S_MT2}, s{S_T3}     ; mt 0..15
    s_and_b32 s{S_NT}, s{S_T}, 1
    s_lshl_b32 s{S_NT}, s{S_NT}, 3
    s_lshr_b32 s{S_T2}, s{S_T2}, 2
    s_add_u32 s{S_NT}, s{S_NT}, s{S_T2}       ; nt 0..15
    s_lshr_b32 s{S_GK}, s{S_WV}, 2
    s_and_b32 s{S_MW2}, s{S_WV}, 3
    ; A voffsets
    s_lshl_b32 s{S_T}, s{S_MT2}, 3
    s_lshl_b32 s{S_T2}, s{S_MW2}, 1
    s_add_u32 s{S_T}, s{S_T}, s{S_T2}         ; mblk0
    s_mul_i32 s{S_T}, s{S_T}, {MBLK_PITCH}
    v_lshl_add_u32 v{V_AA}, v{VL}, 4, s{S_T}
    v_add_u32 v{V_AA+1}, {MBLK_PITCH}, v{V_AA}
    s_lshl_b32 s{S_KAA}, s{S_GK}, 11          ; K-step * 2048
    v_lshrrev_b32 v{T}, 3, v{VL}
    s_lshl_b32 s{S_T}, s{S_WV}, 4
    v_add_u32 v{T+1}, s{S_T}, v{T}            ; row (e=0)
    v_lshlrev_b32 v{T+1}, 11, v{T+1}
    s_lshl_b32 s{S_T}, s{S_NT}, 7
    v_add_u32 v{T+1}, s{S_T}, v{T+1}
    v_and_b32 v{T+2}, 1, v{VL}
    v_lshl_add_u32 v{T+1}, v{T+2}, 4, v{T+1}  ; + (c'&1)*16
    v_bfe_u32 v{T+2}, v{VL}, 1, 2             ; unit'
    v_bfe_u32 v{T+3}, v{VL}, 4, 1             ; bit1(l>>3)
    v_xor_b32 v{T+2}, v{T+2}, v{T+3}
    v_lshl_add_u32 v{V_DBB}, v{T+2}, 5, v{T+1}
    v_xor_b32 v{T+2}, 2, v{T+2}
    v_lshl_add_u32 v{V_DBB+1}, v{T+2}, 5, v{T+1}
    v_add_u32 v{V_DBB+1}, {8*2048}, v{V_DBB+1}
    s_lshl_b32 s{S_MB0}, s{S_WV}, 11
    s_mov_b32 s{S_KBB}, 0
    s_waitcnt lgkmcnt(0)
    s_mov_b32 s{SRD_A}, s{S_WSP}
    s_and_b32 s{SRD_A+1}, s{S_WSP+1}, 0xffff
    s_mov_b32 s{SRD_A+2}, {A2_BYTES}
    s_mov_b32 s{SRD_A+3}, 0x20000
    s_mov_b32 s{SRD_B}, s{S_WO}
    s_and_b32 s{SRD_B+1}, s{S_WO+1}, 0xffff
    s_mov_b32 s{SRD_B+2}, {1024*2048}
    s_mov_b32 s{SRD_B+3}, 0x20000
    """)
    def prefetch(u):
        for e in range(2):
            if "g2noB" in OPTS:
                a(f"buffer_load_dword v{T+12}, off, {sr(SRD_B,4)}, 0")
                continue
            a(f"""
            s_add_u32 m0, s{S_MB0}, {u*16384 + e*1024}
            s_nop 0
            buffer_load_dwordx4 v{V_DBB+e}, {sr(SRD_B,4)}, s{S_KBB} offen {NTB}lds
            """)
        for tb in range(2):
            for kk in range(2):
                if "g2noA" in OPTS:
                    a(f"buffer_load_dword v{T+12}, off, {sr(SRD_B,4)}, 0")
                    continue
                a(f"buffer_load_dwordx4 {vr(ab(u,tb,kk))}, v{V_AA+tb}, {sr(SRD_A,4)}, s{S_KAA} offen offset:{kk*1024}" + (" nt" if "g2ntA" in OPTS else ""))
        advance()
    def advance():
        a(f"""
        s_add_u32 s{S_P}, s{S_P}, 1
        s_cmp_eq_u32 s{S_P}, 36
        s_cselect_b32 s{S_P}, 0, s{S_P}
        s_add_u32 s{S_CNT}, s{S_CNT}, 1
        """)
        setpos()
    def setpos():
        a(f"""
        s_lshl_b32 s{S_KAA}, s{S_P}, 12
        s_add_u32 s{S_KAA}, s{S_KAA}, s{S_KA0}
        s_cmp_lt_u32 s{S_P}, 8
        s_cselect_b32 s{SRD_B}, s{S_WOL}, s{S_W2}
        s_cselect_b32 s{SRD_B+1}, s{S_WOH}, s{S_W2+1}
        s_cselect_b32 s{SRD_B+2}, {1024*2048}, s{S_SZ}
        s_cselect_b32 s{S_T}, 0, 8
        s_sub_u32 s{S_T}, s{S_P}, s{S_T}
        s_lshl_b32 s{S_KBB}, s{S_T}, 18
        s_cmp_ge_u32 s{S_CNT}, 36
        s_cselect_b32 s{SRD_B+2}, 0, s{SRD_B+2}
        s_cselect_b32 s{SRD_A+2}, 0, s{SRD_A+2}
        s_cselect_b32 s{S_MB0}, {G2_LDS}, s{S_MB0}
        """)
    rotmul = (1, 2)
    for o in OPTS:
        if o.startswith("rot="): rotmul = tuple(int(x) for x in o[4:].split(","))
    a(f"""
    s_and_b32 s{S_W2+1}, s{S_W2+1}, 0xffff
    s_mov_b32 s{S_WOL}, s{S_WO}
    s_and_b32 s{S_WOH}, s{S_WO+1}, 0xffff
    s_mov_b32 s{S_SZ}, {3584*2048}
    s_mov_b32 s{S_KA0}, s{S_KAA}
    s_mov_b32 s{S_CNT}, 0
    s_and_b32 s{S_T}, s{S_NT}, 7
    s_mul_i32 s{S_T}, s{S_T}, {rotmul[0]}
    s_and_b32 s{S_T2}, s{S_MT2}, 3
    s_mul_i32 s{S_T2}, s{S_T2}, {rotmul[1]}
    s_add_u32 s{S_P}, s{S_T}, s{S_T2}
    """)
    setpos()
    if "g2tlb" in OPTS:
        a(f"""
        s_lshr_b32 s{S_T}, s2, 3
        s_lshl_b32 s{S_T}, s{S_T}, 3
        s_add_u32 s{S_T}, s{S_T}, s{S_WV}          ; j
        s_lshl_b32 s{S_T2}, s{S_T}, 18             ; j*64 pages*4096
        v_lshl_add_u32 v{T+12}, v{VL}, 12, s{S_T2}
        s_cmp_lt_u32 s{S_T}, 18
        s_cbranch_scc0 g2_tlb1
        s_and_b32 s{S_T3}, s{S_MT2}, 12
        s_mul_i32 s{S_T3}, s{S_T3}, {8*MBLK_PITCH}
        buffer_load_dword v{T+13}, v{T+12}, {sr(SRD_A,4)}, s{S_T3} offen
        s_branch g2_tlb3
        """)
        a.label("g2_tlb1")
        a(f"""
        s_cmp_lt_u32 s{S_T}, 26
        s_cbranch_scc0 g2_tlb2
        v_subrev_u32 v{T+12}, {18<<18}, v{T+12}
        global_load_dword v{T+13}, v{T+12}, s[{S_WO}:{S_WO+1}]
        s_branch g2_tlb3
        """)
        a.label("g2_tlb2")
        a(f"""
        s_cmp_lt_u32 s{S_T}, 54
        s_cbranch_scc0 g2_tlb3
        v_subrev_u32 v{T+12}, {26<<18}, v{T+12}
        global_load_dword v{T+13}, v{T+12}, s[{S_W2}:{S_W2+1}]
        """)
        a.label("g2_tlb3")
    for u in range(D):
        prefetch(u)
    V_XA = T + 4; V_OA = T + 5
    a(f"""
    s_mov_b32 s{SRD_XX}, s{S_XP}
    s_and_b32 s{SRD_XX+1}, s{S_XP+1}, 0xffff
    s_mov_b32 s{SRD_XX+2}, {2048*2048}
    s_mov_b32 s{SRD_XX+3}, 0x20000
    s_mov_b32 s{SRD_OUT}, s{S_OUTP}
    s_and_b32 s{SRD_OUT+1}, s{S_OUTP+1}, 0xffff
    s_mov_b32 s{SRD_OUT+2}, {2048*2048}
    s_mov_b32 s{SRD_OUT+3}, 0x20000
    v_lshrrev_b32 v{T}, 2, v{VT}              ; r
    v_lshl_add_u32 v{T+1}, v{VG}, 3, v{T}
    v_lshlrev_b32 v{T+1}, 7, v{T+1}
    s_lshl_b32 s{S_T}, s{S_GK}, 13
    v_add_u32 v{T+1}, s{S_T}, v{T+1}
    v_and_b32 v{T+2}, 3, v{VL}
    v_lshl_add_u32 v{T+1}, v{T+2}, 3, v{T+1}
    v_and_b32 v{T+2}, 1, v{VG}
    v_lshrrev_b32 v{T+3}, 1, v{T}
    v_lshl_or_b32 v{T+2}, v{T+2}, 1, v{T+3}   ; f
    s_lshl_b32 s{S_T}, s{S_GK}, 1
    v_xor_b32 v{T+2}, s{S_T}, v{T+2}          ; f ^ 2Gk
    """)
    for s in range(4):
        a(f"""
        v_xor_b32 v{T+3}, {s}, v{T+2}
        v_lshl_add_u32 v{V_RBB+s}, v{T+3}, 5, v{T+1}
        v_add_u32 v{V_RBB+4+s}, 0xc000, v{V_RBB+s}
        """)
    a(f"""
    s_lshl_b32 s{S_T}, s{S_MT2}, 7
    s_lshl_b32 s{S_T2}, s{S_MW2}, 5
    s_add_u32 s{S_T}, s{S_T}, s{S_T2}
    v_add_u32 v{T}, s{S_T}, v{VT}
    v_lshlrev_b32 v{T}, 11, v{T}
    s_lshl_b32 s{S_T}, s{S_NT}, 7
    s_lshl_b32 s{S_T2}, s{S_GK}, 6
    s_add_u32 s{S_T}, s{S_T}, s{S_T2}
    v_add_u32 v{T}, s{S_T}, v{T}
    v_lshl_add_u32 v{V_XA}, v{VG}, 3, v{T}    ; + g*8
    v_and_b32 v{T+1}, 1, v{VG}
    v_lshrrev_b32 v{T+2}, 1, v{VG}
    v_lshl_or_b32 v{T+1}, v{T+1}, 1, v{T+2}   ; sigma
    v_lshl_add_u32 v{V_OA}, v{T+1}, 4, v{T}
    """)
    for r in range(V_AC, V_AC + 32):
        a(f"v_mov_b32 v{r}, 0")
    def reads(u, par):
        hi = 4 if u >= 3 else 0
        uo = (u - 3 if u >= 3 else u) * 16384
        for kk in range(2):
            for s in range(4):
                for h in range(2):
                    if "g2nocomp" in OPTS: continue
                    a(f"ds_read_b64_tr_b16 {vr(w(par,s,kk)+2*h,2)}, v{V_RBB+hi+s} offset:{uo + kk*4096 + h*512}")
    a(f"""
    s_mov_b32 s{S_TRIP}, 0
    s_waitcnt vmcnt({4 + 6*(D-1)})
    s_barrier
    """)
    reads(0, 0)
    stamp_now(a, 33)
    def body(u):
        par = u & 1
        a(f"""
        s_waitcnt vmcnt({4 + 6*(D-2)})
        s_barrier
        """)
        prefetch((u + D) % NBUF)
        a("s_waitcnt lgkmcnt(0)")
        reads((u + 1) % NBUF, par ^ 1)
        for kk in range(2):
            for s in range(4):
                for tb in range(2):
                    if "g2nocomp" in OPTS: continue
                    a(f"v_mfma_f32_16x16x32_bf16 {vr(ac(s,tb))}, {vr(w(par,s,kk))}, {vr(ab(u,tb,kk))}, {vr(ac(s,tb))}")
    a.raw(".p2align 6")
    a.label("g2_loop")
    for u in range(NBUF):
        body(u)
    a(f"""
    s_add_u32 s{S_TRIP}, s{S_TRIP}, 1
    s_cmp_lt_u32 s{S_TRIP}, {36 // NBUF}
    s_cbranch_scc1 g2_loop
    s_mov_b32 s{S_T}, {16*2048}
    """)
    stamp_now(a, 34)
    for tb in range(2):
        for e in range(2):
            so = "0" if tb == 0 else f"s{S_T}"
            a(f"buffer_load_dwordx2 {vr(V_XR+(tb*2+e)*2,2)}, v{V_XA}, {sr(SRD_XX,4)}, {so} offen offset:{e*32}")
    a(f"""
    s_waitcnt vmcnt(4) lgkmcnt(0)
    s_barrier
    s_lshl_b32 s{S_T}, s{S_WV}, 12
    v_lshl_add_u32 v{T}, v{VL}, 4, s{S_T}
    v_xor_b32 v{T+1}, 16384, v{T}
    """)
    for s in range(2):
        for tb in range(2):
            a(f"ds_write_b128 v{T}, {vr(ac(2+s,tb))} offset:{(s*2+tb)*1024}")
    a("""
    s_waitcnt lgkmcnt(0)
    s_barrier
    """)
    for s in range(2):
        for tb in range(2):
            a(f"ds_read_b128 {vr(V_W+(s*2+tb)*4)}, v{T+1} offset:{(s*2+tb)*1024}")
    a("s_waitcnt vmcnt(0) lgkmcnt(0)")
    for tb in range(2):
        o = V_AB + tb * 4
        for s in range(2):
            c = ac(s, tb); p = V_W + (s * 2 + tb) * 4; xr = V_XR + (tb * 2 + s) * 2
            a(f"""
            v_lshlrev_b32 v{T+8}, 16, v{xr}
            v_and_b32 v{T+9}, 0xffff0000, v{xr}
            v_lshlrev_b32 v{T+10}, 16, v{xr+1}
            v_and_b32 v{T+11}, 0xffff0000, v{xr+1}
            v_pk_add_f32 {vr(c,2)}, {vr(c,2)}, {vr(p,2)}
            v_pk_add_f32 {vr(c+2,2)}, {vr(c+2,2)}, {vr(p+2,2)}
            v_pk_add_f32 {vr(c,2)}, {vr(c,2)}, {vr(T+8,2)}
            v_pk_add_f32 {vr(c+2,2)}, {vr(c+2,2)}, {vr(T+10,2)}
            v_cvt_pk_bf16_f32 v{o+2*s}, v{c}, v{c+1}
            v_cvt_pk_bf16_f32 v{o+2*s+1}, v{c+2}, v{c+3}
            """)
        so = "0" if tb == 0 else f"s{S_T2}"
        a(f"""
        s_mov_b32 s{S_T2}, {16*2048}
        s_nop 0
        v_permlane16_swap_b32 v{o}, v{o+2}
        v_permlane16_swap_b32 v{o+1}, v{o+3}
        s_nop 1
        buffer_store_dwordx4 {vr(o)}, v{V_OA}, {sr(SRD_OUT,4)}, {so} offen
        """)
    stamp_now(a, 51, True)
    stamp_dump(a, S_WSP, S_WV, 40 << 20)
    a.label("g2_exit")
    a("s_endpgm")

C_ASLOT = 16384; C_NA = 3
C_BSLOT = 16384; C_NBS = 4
C_BBASE = 2 * C_NA * C_ASLOT
G2C_LDS = C_BBASE + C_NBS * C_BSLOT
SLAB_OFF = 64 << 20
FLAG_OFF = 30 << 20
SLAB_BYTES = 64 * 4 * 131072
NKS = 18
PUBF = "sc1" if "pubsc1" in OPTS else ("sc0 sc1 nt" if "pubnt" in OPTS else "sc0 sc1")
GETF = "sc1" if "pubsc1" in OPTS else "sc0 sc1"
def gen_g2c(a):
    XF = 64; WF = 96
    def acc(c, t): return (c * 4 + t) * 4
    def xf(t, kk): return XF + (t * 2 + kk) * 4
    def wf(c, kk): return WF + (c * 2 + kk) * 4
    V_RA = 128; V_RB = 129; V_DA = 133; V_DB = 134; VL = 135; VT = 136; VG = 137; T = 138
    VPF = 152; VH = 153; VHA = 154; VHL = 156
    S_XP = 4; S_WO = 6; S_W2 = 8; S_OUTP = 10; S_DBG = 28; S_WSP = 30
    SRD_A = 12; SRD_B = 16; SRD_S = 20; SRD_X = 24; SRD_O = 32; SRD_F = 36
    S_WV = 40; S_MW = 41; S_NW = 42; S_WQ = 43; S_MT = 44; S_NT = 45; S_KQ = 46; S_J = 47
    S_KA = 48; S_PA = 49; S_PB = 50; S_MA = 51; S_MB = 52; S_MAE = 53; S_MBE = 54; S_ASL = 55; S_BSL = 56
    S_RAS = 57; S_RBS = 58; S_T = 59; S_T2 = 60; S_T3 = 61; S_KB = 62; S_SZ2 = 63; S_CUR = 64; S_DONE = 65
    S_TILE = 66; S_G = 67; S_CNT = 68; S_ARR = 69; S_PC = 70; S_DA = 72; S_DB = 73; S_Q = 74; S_ASZ = 75; S_XCC = 76; S_FB = 77; S_LOC = 78
    MAPK = f"""
    s_and_b32 s{S_KQ}, s2, 3
    s_bfe_u32 s{S_T}, s2, 0x10002             ; M half
    s_lshr_b32 s{S_T2}, s2, 3                 ; idx
    s_and_b32 s{S_MT}, s{S_T2}, 3
    s_lshl_b32 s{S_T}, s{S_T}, 2
    s_add_u32 s{S_MT}, s{S_MT}, s{S_T}        ; mt 0..7
    s_lshr_b32 s{S_NT}, s{S_T2}, 2            ; nt 0..7
"""
    MAPL = f"""
    s_lshr_b32 s{S_T2}, s2, 3                 ; idx
    s_and_b32 s{S_KQ}, s{S_T2}, 3
    s_bfe_u32 s{S_T}, s2, 0x20001             ; xcd >> 1
    s_lshl_b32 s{S_MT}, s{S_T}, 1
    s_bfe_u32 s{S_T}, s{S_T2}, 0x10002
    s_add_u32 s{S_MT}, s{S_MT}, s{S_T}        ; mt 0..7
    s_and_b32 s{S_NT}, s2, 1
    s_lshl_b32 s{S_NT}, s{S_NT}, 2
    s_lshr_b32 s{S_T}, s{S_T2}, 3
    s_add_u32 s{S_NT}, s{S_NT}, s{S_T}        ; nt 0..7
"""
    XF_ = "" if "xloc" in OPTS else "sc0 sc1"
    a.raw("""
.globl g2_kernel
.p2align 8
.type g2_kernel,@function
g2_kernel:""")
    a(f"""
    s_cmp_ge_u32 s2, 256
    s_cbranch_scc1 g2_exit
    s_load_dwordx2 s[{S_XP}:{S_XP+1}], s[0:1], 0
    s_load_dwordx2 s[{S_WO}:{S_WO+1}], s[0:1], 16
    s_load_dwordx4 s[{S_W2}:{S_W2+3}], s[0:1], 40      ; w2, out
    s_load_dwordx4 s[{S_DBG}:{S_DBG+3}], s[0:1], 56
    v_and_b32 v{VL}, 63, v0
    v_lshrrev_b32 v{T}, 6, v0
    v_and_b32 v{VT}, 15, v0
    v_readfirstlane_b32 s{S_WV}, v{T}
    v_bfe_u32 v{VG}, v0, 4, 2
    """)
    if STAMP: a(f"v_mov_b32 v{V_STAMP}, 0")
    stamp_now(a, 32); stamp_now(a, 50, True)
    a(f"""
    s_nop 2
    s_cmp_lg_u32 s{S_WV}, 7
    s_cbranch_scc1 g2_nopf
    """)
    code_prefetch(a, T, VL, S_PC, "g2_kernel", "g2_exit", 8192, VPF)
    a.label("g2_nopf")
    a(f"""
    """)
    a(MAPL if "xloc" in OPTS else MAPK)
    a(f"""
    s_lshl_b32 s{S_TILE}, s{S_MT}, 3
    s_add_u32 s{S_TILE}, s{S_TILE}, s{S_NT}
    s_lshr_b32 s{S_G}, s{S_WV}, 2
    s_and_b32 s{S_WQ}, s{S_WV}, 3
    s_and_b32 s{S_NW}, s{S_WV}, 1
    s_bfe_u32 s{S_MW}, s{S_WV}, 0x10001
    s_lshr_b32 s{S_Q}, s{S_WV}, 1
    s_xor_b32 s{S_T}, s{S_G}, 1
    s_lshl_b32 s{S_T2}, s{S_T}, 3
    s_lshl_b32 s{S_T3}, s{S_MT}, 4
    s_add_u32 s{S_T2}, s{S_T2}, s{S_T3}
    s_lshl_b32 s{S_T3}, s{S_WQ}, 1
    s_add_u32 s{S_T2}, s{S_T2}, s{S_T3}
    s_mul_i32 s{S_T2}, s{S_T2}, {MBLK_PITCH}
    v_lshl_add_u32 v{V_DA}, v{VL}, 4, s{S_T2}
    s_mul_i32 s{S_DA}, s{S_T}, {C_NA*C_ASLOT}
    s_lshl_b32 s{S_T3}, s{S_WQ}, 12
    s_add_u32 s{S_DA}, s{S_DA}, s{S_T3}
    v_lshrrev_b32 v{T}, 4, v{VL}
    s_lshl_b32 s{S_T}, s{S_WV}, 3
    v_add_u32 v{T+1}, s{S_T}, v{T}
    v_lshlrev_b32 v{T+1}, 11, v{T+1}
    s_lshl_b32 s{S_T}, s{S_NT}, 8
    v_add_u32 v{T+1}, s{S_T}, v{T+1}
    v_and_b32 v{T+2}, 1, v{VL}
    v_lshl_add_u32 v{T+1}, v{T+2}, 4, v{T+1}
    v_bfe_u32 v{T+2}, v{VL}, 1, 3
    s_lshl_b32 s{S_T}, s{S_NW}, 2
    v_or_b32 v{T}, s{S_T}, v{T}
    v_xor_b32 v{T+2}, v{T+2}, v{T}
    v_lshl_add_u32 v{V_DB}, v{T+2}, 5, v{T+1}
    s_lshl_b32 s{S_DB}, s{S_WV}, 11
    s_add_u32 s{S_DB}, s{S_DB}, {C_BBASE}
    s_waitcnt lgkmcnt(0)
    """)
    stamp_now(a, 41)
    a(f"""
    s_mov_b32 s{SRD_A}, s{S_WSP}
    s_and_b32 s{SRD_A+1}, s{S_WSP+1}, 0xffff
    s_mov_b32 s{SRD_A+3}, 0x20000
    s_mov_b32 s{SRD_B+3}, 0x20000
    s_and_b32 s{S_WO+1}, s{S_WO+1}, 0xffff
    s_and_b32 s{S_W2+1}, s{S_W2+1}, 0xffff
    s_mov_b32 s{S_SZ2}, {3584*2048}
    s_mov_b32 s{S_ASZ}, {A2_BYTES}
    s_mov_b32 s{S_CUR}, s{S_KQ}
    s_lshl_b32 s{S_DONE}, s{S_KQ}, 3
    s_lshl_b32 s{S_DONE}, 1, s{S_DONE}
    s_mov_b32 s{S_ARR}, 0
    s_mov_b32 s{S_LOC}, 0
    s_add_u32 s{SRD_S}, s{S_WSP}, {SLAB_OFF}
    s_addc_u32 s{SRD_S+1}, s{S_WSP+1}, 0
    s_and_b32 s{SRD_S+1}, s{SRD_S+1}, 0xffff
    s_mov_b32 s{SRD_S+2}, {SLAB_BYTES}
    s_mov_b32 s{SRD_S+3}, 0x20000
    s_add_u32 s{SRD_F}, s{S_WSP}, {FLAG_OFF}
    s_addc_u32 s{SRD_F+1}, s{S_WSP+1}, 0
    s_and_b32 s{SRD_F+1}, s{SRD_F+1}, 0xffff
    s_mov_b32 s{SRD_F+2}, {64*128}
    s_mov_b32 s{SRD_F+3}, 0x20000
    s_lshl_b32 s{S_FB}, s{S_TILE}, 7
    s_lshl_b32 s{S_T}, s{S_TILE}, 2
    s_add_u32 s{S_T}, s{S_T}, s{S_KQ}
    s_lshl_b32 s{S_T}, s{S_T}, 3
    s_add_u32 s{S_T}, s{S_T}, s{S_WV}
    s_lshl_b32 s{S_FB+1}, s{S_T}, 13
    v_lshlrev_b32 v155, 4, v{VL}
    s_mov_b32 s{SRD_X}, s{S_XP}
    s_and_b32 s{SRD_X+1}, s{S_XP+1}, 0xffff
    s_mov_b32 s{SRD_X+2}, {2048*2048}
    s_mov_b32 s{SRD_X+3}, 0x20000
    s_mov_b32 s{SRD_O}, s{S_OUTP}
    s_and_b32 s{SRD_O+1}, s{S_OUTP+1}, 0xffff
    s_mov_b32 s{SRD_O+2}, {2048*2048}
    s_mov_b32 s{SRD_O+3}, 0x20000
    """)
    def setA():
        a(f"""
        s_mul_i32 s{S_T}, s{S_CUR}, {NKS}
        s_add_u32 s{S_T}, s{S_T}, s{S_PA}
        s_lshl_b32 s{S_KA}, s{S_T}, 11
        s_cmp_ge_u32 s{S_PA}, {NKS}
        s_cselect_b32 s{SRD_A+2}, 0, s{S_ASZ}
        s_cselect_b32 s{S_MAE}, {LDS_DUMP}, s{S_MA}
        """)
    def setB():
        a(f"""
        s_mul_i32 s{S_T}, s{S_CUR}, {NKS}
        s_add_u32 s{S_T}, s{S_T}, s{S_PB}
        s_cmp_lt_u32 s{S_T}, 16
        s_cselect_b32 s{SRD_B}, s{S_WO}, s{S_W2}
        s_cselect_b32 s{SRD_B+1}, s{S_WO+1}, s{S_W2+1}
        s_cselect_b32 s{SRD_B+2}, {1024*2048}, s{S_SZ2}
        s_cselect_b32 s{S_T2}, 0, 16
        s_sub_u32 s{S_T}, s{S_T}, s{S_T2}
        s_lshl_b32 s{S_KB}, s{S_T}, 17
        s_cmp_ge_u32 s{S_PB}, {NKS}
        s_cselect_b32 s{SRD_B+2}, 0, s{SRD_B+2}
        s_cselect_b32 s{S_MBE}, {LDS_DUMP}, s{S_MB}
        """)
    def dmaA_list():
        L = []
        for e in range(2):
            L.append(f"""
            s_add_u32 m0, s{S_MAE}, {e*2048}
            s_add_u32 s{S_T3}, s{S_KA}, {e*MBLK_PITCH}
            buffer_load_dwordx4 v{V_DA}, {sr(SRD_A,4)}, s{S_T3} offen lds
            """)
            L.append(f"buffer_load_dwordx4 v{V_DA}, {sr(SRD_A,4)}, s{S_T3} offen offset:1024 lds")
        return L
    def dmaB_list():
        L = []
        for e in range(2):
            L.append(f"""
            s_add_u32 m0, s{S_MBE}, {e*1024}
            s_add_u32 s{S_T3}, s{S_KB}, {e*8192}
            buffer_load_dwordx4 v{V_DB}, {sr(SRD_B,4)}, s{S_T3} offen lds
            """)
        return L
    def advA():
        a(f"""
        s_add_u32 s{S_PA}, s{S_PA}, 1
        s_add_u32 s{S_ASL}, s{S_ASL}, 1
        s_add_u32 s{S_MA}, s{S_MA}, {C_ASLOT}
        s_cmp_eq_u32 s{S_ASL}, {C_NA}
        s_cselect_b32 s{S_ASL}, 0, s{S_ASL}
        s_cselect_b32 s{S_MA}, s{S_DA}, s{S_MA}
        """)
        setA()
    def advB():
        a(f"""
        s_add_u32 s{S_PB}, s{S_PB}, 1
        s_add_u32 s{S_BSL}, s{S_BSL}, 1
        s_add_u32 s{S_MB}, s{S_MB}, {C_BSLOT}
        s_cmp_eq_u32 s{S_BSL}, {C_NBS}
        s_cselect_b32 s{S_BSL}, 0, s{S_BSL}
        s_cselect_b32 s{S_MB}, s{S_DB}, s{S_MB}
        """)
        setB()
    def doA():
        for d in dmaA_list(): a(d)
        advA()
    def doB():
        for d in dmaB_list(): a(d)
        advB()
    a.label("g2_gemm")
    a(f"""
    s_mov_b32 s{S_PA}, 0
    s_mov_b32 s{S_PB}, 0
    s_mov_b32 s{S_ASL}, 0
    s_mov_b32 s{S_BSL}, 0
    s_mov_b32 s{S_MA}, s{S_DA}
    s_mov_b32 s{S_MB}, s{S_DB}
    """)
    setA(); setB()
    stamp_now(a, 42)
    a(f"""
    s_cmp_eq_u32 s{S_G}, 0
    s_cbranch_scc0 g2_pro1
    """)
    doB(); doA(); doB(); doA(); doB()
    a("s_branch g2_pro2")
    a.label("g2_pro1")
    doA(); doB(); doA(); doB(); doA(); doB()
    a.label("g2_pro2")
    stamp_now(a, 43)
    a(f"""
    s_cmp_eq_u32 s{S_CUR}, s{S_KQ}
    s_cbranch_scc0 g2_nozero
    """)
    for r in range(64):
        a(f"v_mov_b32 v{r}, 0")
    a.label("g2_nozero")
    a(f"""
    s_mul_i32 s{S_T}, s{S_G}, {C_NA*C_ASLOT}
    s_lshl_b32 s{S_T2}, s{S_MW}, 13
    s_add_u32 s{S_T}, s{S_T}, s{S_T2}
    v_lshl_add_u32 v{V_RA}, v{VL}, 4, s{S_T}
    v_lshrrev_b32 v{T}, 2, v{VT}              ; r
    v_lshl_add_u32 v{T+1}, v{VG}, 3, v{T}
    v_lshlrev_b32 v{T+1}, 8, v{T+1}
    v_and_b32 v{T+2}, 3, v{VL}
    v_lshl_add_u32 v{T+1}, v{T+2}, 3, v{T+1}
    v_add_u32 v{T+1}, {C_BBASE}, v{T+1}
    v_and_b32 v{T+2}, 1, v{VG}
    v_lshl_or_b32 v{T+2}, v{T+2}, 2, v{T}     ; f = r | (g&1)<<2
    s_lshl_b32 s{S_T}, s{S_NW}, 2
    v_xor_b32 v{T+2}, s{S_T}, v{T+2}
    """)
    for c in range(4):
        a(f"""
        v_xor_b32 v{T+3}, {c}, v{T+2}
        v_lshl_add_u32 v{V_RB+c}, v{T+3}, 5, v{T+1}
        """)
    a(f"""
    s_mov_b32 s{S_J}, 0
    s_mov_b32 s{S_RAS}, 0
    s_mov_b32 s{S_RBS}, 0
    """)
    stamp_now(a, 44)
    a("s_waitcnt vmcnt(12)")
    stamp_now(a, 45)
    a("s_barrier")
    stamp_now(a, 33)
    a(f"""
    s_cmp_eq_u32 s{S_G}, 0
    s_cbranch_scc1 g2_loop
    s_barrier
    """)
    reads = []
    for kk in range(2):
        for t in range(4):
            reads.append(f"ds_read_b128 {vr(xf(t,kk))}, v{V_RA} offset:{(t*2+kk)*1024}")
        for c in range(4):
            for h in range(2):
                reads.append(f"ds_read_b64_tr_b16 {vr(wf(c,kk)+2*h,2)}, v{V_RB+c} offset:{(32*kk+4*h)*256}")
    a.raw(".p2align 6")
    a.label("g2_loop")
    if "pretouch" in OPTS:
        a(f"""
        s_sub_u32 s{S_T}, s{S_J}, 4
        s_cmp_lt_u32 s{S_T}, 8
        s_cbranch_scc0 g2_nopt
        s_lshl_b32 s{S_T}, s{S_T}, 10
        s_add_u32 s{S_T}, s{S_T}, s{S_FB+1}
        buffer_load_dwordx4 v[156:159], v155, {sr(SRD_S,4)}, s{S_T} offen
        """)
        a.label("g2_nopt")
    dl = dmaA_list() + dmaB_list()
    di = 0
    for n_, r in enumerate(reads):
        a(r)
        if (n_ % 4 == 1 if 'g2d3' not in OPTS else n_ % 3 == 0) and di < len(dl):
            a(dl[di]); di += 1
    assert di == len(dl)
    a("""
    s_waitcnt vmcnt(12) lgkmcnt(0)
    s_barrier
    s_setprio 1
    """)
    real = a; a = bk = Collect()
    def _adv():
        pass
    bk(f"""
    s_add_u32 s{S_PA}, s{S_PA}, 1
    s_add_u32 s{S_ASL}, s{S_ASL}, 1
    s_add_u32 s{S_MA}, s{S_MA}, {C_ASLOT}
    s_cmp_eq_u32 s{S_ASL}, {C_NA}
    s_cselect_b32 s{S_ASL}, 0, s{S_ASL}
    s_cselect_b32 s{S_MA}, s{S_DA}, s{S_MA}
    s_add_u32 s{S_KA}, s{S_KA}, 2048
    s_cmp_ge_u32 s{S_PA}, {NKS}
    s_cselect_b32 s{SRD_A+2}, 0, s{S_ASZ}
    s_cselect_b32 s{S_MAE}, {LDS_DUMP}, s{S_MA}
    s_add_u32 s{S_PB}, s{S_PB}, 1
    s_add_u32 s{S_BSL}, s{S_BSL}, 1
    s_add_u32 s{S_MB}, s{S_MB}, {C_BSLOT}
    s_cmp_eq_u32 s{S_BSL}, {C_NBS}
    s_cselect_b32 s{S_BSL}, 0, s{S_BSL}
    s_cselect_b32 s{S_MB}, s{S_DB}, s{S_MB}
    s_add_u32 s{S_KB}, s{S_KB}, {1<<17}
    s_lshl_b32 s{S_T}, s{S_CUR}, 8
    s_add_u32 s{S_T}, s{S_T}, s{S_PB}
    s_cmp_eq_u32 s{S_T}, 16
    s_cselect_b32 s{SRD_B}, s{S_W2}, s{SRD_B}
    s_cselect_b32 s{SRD_B+1}, s{S_W2+1}, s{SRD_B+1}
    s_cselect_b32 s{SRD_B+2}, s{S_SZ2}, s{SRD_B+2}
    s_cselect_b32 s{S_KB}, 0, s{S_KB}
    s_cmp_ge_u32 s{S_PB}, {NKS}
    s_cselect_b32 s{SRD_B+2}, 0, s{SRD_B+2}
    s_cselect_b32 s{S_MBE}, {LDS_DUMP}, s{S_MB}
    s_add_u32 s{S_RAS}, s{S_RAS}, 1
    s_cmp_eq_u32 s{S_RAS}, {C_NA}
    s_cselect_b32 s{S_RAS}, 0, s{S_RAS}
    s_cselect_b32 s{S_T}, {C_NA*C_ASLOT}, 0
    s_sub_u32 s{S_T}, {C_ASLOT}, s{S_T}
    v_add_u32 v{V_RA}, s{S_T}, v{V_RA}
    s_add_u32 s{S_RBS}, s{S_RBS}, 1
    s_cmp_eq_u32 s{S_RBS}, {C_NBS}
    s_cselect_b32 s{S_RBS}, 0, s{S_RBS}
    s_cselect_b32 s{S_T}, {C_NBS*C_BSLOT}, 0
    s_sub_u32 s{S_T}, {C_BSLOT}, s{S_T}
    """)
    for c in range(4):
        bk(f"v_add_u32 v{V_RB+c}, s{S_T}, v{V_RB+c}")
    a = real
    mf = []
    for kk in range(2):
        for c in range(4):
            for t in range(4):
                mf.append(f"v_mfma_f32_16x16x32_bf16 {vr(acc(c,t))}, {vr(wf(c,kk))}, {vr(xf(t,kk))}, {vr(acc(c,t))}")
    interleave(a, mf, bk.L, start=(0 if 'g2bk3' in OPTS else 1), per=(3 if 'g2bk3' in OPTS else 2))
    a(f"""
    s_setprio 0
    s_add_u32 s{S_J}, s{S_J}, 1
    s_lshl_b32 s{S_T}, s{S_G}, 8
    s_add_u32 s{S_T}, s{S_T}, s{S_J}
    s_cmp_eq_u32 s{S_T}, {256 + NKS}
    s_cbranch_scc1 g2_post
    s_cmp_lt_u32 s{S_J}, {NKS}
    s_barrier
    s_cbranch_scc1 g2_loop
    """)
    a.label("g2_post")
    stamp_now(a, 34)
    V_XR = XF; V_XA = T + 1; V_OA = T + 2; PK = WF
    a(f"""
    v_lshlrev_b32 v{T}, 4, v{VL}
    s_cmp_eq_u32 s{S_Q}, s{S_KQ}
    s_cbranch_scc1 g2_own
    s_cmp_eq_u32 s{S_CUR}, s{S_KQ}
    s_cbranch_scc0 g2_pub_done
    s_lshl_b32 s{S_T}, s{S_TILE}, 2
    s_add_u32 s{S_T}, s{S_T}, s{S_KQ}
    s_lshl_b32 s{S_T}, s{S_T}, 3
    s_add_u32 s{S_T}, s{S_T}, s{S_WV}
    s_lshl_b32 s{S_T}, s{S_T}, 13
    s_add_u32 s{S_T2}, s{S_T}, 4096
    """)
    for bp in range(8):
        o = PK + 4 * bp
        for h in range(2):
            b = acc(bp >> 1, (bp & 1) * 2 + h)
            a(f"""
            v_cvt_pk_bf16_f32 v{o+2*h}, v{b}, v{b+1}
            v_cvt_pk_bf16_f32 v{o+2*h+1}, v{b+2}, v{b+3}
            """)
        a(f"buffer_store_dwordx4 {vr(o)}, v{T}, {sr(SRD_S,4)}, s{S_T if bp < 4 else S_T2} offen offset:{(bp%4)*1024} {XF_}")
    a("s_branch g2_pub_done")
    a.label("g2_own")
    a(f"""
    s_lshl_b32 s{S_T}, s{S_NW}, 14
    v_add_u32 v{T+3}, s{S_T}, v{T}
    """)
    for b in range(16):
        a(f"ds_write_b128 v{T+3}, {vr(4*b)} offset:{b*1024}")
    a.label("g2_pub_done")
    a(f"""
    s_lshl_b32 s{S_T}, s{S_MT}, 8
    s_lshl_b32 s{S_T2}, s{S_KQ}, 6
    s_add_u32 s{S_T}, s{S_T}, s{S_T2}
    s_lshl_b32 s{S_T2}, s{S_G}, 5
    s_add_u32 s{S_T}, s{S_T}, s{S_T2}
    v_add_u32 v{T+3}, s{S_T}, v{VT}
    v_lshlrev_b32 v{T+3}, 11, v{T+3}
    s_lshl_b32 s{S_T}, s{S_NT}, 8
    s_lshl_b32 s{S_T2}, s{S_NW}, 7
    s_add_u32 s{S_T}, s{S_T}, s{S_T2}
    s_lshl_b32 s{S_T2}, s{S_MW}, 6
    s_add_u32 s{S_T}, s{S_T}, s{S_T2}
    v_add_u32 v{T+3}, s{S_T}, v{T+3}
    v_lshl_add_u32 v{V_XA}, v{VG}, 3, v{T+3}
    v_and_b32 v{T+4}, 1, v{VG}
    v_lshrrev_b32 v{T+5}, 1, v{VG}
    v_lshl_or_b32 v{T+4}, v{T+4}, 1, v{T+5}
    v_lshl_add_u32 v{V_OA}, v{T+4}, 4, v{T+3}
    s_mov_b32 s{S_T}, {16*2048}
    """)
    for t in range(2):
        for e in range(2):
            so = "0" if t == 0 else f"s{S_T}"
            a(f"buffer_load_dwordx2 {vr(V_XR+(t*2+e)*2,2)}, v{V_XA}, {sr(SRD_X,4)}, {so} offen offset:{e*32}")
    a("s_waitcnt vmcnt(4) lgkmcnt(0)")
    stamp_now(a, 36)
    a(f"""
    s_barrier
    s_cmp_eq_u32 s{S_CUR}, s{S_KQ}
    s_cbranch_scc0 g2_after_publish
    s_cmp_eq_u32 s{S_WV}, 0
    s_cbranch_scc0 g2_wait_done
    s_lshl_b32 s{S_T}, s{S_KQ}, 2
    v_mov_b32 v{T+3}, s{S_DONE}
    v_mov_b32 v{T+4}, s{S_T}
    s_mov_b64 exec, 1
    buffer_store_dword v{T+3}, v{T+4}, {sr(SRD_F,4)}, s{S_FB} offen sc0 sc1
    s_mov_b32 s{S_CNT}, 0
    """)
    a.label("g2_poll")
    a(f"""
    buffer_load_dwordx4 {vr(T+6)}, off, {sr(SRD_F,4)}, s{S_FB} sc0 sc1
    s_waitcnt vmcnt(0)
    v_or_b32 v{T+6}, v{T+6}, v{T+7}
    v_or3_b32 v{T+5}, v{T+6}, v{T+8}, v{T+9}
    s_add_u32 s{S_CNT}, s{S_CNT}, 1
    v_readfirstlane_b32 s{S_ARR}, v{T+5}
    s_nop 3
    s_cmp_eq_u32 s{S_ARR}, {0x77 if "forcefb" in OPTS else 0x01010101}
    s_cbranch_scc1 g2_poll_end
    s_cmp_lt_u32 s{S_CNT}, {64 if "forcefb" in OPTS else 20000}
    s_cbranch_scc1 g2_poll
    """)
    a.label("g2_poll_end")
    if STAMP:
        a(f"v_writelane_b32 v{V_STAMP}, s{S_CNT}, 39")
    if "forcefb" in OPTS:
        a(f"s_and_b32 s{S_ARR}, s{S_ARR}, 0x00010001")
    a(f"""
    v_mov_b32 v{T+5}, s{S_ARR}
    v_mov_b32 v{T+4}, {65536}
    ds_write_b32 v{T+4}, v{T+5}
    s_mov_b64 exec, -1
    s_waitcnt lgkmcnt(0)
    """)
    a.label("g2_wait_done")
    a(f"""
    s_barrier
    v_mov_b32 v{T+4}, {65536}
    ds_read_b32 v{T+5}, v{T+4}
    s_waitcnt lgkmcnt(0)
    v_readfirstlane_b32 s{S_ARR}, v{T+5}
    s_nop 3
    """)
    a.label("g2_after_publish")
    a(f"""
    s_or_b32 s{S_T}, s{S_ARR}, s{S_DONE}
    s_cmp_eq_u32 s{S_T}, 0x01010101
    s_cbranch_scc1 g2_final
    s_andn2_b32 s{S_T}, 0x01010101, s{S_T}
    s_ff1_i32_b32 s{S_T}, s{S_T}
    s_lshl_b32 s{S_T2}, 1, s{S_T}
    s_or_b32 s{S_DONE}, s{S_DONE}, s{S_T2}
    s_lshr_b32 s{S_CUR}, s{S_T}, 3
    s_waitcnt vmcnt(0)
    s_barrier
    s_branch g2_gemm
    """)
    a.label("g2_final")
    stamp_now(a, 35)
    R0 = WF
    a(f"""
    s_andn2_b32 s{S_ARR}, s{S_ARR}, s{S_DONE}
    s_lshl_b32 s{S_T}, s{S_MW}, 2
    s_add_u32 s{S_T}, s{S_T}, s{S_G}
    s_lshl_b32 s{S_T}, s{S_T}, 10             ; pair0 * 1024
    s_lshl_b32 s{S_T2}, s{S_NW}, 13
    s_add_u32 s{S_T3}, s{S_T}, s{S_T2}
    """)
    for src in range(4):
        a(f"""
        s_bitcmp1_b32 s{S_ARR}, {8*src}
        s_cbranch_scc1 g2_ld{src}
        """)
        for r in range(8):
            a(f"v_mov_b32 v{8*src+r}, 0")
        a(f"s_branch g2_ld{src}_done")
        a.label(f"g2_ld{src}")
        a(f"""
        s_lshl_b32 s{S_T}, s{S_TILE}, 2
        s_add_u32 s{S_T}, s{S_T}, {src}
        s_lshl_b32 s{S_T}, s{S_T}, 2
        s_add_u32 s{S_T}, s{S_T}, s{S_KQ}
        s_lshl_b32 s{S_T}, s{S_T}, 14
        s_add_u32 s{S_T}, s{S_T}, s{S_T3}
        """)
        for e in range(2):
            a(f"buffer_load_dwordx4 {vr(8*src+4*e)}, v{T}, {sr(SRD_S,4)}, s{S_T} offen offset:{e*2048} {XF_}")
        a.label(f"g2_ld{src}_done")
    a(f"""
    s_lshl_b32 s{S_T}, s{S_MW}, 3
    s_lshl_b32 s{S_T2}, s{S_G}, 1
    s_add_u32 s{S_T}, s{S_T}, s{S_T2}
    s_lshl_b32 s{S_T}, s{S_T}, 10
    s_lshl_b32 s{S_T2}, s{S_NW}, 14
    s_add_u32 s{S_T}, s{S_T}, s{S_T2}
    v_add_u32 v{T+3}, s{S_T}, v{T}
    """)
    for e in range(2):
        for t in range(2):
            a(f"ds_read_b128 {vr(R0+(e*2+t)*4)}, v{T+3} offset:{e*4096 + t*1024}")
    a("s_waitcnt vmcnt(0) lgkmcnt(0)")
    stamp_now(a, 37)
    for t in range(2):
        o = XF + 16 + t * 4
        for e in range(2):
            c = R0 + (e * 2 + t) * 4
            srcs = [8 * src + 4 * e + 2 * t for src in range(4)] + [V_XR + (t * 2 + e) * 2]
            for p in srcs:
                a(f"""
                v_lshlrev_b32 v{T+8}, 16, v{p}
                v_and_b32 v{T+9}, 0xffff0000, v{p}
                v_lshlrev_b32 v{T+10}, 16, v{p+1}
                v_and_b32 v{T+11}, 0xffff0000, v{p+1}
                v_pk_add_f32 {vr(c,2)}, {vr(c,2)}, {vr(T+8,2)}
                v_pk_add_f32 {vr(c+2,2)}, {vr(c+2,2)}, {vr(T+10,2)}
                """)
            a(f"""
            v_cvt_pk_bf16_f32 v{o+2*e}, v{c}, v{c+1}
            v_cvt_pk_bf16_f32 v{o+2*e+1}, v{c+2}, v{c+3}
            """)
        so = "0" if t == 0 else f"s{S_T2}"
        a(f"""
        s_mov_b32 s{S_T2}, {16*2048}
        s_nop 0
        v_permlane16_swap_b32 v{o}, v{o+2}
        v_permlane16_swap_b32 v{o+1}, v{o+3}
        s_nop 1
        buffer_store_dwordx4 {vr(o)}, v{V_OA}, {sr(SRD_O,4)}, {so} offen
        """)
    stamp_now(a, 51, True)
    stamp_dump(a, S_WSP, S_WV, 40 << 20)
    a.label("g2_exit")
    a("s_endpgm")
    global G2_VGPRS
    G2_VGPRS = 256 if STAMP else 160

HEADER = f"""; mblk_pitch={MBLK_PITCH}
{"" if FUSE else "; @launch kernel=k0_kernel grid=(256,1,1) block=(512,1,1) lds=0"}
; @launch kernel=g1_kernel grid=(256,1,1) block=(512,1,1) lds={G1_LDS}
; @launch kernel=g2_kernel grid=(256,1,1) block=(512,1,1) lds={G2_LDS if 'g2a' in OPTS else G2C_LDS}
.amdgcn_target "amdgcn-amd-amdhsa--gfx950"
.text
"""

def kd(name, vgpr, sgpr):
    return f"""
.amdhsa_kernel {name}
  .amdhsa_next_free_vgpr {vgpr}
  .amdhsa_next_free_sgpr {sgpr}
  .amdhsa_accum_offset {(vgpr + 3) // 4 * 4}
  .amdhsa_group_segment_fixed_size 0
  .amdhsa_kernarg_size 72
  .amdhsa_user_sgpr_count 2
  .amdhsa_user_sgpr_kernarg_segment_ptr 1
  .amdhsa_system_sgpr_workgroup_id_x 1
.end_amdhsa_kernel
"""

def main():
    global STAMP
    if "stamp" in sys.argv[2:]: STAMP = True
    a = Asm()
    gen_k0(a)
    gen_g1(a)
    (gen_g2 if 'g2a' in OPTS else gen_g2c)(a)
    s = HEADER + a.text() + '.section .rodata,"a"\n.p2align 6\n' + kd("k0_kernel", 64, 40) + ".p2align 6\n" + kd("g1_kernel", 256, 102) + ".p2align 6\n" + kd("g2_kernel", G2_VGPRS, 102 if STAMP else 80)
    out = sys.argv[1] if len(sys.argv) > 1 else OUT
    open(out, "w").write(s)

main()
```

```python
import sys

OUT = "parallel_sum__sliding_local_dilated__dense_activation_relu__prompt.s"

class Asm:
    def __init__(self):
        self.L = []
    def __call__(self, s):
        for line in s.strip("\n").split("\n"):
            line = line.strip()
            if line:
                self.L.append("    " + line)
    def label(self, n):
        self.L.append(n + ":")
    def raw(self, s):
        self.L.append(s)
    def text(self):
        return "\n".join(self.L) + "\n"

class Collect:
    def __init__(self): self.L = []
    def __call__(self, s):
        for line in s.strip("\n").split("\n"):
            line = line.strip()
            if line: self.L.append(line)

def interleave(a, mfmas, fillers, start=2, per=2):
    fi = 0
    for n, m in enumerate(mfmas):
        a(m)
        if n >= start:
            for _ in range(per):
                if fi < len(fillers):
                    a(fillers[fi]); fi += 1
    while fi < len(fillers):
        a(fillers[fi]); fi += 1

def vr(b, n=4):
    return "v[%d:%d]" % (b, b + n - 1)
def sr(b, n=2):
    return "s[%d:%d]" % (b, b + n - 1)

MBLK_PITCH = 144 * 1024
for _o in sys.argv[2:]:
    if _o.startswith("pitch="): MBLK_PITCH = int(_o[6:])
A2_BYTES = 128 * MBLK_PITCH

G1_ASLOT = 16384
G1_BBASE = 65536
G1_BSLOT = 28672
G1_HALO = 24576
G1_STAT = G1_BBASE + 3 * G1_BSLOT
G1_CS = G1_STAT + 272 * 8
G1_CSP = G1_STAT + 3072
G1_CS = G1_CSP + 8192
G1_VERD = G1_CS + 896
G1_LDS = 163840 if "nofuse" not in sys.argv[2:] else G1_STAT
ST_OFF = 28 << 20
XN_OFF = 24 << 20
AT_PITCH = 400

V_ACC = 0
V_HACC = 96
V_XF = 112
V_WF = 144
V_HF = 200
V_S1 = 208
V_S2 = 210
V_SH = 212
V_CS = 214
V_WD = 208
V_WV = 212
V_RA = 217
V_RB = 221
V_RH = 228
V_DA = 230
V_DB = 231
V_DH = 235
V_T = 236
V_LANE = 250
V_TT = 251
V_GG = 252

S_X = 4; S_W = 6; S_WS = 8; S_W1 = 10
SRD_X = 12; SRD_W = 16; SRD_O = 20
S_WAVE = 24; S_MW = 26; S_NW = 27; S_WQ = 28; S_MT = 29; S_JT = 30; S_J = 31
S_KA = 32; S_KB = 33; S_MA = 34; S_MB = 35; S_BD = 36; S_BSL = 37; S_RSL = 38; S_TMP = 39
S_ONES = 40; S_KH = 41; S_TMP2 = 42; S_TMP3 = 43
S_BLK = 44
S_TB = 52
S_PO = 56
S_MASK = 64
S_BSC = 60
S_HD = 61
S_KW = 91
SRD_WW = 64; S_WM = 68; S_GW = 70; S_WPK = 71
V_L16 = 216
SRD_ST = 64; SRD_DBG = 72; S_NTI = 76; S_EV = 77; S_DBGP = 78
V_ONES = 240; V_CHK = 208
S_MAE = 25; S_MBE = 3
LDS_DUMP = 0x28000
SRD_XA = 96
S_WOP = 92; S_W2P = 94; S_PC1 = 62

STAMP = False
FUSE = "nofuse" not in sys.argv[2:]
OPTS = sys.argv[2:]
STF = "sc0 sc1" if "stsc" in OPTS else ""
STH = "sc0 sc1" if "hwt" in OPTS else ""
V_STAMP = 253
S_SA = 84; S_SB = 86; S_SC = 88; SRD_D = 80; S_SI = 90
def stamp_now(a, idx, real=False):
    if not STAMP: return
    a(f"""
    {"s_memrealtime" if real else "s_memtime"} {sr(S_SC)}
    s_waitcnt lgkmcnt(0)
    v_writelane_b32 v{V_STAMP}, s{S_SC}, {idx}
    """)
def stamp_dump(a, wsreg, wave_sreg, base_off):
    if not STAMP: return
    a(f"""
    s_waitcnt vmcnt(0)
    s_memtime {sr(S_SC)}
    s_waitcnt lgkmcnt(0)
    v_writelane_b32 v{V_STAMP}, s{S_SC}, 63
    s_mov_b32 s{SRD_D}, s{wsreg}
    s_and_b32 s{SRD_D+1}, s{wsreg+1}, 0xffff
    s_mov_b32 s{SRD_D+2}, {64<<20}
    s_mov_b32 s{SRD_D+3}, 0x20000
    s_lshl_b32 s{S_SC}, s2, 3
    s_add_u32 s{S_SC}, s{S_SC}, s{wave_sreg}
    s_lshl_b32 s{S_SC}, s{S_SC}, 8
    s_add_u32 s{S_SC}, s{S_SC}, {base_off}
    v_mbcnt_lo_u32_b32 v254, -1, 0
    v_mbcnt_hi_u32_b32 v254, -1, v254
    v_lshlrev_b32 v254, 2, v254
    buffer_store_dword v{V_STAMP}, v254, {sr(SRD_D,4)}, s{S_SC} offen
    """)

def acc(s, i): return V_ACC + (s * 4 + i) * 4
def xf(i, kk): return V_XF + (i * 2 + kk) * 4
def wf(s, kk): return V_WF + (s * 2 + kk) * 4
def hf(kk): return V_HF + kk * 4

def xlane_sum(a, v, t):
    a(f"""
    v_mov_b32 v{t}, v{v}
    s_nop 1
    v_permlane16_swap_b32 v{v}, v{t}
    s_nop 1
    v_add_f32 v{v}, v{v}, v{t}
    v_mov_b32 v{t}, v{v}
    s_nop 1
    v_permlane32_swap_b32 v{v}, v{t}
    s_nop 1
    v_add_f32 v{v}, v{v}, v{t}
    """)

def xlane_max(a, v, t):
    a(f"""
    v_mov_b32 v{t}, v{v}
    s_nop 1
    v_permlane16_swap_b32 v{v}, v{t}
    s_nop 1
    v_max_f32 v{v}, v{v}, v{t}
    v_mov_b32 v{t}, v{v}
    s_nop 1
    v_permlane32_swap_b32 v{v}, v{t}
    s_nop 1
    v_max_f32 v{v}, v{v}, v{t}
    """)

def reduce64(a, v, t):
    DPP = "row_mask:0xf bank_mask:0xf"
    a(f"""
    s_nop 1
    v_add_f32_dpp v{t}, v{v}, v{v} quad_perm:[1,0,3,2] {DPP}
    s_nop 1
    v_add_f32_dpp v{v}, v{t}, v{t} quad_perm:[2,3,0,1] {DPP}
    s_nop 1
    v_add_f32_dpp v{t}, v{v}, v{v} row_half_mirror {DPP}
    s_nop 1
    v_add_f32_dpp v{v}, v{t}, v{t} row_mirror {DPP}
    """)
    xlane_sum(a, v, t)

def row_stats(a, src, u, dst, t0, t1):
    for r in range(8):
        a(f"""
        v_lshlrev_b32 v{u+2*r}, 16, v{src+r}
        v_and_b32 v{u+2*r+1}, 0xffff0000, v{src+r}
        """)
    a(f"v_pk_add_f32 {vr(dst,2)}, {vr(u,2)}, {vr(u+2,2)}")
    for r in range(2, 8):
        a(f"v_pk_add_f32 {vr(dst,2)}, {vr(dst,2)}, {vr(u+2*r,2)}")
    a(f"v_add_f32 v{t0}, v{dst}, v{dst+1}")
    reduce64(a, t0, t1)
    a(f"v_mul_f32 v{t0}, 0x3a800000, v{t0}          ; mean")
    for r in range(8):
        a(f"v_pk_add_f32 {vr(u+2*r,2)}, {vr(u+2*r,2)}, {vr(t0,2)} op_sel_hi:[1,0] neg_lo:[0,1] neg_hi:[0,1]")
    a(f"v_pk_mul_f32 {vr(dst,2)}, {vr(u,2)}, {vr(u,2)}")
    for r in range(1, 8):
        a(f"v_pk_fma_f32 {vr(dst,2)}, {vr(u+2*r,2)}, {vr(u+2*r,2)}, {vr(dst,2)}")
    a(f"v_add_f32 v{dst+1}, v{dst}, v{dst+1}")
    reduce64(a, dst + 1, t1)
    a(f"""
    v_mul_f32 v{dst+1}, 0x3a800000, v{dst+1}     ; var
    v_cvt_pk_bf16_f32 v{t1}, v{t0}, v{dst+1}
    v_lshlrev_b32 v{dst}, 16, v{t1}              ; m_b
    v_and_b32 v{dst+1}, 0xffff0000, v{t1}        ; v_b
    v_add_f32 v{dst+1}, 0x3727c5ac, v{dst+1}
    v_cvt_pk_bf16_f32 v{dst+1}, v{dst+1}, v{dst+1}
    v_and_b32 v{dst+1}, 0xffff0000, v{dst+1}
    v_sqrt_f32 v{dst+1}, v{dst+1}
    s_nop 0
    v_cvt_pk_bf16_f32 v{dst+1}, v{dst+1}, v{dst+1}
    v_and_b32 v{dst+1}, 0xffff0000, v{dst+1}
    v_rcp_f32 v{dst+1}, v{dst+1}
    s_nop 0
    """)

def g1_path(a, typ, G):
    qkv = (typ == 0)
    NB = 6 if qkv else 7
    PB = 384 if qkv else 448
    CH = PB // 16
    WP = 6144 if qkv else 7168
    halo = qkv and G == 0
    if qkv:
        nB = 3
        p0 = 0 if G == 0 else 12
    else:
        nB = 4 if G == 0 else 3
        p0 = 0 if G == 0 else 16
    nIss = 4 + nB + (1 if halo else 0)
    nBiss = nB + (1 if halo else 0)
    cs_slots = [0, 1] if (qkv or G == 0) else [0, 1, 6]
    P = f"g1_{typ}{G}"
    T = V_T
    a.label(P)
    if STAMP: a(f"v_mov_b32 v{V_STAMP}, 0")
    stamp_now(a, 32); stamp_now(a, 50, True)
    if qkv:
        a(f"""
        s_mov_b32 s{SRD_W}, s{S_W}
        s_and_b32 s{SRD_W+1}, s{S_W+1}, 0xffff
        s_mov_b32 s{SRD_W+2}, {1024*6144}
        s_mov_b32 s{SRD_W+3}, 0x20000
        """)
    else:
        a(f"""
        s_mov_b32 s{SRD_W}, s{S_W1}
        s_and_b32 s{SRD_W+1}, s{S_W1+1}, 0xffff
        s_mov_b32 s{SRD_W+2}, {1024*7168}
        s_mov_b32 s{SRD_W+3}, 0x20000
        """)
    Go = 1 - G
    a(f"""
    v_lshrrev_b32 v{T}, 3, v{V_LANE}                 ; l>>3
    v_and_b32 v{T+1}, 7, v{V_LANE}
    v_xor_b32 v{T+1}, v{T+1}, v{T}                   ; chunk
    s_lshl_b32 s{S_TMP}, s{S_MT}, 8
    s_lshl_b32 s{S_TMP2}, s{S_WQ}, 5
    s_add_u32 s{S_TMP}, s{S_TMP}, s{S_TMP2}
    s_add_u32 s{S_TMP}, s{S_TMP}, {128*Go}
    v_add_u32 v{T+2}, s{S_TMP}, v{T}
    v_lshlrev_b32 v{T+2}, 11, v{T+2}
    v_lshl_add_u32 v{V_DA}, v{T+1}, 4, v{T+2}
    """)
    if halo:
        a(f"""
        s_and_b32 s{S_TMP2}, s{S_WQ}, 1
        s_lshl_b32 s{S_TMP2}, s{S_TMP2}, 3
        v_add_u32 v{T+2}, s{S_TMP2}, v{T}
        s_lshl_b32 s{S_TMP}, s{S_MT}, 8
        s_sub_u32 s{S_TMP}, s{S_TMP}, 16
        v_add_u32 v{T+2}, s{S_TMP}, v{T+2}
        v_max_i32 v{T+2}, 0, v{T+2}
        v_lshlrev_b32 v{T+2}, 11, v{T+2}
        v_lshl_add_u32 v{V_DH}, v{T+1}, 4, v{T+2}
        s_mul_i32 s{S_HD}, s{S_WQ}, {nB*1024}
        s_sub_u32 s{S_HD}, {G1_HALO - p0*1024}, s{S_HD}
        s_lshl_b32 s{S_TMP2}, s{S_TMP2}, 7           ; (wq&1)*1024
        s_add_u32 s{S_HD}, s{S_HD}, s{S_TMP2}
        """)
    magic = (65536 + CH - 1) // CH
    for q in range(64 * CH):
        assert (q * magic) >> 16 == q // CH
    a(f"s_mul_i32 s{S_TMP3}, s{S_WQ}, {nB*64}")
    for i in range(nB):
        a(f"""
        s_add_u32 s{S_TMP}, s{S_TMP3}, {(p0+i)*64}
        v_add_u32 v{T}, s{S_TMP}, v{V_LANE}          ; q
        v_mul_u32_u24 v{T+1}, {magic}, v{T}
        v_lshrrev_b32 v{T+1}, 16, v{T+1}             ; k
        v_mul_u32_u24 v{T+2}, {CH}, v{T+1}
        v_sub_u32 v{T+2}, v{T}, v{T+2}               ; c'
        """)
        if qkv:
            a(f"""
            v_bfe_u32 v{T+3}, v{T+1}, 1, 1
            v_bfe_u32 v{T+4}, v{T+1}, 3, 1
            v_lshl_or_b32 v{T+3}, v{T+4}, 1, v{T+3}  ; f
            v_lshrrev_b32 v{T+4}, 1, v{T+2}
            v_xor_b32 v{T+4}, v{T+4}, v{T+3}         ; unit (0..11)
            v_cmp_le_u32 vcc, 6, v{T+4}
            s_nop 1
            v_cndmask_b32 v{T+5}, 0, 1, vcc          ; hh
            v_mul_u32_u24 v{T+6}, 6, v{T+5}
            v_sub_u32 v{T+6}, v{T+4}, v{T+6}         ; unit % 6
            v_lshrrev_b32 v{T+7}, 1, v{T+6}          ; part
            v_and_b32 v{T+6}, 1, v{T+6}              ; half32
            v_lshlrev_b32 v{T+7}, 11, v{T+7}         ; part*2048
            v_lshl_add_u32 v{T+7}, v{T+5}, 6, v{T+7} ; + hh*64
            v_lshl_add_u32 v{T+7}, v{T+6}, 5, v{T+7} ; + half32*32
            v_and_b32 v{T+6}, 1, v{T+2}
            v_lshl_add_u32 v{T+7}, v{T+6}, 4, v{T+7} ; + (c'&1)*16
            s_lshl_b32 s{S_TMP}, s{S_JT}, 7          ; 2 jt * 64
            v_add_u32 v{T+7}, s{S_TMP}, v{T+7}
            v_mul_u32_u24 v{T+1}, {WP}, v{T+1}
            v_add_u32 v{V_DB+i}, v{T+1}, v{T+7}
            """)
        else:
            a(f"""
            v_bfe_u32 v{T+3}, v{T+1}, 3, 1
            v_lshlrev_b32 v{T+3}, 1, v{T+3}
            v_xor_b32 v{T+2}, v{T+2}, v{T+3}         ; c = c' ^ (2*bit3(k))
            v_lshlrev_b32 v{T+2}, 4, v{T+2}
            s_mul_i32 s{S_TMP}, s{S_JT}, 448
            v_add_u32 v{T+2}, s{S_TMP}, v{T+2}
            v_mul_u32_u24 v{T+1}, {WP}, v{T+1}
            v_add_u32 v{V_DB+i}, v{T+1}, v{T+2}
            """)
    a(f"""
    s_lshl_b32 s{S_KA}, s{S_MT}, {8 if FUSE else 31}
    s_and_b32 s{S_KA}, s{S_KA}, 0x7ff
    s_mul_i32 s{S_KB}, s{S_MT}, {128*WP if FUSE else 0}
    s_mov_b32 s{S_KH}, s{S_KA}
    s_lshl_b32 s{S_MA}, s{S_WQ}, 12
    s_add_u32 s{S_MA}, s{S_MA}, {Go*2*G1_ASLOT}
    s_mul_i32 s{S_MB}, s{S_WQ}, {nB*1024}
    s_add_u32 s{S_MB}, s{S_MB}, {G1_BBASE + p0*1024}
    s_mov_b32 s{S_BSL}, 0
    """)
    def dma_A():
        for i in range(4):
            a(f"""
            s_add_u32 m0, s{S_MA}, {i*1024}
            s_add_u32 s{S_TMP}, s{S_KA}, {i*16384}
            buffer_load_dwordx4 v{V_DA}, {sr(SRD_XA,4)}, s{S_TMP} offen lds
            """)
        a(f"""
        s_add_u32 s{S_KA}, s{S_KA}, 128
        s_and_b32 s{S_KA}, s{S_KA}, 0x7ff
        s_xor_b32 s{S_MA}, s{S_MA}, {G1_ASLOT}
        """)
    def dma_B():
        for i in range(nB):
            a(f"""
            s_add_u32 m0, s{S_MB}, {i*1024}
            s_nop 0
            buffer_load_dwordx4 v{V_DB+i}, {sr(SRD_W,4)}, s{S_KB} offen lds
            """)
        if halo:
            a(f"""
            s_add_u32 m0, s{S_MB}, s{S_HD}
            s_nop 0
            buffer_load_dwordx4 v{V_DH}, {sr(SRD_X,4)}, s{S_KH} offen lds
            s_add_u32 s{S_KH}, s{S_KH}, 128
            s_and_b32 s{S_KH}, s{S_KH}, 0x7ff
            """)
        a(f"""
        s_add_u32 s{S_KB}, s{S_KB}, {64*WP}
        s_cmp_eq_u32 s{S_KB}, {1024*WP}
        s_cselect_b32 s{S_KB}, 0, s{S_KB}
        s_add_u32 s{S_BSL}, s{S_BSL}, 1
        s_add_u32 s{S_MB}, s{S_MB}, {G1_BSLOT}
        s_cmp_eq_u32 s{S_BSL}, 3
        s_cselect_b32 s{S_TMP}, {3*G1_BSLOT}, 0
        s_cselect_b32 s{S_BSL}, 0, s{S_BSL}
        s_sub_u32 s{S_MB}, s{S_MB}, s{S_TMP}
        """)
    if G == 0:
        dma_B(); dma_A(); dma_B()
        pro_wait = 4 + nBiss
    else:
        dma_A(); dma_B(); dma_A(); dma_B()
        pro_wait = 4 + nBiss
    WARM = "nowarmw" not in OPTS and not FUSE
    a(f"""
    s_and_b32 s{S_WOP+1}, s{S_WOP+1}, 0xffff
    s_and_b32 s{S_W2P+1}, s{S_W2P+1}, 0xffff
    s_lshl_b32 s{S_GW}, s2, 3
    s_add_u32 s{S_GW}, s{S_GW}, s{S_WAVE}
    s_lshl_b32 s{S_GW}, s{S_GW}, 10
    v_lshlrev_b32 v{V_L16}, 4, v{V_LANE}
    s_mov_b32 s{S_WPK}, {128*WP}
    s_mov_b32 s{S_KW}, 0
    """)
    if WARM:
        a(f"""
        v_min_u32 v{T}, {2*CH - 1}, v{V_LANE}
        v_cmp_le_u32 vcc, {CH}, v{T}
        s_lshl_b32 s{S_TMP}, s{S_MT}, 4
        s_lshl_b32 s{S_TMP2}, s{S_WAVE}, 1
        v_cndmask_b32 v{T+1}, 0, 1, vcc              ; row
        s_add_u32 s{S_TMP}, s{S_TMP}, s{S_TMP2}
        v_mul_u32_u24 v{T+2}, {CH}, v{T+1}
        v_sub_u32 v{T}, v{T}, v{T+2}                 ; chunk
        v_add_u32 v{T+1}, s{S_TMP}, v{T+1}
        v_mul_u32_u24 v{T+1}, {WP}, v{T+1}
        """)
        if qkv:
            a(f"""
            v_lshrrev_b32 v{T+2}, 3, v{T}
            v_lshl_add_u32 v{T+1}, v{T+2}, 11, v{T+1}
            v_and_b32 v{T}, 7, v{T}
            s_lshl_b32 s{S_TMP}, s{S_JT}, 7
            """)
        else:
            a(f"s_mul_i32 s{S_TMP}, s{S_JT}, 448")
        a(f"""
        v_lshl_add_u32 v{T+1}, v{T}, 4, v{T+1}
        v_add_u32 v{V_WV}, s{S_TMP}, v{T+1}
        s_mov_b32 s{S_KW}, {256*WP}
        buffer_load_dwordx4 {vr(V_WD)}, v{V_WV}, {sr(SRD_W,4)}, s{S_KW} offen
        s_mov_b32 s{S_KW}, {384*WP}
        buffer_load_dwordx4 {vr(V_WD)}, v{V_WV}, {sr(SRD_W,4)}, s{S_KW} offen
        s_mov_b32 s{S_KW}, {512*WP}
        s_mov_b32 s{SRD_WW}, s{SRD_W}
        s_mov_b32 s{SRD_WW+1}, s{SRD_W+1}
        s_mov_b32 s{SRD_WW+2}, s{SRD_W+2}
        s_mov_b32 s{SRD_WW+3}, 0x20000
        s_and_b32 s{S_WOP+1}, s{S_WOP+1}, 0xffff
        s_and_b32 s{S_W2P+1}, s{S_W2P+1}, 0xffff
        s_mov_b32 s{S_WPK}, {128*WP}
        s_lshl_b32 s{S_GW}, s2, 3
        s_add_u32 s{S_GW}, s{S_GW}, s{S_WAVE}
        s_lshl_b32 s{S_GW}, s{S_GW}, 10
        v_lshlrev_b32 v{V_L16}, 4, v{V_LANE}
        """)
        pro_wait += 2
        nIss += 1
    NCOL = 16 * 2 * NB
    VCS = 216 - 4 * len(cs_slots)
    if FUSE:
        a(f"""
        s_add_u32 s{SRD_ST}, s{S_WS}, {ST_OFF}
        s_addc_u32 s{SRD_ST+1}, s{S_WS+1}, 0
        s_and_b32 s{SRD_ST+1}, s{SRD_ST+1}, 0xffff
        s_mov_b32 s{SRD_ST+2}, {65536 + 262144}
        s_mov_b32 s{SRD_ST+3}, 0x20000
        s_mov_b32 s{SRD_DBG}, s{S_DBGP}
        s_and_b32 s{SRD_DBG+1}, s{S_DBGP+1}, 0xffff
        s_mov_b32 s{SRD_DBG+2}, 256
        s_mov_b32 s{SRD_DBG+3}, 0x20000
        s_add_u32 s{S_NTI}, s{S_JT}, {16*typ}
        s_mov_b32 s{S_EV}, {(((1<<2) | (1<<5) | (1<<12) | (1<<14)) if G == 0 else (1<<2)) | (0 if 'warmpost' in OPTS else (1<<15))}
        """)
        if G == 1:
            a(f"""
            s_lshl_b32 s{S_TMP}, s{S_MT}, 8
            s_lshl_b32 s{S_TMP2}, s{S_NTI}, 3
            s_add_u32 s{S_TMP}, s{S_TMP}, s{S_TMP2}
            s_lshl_b32 s{S_TMP2}, s{S_WQ}, 1
            s_add_u32 s{S_KW}, s{S_TMP}, s{S_TMP2}
            s_lshl_b32 s{S_TMP}, s{S_KW}, 11
            """)
            for i in range(4):
                a(f"buffer_load_dwordx4 {vr(V_XF+4*i)}, v{V_L16}, {sr(SRD_X,4)}, s{S_TMP} offen offset:{1024*i}")
            pro_wait += 4
    if qkv:
        if G == 0:
            a(f"""
            s_mul_i32 s{S_TMP}, s{S_NW}, 6
            s_lshl_b32 s{S_TMP2}, s{S_MW}, 1
            s_add_u32 s{S_BLK+0}, s{S_TMP}, s{S_TMP2}
            s_add_u32 s{S_BLK+0}, s{S_BLK+0}, 2
            s_add_u32 s{S_BLK+1}, s{S_BLK+0}, 1
            s_mov_b32 s{S_BLK+2}, s{S_TMP}
            s_add_u32 s{S_BLK+3}, s{S_TMP}, 1
            s_sub_u32 s{S_BLK+4}, s{S_TMP}, s{S_TMP2}
            s_add_u32 s{S_BLK+4}, s{S_BLK+4}, 4
            s_add_u32 s{S_BLK+5}, s{S_BLK+4}, 1
            """)
        else:
            a(f"s_mul_i32 s{S_TMP}, s{S_NW}, 6")
            for s in range(6):
                a(f"s_add_u32 s{S_BLK+s}, s{S_TMP}, {s}")
    else:
        a(f"s_lshl_b32 s{S_TMP2}, s{S_NW}, 3")
        for ps in range(3):
            a(f"""
            s_add_u32 s{S_TMP}, s{S_MW}, {(ps + 2*G) % 3}
            s_cmp_ge_u32 s{S_TMP}, 3
            s_cselect_b32 s{S_TMP3}, 3, 0
            s_sub_u32 s{S_TMP}, s{S_TMP}, s{S_TMP3}
            s_lshl_b32 s{S_TMP}, s{S_TMP}, 1
            s_add_u32 s{S_BLK+2*ps}, s{S_TMP}, s{S_TMP2}
            s_add_u32 s{S_BLK+2*ps+1}, s{S_BLK+2*ps}, 1
            """)
        a(f"s_add_u32 s{S_BLK+6}, s{S_NW}, 6")
    a(f"""
    v_and_b32 v{T}, 7, v{V_TT}
    v_xor_b32 v{T}, v{V_GG}, v{T}                    ; g ^ (t&7)
    v_lshlrev_b32 v{T}, 4, v{T}
    v_lshl_add_u32 v{T}, v{V_TT}, 7, v{T}
    s_lshl_b32 s{S_TMP}, s{S_MW}, 13
    s_add_u32 s{S_TMP}, s{S_TMP}, {G*2*G1_ASLOT}
    s_lshl_b32 s{S_TMP2}, s{S_NW}, 12
    s_add_u32 s{S_TMP3}, s{S_TMP}, s{S_TMP2}
    v_add_u32 v{V_RA+0}, s{S_TMP3}, v{T}
    v_xor_b32 v{V_RA+1}, 64, v{V_RA+0}
    s_xor_b32 s{S_TMP2}, s{S_TMP2}, 4096
    s_add_u32 s{S_TMP3}, s{S_TMP}, s{S_TMP2}         ; sp=1
    v_add_u32 v{V_RA+2}, s{S_TMP3}, v{T}
    v_xor_b32 v{V_RA+3}, 64, v{V_RA+2}
    """)
    if halo:
        a(f"""
        v_add_u32 v{V_RH+0}, {G1_BBASE + G1_HALO}, v{T}
        v_xor_b32 v{V_RH+1}, 64, v{V_RH+0}
        """)
    a(f"""
    v_lshrrev_b32 v{T}, 2, v{V_TT}                   ; r
    v_lshl_add_u32 v{T+1}, v{V_GG}, 3, v{T}          ; 8g + r
    v_mul_u32_u24 v{T+1}, {PB}, v{T+1}
    v_and_b32 v{T+2}, 3, v{V_LANE}
    v_lshl_add_u32 v{T+1}, v{T+2}, 3, v{T+1}         ; + c*8
    v_add_u32 v{T+1}, {G1_BBASE}, v{T+1}
    v_and_b32 v{T+2}, 1, v{V_GG}                     ; g&1
    """)
    if qkv:
        a(f"""
        v_lshrrev_b32 v{T+3}, 1, v{T}                ; bit1(r)
        v_lshl_or_b32 v{T+2}, v{T+2}, 1, v{T+3}      ; f
        """)
    for s in range(NB):
        a(f"""
        v_xor_b32 v{T+3}, s{S_BLK+s}, v{T+2}
        v_lshl_add_u32 v{V_RB+s}, v{T+3}, 5, v{T+1}
        """)
    nacc = (NB * 4) * 4
    for r in range(V_ACC, V_ACC + nacc):
        a(f"v_mov_b32 v{r}, 0")
    if halo:
        for r in range(V_HACC, V_HACC + 8):
            a(f"v_mov_b32 v{r}, 0")
    if FUSE:
        for r in range(4 * len(cs_slots)):
            a(f"v_mov_b32 v{VCS+r}, 0")
        for r in range(4):
            a(f"v_mov_b32 v{V_ONES+r}, 0x3f803f80")
    a(f"""
    s_mov_b32 s{S_BSC}, {G1_BSLOT}
    s_mov_b32 s{S_J}, 0
    s_mov_b32 s{S_RSL}, 0
    s_waitcnt vmcnt({pro_wait})
    s_barrier
    """)
    stamp_now(a, 33)
    if G == 1:
        if FUSE:
            a("s_waitcnt vmcnt(0)")
            row_stats(a, V_XF, V_WF, V_WF + 16, V_WF + 20, V_WF + 21)
            row_stats(a, V_XF + 8, V_WF, V_WF + 18, V_WF + 20, V_WF + 21)
            a(f"""
            v_lshlrev_b32 v{V_WF+20}, 24, v{V_LANE}
            s_lshl_b32 s{S_TMP}, s{S_KW}, 3
            buffer_store_dwordx4 {vr(V_WF+16)}, v{V_WF+20}, {sr(SRD_ST,4)}, s{S_TMP} offen sc0 sc1
            """)
        a("s_barrier")
    if STAMP: a(f"s_mov_b32 s{S_SB}, 0")

    def rd_x(i):
        sp, e = i >> 1, i & 1
        for kk in range(2):
            a(f"ds_read_b128 {vr(xf(i,kk))}, v{V_RA+sp*2+kk} offset:{e*2048}")
    def rd_w(s):
        for kk in range(2):
            for h in range(2):
                a(f"ds_read_b64_tr_b16 {vr(wf(s,kk)+2*h,2)}, v{V_RB+s} offset:{(32*kk+4*h)*PB}")
    def dma_list():
        L = []
        for i in range(4):
            L.append(f"""
            s_add_u32 m0, s{S_MAE}, {i*1024}
            s_add_u32 s{S_TMP}, s{S_KA}, {i*16384}
            buffer_load_dwordx4 v{V_DA}, {sr(SRD_XA,4)}, s{S_TMP} offen lds
            """)
        for i in range(nB):
            L.append(f"""
            s_add_u32 m0, s{S_MBE}, {i*1024}
            s_nop 0
            buffer_load_dwordx4 v{V_DB+i}, {sr(SRD_W,4)}, s{S_KB} offen lds
            """)
        if halo:
            L.append(f"""
            s_add_u32 m0, s{S_MBE}, s{S_HD}
            s_nop 0
            buffer_load_dwordx4 v{V_DH}, {sr(SRD_X,4)}, s{S_KH} offen lds
            """)
        if WARM:
            L.append(f"buffer_load_dwordx4 {vr(V_WD)}, v{V_WV}, {sr(SRD_WW,4)}, s{S_KW} offen")
        return L
    a(f"""
    s_mov_b32 s{S_MAE}, s{S_MA}
    s_mov_b32 s{S_MBE}, s{S_MB}
    """)
    reads = []
    for i in range(4):
        sp, e = i >> 1, i & 1
        for kk in range(2):
            reads.append((kk, f"ds_read_b128 {vr(xf(i,kk))}, v{V_RA+sp*2+kk} offset:{e*2048}"))
    if halo:
        for kk in range(2):
            reads.append((kk, f"ds_read_b128 {vr(hf(kk))}, v{V_RH+kk}"))
    for s_ in range(NB):
        for kk in range(2):
            for h in range(2):
                reads.append((kk, f"ds_read_b64_tr_b16 {vr(wf(s_,kk)+2*h,2)}, v{V_RB+s_} offset:{(32*kk+4*h)*PB}"))
    reads = [r for k_, r in reads if k_ == 0] + [r for k_, r in reads if k_ == 1]

    bk = Collect()
    bk(f"""
    s_add_u32 s{S_KA}, s{S_KA}, 128
    s_and_b32 s{S_KA}, s{S_KA}, 0x7ff
    s_xor_b32 s{S_MA}, s{S_MA}, {G1_ASLOT}
    s_cmp_ge_u32 s{S_J}, {14 if G == 0 else 13}
    s_cselect_b32 s{SRD_XA+2}, 0, s{SRD_XA+2}
    s_cselect_b32 s{S_MAE}, {LDS_DUMP}, s{S_MA}
    s_add_u32 s{S_KH}, s{S_KH}, 128
    s_and_b32 s{S_KH}, s{S_KH}, 0x7ff
    s_add_u32 s{S_KW}, s{S_KW}, s{S_WPK}
    s_add_u32 s{S_KB}, s{S_KB}, {64*WP}
    s_cmp_eq_u32 s{S_KB}, {1024*WP}
    s_cselect_b32 s{S_KB}, 0, s{S_KB}
    s_add_u32 s{S_BSL}, s{S_BSL}, 1
    s_add_u32 s{S_MB}, s{S_MB}, {G1_BSLOT}
    s_cmp_eq_u32 s{S_BSL}, 3
    s_cselect_b32 s{S_TMP}, {3*G1_BSLOT}, 0
    s_cselect_b32 s{S_BSL}, 0, s{S_BSL}
    s_sub_u32 s{S_MB}, s{S_MB}, s{S_TMP}
    s_cmp_ge_u32 s{S_J}, 13
    s_cselect_b32 s{S_MBE}, {LDS_DUMP}, s{S_MB}
    s_cselect_b32 s{SRD_W+2}, 0, s{SRD_W+2}
    s_cselect_b32 s{SRD_X+2}, 0, s{SRD_X+2}
    s_add_u32 s{S_RSL}, s{S_RSL}, 1
    s_cmp_eq_u32 s{S_RSL}, 3
    s_cselect_b32 s{S_BD}, {(-2*G1_BSLOT) & 0xffffffff}, s{S_BSC}
    s_cselect_b32 s{S_RSL}, 0, s{S_RSL}
    """)
    for r in range(4):
        bk(f"v_xor_b32 v{V_RA+r}, {G1_ASLOT}, v{V_RA+r}")
    for s_ in range(NB):
        bk(f"v_add_u32 v{V_RB+s_}, s{S_BD}, v{V_RB+s_}")
    if halo:
        for kk in range(2):
            bk(f"v_add_u32 v{V_RH+kk}, s{S_BD}, v{V_RH+kk}")
    BKL = "bkL" in OPTS
    a.raw(".p2align 6")
    a.label(P + "_loop")
    if STAMP: a(f"s_memtime {sr(S_SA)}")
    dl = dma_list()
    step = max(3, len(reads) // len(dl))
    order = "rdfirst" if "rdfirst" in OPTS else "mix"
    if order == "rdfirst":
        for r in reads: a(r)
        for d in dl: a(d)
    else:
        di = 0
        for n_, r in enumerate(reads):
            a(r)
            if (n_ % step) == 1 and di < len(dl):
                a(dl[di]); di += 1
        while di < len(dl):
            a(dl[di]); di += 1
    if BKL:
        for l_ in bk.L: a(l_)
    if STAMP: a(f"s_memtime {sr(100)}")
    if FUSE:
        a(f"""
        s_bitcmp1_b32 s{S_EV}, s{S_J}
        s_cbranch_scc1 {P}_event
        """)
    a(f"s_waitcnt vmcnt({0 if 'strictwait' in OPTS else nIss}) lgkmcnt(0)")
    a.label(P + "_afterwait")
    if STAMP:
        a(f"""
        s_lshl_b32 s{S_SI}, s{S_J}, 1
        s_mov_b32 m0, s{S_SI}
        s_nop 3
        v_writelane_b32 v{V_STAMP}, s{S_SA}, m0
        s_add_u32 s{S_SI}, s{S_SI}, 63
        s_and_b32 m0, s{S_SI}, 63
        s_nop 3
        v_writelane_b32 v{V_STAMP}, s{S_SB}, m0
        s_memtime {sr(S_SC)}
        s_cmp_eq_u32 s{S_J}, 8
        s_cbranch_scc0 {P}_nost
        s_waitcnt lgkmcnt(0)
        v_writelane_b32 v{V_STAMP}, s{S_SA}, 40
        v_writelane_b32 v{V_STAMP}, s100, 41
        v_writelane_b32 v{V_STAMP}, s{S_SC}, 42
        """)
        a.label(P + "_nost")
    a("s_barrier")
    if STAMP: a(f"s_memtime {sr(S_SB)}")
    a("s_setprio 1")
    mf = []
    for kk in range(2):
        for s_ in range(NB):
            for i in range(4):
                mf.append(f"v_mfma_f32_16x16x32_bf16 {vr(acc(s_,i))}, {vr(wf(s_,kk))}, {vr(xf(i,kk))}, {vr(acc(s_,i))}")
        if halo:
            for s_ in range(2):
                mf.append(f"v_mfma_f32_16x16x32_bf16 {vr(V_HACC+4*s_)}, {vr(wf(s_,kk))}, {vr(hf(kk))}, {vr(V_HACC+4*s_)}")
    interleave(a, mf, [] if BKL else bk.L, start=2, per=1)
    if FUSE:
        a(f"""
        s_cmp_lt_u32 s{S_J}, 2
        s_cbranch_scc0 {P}_nocs
        """)
        for kk in range(2):
            for ci, s_ in enumerate(cs_slots):
                a(f"v_mfma_f32_16x16x32_bf16 {vr(VCS+4*ci)}, {vr(wf(s_,kk))}, {vr(V_ONES)}, {vr(VCS+4*ci)}")
        a.label(P + "_nocs")
    a(f"""
    s_setprio 0
    s_add_u32 s{S_J}, s{S_J}, 1
    s_cmp_lt_u32 s{S_J}, 16
    """)
    if G == 0:
        a(f"""
        s_barrier
        s_cbranch_scc1 {P}_loop
        s_branch {P}_post
        """)
    else:
        a(f"""
        s_cbranch_scc0 {P}_post
        s_barrier
        s_branch {P}_loop
        """)
    if FUSE:
        a.label(P + "_event")
        a(f"""
        s_cmp_eq_u32 s{S_J}, 15
        s_cbranch_scc0 {P}_ev2
        """)
        a(f"""
        s_mov_b32 s{SRD_ST}, s{S_WOP}
        s_mov_b32 s{SRD_ST+1}, s{S_WOP+1}
        s_mov_b32 s{SRD_ST+2}, {1024*2048}
        s_mov_b32 s{SRD_DBG}, s{S_W2P}
        s_mov_b32 s{SRD_DBG+1}, s{S_W2P+1}
        s_mov_b32 s{SRD_DBG+2}, {3584*2048}
        s_mov_b32 s{SRD_ST+3}, 0x20000
        s_mov_b32 s{SRD_DBG+3}, 0x20000
        s_lshl_b32 s{S_TMP}, s{S_GW}, 2
        buffer_load_dwordx4 {vr(212)}, v{V_L16}, {sr(SRD_ST,4)}, s{S_GW} offen
        """)
        for i in range(4):
            a(f"buffer_load_dwordx4 {vr(212)}, v{V_L16}, {sr(SRD_DBG,4)}, s{S_TMP} offen offset:{i*1024}")
        a(f"""
        s_waitcnt vmcnt({nIss + 5}) lgkmcnt(0)
        s_branch {P}_afterwait
        """)
        a.label(P + "_ev2")
        if G == 0:
            a(f"""
            s_cmp_eq_u32 s{S_J}, 2
            s_cbranch_scc0 {P}_ev5
            """)
        a(f"""
        v_lshlrev_b32 v{T}, 24, v{V_TT}
        v_lshl_add_u32 v{T}, v{V_GG}, 4, v{T}
        s_lshl_b32 s{S_TMP2}, s{S_NTI}, 3
        s_add_u32 s{S_TMP2}, s{S_TMP2}, s{S_MT}
        s_lshl_b32 s{S_TMP2}, s{S_TMP2}, 10
        s_add_u32 s{S_TMP2}, s{S_TMP2}, 65536
        """)
        for ci, s_ in enumerate(cs_slots):
            a(f"""
            s_lshl_b32 s{S_TMP}, s{S_BLK+s_}, 6
            s_add_u32 s{S_TMP}, s{S_TMP}, s{S_TMP2}
            buffer_store_dwordx4 {vr(VCS+4*ci)}, v{T}, {sr(SRD_ST,4)}, s{S_TMP} offen sc0 sc1
            """)
        a(f"""
        s_waitcnt vmcnt({nIss + len(cs_slots)}) lgkmcnt(0)
        s_branch {P}_afterwait
        """)
        if G == 0:
            a.label(P + "_ev5")
            a(f"""
            s_cmp_eq_u32 s{S_J}, 14
            s_cbranch_scc1 {P}_ev14
            s_sub_u32 s{S_TMP}, s{S_MT}, 1
            s_max_i32 s{S_TMP}, s{S_TMP}, 0
            s_lshl_b32 s{S_TMP}, s{S_TMP}, 2
            s_lshl_b32 s{S_TMP2}, s{S_NTI}, 2
            s_add_u32 s{S_TMP2}, s{S_TMP2}, 32
            s_lshl_b32 s{S_TMP3}, s{S_MT}, 2
            v_mov_b32 v{T}, 0x1000
            v_writelane_b32 v{T}, s{S_TMP3}, 0
            v_writelane_b32 v{T}, s{S_TMP2}, 1
            s_cmp_lg_u32 s{S_WAVE}, 0
            s_cselect_b32 s{S_TMP2}, 0x1000, 0
            s_cmp_eq_u32 s{S_J}, 5
            s_cbranch_scc0 {P}_ev12
            v_mov_b32 v{T+1}, 1
            buffer_atomic_add v{T+1}, v{T}, {sr(SRD_DBG,4)}, s{S_TMP2} offen sc1
            s_waitcnt vmcnt({nIss + 1}) lgkmcnt(0)
            s_branch {P}_afterwait
            """)
            a.label(P + "_ev12")
            a(f"""
            v_writelane_b32 v{T}, s{S_TMP}, 2
            s_nop 1
            buffer_load_dword v{V_CHK}, v{T}, {sr(SRD_DBG,4)}, s{S_TMP2} offen sc0 sc1
            s_waitcnt vmcnt({nIss + 1}) lgkmcnt(0)
            s_branch {P}_afterwait
            """)
            a.label(P + "_ev14")
            a(f"""
            s_cmp_eq_u32 s{S_WQ}, 0
            s_cbranch_scc0 {P}_ev14b
            s_lshl_b32 s{S_TMP}, s{S_MT}, 11
            s_sub_u32 s{S_TMP}, s{S_TMP}, 128
            v_add_u32 v{T}, s{S_TMP}, v{V_L16}
            v_max_i32 v{T}, 0, v{T}
            s_add_u32 s{S_TMP}, s{S_TMP}, 1024
            v_add_u32 v{T+1}, s{S_TMP}, v{V_L16}
            s_mov_b32 m0, {G1_STAT}
            s_nop 0
            buffer_load_dwordx4 v{T}, {sr(SRD_ST,4)}, 0 offen sc0 sc1 lds
            s_mov_b32 m0, {G1_STAT + 1024}
            s_nop 0
            buffer_load_dwordx4 v{T+1}, {sr(SRD_ST,4)}, 0 offen sc0 sc1 lds
            buffer_load_dwordx4 v{T+1}, {sr(SRD_ST,4)}, 0 offen offset:1024 sc0 sc1 lds
            s_waitcnt vmcnt({nIss + 3}) lgkmcnt(0)
            s_branch {P}_afterwait
            """)
            a.label(P + "_ev14b")
            a(f"""
            s_mul_i32 s{S_TMP}, s{S_WQ}, 3072
            s_sub_u32 s{S_TMP}, s{S_TMP}, 3072
            s_add_u32 m0, s{S_TMP}, {G1_CSP}
            s_lshl_b32 s{S_TMP2}, s{S_NTI}, 13
            s_add_u32 s{S_TMP2}, s{S_TMP2}, s{S_TMP}
            s_add_u32 s{S_TMP2}, s{S_TMP2}, 65536
            buffer_load_dwordx4 v{V_L16}, {sr(SRD_ST,4)}, s{S_TMP2} offen sc0 sc1 lds
            buffer_load_dwordx4 v{V_L16}, {sr(SRD_ST,4)}, s{S_TMP2} offen offset:1024 sc0 sc1 lds
            s_cmp_eq_u32 s{S_WQ}, 3
            s_cselect_b32 s{S_TMP}, {LDS_DUMP}, m0
            s_mov_b32 m0, s{S_TMP}
            s_nop 0
            buffer_load_dwordx4 v{V_L16}, {sr(SRD_ST,4)}, s{S_TMP2} offen offset:2048 sc0 sc1 lds
            s_waitcnt vmcnt({nIss + 3}) lgkmcnt(0)
            s_branch {P}_afterwait
            """)
    a.label(P + "_post")
    if STAMP:
        a(f"""
        s_waitcnt lgkmcnt(0)
        v_writelane_b32 v{V_STAMP}, s{S_SB}, 31
        """)
    stamp_now(a, 34)
    if "nowarm2" not in OPTS and (not FUSE or "warmpost" in OPTS):
        a(f"""
        s_mov_b32 s{SRD_ST}, s{S_WOP}
        s_mov_b32 s{SRD_ST+1}, s{S_WOP+1}
        s_mov_b32 s{SRD_ST+2}, {1024*2048}
        s_mov_b32 s{SRD_DBG}, s{S_W2P}
        s_mov_b32 s{SRD_DBG+1}, s{S_W2P+1}
        s_mov_b32 s{SRD_DBG+2}, {3584*2048}
        s_mov_b32 s{SRD_ST+3}, 0x20000
        s_mov_b32 s{SRD_DBG+3}, 0x20000
        s_lshl_b32 s{S_TMP}, s{S_GW}, 2
        buffer_load_dwordx4 {vr(V_HF)}, v{V_L16}, {sr(SRD_ST,4)}, s{S_GW} offen
        """)
        for i in range(4):
            a(f"buffer_load_dwordx4 {vr(V_HF)}, v{V_L16}, {sr(SRD_DBG,4)}, s{S_TMP} offen offset:{i*1024}")
    if FUSE:
        if G == 0:
            a(f"""
            v_mov_b32 v{T}, 0
            v_writelane_b32 v{T}, 32, 0
            v_writelane_b32 v{T}, 8, 1
            v_writelane_b32 v{T}, 32, 2
            s_nop 1
            v_cmp_ne_u32 vcc, v{T}, v{V_CHK}
            s_nop 3
            s_and_b32 s{S_TMP}, vcc_lo, 7
            """)
            if "forceslow" in OPTS: a(f"s_mov_b32 s{S_TMP}, 1")
            a(f"""
            v_mov_b32 v{T}, {G1_VERD}
            v_mov_b32 v{T+1}, s{S_TMP}
            s_cmp_eq_u32 s{S_WAVE}, 0
            s_cbranch_scc0 {P}_red
            ds_write_b32 v{T}, v{T+1}
            """)
        a.label(P + "_red")
        if G == 0:
            a(f"""
            s_lshl_b32 s{S_TMP}, s{S_WQ}, 8
            v_lshl_add_u32 v{T}, v{V_LANE}, 2, s{S_TMP}  ; thread * 4
            v_add_u32 v{T+1}, {G1_CSP}, v{T}
            """)
            for m in range(8):
                a(f"ds_read_b32 v{V_XF+m}, v{T+1} offset:{1024*m}")
            a(f"""
            v_min_u32 v{T}, {4*NCOL - 4}, v{T}
            v_add_u32 v{T}, {G1_CS}, v{T}
            v_cmp_gt_u32 vcc, {4*NCOL + G1_CSP}, v{T+1}
            s_waitcnt lgkmcnt(0)
            """)
            for m in range(1, 8):
                a(f"v_add_f32 v{V_XF}, v{V_XF}, v{V_XF+m}")
            a(f"""
            s_and_saveexec_b64 {sr(S_TMP2)}, vcc
            ds_write_b32 v{T}, v{V_XF}
            s_mov_b64 exec, -1
            s_waitcnt lgkmcnt(0)
            """)
        a(f"""
        s_barrier
        v_mov_b32 v{T}, {G1_VERD}
        ds_read_b32 v{T+1}, v{T}
        s_waitcnt lgkmcnt(0)
        v_readfirstlane_b32 s{S_TMP}, v{T+1}
        s_nop 3
        s_cmp_eq_u32 s{S_TMP}, 0
        s_cbranch_scc1 {P}_fast
        s_barrier
        s_mov_b32 s{SRD_X+2}, {2048*2048}
        s_mov_b32 s{SRD_W+2}, {1024*WP}
        s_mov_b32 s{S_J}, s{S_WAVE}
        """)
        a.label(P + "_slow1")
        a(f"""
        s_lshl_b32 s{S_TMP}, s{S_MT}, 8
        s_add_u32 s{S_TMP}, s{S_TMP}, s{S_J}
        s_sub_u32 s{S_TMP}, s{S_TMP}, 16
        s_max_i32 s{S_TMP}, s{S_TMP}, 0
        s_lshl_b32 s{S_TMP}, s{S_TMP}, 11
        buffer_load_dwordx4 {vr(V_XF)}, v{V_L16}, {sr(SRD_X,4)}, s{S_TMP} offen
        buffer_load_dwordx4 {vr(V_XF+4)}, v{V_L16}, {sr(SRD_X,4)}, s{S_TMP} offen offset:1024
        s_waitcnt vmcnt(0)
        """)
        row_stats(a, V_XF, V_WF, V_WF + 16, V_WF + 20, V_WF + 21)
        a(f"""
        s_lshl_b32 s{S_TMP}, s{S_J}, 3
        s_add_u32 s{S_TMP}, s{S_TMP}, {G1_STAT}
        v_mov_b32 v{T}, s{S_TMP}
        ds_write_b64 v{T}, {vr(V_WF+16,2)}
        s_add_u32 s{S_J}, s{S_J}, 8
        s_cmp_lt_u32 s{S_J}, 272
        s_cbranch_scc1 {P}_slow1
        v_min_u32 v{T}, {CH-1}, v{V_LANE}
        """)
        if qkv:
            a(f"""
            v_cmp_le_u32 vcc, 12, v{T}
            s_nop 1
            v_cndmask_b32 v{T+1}, 0, 1, vcc              ; hh
            v_mul_u32_u24 v{T+2}, 12, v{T+1}
            v_sub_u32 v{T+2}, v{T}, v{T+2}
            v_lshrrev_b32 v{T+3}, 2, v{T+2}              ; part
            v_and_b32 v{T+2}, 3, v{T+2}
            v_lshlrev_b32 v{T+3}, 11, v{T+3}
            v_lshl_add_u32 v{T+3}, v{T+1}, 6, v{T+3}
            v_lshl_add_u32 v{T+3}, v{T+2}, 4, v{T+3}
            s_lshl_b32 s{S_TMP}, s{S_JT}, 7
            v_add_u32 v{T+3}, s{S_TMP}, v{T+3}
            """)
        else:
            a(f"""
            s_mul_i32 s{S_TMP}, s{S_JT}, 448
            v_lshl_add_u32 v{T+3}, v{T}, 4, s{S_TMP}
            """)
        for r in range(8):
            a(f"v_mov_b32 v{V_WF+r}, 0")
        a(f"""
        s_mul_i32 s{S_TMP}, s{S_WAVE}, {128*WP}
        s_mov_b32 s{S_J}, 0
        """)
        a.label(P + "_slow2")
        a(f"""
        buffer_load_dwordx4 {vr(V_XF)}, v{T+3}, {sr(SRD_W,4)}, s{S_TMP} offen
        s_add_u32 s{S_TMP}, s{S_TMP}, {WP}
        s_add_u32 s{S_J}, s{S_J}, 1
        s_waitcnt vmcnt(0)
        """)
        for r in range(4):
            a(f"""
            v_lshlrev_b32 v{V_XF+4}, 16, v{V_XF+r}
            v_and_b32 v{V_XF+5}, 0xffff0000, v{V_XF+r}
            v_pk_add_f32 {vr(V_WF+2*r,2)}, {vr(V_WF+2*r,2)}, {vr(V_XF+4,2)}
            """)
        a(f"""
        s_cmp_lt_u32 s{S_J}, 128
        s_cbranch_scc1 {P}_slow2
        s_lshl_b32 s{S_TMP}, s{S_WAVE}, 10
        s_add_u32 s{S_TMP}, s{S_TMP}, {G1_CSP}
        v_lshl_add_u32 v{T}, v{T}, 5, s{S_TMP}
        ds_write_b128 v{T}, {vr(V_WF)}
        ds_write_b128 v{T}, {vr(V_WF+4)} offset:16
        v_mov_b32 v{T}, {G1_VERD}
        v_mov_b32 v{T+1}, 0
        ds_write_b32 v{T}, v{T+1}
        s_waitcnt lgkmcnt(0)
        s_barrier
        s_branch {P}_red
        """)
        a.label(P + "_fast")
    if "slabwarm" in OPTS:
        a(f"""
        s_add_u32 s{SRD_WW}, s{S_WS}, {64 << 20}
        s_addc_u32 s{SRD_WW+1}, s{S_WS+1}, 0
        s_and_b32 s{SRD_WW+1}, s{SRD_WW+1}, 0xffff
        s_mov_b32 s{SRD_WW+2}, {16 << 20}
        s_and_b32 s{S_TMP}, s2, 3
        s_lshr_b32 s{S_TMP2}, s{S_WAVE}, 1
        s_cmp_eq_u32 s{S_TMP}, s{S_TMP2}
        s_cselect_b32 s{SRD_WW+2}, 0, s{SRD_WW+2}
        s_lshl_b32 s{S_TMP}, s{S_GW}, 3
        s_add_u32 s{S_TMP2}, s{S_TMP}, 4096
        """)
        for i in range(8):
            a(f"buffer_load_dwordx4 {vr(V_WD)}, v{V_L16}, {sr(SRD_WW,4)}, s{S_TMP if i < 4 else S_TMP2} offen offset:{(i%4)*1024}")
    stamp_now(a, 35)
    for i in range(4):
        a(f"""
        s_lshl_b32 s{S_TMP}, s{S_MW}, 6
        s_lshl_b32 s{S_TMP2}, s{S_NW}, 5
        s_xor_b32 s{S_TMP2}, s{S_TMP2}, {16*i}
        s_add_u32 s{S_TMP}, s{S_TMP}, s{S_TMP2}
        s_add_u32 s{S_TB+i}, s{S_TMP}, {128*G}
        """)
    V_ST = V_XF; V_CSV = V_WF
    if FUSE:
        for i in range(4):
            a(f"""
            s_add_u32 s{S_TMP}, s{S_TB+i}, {16 + G1_STAT//8}
            v_add_u32 v{T+4}, s{S_TMP}, v{V_TT}
            v_lshlrev_b32 v{T+4}, 3, v{T+4}
            ds_read_b64 {vr(V_ST+2*i,2)}, v{T+4}
            """)
        if halo:
            a(f"""
            v_lshlrev_b32 v{T+4}, 3, v{V_TT}
            v_add_u32 v{T+4}, {G1_STAT}, v{T+4}
            ds_read_b64 {vr(V_ST+8,2)}, v{T+4}
            """)
        for s_ in range(NB):
            a(f"""
            s_lshl_b32 s{S_TMP}, s{S_BLK+s_}, 6
            s_add_u32 s{S_TMP}, s{S_TMP}, {G1_CS}
            v_lshl_add_u32 v{T+4}, v{V_GG}, 4, s{S_TMP}
            ds_read_b128 {vr(V_CSV+4*s_)}, v{T+4}
            """)
        a("s_waitcnt lgkmcnt(0)")
    def fixup(ab, s, st, o, relu):
        c = V_CSV + 4 * s
        if FUSE:
            a(f"""
            v_pk_fma_f32 {vr(ab,2)}, {vr(c,2)}, {vr(st,2)}, {vr(ab,2)} op_sel_hi:[1,0,1] neg_lo:[0,1,0] neg_hi:[0,1,0]
            v_pk_fma_f32 {vr(ab+2,2)}, {vr(c+2,2)}, {vr(st,2)}, {vr(ab+2,2)} op_sel_hi:[1,0,1] neg_lo:[0,1,0] neg_hi:[0,1,0]
            v_pk_mul_f32 {vr(ab,2)}, {vr(ab,2)}, {vr(st,2)} op_sel:[0,1] op_sel_hi:[1,1]
            v_pk_mul_f32 {vr(ab+2,2)}, {vr(ab+2,2)}, {vr(st,2)} op_sel:[0,1] op_sel_hi:[1,1]
            """)
        a(f"""
        v_cvt_pk_bf16_f32 v{o}, v{ab}, v{ab+1}
        v_cvt_pk_bf16_f32 v{o+1}, v{ab+2}, v{ab+3}
        """)
        if relu:
            a(f"""
            v_pk_max_i16 v{o}, v{o}, 0
            v_pk_max_i16 v{o+1}, v{o+1}, 0
            """)
    V_SIG = T + 8
    a(f"""
    v_and_b32 v{T}, 1, v{V_GG}
    v_lshrrev_b32 v{T+1}, 1, v{V_GG}
    v_lshl_or_b32 v{V_SIG}, v{T}, 1, v{T+1}
    """)
    if not qkv:
        V_PA = T + 9; V_SA = T + 10
        a(f"""
        v_lshl_add_u32 v{V_PA}, v{V_SIG}, 4, v{V_TT}
        v_lshlrev_b32 v{V_PA}, 4, v{V_PA}            ; (sigma*16 + t)*16
        s_lshl_b32 s{S_TMP}, s{S_NW}, 1
        v_add_u32 v{T+1}, s{S_TMP}, v{T+1}
        v_lshl_add_u32 v{V_SA}, v{T+1}, 4, v{V_TT}
        v_lshlrev_b32 v{V_SA}, 4, v{V_SA}
        v_lshl_add_u32 v{V_SA}, v{T}, 3, v{V_SA}
        """)
        for i in range(4):
            a(f"""
            s_lshr_b32 s{S_TMP}, s{S_TB+i}, 4
            s_lshl_b32 s{S_TMP2}, s{S_MT}, 4
            s_add_u32 s{S_TMP}, s{S_TMP}, s{S_TMP2}
            s_mul_i32 s{S_TB+i}, s{S_TMP}, {MBLK_PITCH}
            """)
        a(f"""
        s_mul_i32 s{S_TMP2}, s{S_JT}, 7
        s_add_u32 s{S_TMP2}, s{S_TMP2}, 32
        """)
        for ps in range(4):
            a(f"""
            s_lshr_b32 s{S_TMP}, s{S_BLK+2*ps}, 1
            s_add_u32 s{S_TMP}, s{S_TMP}, s{S_TMP2}
            s_lshl_b32 s{S_PO+ps}, s{S_TMP}, 10
            """)
        ob = [V_XF + 16, V_XF + 20, V_XF + 24, V_XF + 28]
        n = 0
        for i in range(4):
            st = V_ST + 2 * i
            for ps in range(3):
                o = ob[n % 4]; n += 1
                fixup(acc(2*ps, i), 2*ps, st, o, True)
                fixup(acc(2*ps+1, i), 2*ps+1, st, o+2, True)
                a(f"""
                s_add_u32 s{S_TMP}, s{S_TB+i}, s{S_PO+ps}
                s_nop 0
                v_permlane16_swap_b32 v{o}, v{o+2}
                v_permlane16_swap_b32 v{o+1}, v{o+3}
                s_nop 1
                buffer_store_dwordx4 {vr(o)}, v{V_PA}, {sr(SRD_O,4)}, s{S_TMP} offen {STH}
                """)
            o = ob[n % 4]; n += 1
            fixup(acc(6, i), 6, st, o, True)
            a(f"""
            s_add_u32 s{S_TMP}, s{S_TB+i}, s{S_PO+3}
            s_nop 1
            buffer_store_dwordx2 {vr(o,2)}, v{V_SA}, {sr(SRD_O,4)}, s{S_TMP} offen {STH}
            """)
        stamp_now(a, 36); stamp_now(a, 51, True)
        stamp_dump(a, S_WS, S_WAVE, 32 << 20)
        a("s_endpgm")
        return
    V_WA = T + 9
    a(f"""
    v_mul_u32_u24 v{V_WA}, {AT_PITCH}, v{V_TT}
    v_lshl_add_u32 v{V_WA}, v{V_GG}, 3, v{V_WA}      ; t*P + g*8
    """)
    ob = [V_XF + 16, V_XF + 18, V_XF + 20, V_XF + 22, V_XF + 24, V_XF + 26, V_XF + 28, V_XF + 30]
    n = 0
    for i in range(4):
        a(f"""
        s_add_u32 s{S_TMP}, s{S_TB+i}, 16
        s_mul_i32 s{S_TMP3}, s{S_TMP}, {AT_PITCH}
        """)
        for s in range(6):
            o = ob[n % 8]; n += 1
            fixup(acc(s, i), s, V_ST + 2 * i, o, False)
            a(f"""
            s_lshl_b32 s{S_TMP}, s{S_BLK+s}, 5
            s_add_u32 s{S_TMP}, s{S_TMP}, s{S_TMP3}
            v_add_u32 v{T}, s{S_TMP}, v{V_WA}
            ds_write_b64 v{T}, {vr(o,2)}
            """)
            if "slowepi" in OPTS: a("s_waitcnt lgkmcnt(0)")
    if halo:
        for s in range(2):
            o = ob[n % 8]; n += 1
            fixup(V_HACC + 4 * s, s, V_ST + 8, o, False)
            a(f"""
            s_lshl_b32 s{S_TMP}, s{S_BLK+s}, 5
            v_add_u32 v{T}, s{S_TMP}, v{V_WA}
            ds_write_b64 v{T}, {vr(o,2)}
            """)
    a(f"""
    s_waitcnt lgkmcnt(0)
    s_barrier
    """)
    stamp_now(a, 36)
    a("s_branch g1_attn")

def g1_attn(a):
    T = V_T
    V_SIG = T + 8
    a.label("g1_attn")
    VQ = 0; VK = 1; VV = 3
    VE = 5; VO = 6
    R = 8
    a(f"""
    s_lshl_b32 s{S_TMP}, s{S_WAVE}, 5                ; 32 w
    v_lshlrev_b32 v{T}, 1, v{V_TT}                   ; 2n
    v_add_u32 v{T+1}, s{S_TMP}, v{T}                 ; 32w + 2n
    v_add_u32 v{T+2}, 16, v{T+1}
    v_mul_u32_u24 v{T+2}, {AT_PITCH}, v{T+2}
    v_lshl_add_u32 v{VQ}, v{V_GG}, 4, v{T+2}         ; + g*16
    v_add_u32 v{VK+1}, 64, v{VQ}
    v_add_u32 v{T+2}, -16, v{T+1}                    ; rho_k(kb=0)
    v_max_i32 v{T+2}, 0, v{T+2}
    v_mul_u32_u24 v{T+2}, {AT_PITCH}, v{T+2}
    v_lshl_add_u32 v{T+2}, v{V_GG}, 4, v{T+2}
    v_add_u32 v{VK}, 64, v{T+2}
    v_lshrrev_b32 v{T}, 2, v{V_TT}
    v_lshl_add_u32 v{T}, v{V_GG}, 2, v{T}            ; a
    v_lshlrev_b32 v{T}, 1, v{T}
    v_add_u32 v{T}, s{S_TMP}, v{T}                   ; 32w + 2a
    v_and_b32 v{T+3}, 3, v{V_LANE}
    v_lshlrev_b32 v{T+3}, 3, v{T+3}
    v_add_u32 v{T+3}, 128, v{T+3}                    ; v part + c*8
    v_add_u32 v{T+2}, 16, v{T}
    v_mul_u32_u24 v{T+2}, {AT_PITCH}, v{T+2}
    v_add_u32 v{VV+1}, v{T+2}, v{T+3}
    v_add_u32 v{T+2}, -16, v{T}
    v_max_i32 v{T+2}, 0, v{T+2}
    v_mul_u32_u24 v{T+2}, {AT_PITCH}, v{T+2}
    v_add_u32 v{VV}, v{T+2}, v{T+3}
    v_lshlrev_b32 v{T}, 2, v{V_GG}
    v_sub_u32 v{VE}, v{V_TT}, v{T}
    """)
    for kb in range(2):
        for i in range(4):
            a(f"""
            v_add_u32 v{T}, {(16*(1-kb) - i)}, v{VE}
            v_cmp_ge_u32 {sr(S_MASK + 2*(4*kb+i))}, 7, v{T}
            """)
    a(f"""
    s_or_b32 s{S_TMP}, s{S_MT}, s{S_WAVE}
    s_cmp_eq_u32 s{S_TMP}, 0
    s_cbranch_scc0 g1_attn_m
    """)
    for i in range(4):
        a(f"s_mov_b64 {sr(S_MASK + 2*i)}, 0")
    a.label("g1_attn_m")
    a(f"""
    v_and_b32 v{T}, 7, v{V_TT}
    v_lshlrev_b32 v{T}, 1, v{T}
    v_lshl_add_u32 v{T}, v{V_SIG}, 4, v{T}
    v_lshlrev_b32 v{T}, 4, v{T}
    v_lshrrev_b32 v{T+1}, 3, v{V_TT}
    s_mov_b32 s{S_TMP}, {MBLK_PITCH}
    v_mul_lo_u32 v{T+1}, v{T+1}, s{S_TMP}
    v_add_u32 v{VO}, v{T}, v{T+1}
    s_lshl_b32 s{S_TMP}, s{S_MT}, 4
    s_lshl_b32 s{S_TMP2}, s{S_WAVE}, 1
    s_add_u32 s{S_TMP}, s{S_TMP}, s{S_TMP2}
    s_mul_i32 s{S_TMP}, s{S_TMP}, {MBLK_PITCH}
    s_lshl_b32 s{S_TMP2}, s{S_JT}, 11
    s_add_u32 s{S_TMP3}, s{S_TMP}, s{S_TMP2}
    v_mov_b32 v{T+10}, 0xff800000                    ; -inf
    v_mov_b32 v{T+4}, 0x3e3504f3
    v_mov_b32 v{T+5}, 0x3e3504f3
    v_mov_b32 v{T+6}, 0x3fb8aa3b
    v_mov_b32 v{T+7}, 0x3fb8aa3b
    """)
    NEG = T + 10; CSC = T + 4; CL2 = T + 6
    units = [(hh, p) for hh in range(2) for p in range(2)]
    UR = 32
    for u, (hh, p) in enumerate(units):
        b = R + u * UR
        off = p * AT_PITCH + hh * 192
        a(f"""
        ds_read_b128 {vr(b)}, v{VQ} offset:{off}
        ds_read_b128 {vr(b+4)}, v{VK} offset:{off}
        ds_read_b128 {vr(b+8)}, v{VK+1} offset:{off}
        """)
        for db in range(2):
            for kb in range(2):
                a(f"ds_read_b64_tr_b16 {vr(b+12+4*db+2*kb,2)}, v{VV+kb} offset:{off+32*db}")
    a("s_waitcnt lgkmcnt(0)")
    for u in range(4):
        b = R + u * UR
        a(f"""
        v_mfma_f32_16x16x32_bf16 {vr(b+20)}, {vr(b+4)}, {vr(b)}, 0
        v_mfma_f32_16x16x32_bf16 {vr(b+24)}, {vr(b+8)}, {vr(b)}, 0
        """)
    a("s_nop 7")
    for u, (hh, p) in enumerate(units):
        b = R + u * UR
        z = b + 20
        t0 = b + 28; t1 = b + 29
        for i in range(0, 8, 2):
            a(f"""
            v_cvt_pk_bf16_f32 v{t0}, v{z+i}, v{z+i+1}
            v_lshlrev_b32 v{z+i}, 16, v{t0}
            v_and_b32 v{z+i+1}, 0xffff0000, v{t0}
            v_pk_mul_f32 {vr(z+i,2)}, {vr(z+i,2)}, {vr(CSC,2)}
            v_cvt_pk_bf16_f32 v{t0}, v{z+i}, v{z+i+1}
            v_lshlrev_b32 v{z+i}, 16, v{t0}
            v_and_b32 v{z+i+1}, 0xffff0000, v{t0}
            v_cndmask_b32 v{z+i}, v{NEG}, v{z+i}, {sr(S_MASK+2*i)}
            v_cndmask_b32 v{z+i+1}, v{NEG}, v{z+i+1}, {sr(S_MASK+2*i+2)}
            """)
        a(f"""
        v_max3_f32 v{t0}, v{z}, v{z+1}, v{z+2}
        v_max3_f32 v{t0}, v{t0}, v{z+3}, v{z+4}
        v_max3_f32 v{t0}, v{t0}, v{z+5}, v{z+6}
        v_max_f32 v{t0}, v{t0}, v{z+7}
        """)
        xlane_max(a, t0, t1)
        for i in range(0, 8, 2):
            a(f"""
            v_pk_add_f32 {vr(z+i,2)}, {vr(z+i,2)}, {vr(t0,2)} op_sel_hi:[1,0] neg_lo:[0,1] neg_hi:[0,1]
            v_pk_mul_f32 {vr(z+i,2)}, {vr(z+i,2)}, {vr(CL2,2)}
            """)
        for i in range(8):
            a(f"v_exp_f32 v{z+i}, v{z+i}")
        a(f"""
        s_nop 0
        v_pk_add_f32 {vr(t0,2)}, {vr(z,2)}, {vr(z+2,2)}
        v_pk_add_f32 {vr(t0+2,2)}, {vr(z+4,2)}, {vr(z+6,2)}
        v_pk_add_f32 {vr(t0,2)}, {vr(t0,2)}, {vr(t0+2,2)}
        v_add_f32 v{t0}, v{t0}, v{t1}
        """)
        xlane_sum(a, t0, t1)
        a(f"""
        v_rcp_f32 v{t0}, v{t0}
        s_nop 0
        """)
        for i in range(0, 8, 2):
            a(f"v_pk_mul_f32 {vr(z+i,2)}, {vr(z+i,2)}, {vr(t0,2)} op_sel_hi:[1,0]")
        for i in range(4):
            a(f"v_cvt_pk_bf16_f32 v{b+i}, v{z+2*i}, v{z+2*i+1}")
        a(f"""
        s_nop 1
        v_mfma_f32_16x16x32_bf16 {vr(b+4)}, {vr(b+12)}, {vr(b)}, 0
        v_mfma_f32_16x16x32_bf16 {vr(b+8)}, {vr(b+16)}, {vr(b)}, 0
        """)
    a("s_nop 7")
    for u, (hh, p) in enumerate(units):
        b = R + u * UR
        o = b + 20
        a(f"""
        v_cvt_pk_bf16_f32 v{o}, v{b+4}, v{b+5}
        v_cvt_pk_bf16_f32 v{o+1}, v{b+6}, v{b+7}
        v_cvt_pk_bf16_f32 v{o+2}, v{b+8}, v{b+9}
        v_cvt_pk_bf16_f32 v{o+3}, v{b+10}, v{b+11}
        s_nop 1
        v_permlane16_swap_b32 v{o}, v{o+2}
        v_permlane16_swap_b32 v{o+1}, v{o+3}
        s_nop 1
        buffer_store_dwordx4 {vr(o)}, v{VO}, {sr(SRD_O,4)}, s{S_TMP3} offen offset:{p*16 + hh*1024} {STF}
        """)
    stamp_now(a, 37); stamp_now(a, 51, True)
    stamp_dump(a, S_WS, S_WAVE, 32 << 20)
    a("s_endpgm")

def gen_g1(a):
    MAP4 = f"""
    s_and_b32 s{S_MT}, s{S_TMP}, 1
    s_lshl_b32 s{S_MT}, s{S_MT}, 2
    s_and_b32 s{S_TMP3}, s{S_TMP2}, 3
    s_add_u32 s{S_MT}, s{S_MT}, s{S_TMP3}     ; mt
    s_lshr_b32 s{S_TMP2}, s{S_TMP2}, 2        ; i8
    s_lshr_b32 s{S_TMP}, s{S_TMP}, 1          ; ng
    s_lshl_b32 s{S_JT}, s{S_TMP}, 2
    s_and_b32 s{S_TMP3}, s{S_TMP2}, 3
    s_add_u32 s{S_JT}, s{S_JT}, s{S_TMP3}     ; jt
    s_lshr_b32 s{S_TMP2}, s{S_TMP2}, 2        ; type
"""
    MAP8 = f"""
    s_and_b32 s{S_MT}, s{S_TMP2}, 7           ; mt
    s_lshr_b32 s{S_TMP2}, s{S_TMP2}, 3        ; i4
    s_lshl_b32 s{S_JT}, s{S_TMP}, 1
    s_and_b32 s{S_TMP3}, s{S_TMP2}, 1
    s_add_u32 s{S_JT}, s{S_JT}, s{S_TMP3}     ; jt
    s_lshr_b32 s{S_TMP2}, s{S_TMP2}, 1        ; type
"""
    a.raw("""
.globl g1_kernel
.p2align 8
.type g1_kernel,@function
g1_kernel:""")
    a(f"""
    s_cmp_ge_u32 s2, 256
    s_cbranch_scc1 g1_exit
    s_load_dwordx4 s[{S_X}:{S_X+3}], s[0:1], 0     ; x, wqkv
    s_load_dwordx2 s[{S_W1}:{S_W1+1}], s[0:1], 32
    s_load_dwordx2 s[{S_WS}:{S_WS+1}], s[0:1], 64
    s_load_dwordx2 s[{S_WOP}:{S_WOP+1}], s[0:1], 16
    s_load_dwordx2 s[{S_DBGP}:{S_DBGP+1}], s[0:1], 56
    s_load_dwordx2 s[{S_W2P}:{S_W2P+1}], s[0:1], 40
    v_and_b32 v{V_LANE}, 63, v0
    v_lshrrev_b32 v{V_T}, 6, v0
    v_and_b32 v{V_TT}, 15, v0
    v_readfirstlane_b32 s{S_WAVE}, v{V_T}
    v_bfe_u32 v{V_GG}, v0, 4, 2
    s_nop 2
    s_cmp_lg_u32 s{S_WAVE}, 7
    s_cbranch_scc1 g1_nopf
    """)
    if "nocodepf" not in OPTS:
        code_prefetch(a, V_T + 2, V_LANE, S_PC1, "g1_kernel", "g1_end", 24576, 255)
    a.label("g1_nopf")
    a(f"""
    s_and_b32 s{S_TMP}, s2, 7                 ; xcd
    s_lshr_b32 s{S_TMP2}, s2, 3               ; idx
    """)
    a(MAP8 if "map8" in OPTS else MAP4)
    a(f"""
    s_and_b32 s{S_WQ}, s{S_WAVE}, 3
    s_and_b32 s{S_NW}, s{S_WAVE}, 1
    s_bfe_u32 s{S_MW}, s{S_WAVE}, 0x10001
    s_lshr_b32 s{S_TMP3}, s{S_WAVE}, 2        ; G
    s_lshl_b32 s80, s2, 3
    s_add_u32 s80, s80, s{S_WAVE}
    v_lshlrev_b32 v{V_L16}, 4, v{V_LANE}
    s_waitcnt lgkmcnt(0)
    """)
    if FUSE and "bulk" in OPTS:
        a(f"""
        s_mov_b32 s64, s{S_W}
        s_and_b32 s65, s{S_W+1}, 0xffff
        s_mov_b32 s66, {1024*6144}
        s_mov_b32 s67, 0x20000
        s_mov_b32 s72, s{S_W1}
        s_and_b32 s73, s{S_W1+1}, 0xffff
        s_mov_b32 s74, {1024*7168}
        s_mov_b32 s75, 0x20000
        s_mul_i32 s81, s80, 3072
        s_lshl_b32 s80, s80, 12
        """)
        for i in range(3):
            a(f"buffer_load_dwordx4 {vr(V_HF)}, v{V_L16}, s[64:67], s81 offen offset:{1024*i}")
        for i in range(4):
            a(f"buffer_load_dwordx4 {vr(V_HF)}, v{V_L16}, s[72:75], s80 offen offset:{1024*i}")
    a(f"""
    s_add_u32 s{SRD_X}, s{S_X if FUSE else S_WS}, {0 if FUSE else XN_OFF}
    s_addc_u32 s{SRD_X+1}, s{(S_X if FUSE else S_WS)+1}, 0
    s_and_b32 s{SRD_X+1}, s{SRD_X+1}, 0xffff
    s_mov_b32 s{SRD_X+2}, {2048*2048}
    s_mov_b32 s{SRD_X+3}, 0x20000
    s_mov_b32 s{SRD_XA}, s{SRD_X}
    s_mov_b32 s{SRD_XA+1}, s{SRD_X+1}
    s_mov_b32 s{SRD_XA+2}, {2048*2048}
    s_mov_b32 s{SRD_XA+3}, 0x20000
    s_mov_b32 s{SRD_O}, s{S_WS}
    s_and_b32 s{SRD_O+1}, s{S_WS+1}, 0xffff
    s_mov_b32 s{SRD_O+2}, {A2_BYTES}
    s_mov_b32 s{SRD_O+3}, 0x20000
    s_lshl_b32 s{S_TMP2}, s{S_TMP2}, 1
    s_add_u32 s{S_TMP2}, s{S_TMP2}, s{S_TMP3}
    """)
    if FUSE:
        a(f"""
        s_cmp_lg_u32 s2, 255
        s_cbranch_scc1 g1_noz
        s_add_u32 s64, s{S_WS}, {30 << 20}
        s_addc_u32 s65, s{S_WS+1}, 0
        s_and_b32 s65, s65, 0xffff
        s_mov_b32 s66, 8192
        s_mov_b32 s67, 0x20000
        v_lshlrev_b32 v{V_T}, 4, v0
        v_mov_b32 v4, 0
        v_mov_b32 v5, 0
        v_mov_b32 v6, 0
        v_mov_b32 v7, 0
        buffer_store_dwordx4 v[4:7], v{V_T}, s[64:67], 0 offen
        """)
        a.label("g1_noz")
    a(f"""
    s_cmp_eq_u32 s{S_TMP2}, 0
    s_cbranch_scc1 g1_00
    s_cmp_eq_u32 s{S_TMP2}, 1
    s_cbranch_scc1 g1_01
    s_cmp_eq_u32 s{S_TMP2}, 2
    s_cbranch_scc1 g1_10
    s_branch g1_11
    """)
    a.label("g1_exit")
    a("s_endpgm")
    for typ in range(2):
        for G in range(2):
            g1_path(a, typ, G)
    g1_attn(a)
    a.label("g1_end")
    a("s_endpgm")

def gen_k0(a):
    a.raw("""
.globl k0_kernel
.p2align 8
.type k0_kernel,@function
k0_kernel:""")
    DPP = "row_mask:0xf bank_mask:0xf"
    def reduce64(v, t):
        a(f"""
        s_nop 1
        v_add_f32_dpp v{t}, v{v}, v{v} quad_perm:[1,0,3,2] {DPP}
        s_nop 1
        v_add_f32_dpp v{v}, v{t}, v{t} quad_perm:[2,3,0,1] {DPP}
        s_nop 1
        v_add_f32_dpp v{t}, v{v}, v{v} row_half_mirror {DPP}
        s_nop 1
        v_add_f32_dpp v{v}, v{t}, v{t} row_mirror {DPP}
        """)
        xlane_sum(a, v, t)
    a(f"""
    s_cmp_ge_u32 s2, 256
    s_cbranch_scc1 k0_exit
    s_load_dwordx4 s[4:7], s[0:1], 0          ; x, wqkv
    s_load_dwordx2 s[8:9], s[0:1], 32         ; w1
    s_load_dwordx2 s[10:11], s[0:1], 64       ; ws
    v_lshrrev_b32 v1, 6, v0
    v_and_b32 v0, 63, v0
    v_lshlrev_b32 v2, 4, v0                   ; lane*16
    v_readfirstlane_b32 s3, v1
    s_lshl_b32 s28, s2, 3
    s_nop 2
    s_add_u32 s28, s28, s3
    s_lshl_b32 s29, s28, 11
    s_waitcnt lgkmcnt(0)
    s_mov_b32 s12, s4
    s_and_b32 s13, s5, 0xffff
    s_mov_b32 s14, {2048*2048}
    s_mov_b32 s15, 0x20000
    buffer_load_dwordx4 v[4:7], v2, s[12:15], s29 offen
    buffer_load_dwordx4 v[8:11], v2, s[12:15], s29 offen offset:1024
    s_mov_b32 s16, s6
    s_and_b32 s17, s7, 0xffff
    s_mov_b32 s18, {1024*6144}
    s_mov_b32 s19, 0x20000
    s_mov_b32 s20, s8
    s_and_b32 s21, s9, 0xffff
    s_mov_b32 s22, {1024*7168}
    s_mov_b32 s23, 0x20000
    s_add_u32 s24, s10, {XN_OFF}
    s_addc_u32 s25, s11, 0
    s_and_b32 s25, s25, 0xffff
    s_mov_b32 s26, {2048*2048}
    s_mov_b32 s27, 0x20000
    s_cmp_lg_u32 s2, 0
    s_cbranch_scc1 k0_noz
    s_add_u32 s32, s10, {30 << 20}
    s_addc_u32 s33, s11, 0
    s_and_b32 s33, s33, 0xffff
    s_mov_b32 s34, 8192
    s_mov_b32 s35, 0x20000
    s_lshl_b32 s30, s3, 10
    v_mov_b32 v60, 0
    v_mov_b32 v61, 0
    v_mov_b32 v62, 0
    v_mov_b32 v63, 0
    buffer_store_dwordx4 v[60:63], v2, s[32:35], s30 offen
    s_waitcnt vmcnt(0)
k0_noz:
    s_mul_i32 s30, s28, 3072
    s_lshl_b32 s31, s28, 12
    """)
    nw = 0
    if "nowarm1" not in OPTS:
        a(f"""
        s_mov_b32 s18, {256*6144}
        s_mov_b32 s22, {256*7168}
        s_lshl_b32 s30, s28, 10
        buffer_load_dwordx4 v[32:35], v2, s[16:19], s30 offen
        buffer_load_dwordx4 v[36:39], v2, s[20:23], s30 offen
        """)
        nw = 2
    a(f"s_waitcnt vmcnt({nw})")
    for r in range(8):
        a(f"""
        v_lshlrev_b32 v{12+2*r}, 16, v{4+r}
        v_and_b32 v{13+2*r}, 0xffff0000, v{4+r}
        """)
    a("v_add_f32 v28, v12, v13")
    for r in range(14, 28):
        a(f"v_add_f32 v28, v28, v{r}")
    reduce64(28, 29)
    a("v_mul_f32 v28, 0x3a800000, v28")
    a("""
    v_sub_f32 v30, v12, v28
    v_mul_f32 v31, v30, v30
    """)
    for r in range(13, 28):
        a(f"""
        v_sub_f32 v30, v{r}, v28
        v_fmac_f32 v31, v30, v30
        """)
    reduce64(31, 29)
    a(f"""
    v_mul_f32 v31, 0x3a800000, v31            ; var
    v_cvt_pk_bf16_f32 v29, v28, v31
    v_lshlrev_b32 v28, 16, v29                ; m_b
    v_and_b32 v31, 0xffff0000, v29            ; v_b
    v_add_f32 v31, 0x3727c5ac, v31
    v_cvt_pk_bf16_f32 v31, v31, v31
    v_and_b32 v31, 0xffff0000, v31
    v_sqrt_f32 v31, v31
    s_nop 0
    v_cvt_pk_bf16_f32 v31, v31, v31
    v_and_b32 v31, 0xffff0000, v31
    v_rcp_f32 v31, v31
    s_nop 0
    """)
    for r in range(8):
        a(f"""
        v_sub_f32 v{12+2*r}, v{12+2*r}, v28
        v_sub_f32 v{13+2*r}, v{13+2*r}, v28
        v_cvt_pk_bf16_f32 v29, v{12+2*r}, v{13+2*r}
        v_lshlrev_b32 v{12+2*r}, 16, v29
        v_and_b32 v{13+2*r}, 0xffff0000, v29
        v_mul_f32 v{12+2*r}, v{12+2*r}, v31
        v_mul_f32 v{13+2*r}, v{13+2*r}, v31
        v_cvt_pk_bf16_f32 v{4+r}, v{12+2*r}, v{13+2*r}
        """)
    a("""
    buffer_store_dwordx4 v[4:7], v2, s[24:27], s29 offen
    buffer_store_dwordx4 v[8:11], v2, s[24:27], s29 offen offset:1024
    """)
    a.label("k0_exit")
    a("s_endpgm")

G2_NB = 6
G2_LDS = G2_NB * 16384
def code_prefetch(a, vtmp, vlane, stmp, start_label, end_label, nbytes, vdst):
    a(f"""
    s_getpc_b64 {sr(stmp)}
    """)
    a.label(start_label + "_pc")
    a(f"""
    s_add_u32 s{stmp}, s{stmp}, {start_label}-{start_label}_pc
    s_addc_u32 s{stmp+1}, s{stmp+1}, -1
    v_lshlrev_b32 v{vtmp}, 7, v{vlane}
    """)
    for i in range((nbytes + 8191) // 8192):
        if i: a(f"v_add_u32 v{vtmp}, 0x2000, v{vtmp}")
        a(f"""
        v_min_u32 v{vtmp+1}, {end_label}-{start_label}-4, v{vtmp}
        global_load_dword v{vdst}, v{vtmp+1}, {sr(stmp)}
        """)

def gen_g2(a):
    NBUF = G2_NB; D = NBUF - 1
    NTB = "nt " if "g2ntB" in OPTS else ""
    SRD_A = 12; SRD_B = 16; SRD_XX = 20; SRD_OUT = 24
    S_WO = 4; S_W2 = 6; S_XP = 8; S_OUTP = 10; S_WSP = 28
    S_WV = 30; S_GK = 31; S_MW2 = 32; S_MT2 = 33; S_NT = 34; S_TRIP = 35
    S_KAA = 36; S_KBB = 37; S_MB0 = 38; S_T = 39; S_T2 = 40; S_T3 = 41; S_PC = 42; S_P = 44; S_KA0 = 45; S_WOL = 46; S_WOH = 47; S_SZ = 48; S_CNT = 49
    V_AB = 0
    V_W = V_AB + NBUF * 16
    V_AC = V_W + 64
    V_XR = V_AC + 32
    V_AA = V_XR + 8
    V_DBB = V_AA + 2
    V_RBB = V_DBB + 2
    T = V_RBB + 8
    VL = T + 14; VT = T + 15; VG = T + 16
    global G2_VGPRS
    G2_VGPRS = 256 if STAMP else VG + 2
    def ab(u, tb, kk): return V_AB + u * 16 + (tb * 2 + kk) * 4
    def w(par, s, kk): return V_W + par * 32 + (s * 2 + kk) * 4
    def ac(s, tb): return V_AC + (s * 2 + tb) * 4
    a.raw("""
.globl g2_kernel
.p2align 8
.type g2_kernel,@function
g2_kernel:""")
    a(f"""
    s_cmp_ge_u32 s2, 256
    s_cbranch_scc1 g2_exit
    s_load_dwordx2 s[{S_XP}:{S_XP+1}], s[0:1], 0
    s_load_dwordx2 s[{S_WO}:{S_WO+1}], s[0:1], 16
    s_load_dwordx2 s[{S_W2}:{S_W2+1}], s[0:1], 40
    s_load_dwordx2 s[{S_OUTP}:{S_OUTP+1}], s[0:1], 48
    s_load_dwordx2 s[{S_WSP}:{S_WSP+1}], s[0:1], 64
    v_and_b32 v{VL}, 63, v0
    v_lshrrev_b32 v{T}, 6, v0
    v_and_b32 v{VT}, 15, v0
    v_readfirstlane_b32 s{S_WV}, v{T}
    v_bfe_u32 v{VG}, v0, 4, 2
    """)
    if STAMP: a(f"v_mov_b32 v{V_STAMP}, 0")
    stamp_now(a, 32); stamp_now(a, 50, True)
    npf = 0
    if "nocodepf" not in OPTS:
        code_prefetch(a, T + 12, VL, S_PC, "g2_kernel", "g2_exit", 4096, VG + 1); npf = 1
    a(f"""
    s_and_b32 s{S_T}, s2, 7
    s_lshr_b32 s{S_T2}, s2, 3
    s_lshr_b32 s{S_MT2}, s{S_T}, 1
    s_lshl_b32 s{S_MT2}, s{S_MT2}, 2
    s_and_b32 s{S_T3}, s{S_T2}, 3
    s_add_u32 s{S_MT2}, s{S_MT2}, s{S_T3}     ; mt 0..15
    s_and_b32 s{S_NT}, s{S_T}, 1
    s_lshl_b32 s{S_NT}, s{S_NT}, 3
    s_lshr_b32 s{S_T2}, s{S_T2}, 2
    s_add_u32 s{S_NT}, s{S_NT}, s{S_T2}       ; nt 0..15
    s_lshr_b32 s{S_GK}, s{S_WV}, 2
    s_and_b32 s{S_MW2}, s{S_WV}, 3
    ; A voffsets
    s_lshl_b32 s{S_T}, s{S_MT2}, 3
    s_lshl_b32 s{S_T2}, s{S_MW2}, 1
    s_add_u32 s{S_T}, s{S_T}, s{S_T2}         ; mblk0
    s_mul_i32 s{S_T}, s{S_T}, {MBLK_PITCH}
    v_lshl_add_u32 v{V_AA}, v{VL}, 4, s{S_T}
    v_add_u32 v{V_AA+1}, {MBLK_PITCH}, v{V_AA}
    s_lshl_b32 s{S_KAA}, s{S_GK}, 11          ; K-step * 2048
    v_lshrrev_b32 v{T}, 3, v{VL}
    s_lshl_b32 s{S_T}, s{S_WV}, 4
    v_add_u32 v{T+1}, s{S_T}, v{T}            ; row (e=0)
    v_lshlrev_b32 v{T+1}, 11, v{T+1}
    s_lshl_b32 s{S_T}, s{S_NT}, 7
    v_add_u32 v{T+1}, s{S_T}, v{T+1}
    v_and_b32 v{T+2}, 1, v{VL}
    v_lshl_add_u32 v{T+1}, v{T+2}, 4, v{T+1}  ; + (c'&1)*16
    v_bfe_u32 v{T+2}, v{VL}, 1, 2             ; unit'
    v_bfe_u32 v{T+3}, v{VL}, 4, 1             ; bit1(l>>3)
    v_xor_b32 v{T+2}, v{T+2}, v{T+3}
    v_lshl_add_u32 v{V_DBB}, v{T+2}, 5, v{T+1}
    v_xor_b32 v{T+2}, 2, v{T+2}
    v_lshl_add_u32 v{V_DBB+1}, v{T+2}, 5, v{T+1}
    v_add_u32 v{V_DBB+1}, {8*2048}, v{V_DBB+1}
    s_lshl_b32 s{S_MB0}, s{S_WV}, 11
    s_mov_b32 s{S_KBB}, 0
    s_waitcnt lgkmcnt(0)
    s_mov_b32 s{SRD_A}, s{S_WSP}
    s_and_b32 s{SRD_A+1}, s{S_WSP+1}, 0xffff
    s_mov_b32 s{SRD_A+2}, {A2_BYTES}
    s_mov_b32 s{SRD_A+3}, 0x20000
    s_mov_b32 s{SRD_B}, s{S_WO}
    s_and_b32 s{SRD_B+1}, s{S_WO+1}, 0xffff
    s_mov_b32 s{SRD_B+2}, {1024*2048}
    s_mov_b32 s{SRD_B+3}, 0x20000
    """)
    def prefetch(u):
        for e in range(2):
            if "g2noB" in OPTS:
                a(f"buffer_load_dword v{T+12}, off, {sr(SRD_B,4)}, 0")
                continue
            a(f"""
            s_add_u32 m0, s{S_MB0}, {u*16384 + e*1024}
            s_nop 0
            buffer_load_dwordx4 v{V_DBB+e}, {sr(SRD_B,4)}, s{S_KBB} offen {NTB}lds
            """)
        for tb in range(2):
            for kk in range(2):
                if "g2noA" in OPTS:
                    a(f"buffer_load_dword v{T+12}, off, {sr(SRD_B,4)}, 0")
                    continue
                a(f"buffer_load_dwordx4 {vr(ab(u,tb,kk))}, v{V_AA+tb}, {sr(SRD_A,4)}, s{S_KAA} offen offset:{kk*1024}" + (" nt" if "g2ntA" in OPTS else ""))
        advance()
    def advance():
        a(f"""
        s_add_u32 s{S_P}, s{S_P}, 1
        s_cmp_eq_u32 s{S_P}, 36
        s_cselect_b32 s{S_P}, 0, s{S_P}
        s_add_u32 s{S_CNT}, s{S_CNT}, 1
        """)
        setpos()
    def setpos():
        a(f"""
        s_lshl_b32 s{S_KAA}, s{S_P}, 12
        s_add_u32 s{S_KAA}, s{S_KAA}, s{S_KA0}
        s_cmp_lt_u32 s{S_P}, 8
        s_cselect_b32 s{SRD_B}, s{S_WOL}, s{S_W2}
        s_cselect_b32 s{SRD_B+1}, s{S_WOH}, s{S_W2+1}
        s_cselect_b32 s{SRD_B+2}, {1024*2048}, s{S_SZ}
        s_cselect_b32 s{S_T}, 0, 8
        s_sub_u32 s{S_T}, s{S_P}, s{S_T}
        s_lshl_b32 s{S_KBB}, s{S_T}, 18
        s_cmp_ge_u32 s{S_CNT}, 36
        s_cselect_b32 s{SRD_B+2}, 0, s{SRD_B+2}
        s_cselect_b32 s{SRD_A+2}, 0, s{SRD_A+2}
        s_cselect_b32 s{S_MB0}, {G2_LDS}, s{S_MB0}
        """)
    rotmul = (1, 2)
    for o in OPTS:
        if o.startswith("rot="): rotmul = tuple(int(x) for x in o[4:].split(","))
    a(f"""
    s_and_b32 s{S_W2+1}, s{S_W2+1}, 0xffff
    s_mov_b32 s{S_WOL}, s{S_WO}
    s_and_b32 s{S_WOH}, s{S_WO+1}, 0xffff
    s_mov_b32 s{S_SZ}, {3584*2048}
    s_mov_b32 s{S_KA0}, s{S_KAA}
    s_mov_b32 s{S_CNT}, 0
    s_and_b32 s{S_T}, s{S_NT}, 7
    s_mul_i32 s{S_T}, s{S_T}, {rotmul[0]}
    s_and_b32 s{S_T2}, s{S_MT2}, 3
    s_mul_i32 s{S_T2}, s{S_T2}, {rotmul[1]}
    s_add_u32 s{S_P}, s{S_T}, s{S_T2}
    """)
    setpos()
    if "g2tlb" in OPTS:
        a(f"""
        s_lshr_b32 s{S_T}, s2, 3
        s_lshl_b32 s{S_T}, s{S_T}, 3
        s_add_u32 s{S_T}, s{S_T}, s{S_WV}          ; j
        s_lshl_b32 s{S_T2}, s{S_T}, 18             ; j*64 pages*4096
        v_lshl_add_u32 v{T+12}, v{VL}, 12, s{S_T2}
        s_cmp_lt_u32 s{S_T}, 18
        s_cbranch_scc0 g2_tlb1
        s_and_b32 s{S_T3}, s{S_MT2}, 12
        s_mul_i32 s{S_T3}, s{S_T3}, {8*MBLK_PITCH}
        buffer_load_dword v{T+13}, v{T+12}, {sr(SRD_A,4)}, s{S_T3} offen
        s_branch g2_tlb3
        """)
        a.label("g2_tlb1")
        a(f"""
        s_cmp_lt_u32 s{S_T}, 26
        s_cbranch_scc0 g2_tlb2
        v_subrev_u32 v{T+12}, {18<<18}, v{T+12}
        global_load_dword v{T+13}, v{T+12}, s[{S_WO}:{S_WO+1}]
        s_branch g2_tlb3
        """)
        a.label("g2_tlb2")
        a(f"""
        s_cmp_lt_u32 s{S_T}, 54
        s_cbranch_scc0 g2_tlb3
        v_subrev_u32 v{T+12}, {26<<18}, v{T+12}
        global_load_dword v{T+13}, v{T+12}, s[{S_W2}:{S_W2+1}]
        """)
        a.label("g2_tlb3")
    for u in range(D):
        prefetch(u)
    V_XA = T + 4; V_OA = T + 5
    a(f"""
    s_mov_b32 s{SRD_XX}, s{S_XP}
    s_and_b32 s{SRD_XX+1}, s{S_XP+1}, 0xffff
    s_mov_b32 s{SRD_XX+2}, {2048*2048}
    s_mov_b32 s{SRD_XX+3}, 0x20000
    s_mov_b32 s{SRD_OUT}, s{S_OUTP}
    s_and_b32 s{SRD_OUT+1}, s{S_OUTP+1}, 0xffff
    s_mov_b32 s{SRD_OUT+2}, {2048*2048}
    s_mov_b32 s{SRD_OUT+3}, 0x20000
    v_lshrrev_b32 v{T}, 2, v{VT}              ; r
    v_lshl_add_u32 v{T+1}, v{VG}, 3, v{T}
    v_lshlrev_b32 v{T+1}, 7, v{T+1}
    s_lshl_b32 s{S_T}, s{S_GK}, 13
    v_add_u32 v{T+1}, s{S_T}, v{T+1}
    v_and_b32 v{T+2}, 3, v{VL}
    v_lshl_add_u32 v{T+1}, v{T+2}, 3, v{T+1}
    v_and_b32 v{T+2}, 1, v{VG}
    v_lshrrev_b32 v{T+3}, 1, v{T}
    v_lshl_or_b32 v{T+2}, v{T+2}, 1, v{T+3}   ; f
    s_lshl_b32 s{S_T}, s{S_GK}, 1
    v_xor_b32 v{T+2}, s{S_T}, v{T+2}          ; f ^ 2Gk
    """)
    for s in range(4):
        a(f"""
        v_xor_b32 v{T+3}, {s}, v{T+2}
        v_lshl_add_u32 v{V_RBB+s}, v{T+3}, 5, v{T+1}
        v_add_u32 v{V_RBB+4+s}, 0xc000, v{V_RBB+s}
        """)
    a(f"""
    s_lshl_b32 s{S_T}, s{S_MT2}, 7
    s_lshl_b32 s{S_T2}, s{S_MW2}, 5
    s_add_u32 s{S_T}, s{S_T}, s{S_T2}
    v_add_u32 v{T}, s{S_T}, v{VT}
    v_lshlrev_b32 v{T}, 11, v{T}
    s_lshl_b32 s{S_T}, s{S_NT}, 7
    s_lshl_b32 s{S_T2}, s{S_GK}, 6
    s_add_u32 s{S_T}, s{S_T}, s{S_T2}
    v_add_u32 v{T}, s{S_T}, v{T}
    v_lshl_add_u32 v{V_XA}, v{VG}, 3, v{T}    ; + g*8
    v_and_b32 v{T+1}, 1, v{VG}
    v_lshrrev_b32 v{T+2}, 1, v{VG}
    v_lshl_or_b32 v{T+1}, v{T+1}, 1, v{T+2}   ; sigma
    v_lshl_add_u32 v{V_OA}, v{T+1}, 4, v{T}
    """)
    for r in range(V_AC, V_AC + 32):
        a(f"v_mov_b32 v{r}, 0")
    def reads(u, par):
        hi = 4 if u >= 3 else 0
        uo = (u - 3 if u >= 3 else u) * 16384
        for kk in range(2):
            for s in range(4):
                for h in range(2):
                    if "g2nocomp" in OPTS: continue
                    a(f"ds_read_b64_tr_b16 {vr(w(par,s,kk)+2*h,2)}, v{V_RBB+hi+s} offset:{uo + kk*4096 + h*512}")
    a(f"""
    s_mov_b32 s{S_TRIP}, 0
    s_waitcnt vmcnt({4 + 6*(D-1)})
    s_barrier
    """)
    reads(0, 0)
    stamp_now(a, 33)
    def body(u):
        par = u & 1
        a(f"""
        s_waitcnt vmcnt({4 + 6*(D-2)})
        s_barrier
        """)
        prefetch((u + D) % NBUF)
        a("s_waitcnt lgkmcnt(0)")
        reads((u + 1) % NBUF, par ^ 1)
        for kk in range(2):
            for s in range(4):
                for tb in range(2):
                    if "g2nocomp" in OPTS: continue
                    a(f"v_mfma_f32_16x16x32_bf16 {vr(ac(s,tb))}, {vr(w(par,s,kk))}, {vr(ab(u,tb,kk))}, {vr(ac(s,tb))}")
    a.raw(".p2align 6")
    a.label("g2_loop")
    for u in range(NBUF):
        body(u)
    a(f"""
    s_add_u32 s{S_TRIP}, s{S_TRIP}, 1
    s_cmp_lt_u32 s{S_TRIP}, {36 // NBUF}
    s_cbranch_scc1 g2_loop
    s_mov_b32 s{S_T}, {16*2048}
    """)
    stamp_now(a, 34)
    for tb in range(2):
        for e in range(2):
            so = "0" if tb == 0 else f"s{S_T}"
            a(f"buffer_load_dwordx2 {vr(V_XR+(tb*2+e)*2,2)}, v{V_XA}, {sr(SRD_XX,4)}, {so} offen offset:{e*32}")
    a(f"""
    s_waitcnt vmcnt(4) lgkmcnt(0)
    s_barrier
    s_lshl_b32 s{S_T}, s{S_WV}, 12
    v_lshl_add_u32 v{T}, v{VL}, 4, s{S_T}
    v_xor_b32 v{T+1}, 16384, v{T}
    """)
    for s in range(2):
        for tb in range(2):
            a(f"ds_write_b128 v{T}, {vr(ac(2+s,tb))} offset:{(s*2+tb)*1024}")
    a("""
    s_waitcnt lgkmcnt(0)
    s_barrier
    """)
    for s in range(2):
        for tb in range(2):
            a(f"ds_read_b128 {vr(V_W+(s*2+tb)*4)}, v{T+1} offset:{(s*2+tb)*1024}")
    a("s_waitcnt vmcnt(0) lgkmcnt(0)")
    for tb in range(2):
        o = V_AB + tb * 4
        for s in range(2):
            c = ac(s, tb); p = V_W + (s * 2 + tb) * 4; xr = V_XR + (tb * 2 + s) * 2
            a(f"""
            v_lshlrev_b32 v{T+8}, 16, v{xr}
            v_and_b32 v{T+9}, 0xffff0000, v{xr}
            v_lshlrev_b32 v{T+10}, 16, v{xr+1}
            v_and_b32 v{T+11}, 0xffff0000, v{xr+1}
            v_pk_add_f32 {vr(c,2)}, {vr(c,2)}, {vr(p,2)}
            v_pk_add_f32 {vr(c+2,2)}, {vr(c+2,2)}, {vr(p+2,2)}
            v_pk_add_f32 {vr(c,2)}, {vr(c,2)}, {vr(T+8,2)}
            v_pk_add_f32 {vr(c+2,2)}, {vr(c+2,2)}, {vr(T+10,2)}
            v_cvt_pk_bf16_f32 v{o+2*s}, v{c}, v{c+1}
            v_cvt_pk_bf16_f32 v{o+2*s+1}, v{c+2}, v{c+3}
            """)
        so = "0" if tb == 0 else f"s{S_T2}"
        a(f"""
        s_mov_b32 s{S_T2}, {16*2048}
        s_nop 0
        v_permlane16_swap_b32 v{o}, v{o+2}
        v_permlane16_swap_b32 v{o+1}, v{o+3}
        s_nop 1
        buffer_store_dwordx4 {vr(o)}, v{V_OA}, {sr(SRD_OUT,4)}, {so} offen
        """)
    stamp_now(a, 51, True)
    stamp_dump(a, S_WSP, S_WV, 40 << 20)
    a.label("g2_exit")
    a("s_endpgm")

C_ASLOT = 16384; C_NA = 3
C_BSLOT = 16384; C_NBS = 4
C_BBASE = 2 * C_NA * C_ASLOT
G2C_LDS = C_BBASE + C_NBS * C_BSLOT
SLAB_OFF = 64 << 20
FLAG_OFF = 30 << 20
SLAB_BYTES = 64 * 4 * 131072
NKS = 18
PUBF = "sc1" if "pubsc1" in OPTS else ("sc0 sc1 nt" if "pubnt" in OPTS else "sc0 sc1")
GETF = "sc1" if "pubsc1" in OPTS else "sc0 sc1"
def gen_g2c(a):
    XF = 64; WF = 96
    def acc(c, t): return (c * 4 + t) * 4
    def xf(t, kk): return XF + (t * 2 + kk) * 4
    def wf(c, kk): return WF + (c * 2 + kk) * 4
    V_RA = 128; V_RB = 129; V_DA = 133; V_DB = 134; VL = 135; VT = 136; VG = 137; T = 138
    VPF = 152; VH = 153; VHA = 154; VHL = 156
    S_XP = 4; S_WO = 6; S_W2 = 8; S_OUTP = 10; S_DBG = 28; S_WSP = 30
    SRD_A = 12; SRD_B = 16; SRD_S = 20; SRD_X = 24; SRD_O = 32; SRD_F = 36
    S_WV = 40; S_MW = 41; S_NW = 42; S_WQ = 43; S_MT = 44; S_NT = 45; S_KQ = 46; S_J = 47
    S_KA = 48; S_PA = 49; S_PB = 50; S_MA = 51; S_MB = 52; S_MAE = 53; S_MBE = 54; S_ASL = 55; S_BSL = 56
    S_RAS = 57; S_RBS = 58; S_T = 59; S_T2 = 60; S_T3 = 61; S_KB = 62; S_SZ2 = 63; S_CUR = 64; S_DONE = 65
    S_TILE = 66; S_G = 67; S_CNT = 68; S_ARR = 69; S_PC = 70; S_DA = 72; S_DB = 73; S_Q = 74; S_ASZ = 75; S_XCC = 76; S_FB = 77; S_LOC = 78
    MAPK = f"""
    s_and_b32 s{S_KQ}, s2, 3
    s_bfe_u32 s{S_T}, s2, 0x10002             ; M half
    s_lshr_b32 s{S_T2}, s2, 3                 ; idx
    s_and_b32 s{S_MT}, s{S_T2}, 3
    s_lshl_b32 s{S_T}, s{S_T}, 2
    s_add_u32 s{S_MT}, s{S_MT}, s{S_T}        ; mt 0..7
    s_lshr_b32 s{S_NT}, s{S_T2}, 2            ; nt 0..7
"""
    MAPL = f"""
    s_lshr_b32 s{S_T2}, s2, 3                 ; idx
    s_and_b32 s{S_KQ}, s{S_T2}, 3
    s_bfe_u32 s{S_T}, s2, 0x20001             ; xcd >> 1
    s_lshl_b32 s{S_MT}, s{S_T}, 1
    s_bfe_u32 s{S_T}, s{S_T2}, 0x10002
    s_add_u32 s{S_MT}, s{S_MT}, s{S_T}        ; mt 0..7
    s_and_b32 s{S_NT}, s2, 1
    s_lshl_b32 s{S_NT}, s{S_NT}, 2
    s_lshr_b32 s{S_T}, s{S_T2}, 3
    s_add_u32 s{S_NT}, s{S_NT}, s{S_T}        ; nt 0..7
"""
    XF_ = "" if "xloc" in OPTS else "sc0 sc1"
    a.raw("""
.globl g2_kernel
.p2align 8
.type g2_kernel,@function
g2_kernel:""")
    a(f"""
    s_cmp_ge_u32 s2, 256
    s_cbranch_scc1 g2_exit
    s_load_dwordx2 s[{S_XP}:{S_XP+1}], s[0:1], 0
    s_load_dwordx2 s[{S_WO}:{S_WO+1}], s[0:1], 16
    s_load_dwordx4 s[{S_W2}:{S_W2+3}], s[0:1], 40      ; w2, out
    s_load_dwordx4 s[{S_DBG}:{S_DBG+3}], s[0:1], 56
    v_and_b32 v{VL}, 63, v0
    v_lshrrev_b32 v{T}, 6, v0
    v_and_b32 v{VT}, 15, v0
    v_readfirstlane_b32 s{S_WV}, v{T}
    v_bfe_u32 v{VG}, v0, 4, 2
    """)
    if STAMP: a(f"v_mov_b32 v{V_STAMP}, 0")
    stamp_now(a, 32); stamp_now(a, 50, True)
    a(f"""
    s_nop 2
    s_cmp_lg_u32 s{S_WV}, 7
    s_cbranch_scc1 g2_nopf
    """)
    code_prefetch(a, T, VL, S_PC, "g2_kernel", "g2_exit", 8192, VPF)
    a.label("g2_nopf")
    a(f"""
    """)
    a(MAPL if "xloc" in OPTS else MAPK)
    a(f"""
    s_lshl_b32 s{S_TILE}, s{S_MT}, 3
    s_add_u32 s{S_TILE}, s{S_TILE}, s{S_NT}
    s_lshr_b32 s{S_G}, s{S_WV}, 2
    s_and_b32 s{S_WQ}, s{S_WV}, 3
    s_and_b32 s{S_NW}, s{S_WV}, 1
    s_bfe_u32 s{S_MW}, s{S_WV}, 0x10001
    s_lshr_b32 s{S_Q}, s{S_WV}, 1
    s_xor_b32 s{S_T}, s{S_G}, 1
    s_lshl_b32 s{S_T2}, s{S_T}, 3
    s_lshl_b32 s{S_T3}, s{S_MT}, 4
    s_add_u32 s{S_T2}, s{S_T2}, s{S_T3}
    s_lshl_b32 s{S_T3}, s{S_WQ}, 1
    s_add_u32 s{S_T2}, s{S_T2}, s{S_T3}
    s_mul_i32 s{S_T2}, s{S_T2}, {MBLK_PITCH}
    v_lshl_add_u32 v{V_DA}, v{VL}, 4, s{S_T2}
    s_mul_i32 s{S_DA}, s{S_T}, {C_NA*C_ASLOT}
    s_lshl_b32 s{S_T3}, s{S_WQ}, 12
    s_add_u32 s{S_DA}, s{S_DA}, s{S_T3}
    v_lshrrev_b32 v{T}, 4, v{VL}
    s_lshl_b32 s{S_T}, s{S_WV}, 3
    v_add_u32 v{T+1}, s{S_T}, v{T}
    v_lshlrev_b32 v{T+1}, 11, v{T+1}
    s_lshl_b32 s{S_T}, s{S_NT}, 8
    v_add_u32 v{T+1}, s{S_T}, v{T+1}
    v_and_b32 v{T+2}, 1, v{VL}
    v_lshl_add_u32 v{T+1}, v{T+2}, 4, v{T+1}
    v_bfe_u32 v{T+2}, v{VL}, 1, 3
    s_lshl_b32 s{S_T}, s{S_NW}, 2
    v_or_b32 v{T}, s{S_T}, v{T}
    v_xor_b32 v{T+2}, v{T+2}, v{T}
    v_lshl_add_u32 v{V_DB}, v{T+2}, 5, v{T+1}
    s_lshl_b32 s{S_DB}, s{S_WV}, 11
    s_add_u32 s{S_DB}, s{S_DB}, {C_BBASE}
    s_waitcnt lgkmcnt(0)
    """)
    stamp_now(a, 41)
    a(f"""
    s_mov_b32 s{SRD_A}, s{S_WSP}
    s_and_b32 s{SRD_A+1}, s{S_WSP+1}, 0xffff
    s_mov_b32 s{SRD_A+3}, 0x20000
    s_mov_b32 s{SRD_B+3}, 0x20000
    s_and_b32 s{S_WO+1}, s{S_WO+1}, 0xffff
    s_and_b32 s{S_W2+1}, s{S_W2+1}, 0xffff
    s_mov_b32 s{S_SZ2}, {3584*2048}
    s_mov_b32 s{S_ASZ}, {A2_BYTES}
    s_mov_b32 s{S_CUR}, s{S_KQ}
    s_lshl_b32 s{S_DONE}, s{S_KQ}, 3
    s_lshl_b32 s{S_DONE}, 1, s{S_DONE}
    s_mov_b32 s{S_ARR}, 0
    s_mov_b32 s{S_LOC}, 0
    s_add_u32 s{SRD_S}, s{S_WSP}, {SLAB_OFF}
    s_addc_u32 s{SRD_S+1}, s{S_WSP+1}, 0
    s_and_b32 s{SRD_S+1}, s{SRD_S+1}, 0xffff
    s_mov_b32 s{SRD_S+2}, {SLAB_BYTES}
    s_mov_b32 s{SRD_S+3}, 0x20000
    s_add_u32 s{SRD_F}, s{S_WSP}, {FLAG_OFF}
    s_addc_u32 s{SRD_F+1}, s{S_WSP+1}, 0
    s_and_b32 s{SRD_F+1}, s{SRD_F+1}, 0xffff
    s_mov_b32 s{SRD_F+2}, {64*128}
    s_mov_b32 s{SRD_F+3}, 0x20000
    s_lshl_b32 s{S_FB}, s{S_TILE}, 7
    s_lshl_b32 s{S_T}, s{S_TILE}, 2
    s_add_u32 s{S_T}, s{S_T}, s{S_KQ}
    s_lshl_b32 s{S_T}, s{S_T}, 3
    s_add_u32 s{S_T}, s{S_T}, s{S_WV}
    s_lshl_b32 s{S_FB+1}, s{S_T}, 13
    v_lshlrev_b32 v155, 4, v{VL}
    s_mov_b32 s{SRD_X}, s{S_XP}
    s_and_b32 s{SRD_X+1}, s{S_XP+1}, 0xffff
    s_mov_b32 s{SRD_X+2}, {2048*2048}
    s_mov_b32 s{SRD_X+3}, 0x20000
    s_mov_b32 s{SRD_O}, s{S_OUTP}
    s_and_b32 s{SRD_O+1}, s{S_OUTP+1}, 0xffff
    s_mov_b32 s{SRD_O+2}, {2048*2048}
    s_mov_b32 s{SRD_O+3}, 0x20000
    """)
    def setA():
        a(f"""
        s_mul_i32 s{S_T}, s{S_CUR}, {NKS}
        s_add_u32 s{S_T}, s{S_T}, s{S_PA}
        s_lshl_b32 s{S_KA}, s{S_T}, 11
        s_cmp_ge_u32 s{S_PA}, {NKS}
        s_cselect_b32 s{SRD_A+2}, 0, s{S_ASZ}
        s_cselect_b32 s{S_MAE}, {LDS_DUMP}, s{S_MA}
        """)
    def setB():
        a(f"""
        s_mul_i32 s{S_T}, s{S_CUR}, {NKS}
        s_add_u32 s{S_T}, s{S_T}, s{S_PB}
        s_cmp_lt_u32 s{S_T}, 16
        s_cselect_b32 s{SRD_B}, s{S_WO}, s{S_W2}
        s_cselect_b32 s{SRD_B+1}, s{S_WO+1}, s{S_W2+1}
        s_cselect_b32 s{SRD_B+2}, {1024*2048}, s{S_SZ2}
        s_cselect_b32 s{S_T2}, 0, 16
        s_sub_u32 s{S_T}, s{S_T}, s{S_T2}
        s_lshl_b32 s{S_KB}, s{S_T}, 17
        s_cmp_ge_u32 s{S_PB}, {NKS}
        s_cselect_b32 s{SRD_B+2}, 0, s{SRD_B+2}
        s_cselect_b32 s{S_MBE}, {LDS_DUMP}, s{S_MB}
        """)
    def dmaA_list():
        L = []
        for e in range(2):
            L.append(f"""
            s_add_u32 m0, s{S_MAE}, {e*2048}
            s_add_u32 s{S_T3}, s{S_KA}, {e*MBLK_PITCH}
            buffer_load_dwordx4 v{V_DA}, {sr(SRD_A,4)}, s{S_T3} offen lds
            """)
            L.append(f"buffer_load_dwordx4 v{V_DA}, {sr(SRD_A,4)}, s{S_T3} offen offset:1024 lds")
        return L
    def dmaB_list():
        L = []
        for e in range(2):
            L.append(f"""
            s_add_u32 m0, s{S_MBE}, {e*1024}
            s_add_u32 s{S_T3}, s{S_KB}, {e*8192}
            buffer_load_dwordx4 v{V_DB}, {sr(SRD_B,4)}, s{S_T3} offen lds
            """)
        return L
    def advA():
        a(f"""
        s_add_u32 s{S_PA}, s{S_PA}, 1
        s_add_u32 s{S_ASL}, s{S_ASL}, 1
        s_add_u32 s{S_MA}, s{S_MA}, {C_ASLOT}
        s_cmp_eq_u32 s{S_ASL}, {C_NA}
        s_cselect_b32 s{S_ASL}, 0, s{S_ASL}
        s_cselect_b32 s{S_MA}, s{S_DA}, s{S_MA}
        """)
        setA()
    def advB():
        a(f"""
        s_add_u32 s{S_PB}, s{S_PB}, 1
        s_add_u32 s{S_BSL}, s{S_BSL}, 1
        s_add_u32 s{S_MB}, s{S_MB}, {C_BSLOT}
        s_cmp_eq_u32 s{S_BSL}, {C_NBS}
        s_cselect_b32 s{S_BSL}, 0, s{S_BSL}
        s_cselect_b32 s{S_MB}, s{S_DB}, s{S_MB}
        """)
        setB()
    def doA():
        for d in dmaA_list(): a(d)
        advA()
    def doB():
        for d in dmaB_list(): a(d)
        advB()
    a.label("g2_gemm")
    a(f"""
    s_mov_b32 s{S_PA}, 0
    s_mov_b32 s{S_PB}, 0
    s_mov_b32 s{S_ASL}, 0
    s_mov_b32 s{S_BSL}, 0
    s_mov_b32 s{S_MA}, s{S_DA}
    s_mov_b32 s{S_MB}, s{S_DB}
    """)
    setA(); setB()
    stamp_now(a, 42)
    a(f"""
    s_cmp_eq_u32 s{S_G}, 0
    s_cbranch_scc0 g2_pro1
    """)
    doB(); doA(); doB(); doA(); doB()
    a("s_branch g2_pro2")
    a.label("g2_pro1")
    doA(); doB(); doA(); doB(); doA(); doB()
    a.label("g2_pro2")
    stamp_now(a, 43)
    a(f"""
    s_cmp_eq_u32 s{S_CUR}, s{S_KQ}
    s_cbranch_scc0 g2_nozero
    """)
    for r in range(64):
        a(f"v_mov_b32 v{r}, 0")
    a.label("g2_nozero")
    a(f"""
    s_mul_i32 s{S_T}, s{S_G}, {C_NA*C_ASLOT}
    s_lshl_b32 s{S_T2}, s{S_MW}, 13
    s_add_u32 s{S_T}, s{S_T}, s{S_T2}
    v_lshl_add_u32 v{V_RA}, v{VL}, 4, s{S_T}
    v_lshrrev_b32 v{T}, 2, v{VT}              ; r
    v_lshl_add_u32 v{T+1}, v{VG}, 3, v{T}
    v_lshlrev_b32 v{T+1}, 8, v{T+1}
    v_and_b32 v{T+2}, 3, v{VL}
    v_lshl_add_u32 v{T+1}, v{T+2}, 3, v{T+1}
    v_add_u32 v{T+1}, {C_BBASE}, v{T+1}
    v_and_b32 v{T+2}, 1, v{VG}
    v_lshl_or_b32 v{T+2}, v{T+2}, 2, v{T}     ; f = r | (g&1)<<2
    s_lshl_b32 s{S_T}, s{S_NW}, 2
    v_xor_b32 v{T+2}, s{S_T}, v{T+2}
    """)
    for c in range(4):
        a(f"""
        v_xor_b32 v{T+3}, {c}, v{T+2}
        v_lshl_add_u32 v{V_RB+c}, v{T+3}, 5, v{T+1}
        """)
    a(f"""
    s_mov_b32 s{S_J}, 0
    s_mov_b32 s{S_RAS}, 0
    s_mov_b32 s{S_RBS}, 0
    """)
    stamp_now(a, 44)
    a("s_waitcnt vmcnt(12)")
    stamp_now(a, 45)
    a("s_barrier")
    stamp_now(a, 33)
    a(f"""
    s_cmp_eq_u32 s{S_G}, 0
    s_cbranch_scc1 g2_loop
    s_barrier
    """)
    reads = []
    for kk in range(2):
        for t in range(4):
            reads.append(f"ds_read_b128 {vr(xf(t,kk))}, v{V_RA} offset:{(t*2+kk)*1024}")
        for c in range(4):
            for h in range(2):
                reads.append(f"ds_read_b64_tr_b16 {vr(wf(c,kk)+2*h,2)}, v{V_RB+c} offset:{(32*kk+4*h)*256}")
    a.raw(".p2align 6")
    a.label("g2_loop")
    if "pretouch" in OPTS:
        a(f"""
        s_sub_u32 s{S_T}, s{S_J}, 4
        s_cmp_lt_u32 s{S_T}, 8
        s_cbranch_scc0 g2_nopt
        s_lshl_b32 s{S_T}, s{S_T}, 10
        s_add_u32 s{S_T}, s{S_T}, s{S_FB+1}
        buffer_load_dwordx4 v[156:159], v155, {sr(SRD_S,4)}, s{S_T} offen
        """)
        a.label("g2_nopt")
    dl = dmaA_list() + dmaB_list()
    di = 0
    for n_, r in enumerate(reads):
        a(r)
        if (n_ % 4 == 1 if 'g2d3' not in OPTS else n_ % 3 == 0) and di < len(dl):
            a(dl[di]); di += 1
    assert di == len(dl)
    a("""
    s_waitcnt vmcnt(12) lgkmcnt(0)
    s_barrier
    s_setprio 1
    """)
    real = a; a = bk = Collect()
    def _adv():
        pass
    bk(f"""
    s_add_u32 s{S_PA}, s{S_PA}, 1
    s_add_u32 s{S_ASL}, s{S_ASL}, 1
    s_add_u32 s{S_MA}, s{S_MA}, {C_ASLOT}
    s_cmp_eq_u32 s{S_ASL}, {C_NA}
    s_cselect_b32 s{S_ASL}, 0, s{S_ASL}
    s_cselect_b32 s{S_MA}, s{S_DA}, s{S_MA}
    s_add_u32 s{S_KA}, s{S_KA}, 2048
    s_cmp_ge_u32 s{S_PA}, {NKS}
    s_cselect_b32 s{SRD_A+2}, 0, s{S_ASZ}
    s_cselect_b32 s{S_MAE}, {LDS_DUMP}, s{S_MA}
    s_add_u32 s{S_PB}, s{S_PB}, 1
    s_add_u32 s{S_BSL}, s{S_BSL}, 1
    s_add_u32 s{S_MB}, s{S_MB}, {C_BSLOT}
    s_cmp_eq_u32 s{S_BSL}, {C_NBS}
    s_cselect_b32 s{S_BSL}, 0, s{S_BSL}
    s_cselect_b32 s{S_MB}, s{S_DB}, s{S_MB}
    s_add_u32 s{S_KB}, s{S_KB}, {1<<17}
    s_lshl_b32 s{S_T}, s{S_CUR}, 8
    s_add_u32 s{S_T}, s{S_T}, s{S_PB}
    s_cmp_eq_u32 s{S_T}, 16
    s_cselect_b32 s{SRD_B}, s{S_W2}, s{SRD_B}
    s_cselect_b32 s{SRD_B+1}, s{S_W2+1}, s{SRD_B+1}
    s_cselect_b32 s{SRD_B+2}, s{S_SZ2}, s{SRD_B+2}
    s_cselect_b32 s{S_KB}, 0, s{S_KB}
    s_cmp_ge_u32 s{S_PB}, {NKS}
    s_cselect_b32 s{SRD_B+2}, 0, s{SRD_B+2}
    s_cselect_b32 s{S_MBE}, {LDS_DUMP}, s{S_MB}
    s_add_u32 s{S_RAS}, s{S_RAS}, 1
    s_cmp_eq_u32 s{S_RAS}, {C_NA}
    s_cselect_b32 s{S_RAS}, 0, s{S_RAS}
    s_cselect_b32 s{S_T}, {C_NA*C_ASLOT}, 0
    s_sub_u32 s{S_T}, {C_ASLOT}, s{S_T}
    v_add_u32 v{V_RA}, s{S_T}, v{V_RA}
    s_add_u32 s{S_RBS}, s{S_RBS}, 1
    s_cmp_eq_u32 s{S_RBS}, {C_NBS}
    s_cselect_b32 s{S_RBS}, 0, s{S_RBS}
    s_cselect_b32 s{S_T}, {C_NBS*C_BSLOT}, 0
    s_sub_u32 s{S_T}, {C_BSLOT}, s{S_T}
    """)
    for c in range(4):
        bk(f"v_add_u32 v{V_RB+c}, s{S_T}, v{V_RB+c}")
    a = real
    mf = []
    for kk in range(2):
        for c in range(4):
            for t in range(4):
                mf.append(f"v_mfma_f32_16x16x32_bf16 {vr(acc(c,t))}, {vr(wf(c,kk))}, {vr(xf(t,kk))}, {vr(acc(c,t))}")
    interleave(a, mf, bk.L, start=(0 if 'g2bk3' in OPTS else 1), per=(3 if 'g2bk3' in OPTS else 2))
    a(f"""
    s_setprio 0
    s_add_u32 s{S_J}, s{S_J}, 1
    s_lshl_b32 s{S_T}, s{S_G}, 8
    s_add_u32 s{S_T}, s{S_T}, s{S_J}
    s_cmp_eq_u32 s{S_T}, {256 + NKS}
    s_cbranch_scc1 g2_post
    s_cmp_lt_u32 s{S_J}, {NKS}
    s_barrier
    s_cbranch_scc1 g2_loop
    """)
    a.label("g2_post")
    stamp_now(a, 34)
    V_XR = XF; V_XA = T + 1; V_OA = T + 2; PK = WF
    a(f"""
    v_lshlrev_b32 v{T}, 4, v{VL}
    s_cmp_eq_u32 s{S_Q}, s{S_KQ}
    s_cbranch_scc1 g2_own
    s_cmp_eq_u32 s{S_CUR}, s{S_KQ}
    s_cbranch_scc0 g2_pub_done
    s_lshl_b32 s{S_T}, s{S_TILE}, 2
    s_add_u32 s{S_T}, s{S_T}, s{S_KQ}
    s_lshl_b32 s{S_T}, s{S_T}, 3
    s_add_u32 s{S_T}, s{S_T}, s{S_WV}
    s_lshl_b32 s{S_T}, s{S_T}, 13
    s_add_u32 s{S_T2}, s{S_T}, 4096
    """)
    for bp in range(8):
        o = PK + 4 * bp
        for h in range(2):
            b = acc(bp >> 1, (bp & 1) * 2 + h)
            a(f"""
            v_cvt_pk_bf16_f32 v{o+2*h}, v{b}, v{b+1}
            v_cvt_pk_bf16_f32 v{o+2*h+1}, v{b+2}, v{b+3}
            """)
        a(f"buffer_store_dwordx4 {vr(o)}, v{T}, {sr(SRD_S,4)}, s{S_T if bp < 4 else S_T2} offen offset:{(bp%4)*1024} {XF_}")
    a("s_branch g2_pub_done")
    a.label("g2_own")
    a(f"""
    s_lshl_b32 s{S_T}, s{S_NW}, 14
    v_add_u32 v{T+3}, s{S_T}, v{T}
    """)
    for b in range(16):
        a(f"ds_write_b128 v{T+3}, {vr(4*b)} offset:{b*1024}")
    a.label("g2_pub_done")
    a(f"""
    s_lshl_b32 s{S_T}, s{S_MT}, 8
    s_lshl_b32 s{S_T2}, s{S_KQ}, 6
    s_add_u32 s{S_T}, s{S_T}, s{S_T2}
    s_lshl_b32 s{S_T2}, s{S_G}, 5
    s_add_u32 s{S_T}, s{S_T}, s{S_T2}
    v_add_u32 v{T+3}, s{S_T}, v{VT}
    v_lshlrev_b32 v{T+3}, 11, v{T+3}
    s_lshl_b32 s{S_T}, s{S_NT}, 8
    s_lshl_b32 s{S_T2}, s{S_NW}, 7
    s_add_u32 s{S_T}, s{S_T}, s{S_T2}
    s_lshl_b32 s{S_T2}, s{S_MW}, 6
    s_add_u32 s{S_T}, s{S_T}, s{S_T2}
    v_add_u32 v{T+3}, s{S_T}, v{T+3}
    v_lshl_add_u32 v{V_XA}, v{VG}, 3, v{T+3}
    v_and_b32 v{T+4}, 1, v{VG}
    v_lshrrev_b32 v{T+5}, 1, v{VG}
    v_lshl_or_b32 v{T+4}, v{T+4}, 1, v{T+5}
    v_lshl_add_u32 v{V_OA}, v{T+4}, 4, v{T+3}
    s_mov_b32 s{S_T}, {16*2048}
    """)
    for t in range(2):
        for e in range(2):
            so = "0" if t == 0 else f"s{S_T}"
            a(f"buffer_load_dwordx2 {vr(V_XR+(t*2+e)*2,2)}, v{V_XA}, {sr(SRD_X,4)}, {so} offen offset:{e*32}")
    a("s_waitcnt vmcnt(4) lgkmcnt(0)")
    stamp_now(a, 36)
    a(f"""
    s_barrier
    s_cmp_eq_u32 s{S_CUR}, s{S_KQ}
    s_cbranch_scc0 g2_after_publish
    s_cmp_eq_u32 s{S_WV}, 0
    s_cbranch_scc0 g2_wait_done
    s_lshl_b32 s{S_T}, s{S_KQ}, 2
    v_mov_b32 v{T+3}, s{S_DONE}
    v_mov_b32 v{T+4}, s{S_T}
    s_mov_b64 exec, 1
    buffer_store_dword v{T+3}, v{T+4}, {sr(SRD_F,4)}, s{S_FB} offen sc0 sc1
    s_mov_b32 s{S_CNT}, 0
    """)
    a.label("g2_poll")
    a(f"""
    buffer_load_dwordx4 {vr(T+6)}, off, {sr(SRD_F,4)}, s{S_FB} sc0 sc1
    s_waitcnt vmcnt(0)
    v_or_b32 v{T+6}, v{T+6}, v{T+7}
    v_or3_b32 v{T+5}, v{T+6}, v{T+8}, v{T+9}
    s_add_u32 s{S_CNT}, s{S_CNT}, 1
    v_readfirstlane_b32 s{S_ARR}, v{T+5}
    s_nop 3
    s_cmp_eq_u32 s{S_ARR}, {0x77 if "forcefb" in OPTS else 0x01010101}
    s_cbranch_scc1 g2_poll_end
    s_cmp_lt_u32 s{S_CNT}, {64 if "forcefb" in OPTS else 20000}
    s_cbranch_scc1 g2_poll
    """)
    a.label("g2_poll_end")
    if STAMP:
        a(f"v_writelane_b32 v{V_STAMP}, s{S_CNT}, 39")
    if "forcefb" in OPTS:
        a(f"s_and_b32 s{S_ARR}, s{S_ARR}, 0x00010001")
    a(f"""
    v_mov_b32 v{T+5}, s{S_ARR}
    v_mov_b32 v{T+4}, {65536}
    ds_write_b32 v{T+4}, v{T+5}
    s_mov_b64 exec, -1
    s_waitcnt lgkmcnt(0)
    """)
    a.label("g2_wait_done")
    a(f"""
    s_barrier
    v_mov_b32 v{T+4}, {65536}
    ds_read_b32 v{T+5}, v{T+4}
    s_waitcnt lgkmcnt(0)
    v_readfirstlane_b32 s{S_ARR}, v{T+5}
    s_nop 3
    """)
    a.label("g2_after_publish")
    a(f"""
    s_or_b32 s{S_T}, s{S_ARR}, s{S_DONE}
    s_cmp_eq_u32 s{S_T}, 0x01010101
    s_cbranch_scc1 g2_final
    s_andn2_b32 s{S_T}, 0x01010101, s{S_T}
    s_ff1_i32_b32 s{S_T}, s{S_T}
    s_lshl_b32 s{S_T2}, 1, s{S_T}
    s_or_b32 s{S_DONE}, s{S_DONE}, s{S_T2}
    s_lshr_b32 s{S_CUR}, s{S_T}, 3
    s_waitcnt vmcnt(0)
    s_barrier
    s_branch g2_gemm
    """)
    a.label("g2_final")
    stamp_now(a, 35)
    R0 = WF
    a(f"""
    s_andn2_b32 s{S_ARR}, s{S_ARR}, s{S_DONE}
    s_lshl_b32 s{S_T}, s{S_MW}, 2
    s_add_u32 s{S_T}, s{S_T}, s{S_G}
    s_lshl_b32 s{S_T}, s{S_T}, 10             ; pair0 * 1024
    s_lshl_b32 s{S_T2}, s{S_NW}, 13
    s_add_u32 s{S_T3}, s{S_T}, s{S_T2}
    """)
    for src in range(4):
        a(f"""
        s_bitcmp1_b32 s{S_ARR}, {8*src}
        s_cbranch_scc1 g2_ld{src}
        """)
        for r in range(8):
            a(f"v_mov_b32 v{8*src+r}, 0")
        a(f"s_branch g2_ld{src}_done")
        a.label(f"g2_ld{src}")
        a(f"""
        s_lshl_b32 s{S_T}, s{S_TILE}, 2
        s_add_u32 s{S_T}, s{S_T}, {src}
        s_lshl_b32 s{S_T}, s{S_T}, 2
        s_add_u32 s{S_T}, s{S_T}, s{S_KQ}
        s_lshl_b32 s{S_T}, s{S_T}, 14
        s_add_u32 s{S_T}, s{S_T}, s{S_T3}
        """)
        for e in range(2):
            a(f"buffer_load_dwordx4 {vr(8*src+4*e)}, v{T}, {sr(SRD_S,4)}, s{S_T} offen offset:{e*2048} {XF_}")
        a.label(f"g2_ld{src}_done")
    a(f"""
    s_lshl_b32 s{S_T}, s{S_MW}, 3
    s_lshl_b32 s{S_T2}, s{S_G}, 1
    s_add_u32 s{S_T}, s{S_T}, s{S_T2}
    s_lshl_b32 s{S_T}, s{S_T}, 10
    s_lshl_b32 s{S_T2}, s{S_NW}, 14
    s_add_u32 s{S_T}, s{S_T}, s{S_T2}
    v_add_u32 v{T+3}, s{S_T}, v{T}
    """)
    for e in range(2):
        for t in range(2):
            a(f"ds_read_b128 {vr(R0+(e*2+t)*4)}, v{T+3} offset:{e*4096 + t*1024}")
    a("s_waitcnt vmcnt(0) lgkmcnt(0)")
    stamp_now(a, 37)
    for t in range(2):
        o = XF + 16 + t * 4
        for e in range(2):
            c = R0 + (e * 2 + t) * 4
            srcs = [8 * src + 4 * e + 2 * t for src in range(4)] + [V_XR + (t * 2 + e) * 2]
            for p in srcs:
                a(f"""
                v_lshlrev_b32 v{T+8}, 16, v{p}
                v_and_b32 v{T+9}, 0xffff0000, v{p}
                v_lshlrev_b32 v{T+10}, 16, v{p+1}
                v_and_b32 v{T+11}, 0xffff0000, v{p+1}
                v_pk_add_f32 {vr(c,2)}, {vr(c,2)}, {vr(T+8,2)}
                v_pk_add_f32 {vr(c+2,2)}, {vr(c+2,2)}, {vr(T+10,2)}
                """)
            a(f"""
            v_cvt_pk_bf16_f32 v{o+2*e}, v{c}, v{c+1}
            v_cvt_pk_bf16_f32 v{o+2*e+1}, v{c+2}, v{c+3}
            """)
        so = "0" if t == 0 else f"s{S_T2}"
        a(f"""
        s_mov_b32 s{S_T2}, {16*2048}
        s_nop 0
        v_permlane16_swap_b32 v{o}, v{o+2}
        v_permlane16_swap_b32 v{o+1}, v{o+3}
        s_nop 1
        buffer_store_dwordx4 {vr(o)}, v{V_OA}, {sr(SRD_O,4)}, {so} offen
        """)
    stamp_now(a, 51, True)
    stamp_dump(a, S_WSP, S_WV, 40 << 20)
    a.label("g2_exit")
    a("s_endpgm")
    global G2_VGPRS
    G2_VGPRS = 256 if STAMP else 160

HEADER = f"""; mblk_pitch={MBLK_PITCH}
{"" if FUSE else "; @launch kernel=k0_kernel grid=(256,1,1) block=(512,1,1) lds=0"}
; @launch kernel=g1_kernel grid=(256,1,1) block=(512,1,1) lds={G1_LDS}
; @launch kernel=g2_kernel grid=(256,1,1) block=(512,1,1) lds={G2_LDS if 'g2a' in OPTS else G2C_LDS}
.amdgcn_target "amdgcn-amd-amdhsa--gfx950"
.text
"""

def kd(name, vgpr, sgpr):
    return f"""
.amdhsa_kernel {name}
  .amdhsa_next_free_vgpr {vgpr}
  .amdhsa_next_free_sgpr {sgpr}
  .amdhsa_accum_offset {(vgpr + 3) // 4 * 4}
  .amdhsa_group_segment_fixed_size 0
  .amdhsa_kernarg_size 72
  .amdhsa_user_sgpr_count 2
  .amdhsa_user_sgpr_kernarg_segment_ptr 1
  .amdhsa_system_sgpr_workgroup_id_x 1
.end_amdhsa_kernel
"""

def main():
    global STAMP
    if "stamp" in sys.argv[2:]: STAMP = True
    a = Asm()
    gen_k0(a)
    gen_g1(a)
    (gen_g2 if 'g2a' in OPTS else gen_g2c)(a)
    s = HEADER + a.text() + '.section .rodata,"a"\n.p2align 6\n' + kd("k0_kernel", 64, 40) + ".p2align 6\n" + kd("g1_kernel", 256, 102) + ".p2align 6\n" + kd("g2_kernel", G2_VGPRS, 102 if STAMP else 80)
    out = sys.argv[1] if len(sys.argv) > 1 else OUT
    open(out, "w").write(s)

main()
```

```python
import sys

OUT = "parallel_sum__sliding_local_dilated__dense_activation_relu__prompt.s"

class Asm:
    def __init__(self):
        self.L = []
    def __call__(self, s):
        for line in s.strip("\n").split("\n"):
            line = line.strip()
            if line:
                self.L.append("    " + line)
    def label(self, n):
        self.L.append(n + ":")
    def raw(self, s):
        self.L.append(s)
    def text(self):
        return "\n".join(self.L) + "\n"

class Collect:
    def __init__(self): self.L = []
    def __call__(self, s):
        for line in s.strip("\n").split("\n"):
            line = line.strip()
            if line: self.L.append(line)

def interleave(a, mfmas, fillers, start=2, per=2):
    fi = 0
    for n, m in enumerate(mfmas):
        a(m)
        if n >= start:
            for _ in range(per):
                if fi < len(fillers):
                    a(fillers[fi]); fi += 1
    while fi < len(fillers):
        a(fillers[fi]); fi += 1

def vr(b, n=4):
    return "v[%d:%d]" % (b, b + n - 1)
def sr(b, n=2):
    return "s[%d:%d]" % (b, b + n - 1)

MBLK_PITCH = 144 * 1024
for _o in sys.argv[2:]:
    if _o.startswith("pitch="): MBLK_PITCH = int(_o[6:])
A2_BYTES = 128 * MBLK_PITCH

G1_ASLOT = 16384
G1_BBASE = 65536
G1_BSLOT = 28672
G1_HALO = 24576
G1_STAT = G1_BBASE + 3 * G1_BSLOT
G1_CS = G1_STAT + 272 * 8
G1_CSP = G1_STAT + 3072
G1_CS = G1_CSP + 8192
G1_VERD = G1_CS + 896
G1_LDS = 163840 if "nofuse" not in sys.argv[2:] else G1_STAT
ST_OFF = 28 << 20
XN_OFF = 24 << 20
AT_PITCH = 400

V_ACC = 0
V_HACC = 96
V_XF = 112
V_WF = 144
V_HF = 200
V_S1 = 208
V_S2 = 210
V_SH = 212
V_CS = 214
V_WD = 208
V_WV = 212
V_RA = 217
V_RB = 221
V_RH = 228
V_DA = 230
V_DB = 231
V_DH = 235
V_T = 236
V_LANE = 250
V_TT = 251
V_GG = 252

S_X = 4; S_W = 6; S_WS = 8; S_W1 = 10
SRD_X = 12; SRD_W = 16; SRD_O = 20
S_WAVE = 24; S_MW = 26; S_NW = 27; S_WQ = 28; S_MT = 29; S_JT = 30; S_J = 31
S_KA = 32; S_KB = 33; S_MA = 34; S_MB = 35; S_BD = 36; S_BSL = 37; S_RSL = 38; S_TMP = 39
S_ONES = 40; S_KH = 41; S_TMP2 = 42; S_TMP3 = 43
S_BLK = 44
S_TB = 52
S_PO = 56
S_MASK = 64
S_BSC = 60
S_HD = 61
S_KW = 91
SRD_WW = 64; S_WM = 68; S_GW = 70; S_WPK = 71
V_L16 = 216
SRD_ST = 64; SRD_DBG = 72; S_NTI = 76; S_EV = 77; S_DBGP = 78
V_ONES = 240; V_CHK = 208
S_MAE = 25; S_MBE = 3
LDS_DUMP = 0x28000
SRD_XA = 96
S_WOP = 92; S_W2P = 94; S_PC1 = 62

STAMP = False
FUSE = "nofuse" not in sys.argv[2:]
OPTS = sys.argv[2:]
STF = "sc0 sc1" if "stsc" in OPTS else ""
STH = "sc0 sc1" if "hwt" in OPTS else ""
V_STAMP = 253
S_SA = 84; S_SB = 86; S_SC = 88; SRD_D = 80; S_SI = 90
def stamp_now(a, idx, real=False):
    if not STAMP: return
    a(f"""
    {"s_memrealtime" if real else "s_memtime"} {sr(S_SC)}
    s_waitcnt lgkmcnt(0)
    v_writelane_b32 v{V_STAMP}, s{S_SC}, {idx}
    """)
def stamp_dump(a, wsreg, wave_sreg, base_off):
    if not STAMP: return
    a(f"""
    s_waitcnt vmcnt(0)
    s_memtime {sr(S_SC)}
    s_waitcnt lgkmcnt(0)
    v_writelane_b32 v{V_STAMP}, s{S_SC}, 63
    s_mov_b32 s{SRD_D}, s{wsreg}
    s_and_b32 s{SRD_D+1}, s{wsreg+1}, 0xffff
    s_mov_b32 s{SRD_D+2}, {64<<20}
    s_mov_b32 s{SRD_D+3}, 0x20000
    s_lshl_b32 s{S_SC}, s2, 3
    s_add_u32 s{S_SC}, s{S_SC}, s{wave_sreg}
    s_lshl_b32 s{S_SC}, s{S_SC}, 8
    s_add_u32 s{S_SC}, s{S_SC}, {base_off}
    v_mbcnt_lo_u32_b32 v254, -1, 0
    v_mbcnt_hi_u32_b32 v254, -1, v254
    v_lshlrev_b32 v254, 2, v254
    buffer_store_dword v{V_STAMP}, v254, {sr(SRD_D,4)}, s{S_SC} offen
    """)

def acc(s, i): return V_ACC + (s * 4 + i) * 4
def xf(i, kk): return V_XF + (i * 2 + kk) * 4
def wf(s, kk): return V_WF + (s * 2 + kk) * 4
def hf(kk): return V_HF + kk * 4

def xlane_sum(a, v, t):
    a(f"""
    v_mov_b32 v{t}, v{v}
    s_nop 1
    v_permlane16_swap_b32 v{v}, v{t}
    s_nop 1
    v_add_f32 v{v}, v{v}, v{t}
    v_mov_b32 v{t}, v{v}
    s_nop 1
    v_permlane32_swap_b32 v{v}, v{t}
    s_nop 1
    v_add_f32 v{v}, v{v}, v{t}
    """)

def xlane_max(a, v, t):
    a(f"""
    v_mov_b32 v{t}, v{v}
    s_nop 1
    v_permlane16_swap_b32 v{v}, v{t}
    s_nop 1
    v_max_f32 v{v}, v{v}, v{t}
    v_mov_b32 v{t}, v{v}
    s_nop 1
    v_permlane32_swap_b32 v{v}, v{t}
    s_nop 1
    v_max_f32 v{v}, v{v}, v{t}
    """)

def reduce64(a, v, t):
    DPP = "row_mask:0xf bank_mask:0xf"
    a(f"""
    s_nop 1
    v_add_f32_dpp v{t}, v{v}, v{v} quad_perm:[1,0,3,2] {DPP}
    s_nop 1
    v_add_f32_dpp v{v}, v{t}, v{t} quad_perm:[2,3,0,1] {DPP}
    s_nop 1
    v_add_f32_dpp v{t}, v{v}, v{v} row_half_mirror {DPP}
    s_nop 1
    v_add_f32_dpp v{v}, v{t}, v{t} row_mirror {DPP}
    """)
    xlane_sum(a, v, t)

def row_stats(a, src, u, dst, t0, t1):
    for r in range(8):
        a(f"""
        v_lshlrev_b32 v{u+2*r}, 16, v{src+r}
        v_and_b32 v{u+2*r+1}, 0xffff0000, v{src+r}
        """)
    a(f"v_pk_add_f32 {vr(dst,2)}, {vr(u,2)}, {vr(u+2,2)}")
    for r in range(2, 8):
        a(f"v_pk_add_f32 {vr(dst,2)}, {vr(dst,2)}, {vr(u+2*r,2)}")
    a(f"v_add_f32 v{t0}, v{dst}, v{dst+1}")
    reduce64(a, t0, t1)
    a(f"v_mul_f32 v{t0}, 0x3a800000, v{t0}          ; mean")
    for r in range(8):
        a(f"v_pk_add_f32 {vr(u+2*r,2)}, {vr(u+2*r,2)}, {vr(t0,2)} op_sel_hi:[1,0] neg_lo:[0,1] neg_hi:[0,1]")
    a(f"v_pk_mul_f32 {vr(dst,2)}, {vr(u,2)}, {vr(u,2)}")
    for r in range(1, 8):
        a(f"v_pk_fma_f32 {vr(dst,2)}, {vr(u+2*r,2)}, {vr(u+2*r,2)}, {vr(dst,2)}")
    a(f"v_add_f32 v{dst+1}, v{dst}, v{dst+1}")
    reduce64(a, dst + 1, t1)
    a(f"""
    v_mul_f32 v{dst+1}, 0x3a800000, v{dst+1}     ; var
    v_cvt_pk_bf16_f32 v{t1}, v{t0}, v{dst+1}
    v_lshlrev_b32 v{dst}, 16, v{t1}              ; m_b
    v_and_b32 v{dst+1}, 0xffff0000, v{t1}        ; v_b
    v_add_f32 v{dst+1}, 0x3727c5ac, v{dst+1}
    v_cvt_pk_bf16_f32 v{dst+1}, v{dst+1}, v{dst+1}
    v_and_b32 v{dst+1}, 0xffff0000, v{dst+1}
    v_sqrt_f32 v{dst+1}, v{dst+1}
    s_nop 0
    v_cvt_pk_bf16_f32 v{dst+1}, v{dst+1}, v{dst+1}
    v_and_b32 v{dst+1}, 0xffff0000, v{dst+1}
    v_rcp_f32 v{dst+1}, v{dst+1}
    s_nop 0
    """)

def g1_path(a, typ, G):
    qkv = (typ == 0)
    NB = 6 if qkv else 7
    PB = 384 if qkv else 448
    CH = PB // 16
    WP = 6144 if qkv else 7168
    halo = qkv and G == 0
    if qkv:
        nB = 3
        p0 = 0 if G == 0 else 12
    else:
        nB = 4 if G == 0 else 3
        p0 = 0 if G == 0 else 16
    nIss = 4 + nB + (1 if halo else 0)
    nBiss = nB + (1 if halo else 0)
    cs_slots = [0, 1] if (qkv or G == 0) else [0, 1, 6]
    P = f"g1_{typ}{G}"
    T = V_T
    a.label(P)
    if STAMP: a(f"v_mov_b32 v{V_STAMP}, 0")
    stamp_now(a, 32); stamp_now(a, 50, True)
    if qkv:
        a(f"""
        s_mov_b32 s{SRD_W}, s{S_W}
        s_and_b32 s{SRD_W+1}, s{S_W+1}, 0xffff
        s_mov_b32 s{SRD_W+2}, {1024*6144}
        s_mov_b32 s{SRD_W+3}, 0x20000
        """)
    else:
        a(f"""
        s_mov_b32 s{SRD_W}, s{S_W1}
        s_and_b32 s{SRD_W+1}, s{S_W1+1}, 0xffff
        s_mov_b32 s{SRD_W+2}, {1024*7168}
        s_mov_b32 s{SRD_W+3}, 0x20000
        """)
    Go = 1 - G
    a(f"""
    v_lshrrev_b32 v{T}, 3, v{V_LANE}                 ; l>>3
    v_and_b32 v{T+1}, 7, v{V_LANE}
    v_xor_b32 v{T+1}, v{T+1}, v{T}                   ; chunk
    s_lshl_b32 s{S_TMP}, s{S_MT}, 8
    s_lshl_b32 s{S_TMP2}, s{S_WQ}, 5
    s_add_u32 s{S_TMP}, s{S_TMP}, s{S_TMP2}
    s_add_u32 s{S_TMP}, s{S_TMP}, {128*Go}
    v_add_u32 v{T+2}, s{S_TMP}, v{T}
    v_lshlrev_b32 v{T+2}, 11, v{T+2}
    v_lshl_add_u32 v{V_DA}, v{T+1}, 4, v{T+2}
    """)
    if halo:
        a(f"""
        s_and_b32 s{S_TMP2}, s{S_WQ}, 1
        s_lshl_b32 s{S_TMP2}, s{S_TMP2}, 3
        v_add_u32 v{T+2}, s{S_TMP2}, v{T}
        s_lshl_b32 s{S_TMP}, s{S_MT}, 8
        s_sub_u32 s{S_TMP}, s{S_TMP}, 16
        v_add_u32 v{T+2}, s{S_TMP}, v{T+2}
        v_max_i32 v{T+2}, 0, v{T+2}
        v_lshlrev_b32 v{T+2}, 11, v{T+2}
        v_lshl_add_u32 v{V_DH}, v{T+1}, 4, v{T+2}
        s_mul_i32 s{S_HD}, s{S_WQ}, {nB*1024}
        s_sub_u32 s{S_HD}, {G1_HALO - p0*1024}, s{S_HD}
        s_lshl_b32 s{S_TMP2}, s{S_TMP2}, 7           ; (wq&1)*1024
        s_add_u32 s{S_HD}, s{S_HD}, s{S_TMP2}
        """)
    magic = (65536 + CH - 1) // CH
    for q in range(64 * CH):
        assert (q * magic) >> 16 == q // CH
    a(f"s_mul_i32 s{S_TMP3}, s{S_WQ}, {nB*64}")
    for i in range(nB):
        a(f"""
        s_add_u32 s{S_TMP}, s{S_TMP3}, {(p0+i)*64}
        v_add_u32 v{T}, s{S_TMP}, v{V_LANE}          ; q
        v_mul_u32_u24 v{T+1}, {magic}, v{T}
        v_lshrrev_b32 v{T+1}, 16, v{T+1}             ; k
        v_mul_u32_u24 v{T+2}, {CH}, v{T+1}
        v_sub_u32 v{T+2}, v{T}, v{T+2}               ; c'
        """)
        if qkv:
            a(f"""
            v_bfe_u32 v{T+3}, v{T+1}, 1, 1
            v_bfe_u32 v{T+4}, v{T+1}, 3, 1
            v_lshl_or_b32 v{T+3}, v{T+4}, 1, v{T+3}  ; f
            v_lshrrev_b32 v{T+4}, 1, v{T+2}
            v_xor_b32 v{T+4}, v{T+4}, v{T+3}         ; unit (0..11)
            v_cmp_le_u32 vcc, 6, v{T+4}
            s_nop 1
            v_cndmask_b32 v{T+5}, 0, 1, vcc          ; hh
            v_mul_u32_u24 v{T+6}, 6, v{T+5}
            v_sub_u32 v{T+6}, v{T+4}, v{T+6}         ; unit % 6
            v_lshrrev_b32 v{T+7}, 1, v{T+6}          ; part
            v_and_b32 v{T+6}, 1, v{T+6}              ; half32
            v_lshlrev_b32 v{T+7}, 11, v{T+7}         ; part*2048
            v_lshl_add_u32 v{T+7}, v{T+5}, 6, v{T+7} ; + hh*64
            v_lshl_add_u32 v{T+7}, v{T+6}, 5, v{T+7} ; + half32*32
            v_and_b32 v{T+6}, 1, v{T+2}
            v_lshl_add_u32 v{T+7}, v{T+6}, 4, v{T+7} ; + (c'&1)*16
            s_lshl_b32 s{S_TMP}, s{S_JT}, 7          ; 2 jt * 64
            v_add_u32 v{T+7}, s{S_TMP}, v{T+7}
            v_mul_u32_u24 v{T+1}, {WP}, v{T+1}
            v_add_u32 v{V_DB+i}, v{T+1}, v{T+7}
            """)
        else:
            a(f"""
            v_bfe_u32 v{T+3}, v{T+1}, 3, 1
            v_lshlrev_b32 v{T+3}, 1, v{T+3}
            v_xor_b32 v{T+2}, v{T+2}, v{T+3}         ; c = c' ^ (2*bit3(k))
            v_lshlrev_b32 v{T+2}, 4, v{T+2}
            s_mul_i32 s{S_TMP}, s{S_JT}, 448
            v_add_u32 v{T+2}, s{S_TMP}, v{T+2}
            v_mul_u32_u24 v{T+1}, {WP}, v{T+1}
            v_add_u32 v{V_DB+i}, v{T+1}, v{T+2}
            """)
    a(f"""
    s_lshl_b32 s{S_KA}, s{S_MT}, {8 if FUSE else 31}
    s_and_b32 s{S_KA}, s{S_KA}, 0x7ff
    s_mul_i32 s{S_KB}, s{S_MT}, {128*WP if FUSE else 0}
    s_mov_b32 s{S_KH}, s{S_KA}
    s_lshl_b32 s{S_MA}, s{S_WQ}, 12
    s_add_u32 s{S_MA}, s{S_MA}, {Go*2*G1_ASLOT}
    s_mul_i32 s{S_MB}, s{S_WQ}, {nB*1024}
    s_add_u32 s{S_MB}, s{S_MB}, {G1_BBASE + p0*1024}
    s_mov_b32 s{S_BSL}, 0
    """)
    def dma_A():
        for i in range(4):
            a(f"""
            s_add_u32 m0, s{S_MA}, {i*1024}
            s_add_u32 s{S_TMP}, s{S_KA}, {i*16384}
            buffer_load_dwordx4 v{V_DA}, {sr(SRD_XA,4)}, s{S_TMP} offen lds
            """)
        a(f"""
        s_add_u32 s{S_KA}, s{S_KA}, 128
        s_and_b32 s{S_KA}, s{S_KA}, 0x7ff
        s_xor_b32 s{S_MA}, s{S_MA}, {G1_ASLOT}
        """)
    def dma_B():
        for i in range(nB):
            a(f"""
            s_add_u32 m0, s{S_MB}, {i*1024}
            s_nop 0
            buffer_load_dwordx4 v{V_DB+i}, {sr(SRD_W,4)}, s{S_KB} offen lds
            """)
        if halo:
            a(f"""
            s_add_u32 m0, s{S_MB}, s{S_HD}
            s_nop 0
            buffer_load_dwordx4 v{V_DH}, {sr(SRD_X,4)}, s{S_KH} offen lds
            s_add_u32 s{S_KH}, s{S_KH}, 128
            s_and_b32 s{S_KH}, s{S_KH}, 0x7ff
            """)
        a(f"""
        s_add_u32 s{S_KB}, s{S_KB}, {64*WP}
        s_cmp_eq_u32 s{S_KB}, {1024*WP}
        s_cselect_b32 s{S_KB}, 0, s{S_KB}
        s_add_u32 s{S_BSL}, s{S_BSL}, 1
        s_add_u32 s{S_MB}, s{S_MB}, {G1_BSLOT}
        s_cmp_eq_u32 s{S_BSL}, 3
        s_cselect_b32 s{S_TMP}, {3*G1_BSLOT}, 0
        s_cselect_b32 s{S_BSL}, 0, s{S_BSL}
        s_sub_u32 s{S_MB}, s{S_MB}, s{S_TMP}
        """)
    if G == 0:
        dma_B(); dma_A(); dma_B()
        pro_wait = 4 + nBiss
    else:
        dma_A(); dma_B(); dma_A(); dma_B()
        pro_wait = 4 + nBiss
    WARM = "nowarmw" not in OPTS and not FUSE
    a(f"""
    s_and_b32 s{S_WOP+1}, s{S_WOP+1}, 0xffff
    s_and_b32 s{S_W2P+1}, s{S_W2P+1}, 0xffff
    s_lshl_b32 s{S_GW}, s2, 3
    s_add_u32 s{S_GW}, s{S_GW}, s{S_WAVE}
    s_lshl_b32 s{S_GW}, s{S_GW}, 10
    v_lshlrev_b32 v{V_L16}, 4, v{V_LANE}
    s_mov_b32 s{S_WPK}, {128*WP}
    s_mov_b32 s{S_KW}, 0
    """)
    if WARM:
        a(f"""
        v_min_u32 v{T}, {2*CH - 1}, v{V_LANE}
        v_cmp_le_u32 vcc, {CH}, v{T}
        s_lshl_b32 s{S_TMP}, s{S_MT}, 4
        s_lshl_b32 s{S_TMP2}, s{S_WAVE}, 1
        v_cndmask_b32 v{T+1}, 0, 1, vcc              ; row
        s_add_u32 s{S_TMP}, s{S_TMP}, s{S_TMP2}
        v_mul_u32_u24 v{T+2}, {CH}, v{T+1}
        v_sub_u32 v{T}, v{T}, v{T+2}                 ; chunk
        v_add_u32 v{T+1}, s{S_TMP}, v{T+1}
        v_mul_u32_u24 v{T+1}, {WP}, v{T+1}
        """)
        if qkv:
            a(f"""
            v_lshrrev_b32 v{T+2}, 3, v{T}
            v_lshl_add_u32 v{T+1}, v{T+2}, 11, v{T+1}
            v_and_b32 v{T}, 7, v{T}
            s_lshl_b32 s{S_TMP}, s{S_JT}, 7
            """)
        else:
            a(f"s_mul_i32 s{S_TMP}, s{S_JT}, 448")
        a(f"""
        v_lshl_add_u32 v{T+1}, v{T}, 4, v{T+1}
        v_add_u32 v{V_WV}, s{S_TMP}, v{T+1}
        s_mov_b32 s{S_KW}, {256*WP}
        buffer_load_dwordx4 {vr(V_WD)}, v{V_WV}, {sr(SRD_W,4)}, s{S_KW} offen
        s_mov_b32 s{S_KW}, {384*WP}
        buffer_load_dwordx4 {vr(V_WD)}, v{V_WV}, {sr(SRD_W,4)}, s{S_KW} offen
        s_mov_b32 s{S_KW}, {512*WP}
        s_mov_b32 s{SRD_WW}, s{SRD_W}
        s_mov_b32 s{SRD_WW+1}, s{SRD_W+1}
        s_mov_b32 s{SRD_WW+2}, s{SRD_W+2}
        s_mov_b32 s{SRD_WW+3}, 0x20000
        s_and_b32 s{S_WOP+1}, s{S_WOP+1}, 0xffff
        s_and_b32 s{S_W2P+1}, s{S_W2P+1}, 0xffff
        s_mov_b32 s{S_WPK}, {128*WP}
        s_lshl_b32 s{S_GW}, s2, 3
        s_add_u32 s{S_GW}, s{S_GW}, s{S_WAVE}
        s_lshl_b32 s{S_GW}, s{S_GW}, 10
        v_lshlrev_b32 v{V_L16}, 4, v{V_LANE}
        """)
        pro_wait += 2
        nIss += 1
    NCOL = 16 * 2 * NB
    VCS = 216 - 4 * len(cs_slots)
    if FUSE:
        a(f"""
        s_add_u32 s{SRD_ST}, s{S_WS}, {ST_OFF}
        s_addc_u32 s{SRD_ST+1}, s{S_WS+1}, 0
        s_and_b32 s{SRD_ST+1}, s{SRD_ST+1}, 0xffff
        s_mov_b32 s{SRD_ST+2}, {65536 + 262144}
        s_mov_b32 s{SRD_ST+3}, 0x20000
        s_mov_b32 s{SRD_DBG}, s{S_DBGP}
        s_and_b32 s{SRD_DBG+1}, s{S_DBGP+1}, 0xffff
        s_mov_b32 s{SRD_DBG+2}, 256
        s_mov_b32 s{SRD_DBG+3}, 0x20000
        s_add_u32 s{S_NTI}, s{S_JT}, {16*typ}
        s_mov_b32 s{S_EV}, {(((1<<2) | (1<<5) | (1<<12) | (1<<14)) if G == 0 else (1<<2)) | (1<<15) | (0 if G == 0 else (3<<13))}
        """)
        if G == 1:
            a(f"""
            s_lshl_b32 s{S_TMP}, s{S_MT}, 8
            s_lshl_b32 s{S_TMP2}, s{S_NTI}, 3
            s_add_u32 s{S_TMP}, s{S_TMP}, s{S_TMP2}
            s_lshl_b32 s{S_TMP2}, s{S_WQ}, 1
            s_add_u32 s{S_KW}, s{S_TMP}, s{S_TMP2}
            s_lshl_b32 s{S_TMP}, s{S_KW}, 11
            """)
            for i in range(4):
                a(f"buffer_load_dwordx4 {vr(V_XF+4*i)}, v{V_L16}, {sr(SRD_X,4)}, s{S_TMP} offen offset:{1024*i}")
            pro_wait += 4
    if qkv:
        if G == 0:
            a(f"""
            s_mul_i32 s{S_TMP}, s{S_NW}, 6
            s_lshl_b32 s{S_TMP2}, s{S_MW}, 1
            s_add_u32 s{S_BLK+0}, s{S_TMP}, s{S_TMP2}
            s_add_u32 s{S_BLK+0}, s{S_BLK+0}, 2
            s_add_u32 s{S_BLK+1}, s{S_BLK+0}, 1
            s_mov_b32 s{S_BLK+2}, s{S_TMP}
            s_add_u32 s{S_BLK+3}, s{S_TMP}, 1
            s_sub_u32 s{S_BLK+4}, s{S_TMP}, s{S_TMP2}
            s_add_u32 s{S_BLK+4}, s{S_BLK+4}, 4
            s_add_u32 s{S_BLK+5}, s{S_BLK+4}, 1
            """)
        else:
            a(f"s_mul_i32 s{S_TMP}, s{S_NW}, 6")
            for s in range(6):
                a(f"s_add_u32 s{S_BLK+s}, s{S_TMP}, {s}")
    else:
        a(f"s_lshl_b32 s{S_TMP2}, s{S_NW}, 3")
        for ps in range(3):
            a(f"""
            s_add_u32 s{S_TMP}, s{S_MW}, {(ps + 2*G) % 3}
            s_cmp_ge_u32 s{S_TMP}, 3
            s_cselect_b32 s{S_TMP3}, 3, 0
            s_sub_u32 s{S_TMP}, s{S_TMP}, s{S_TMP3}
            s_lshl_b32 s{S_TMP}, s{S_TMP}, 1
            s_add_u32 s{S_BLK+2*ps}, s{S_TMP}, s{S_TMP2}
            s_add_u32 s{S_BLK+2*ps+1}, s{S_BLK+2*ps}, 1
            """)
        a(f"s_add_u32 s{S_BLK+6}, s{S_NW}, 6")
    a(f"""
    v_and_b32 v{T}, 7, v{V_TT}
    v_xor_b32 v{T}, v{V_GG}, v{T}                    ; g ^ (t&7)
    v_lshlrev_b32 v{T}, 4, v{T}
    v_lshl_add_u32 v{T}, v{V_TT}, 7, v{T}
    s_lshl_b32 s{S_TMP}, s{S_MW}, 13
    s_add_u32 s{S_TMP}, s{S_TMP}, {G*2*G1_ASLOT}
    s_lshl_b32 s{S_TMP2}, s{S_NW}, 12
    s_add_u32 s{S_TMP3}, s{S_TMP}, s{S_TMP2}
    v_add_u32 v{V_RA+0}, s{S_TMP3}, v{T}
    v_xor_b32 v{V_RA+1}, 64, v{V_RA+0}
    s_xor_b32 s{S_TMP2}, s{S_TMP2}, 4096
    s_add_u32 s{S_TMP3}, s{S_TMP}, s{S_TMP2}         ; sp=1
    v_add_u32 v{V_RA+2}, s{S_TMP3}, v{T}
    v_xor_b32 v{V_RA+3}, 64, v{V_RA+2}
    """)
    if halo:
        a(f"""
        v_add_u32 v{V_RH+0}, {G1_BBASE + G1_HALO}, v{T}
        v_xor_b32 v{V_RH+1}, 64, v{V_RH+0}
        """)
    a(f"""
    v_lshrrev_b32 v{T}, 2, v{V_TT}                   ; r
    v_lshl_add_u32 v{T+1}, v{V_GG}, 3, v{T}          ; 8g + r
    v_mul_u32_u24 v{T+1}, {PB}, v{T+1}
    v_and_b32 v{T+2}, 3, v{V_LANE}
    v_lshl_add_u32 v{T+1}, v{T+2}, 3, v{T+1}         ; + c*8
    v_add_u32 v{T+1}, {G1_BBASE}, v{T+1}
    v_and_b32 v{T+2}, 1, v{V_GG}                     ; g&1
    """)
    if qkv:
        a(f"""
        v_lshrrev_b32 v{T+3}, 1, v{T}                ; bit1(r)
        v_lshl_or_b32 v{T+2}, v{T+2}, 1, v{T+3}      ; f
        """)
    for s in range(NB):
        a(f"""
        v_xor_b32 v{T+3}, s{S_BLK+s}, v{T+2}
        v_lshl_add_u32 v{V_RB+s}, v{T+3}, 5, v{T+1}
        """)
    nacc = (NB * 4) * 4
    for r in range(V_ACC, V_ACC + nacc):
        a(f"v_mov_b32 v{r}, 0")
    if halo:
        for r in range(V_HACC, V_HACC + 8):
            a(f"v_mov_b32 v{r}, 0")
    if FUSE:
        for r in range(4 * len(cs_slots)):
            a(f"v_mov_b32 v{VCS+r}, 0")
        for r in range(4):
            a(f"v_mov_b32 v{V_ONES+r}, 0x3f803f80")
    a(f"""
    s_mov_b32 s{S_BSC}, {G1_BSLOT}
    s_mov_b32 s{S_J}, 0
    s_mov_b32 s{S_RSL}, 0
    s_waitcnt vmcnt({pro_wait})
    s_barrier
    """)
    stamp_now(a, 33)
    if G == 1:
        if FUSE:
            a("s_waitcnt vmcnt(0)")
            row_stats(a, V_XF, V_WF, V_WF + 16, V_WF + 20, V_WF + 21)
            row_stats(a, V_XF + 8, V_WF, V_WF + 18, V_WF + 20, V_WF + 21)
            a(f"""
            v_lshlrev_b32 v{V_WF+20}, 24, v{V_LANE}
            s_lshl_b32 s{S_TMP}, s{S_KW}, 3
            buffer_store_dwordx4 {vr(V_WF+16)}, v{V_WF+20}, {sr(SRD_ST,4)}, s{S_TMP} offen sc0 sc1
            """)
        a("s_barrier")
    if STAMP: a(f"s_mov_b32 s{S_SB}, 0")

    def rd_x(i):
        sp, e = i >> 1, i & 1
        for kk in range(2):
            a(f"ds_read_b128 {vr(xf(i,kk))}, v{V_RA+sp*2+kk} offset:{e*2048}")
    def rd_w(s):
        for kk in range(2):
            for h in range(2):
                a(f"ds_read_b64_tr_b16 {vr(wf(s,kk)+2*h,2)}, v{V_RB+s} offset:{(32*kk+4*h)*PB}")
    def dma_list():
        L = []
        for i in range(4):
            L.append(f"""
            s_add_u32 m0, s{S_MAE}, {i*1024}
            s_add_u32 s{S_TMP}, s{S_KA}, {i*16384}
            buffer_load_dwordx4 v{V_DA}, {sr(SRD_XA,4)}, s{S_TMP} offen lds
            """)
        for i in range(nB):
            L.append(f"""
            s_add_u32 m0, s{S_MBE}, {i*1024}
            s_nop 0
            buffer_load_dwordx4 v{V_DB+i}, {sr(SRD_W,4)}, s{S_KB} offen lds
            """)
        if halo:
            L.append(f"""
            s_add_u32 m0, s{S_MBE}, s{S_HD}
            s_nop 0
            buffer_load_dwordx4 v{V_DH}, {sr(SRD_X,4)}, s{S_KH} offen lds
            """)
        if WARM:
            L.append(f"buffer_load_dwordx4 {vr(V_WD)}, v{V_WV}, {sr(SRD_WW,4)}, s{S_KW} offen")
        return L
    a(f"""
    s_mov_b32 s{S_MAE}, s{S_MA}
    s_mov_b32 s{S_MBE}, s{S_MB}
    """)
    reads = []
    for i in range(4):
        sp, e = i >> 1, i & 1
        for kk in range(2):
            reads.append((kk, f"ds_read_b128 {vr(xf(i,kk))}, v{V_RA+sp*2+kk} offset:{e*2048}"))
    if halo:
        for kk in range(2):
            reads.append((kk, f"ds_read_b128 {vr(hf(kk))}, v{V_RH+kk}"))
    for s_ in range(NB):
        for kk in range(2):
            for h in range(2):
                reads.append((kk, f"ds_read_b64_tr_b16 {vr(wf(s_,kk)+2*h,2)}, v{V_RB+s_} offset:{(32*kk+4*h)*PB}"))
    reads = [r for k_, r in reads if k_ == 0] + [r for k_, r in reads if k_ == 1]

    bk = Collect()
    bk(f"""
    s_add_u32 s{S_KA}, s{S_KA}, 128
    s_and_b32 s{S_KA}, s{S_KA}, 0x7ff
    s_xor_b32 s{S_MA}, s{S_MA}, {G1_ASLOT}
    s_cmp_ge_u32 s{S_J}, {14 if G == 0 else 13}
    s_cselect_b32 s{SRD_XA+2}, 0, s{SRD_XA+2}
    s_cselect_b32 s{S_MAE}, {LDS_DUMP}, s{S_MA}
    s_add_u32 s{S_KH}, s{S_KH}, 128
    s_and_b32 s{S_KH}, s{S_KH}, 0x7ff
    s_add_u32 s{S_KW}, s{S_KW}, s{S_WPK}
    s_add_u32 s{S_KB}, s{S_KB}, {64*WP}
    s_cmp_eq_u32 s{S_KB}, {1024*WP}
    s_cselect_b32 s{S_KB}, 0, s{S_KB}
    s_add_u32 s{S_BSL}, s{S_BSL}, 1
    s_add_u32 s{S_MB}, s{S_MB}, {G1_BSLOT}
    s_cmp_eq_u32 s{S_BSL}, 3
    s_cselect_b32 s{S_TMP}, {3*G1_BSLOT}, 0
    s_cselect_b32 s{S_BSL}, 0, s{S_BSL}
    s_sub_u32 s{S_MB}, s{S_MB}, s{S_TMP}
    s_cmp_ge_u32 s{S_J}, 13
    s_cselect_b32 s{S_MBE}, {LDS_DUMP}, s{S_MB}
    s_cselect_b32 s{SRD_W+2}, 0, s{SRD_W+2}
    s_cselect_b32 s{SRD_X+2}, 0, s{SRD_X+2}
    s_add_u32 s{S_RSL}, s{S_RSL}, 1
    s_cmp_eq_u32 s{S_RSL}, 3
    s_cselect_b32 s{S_BD}, {(-2*G1_BSLOT) & 0xffffffff}, s{S_BSC}
    s_cselect_b32 s{S_RSL}, 0, s{S_RSL}
    """)
    for r in range(4):
        bk(f"v_xor_b32 v{V_RA+r}, {G1_ASLOT}, v{V_RA+r}")
    for s_ in range(NB):
        bk(f"v_add_u32 v{V_RB+s_}, s{S_BD}, v{V_RB+s_}")
    if halo:
        for kk in range(2):
            bk(f"v_add_u32 v{V_RH+kk}, s{S_BD}, v{V_RH+kk}")
    BKL = "bkL" in OPTS
    a.raw(".p2align 6")
    a.label(P + "_loop")
    if STAMP: a(f"s_memtime {sr(S_SA)}")
    dl = dma_list()
    step = max(3, len(reads) // len(dl))
    order = "rdfirst" if "rdfirst" in OPTS else "mix"
    if order == "rdfirst":
        for r in reads: a(r)
        for d in dl: a(d)
    else:
        di = 0
        for n_, r in enumerate(reads):
            a(r)
            if (n_ % step) == 1 and di < len(dl):
                a(dl[di]); di += 1
        while di < len(dl):
            a(dl[di]); di += 1
    if BKL:
        for l_ in bk.L: a(l_)
    if STAMP: a(f"s_memtime {sr(100)}")
    if FUSE:
        a(f"""
        s_bitcmp1_b32 s{S_EV}, s{S_J}
        s_cbranch_scc1 {P}_event
        """)
    a(f"s_waitcnt vmcnt({0 if 'strictwait' in OPTS else nIss}) lgkmcnt(0)")
    a.label(P + "_afterwait")
    if STAMP:
        a(f"""
        s_lshl_b32 s{S_SI}, s{S_J}, 1
        s_mov_b32 m0, s{S_SI}
        s_nop 3
        v_writelane_b32 v{V_STAMP}, s{S_SA}, m0
        s_add_u32 s{S_SI}, s{S_SI}, 63
        s_and_b32 m0, s{S_SI}, 63
        s_nop 3
        v_writelane_b32 v{V_STAMP}, s{S_SB}, m0
        s_memtime {sr(S_SC)}
        s_cmp_eq_u32 s{S_J}, 8
        s_cbranch_scc0 {P}_nost
        s_waitcnt lgkmcnt(0)
        v_writelane_b32 v{V_STAMP}, s{S_SA}, 40
        v_writelane_b32 v{V_STAMP}, s100, 41
        v_writelane_b32 v{V_STAMP}, s{S_SC}, 42
        """)
        a.label(P + "_nost")
    a("s_barrier")
    if STAMP: a(f"s_memtime {sr(S_SB)}")
    a("s_setprio 1")
    mf = []
    for kk in range(2):
        for s_ in range(NB):
            for i in range(4):
                mf.append(f"v_mfma_f32_16x16x32_bf16 {vr(acc(s_,i))}, {vr(wf(s_,kk))}, {vr(xf(i,kk))}, {vr(acc(s_,i))}")
        if halo:
            for s_ in range(2):
                mf.append(f"v_mfma_f32_16x16x32_bf16 {vr(V_HACC+4*s_)}, {vr(wf(s_,kk))}, {vr(hf(kk))}, {vr(V_HACC+4*s_)}")
    interleave(a, mf, [] if BKL else bk.L, start=2, per=1)
    if FUSE:
        a(f"""
        s_cmp_lt_u32 s{S_J}, 2
        s_cbranch_scc0 {P}_nocs
        """)
        for kk in range(2):
            for ci, s_ in enumerate(cs_slots):
                a(f"v_mfma_f32_16x16x32_bf16 {vr(VCS+4*ci)}, {vr(wf(s_,kk))}, {vr(V_ONES)}, {vr(VCS+4*ci)}")
        a.label(P + "_nocs")
    a(f"""
    s_setprio 0
    s_add_u32 s{S_J}, s{S_J}, 1
    s_cmp_lt_u32 s{S_J}, 16
    """)
    if G == 0:
        a(f"""
        s_barrier
        s_cbranch_scc1 {P}_loop
        s_branch {P}_post
        """)
    else:
        a(f"""
        s_cbranch_scc0 {P}_post
        s_barrier
        s_branch {P}_loop
        """)
    if FUSE:
        a.label(P + "_event")
        def warm2():
            a(f"""
            s_mov_b32 s{SRD_ST}, s{S_WOP}
            s_mov_b32 s{SRD_ST+1}, s{S_WOP+1}
            s_mov_b32 s{SRD_ST+2}, {1024*2048}
            s_mov_b32 s{SRD_DBG}, s{S_W2P}
            s_mov_b32 s{SRD_DBG+1}, s{S_W2P+1}
            s_mov_b32 s{SRD_DBG+2}, {3584*2048}
            s_mov_b32 s{SRD_ST+3}, 0x20000
            s_mov_b32 s{SRD_DBG+3}, 0x20000
            s_lshl_b32 s{S_TMP}, s{S_GW}, 2
            buffer_load_dwordx4 {vr(212)}, v{V_L16}, {sr(SRD_ST,4)}, s{S_GW} offen
            """)
            for i in range(4):
                a(f"buffer_load_dwordx4 {vr(212)}, v{V_L16}, {sr(SRD_DBG,4)}, s{S_TMP} offen offset:{i*1024}")

        a(f"""
        s_cmp_eq_u32 s{S_J}, 15
        s_cbranch_scc0 {P}_evn15
        s_waitcnt vmcnt({nIss + 5 if G == 0 else 2 * nIss + 5}) lgkmcnt(0)
        s_branch {P}_afterwait
        """)
        a.label(P + "_evn15")
        if G == 1:
            a(f"""
            s_cmp_eq_u32 s{S_J}, 2
            s_cbranch_scc1 {P}_ev2
            s_cmp_eq_u32 s{S_J}, 14
            s_cbranch_scc1 {P}_evw
            """)
            warm2()
            a.label(P + "_evw")
            a(f"""
            s_waitcnt vmcnt({nIss + 5}) lgkmcnt(0)
            s_branch {P}_afterwait
            """)
        a.label(P + "_ev2")
        if G == 0:
            a(f"""
            s_cmp_eq_u32 s{S_J}, 2
            s_cbranch_scc0 {P}_ev5
            """)
        a(f"""
        v_lshlrev_b32 v{T}, 24, v{V_TT}
        v_lshl_add_u32 v{T}, v{V_GG}, 4, v{T}
        s_lshl_b32 s{S_TMP2}, s{S_NTI}, 3
        s_add_u32 s{S_TMP2}, s{S_TMP2}, s{S_MT}
        s_lshl_b32 s{S_TMP2}, s{S_TMP2}, 10
        s_add_u32 s{S_TMP2}, s{S_TMP2}, 65536
        """)
        for ci, s_ in enumerate(cs_slots):
            a(f"""
            s_lshl_b32 s{S_TMP}, s{S_BLK+s_}, 6
            s_add_u32 s{S_TMP}, s{S_TMP}, s{S_TMP2}
            buffer_store_dwordx4 {vr(VCS+4*ci)}, v{T}, {sr(SRD_ST,4)}, s{S_TMP} offen sc0 sc1
            """)
        a(f"""
        s_waitcnt vmcnt({nIss + len(cs_slots)}) lgkmcnt(0)
        s_branch {P}_afterwait
        """)
        if G == 0:
            a.label(P + "_ev5")
            a(f"""
            s_cmp_eq_u32 s{S_J}, 14
            s_cbranch_scc1 {P}_ev14
            s_sub_u32 s{S_TMP}, s{S_MT}, 1
            s_max_i32 s{S_TMP}, s{S_TMP}, 0
            s_lshl_b32 s{S_TMP}, s{S_TMP}, 2
            s_lshl_b32 s{S_TMP2}, s{S_NTI}, 2
            s_add_u32 s{S_TMP2}, s{S_TMP2}, 32
            s_lshl_b32 s{S_TMP3}, s{S_MT}, 2
            v_mov_b32 v{T}, 0x1000
            v_writelane_b32 v{T}, s{S_TMP3}, 0
            v_writelane_b32 v{T}, s{S_TMP2}, 1
            s_cmp_lg_u32 s{S_WAVE}, 0
            s_cselect_b32 s{S_TMP2}, 0x1000, 0
            s_cmp_eq_u32 s{S_J}, 5
            s_cbranch_scc0 {P}_ev12
            v_mov_b32 v{T+1}, 1
            buffer_atomic_add v{T+1}, v{T}, {sr(SRD_DBG,4)}, s{S_TMP2} offen sc1
            s_waitcnt vmcnt({nIss + 1}) lgkmcnt(0)
            s_branch {P}_afterwait
            """)
            a.label(P + "_ev12")
            a(f"""
            v_writelane_b32 v{T}, s{S_TMP}, 2
            s_nop 1
            buffer_load_dword v{V_CHK}, v{T}, {sr(SRD_DBG,4)}, s{S_TMP2} offen sc0 sc1
            s_waitcnt vmcnt({nIss + 1}) lgkmcnt(0)
            s_branch {P}_afterwait
            """)
            a.label(P + "_ev14")
            a(f"""
            s_cmp_eq_u32 s{S_WQ}, 0
            s_cbranch_scc0 {P}_ev14b
            s_lshl_b32 s{S_TMP}, s{S_MT}, 11
            s_sub_u32 s{S_TMP}, s{S_TMP}, 128
            v_add_u32 v{T}, s{S_TMP}, v{V_L16}
            v_max_i32 v{T}, 0, v{T}
            s_add_u32 s{S_TMP}, s{S_TMP}, 1024
            v_add_u32 v{T+1}, s{S_TMP}, v{V_L16}
            s_mov_b32 m0, {G1_STAT}
            s_nop 0
            buffer_load_dwordx4 v{T}, {sr(SRD_ST,4)}, 0 offen sc0 sc1 lds
            s_mov_b32 m0, {G1_STAT + 1024}
            s_nop 0
            buffer_load_dwordx4 v{T+1}, {sr(SRD_ST,4)}, 0 offen sc0 sc1 lds
            buffer_load_dwordx4 v{T+1}, {sr(SRD_ST,4)}, 0 offen offset:1024 sc0 sc1 lds
            s_branch {P}_ev14c
            """)
            a.label(P + "_ev14b")
            a(f"""
            s_mul_i32 s{S_TMP}, s{S_WQ}, 3072
            s_sub_u32 s{S_TMP}, s{S_TMP}, 3072
            s_add_u32 m0, s{S_TMP}, {G1_CSP}
            s_lshl_b32 s{S_TMP2}, s{S_NTI}, 13
            s_add_u32 s{S_TMP2}, s{S_TMP2}, s{S_TMP}
            s_add_u32 s{S_TMP2}, s{S_TMP2}, 65536
            buffer_load_dwordx4 v{V_L16}, {sr(SRD_ST,4)}, s{S_TMP2} offen sc0 sc1 lds
            buffer_load_dwordx4 v{V_L16}, {sr(SRD_ST,4)}, s{S_TMP2} offen offset:1024 sc0 sc1 lds
            s_cmp_eq_u32 s{S_WQ}, 3
            s_cselect_b32 s{S_TMP}, {LDS_DUMP}, m0
            s_mov_b32 m0, s{S_TMP}
            s_nop 0
            buffer_load_dwordx4 v{V_L16}, {sr(SRD_ST,4)}, s{S_TMP2} offen offset:2048 sc0 sc1 lds
            """)
            a.label(P + "_ev14c")
            warm2()
            a(f"""
            s_waitcnt vmcnt({nIss + 8}) lgkmcnt(0)
            s_branch {P}_afterwait
            """)
    a.label(P + "_post")
    if STAMP:
        a(f"""
        s_waitcnt lgkmcnt(0)
        v_writelane_b32 v{V_STAMP}, s{S_SB}, 31
        """)
    stamp_now(a, 34)
    if "nowarm2" not in OPTS and (not FUSE or "warmpost" in OPTS):
        a(f"""
        s_mov_b32 s{SRD_ST}, s{S_WOP}
        s_mov_b32 s{SRD_ST+1}, s{S_WOP+1}
        s_mov_b32 s{SRD_ST+2}, {1024*2048}
        s_mov_b32 s{SRD_DBG}, s{S_W2P}
        s_mov_b32 s{SRD_DBG+1}, s{S_W2P+1}
        s_mov_b32 s{SRD_DBG+2}, {3584*2048}
        s_mov_b32 s{SRD_ST+3}, 0x20000
        s_mov_b32 s{SRD_DBG+3}, 0x20000
        s_lshl_b32 s{S_TMP}, s{S_GW}, 2
        buffer_load_dwordx4 {vr(V_HF)}, v{V_L16}, {sr(SRD_ST,4)}, s{S_GW} offen
        """)
        for i in range(4):
            a(f"buffer_load_dwordx4 {vr(V_HF)}, v{V_L16}, {sr(SRD_DBG,4)}, s{S_TMP} offen offset:{i*1024}")
    if FUSE:
        if G == 0:
            a(f"""
            v_mov_b32 v{T}, 0
            v_writelane_b32 v{T}, 32, 0
            v_writelane_b32 v{T}, 8, 1
            v_writelane_b32 v{T}, 32, 2
            s_nop 1
            v_cmp_ne_u32 vcc, v{T}, v{V_CHK}
            s_nop 3
            s_and_b32 s{S_TMP}, vcc_lo, 7
            """)
            if "forceslow" in OPTS: a(f"s_mov_b32 s{S_TMP}, 1")
            a(f"""
            v_mov_b32 v{T}, {G1_VERD}
            v_mov_b32 v{T+1}, s{S_TMP}
            s_cmp_eq_u32 s{S_WAVE}, 0
            s_cbranch_scc0 {P}_red
            ds_write_b32 v{T}, v{T+1}
            """)
        a.label(P + "_red")
        if G == 0:
            a(f"""
            s_lshl_b32 s{S_TMP}, s{S_WQ}, 8
            v_lshl_add_u32 v{T}, v{V_LANE}, 2, s{S_TMP}  ; thread * 4
            v_add_u32 v{T+1}, {G1_CSP}, v{T}
            """)
            for m in range(8):
                a(f"ds_read_b32 v{V_XF+m}, v{T+1} offset:{1024*m}")
            a(f"""
            v_min_u32 v{T}, {4*NCOL - 4}, v{T}
            v_add_u32 v{T}, {G1_CS}, v{T}
            v_cmp_gt_u32 vcc, {4*NCOL + G1_CSP}, v{T+1}
            s_waitcnt lgkmcnt(0)
            """)
            for m in range(1, 8):
                a(f"v_add_f32 v{V_XF}, v{V_XF}, v{V_XF+m}")
            a(f"""
            s_and_saveexec_b64 {sr(S_TMP2)}, vcc
            ds_write_b32 v{T}, v{V_XF}
            s_mov_b64 exec, -1
            s_waitcnt lgkmcnt(0)
            """)
        a(f"""
        s_barrier
        v_mov_b32 v{T}, {G1_VERD}
        ds_read_b32 v{T+1}, v{T}
        s_waitcnt lgkmcnt(0)
        v_readfirstlane_b32 s{S_TMP}, v{T+1}
        s_nop 3
        s_cmp_eq_u32 s{S_TMP}, 0
        s_cbranch_scc1 {P}_fast
        s_barrier
        s_mov_b32 s{SRD_X+2}, {2048*2048}
        s_mov_b32 s{SRD_W+2}, {1024*WP}
        s_mov_b32 s{S_J}, s{S_WAVE}
        """)
        a.label(P + "_slow1")
        a(f"""
        s_lshl_b32 s{S_TMP}, s{S_MT}, 8
        s_add_u32 s{S_TMP}, s{S_TMP}, s{S_J}
        s_sub_u32 s{S_TMP}, s{S_TMP}, 16
        s_max_i32 s{S_TMP}, s{S_TMP}, 0
        s_lshl_b32 s{S_TMP}, s{S_TMP}, 11
        buffer_load_dwordx4 {vr(V_XF)}, v{V_L16}, {sr(SRD_X,4)}, s{S_TMP} offen
        buffer_load_dwordx4 {vr(V_XF+4)}, v{V_L16}, {sr(SRD_X,4)}, s{S_TMP} offen offset:1024
        s_waitcnt vmcnt(0)
        """)
        row_stats(a, V_XF, V_WF, V_WF + 16, V_WF + 20, V_WF + 21)
        a(f"""
        s_lshl_b32 s{S_TMP}, s{S_J}, 3
        s_add_u32 s{S_TMP}, s{S_TMP}, {G1_STAT}
        v_mov_b32 v{T}, s{S_TMP}
        ds_write_b64 v{T}, {vr(V_WF+16,2)}
        s_add_u32 s{S_J}, s{S_J}, 8
        s_cmp_lt_u32 s{S_J}, 272
        s_cbranch_scc1 {P}_slow1
        v_min_u32 v{T}, {CH-1}, v{V_LANE}
        """)
        if qkv:
            a(f"""
            v_cmp_le_u32 vcc, 12, v{T}
            s_nop 1
            v_cndmask_b32 v{T+1}, 0, 1, vcc              ; hh
            v_mul_u32_u24 v{T+2}, 12, v{T+1}
            v_sub_u32 v{T+2}, v{T}, v{T+2}
            v_lshrrev_b32 v{T+3}, 2, v{T+2}              ; part
            v_and_b32 v{T+2}, 3, v{T+2}
            v_lshlrev_b32 v{T+3}, 11, v{T+3}
            v_lshl_add_u32 v{T+3}, v{T+1}, 6, v{T+3}
            v_lshl_add_u32 v{T+3}, v{T+2}, 4, v{T+3}
            s_lshl_b32 s{S_TMP}, s{S_JT}, 7
            v_add_u32 v{T+3}, s{S_TMP}, v{T+3}
            """)
        else:
            a(f"""
            s_mul_i32 s{S_TMP}, s{S_JT}, 448
            v_lshl_add_u32 v{T+3}, v{T}, 4, s{S_TMP}
            """)
        for r in range(8):
            a(f"v_mov_b32 v{V_WF+r}, 0")
        a(f"""
        s_mul_i32 s{S_TMP}, s{S_WAVE}, {128*WP}
        s_mov_b32 s{S_J}, 0
        """)
        a.label(P + "_slow2")
        a(f"""
        buffer_load_dwordx4 {vr(V_XF)}, v{T+3}, {sr(SRD_W,4)}, s{S_TMP} offen
        s_add_u32 s{S_TMP}, s{S_TMP}, {WP}
        s_add_u32 s{S_J}, s{S_J}, 1
        s_waitcnt vmcnt(0)
        """)
        for r in range(4):
            a(f"""
            v_lshlrev_b32 v{V_XF+4}, 16, v{V_XF+r}
            v_and_b32 v{V_XF+5}, 0xffff0000, v{V_XF+r}
            v_pk_add_f32 {vr(V_WF+2*r,2)}, {vr(V_WF+2*r,2)}, {vr(V_XF+4,2)}
            """)
        a(f"""
        s_cmp_lt_u32 s{S_J}, 128
        s_cbranch_scc1 {P}_slow2
        s_lshl_b32 s{S_TMP}, s{S_WAVE}, 10
        s_add_u32 s{S_TMP}, s{S_TMP}, {G1_CSP}
        v_lshl_add_u32 v{T}, v{T}, 5, s{S_TMP}
        ds_write_b128 v{T}, {vr(V_WF)}
        ds_write_b128 v{T}, {vr(V_WF+4)} offset:16
        v_mov_b32 v{T}, {G1_VERD}
        v_mov_b32 v{T+1}, 0
        ds_write_b32 v{T}, v{T+1}
        s_waitcnt lgkmcnt(0)
        s_barrier
        s_branch {P}_red
        """)
        a.label(P + "_fast")
    if "slabwarm" in OPTS:
        a(f"""
        s_add_u32 s{SRD_WW}, s{S_WS}, {64 << 20}
        s_addc_u32 s{SRD_WW+1}, s{S_WS+1}, 0
        s_and_b32 s{SRD_WW+1}, s{SRD_WW+1}, 0xffff
        s_mov_b32 s{SRD_WW+2}, {16 << 20}
        s_and_b32 s{S_TMP}, s2, 3
        s_lshr_b32 s{S_TMP2}, s{S_WAVE}, 1
        s_cmp_eq_u32 s{S_TMP}, s{S_TMP2}
        s_cselect_b32 s{SRD_WW+2}, 0, s{SRD_WW+2}
        s_lshl_b32 s{S_TMP}, s{S_GW}, 3
        s_add_u32 s{S_TMP2}, s{S_TMP}, 4096
        """)
        for i in range(8):
            a(f"buffer_load_dwordx4 {vr(V_WD)}, v{V_L16}, {sr(SRD_WW,4)}, s{S_TMP if i < 4 else S_TMP2} offen offset:{(i%4)*1024}")
    stamp_now(a, 35)
    for i in range(4):
        a(f"""
        s_lshl_b32 s{S_TMP}, s{S_MW}, 6
        s_lshl_b32 s{S_TMP2}, s{S_NW}, 5
        s_xor_b32 s{S_TMP2}, s{S_TMP2}, {16*i}
        s_add_u32 s{S_TMP}, s{S_TMP}, s{S_TMP2}
        s_add_u32 s{S_TB+i}, s{S_TMP}, {128*G}
        """)
    V_ST = V_XF; V_CSV = V_WF
    if FUSE:
        for i in range(4):
            a(f"""
            s_add_u32 s{S_TMP}, s{S_TB+i}, {16 + G1_STAT//8}
            v_add_u32 v{T+4}, s{S_TMP}, v{V_TT}
            v_lshlrev_b32 v{T+4}, 3, v{T+4}
            ds_read_b64 {vr(V_ST+2*i,2)}, v{T+4}
            """)
        if halo:
            a(f"""
            v_lshlrev_b32 v{T+4}, 3, v{V_TT}
            v_add_u32 v{T+4}, {G1_STAT}, v{T+4}
            ds_read_b64 {vr(V_ST+8,2)}, v{T+4}
            """)
        for s_ in range(NB):
            a(f"""
            s_lshl_b32 s{S_TMP}, s{S_BLK+s_}, 6
            s_add_u32 s{S_TMP}, s{S_TMP}, {G1_CS}
            v_lshl_add_u32 v{T+4}, v{V_GG}, 4, s{S_TMP}
            ds_read_b128 {vr(V_CSV+4*s_)}, v{T+4}
            """)
        a("s_waitcnt lgkmcnt(0)")
    def fixup(ab, s, st, o, relu):
        c = V_CSV + 4 * s
        if FUSE:
            a(f"""
            v_pk_fma_f32 {vr(ab,2)}, {vr(c,2)}, {vr(st,2)}, {vr(ab,2)} op_sel_hi:[1,0,1] neg_lo:[0,1,0] neg_hi:[0,1,0]
            v_pk_fma_f32 {vr(ab+2,2)}, {vr(c+2,2)}, {vr(st,2)}, {vr(ab+2,2)} op_sel_hi:[1,0,1] neg_lo:[0,1,0] neg_hi:[0,1,0]
            v_pk_mul_f32 {vr(ab,2)}, {vr(ab,2)}, {vr(st,2)} op_sel:[0,1] op_sel_hi:[1,1]
            v_pk_mul_f32 {vr(ab+2,2)}, {vr(ab+2,2)}, {vr(st,2)} op_sel:[0,1] op_sel_hi:[1,1]
            """)
        a(f"""
        v_cvt_pk_bf16_f32 v{o}, v{ab}, v{ab+1}
        v_cvt_pk_bf16_f32 v{o+1}, v{ab+2}, v{ab+3}
        """)
        if relu:
            a(f"""
            v_pk_max_i16 v{o}, v{o}, 0
            v_pk_max_i16 v{o+1}, v{o+1}, 0
            """)
    V_SIG = T + 8
    a(f"""
    v_and_b32 v{T}, 1, v{V_GG}
    v_lshrrev_b32 v{T+1}, 1, v{V_GG}
    v_lshl_or_b32 v{V_SIG}, v{T}, 1, v{T+1}
    """)
    if not qkv:
        V_PA = T + 9; V_SA = T + 10
        a(f"""
        v_lshl_add_u32 v{V_PA}, v{V_SIG}, 4, v{V_TT}
        v_lshlrev_b32 v{V_PA}, 4, v{V_PA}            ; (sigma*16 + t)*16
        s_lshl_b32 s{S_TMP}, s{S_NW}, 1
        v_add_u32 v{T+1}, s{S_TMP}, v{T+1}
        v_lshl_add_u32 v{V_SA}, v{T+1}, 4, v{V_TT}
        v_lshlrev_b32 v{V_SA}, 4, v{V_SA}
        v_lshl_add_u32 v{V_SA}, v{T}, 3, v{V_SA}
        """)
        for i in range(4):
            a(f"""
            s_lshr_b32 s{S_TMP}, s{S_TB+i}, 4
            s_lshl_b32 s{S_TMP2}, s{S_MT}, 4
            s_add_u32 s{S_TMP}, s{S_TMP}, s{S_TMP2}
            s_mul_i32 s{S_TB+i}, s{S_TMP}, {MBLK_PITCH}
            """)
        a(f"""
        s_mul_i32 s{S_TMP2}, s{S_JT}, 7
        s_add_u32 s{S_TMP2}, s{S_TMP2}, 32
        """)
        for ps in range(4):
            a(f"""
            s_lshr_b32 s{S_TMP}, s{S_BLK+2*ps}, 1
            s_add_u32 s{S_TMP}, s{S_TMP}, s{S_TMP2}
            s_lshl_b32 s{S_PO+ps}, s{S_TMP}, 10
            """)
        ob = [V_XF + 16, V_XF + 20, V_XF + 24, V_XF + 28]
        n = 0
        for i in range(4):
            st = V_ST + 2 * i
            for ps in range(3):
                o = ob[n % 4]; n += 1
                fixup(acc(2*ps, i), 2*ps, st, o, True)
                fixup(acc(2*ps+1, i), 2*ps+1, st, o+2, True)
                a(f"""
                s_add_u32 s{S_TMP}, s{S_TB+i}, s{S_PO+ps}
                s_nop 0
                v_permlane16_swap_b32 v{o}, v{o+2}
                v_permlane16_swap_b32 v{o+1}, v{o+3}
                s_nop 1
                buffer_store_dwordx4 {vr(o)}, v{V_PA}, {sr(SRD_O,4)}, s{S_TMP} offen {STH}
                """)
            o = ob[n % 4]; n += 1
            fixup(acc(6, i), 6, st, o, True)
            a(f"""
            s_add_u32 s{S_TMP}, s{S_TB+i}, s{S_PO+3}
            s_nop 1
            buffer_store_dwordx2 {vr(o,2)}, v{V_SA}, {sr(SRD_O,4)}, s{S_TMP} offen {STH}
            """)
        stamp_now(a, 36); stamp_now(a, 51, True)
        stamp_dump(a, S_WS, S_WAVE, 32 << 20)
        a("s_endpgm")
        return
    V_WA = T + 9
    a(f"""
    v_mul_u32_u24 v{V_WA}, {AT_PITCH}, v{V_TT}
    v_lshl_add_u32 v{V_WA}, v{V_GG}, 3, v{V_WA}      ; t*P + g*8
    """)
    ob = [V_XF + 16, V_XF + 18, V_XF + 20, V_XF + 22, V_XF + 24, V_XF + 26, V_XF + 28, V_XF + 30]
    n = 0
    for i in range(4):
        a(f"""
        s_add_u32 s{S_TMP}, s{S_TB+i}, 16
        s_mul_i32 s{S_TMP3}, s{S_TMP}, {AT_PITCH}
        """)
        for s in range(6):
            o = ob[n % 8]; n += 1
            fixup(acc(s, i), s, V_ST + 2 * i, o, False)
            a(f"""
            s_lshl_b32 s{S_TMP}, s{S_BLK+s}, 5
            s_add_u32 s{S_TMP}, s{S_TMP}, s{S_TMP3}
            v_add_u32 v{T}, s{S_TMP}, v{V_WA}
            ds_write_b64 v{T}, {vr(o,2)}
            """)
            if "slowepi" in OPTS: a("s_waitcnt lgkmcnt(0)")
    if halo:
        for s in range(2):
            o = ob[n % 8]; n += 1
            fixup(V_HACC + 4 * s, s, V_ST + 8, o, False)
            a(f"""
            s_lshl_b32 s{S_TMP}, s{S_BLK+s}, 5
            v_add_u32 v{T}, s{S_TMP}, v{V_WA}
            ds_write_b64 v{T}, {vr(o,2)}
            """)
    a(f"""
    s_waitcnt lgkmcnt(0)
    s_barrier
    """)
    stamp_now(a, 36)
    a("s_branch g1_attn")

def g1_attn(a):
    T = V_T
    V_SIG = T + 8
    a.label("g1_attn")
    VQ = 0; VK = 1; VV = 3
    VE = 5; VO = 6
    R = 8
    a(f"""
    s_lshl_b32 s{S_TMP}, s{S_WAVE}, 5                ; 32 w
    v_lshlrev_b32 v{T}, 1, v{V_TT}                   ; 2n
    v_add_u32 v{T+1}, s{S_TMP}, v{T}                 ; 32w + 2n
    v_add_u32 v{T+2}, 16, v{T+1}
    v_mul_u32_u24 v{T+2}, {AT_PITCH}, v{T+2}
    v_lshl_add_u32 v{VQ}, v{V_GG}, 4, v{T+2}         ; + g*16
    v_add_u32 v{VK+1}, 64, v{VQ}
    v_add_u32 v{T+2}, -16, v{T+1}                    ; rho_k(kb=0)
    v_max_i32 v{T+2}, 0, v{T+2}
    v_mul_u32_u24 v{T+2}, {AT_PITCH}, v{T+2}
    v_lshl_add_u32 v{T+2}, v{V_GG}, 4, v{T+2}
    v_add_u32 v{VK}, 64, v{T+2}
    v_lshrrev_b32 v{T}, 2, v{V_TT}
    v_lshl_add_u32 v{T}, v{V_GG}, 2, v{T}            ; a
    v_lshlrev_b32 v{T}, 1, v{T}
    v_add_u32 v{T}, s{S_TMP}, v{T}                   ; 32w + 2a
    v_and_b32 v{T+3}, 3, v{V_LANE}
    v_lshlrev_b32 v{T+3}, 3, v{T+3}
    v_add_u32 v{T+3}, 128, v{T+3}                    ; v part + c*8
    v_add_u32 v{T+2}, 16, v{T}
    v_mul_u32_u24 v{T+2}, {AT_PITCH}, v{T+2}
    v_add_u32 v{VV+1}, v{T+2}, v{T+3}
    v_add_u32 v{T+2}, -16, v{T}
    v_max_i32 v{T+2}, 0, v{T+2}
    v_mul_u32_u24 v{T+2}, {AT_PITCH}, v{T+2}
    v_add_u32 v{VV}, v{T+2}, v{T+3}
    v_lshlrev_b32 v{T}, 2, v{V_GG}
    v_sub_u32 v{VE}, v{V_TT}, v{T}
    """)
    for kb in range(2):
        for i in range(4):
            a(f"""
            v_add_u32 v{T}, {(16*(1-kb) - i)}, v{VE}
            v_cmp_ge_u32 {sr(S_MASK + 2*(4*kb+i))}, 7, v{T}
            """)
    a(f"""
    s_or_b32 s{S_TMP}, s{S_MT}, s{S_WAVE}
    s_cmp_eq_u32 s{S_TMP}, 0
    s_cbranch_scc0 g1_attn_m
    """)
    for i in range(4):
        a(f"s_mov_b64 {sr(S_MASK + 2*i)}, 0")
    a.label("g1_attn_m")
    a(f"""
    v_and_b32 v{T}, 7, v{V_TT}
    v_lshlrev_b32 v{T}, 1, v{T}
    v_lshl_add_u32 v{T}, v{V_SIG}, 4, v{T}
    v_lshlrev_b32 v{T}, 4, v{T}
    v_lshrrev_b32 v{T+1}, 3, v{V_TT}
    s_mov_b32 s{S_TMP}, {MBLK_PITCH}
    v_mul_lo_u32 v{T+1}, v{T+1}, s{S_TMP}
    v_add_u32 v{VO}, v{T}, v{T+1}
    s_lshl_b32 s{S_TMP}, s{S_MT}, 4
    s_lshl_b32 s{S_TMP2}, s{S_WAVE}, 1
    s_add_u32 s{S_TMP}, s{S_TMP}, s{S_TMP2}
    s_mul_i32 s{S_TMP}, s{S_TMP}, {MBLK_PITCH}
    s_lshl_b32 s{S_TMP2}, s{S_JT}, 11
    s_add_u32 s{S_TMP3}, s{S_TMP}, s{S_TMP2}
    v_mov_b32 v{T+10}, 0xff800000                    ; -inf
    v_mov_b32 v{T+4}, 0x3e3504f3
    v_mov_b32 v{T+5}, 0x3e3504f3
    v_mov_b32 v{T+6}, 0x3fb8aa3b
    v_mov_b32 v{T+7}, 0x3fb8aa3b
    """)
    NEG = T + 10; CSC = T + 4; CL2 = T + 6
    units = [(hh, p) for hh in range(2) for p in range(2)]
    UR = 32
    for u, (hh, p) in enumerate(units):
        b = R + u * UR
        off = p * AT_PITCH + hh * 192
        a(f"""
        ds_read_b128 {vr(b)}, v{VQ} offset:{off}
        ds_read_b128 {vr(b+4)}, v{VK} offset:{off}
        ds_read_b128 {vr(b+8)}, v{VK+1} offset:{off}
        """)
        for db in range(2):
            for kb in range(2):
                a(f"ds_read_b64_tr_b16 {vr(b+12+4*db+2*kb,2)}, v{VV+kb} offset:{off+32*db}")
    a("s_waitcnt lgkmcnt(0)")
    for u in range(4):
        b = R + u * UR
        a(f"""
        v_mfma_f32_16x16x32_bf16 {vr(b+20)}, {vr(b+4)}, {vr(b)}, 0
        v_mfma_f32_16x16x32_bf16 {vr(b+24)}, {vr(b+8)}, {vr(b)}, 0
        """)
    a("s_nop 7")
    for u, (hh, p) in enumerate(units):
        b = R + u * UR
        z = b + 20
        t0 = b + 28; t1 = b + 29
        for i in range(0, 8, 2):
            a(f"""
            v_cvt_pk_bf16_f32 v{t0}, v{z+i}, v{z+i+1}
            v_lshlrev_b32 v{z+i}, 16, v{t0}
            v_and_b32 v{z+i+1}, 0xffff0000, v{t0}
            v_pk_mul_f32 {vr(z+i,2)}, {vr(z+i,2)}, {vr(CSC,2)}
            v_cvt_pk_bf16_f32 v{t0}, v{z+i}, v{z+i+1}
            v_lshlrev_b32 v{z+i}, 16, v{t0}
            v_and_b32 v{z+i+1}, 0xffff0000, v{t0}
            v_cndmask_b32 v{z+i}, v{NEG}, v{z+i}, {sr(S_MASK+2*i)}
            v_cndmask_b32 v{z+i+1}, v{NEG}, v{z+i+1}, {sr(S_MASK+2*i+2)}
            """)
        a(f"""
        v_max3_f32 v{t0}, v{z}, v{z+1}, v{z+2}
        v_max3_f32 v{t0}, v{t0}, v{z+3}, v{z+4}
        v_max3_f32 v{t0}, v{t0}, v{z+5}, v{z+6}
        v_max_f32 v{t0}, v{t0}, v{z+7}
        """)
        xlane_max(a, t0, t1)
        for i in range(0, 8, 2):
            a(f"""
            v_pk_add_f32 {vr(z+i,2)}, {vr(z+i,2)}, {vr(t0,2)} op_sel_hi:[1,0] neg_lo:[0,1] neg_hi:[0,1]
            v_pk_mul_f32 {vr(z+i,2)}, {vr(z+i,2)}, {vr(CL2,2)}
            """)
        for i in range(8):
            a(f"v_exp_f32 v{z+i}, v{z+i}")
        a(f"""
        s_nop 0
        v_pk_add_f32 {vr(t0,2)}, {vr(z,2)}, {vr(z+2,2)}
        v_pk_add_f32 {vr(t0+2,2)}, {vr(z+4,2)}, {vr(z+6,2)}
        v_pk_add_f32 {vr(t0,2)}, {vr(t0,2)}, {vr(t0+2,2)}
        v_add_f32 v{t0}, v{t0}, v{t1}
        """)
        xlane_sum(a, t0, t1)
        a(f"""
        v_rcp_f32 v{t0}, v{t0}
        s_nop 0
        """)
        for i in range(0, 8, 2):
            a(f"v_pk_mul_f32 {vr(z+i,2)}, {vr(z+i,2)}, {vr(t0,2)} op_sel_hi:[1,0]")
        for i in range(4):
            a(f"v_cvt_pk_bf16_f32 v{b+i}, v{z+2*i}, v{z+2*i+1}")
        a(f"""
        s_nop 1
        v_mfma_f32_16x16x32_bf16 {vr(b+4)}, {vr(b+12)}, {vr(b)}, 0
        v_mfma_f32_16x16x32_bf16 {vr(b+8)}, {vr(b+16)}, {vr(b)}, 0
        """)
    a("s_nop 7")
    for u, (hh, p) in enumerate(units):
        b = R + u * UR
        o = b + 20
        a(f"""
        v_cvt_pk_bf16_f32 v{o}, v{b+4}, v{b+5}
        v_cvt_pk_bf16_f32 v{o+1}, v{b+6}, v{b+7}
        v_cvt_pk_bf16_f32 v{o+2}, v{b+8}, v{b+9}
        v_cvt_pk_bf16_f32 v{o+3}, v{b+10}, v{b+11}
        s_nop 1
        v_permlane16_swap_b32 v{o}, v{o+2}
        v_permlane16_swap_b32 v{o+1}, v{o+3}
        s_nop 1
        buffer_store_dwordx4 {vr(o)}, v{VO}, {sr(SRD_O,4)}, s{S_TMP3} offen offset:{p*16 + hh*1024} {STF}
        """)
    stamp_now(a, 37); stamp_now(a, 51, True)
    stamp_dump(a, S_WS, S_WAVE, 32 << 20)
    a("s_endpgm")

def gen_g1(a):
    MAP4 = f"""
    s_and_b32 s{S_MT}, s{S_TMP}, 1
    s_lshl_b32 s{S_MT}, s{S_MT}, 2
    s_and_b32 s{S_TMP3}, s{S_TMP2}, 3
    s_add_u32 s{S_MT}, s{S_MT}, s{S_TMP3}     ; mt
    s_lshr_b32 s{S_TMP2}, s{S_TMP2}, 2        ; i8
    s_lshr_b32 s{S_TMP}, s{S_TMP}, 1          ; ng
    s_lshl_b32 s{S_JT}, s{S_TMP}, 2
    s_and_b32 s{S_TMP3}, s{S_TMP2}, 3
    s_add_u32 s{S_JT}, s{S_JT}, s{S_TMP3}     ; jt
    s_lshr_b32 s{S_TMP2}, s{S_TMP2}, 2        ; type
"""
    MAP8 = f"""
    s_and_b32 s{S_MT}, s{S_TMP2}, 7           ; mt
    s_lshr_b32 s{S_TMP2}, s{S_TMP2}, 3        ; i4
    s_lshl_b32 s{S_JT}, s{S_TMP}, 1
    s_and_b32 s{S_TMP3}, s{S_TMP2}, 1
    s_add_u32 s{S_JT}, s{S_JT}, s{S_TMP3}     ; jt
    s_lshr_b32 s{S_TMP2}, s{S_TMP2}, 1        ; type
"""
    a.raw("""
.globl g1_kernel
.p2align 8
.type g1_kernel,@function
g1_kernel:""")
    a(f"""
    s_cmp_ge_u32 s2, 256
    s_cbranch_scc1 g1_exit
    s_load_dwordx4 s[{S_X}:{S_X+3}], s[0:1], 0     ; x, wqkv
    s_load_dwordx2 s[{S_W1}:{S_W1+1}], s[0:1], 32
    s_load_dwordx2 s[{S_WS}:{S_WS+1}], s[0:1], 64
    s_load_dwordx2 s[{S_WOP}:{S_WOP+1}], s[0:1], 16
    s_load_dwordx2 s[{S_DBGP}:{S_DBGP+1}], s[0:1], 56
    s_load_dwordx2 s[{S_W2P}:{S_W2P+1}], s[0:1], 40
    v_and_b32 v{V_LANE}, 63, v0
    v_lshrrev_b32 v{V_T}, 6, v0
    v_and_b32 v{V_TT}, 15, v0
    v_readfirstlane_b32 s{S_WAVE}, v{V_T}
    v_bfe_u32 v{V_GG}, v0, 4, 2
    s_nop 2
    s_cmp_lg_u32 s{S_WAVE}, 7
    s_cbranch_scc1 g1_nopf
    """)
    if "nocodepf" not in OPTS:
        code_prefetch(a, V_T + 2, V_LANE, S_PC1, "g1_kernel", "g1_end", 24576, 255)
    a.label("g1_nopf")
    a(f"""
    s_and_b32 s{S_TMP}, s2, 7                 ; xcd
    s_lshr_b32 s{S_TMP2}, s2, 3               ; idx
    """)
    a(MAP8 if "map8" in OPTS else MAP4)
    a(f"""
    s_and_b32 s{S_WQ}, s{S_WAVE}, 3
    s_and_b32 s{S_NW}, s{S_WAVE}, 1
    s_bfe_u32 s{S_MW}, s{S_WAVE}, 0x10001
    s_lshr_b32 s{S_TMP3}, s{S_WAVE}, 2        ; G
    s_lshl_b32 s80, s2, 3
    s_add_u32 s80, s80, s{S_WAVE}
    v_lshlrev_b32 v{V_L16}, 4, v{V_LANE}
    s_waitcnt lgkmcnt(0)
    """)
    if FUSE and "bulk" in OPTS:
        a(f"""
        s_mov_b32 s64, s{S_W}
        s_and_b32 s65, s{S_W+1}, 0xffff
        s_mov_b32 s66, {1024*6144}
        s_mov_b32 s67, 0x20000
        s_mov_b32 s72, s{S_W1}
        s_and_b32 s73, s{S_W1+1}, 0xffff
        s_mov_b32 s74, {1024*7168}
        s_mov_b32 s75, 0x20000
        s_mul_i32 s81, s80, 3072
        s_lshl_b32 s80, s80, 12
        """)
        for i in range(3):
            a(f"buffer_load_dwordx4 {vr(V_HF)}, v{V_L16}, s[64:67], s81 offen offset:{1024*i}")
        for i in range(4):
            a(f"buffer_load_dwordx4 {vr(V_HF)}, v{V_L16}, s[72:75], s80 offen offset:{1024*i}")
    a(f"""
    s_add_u32 s{SRD_X}, s{S_X if FUSE else S_WS}, {0 if FUSE else XN_OFF}
    s_addc_u32 s{SRD_X+1}, s{(S_X if FUSE else S_WS)+1}, 0
    s_and_b32 s{SRD_X+1}, s{SRD_X+1}, 0xffff
    s_mov_b32 s{SRD_X+2}, {2048*2048}
    s_mov_b32 s{SRD_X+3}, 0x20000
    s_mov_b32 s{SRD_XA}, s{SRD_X}
    s_mov_b32 s{SRD_XA+1}, s{SRD_X+1}
    s_mov_b32 s{SRD_XA+2}, {2048*2048}
    s_mov_b32 s{SRD_XA+3}, 0x20000
    s_mov_b32 s{SRD_O}, s{S_WS}
    s_and_b32 s{SRD_O+1}, s{S_WS+1}, 0xffff
    s_mov_b32 s{SRD_O+2}, {A2_BYTES}
    s_mov_b32 s{SRD_O+3}, 0x20000
    s_lshl_b32 s{S_TMP2}, s{S_TMP2}, 1
    s_add_u32 s{S_TMP2}, s{S_TMP2}, s{S_TMP3}
    """)
    if FUSE:
        a(f"""
        s_cmp_lg_u32 s2, 255
        s_cbranch_scc1 g1_noz
        s_add_u32 s64, s{S_WS}, {30 << 20}
        s_addc_u32 s65, s{S_WS+1}, 0
        s_and_b32 s65, s65, 0xffff
        s_mov_b32 s66, 8192
        s_mov_b32 s67, 0x20000
        v_lshlrev_b32 v{V_T}, 4, v0
        v_mov_b32 v4, 0
        v_mov_b32 v5, 0
        v_mov_b32 v6, 0
        v_mov_b32 v7, 0
        buffer_store_dwordx4 v[4:7], v{V_T}, s[64:67], 0 offen
        """)
        a.label("g1_noz")
    a(f"""
    s_cmp_eq_u32 s{S_TMP2}, 0
    s_cbranch_scc1 g1_00
    s_cmp_eq_u32 s{S_TMP2}, 1
    s_cbranch_scc1 g1_01
    s_cmp_eq_u32 s{S_TMP2}, 2
    s_cbranch_scc1 g1_10
    s_branch g1_11
    """)
    a.label("g1_exit")
    a("s_endpgm")
    for typ in range(2):
        for G in range(2):
            g1_path(a, typ, G)
    g1_attn(a)
    a.label("g1_end")
    a("s_endpgm")

def gen_k0(a):
    a.raw("""
.globl k0_kernel
.p2align 8
.type k0_kernel,@function
k0_kernel:""")
    DPP = "row_mask:0xf bank_mask:0xf"
    def reduce64(v, t):
        a(f"""
        s_nop 1
        v_add_f32_dpp v{t}, v{v}, v{v} quad_perm:[1,0,3,2] {DPP}
        s_nop 1
        v_add_f32_dpp v{v}, v{t}, v{t} quad_perm:[2,3,0,1] {DPP}
        s_nop 1
        v_add_f32_dpp v{t}, v{v}, v{v} row_half_mirror {DPP}
        s_nop 1
        v_add_f32_dpp v{v}, v{t}, v{t} row_mirror {DPP}
        """)
        xlane_sum(a, v, t)
    a(f"""
    s_cmp_ge_u32 s2, 256
    s_cbranch_scc1 k0_exit
    s_load_dwordx4 s[4:7], s[0:1], 0          ; x, wqkv
    s_load_dwordx2 s[8:9], s[0:1], 32         ; w1
    s_load_dwordx2 s[10:11], s[0:1], 64       ; ws
    v_lshrrev_b32 v1, 6, v0
    v_and_b32 v0, 63, v0
    v_lshlrev_b32 v2, 4, v0                   ; lane*16
    v_readfirstlane_b32 s3, v1
    s_lshl_b32 s28, s2, 3
    s_nop 2
    s_add_u32 s28, s28, s3
    s_lshl_b32 s29, s28, 11
    s_waitcnt lgkmcnt(0)
    s_mov_b32 s12, s4
    s_and_b32 s13, s5, 0xffff
    s_mov_b32 s14, {2048*2048}
    s_mov_b32 s15, 0x20000
    buffer_load_dwordx4 v[4:7], v2, s[12:15], s29 offen
    buffer_load_dwordx4 v[8:11], v2, s[12:15], s29 offen offset:1024
    s_mov_b32 s16, s6
    s_and_b32 s17, s7, 0xffff
    s_mov_b32 s18, {1024*6144}
    s_mov_b32 s19, 0x20000
    s_mov_b32 s20, s8
    s_and_b32 s21, s9, 0xffff
    s_mov_b32 s22, {1024*7168}
    s_mov_b32 s23, 0x20000
    s_add_u32 s24, s10, {XN_OFF}
    s_addc_u32 s25, s11, 0
    s_and_b32 s25, s25, 0xffff
    s_mov_b32 s26, {2048*2048}
    s_mov_b32 s27, 0x20000
    s_cmp_lg_u32 s2, 0
    s_cbranch_scc1 k0_noz
    s_add_u32 s32, s10, {30 << 20}
    s_addc_u32 s33, s11, 0
    s_and_b32 s33, s33, 0xffff
    s_mov_b32 s34, 8192
    s_mov_b32 s35, 0x20000
    s_lshl_b32 s30, s3, 10
    v_mov_b32 v60, 0
    v_mov_b32 v61, 0
    v_mov_b32 v62, 0
    v_mov_b32 v63, 0
    buffer_store_dwordx4 v[60:63], v2, s[32:35], s30 offen
    s_waitcnt vmcnt(0)
k0_noz:
    s_mul_i32 s30, s28, 3072
    s_lshl_b32 s31, s28, 12
    """)
    nw = 0
    if "nowarm1" not in OPTS:
        a(f"""
        s_mov_b32 s18, {256*6144}
        s_mov_b32 s22, {256*7168}
        s_lshl_b32 s30, s28, 10
        buffer_load_dwordx4 v[32:35], v2, s[16:19], s30 offen
        buffer_load_dwordx4 v[36:39], v2, s[20:23], s30 offen
        """)
        nw = 2
    a(f"s_waitcnt vmcnt({nw})")
    for r in range(8):
        a(f"""
        v_lshlrev_b32 v{12+2*r}, 16, v{4+r}
        v_and_b32 v{13+2*r}, 0xffff0000, v{4+r}
        """)
    a("v_add_f32 v28, v12, v13")
    for r in range(14, 28):
        a(f"v_add_f32 v28, v28, v{r}")
    reduce64(28, 29)
    a("v_mul_f32 v28, 0x3a800000, v28")
    a("""
    v_sub_f32 v30, v12, v28
    v_mul_f32 v31, v30, v30
    """)
    for r in range(13, 28):
        a(f"""
        v_sub_f32 v30, v{r}, v28
        v_fmac_f32 v31, v30, v30
        """)
    reduce64(31, 29)
    a(f"""
    v_mul_f32 v31, 0x3a800000, v31            ; var
    v_cvt_pk_bf16_f32 v29, v28, v31
    v_lshlrev_b32 v28, 16, v29                ; m_b
    v_and_b32 v31, 0xffff0000, v29            ; v_b
    v_add_f32 v31, 0x3727c5ac, v31
    v_cvt_pk_bf16_f32 v31, v31, v31
    v_and_b32 v31, 0xffff0000, v31
    v_sqrt_f32 v31, v31
    s_nop 0
    v_cvt_pk_bf16_f32 v31, v31, v31
    v_and_b32 v31, 0xffff0000, v31
    v_rcp_f32 v31, v31
    s_nop 0
    """)
    for r in range(8):
        a(f"""
        v_sub_f32 v{12+2*r}, v{12+2*r}, v28
        v_sub_f32 v{13+2*r}, v{13+2*r}, v28
        v_cvt_pk_bf16_f32 v29, v{12+2*r}, v{13+2*r}
        v_lshlrev_b32 v{12+2*r}, 16, v29
        v_and_b32 v{13+2*r}, 0xffff0000, v29
        v_mul_f32 v{12+2*r}, v{12+2*r}, v31
        v_mul_f32 v{13+2*r}, v{13+2*r}, v31
        v_cvt_pk_bf16_f32 v{4+r}, v{12+2*r}, v{13+2*r}
        """)
    a("""
    buffer_store_dwordx4 v[4:7], v2, s[24:27], s29 offen
    buffer_store_dwordx4 v[8:11], v2, s[24:27], s29 offen offset:1024
    """)
    a.label("k0_exit")
    a("s_endpgm")

G2_NB = 6
G2_LDS = G2_NB * 16384
def code_prefetch(a, vtmp, vlane, stmp, start_label, end_label, nbytes, vdst):
    a(f"""
    s_getpc_b64 {sr(stmp)}
    """)
    a.label(start_label + "_pc")
    a(f"""
    s_add_u32 s{stmp}, s{stmp}, {start_label}-{start_label}_pc
    s_addc_u32 s{stmp+1}, s{stmp+1}, -1
    v_lshlrev_b32 v{vtmp}, 7, v{vlane}
    """)
    for i in range((nbytes + 8191) // 8192):
        if i: a(f"v_add_u32 v{vtmp}, 0x2000, v{vtmp}")
        a(f"""
        v_min_u32 v{vtmp+1}, {end_label}-{start_label}-4, v{vtmp}
        global_load_dword v{vdst}, v{vtmp+1}, {sr(stmp)}
        """)

def gen_g2(a):
    NBUF = G2_NB; D = NBUF - 1
    NTB = "nt " if "g2ntB" in OPTS else ""
    SRD_A = 12; SRD_B = 16; SRD_XX = 20; SRD_OUT = 24
    S_WO = 4; S_W2 = 6; S_XP = 8; S_OUTP = 10; S_WSP = 28
    S_WV = 30; S_GK = 31; S_MW2 = 32; S_MT2 = 33; S_NT = 34; S_TRIP = 35
    S_KAA = 36; S_KBB = 37; S_MB0 = 38; S_T = 39; S_T2 = 40; S_T3 = 41; S_PC = 42; S_P = 44; S_KA0 = 45; S_WOL = 46; S_WOH = 47; S_SZ = 48; S_CNT = 49
    V_AB = 0
    V_W = V_AB + NBUF * 16
    V_AC = V_W + 64
    V_XR = V_AC + 32
    V_AA = V_XR + 8
    V_DBB = V_AA + 2
    V_RBB = V_DBB + 2
    T = V_RBB + 8
    VL = T + 14; VT = T + 15; VG = T + 16
    global G2_VGPRS
    G2_VGPRS = 256 if STAMP else VG + 2
    def ab(u, tb, kk): return V_AB + u * 16 + (tb * 2 + kk) * 4
    def w(par, s, kk): return V_W + par * 32 + (s * 2 + kk) * 4
    def ac(s, tb): return V_AC + (s * 2 + tb) * 4
    a.raw("""
.globl g2_kernel
.p2align 8
.type g2_kernel,@function
g2_kernel:""")
    a(f"""
    s_cmp_ge_u32 s2, 256
    s_cbranch_scc1 g2_exit
    s_load_dwordx2 s[{S_XP}:{S_XP+1}], s[0:1], 0
    s_load_dwordx2 s[{S_WO}:{S_WO+1}], s[0:1], 16
    s_load_dwordx2 s[{S_W2}:{S_W2+1}], s[0:1], 40
    s_load_dwordx2 s[{S_OUTP}:{S_OUTP+1}], s[0:1], 48
    s_load_dwordx2 s[{S_WSP}:{S_WSP+1}], s[0:1], 64
    v_and_b32 v{VL}, 63, v0
    v_lshrrev_b32 v{T}, 6, v0
    v_and_b32 v{VT}, 15, v0
    v_readfirstlane_b32 s{S_WV}, v{T}
    v_bfe_u32 v{VG}, v0, 4, 2
    """)
    if STAMP: a(f"v_mov_b32 v{V_STAMP}, 0")
    stamp_now(a, 32); stamp_now(a, 50, True)
    npf = 0
    if "nocodepf" not in OPTS:
        code_prefetch(a, T + 12, VL, S_PC, "g2_kernel", "g2_exit", 4096, VG + 1); npf = 1
    a(f"""
    s_and_b32 s{S_T}, s2, 7
    s_lshr_b32 s{S_T2}, s2, 3
    s_lshr_b32 s{S_MT2}, s{S_T}, 1
    s_lshl_b32 s{S_MT2}, s{S_MT2}, 2
    s_and_b32 s{S_T3}, s{S_T2}, 3
    s_add_u32 s{S_MT2}, s{S_MT2}, s{S_T3}     ; mt 0..15
    s_and_b32 s{S_NT}, s{S_T}, 1
    s_lshl_b32 s{S_NT}, s{S_NT}, 3
    s_lshr_b32 s{S_T2}, s{S_T2}, 2
    s_add_u32 s{S_NT}, s{S_NT}, s{S_T2}       ; nt 0..15
    s_lshr_b32 s{S_GK}, s{S_WV}, 2
    s_and_b32 s{S_MW2}, s{S_WV}, 3
    ; A voffsets
    s_lshl_b32 s{S_T}, s{S_MT2}, 3
    s_lshl_b32 s{S_T2}, s{S_MW2}, 1
    s_add_u32 s{S_T}, s{S_T}, s{S_T2}         ; mblk0
    s_mul_i32 s{S_T}, s{S_T}, {MBLK_PITCH}
    v_lshl_add_u32 v{V_AA}, v{VL}, 4, s{S_T}
    v_add_u32 v{V_AA+1}, {MBLK_PITCH}, v{V_AA}
    s_lshl_b32 s{S_KAA}, s{S_GK}, 11          ; K-step * 2048
    v_lshrrev_b32 v{T}, 3, v{VL}
    s_lshl_b32 s{S_T}, s{S_WV}, 4
    v_add_u32 v{T+1}, s{S_T}, v{T}            ; row (e=0)
    v_lshlrev_b32 v{T+1}, 11, v{T+1}
    s_lshl_b32 s{S_T}, s{S_NT}, 7
    v_add_u32 v{T+1}, s{S_T}, v{T+1}
    v_and_b32 v{T+2}, 1, v{VL}
    v_lshl_add_u32 v{T+1}, v{T+2}, 4, v{T+1}  ; + (c'&1)*16
    v_bfe_u32 v{T+2}, v{VL}, 1, 2             ; unit'
    v_bfe_u32 v{T+3}, v{VL}, 4, 1             ; bit1(l>>3)
    v_xor_b32 v{T+2}, v{T+2}, v{T+3}
    v_lshl_add_u32 v{V_DBB}, v{T+2}, 5, v{T+1}
    v_xor_b32 v{T+2}, 2, v{T+2}
    v_lshl_add_u32 v{V_DBB+1}, v{T+2}, 5, v{T+1}
    v_add_u32 v{V_DBB+1}, {8*2048}, v{V_DBB+1}
    s_lshl_b32 s{S_MB0}, s{S_WV}, 11
    s_mov_b32 s{S_KBB}, 0
    s_waitcnt lgkmcnt(0)
    s_mov_b32 s{SRD_A}, s{S_WSP}
    s_and_b32 s{SRD_A+1}, s{S_WSP+1}, 0xffff
    s_mov_b32 s{SRD_A+2}, {A2_BYTES}
    s_mov_b32 s{SRD_A+3}, 0x20000
    s_mov_b32 s{SRD_B}, s{S_WO}
    s_and_b32 s{SRD_B+1}, s{S_WO+1}, 0xffff
    s_mov_b32 s{SRD_B+2}, {1024*2048}
    s_mov_b32 s{SRD_B+3}, 0x20000
    """)
    def prefetch(u):
        for e in range(2):
            if "g2noB" in OPTS:
                a(f"buffer_load_dword v{T+12}, off, {sr(SRD_B,4)}, 0")
                continue
            a(f"""
            s_add_u32 m0, s{S_MB0}, {u*16384 + e*1024}
            s_nop 0
            buffer_load_dwordx4 v{V_DBB+e}, {sr(SRD_B,4)}, s{S_KBB} offen {NTB}lds
            """)
        for tb in range(2):
            for kk in range(2):
                if "g2noA" in OPTS:
                    a(f"buffer_load_dword v{T+12}, off, {sr(SRD_B,4)}, 0")
                    continue
                a(f"buffer_load_dwordx4 {vr(ab(u,tb,kk))}, v{V_AA+tb}, {sr(SRD_A,4)}, s{S_KAA} offen offset:{kk*1024}" + (" nt" if "g2ntA" in OPTS else ""))
        advance()
    def advance():
        a(f"""
        s_add_u32 s{S_P}, s{S_P}, 1
        s_cmp_eq_u32 s{S_P}, 36
        s_cselect_b32 s{S_P}, 0, s{S_P}
        s_add_u32 s{S_CNT}, s{S_CNT}, 1
        """)
        setpos()
    def setpos():
        a(f"""
        s_lshl_b32 s{S_KAA}, s{S_P}, 12
        s_add_u32 s{S_KAA}, s{S_KAA}, s{S_KA0}
        s_cmp_lt_u32 s{S_P}, 8
        s_cselect_b32 s{SRD_B}, s{S_WOL}, s{S_W2}
        s_cselect_b32 s{SRD_B+1}, s{S_WOH}, s{S_W2+1}
        s_cselect_b32 s{SRD_B+2}, {1024*2048}, s{S_SZ}
        s_cselect_b32 s{S_T}, 0, 8
        s_sub_u32 s{S_T}, s{S_P}, s{S_T}
        s_lshl_b32 s{S_KBB}, s{S_T}, 18
        s_cmp_ge_u32 s{S_CNT}, 36
        s_cselect_b32 s{SRD_B+2}, 0, s{SRD_B+2}
        s_cselect_b32 s{SRD_A+2}, 0, s{SRD_A+2}
        s_cselect_b32 s{S_MB0}, {G2_LDS}, s{S_MB0}
        """)
    rotmul = (1, 2)
    for o in OPTS:
        if o.startswith("rot="): rotmul = tuple(int(x) for x in o[4:].split(","))
    a(f"""
    s_and_b32 s{S_W2+1}, s{S_W2+1}, 0xffff
    s_mov_b32 s{S_WOL}, s{S_WO}
    s_and_b32 s{S_WOH}, s{S_WO+1}, 0xffff
    s_mov_b32 s{S_SZ}, {3584*2048}
    s_mov_b32 s{S_KA0}, s{S_KAA}
    s_mov_b32 s{S_CNT}, 0
    s_and_b32 s{S_T}, s{S_NT}, 7
    s_mul_i32 s{S_T}, s{S_T}, {rotmul[0]}
    s_and_b32 s{S_T2}, s{S_MT2}, 3
    s_mul_i32 s{S_T2}, s{S_T2}, {rotmul[1]}
    s_add_u32 s{S_P}, s{S_T}, s{S_T2}
    """)
    setpos()
    if "g2tlb" in OPTS:
        a(f"""
        s_lshr_b32 s{S_T}, s2, 3
        s_lshl_b32 s{S_T}, s{S_T}, 3
        s_add_u32 s{S_T}, s{S_T}, s{S_WV}          ; j
        s_lshl_b32 s{S_T2}, s{S_T}, 18             ; j*64 pages*4096
        v_lshl_add_u32 v{T+12}, v{VL}, 12, s{S_T2}
        s_cmp_lt_u32 s{S_T}, 18
        s_cbranch_scc0 g2_tlb1
        s_and_b32 s{S_T3}, s{S_MT2}, 12
        s_mul_i32 s{S_T3}, s{S_T3}, {8*MBLK_PITCH}
        buffer_load_dword v{T+13}, v{T+12}, {sr(SRD_A,4)}, s{S_T3} offen
        s_branch g2_tlb3
        """)
        a.label("g2_tlb1")
        a(f"""
        s_cmp_lt_u32 s{S_T}, 26
        s_cbranch_scc0 g2_tlb2
        v_subrev_u32 v{T+12}, {18<<18}, v{T+12}
        global_load_dword v{T+13}, v{T+12}, s[{S_WO}:{S_WO+1}]
        s_branch g2_tlb3
        """)
        a.label("g2_tlb2")
        a(f"""
        s_cmp_lt_u32 s{S_T}, 54
        s_cbranch_scc0 g2_tlb3
        v_subrev_u32 v{T+12}, {26<<18}, v{T+12}
        global_load_dword v{T+13}, v{T+12}, s[{S_W2}:{S_W2+1}]
        """)
        a.label("g2_tlb3")
    for u in range(D):
        prefetch(u)
    V_XA = T + 4; V_OA = T + 5
    a(f"""
    s_mov_b32 s{SRD_XX}, s{S_XP}
    s_and_b32 s{SRD_XX+1}, s{S_XP+1}, 0xffff
    s_mov_b32 s{SRD_XX+2}, {2048*2048}
    s_mov_b32 s{SRD_XX+3}, 0x20000
    s_mov_b32 s{SRD_OUT}, s{S_OUTP}
    s_and_b32 s{SRD_OUT+1}, s{S_OUTP+1}, 0xffff
    s_mov_b32 s{SRD_OUT+2}, {2048*2048}
    s_mov_b32 s{SRD_OUT+3}, 0x20000
    v_lshrrev_b32 v{T}, 2, v{VT}              ; r
    v_lshl_add_u32 v{T+1}, v{VG}, 3, v{T}
    v_lshlrev_b32 v{T+1}, 7, v{T+1}
    s_lshl_b32 s{S_T}, s{S_GK}, 13
    v_add_u32 v{T+1}, s{S_T}, v{T+1}
    v_and_b32 v{T+2}, 3, v{VL}
    v_lshl_add_u32 v{T+1}, v{T+2}, 3, v{T+1}
    v_and_b32 v{T+2}, 1, v{VG}
    v_lshrrev_b32 v{T+3}, 1, v{T}
    v_lshl_or_b32 v{T+2}, v{T+2}, 1, v{T+3}   ; f
    s_lshl_b32 s{S_T}, s{S_GK}, 1
    v_xor_b32 v{T+2}, s{S_T}, v{T+2}          ; f ^ 2Gk
    """)
    for s in range(4):
        a(f"""
        v_xor_b32 v{T+3}, {s}, v{T+2}
        v_lshl_add_u32 v{V_RBB+s}, v{T+3}, 5, v{T+1}
        v_add_u32 v{V_RBB+4+s}, 0xc000, v{V_RBB+s}
        """)
    a(f"""
    s_lshl_b32 s{S_T}, s{S_MT2}, 7
    s_lshl_b32 s{S_T2}, s{S_MW2}, 5
    s_add_u32 s{S_T}, s{S_T}, s{S_T2}
    v_add_u32 v{T}, s{S_T}, v{VT}
    v_lshlrev_b32 v{T}, 11, v{T}
    s_lshl_b32 s{S_T}, s{S_NT}, 7
    s_lshl_b32 s{S_T2}, s{S_GK}, 6
    s_add_u32 s{S_T}, s{S_T}, s{S_T2}
    v_add_u32 v{T}, s{S_T}, v{T}
    v_lshl_add_u32 v{V_XA}, v{VG}, 3, v{T}    ; + g*8
    v_and_b32 v{T+1}, 1, v{VG}
    v_lshrrev_b32 v{T+2}, 1, v{VG}
    v_lshl_or_b32 v{T+1}, v{T+1}, 1, v{T+2}   ; sigma
    v_lshl_add_u32 v{V_OA}, v{T+1}, 4, v{T}
    """)
    for r in range(V_AC, V_AC + 32):
        a(f"v_mov_b32 v{r}, 0")
    def reads(u, par):
        hi = 4 if u >= 3 else 0
        uo = (u - 3 if u >= 3 else u) * 16384
        for kk in range(2):
            for s in range(4):
                for h in range(2):
                    if "g2nocomp" in OPTS: continue
                    a(f"ds_read_b64_tr_b16 {vr(w(par,s,kk)+2*h,2)}, v{V_RBB+hi+s} offset:{uo + kk*4096 + h*512}")
    a(f"""
    s_mov_b32 s{S_TRIP}, 0
    s_waitcnt vmcnt({4 + 6*(D-1)})
    s_barrier
    """)
    reads(0, 0)
    stamp_now(a, 33)
    def body(u):
        par = u & 1
        a(f"""
        s_waitcnt vmcnt({4 + 6*(D-2)})
        s_barrier
        """)
        prefetch((u + D) % NBUF)
        a("s_waitcnt lgkmcnt(0)")
        reads((u + 1) % NBUF, par ^ 1)
        for kk in range(2):
            for s in range(4):
                for tb in range(2):
                    if "g2nocomp" in OPTS: continue
                    a(f"v_mfma_f32_16x16x32_bf16 {vr(ac(s,tb))}, {vr(w(par,s,kk))}, {vr(ab(u,tb,kk))}, {vr(ac(s,tb))}")
    a.raw(".p2align 6")
    a.label("g2_loop")
    for u in range(NBUF):
        body(u)
    a(f"""
    s_add_u32 s{S_TRIP}, s{S_TRIP}, 1
    s_cmp_lt_u32 s{S_TRIP}, {36 // NBUF}
    s_cbranch_scc1 g2_loop
    s_mov_b32 s{S_T}, {16*2048}
    """)
    stamp_now(a, 34)
    for tb in range(2):
        for e in range(2):
            so = "0" if tb == 0 else f"s{S_T}"
            a(f"buffer_load_dwordx2 {vr(V_XR+(tb*2+e)*2,2)}, v{V_XA}, {sr(SRD_XX,4)}, {so} offen offset:{e*32}")
    a(f"""
    s_waitcnt vmcnt(4) lgkmcnt(0)
    s_barrier
    s_lshl_b32 s{S_T}, s{S_WV}, 12
    v_lshl_add_u32 v{T}, v{VL}, 4, s{S_T}
    v_xor_b32 v{T+1}, 16384, v{T}
    """)
    for s in range(2):
        for tb in range(2):
            a(f"ds_write_b128 v{T}, {vr(ac(2+s,tb))} offset:{(s*2+tb)*1024}")
    a("""
    s_waitcnt lgkmcnt(0)
    s_barrier
    """)
    for s in range(2):
        for tb in range(2):
            a(f"ds_read_b128 {vr(V_W+(s*2+tb)*4)}, v{T+1} offset:{(s*2+tb)*1024}")
    a("s_waitcnt vmcnt(0) lgkmcnt(0)")
    for tb in range(2):
        o = V_AB + tb * 4
        for s in range(2):
            c = ac(s, tb); p = V_W + (s * 2 + tb) * 4; xr = V_XR + (tb * 2 + s) * 2
            a(f"""
            v_lshlrev_b32 v{T+8}, 16, v{xr}
            v_and_b32 v{T+9}, 0xffff0000, v{xr}
            v_lshlrev_b32 v{T+10}, 16, v{xr+1}
            v_and_b32 v{T+11}, 0xffff0000, v{xr+1}
            v_pk_add_f32 {vr(c,2)}, {vr(c,2)}, {vr(p,2)}
            v_pk_add_f32 {vr(c+2,2)}, {vr(c+2,2)}, {vr(p+2,2)}
            v_pk_add_f32 {vr(c,2)}, {vr(c,2)}, {vr(T+8,2)}
            v_pk_add_f32 {vr(c+2,2)}, {vr(c+2,2)}, {vr(T+10,2)}
            v_cvt_pk_bf16_f32 v{o+2*s}, v{c}, v{c+1}
            v_cvt_pk_bf16_f32 v{o+2*s+1}, v{c+2}, v{c+3}
            """)
        so = "0" if tb == 0 else f"s{S_T2}"
        a(f"""
        s_mov_b32 s{S_T2}, {16*2048}
        s_nop 0
        v_permlane16_swap_b32 v{o}, v{o+2}
        v_permlane16_swap_b32 v{o+1}, v{o+3}
        s_nop 1
        buffer_store_dwordx4 {vr(o)}, v{V_OA}, {sr(SRD_OUT,4)}, {so} offen
        """)
    stamp_now(a, 51, True)
    stamp_dump(a, S_WSP, S_WV, 40 << 20)
    a.label("g2_exit")
    a("s_endpgm")

C_ASLOT = 16384; C_NA = 3
C_BSLOT = 16384; C_NBS = 4
C_BBASE = 2 * C_NA * C_ASLOT
G2C_LDS = C_BBASE + C_NBS * C_BSLOT
SLAB_OFF = 64 << 20
FLAG_OFF = 30 << 20
SLAB_BYTES = 64 * 4 * 131072
NKS = 18
PUBF = "sc1" if "pubsc1" in OPTS else ("sc0 sc1 nt" if "pubnt" in OPTS else "sc0 sc1")
GETF = "sc1" if "pubsc1" in OPTS else "sc0 sc1"
def gen_g2c(a):
    XF = 64; WF = 96
    def acc(c, t): return (c * 4 + t) * 4
    def xf(t, kk): return XF + (t * 2 + kk) * 4
    def wf(c, kk): return WF + (c * 2 + kk) * 4
    V_RA = 128; V_RB = 129; V_DA = 133; V_DB = 134; VL = 135; VT = 136; VG = 137; T = 138
    VPF = 152; VH = 153; VHA = 154; VHL = 156
    S_XP = 4; S_WO = 6; S_W2 = 8; S_OUTP = 10; S_DBG = 28; S_WSP = 30
    SRD_A = 12; SRD_B = 16; SRD_S = 20; SRD_X = 24; SRD_O = 32; SRD_F = 36
    S_WV = 40; S_MW = 41; S_NW = 42; S_WQ = 43; S_MT = 44; S_NT = 45; S_KQ = 46; S_J = 47
    S_KA = 48; S_PA = 49; S_PB = 50; S_MA = 51; S_MB = 52; S_MAE = 53; S_MBE = 54; S_ASL = 55; S_BSL = 56
    S_RAS = 57; S_RBS = 58; S_T = 59; S_T2 = 60; S_T3 = 61; S_KB = 62; S_SZ2 = 63; S_CUR = 64; S_DONE = 65
    S_TILE = 66; S_G = 67; S_CNT = 68; S_ARR = 69; S_PC = 70; S_DA = 72; S_DB = 73; S_Q = 74; S_ASZ = 75; S_XCC = 76; S_FB = 77; S_LOC = 78
    MAPK = f"""
    s_and_b32 s{S_KQ}, s2, 3
    s_bfe_u32 s{S_T}, s2, 0x10002             ; M half
    s_lshr_b32 s{S_T2}, s2, 3                 ; idx
    s_and_b32 s{S_MT}, s{S_T2}, 3
    s_lshl_b32 s{S_T}, s{S_T}, 2
    s_add_u32 s{S_MT}, s{S_MT}, s{S_T}        ; mt 0..7
    s_lshr_b32 s{S_NT}, s{S_T2}, 2            ; nt 0..7
"""
    MAPL = f"""
    s_lshr_b32 s{S_T2}, s2, 3                 ; idx
    s_and_b32 s{S_KQ}, s{S_T2}, 3
    s_bfe_u32 s{S_T}, s2, 0x20001             ; xcd >> 1
    s_lshl_b32 s{S_MT}, s{S_T}, 1
    s_bfe_u32 s{S_T}, s{S_T2}, 0x10002
    s_add_u32 s{S_MT}, s{S_MT}, s{S_T}        ; mt 0..7
    s_and_b32 s{S_NT}, s2, 1
    s_lshl_b32 s{S_NT}, s{S_NT}, 2
    s_lshr_b32 s{S_T}, s{S_T2}, 3
    s_add_u32 s{S_NT}, s{S_NT}, s{S_T}        ; nt 0..7
"""
    XF_ = "" if "xloc" in OPTS else "sc0 sc1"
    a.raw("""
.globl g2_kernel
.p2align 8
.type g2_kernel,@function
g2_kernel:""")
    a(f"""
    s_cmp_ge_u32 s2, 256
    s_cbranch_scc1 g2_exit
    s_load_dwordx2 s[{S_XP}:{S_XP+1}], s[0:1], 0
    s_load_dwordx2 s[{S_WO}:{S_WO+1}], s[0:1], 16
    s_load_dwordx4 s[{S_W2}:{S_W2+3}], s[0:1], 40      ; w2, out
    s_load_dwordx4 s[{S_DBG}:{S_DBG+3}], s[0:1], 56
    v_and_b32 v{VL}, 63, v0
    v_lshrrev_b32 v{T}, 6, v0
    v_and_b32 v{VT}, 15, v0
    v_readfirstlane_b32 s{S_WV}, v{T}
    v_bfe_u32 v{VG}, v0, 4, 2
    """)
    if STAMP: a(f"v_mov_b32 v{V_STAMP}, 0")
    stamp_now(a, 32); stamp_now(a, 50, True)
    a(f"""
    s_nop 2
    s_cmp_lg_u32 s{S_WV}, 7
    s_cbranch_scc1 g2_nopf
    """)
    code_prefetch(a, T, VL, S_PC, "g2_kernel", "g2_exit", 8192, VPF)
    a.label("g2_nopf")
    a(f"""
    """)
    a(MAPL if "xloc" in OPTS else MAPK)
    a(f"""
    s_lshl_b32 s{S_TILE}, s{S_MT}, 3
    s_add_u32 s{S_TILE}, s{S_TILE}, s{S_NT}
    s_lshr_b32 s{S_G}, s{S_WV}, 2
    s_and_b32 s{S_WQ}, s{S_WV}, 3
    s_and_b32 s{S_NW}, s{S_WV}, 1
    s_bfe_u32 s{S_MW}, s{S_WV}, 0x10001
    s_lshr_b32 s{S_Q}, s{S_WV}, 1
    s_xor_b32 s{S_T}, s{S_G}, 1
    s_lshl_b32 s{S_T2}, s{S_T}, 3
    s_lshl_b32 s{S_T3}, s{S_MT}, 4
    s_add_u32 s{S_T2}, s{S_T2}, s{S_T3}
    s_lshl_b32 s{S_T3}, s{S_WQ}, 1
    s_add_u32 s{S_T2}, s{S_T2}, s{S_T3}
    s_mul_i32 s{S_T2}, s{S_T2}, {MBLK_PITCH}
    v_lshl_add_u32 v{V_DA}, v{VL}, 4, s{S_T2}
    s_mul_i32 s{S_DA}, s{S_T}, {C_NA*C_ASLOT}
    s_lshl_b32 s{S_T3}, s{S_WQ}, 12
    s_add_u32 s{S_DA}, s{S_DA}, s{S_T3}
    v_lshrrev_b32 v{T}, 4, v{VL}
    s_lshl_b32 s{S_T}, s{S_WV}, 3
    v_add_u32 v{T+1}, s{S_T}, v{T}
    v_lshlrev_b32 v{T+1}, 11, v{T+1}
    s_lshl_b32 s{S_T}, s{S_NT}, 8
    v_add_u32 v{T+1}, s{S_T}, v{T+1}
    v_and_b32 v{T+2}, 1, v{VL}
    v_lshl_add_u32 v{T+1}, v{T+2}, 4, v{T+1}
    v_bfe_u32 v{T+2}, v{VL}, 1, 3
    s_lshl_b32 s{S_T}, s{S_NW}, 2
    v_or_b32 v{T}, s{S_T}, v{T}
    v_xor_b32 v{T+2}, v{T+2}, v{T}
    v_lshl_add_u32 v{V_DB}, v{T+2}, 5, v{T+1}
    s_lshl_b32 s{S_DB}, s{S_WV}, 11
    s_add_u32 s{S_DB}, s{S_DB}, {C_BBASE}
    s_waitcnt lgkmcnt(0)
    """)
    stamp_now(a, 41)
    a(f"""
    s_mov_b32 s{SRD_A}, s{S_WSP}
    s_and_b32 s{SRD_A+1}, s{S_WSP+1}, 0xffff
    s_mov_b32 s{SRD_A+3}, 0x20000
    s_mov_b32 s{SRD_B+3}, 0x20000
    s_and_b32 s{S_WO+1}, s{S_WO+1}, 0xffff
    s_and_b32 s{S_W2+1}, s{S_W2+1}, 0xffff
    s_mov_b32 s{S_SZ2}, {3584*2048}
    s_mov_b32 s{S_ASZ}, {A2_BYTES}
    s_mov_b32 s{S_CUR}, s{S_KQ}
    s_lshl_b32 s{S_DONE}, s{S_KQ}, 3
    s_lshl_b32 s{S_DONE}, 1, s{S_DONE}
    s_mov_b32 s{S_ARR}, 0
    s_mov_b32 s{S_LOC}, 0
    s_add_u32 s{SRD_S}, s{S_WSP}, {SLAB_OFF}
    s_addc_u32 s{SRD_S+1}, s{S_WSP+1}, 0
    s_and_b32 s{SRD_S+1}, s{SRD_S+1}, 0xffff
    s_mov_b32 s{SRD_S+2}, {SLAB_BYTES}
    s_mov_b32 s{SRD_S+3}, 0x20000
    s_add_u32 s{SRD_F}, s{S_WSP}, {FLAG_OFF}
    s_addc_u32 s{SRD_F+1}, s{S_WSP+1}, 0
    s_and_b32 s{SRD_F+1}, s{SRD_F+1}, 0xffff
    s_mov_b32 s{SRD_F+2}, {64*128}
    s_mov_b32 s{SRD_F+3}, 0x20000
    s_lshl_b32 s{S_FB}, s{S_TILE}, 7
    s_lshl_b32 s{S_T}, s{S_TILE}, 2
    s_add_u32 s{S_T}, s{S_T}, s{S_KQ}
    s_lshl_b32 s{S_T}, s{S_T}, 3
    s_add_u32 s{S_T}, s{S_T}, s{S_WV}
    s_lshl_b32 s{S_FB+1}, s{S_T}, 13
    v_lshlrev_b32 v155, 4, v{VL}
    s_mov_b32 s{SRD_X}, s{S_XP}
    s_and_b32 s{SRD_X+1}, s{S_XP+1}, 0xffff
    s_mov_b32 s{SRD_X+2}, {2048*2048}
    s_mov_b32 s{SRD_X+3}, 0x20000
    s_mov_b32 s{SRD_O}, s{S_OUTP}
    s_and_b32 s{SRD_O+1}, s{S_OUTP+1}, 0xffff
    s_mov_b32 s{SRD_O+2}, {2048*2048}
    s_mov_b32 s{SRD_O+3}, 0x20000
    """)
    def setA():
        a(f"""
        s_mul_i32 s{S_T}, s{S_CUR}, {NKS}
        s_add_u32 s{S_T}, s{S_T}, s{S_PA}
        s_lshl_b32 s{S_KA}, s{S_T}, 11
        s_cmp_ge_u32 s{S_PA}, {NKS}
        s_cselect_b32 s{SRD_A+2}, 0, s{S_ASZ}
        s_cselect_b32 s{S_MAE}, {LDS_DUMP}, s{S_MA}
        """)
    def setB():
        a(f"""
        s_mul_i32 s{S_T}, s{S_CUR}, {NKS}
        s_add_u32 s{S_T}, s{S_T}, s{S_PB}
        s_cmp_lt_u32 s{S_T}, 16
        s_cselect_b32 s{SRD_B}, s{S_WO}, s{S_W2}
        s_cselect_b32 s{SRD_B+1}, s{S_WO+1}, s{S_W2+1}
        s_cselect_b32 s{SRD_B+2}, {1024*2048}, s{S_SZ2}
        s_cselect_b32 s{S_T2}, 0, 16
        s_sub_u32 s{S_T}, s{S_T}, s{S_T2}
        s_lshl_b32 s{S_KB}, s{S_T}, 17
        s_cmp_ge_u32 s{S_PB}, {NKS}
        s_cselect_b32 s{SRD_B+2}, 0, s{SRD_B+2}
        s_cselect_b32 s{S_MBE}, {LDS_DUMP}, s{S_MB}
        """)
    def dmaA_list():
        L = []
        for e in range(2):
            L.append(f"""
            s_add_u32 m0, s{S_MAE}, {e*2048}
            s_add_u32 s{S_T3}, s{S_KA}, {e*MBLK_PITCH}
            buffer_load_dwordx4 v{V_DA}, {sr(SRD_A,4)}, s{S_T3} offen lds
            """)
            L.append(f"buffer_load_dwordx4 v{V_DA}, {sr(SRD_A,4)}, s{S_T3} offen offset:1024 lds")
        return L
    def dmaB_list():
        L = []
        for e in range(2):
            L.append(f"""
            s_add_u32 m0, s{S_MBE}, {e*1024}
            s_add_u32 s{S_T3}, s{S_KB}, {e*8192}
            buffer_load_dwordx4 v{V_DB}, {sr(SRD_B,4)}, s{S_T3} offen lds
            """)
        return L
    def advA():
        a(f"""
        s_add_u32 s{S_PA}, s{S_PA}, 1
        s_add_u32 s{S_ASL}, s{S_ASL}, 1
        s_add_u32 s{S_MA}, s{S_MA}, {C_ASLOT}
        s_cmp_eq_u32 s{S_ASL}, {C_NA}
        s_cselect_b32 s{S_ASL}, 0, s{S_ASL}
        s_cselect_b32 s{S_MA}, s{S_DA}, s{S_MA}
        """)
        setA()
    def advB():
        a(f"""
        s_add_u32 s{S_PB}, s{S_PB}, 1
        s_add_u32 s{S_BSL}, s{S_BSL}, 1
        s_add_u32 s{S_MB}, s{S_MB}, {C_BSLOT}
        s_cmp_eq_u32 s{S_BSL}, {C_NBS}
        s_cselect_b32 s{S_BSL}, 0, s{S_BSL}
        s_cselect_b32 s{S_MB}, s{S_DB}, s{S_MB}
        """)
        setB()
    def doA():
        for d in dmaA_list(): a(d)
        advA()
    def doB():
        for d in dmaB_list(): a(d)
        advB()
    a.label("g2_gemm")
    a(f"""
    s_mov_b32 s{S_PA}, 0
    s_mov_b32 s{S_PB}, 0
    s_mov_b32 s{S_ASL}, 0
    s_mov_b32 s{S_BSL}, 0
    s_mov_b32 s{S_MA}, s{S_DA}
    s_mov_b32 s{S_MB}, s{S_DB}
    """)
    setA(); setB()
    stamp_now(a, 42)
    a(f"""
    s_cmp_eq_u32 s{S_G}, 0
    s_cbranch_scc0 g2_pro1
    """)
    doB(); doA(); doB(); doA(); doB()
    a("s_branch g2_pro2")
    a.label("g2_pro1")
    doA(); doB(); doA(); doB(); doA(); doB()
    a.label("g2_pro2")
    stamp_now(a, 43)
    a(f"""
    s_cmp_eq_u32 s{S_CUR}, s{S_KQ}
    s_cbranch_scc0 g2_nozero
    """)
    for r in range(64):
        a(f"v_mov_b32 v{r}, 0")
    a.label("g2_nozero")
    a(f"""
    s_mul_i32 s{S_T}, s{S_G}, {C_NA*C_ASLOT}
    s_lshl_b32 s{S_T2}, s{S_MW}, 13
    s_add_u32 s{S_T}, s{S_T}, s{S_T2}
    v_lshl_add_u32 v{V_RA}, v{VL}, 4, s{S_T}
    v_lshrrev_b32 v{T}, 2, v{VT}              ; r
    v_lshl_add_u32 v{T+1}, v{VG}, 3, v{T}
    v_lshlrev_b32 v{T+1}, 8, v{T+1}
    v_and_b32 v{T+2}, 3, v{VL}
    v_lshl_add_u32 v{T+1}, v{T+2}, 3, v{T+1}
    v_add_u32 v{T+1}, {C_BBASE}, v{T+1}
    v_and_b32 v{T+2}, 1, v{VG}
    v_lshl_or_b32 v{T+2}, v{T+2}, 2, v{T}     ; f = r | (g&1)<<2
    s_lshl_b32 s{S_T}, s{S_NW}, 2
    v_xor_b32 v{T+2}, s{S_T}, v{T+2}
    """)
    for c in range(4):
        a(f"""
        v_xor_b32 v{T+3}, {c}, v{T+2}
        v_lshl_add_u32 v{V_RB+c}, v{T+3}, 5, v{T+1}
        """)
    a(f"""
    s_mov_b32 s{S_J}, 0
    s_mov_b32 s{S_RAS}, 0
    s_mov_b32 s{S_RBS}, 0
    """)
    stamp_now(a, 44)
    a("s_waitcnt vmcnt(12)")
    stamp_now(a, 45)
    a("s_barrier")
    stamp_now(a, 33)
    a(f"""
    s_cmp_eq_u32 s{S_G}, 0
    s_cbranch_scc1 g2_loop
    s_barrier
    """)
    reads = []
    for kk in range(2):
        for t in range(4):
            reads.append(f"ds_read_b128 {vr(xf(t,kk))}, v{V_RA} offset:{(t*2+kk)*1024}")
        for c in range(4):
            for h in range(2):
                reads.append(f"ds_read_b64_tr_b16 {vr(wf(c,kk)+2*h,2)}, v{V_RB+c} offset:{(32*kk+4*h)*256}")
    a.raw(".p2align 6")
    a.label("g2_loop")
    if "pretouch" in OPTS:
        a(f"""
        s_sub_u32 s{S_T}, s{S_J}, 4
        s_cmp_lt_u32 s{S_T}, 8
        s_cbranch_scc0 g2_nopt
        s_lshl_b32 s{S_T}, s{S_T}, 10
        s_add_u32 s{S_T}, s{S_T}, s{S_FB+1}
        buffer_load_dwordx4 v[156:159], v155, {sr(SRD_S,4)}, s{S_T} offen
        """)
        a.label("g2_nopt")
    dl = dmaA_list() + dmaB_list()
    di = 0
    for n_, r in enumerate(reads):
        a(r)
        if (n_ % 4 == 1 if 'g2d3' not in OPTS else n_ % 3 == 0) and di < len(dl):
            a(dl[di]); di += 1
    assert di == len(dl)
    a("""
    s_waitcnt vmcnt(12) lgkmcnt(0)
    s_barrier
    s_setprio 1
    """)
    real = a; a = bk = Collect()
    def _adv():
        pass
    bk(f"""
    s_add_u32 s{S_PA}, s{S_PA}, 1
    s_add_u32 s{S_ASL}, s{S_ASL}, 1
    s_add_u32 s{S_MA}, s{S_MA}, {C_ASLOT}
    s_cmp_eq_u32 s{S_ASL}, {C_NA}
    s_cselect_b32 s{S_ASL}, 0, s{S_ASL}
    s_cselect_b32 s{S_MA}, s{S_DA}, s{S_MA}
    s_add_u32 s{S_KA}, s{S_KA}, 2048
    s_cmp_ge_u32 s{S_PA}, {NKS}
    s_cselect_b32 s{SRD_A+2}, 0, s{S_ASZ}
    s_cselect_b32 s{S_MAE}, {LDS_DUMP}, s{S_MA}
    s_add_u32 s{S_PB}, s{S_PB}, 1
    s_add_u32 s{S_BSL}, s{S_BSL}, 1
    s_add_u32 s{S_MB}, s{S_MB}, {C_BSLOT}
    s_cmp_eq_u32 s{S_BSL}, {C_NBS}
    s_cselect_b32 s{S_BSL}, 0, s{S_BSL}
    s_cselect_b32 s{S_MB}, s{S_DB}, s{S_MB}
    s_add_u32 s{S_KB}, s{S_KB}, {1<<17}
    s_lshl_b32 s{S_T}, s{S_CUR}, 8
    s_add_u32 s{S_T}, s{S_T}, s{S_PB}
    s_cmp_eq_u32 s{S_T}, 16
    s_cselect_b32 s{SRD_B}, s{S_W2}, s{SRD_B}
    s_cselect_b32 s{SRD_B+1}, s{S_W2+1}, s{SRD_B+1}
    s_cselect_b32 s{SRD_B+2}, s{S_SZ2}, s{SRD_B+2}
    s_cselect_b32 s{S_KB}, 0, s{S_KB}
    s_cmp_ge_u32 s{S_PB}, {NKS}
    s_cselect_b32 s{SRD_B+2}, 0, s{SRD_B+2}
    s_cselect_b32 s{S_MBE}, {LDS_DUMP}, s{S_MB}
    s_add_u32 s{S_RAS}, s{S_RAS}, 1
    s_cmp_eq_u32 s{S_RAS}, {C_NA}
    s_cselect_b32 s{S_RAS}, 0, s{S_RAS}
    s_cselect_b32 s{S_T}, {C_NA*C_ASLOT}, 0
    s_sub_u32 s{S_T}, {C_ASLOT}, s{S_T}
    v_add_u32 v{V_RA}, s{S_T}, v{V_RA}
    s_add_u32 s{S_RBS}, s{S_RBS}, 1
    s_cmp_eq_u32 s{S_RBS}, {C_NBS}
    s_cselect_b32 s{S_RBS}, 0, s{S_RBS}
    s_cselect_b32 s{S_T}, {C_NBS*C_BSLOT}, 0
    s_sub_u32 s{S_T}, {C_BSLOT}, s{S_T}
    """)
    for c in range(4):
        bk(f"v_add_u32 v{V_RB+c}, s{S_T}, v{V_RB+c}")
    a = real
    mf = []
    for kk in range(2):
        for c in range(4):
            for t in range(4):
                mf.append(f"v_mfma_f32_16x16x32_bf16 {vr(acc(c,t))}, {vr(wf(c,kk))}, {vr(xf(t,kk))}, {vr(acc(c,t))}")
    interleave(a, mf, bk.L, start=(0 if 'g2bk3' in OPTS else 1), per=(3 if 'g2bk3' in OPTS else 2))
    a(f"""
    s_setprio 0
    s_add_u32 s{S_J}, s{S_J}, 1
    s_lshl_b32 s{S_T}, s{S_G}, 8
    s_add_u32 s{S_T}, s{S_T}, s{S_J}
    s_cmp_eq_u32 s{S_T}, {256 + NKS}
    s_cbranch_scc1 g2_post
    s_cmp_lt_u32 s{S_J}, {NKS}
    s_barrier
    s_cbranch_scc1 g2_loop
    """)
    a.label("g2_post")
    stamp_now(a, 34)
    V_XR = XF; V_XA = T + 1; V_OA = T + 2; PK = WF
    a(f"""
    v_lshlrev_b32 v{T}, 4, v{VL}
    s_cmp_eq_u32 s{S_Q}, s{S_KQ}
    s_cbranch_scc1 g2_own
    s_cmp_eq_u32 s{S_CUR}, s{S_KQ}
    s_cbranch_scc0 g2_pub_done
    s_lshl_b32 s{S_T}, s{S_TILE}, 2
    s_add_u32 s{S_T}, s{S_T}, s{S_KQ}
    s_lshl_b32 s{S_T}, s{S_T}, 3
    s_add_u32 s{S_T}, s{S_T}, s{S_WV}
    s_lshl_b32 s{S_T}, s{S_T}, 13
    s_add_u32 s{S_T2}, s{S_T}, 4096
    """)
    for bp in range(8):
        o = PK + 4 * bp
        for h in range(2):
            b = acc(bp >> 1, (bp & 1) * 2 + h)
            a(f"""
            v_cvt_pk_bf16_f32 v{o+2*h}, v{b}, v{b+1}
            v_cvt_pk_bf16_f32 v{o+2*h+1}, v{b+2}, v{b+3}
            """)
        a(f"buffer_store_dwordx4 {vr(o)}, v{T}, {sr(SRD_S,4)}, s{S_T if bp < 4 else S_T2} offen offset:{(bp%4)*1024} {XF_}")
    a("s_branch g2_pub_done")
    a.label("g2_own")
    a(f"""
    s_lshl_b32 s{S_T}, s{S_NW}, 14
    v_add_u32 v{T+3}, s{S_T}, v{T}
    """)
    for b in range(16):
        a(f"ds_write_b128 v{T+3}, {vr(4*b)} offset:{b*1024}")
    a.label("g2_pub_done")
    a(f"""
    s_lshl_b32 s{S_T}, s{S_MT}, 8
    s_lshl_b32 s{S_T2}, s{S_KQ}, 6
    s_add_u32 s{S_T}, s{S_T}, s{S_T2}
    s_lshl_b32 s{S_T2}, s{S_G}, 5
    s_add_u32 s{S_T}, s{S_T}, s{S_T2}
    v_add_u32 v{T+3}, s{S_T}, v{VT}
    v_lshlrev_b32 v{T+3}, 11, v{T+3}
    s_lshl_b32 s{S_T}, s{S_NT}, 8
    s_lshl_b32 s{S_T2}, s{S_NW}, 7
    s_add_u32 s{S_T}, s{S_T}, s{S_T2}
    s_lshl_b32 s{S_T2}, s{S_MW}, 6
    s_add_u32 s{S_T}, s{S_T}, s{S_T2}
    v_add_u32 v{T+3}, s{S_T}, v{T+3}
    v_lshl_add_u32 v{V_XA}, v{VG}, 3, v{T+3}
    v_and_b32 v{T+4}, 1, v{VG}
    v_lshrrev_b32 v{T+5}, 1, v{VG}
    v_lshl_or_b32 v{T+4}, v{T+4}, 1, v{T+5}
    v_lshl_add_u32 v{V_OA}, v{T+4}, 4, v{T+3}
    s_mov_b32 s{S_T}, {16*2048}
    """)
    for t in range(2):
        for e in range(2):
            so = "0" if t == 0 else f"s{S_T}"
            a(f"buffer_load_dwordx2 {vr(V_XR+(t*2+e)*2,2)}, v{V_XA}, {sr(SRD_X,4)}, {so} offen offset:{e*32}")
    a("s_waitcnt vmcnt(4) lgkmcnt(0)")
    stamp_now(a, 36)
    a(f"""
    s_barrier
    s_cmp_eq_u32 s{S_CUR}, s{S_KQ}
    s_cbranch_scc0 g2_after_publish
    s_cmp_eq_u32 s{S_WV}, 0
    s_cbranch_scc0 g2_wait_done
    s_lshl_b32 s{S_T}, s{S_KQ}, 2
    v_mov_b32 v{T+3}, s{S_DONE}
    v_mov_b32 v{T+4}, s{S_T}
    s_mov_b64 exec, 1
    buffer_store_dword v{T+3}, v{T+4}, {sr(SRD_F,4)}, s{S_FB} offen sc0 sc1
    s_mov_b32 s{S_CNT}, 0
    """)
    a.label("g2_poll")
    a(f"""
    buffer_load_dwordx4 {vr(T+6)}, off, {sr(SRD_F,4)}, s{S_FB} sc0 sc1
    s_waitcnt vmcnt(0)
    v_or_b32 v{T+6}, v{T+6}, v{T+7}
    v_or3_b32 v{T+5}, v{T+6}, v{T+8}, v{T+9}
    s_add_u32 s{S_CNT}, s{S_CNT}, 1
    v_readfirstlane_b32 s{S_ARR}, v{T+5}
    s_nop 3
    s_cmp_eq_u32 s{S_ARR}, {0x77 if "forcefb" in OPTS else 0x01010101}
    s_cbranch_scc1 g2_poll_end
    s_cmp_lt_u32 s{S_CNT}, {64 if "forcefb" in OPTS else 20000}
    s_cbranch_scc1 g2_poll
    """)
    a.label("g2_poll_end")
    if STAMP:
        a(f"v_writelane_b32 v{V_STAMP}, s{S_CNT}, 39")
    if "forcefb" in OPTS:
        a(f"s_and_b32 s{S_ARR}, s{S_ARR}, 0x00010001")
    a(f"""
    v_mov_b32 v{T+5}, s{S_ARR}
    v_mov_b32 v{T+4}, {65536}
    ds_write_b32 v{T+4}, v{T+5}
    s_mov_b64 exec, -1
    s_waitcnt lgkmcnt(0)
    """)
    a.label("g2_wait_done")
    a(f"""
    s_barrier
    v_mov_b32 v{T+4}, {65536}
    ds_read_b32 v{T+5}, v{T+4}
    s_waitcnt lgkmcnt(0)
    v_readfirstlane_b32 s{S_ARR}, v{T+5}
    s_nop 3
    """)
    a.label("g2_after_publish")
    a(f"""
    s_or_b32 s{S_T}, s{S_ARR}, s{S_DONE}
    s_cmp_eq_u32 s{S_T}, 0x01010101
    s_cbranch_scc1 g2_final
    s_andn2_b32 s{S_T}, 0x01010101, s{S_T}
    s_ff1_i32_b32 s{S_T}, s{S_T}
    s_lshl_b32 s{S_T2}, 1, s{S_T}
    s_or_b32 s{S_DONE}, s{S_DONE}, s{S_T2}
    s_lshr_b32 s{S_CUR}, s{S_T}, 3
    s_waitcnt vmcnt(0)
    s_barrier
    s_branch g2_gemm
    """)
    a.label("g2_final")
    stamp_now(a, 35)
    R0 = WF
    a(f"""
    s_andn2_b32 s{S_ARR}, s{S_ARR}, s{S_DONE}
    s_lshl_b32 s{S_T}, s{S_MW}, 2
    s_add_u32 s{S_T}, s{S_T}, s{S_G}
    s_lshl_b32 s{S_T}, s{S_T}, 10             ; pair0 * 1024
    s_lshl_b32 s{S_T2}, s{S_NW}, 13
    s_add_u32 s{S_T3}, s{S_T}, s{S_T2}
    """)
    for src in range(4):
        a(f"""
        s_bitcmp1_b32 s{S_ARR}, {8*src}
        s_cbranch_scc1 g2_ld{src}
        """)
        for r in range(8):
            a(f"v_mov_b32 v{8*src+r}, 0")
        a(f"s_branch g2_ld{src}_done")
        a.label(f"g2_ld{src}")
        a(f"""
        s_lshl_b32 s{S_T}, s{S_TILE}, 2
        s_add_u32 s{S_T}, s{S_T}, {src}
        s_lshl_b32 s{S_T}, s{S_T}, 2
        s_add_u32 s{S_T}, s{S_T}, s{S_KQ}
        s_lshl_b32 s{S_T}, s{S_T}, 14
        s_add_u32 s{S_T}, s{S_T}, s{S_T3}
        """)
        for e in range(2):
            a(f"buffer_load_dwordx4 {vr(8*src+4*e)}, v{T}, {sr(SRD_S,4)}, s{S_T} offen offset:{e*2048} {XF_}")
        a.label(f"g2_ld{src}_done")
    a(f"""
    s_lshl_b32 s{S_T}, s{S_MW}, 3
    s_lshl_b32 s{S_T2}, s{S_G}, 1
    s_add_u32 s{S_T}, s{S_T}, s{S_T2}
    s_lshl_b32 s{S_T}, s{S_T}, 10
    s_lshl_b32 s{S_T2}, s{S_NW}, 14
    s_add_u32 s{S_T}, s{S_T}, s{S_T2}
    v_add_u32 v{T+3}, s{S_T}, v{T}
    """)
    for e in range(2):
        for t in range(2):
            a(f"ds_read_b128 {vr(R0+(e*2+t)*4)}, v{T+3} offset:{e*4096 + t*1024}")
    a("s_waitcnt vmcnt(0) lgkmcnt(0)")
    stamp_now(a, 37)
    for t in range(2):
        o = XF + 16 + t * 4
        for e in range(2):
            c = R0 + (e * 2 + t) * 4
            srcs = [8 * src + 4 * e + 2 * t for src in range(4)] + [V_XR + (t * 2 + e) * 2]
            for p in srcs:
                a(f"""
                v_lshlrev_b32 v{T+8}, 16, v{p}
                v_and_b32 v{T+9}, 0xffff0000, v{p}
                v_lshlrev_b32 v{T+10}, 16, v{p+1}
                v_and_b32 v{T+11}, 0xffff0000, v{p+1}
                v_pk_add_f32 {vr(c,2)}, {vr(c,2)}, {vr(T+8,2)}
                v_pk_add_f32 {vr(c+2,2)}, {vr(c+2,2)}, {vr(T+10,2)}
                """)
            a(f"""
            v_cvt_pk_bf16_f32 v{o+2*e}, v{c}, v{c+1}
            v_cvt_pk_bf16_f32 v{o+2*e+1}, v{c+2}, v{c+3}
            """)
        so = "0" if t == 0 else f"s{S_T2}"
        a(f"""
        s_mov_b32 s{S_T2}, {16*2048}
        s_nop 0
        v_permlane16_swap_b32 v{o}, v{o+2}
        v_permlane16_swap_b32 v{o+1}, v{o+3}
        s_nop 1
        buffer_store_dwordx4 {vr(o)}, v{V_OA}, {sr(SRD_O,4)}, {so} offen
        """)
    stamp_now(a, 51, True)
    stamp_dump(a, S_WSP, S_WV, 40 << 20)
    a.label("g2_exit")
    a("s_endpgm")
    global G2_VGPRS
    G2_VGPRS = 256 if STAMP else 160

HEADER = f"""; mblk_pitch={MBLK_PITCH}
{"" if FUSE else "; @launch kernel=k0_kernel grid=(256,1,1) block=(512,1,1) lds=0"}
; @launch kernel=g1_kernel grid=(256,1,1) block=(512,1,1) lds={G1_LDS}
; @launch kernel=g2_kernel grid=(256,1,1) block=(512,1,1) lds={G2_LDS if 'g2a' in OPTS else G2C_LDS}
.amdgcn_target "amdgcn-amd-amdhsa--gfx950"
.text
"""

def kd(name, vgpr, sgpr):
    return f"""
.amdhsa_kernel {name}
  .amdhsa_next_free_vgpr {vgpr}
  .amdhsa_next_free_sgpr {sgpr}
  .amdhsa_accum_offset {(vgpr + 3) // 4 * 4}
  .amdhsa_group_segment_fixed_size 0
  .amdhsa_kernarg_size 72
  .amdhsa_user_sgpr_count 2
  .amdhsa_user_sgpr_kernarg_segment_ptr 1
  .amdhsa_system_sgpr_workgroup_id_x 1
.end_amdhsa_kernel
"""

def main():
    global STAMP
    if "stamp" in sys.argv[2:]: STAMP = True
    a = Asm()
    gen_k0(a)
    gen_g1(a)
    (gen_g2 if 'g2a' in OPTS else gen_g2c)(a)
    s = HEADER + a.text() + '.section .rodata,"a"\n.p2align 6\n' + kd("k0_kernel", 64, 40) + ".p2align 6\n" + kd("g1_kernel", 256, 102) + ".p2align 6\n" + kd("g2_kernel", G2_VGPRS, 102 if STAMP else 80)
    out = sys.argv[1] if len(sys.argv) > 1 else OUT
    open(out, "w").write(s)

main()
```

```python
import sys

OUT = "parallel_sum__sliding_local_dilated__dense_activation_relu__prompt.s"

class Asm:
    def __init__(self):
        self.L = []
    def __call__(self, s):
        for line in s.strip("\n").split("\n"):
            line = line.strip()
            if line:
                self.L.append("    " + line)
    def label(self, n):
        self.L.append(n + ":")
    def raw(self, s):
        self.L.append(s)
    def text(self):
        return "\n".join(self.L) + "\n"

class Collect:
    def __init__(self): self.L = []
    def __call__(self, s):
        for line in s.strip("\n").split("\n"):
            line = line.strip()
            if line: self.L.append(line)

def interleave(a, mfmas, fillers, start=2, per=2):
    fi = 0
    for n, m in enumerate(mfmas):
        a(m)
        if n >= start:
            for _ in range(per):
                if fi < len(fillers):
                    a(fillers[fi]); fi += 1
    while fi < len(fillers):
        a(fillers[fi]); fi += 1

def vr(b, n=4):
    return "v[%d:%d]" % (b, b + n - 1)
def sr(b, n=2):
    return "s[%d:%d]" % (b, b + n - 1)

MBLK_PITCH = 144 * 1024
for _o in sys.argv[2:]:
    if _o.startswith("pitch="): MBLK_PITCH = int(_o[6:])
A2_BYTES = 128 * MBLK_PITCH

G1_ASLOT = 16384
G1_BBASE = 65536
G1_BSLOT = 28672
G1_HALO = 24576
G1_STAT = G1_BBASE + 3 * G1_BSLOT
G1_CS = G1_STAT + 272 * 8
G1_CSP = G1_STAT + 3072
G1_CS = G1_CSP + 8192
G1_VERD = G1_CS + 896
G1_LDS = 163840 if "nofuse" not in sys.argv[2:] else G1_STAT
ST_OFF = 28 << 20
XN_OFF = 24 << 20
AT_PITCH = 400

V_ACC = 0
V_HACC = 96
V_XF = 112
V_WF = 144
V_HF = 200
V_S1 = 208
V_S2 = 210
V_SH = 212
V_CS = 214
V_WD = 208
V_WV = 212
V_RA = 217
V_RB = 221
V_RH = 228
V_DA = 230
V_DB = 231
V_DH = 235
V_T = 236
V_LANE = 250
V_TT = 251
V_GG = 252

S_X = 4; S_W = 6; S_WS = 8; S_W1 = 10
SRD_X = 12; SRD_W = 16; SRD_O = 20
S_WAVE = 24; S_MW = 26; S_NW = 27; S_WQ = 28; S_MT = 29; S_JT = 30; S_J = 31
S_KA = 32; S_KB = 33; S_MA = 34; S_MB = 35; S_BD = 36; S_BSL = 37; S_RSL = 38; S_TMP = 39
S_ONES = 40; S_KH = 41; S_TMP2 = 42; S_TMP3 = 43
S_BLK = 44
S_TB = 52
S_PO = 56
S_MASK = 64
S_BSC = 60
S_HD = 61
S_KW = 91
SRD_WW = 64; S_WM = 68; S_GW = 70; S_WPK = 71
V_L16 = 216
SRD_ST = 64; SRD_DBG = 72; S_NTI = 76; S_EV = 77; S_DBGP = 78
V_ONES = 240; V_CHK = 208
S_MAE = 25; S_MBE = 3
LDS_DUMP = 0x28000
SRD_XA = 96
S_WOP = 92; S_W2P = 94; S_PC1 = 62

STAMP = False
FUSE = "nofuse" not in sys.argv[2:]
OPTS = sys.argv[2:]
STF = "sc0 sc1" if "stsc" in OPTS else ""
STH = "sc0 sc1" if "hwt" in OPTS else ""
V_STAMP = 253
S_SA = 84; S_SB = 86; S_SC = 88; SRD_D = 80; S_SI = 90
def stamp_now(a, idx, real=False):
    if not STAMP: return
    a(f"""
    {"s_memrealtime" if real else "s_memtime"} {sr(S_SC)}
    s_waitcnt lgkmcnt(0)
    v_writelane_b32 v{V_STAMP}, s{S_SC}, {idx}
    """)
def stamp_dump(a, wsreg, wave_sreg, base_off):
    if not STAMP: return
    a(f"""
    s_waitcnt vmcnt(0)
    s_memtime {sr(S_SC)}
    s_waitcnt lgkmcnt(0)
    v_writelane_b32 v{V_STAMP}, s{S_SC}, 63
    s_mov_b32 s{SRD_D}, s{wsreg}
    s_and_b32 s{SRD_D+1}, s{wsreg+1}, 0xffff
    s_mov_b32 s{SRD_D+2}, {64<<20}
    s_mov_b32 s{SRD_D+3}, 0x20000
    s_lshl_b32 s{S_SC}, s2, 3
    s_add_u32 s{S_SC}, s{S_SC}, s{wave_sreg}
    s_lshl_b32 s{S_SC}, s{S_SC}, 8
    s_add_u32 s{S_SC}, s{S_SC}, {base_off}
    v_mbcnt_lo_u32_b32 v254, -1, 0
    v_mbcnt_hi_u32_b32 v254, -1, v254
    v_lshlrev_b32 v254, 2, v254
    buffer_store_dword v{V_STAMP}, v254, {sr(SRD_D,4)}, s{S_SC} offen
    """)

def acc(s, i): return V_ACC + (s * 4 + i) * 4
def xf(i, kk): return V_XF + (i * 2 + kk) * 4
def wf(s, kk): return V_WF + (s * 2 + kk) * 4
def hf(kk): return V_HF + kk * 4

def xlane_sum(a, v, t):
    a(f"""
    v_mov_b32 v{t}, v{v}
    s_nop 1
    v_permlane16_swap_b32 v{v}, v{t}
    s_nop 1
    v_add_f32 v{v}, v{v}, v{t}
    v_mov_b32 v{t}, v{v}
    s_nop 1
    v_permlane32_swap_b32 v{v}, v{t}
    s_nop 1
    v_add_f32 v{v}, v{v}, v{t}
    """)

def xlane_max(a, v, t):
    a(f"""
    v_mov_b32 v{t}, v{v}
    s_nop 1
    v_permlane16_swap_b32 v{v}, v{t}
    s_nop 1
    v_max_f32 v{v}, v{v}, v{t}
    v_mov_b32 v{t}, v{v}
    s_nop 1
    v_permlane32_swap_b32 v{v}, v{t}
    s_nop 1
    v_max_f32 v{v}, v{v}, v{t}
    """)

def reduce64(a, v, t):
    DPP = "row_mask:0xf bank_mask:0xf"
    a(f"""
    s_nop 1
    v_add_f32_dpp v{t}, v{v}, v{v} quad_perm:[1,0,3,2] {DPP}
    s_nop 1
    v_add_f32_dpp v{v}, v{t}, v{t} quad_perm:[2,3,0,1] {DPP}
    s_nop 1
    v_add_f32_dpp v{t}, v{v}, v{v} row_half_mirror {DPP}
    s_nop 1
    v_add_f32_dpp v{v}, v{t}, v{t} row_mirror {DPP}
    """)
    xlane_sum(a, v, t)

def row_stats(a, src, u, dst, t0, t1):
    for r in range(8):
        a(f"""
        v_lshlrev_b32 v{u+2*r}, 16, v{src+r}
        v_and_b32 v{u+2*r+1}, 0xffff0000, v{src+r}
        """)
    a(f"v_pk_add_f32 {vr(dst,2)}, {vr(u,2)}, {vr(u+2,2)}")
    for r in range(2, 8):
        a(f"v_pk_add_f32 {vr(dst,2)}, {vr(dst,2)}, {vr(u+2*r,2)}")
    a(f"v_add_f32 v{t0}, v{dst}, v{dst+1}")
    reduce64(a, t0, t1)
    a(f"v_mul_f32 v{t0}, 0x3a800000, v{t0}          ; mean")
    for r in range(8):
        a(f"v_pk_add_f32 {vr(u+2*r,2)}, {vr(u+2*r,2)}, {vr(t0,2)} op_sel_hi:[1,0] neg_lo:[0,1] neg_hi:[0,1]")
    a(f"v_pk_mul_f32 {vr(dst,2)}, {vr(u,2)}, {vr(u,2)}")
    for r in range(1, 8):
        a(f"v_pk_fma_f32 {vr(dst,2)}, {vr(u+2*r,2)}, {vr(u+2*r,2)}, {vr(dst,2)}")
    a(f"v_add_f32 v{dst+1}, v{dst}, v{dst+1}")
    reduce64(a, dst + 1, t1)
    a(f"""
    v_mul_f32 v{dst+1}, 0x3a800000, v{dst+1}     ; var
    v_cvt_pk_bf16_f32 v{t1}, v{t0}, v{dst+1}
    v_lshlrev_b32 v{dst}, 16, v{t1}              ; m_b
    v_and_b32 v{dst+1}, 0xffff0000, v{t1}        ; v_b
    v_add_f32 v{dst+1}, 0x3727c5ac, v{dst+1}
    v_cvt_pk_bf16_f32 v{dst+1}, v{dst+1}, v{dst+1}
    v_and_b32 v{dst+1}, 0xffff0000, v{dst+1}
    v_sqrt_f32 v{dst+1}, v{dst+1}
    s_nop 0
    v_cvt_pk_bf16_f32 v{dst+1}, v{dst+1}, v{dst+1}
    v_and_b32 v{dst+1}, 0xffff0000, v{dst+1}
    v_rcp_f32 v{dst+1}, v{dst+1}
    s_nop 0
    """)

def g1_path(a, typ, G):
    qkv = (typ == 0)
    NB = 6 if qkv else 7
    PB = 384 if qkv else 448
    CH = PB // 16
    WP = 6144 if qkv else 7168
    halo = qkv and G == 0
    if qkv:
        nB = 3
        p0 = 0 if G == 0 else 12
    else:
        nB = 4 if G == 0 else 3
        p0 = 0 if G == 0 else 16
    nIss = 4 + nB + (1 if halo else 0)
    nBiss = nB + (1 if halo else 0)
    cs_slots = [0, 1] if (qkv or G == 0) else [0, 1, 6]
    P = f"g1_{typ}{G}"
    T = V_T
    a.label(P)
    if STAMP: a(f"v_mov_b32 v{V_STAMP}, 0")
    stamp_now(a, 32); stamp_now(a, 50, True)
    if qkv:
        a(f"""
        s_mov_b32 s{SRD_W}, s{S_W}
        s_and_b32 s{SRD_W+1}, s{S_W+1}, 0xffff
        s_mov_b32 s{SRD_W+2}, {1024*6144}
        s_mov_b32 s{SRD_W+3}, 0x20000
        """)
    else:
        a(f"""
        s_mov_b32 s{SRD_W}, s{S_W1}
        s_and_b32 s{SRD_W+1}, s{S_W1+1}, 0xffff
        s_mov_b32 s{SRD_W+2}, {1024*7168}
        s_mov_b32 s{SRD_W+3}, 0x20000
        """)
    Go = 1 - G
    a(f"""
    v_lshrrev_b32 v{T}, 3, v{V_LANE}                 ; l>>3
    v_and_b32 v{T+1}, 7, v{V_LANE}
    v_xor_b32 v{T+1}, v{T+1}, v{T}                   ; chunk
    s_lshl_b32 s{S_TMP}, s{S_MT}, 8
    s_lshl_b32 s{S_TMP2}, s{S_WQ}, 5
    s_add_u32 s{S_TMP}, s{S_TMP}, s{S_TMP2}
    s_add_u32 s{S_TMP}, s{S_TMP}, {128*Go}
    v_add_u32 v{T+2}, s{S_TMP}, v{T}
    v_lshlrev_b32 v{T+2}, 11, v{T+2}
    v_lshl_add_u32 v{V_DA}, v{T+1}, 4, v{T+2}
    """)
    if halo:
        a(f"""
        s_and_b32 s{S_TMP2}, s{S_WQ}, 1
        s_lshl_b32 s{S_TMP2}, s{S_TMP2}, 3
        v_add_u32 v{T+2}, s{S_TMP2}, v{T}
        s_lshl_b32 s{S_TMP}, s{S_MT}, 8
        s_sub_u32 s{S_TMP}, s{S_TMP}, 16
        v_add_u32 v{T+2}, s{S_TMP}, v{T+2}
        v_max_i32 v{T+2}, 0, v{T+2}
        v_lshlrev_b32 v{T+2}, 11, v{T+2}
        v_lshl_add_u32 v{V_DH}, v{T+1}, 4, v{T+2}
        s_mul_i32 s{S_HD}, s{S_WQ}, {nB*1024}
        s_sub_u32 s{S_HD}, {G1_HALO - p0*1024}, s{S_HD}
        s_lshl_b32 s{S_TMP2}, s{S_TMP2}, 7           ; (wq&1)*1024
        s_add_u32 s{S_HD}, s{S_HD}, s{S_TMP2}
        """)
    magic = (65536 + CH - 1) // CH
    for q in range(64 * CH):
        assert (q * magic) >> 16 == q // CH
    a(f"s_mul_i32 s{S_TMP3}, s{S_WQ}, {nB*64}")
    for i in range(nB):
        a(f"""
        s_add_u32 s{S_TMP}, s{S_TMP3}, {(p0+i)*64}
        v_add_u32 v{T}, s{S_TMP}, v{V_LANE}          ; q
        v_mul_u32_u24 v{T+1}, {magic}, v{T}
        v_lshrrev_b32 v{T+1}, 16, v{T+1}             ; k
        v_mul_u32_u24 v{T+2}, {CH}, v{T+1}
        v_sub_u32 v{T+2}, v{T}, v{T+2}               ; c'
        """)
        if qkv:
            a(f"""
            v_bfe_u32 v{T+3}, v{T+1}, 1, 1
            v_bfe_u32 v{T+4}, v{T+1}, 3, 1
            v_lshl_or_b32 v{T+3}, v{T+4}, 1, v{T+3}  ; f
            v_lshrrev_b32 v{T+4}, 1, v{T+2}
            v_xor_b32 v{T+4}, v{T+4}, v{T+3}         ; unit (0..11)
            v_cmp_le_u32 vcc, 6, v{T+4}
            s_nop 1
            v_cndmask_b32 v{T+5}, 0, 1, vcc          ; hh
            v_mul_u32_u24 v{T+6}, 6, v{T+5}
            v_sub_u32 v{T+6}, v{T+4}, v{T+6}         ; unit % 6
            v_lshrrev_b32 v{T+7}, 1, v{T+6}          ; part
            v_and_b32 v{T+6}, 1, v{T+6}              ; half32
            v_lshlrev_b32 v{T+7}, 11, v{T+7}         ; part*2048
            v_lshl_add_u32 v{T+7}, v{T+5}, 6, v{T+7} ; + hh*64
            v_lshl_add_u32 v{T+7}, v{T+6}, 5, v{T+7} ; + half32*32
            v_and_b32 v{T+6}, 1, v{T+2}
            v_lshl_add_u32 v{T+7}, v{T+6}, 4, v{T+7} ; + (c'&1)*16
            s_lshl_b32 s{S_TMP}, s{S_JT}, 7          ; 2 jt * 64
            v_add_u32 v{T+7}, s{S_TMP}, v{T+7}
            v_mul_u32_u24 v{T+1}, {WP}, v{T+1}
            v_add_u32 v{V_DB+i}, v{T+1}, v{T+7}
            """)
        else:
            a(f"""
            v_bfe_u32 v{T+3}, v{T+1}, 3, 1
            v_lshlrev_b32 v{T+3}, 1, v{T+3}
            v_xor_b32 v{T+2}, v{T+2}, v{T+3}         ; c = c' ^ (2*bit3(k))
            v_lshlrev_b32 v{T+2}, 4, v{T+2}
            s_mul_i32 s{S_TMP}, s{S_JT}, 448
            v_add_u32 v{T+2}, s{S_TMP}, v{T+2}
            v_mul_u32_u24 v{T+1}, {WP}, v{T+1}
            v_add_u32 v{V_DB+i}, v{T+1}, v{T+2}
            """)
    a(f"""
    s_lshl_b32 s{S_KA}, s{S_MT}, {8 if FUSE else 31}
    s_and_b32 s{S_KA}, s{S_KA}, 0x7ff
    s_mul_i32 s{S_KB}, s{S_MT}, {128*WP if FUSE else 0}
    s_mov_b32 s{S_KH}, s{S_KA}
    s_lshl_b32 s{S_MA}, s{S_WQ}, 12
    s_add_u32 s{S_MA}, s{S_MA}, {Go*2*G1_ASLOT}
    s_mul_i32 s{S_MB}, s{S_WQ}, {nB*1024}
    s_add_u32 s{S_MB}, s{S_MB}, {G1_BBASE + p0*1024}
    s_mov_b32 s{S_BSL}, 0
    """)
    def dma_A():
        for i in range(4):
            a(f"""
            s_add_u32 m0, s{S_MA}, {i*1024}
            s_add_u32 s{S_TMP}, s{S_KA}, {i*16384}
            buffer_load_dwordx4 v{V_DA}, {sr(SRD_XA,4)}, s{S_TMP} offen lds
            """)
        a(f"""
        s_add_u32 s{S_KA}, s{S_KA}, 128
        s_and_b32 s{S_KA}, s{S_KA}, 0x7ff
        s_xor_b32 s{S_MA}, s{S_MA}, {G1_ASLOT}
        """)
    def dma_B():
        for i in range(nB):
            a(f"""
            s_add_u32 m0, s{S_MB}, {i*1024}
            s_nop 0
            buffer_load_dwordx4 v{V_DB+i}, {sr(SRD_W,4)}, s{S_KB} offen lds
            """)
        if halo:
            a(f"""
            s_add_u32 m0, s{S_MB}, s{S_HD}
            s_nop 0
            buffer_load_dwordx4 v{V_DH}, {sr(SRD_X,4)}, s{S_KH} offen lds
            s_add_u32 s{S_KH}, s{S_KH}, 128
            s_and_b32 s{S_KH}, s{S_KH}, 0x7ff
            """)
        a(f"""
        s_add_u32 s{S_KB}, s{S_KB}, {64*WP}
        s_cmp_eq_u32 s{S_KB}, {1024*WP}
        s_cselect_b32 s{S_KB}, 0, s{S_KB}
        s_add_u32 s{S_BSL}, s{S_BSL}, 1
        s_add_u32 s{S_MB}, s{S_MB}, {G1_BSLOT}
        s_cmp_eq_u32 s{S_BSL}, 3
        s_cselect_b32 s{S_TMP}, {3*G1_BSLOT}, 0
        s_cselect_b32 s{S_BSL}, 0, s{S_BSL}
        s_sub_u32 s{S_MB}, s{S_MB}, s{S_TMP}
        """)
    if G == 0:
        dma_B(); dma_A(); dma_B()
        pro_wait = 4 + nBiss
    else:
        dma_A(); dma_B(); dma_A(); dma_B()
        pro_wait = 4 + nBiss
    WARM = "nowarmw" not in OPTS and not FUSE
    a(f"""
    s_and_b32 s{S_WOP+1}, s{S_WOP+1}, 0xffff
    s_and_b32 s{S_W2P+1}, s{S_W2P+1}, 0xffff
    s_lshl_b32 s{S_GW}, s2, 3
    s_add_u32 s{S_GW}, s{S_GW}, s{S_WAVE}
    s_lshl_b32 s{S_GW}, s{S_GW}, 10
    v_lshlrev_b32 v{V_L16}, 4, v{V_LANE}
    s_mov_b32 s{S_WPK}, {128*WP}
    s_mov_b32 s{S_KW}, 0
    """)
    if WARM:
        a(f"""
        v_min_u32 v{T}, {2*CH - 1}, v{V_LANE}
        v_cmp_le_u32 vcc, {CH}, v{T}
        s_lshl_b32 s{S_TMP}, s{S_MT}, 4
        s_lshl_b32 s{S_TMP2}, s{S_WAVE}, 1
        v_cndmask_b32 v{T+1}, 0, 1, vcc              ; row
        s_add_u32 s{S_TMP}, s{S_TMP}, s{S_TMP2}
        v_mul_u32_u24 v{T+2}, {CH}, v{T+1}
        v_sub_u32 v{T}, v{T}, v{T+2}                 ; chunk
        v_add_u32 v{T+1}, s{S_TMP}, v{T+1}
        v_mul_u32_u24 v{T+1}, {WP}, v{T+1}
        """)
        if qkv:
            a(f"""
            v_lshrrev_b32 v{T+2}, 3, v{T}
            v_lshl_add_u32 v{T+1}, v{T+2}, 11, v{T+1}
            v_and_b32 v{T}, 7, v{T}
            s_lshl_b32 s{S_TMP}, s{S_JT}, 7
            """)
        else:
            a(f"s_mul_i32 s{S_TMP}, s{S_JT}, 448")
        a(f"""
        v_lshl_add_u32 v{T+1}, v{T}, 4, v{T+1}
        v_add_u32 v{V_WV}, s{S_TMP}, v{T+1}
        s_mov_b32 s{S_KW}, {256*WP}
        buffer_load_dwordx4 {vr(V_WD)}, v{V_WV}, {sr(SRD_W,4)}, s{S_KW} offen
        s_mov_b32 s{S_KW}, {384*WP}
        buffer_load_dwordx4 {vr(V_WD)}, v{V_WV}, {sr(SRD_W,4)}, s{S_KW} offen
        s_mov_b32 s{S_KW}, {512*WP}
        s_mov_b32 s{SRD_WW}, s{SRD_W}
        s_mov_b32 s{SRD_WW+1}, s{SRD_W+1}
        s_mov_b32 s{SRD_WW+2}, s{SRD_W+2}
        s_mov_b32 s{SRD_WW+3}, 0x20000
        s_and_b32 s{S_WOP+1}, s{S_WOP+1}, 0xffff
        s_and_b32 s{S_W2P+1}, s{S_W2P+1}, 0xffff
        s_mov_b32 s{S_WPK}, {128*WP}
        s_lshl_b32 s{S_GW}, s2, 3
        s_add_u32 s{S_GW}, s{S_GW}, s{S_WAVE}
        s_lshl_b32 s{S_GW}, s{S_GW}, 10
        v_lshlrev_b32 v{V_L16}, 4, v{V_LANE}
        """)
        pro_wait += 2
        nIss += 1
    NCOL = 16 * 2 * NB
    VCS = 216 - 4 * len(cs_slots)
    if FUSE:
        a(f"""
        s_add_u32 s{SRD_ST}, s{S_WS}, {ST_OFF}
        s_addc_u32 s{SRD_ST+1}, s{S_WS+1}, 0
        s_and_b32 s{SRD_ST+1}, s{SRD_ST+1}, 0xffff
        s_mov_b32 s{SRD_ST+2}, {65536 + 262144}
        s_mov_b32 s{SRD_ST+3}, 0x20000
        s_mov_b32 s{SRD_DBG}, s{S_DBGP}
        s_and_b32 s{SRD_DBG+1}, s{S_DBGP+1}, 0xffff
        s_mov_b32 s{SRD_DBG+2}, 256
        s_mov_b32 s{SRD_DBG+3}, 0x20000
        s_add_u32 s{S_NTI}, s{S_JT}, {16*typ}
        s_mov_b32 s{S_EV}, {(((1<<2) | (1<<5) | (1<<12) | (1<<14)) if G == 0 else (1<<2)) | (1<<15) | (0 if G == 0 else (3<<13))}
        """)
        if G == 1:
            a(f"""
            s_lshl_b32 s{S_TMP}, s{S_MT}, 8
            s_lshl_b32 s{S_TMP2}, s{S_NTI}, 3
            s_add_u32 s{S_TMP}, s{S_TMP}, s{S_TMP2}
            s_lshl_b32 s{S_TMP2}, s{S_WQ}, 1
            s_add_u32 s{S_KW}, s{S_TMP}, s{S_TMP2}
            s_lshl_b32 s{S_TMP}, s{S_KW}, 11
            """)
            for i in range(4):
                a(f"buffer_load_dwordx4 {vr(V_XF+4*i)}, v{V_L16}, {sr(SRD_X,4)}, s{S_TMP} offen offset:{1024*i}")
            pro_wait += 4
    if qkv:
        if G == 0:
            a(f"""
            s_mul_i32 s{S_TMP}, s{S_NW}, 6
            s_lshl_b32 s{S_TMP2}, s{S_MW}, 1
            s_add_u32 s{S_BLK+0}, s{S_TMP}, s{S_TMP2}
            s_add_u32 s{S_BLK+0}, s{S_BLK+0}, 2
            s_add_u32 s{S_BLK+1}, s{S_BLK+0}, 1
            s_mov_b32 s{S_BLK+2}, s{S_TMP}
            s_add_u32 s{S_BLK+3}, s{S_TMP}, 1
            s_sub_u32 s{S_BLK+4}, s{S_TMP}, s{S_TMP2}
            s_add_u32 s{S_BLK+4}, s{S_BLK+4}, 4
            s_add_u32 s{S_BLK+5}, s{S_BLK+4}, 1
            """)
        else:
            a(f"s_mul_i32 s{S_TMP}, s{S_NW}, 6")
            for s in range(6):
                a(f"s_add_u32 s{S_BLK+s}, s{S_TMP}, {s}")
    else:
        a(f"s_lshl_b32 s{S_TMP2}, s{S_NW}, 3")
        for ps in range(3):
            a(f"""
            s_add_u32 s{S_TMP}, s{S_MW}, {(ps + 2*G) % 3}
            s_cmp_ge_u32 s{S_TMP}, 3
            s_cselect_b32 s{S_TMP3}, 3, 0
            s_sub_u32 s{S_TMP}, s{S_TMP}, s{S_TMP3}
            s_lshl_b32 s{S_TMP}, s{S_TMP}, 1
            s_add_u32 s{S_BLK+2*ps}, s{S_TMP}, s{S_TMP2}
            s_add_u32 s{S_BLK+2*ps+1}, s{S_BLK+2*ps}, 1
            """)
        a(f"s_add_u32 s{S_BLK+6}, s{S_NW}, 6")
    a(f"""
    v_and_b32 v{T}, 7, v{V_TT}
    v_xor_b32 v{T}, v{V_GG}, v{T}                    ; g ^ (t&7)
    v_lshlrev_b32 v{T}, 4, v{T}
    v_lshl_add_u32 v{T}, v{V_TT}, 7, v{T}
    s_lshl_b32 s{S_TMP}, s{S_MW}, 13
    s_add_u32 s{S_TMP}, s{S_TMP}, {G*2*G1_ASLOT}
    s_lshl_b32 s{S_TMP2}, s{S_NW}, 12
    s_add_u32 s{S_TMP3}, s{S_TMP}, s{S_TMP2}
    v_add_u32 v{V_RA+0}, s{S_TMP3}, v{T}
    v_xor_b32 v{V_RA+1}, 64, v{V_RA+0}
    s_xor_b32 s{S_TMP2}, s{S_TMP2}, 4096
    s_add_u32 s{S_TMP3}, s{S_TMP}, s{S_TMP2}         ; sp=1
    v_add_u32 v{V_RA+2}, s{S_TMP3}, v{T}
    v_xor_b32 v{V_RA+3}, 64, v{V_RA+2}
    """)
    if halo:
        a(f"""
        v_add_u32 v{V_RH+0}, {G1_BBASE + G1_HALO}, v{T}
        v_xor_b32 v{V_RH+1}, 64, v{V_RH+0}
        """)
    a(f"""
    v_lshrrev_b32 v{T}, 2, v{V_TT}                   ; r
    v_lshl_add_u32 v{T+1}, v{V_GG}, 3, v{T}          ; 8g + r
    v_mul_u32_u24 v{T+1}, {PB}, v{T+1}
    v_and_b32 v{T+2}, 3, v{V_LANE}
    v_lshl_add_u32 v{T+1}, v{T+2}, 3, v{T+1}         ; + c*8
    v_add_u32 v{T+1}, {G1_BBASE}, v{T+1}
    v_and_b32 v{T+2}, 1, v{V_GG}                     ; g&1
    """)
    if qkv:
        a(f"""
        v_lshrrev_b32 v{T+3}, 1, v{T}                ; bit1(r)
        v_lshl_or_b32 v{T+2}, v{T+2}, 1, v{T+3}      ; f
        """)
    for s in range(NB):
        a(f"""
        v_xor_b32 v{T+3}, s{S_BLK+s}, v{T+2}
        v_lshl_add_u32 v{V_RB+s}, v{T+3}, 5, v{T+1}
        """)
    nacc = (NB * 4) * 4
    for r in range(V_ACC, V_ACC + nacc):
        a(f"v_mov_b32 v{r}, 0")
    if halo:
        for r in range(V_HACC, V_HACC + 8):
            a(f"v_mov_b32 v{r}, 0")
    if FUSE:
        for r in range(4 * len(cs_slots)):
            a(f"v_mov_b32 v{VCS+r}, 0")
        for r in range(4):
            a(f"v_mov_b32 v{V_ONES+r}, 0x3f803f80")
    a(f"""
    s_mov_b32 s{S_BSC}, {G1_BSLOT}
    s_mov_b32 s{S_J}, 0
    s_mov_b32 s{S_RSL}, 0
    s_waitcnt vmcnt({pro_wait})
    s_barrier
    """)
    stamp_now(a, 33)
    if G == 1:
        if FUSE:
            a("s_waitcnt vmcnt(0)")
            row_stats(a, V_XF, V_WF, V_WF + 16, V_WF + 20, V_WF + 21)
            row_stats(a, V_XF + 8, V_WF, V_WF + 18, V_WF + 20, V_WF + 21)
            a(f"""
            v_lshlrev_b32 v{V_WF+20}, 24, v{V_LANE}
            s_lshl_b32 s{S_TMP}, s{S_KW}, 3
            buffer_store_dwordx4 {vr(V_WF+16)}, v{V_WF+20}, {sr(SRD_ST,4)}, s{S_TMP} offen sc0 sc1
            """)
        a("s_barrier")
    if STAMP: a(f"s_mov_b32 s{S_SB}, 0")

    def rd_x(i):
        sp, e = i >> 1, i & 1
        for kk in range(2):
            a(f"ds_read_b128 {vr(xf(i,kk))}, v{V_RA+sp*2+kk} offset:{e*2048}")
    def rd_w(s):
        for kk in range(2):
            for h in range(2):
                a(f"ds_read_b64_tr_b16 {vr(wf(s,kk)+2*h,2)}, v{V_RB+s} offset:{(32*kk+4*h)*PB}")
    def dma_list():
        L = []
        for i in range(4):
            L.append(f"""
            s_add_u32 m0, s{S_MAE}, {i*1024}
            s_add_u32 s{S_TMP}, s{S_KA}, {i*16384}
            buffer_load_dwordx4 v{V_DA}, {sr(SRD_XA,4)}, s{S_TMP} offen lds
            """)
        for i in range(nB):
            L.append(f"""
            s_add_u32 m0, s{S_MBE}, {i*1024}
            s_nop 0
            buffer_load_dwordx4 v{V_DB+i}, {sr(SRD_W,4)}, s{S_KB} offen lds
            """)
        if halo:
            L.append(f"""
            s_add_u32 m0, s{S_MBE}, s{S_HD}
            s_nop 0
            buffer_load_dwordx4 v{V_DH}, {sr(SRD_X,4)}, s{S_KH} offen lds
            """)
        if WARM:
            L.append(f"buffer_load_dwordx4 {vr(V_WD)}, v{V_WV}, {sr(SRD_WW,4)}, s{S_KW} offen")
        return L
    a(f"""
    s_mov_b32 s{S_MAE}, s{S_MA}
    s_mov_b32 s{S_MBE}, s{S_MB}
    """)
    reads = []
    for i in range(4):
        sp, e = i >> 1, i & 1
        for kk in range(2):
            reads.append((kk, f"ds_read_b128 {vr(xf(i,kk))}, v{V_RA+sp*2+kk} offset:{e*2048}"))
    if halo:
        for kk in range(2):
            reads.append((kk, f"ds_read_b128 {vr(hf(kk))}, v{V_RH+kk}"))
    for s_ in range(NB):
        for kk in range(2):
            for h in range(2):
                reads.append((kk, f"ds_read_b64_tr_b16 {vr(wf(s_,kk)+2*h,2)}, v{V_RB+s_} offset:{(32*kk+4*h)*PB}"))
    reads = [r for k_, r in reads if k_ == 0] + [r for k_, r in reads if k_ == 1]

    bk = Collect()
    bk(f"""
    s_add_u32 s{S_KA}, s{S_KA}, 128
    s_and_b32 s{S_KA}, s{S_KA}, 0x7ff
    s_xor_b32 s{S_MA}, s{S_MA}, {G1_ASLOT}
    s_cmp_ge_u32 s{S_J}, {14 if G == 0 else 13}
    s_cselect_b32 s{SRD_XA+2}, 0, s{SRD_XA+2}
    s_cselect_b32 s{S_MAE}, {LDS_DUMP}, s{S_MA}
    s_add_u32 s{S_KH}, s{S_KH}, 128
    s_and_b32 s{S_KH}, s{S_KH}, 0x7ff
    s_add_u32 s{S_KW}, s{S_KW}, s{S_WPK}
    s_add_u32 s{S_KB}, s{S_KB}, {64*WP}
    s_cmp_eq_u32 s{S_KB}, {1024*WP}
    s_cselect_b32 s{S_KB}, 0, s{S_KB}
    s_add_u32 s{S_BSL}, s{S_BSL}, 1
    s_add_u32 s{S_MB}, s{S_MB}, {G1_BSLOT}
    s_cmp_eq_u32 s{S_BSL}, 3
    s_cselect_b32 s{S_TMP}, {3*G1_BSLOT}, 0
    s_cselect_b32 s{S_BSL}, 0, s{S_BSL}
    s_sub_u32 s{S_MB}, s{S_MB}, s{S_TMP}
    s_cmp_ge_u32 s{S_J}, 13
    s_cselect_b32 s{S_MBE}, {LDS_DUMP}, s{S_MB}
    s_cselect_b32 s{SRD_W+2}, 0, s{SRD_W+2}
    s_cselect_b32 s{SRD_X+2}, 0, s{SRD_X+2}
    s_add_u32 s{S_RSL}, s{S_RSL}, 1
    s_cmp_eq_u32 s{S_RSL}, 3
    s_cselect_b32 s{S_BD}, {(-2*G1_BSLOT) & 0xffffffff}, s{S_BSC}
    s_cselect_b32 s{S_RSL}, 0, s{S_RSL}
    """)
    for r in range(4):
        bk(f"v_xor_b32 v{V_RA+r}, {G1_ASLOT}, v{V_RA+r}")
    for s_ in range(NB):
        bk(f"v_add_u32 v{V_RB+s_}, s{S_BD}, v{V_RB+s_}")
    if halo:
        for kk in range(2):
            bk(f"v_add_u32 v{V_RH+kk}, s{S_BD}, v{V_RH+kk}")
    BKL = "bkL" in OPTS
    a.raw(".p2align 6")
    a.label(P + "_loop")
    if STAMP: a(f"s_memtime {sr(S_SA)}")
    dl = dma_list()
    step = max(3, len(reads) // len(dl))
    order = "rdfirst" if "rdfirst" in OPTS else "mix"
    if order == "rdfirst":
        for r in reads: a(r)
        for d in dl: a(d)
    else:
        di = 0
        for n_, r in enumerate(reads):
            a(r)
            if (n_ % step) == 1 and di < len(dl):
                a(dl[di]); di += 1
        while di < len(dl):
            a(dl[di]); di += 1
    if BKL:
        for l_ in bk.L: a(l_)
    if STAMP: a(f"s_memtime {sr(100)}")
    if FUSE:
        a(f"""
        s_bitcmp1_b32 s{S_EV}, s{S_J}
        s_cbranch_scc1 {P}_event
        """)
    a(f"s_waitcnt vmcnt({0 if 'strictwait' in OPTS else nIss}) lgkmcnt(0)")
    a.label(P + "_afterwait")
    if STAMP:
        a(f"""
        s_lshl_b32 s{S_SI}, s{S_J}, 1
        s_mov_b32 m0, s{S_SI}
        s_nop 3
        v_writelane_b32 v{V_STAMP}, s{S_SA}, m0
        s_add_u32 s{S_SI}, s{S_SI}, 63
        s_and_b32 m0, s{S_SI}, 63
        s_nop 3
        v_writelane_b32 v{V_STAMP}, s{S_SB}, m0
        s_memtime {sr(S_SC)}
        s_cmp_eq_u32 s{S_J}, 8
        s_cbranch_scc0 {P}_nost
        s_waitcnt lgkmcnt(0)
        v_writelane_b32 v{V_STAMP}, s{S_SA}, 40
        v_writelane_b32 v{V_STAMP}, s100, 41
        v_writelane_b32 v{V_STAMP}, s{S_SC}, 42
        """)
        a.label(P + "_nost")
    a("s_barrier")
    if STAMP: a(f"s_memtime {sr(S_SB)}")
    a("s_setprio 1")
    mf = []
    for kk in range(2):
        for s_ in range(NB):
            for i in range(4):
                mf.append(f"v_mfma_f32_16x16x32_bf16 {vr(acc(s_,i))}, {vr(wf(s_,kk))}, {vr(xf(i,kk))}, {vr(acc(s_,i))}")
        if halo:
            for s_ in range(2):
                mf.append(f"v_mfma_f32_16x16x32_bf16 {vr(V_HACC+4*s_)}, {vr(wf(s_,kk))}, {vr(hf(kk))}, {vr(V_HACC+4*s_)}")
    interleave(a, mf, [] if BKL else bk.L, start=2, per=1)
    if FUSE:
        a(f"""
        s_cmp_lt_u32 s{S_J}, 2
        s_cbranch_scc0 {P}_nocs
        """)
        for kk in range(2):
            for ci, s_ in enumerate(cs_slots):
                a(f"v_mfma_f32_16x16x32_bf16 {vr(VCS+4*ci)}, {vr(wf(s_,kk))}, {vr(V_ONES)}, {vr(VCS+4*ci)}")
        a.label(P + "_nocs")
    a(f"""
    s_setprio 0
    s_add_u32 s{S_J}, s{S_J}, 1
    s_cmp_lt_u32 s{S_J}, 16
    """)
    if G == 0:
        a(f"""
        s_barrier
        s_cbranch_scc1 {P}_loop
        s_branch {P}_post
        """)
    else:
        a(f"""
        s_cbranch_scc0 {P}_post
        s_barrier
        s_branch {P}_loop
        """)
    if FUSE:
        a.label(P + "_event")
        def warm2():
            a(f"""
            s_mov_b32 s{SRD_ST}, s{S_WOP}
            s_mov_b32 s{SRD_ST+1}, s{S_WOP+1}
            s_mov_b32 s{SRD_ST+2}, {1024*2048}
            s_mov_b32 s{SRD_DBG}, s{S_W2P}
            s_mov_b32 s{SRD_DBG+1}, s{S_W2P+1}
            s_mov_b32 s{SRD_DBG+2}, {3584*2048}
            s_mov_b32 s{SRD_ST+3}, 0x20000
            s_mov_b32 s{SRD_DBG+3}, 0x20000
            s_lshl_b32 s{S_TMP}, s{S_GW}, 2
            buffer_load_dwordx4 {vr(212)}, v{V_L16}, {sr(SRD_ST,4)}, s{S_GW} offen
            """)
            for i in range(4):
                a(f"buffer_load_dwordx4 {vr(212)}, v{V_L16}, {sr(SRD_DBG,4)}, s{S_TMP} offen offset:{i*1024}")

        NW2 = 13 if "slabtail" in OPTS else 5
        warm2a = warm2
        def warm2():
            warm2a()
            if "slabtail" in OPTS:
                a(f"""
                s_add_u32 s{SRD_ST}, s{S_WS}, {64 << 20}
                s_addc_u32 s{SRD_ST+1}, s{S_WS+1}, 0
                s_and_b32 s{SRD_ST+1}, s{SRD_ST+1}, 0xffff
                s_mov_b32 s{SRD_ST+2}, {16 << 20}
                s_and_b32 s{S_TMP}, s2, 3
                s_lshr_b32 s{S_TMP2}, s{S_WAVE}, 1
                s_cmp_eq_u32 s{S_TMP}, s{S_TMP2}
                s_cselect_b32 s{SRD_ST+2}, 0, s{SRD_ST+2}
                s_lshl_b32 s{S_TMP}, s{S_GW}, 3
                s_add_u32 s{S_TMP2}, s{S_TMP}, 4096
                """)
                for i in range(8):
                    a(f"buffer_load_dwordx4 {vr(212)}, v{V_L16}, {sr(SRD_ST,4)}, s{S_TMP if i < 4 else S_TMP2} offen offset:{(i%4)*1024}")
        a(f"""
        s_cmp_eq_u32 s{S_J}, 15
        s_cbranch_scc0 {P}_evn15
        s_waitcnt vmcnt({nIss + NW2 if G == 0 else 2 * nIss + NW2}) lgkmcnt(0)
        s_branch {P}_afterwait
        """)
        a.label(P + "_evn15")
        if G == 1:
            a(f"""
            s_cmp_eq_u32 s{S_J}, 2
            s_cbranch_scc1 {P}_ev2
            s_cmp_eq_u32 s{S_J}, 14
            s_cbranch_scc1 {P}_evw
            """)
            warm2()
            a.label(P + "_evw")
            a(f"""
            s_waitcnt vmcnt({nIss + NW2}) lgkmcnt(0)
            s_branch {P}_afterwait
            """)
        a.label(P + "_ev2")
        if G == 0:
            a(f"""
            s_cmp_eq_u32 s{S_J}, 2
            s_cbranch_scc0 {P}_ev5
            """)
        a(f"""
        v_lshlrev_b32 v{T}, 24, v{V_TT}
        v_lshl_add_u32 v{T}, v{V_GG}, 4, v{T}
        s_lshl_b32 s{S_TMP2}, s{S_NTI}, 3
        s_add_u32 s{S_TMP2}, s{S_TMP2}, s{S_MT}
        s_lshl_b32 s{S_TMP2}, s{S_TMP2}, 10
        s_add_u32 s{S_TMP2}, s{S_TMP2}, 65536
        """)
        for ci, s_ in enumerate(cs_slots):
            a(f"""
            s_lshl_b32 s{S_TMP}, s{S_BLK+s_}, 6
            s_add_u32 s{S_TMP}, s{S_TMP}, s{S_TMP2}
            buffer_store_dwordx4 {vr(VCS+4*ci)}, v{T}, {sr(SRD_ST,4)}, s{S_TMP} offen sc0 sc1
            """)
        a(f"""
        s_waitcnt vmcnt({nIss + len(cs_slots)}) lgkmcnt(0)
        s_branch {P}_afterwait
        """)
        if G == 0:
            a.label(P + "_ev5")
            a(f"""
            s_cmp_eq_u32 s{S_J}, 14
            s_cbranch_scc1 {P}_ev14
            s_sub_u32 s{S_TMP}, s{S_MT}, 1
            s_max_i32 s{S_TMP}, s{S_TMP}, 0
            s_lshl_b32 s{S_TMP}, s{S_TMP}, 2
            s_lshl_b32 s{S_TMP2}, s{S_NTI}, 2
            s_add_u32 s{S_TMP2}, s{S_TMP2}, 32
            s_lshl_b32 s{S_TMP3}, s{S_MT}, 2
            v_mov_b32 v{T}, 0x1000
            v_writelane_b32 v{T}, s{S_TMP3}, 0
            v_writelane_b32 v{T}, s{S_TMP2}, 1
            s_cmp_lg_u32 s{S_WAVE}, 0
            s_cselect_b32 s{S_TMP2}, 0x1000, 0
            s_cmp_eq_u32 s{S_J}, 5
            s_cbranch_scc0 {P}_ev12
            v_mov_b32 v{T+1}, 1
            buffer_atomic_add v{T+1}, v{T}, {sr(SRD_DBG,4)}, s{S_TMP2} offen sc1
            s_waitcnt vmcnt({nIss + 1}) lgkmcnt(0)
            s_branch {P}_afterwait
            """)
            a.label(P + "_ev12")
            a(f"""
            v_writelane_b32 v{T}, s{S_TMP}, 2
            s_nop 1
            buffer_load_dword v{V_CHK}, v{T}, {sr(SRD_DBG,4)}, s{S_TMP2} offen sc0 sc1
            s_waitcnt vmcnt({nIss + 1}) lgkmcnt(0)
            s_branch {P}_afterwait
            """)
            a.label(P + "_ev14")
            a(f"""
            s_cmp_eq_u32 s{S_WQ}, 0
            s_cbranch_scc0 {P}_ev14b
            s_lshl_b32 s{S_TMP}, s{S_MT}, 11
            s_sub_u32 s{S_TMP}, s{S_TMP}, 128
            v_add_u32 v{T}, s{S_TMP}, v{V_L16}
            v_max_i32 v{T}, 0, v{T}
            s_add_u32 s{S_TMP}, s{S_TMP}, 1024
            v_add_u32 v{T+1}, s{S_TMP}, v{V_L16}
            s_mov_b32 m0, {G1_STAT}
            s_nop 0
            buffer_load_dwordx4 v{T}, {sr(SRD_ST,4)}, 0 offen sc0 sc1 lds
            s_mov_b32 m0, {G1_STAT + 1024}
            s_nop 0
            buffer_load_dwordx4 v{T+1}, {sr(SRD_ST,4)}, 0 offen sc0 sc1 lds
            buffer_load_dwordx4 v{T+1}, {sr(SRD_ST,4)}, 0 offen offset:1024 sc0 sc1 lds
            s_branch {P}_ev14c
            """)
            a.label(P + "_ev14b")
            a(f"""
            s_mul_i32 s{S_TMP}, s{S_WQ}, 3072
            s_sub_u32 s{S_TMP}, s{S_TMP}, 3072
            s_add_u32 m0, s{S_TMP}, {G1_CSP}
            s_lshl_b32 s{S_TMP2}, s{S_NTI}, 13
            s_add_u32 s{S_TMP2}, s{S_TMP2}, s{S_TMP}
            s_add_u32 s{S_TMP2}, s{S_TMP2}, 65536
            buffer_load_dwordx4 v{V_L16}, {sr(SRD_ST,4)}, s{S_TMP2} offen sc0 sc1 lds
            buffer_load_dwordx4 v{V_L16}, {sr(SRD_ST,4)}, s{S_TMP2} offen offset:1024 sc0 sc1 lds
            s_cmp_eq_u32 s{S_WQ}, 3
            s_cselect_b32 s{S_TMP}, {LDS_DUMP}, m0
            s_mov_b32 m0, s{S_TMP}
            s_nop 0
            buffer_load_dwordx4 v{V_L16}, {sr(SRD_ST,4)}, s{S_TMP2} offen offset:2048 sc0 sc1 lds
            """)
            a.label(P + "_ev14c")
            warm2()
            a(f"""
            s_waitcnt vmcnt({nIss + 3 + NW2}) lgkmcnt(0)
            s_branch {P}_afterwait
            """)
    a.label(P + "_post")
    if STAMP:
        a(f"""
        s_waitcnt lgkmcnt(0)
        v_writelane_b32 v{V_STAMP}, s{S_SB}, 31
        """)
    stamp_now(a, 34)
    if "nowarm2" not in OPTS and (not FUSE or "warmpost" in OPTS):
        a(f"""
        s_mov_b32 s{SRD_ST}, s{S_WOP}
        s_mov_b32 s{SRD_ST+1}, s{S_WOP+1}
        s_mov_b32 s{SRD_ST+2}, {1024*2048}
        s_mov_b32 s{SRD_DBG}, s{S_W2P}
        s_mov_b32 s{SRD_DBG+1}, s{S_W2P+1}
        s_mov_b32 s{SRD_DBG+2}, {3584*2048}
        s_mov_b32 s{SRD_ST+3}, 0x20000
        s_mov_b32 s{SRD_DBG+3}, 0x20000
        s_lshl_b32 s{S_TMP}, s{S_GW}, 2
        buffer_load_dwordx4 {vr(V_HF)}, v{V_L16}, {sr(SRD_ST,4)}, s{S_GW} offen
        """)
        for i in range(4):
            a(f"buffer_load_dwordx4 {vr(V_HF)}, v{V_L16}, {sr(SRD_DBG,4)}, s{S_TMP} offen offset:{i*1024}")
    if FUSE:
        if G == 0:
            a(f"""
            v_mov_b32 v{T}, 0
            v_writelane_b32 v{T}, 32, 0
            v_writelane_b32 v{T}, 8, 1
            v_writelane_b32 v{T}, 32, 2
            s_nop 1
            v_cmp_ne_u32 vcc, v{T}, v{V_CHK}
            s_nop 3
            s_and_b32 s{S_TMP}, vcc_lo, 7
            """)
            if "forceslow" in OPTS: a(f"s_mov_b32 s{S_TMP}, 1")
            a(f"""
            v_mov_b32 v{T}, {G1_VERD}
            v_mov_b32 v{T+1}, s{S_TMP}
            s_cmp_eq_u32 s{S_WAVE}, 0
            s_cbranch_scc0 {P}_red
            ds_write_b32 v{T}, v{T+1}
            """)
        a.label(P + "_red")
        if G == 0:
            a(f"""
            s_lshl_b32 s{S_TMP}, s{S_WQ}, 8
            v_lshl_add_u32 v{T}, v{V_LANE}, 2, s{S_TMP}  ; thread * 4
            v_add_u32 v{T+1}, {G1_CSP}, v{T}
            """)
            for m in range(8):
                a(f"ds_read_b32 v{V_XF+m}, v{T+1} offset:{1024*m}")
            a(f"""
            v_min_u32 v{T}, {4*NCOL - 4}, v{T}
            v_add_u32 v{T}, {G1_CS}, v{T}
            v_cmp_gt_u32 vcc, {4*NCOL + G1_CSP}, v{T+1}
            s_waitcnt lgkmcnt(0)
            """)
            for m in range(1, 8):
                a(f"v_add_f32 v{V_XF}, v{V_XF}, v{V_XF+m}")
            a(f"""
            s_and_saveexec_b64 {sr(S_TMP2)}, vcc
            ds_write_b32 v{T}, v{V_XF}
            s_mov_b64 exec, -1
            s_waitcnt lgkmcnt(0)
            """)
        a(f"""
        s_barrier
        v_mov_b32 v{T}, {G1_VERD}
        ds_read_b32 v{T+1}, v{T}
        s_waitcnt lgkmcnt(0)
        v_readfirstlane_b32 s{S_TMP}, v{T+1}
        s_nop 3
        s_cmp_eq_u32 s{S_TMP}, 0
        s_cbranch_scc1 {P}_fast
        s_barrier
        s_mov_b32 s{SRD_X+2}, {2048*2048}
        s_mov_b32 s{SRD_W+2}, {1024*WP}
        s_mov_b32 s{S_J}, s{S_WAVE}
        """)
        a.label(P + "_slow1")
        a(f"""
        s_lshl_b32 s{S_TMP}, s{S_MT}, 8
        s_add_u32 s{S_TMP}, s{S_TMP}, s{S_J}
        s_sub_u32 s{S_TMP}, s{S_TMP}, 16
        s_max_i32 s{S_TMP}, s{S_TMP}, 0
        s_lshl_b32 s{S_TMP}, s{S_TMP}, 11
        buffer_load_dwordx4 {vr(V_XF)}, v{V_L16}, {sr(SRD_X,4)}, s{S_TMP} offen
        buffer_load_dwordx4 {vr(V_XF+4)}, v{V_L16}, {sr(SRD_X,4)}, s{S_TMP} offen offset:1024
        s_waitcnt vmcnt(0)
        """)
        row_stats(a, V_XF, V_WF, V_WF + 16, V_WF + 20, V_WF + 21)
        a(f"""
        s_lshl_b32 s{S_TMP}, s{S_J}, 3
        s_add_u32 s{S_TMP}, s{S_TMP}, {G1_STAT}
        v_mov_b32 v{T}, s{S_TMP}
        ds_write_b64 v{T}, {vr(V_WF+16,2)}
        s_add_u32 s{S_J}, s{S_J}, 8
        s_cmp_lt_u32 s{S_J}, 272
        s_cbranch_scc1 {P}_slow1
        v_min_u32 v{T}, {CH-1}, v{V_LANE}
        """)
        if qkv:
            a(f"""
            v_cmp_le_u32 vcc, 12, v{T}
            s_nop 1
            v_cndmask_b32 v{T+1}, 0, 1, vcc              ; hh
            v_mul_u32_u24 v{T+2}, 12, v{T+1}
            v_sub_u32 v{T+2}, v{T}, v{T+2}
            v_lshrrev_b32 v{T+3}, 2, v{T+2}              ; part
            v_and_b32 v{T+2}, 3, v{T+2}
            v_lshlrev_b32 v{T+3}, 11, v{T+3}
            v_lshl_add_u32 v{T+3}, v{T+1}, 6, v{T+3}
            v_lshl_add_u32 v{T+3}, v{T+2}, 4, v{T+3}
            s_lshl_b32 s{S_TMP}, s{S_JT}, 7
            v_add_u32 v{T+3}, s{S_TMP}, v{T+3}
            """)
        else:
            a(f"""
            s_mul_i32 s{S_TMP}, s{S_JT}, 448
            v_lshl_add_u32 v{T+3}, v{T}, 4, s{S_TMP}
            """)
        for r in range(8):
            a(f"v_mov_b32 v{V_WF+r}, 0")
        a(f"""
        s_mul_i32 s{S_TMP}, s{S_WAVE}, {128*WP}
        s_mov_b32 s{S_J}, 0
        """)
        a.label(P + "_slow2")
        a(f"""
        buffer_load_dwordx4 {vr(V_XF)}, v{T+3}, {sr(SRD_W,4)}, s{S_TMP} offen
        s_add_u32 s{S_TMP}, s{S_TMP}, {WP}
        s_add_u32 s{S_J}, s{S_J}, 1
        s_waitcnt vmcnt(0)
        """)
        for r in range(4):
            a(f"""
            v_lshlrev_b32 v{V_XF+4}, 16, v{V_XF+r}
            v_and_b32 v{V_XF+5}, 0xffff0000, v{V_XF+r}
            v_pk_add_f32 {vr(V_WF+2*r,2)}, {vr(V_WF+2*r,2)}, {vr(V_XF+4,2)}
            """)
        a(f"""
        s_cmp_lt_u32 s{S_J}, 128
        s_cbranch_scc1 {P}_slow2
        s_lshl_b32 s{S_TMP}, s{S_WAVE}, 10
        s_add_u32 s{S_TMP}, s{S_TMP}, {G1_CSP}
        v_lshl_add_u32 v{T}, v{T}, 5, s{S_TMP}
        ds_write_b128 v{T}, {vr(V_WF)}
        ds_write_b128 v{T}, {vr(V_WF+4)} offset:16
        v_mov_b32 v{T}, {G1_VERD}
        v_mov_b32 v{T+1}, 0
        ds_write_b32 v{T}, v{T+1}
        s_waitcnt lgkmcnt(0)
        s_barrier
        s_branch {P}_red
        """)
        a.label(P + "_fast")
    if "slabwarm" in OPTS:
        a(f"""
        s_add_u32 s{SRD_WW}, s{S_WS}, {64 << 20}
        s_addc_u32 s{SRD_WW+1}, s{S_WS+1}, 0
        s_and_b32 s{SRD_WW+1}, s{SRD_WW+1}, 0xffff
        s_mov_b32 s{SRD_WW+2}, {16 << 20}
        s_and_b32 s{S_TMP}, s2, 3
        s_lshr_b32 s{S_TMP2}, s{S_WAVE}, 1
        s_cmp_eq_u32 s{S_TMP}, s{S_TMP2}
        s_cselect_b32 s{SRD_WW+2}, 0, s{SRD_WW+2}
        s_lshl_b32 s{S_TMP}, s{S_GW}, 3
        s_add_u32 s{S_TMP2}, s{S_TMP}, 4096
        """)
        for i in range(8):
            a(f"buffer_load_dwordx4 {vr(V_WD)}, v{V_L16}, {sr(SRD_WW,4)}, s{S_TMP if i < 4 else S_TMP2} offen offset:{(i%4)*1024}")
    stamp_now(a, 35)
    for i in range(4):
        a(f"""
        s_lshl_b32 s{S_TMP}, s{S_MW}, 6
        s_lshl_b32 s{S_TMP2}, s{S_NW}, 5
        s_xor_b32 s{S_TMP2}, s{S_TMP2}, {16*i}
        s_add_u32 s{S_TMP}, s{S_TMP}, s{S_TMP2}
        s_add_u32 s{S_TB+i}, s{S_TMP}, {128*G}
        """)
    V_ST = V_XF; V_CSV = V_WF
    if FUSE:
        for i in range(4):
            a(f"""
            s_add_u32 s{S_TMP}, s{S_TB+i}, {16 + G1_STAT//8}
            v_add_u32 v{T+4}, s{S_TMP}, v{V_TT}
            v_lshlrev_b32 v{T+4}, 3, v{T+4}
            ds_read_b64 {vr(V_ST+2*i,2)}, v{T+4}
            """)
        if halo:
            a(f"""
            v_lshlrev_b32 v{T+4}, 3, v{V_TT}
            v_add_u32 v{T+4}, {G1_STAT}, v{T+4}
            ds_read_b64 {vr(V_ST+8,2)}, v{T+4}
            """)
        for s_ in range(NB):
            a(f"""
            s_lshl_b32 s{S_TMP}, s{S_BLK+s_}, 6
            s_add_u32 s{S_TMP}, s{S_TMP}, {G1_CS}
            v_lshl_add_u32 v{T+4}, v{V_GG}, 4, s{S_TMP}
            ds_read_b128 {vr(V_CSV+4*s_)}, v{T+4}
            """)
        a("s_waitcnt lgkmcnt(0)")
    def fixup(ab, s, st, o, relu):
        c = V_CSV + 4 * s
        if FUSE:
            a(f"""
            v_pk_fma_f32 {vr(ab,2)}, {vr(c,2)}, {vr(st,2)}, {vr(ab,2)} op_sel_hi:[1,0,1] neg_lo:[0,1,0] neg_hi:[0,1,0]
            v_pk_fma_f32 {vr(ab+2,2)}, {vr(c+2,2)}, {vr(st,2)}, {vr(ab+2,2)} op_sel_hi:[1,0,1] neg_lo:[0,1,0] neg_hi:[0,1,0]
            v_pk_mul_f32 {vr(ab,2)}, {vr(ab,2)}, {vr(st,2)} op_sel:[0,1] op_sel_hi:[1,1]
            v_pk_mul_f32 {vr(ab+2,2)}, {vr(ab+2,2)}, {vr(st,2)} op_sel:[0,1] op_sel_hi:[1,1]
            """)
        a(f"""
        v_cvt_pk_bf16_f32 v{o}, v{ab}, v{ab+1}
        v_cvt_pk_bf16_f32 v{o+1}, v{ab+2}, v{ab+3}
        """)
        if relu:
            a(f"""
            v_pk_max_i16 v{o}, v{o}, 0
            v_pk_max_i16 v{o+1}, v{o+1}, 0
            """)
    V_SIG = T + 8
    a(f"""
    v_and_b32 v{T}, 1, v{V_GG}
    v_lshrrev_b32 v{T+1}, 1, v{V_GG}
    v_lshl_or_b32 v{V_SIG}, v{T}, 1, v{T+1}
    """)
    if not qkv:
        V_PA = T + 9; V_SA = T + 10
        a(f"""
        v_lshl_add_u32 v{V_PA}, v{V_SIG}, 4, v{V_TT}
        v_lshlrev_b32 v{V_PA}, 4, v{V_PA}            ; (sigma*16 + t)*16
        s_lshl_b32 s{S_TMP}, s{S_NW}, 1
        v_add_u32 v{T+1}, s{S_TMP}, v{T+1}
        v_lshl_add_u32 v{V_SA}, v{T+1}, 4, v{V_TT}
        v_lshlrev_b32 v{V_SA}, 4, v{V_SA}
        v_lshl_add_u32 v{V_SA}, v{T}, 3, v{V_SA}
        """)
        for i in range(4):
            a(f"""
            s_lshr_b32 s{S_TMP}, s{S_TB+i}, 4
            s_lshl_b32 s{S_TMP2}, s{S_MT}, 4
            s_add_u32 s{S_TMP}, s{S_TMP}, s{S_TMP2}
            s_mul_i32 s{S_TB+i}, s{S_TMP}, {MBLK_PITCH}
            """)
        a(f"""
        s_mul_i32 s{S_TMP2}, s{S_JT}, 7
        s_add_u32 s{S_TMP2}, s{S_TMP2}, 32
        """)
        for ps in range(4):
            a(f"""
            s_lshr_b32 s{S_TMP}, s{S_BLK+2*ps}, 1
            s_add_u32 s{S_TMP}, s{S_TMP}, s{S_TMP2}
            s_lshl_b32 s{S_PO+ps}, s{S_TMP}, 10
            """)
        ob = [V_XF + 16, V_XF + 20, V_XF + 24, V_XF + 28]
        n = 0
        for i in range(4):
            st = V_ST + 2 * i
            for ps in range(3):
                o = ob[n % 4]; n += 1
                fixup(acc(2*ps, i), 2*ps, st, o, True)
                fixup(acc(2*ps+1, i), 2*ps+1, st, o+2, True)
                a(f"""
                s_add_u32 s{S_TMP}, s{S_TB+i}, s{S_PO+ps}
                s_nop 0
                v_permlane16_swap_b32 v{o}, v{o+2}
                v_permlane16_swap_b32 v{o+1}, v{o+3}
                s_nop 1
                buffer_store_dwordx4 {vr(o)}, v{V_PA}, {sr(SRD_O,4)}, s{S_TMP} offen {STH}
                """)
            o = ob[n % 4]; n += 1
            fixup(acc(6, i), 6, st, o, True)
            a(f"""
            s_add_u32 s{S_TMP}, s{S_TB+i}, s{S_PO+3}
            s_nop 1
            buffer_store_dwordx2 {vr(o,2)}, v{V_SA}, {sr(SRD_O,4)}, s{S_TMP} offen {STH}
            """)
        stamp_now(a, 36); stamp_now(a, 51, True)
        stamp_dump(a, S_WS, S_WAVE, 32 << 20)
        a("s_endpgm")
        return
    V_WA = T + 9
    a(f"""
    v_mul_u32_u24 v{V_WA}, {AT_PITCH}, v{V_TT}
    v_lshl_add_u32 v{V_WA}, v{V_GG}, 3, v{V_WA}      ; t*P + g*8
    """)
    ob = [V_XF + 16, V_XF + 18, V_XF + 20, V_XF + 22, V_XF + 24, V_XF + 26, V_XF + 28, V_XF + 30]
    n = 0
    for i in range(4):
        a(f"""
        s_add_u32 s{S_TMP}, s{S_TB+i}, 16
        s_mul_i32 s{S_TMP3}, s{S_TMP}, {AT_PITCH}
        """)
        for s in range(6):
            o = ob[n % 8]; n += 1
            fixup(acc(s, i), s, V_ST + 2 * i, o, False)
            a(f"""
            s_lshl_b32 s{S_TMP}, s{S_BLK+s}, 5
            s_add_u32 s{S_TMP}, s{S_TMP}, s{S_TMP3}
            v_add_u32 v{T}, s{S_TMP}, v{V_WA}
            ds_write_b64 v{T}, {vr(o,2)}
            """)
            if "slowepi" in OPTS: a("s_waitcnt lgkmcnt(0)")
    if halo:
        for s in range(2):
            o = ob[n % 8]; n += 1
            fixup(V_HACC + 4 * s, s, V_ST + 8, o, False)
            a(f"""
            s_lshl_b32 s{S_TMP}, s{S_BLK+s}, 5
            v_add_u32 v{T}, s{S_TMP}, v{V_WA}
            ds_write_b64 v{T}, {vr(o,2)}
            """)
    a(f"""
    s_waitcnt lgkmcnt(0)
    s_barrier
    """)
    stamp_now(a, 36)
    a("s_branch g1_attn")

def g1_attn(a):
    T = V_T
    V_SIG = T + 8
    a.label("g1_attn")
    VQ = 0; VK = 1; VV = 3
    VE = 5; VO = 6
    R = 8
    a(f"""
    s_lshl_b32 s{S_TMP}, s{S_WAVE}, 5                ; 32 w
    v_lshlrev_b32 v{T}, 1, v{V_TT}                   ; 2n
    v_add_u32 v{T+1}, s{S_TMP}, v{T}                 ; 32w + 2n
    v_add_u32 v{T+2}, 16, v{T+1}
    v_mul_u32_u24 v{T+2}, {AT_PITCH}, v{T+2}
    v_lshl_add_u32 v{VQ}, v{V_GG}, 4, v{T+2}         ; + g*16
    v_add_u32 v{VK+1}, 64, v{VQ}
    v_add_u32 v{T+2}, -16, v{T+1}                    ; rho_k(kb=0)
    v_max_i32 v{T+2}, 0, v{T+2}
    v_mul_u32_u24 v{T+2}, {AT_PITCH}, v{T+2}
    v_lshl_add_u32 v{T+2}, v{V_GG}, 4, v{T+2}
    v_add_u32 v{VK}, 64, v{T+2}
    v_lshrrev_b32 v{T}, 2, v{V_TT}
    v_lshl_add_u32 v{T}, v{V_GG}, 2, v{T}            ; a
    v_lshlrev_b32 v{T}, 1, v{T}
    v_add_u32 v{T}, s{S_TMP}, v{T}                   ; 32w + 2a
    v_and_b32 v{T+3}, 3, v{V_LANE}
    v_lshlrev_b32 v{T+3}, 3, v{T+3}
    v_add_u32 v{T+3}, 128, v{T+3}                    ; v part + c*8
    v_add_u32 v{T+2}, 16, v{T}
    v_mul_u32_u24 v{T+2}, {AT_PITCH}, v{T+2}
    v_add_u32 v{VV+1}, v{T+2}, v{T+3}
    v_add_u32 v{T+2}, -16, v{T}
    v_max_i32 v{T+2}, 0, v{T+2}
    v_mul_u32_u24 v{T+2}, {AT_PITCH}, v{T+2}
    v_add_u32 v{VV}, v{T+2}, v{T+3}
    v_lshlrev_b32 v{T}, 2, v{V_GG}
    v_sub_u32 v{VE}, v{V_TT}, v{T}
    """)
    for kb in range(2):
        for i in range(4):
            a(f"""
            v_add_u32 v{T}, {(16*(1-kb) - i)}, v{VE}
            v_cmp_ge_u32 {sr(S_MASK + 2*(4*kb+i))}, 7, v{T}
            """)
    a(f"""
    s_or_b32 s{S_TMP}, s{S_MT}, s{S_WAVE}
    s_cmp_eq_u32 s{S_TMP}, 0
    s_cbranch_scc0 g1_attn_m
    """)
    for i in range(4):
        a(f"s_mov_b64 {sr(S_MASK + 2*i)}, 0")
    a.label("g1_attn_m")
    a(f"""
    v_and_b32 v{T}, 7, v{V_TT}
    v_lshlrev_b32 v{T}, 1, v{T}
    v_lshl_add_u32 v{T}, v{V_SIG}, 4, v{T}
    v_lshlrev_b32 v{T}, 4, v{T}
    v_lshrrev_b32 v{T+1}, 3, v{V_TT}
    s_mov_b32 s{S_TMP}, {MBLK_PITCH}
    v_mul_lo_u32 v{T+1}, v{T+1}, s{S_TMP}
    v_add_u32 v{VO}, v{T}, v{T+1}
    s_lshl_b32 s{S_TMP}, s{S_MT}, 4
    s_lshl_b32 s{S_TMP2}, s{S_WAVE}, 1
    s_add_u32 s{S_TMP}, s{S_TMP}, s{S_TMP2}
    s_mul_i32 s{S_TMP}, s{S_TMP}, {MBLK_PITCH}
    s_lshl_b32 s{S_TMP2}, s{S_JT}, 11
    s_add_u32 s{S_TMP3}, s{S_TMP}, s{S_TMP2}
    v_mov_b32 v{T+10}, 0xff800000                    ; -inf
    v_mov_b32 v{T+4}, 0x3e3504f3
    v_mov_b32 v{T+5}, 0x3e3504f3
    v_mov_b32 v{T+6}, 0x3fb8aa3b
    v_mov_b32 v{T+7}, 0x3fb8aa3b
    """)
    NEG = T + 10; CSC = T + 4; CL2 = T + 6
    units = [(hh, p) for hh in range(2) for p in range(2)]
    UR = 32
    for u, (hh, p) in enumerate(units):
        b = R + u * UR
        off = p * AT_PITCH + hh * 192
        a(f"""
        ds_read_b128 {vr(b)}, v{VQ} offset:{off}
        ds_read_b128 {vr(b+4)}, v{VK} offset:{off}
        ds_read_b128 {vr(b+8)}, v{VK+1} offset:{off}
        """)
        for db in range(2):
            for kb in range(2):
                a(f"ds_read_b64_tr_b16 {vr(b+12+4*db+2*kb,2)}, v{VV+kb} offset:{off+32*db}")
    a("s_waitcnt lgkmcnt(0)")
    for u in range(4):
        b = R + u * UR
        a(f"""
        v_mfma_f32_16x16x32_bf16 {vr(b+20)}, {vr(b+4)}, {vr(b)}, 0
        v_mfma_f32_16x16x32_bf16 {vr(b+24)}, {vr(b+8)}, {vr(b)}, 0
        """)
    a("s_nop 7")
    for u, (hh, p) in enumerate(units):
        b = R + u * UR
        z = b + 20
        t0 = b + 28; t1 = b + 29
        for i in range(0, 8, 2):
            a(f"""
            v_cvt_pk_bf16_f32 v{t0}, v{z+i}, v{z+i+1}
            v_lshlrev_b32 v{z+i}, 16, v{t0}
            v_and_b32 v{z+i+1}, 0xffff0000, v{t0}
            v_pk_mul_f32 {vr(z+i,2)}, {vr(z+i,2)}, {vr(CSC,2)}
            v_cvt_pk_bf16_f32 v{t0}, v{z+i}, v{z+i+1}
            v_lshlrev_b32 v{z+i}, 16, v{t0}
            v_and_b32 v{z+i+1}, 0xffff0000, v{t0}
            v_cndmask_b32 v{z+i}, v{NEG}, v{z+i}, {sr(S_MASK+2*i)}
            v_cndmask_b32 v{z+i+1}, v{NEG}, v{z+i+1}, {sr(S_MASK+2*i+2)}
            """)
        a(f"""
        v_max3_f32 v{t0}, v{z}, v{z+1}, v{z+2}
        v_max3_f32 v{t0}, v{t0}, v{z+3}, v{z+4}
        v_max3_f32 v{t0}, v{t0}, v{z+5}, v{z+6}
        v_max_f32 v{t0}, v{t0}, v{z+7}
        """)
        xlane_max(a, t0, t1)
        for i in range(0, 8, 2):
            a(f"""
            v_pk_add_f32 {vr(z+i,2)}, {vr(z+i,2)}, {vr(t0,2)} op_sel_hi:[1,0] neg_lo:[0,1] neg_hi:[0,1]
            v_pk_mul_f32 {vr(z+i,2)}, {vr(z+i,2)}, {vr(CL2,2)}
            """)
        for i in range(8):
            a(f"v_exp_f32 v{z+i}, v{z+i}")
        a(f"""
        s_nop 0
        v_pk_add_f32 {vr(t0,2)}, {vr(z,2)}, {vr(z+2,2)}
        v_pk_add_f32 {vr(t0+2,2)}, {vr(z+4,2)}, {vr(z+6,2)}
        v_pk_add_f32 {vr(t0,2)}, {vr(t0,2)}, {vr(t0+2,2)}
        v_add_f32 v{t0}, v{t0}, v{t1}
        """)
        xlane_sum(a, t0, t1)
        a(f"""
        v_rcp_f32 v{t0}, v{t0}
        s_nop 0
        """)
        for i in range(0, 8, 2):
            a(f"v_pk_mul_f32 {vr(z+i,2)}, {vr(z+i,2)}, {vr(t0,2)} op_sel_hi:[1,0]")
        for i in range(4):
            a(f"v_cvt_pk_bf16_f32 v{b+i}, v{z+2*i}, v{z+2*i+1}")
        a(f"""
        s_nop 1
        v_mfma_f32_16x16x32_bf16 {vr(b+4)}, {vr(b+12)}, {vr(b)}, 0
        v_mfma_f32_16x16x32_bf16 {vr(b+8)}, {vr(b+16)}, {vr(b)}, 0
        """)
    a("s_nop 7")
    for u, (hh, p) in enumerate(units):
        b = R + u * UR
        o = b + 20
        a(f"""
        v_cvt_pk_bf16_f32 v{o}, v{b+4}, v{b+5}
        v_cvt_pk_bf16_f32 v{o+1}, v{b+6}, v{b+7}
        v_cvt_pk_bf16_f32 v{o+2}, v{b+8}, v{b+9}
        v_cvt_pk_bf16_f32 v{o+3}, v{b+10}, v{b+11}
        s_nop 1
        v_permlane16_swap_b32 v{o}, v{o+2}
        v_permlane16_swap_b32 v{o+1}, v{o+3}
        s_nop 1
        buffer_store_dwordx4 {vr(o)}, v{VO}, {sr(SRD_O,4)}, s{S_TMP3} offen offset:{p*16 + hh*1024} {STF}
        """)
    stamp_now(a, 37); stamp_now(a, 51, True)
    stamp_dump(a, S_WS, S_WAVE, 32 << 20)
    a("s_endpgm")

def gen_g1(a):
    MAP4 = f"""
    s_and_b32 s{S_MT}, s{S_TMP}, 1
    s_lshl_b32 s{S_MT}, s{S_MT}, 2
    s_and_b32 s{S_TMP3}, s{S_TMP2}, 3
    s_add_u32 s{S_MT}, s{S_MT}, s{S_TMP3}     ; mt
    s_lshr_b32 s{S_TMP2}, s{S_TMP2}, 2        ; i8
    s_lshr_b32 s{S_TMP}, s{S_TMP}, 1          ; ng
    s_lshl_b32 s{S_JT}, s{S_TMP}, 2
    s_and_b32 s{S_TMP3}, s{S_TMP2}, 3
    s_add_u32 s{S_JT}, s{S_JT}, s{S_TMP3}     ; jt
    s_lshr_b32 s{S_TMP2}, s{S_TMP2}, 2        ; type
"""
    MAP8 = f"""
    s_and_b32 s{S_MT}, s{S_TMP2}, 7           ; mt
    s_lshr_b32 s{S_TMP2}, s{S_TMP2}, 3        ; i4
    s_lshl_b32 s{S_JT}, s{S_TMP}, 1
    s_and_b32 s{S_TMP3}, s{S_TMP2}, 1
    s_add_u32 s{S_JT}, s{S_JT}, s{S_TMP3}     ; jt
    s_lshr_b32 s{S_TMP2}, s{S_TMP2}, 1        ; type
"""
    a.raw("""
.globl g1_kernel
.p2align 8
.type g1_kernel,@function
g1_kernel:""")
    a(f"""
    s_cmp_ge_u32 s2, 256
    s_cbranch_scc1 g1_exit
    s_load_dwordx4 s[{S_X}:{S_X+3}], s[0:1], 0     ; x, wqkv
    s_load_dwordx2 s[{S_W1}:{S_W1+1}], s[0:1], 32
    s_load_dwordx2 s[{S_WS}:{S_WS+1}], s[0:1], 64
    s_load_dwordx2 s[{S_WOP}:{S_WOP+1}], s[0:1], 16
    s_load_dwordx2 s[{S_DBGP}:{S_DBGP+1}], s[0:1], 56
    s_load_dwordx2 s[{S_W2P}:{S_W2P+1}], s[0:1], 40
    v_and_b32 v{V_LANE}, 63, v0
    v_lshrrev_b32 v{V_T}, 6, v0
    v_and_b32 v{V_TT}, 15, v0
    v_readfirstlane_b32 s{S_WAVE}, v{V_T}
    v_bfe_u32 v{V_GG}, v0, 4, 2
    s_nop 2
    s_cmp_lg_u32 s{S_WAVE}, 7
    s_cbranch_scc1 g1_nopf
    """)
    if "nocodepf" not in OPTS:
        code_prefetch(a, V_T + 2, V_LANE, S_PC1, "g1_kernel", "g1_end", 24576, 255)
    a.label("g1_nopf")
    a(f"""
    s_and_b32 s{S_TMP}, s2, 7                 ; xcd
    s_lshr_b32 s{S_TMP2}, s2, 3               ; idx
    """)
    a(MAP8 if "map8" in OPTS else MAP4)
    a(f"""
    s_and_b32 s{S_WQ}, s{S_WAVE}, 3
    s_and_b32 s{S_NW}, s{S_WAVE}, 1
    s_bfe_u32 s{S_MW}, s{S_WAVE}, 0x10001
    s_lshr_b32 s{S_TMP3}, s{S_WAVE}, 2        ; G
    s_lshl_b32 s80, s2, 3
    s_add_u32 s80, s80, s{S_WAVE}
    v_lshlrev_b32 v{V_L16}, 4, v{V_LANE}
    s_waitcnt lgkmcnt(0)
    """)
    if FUSE and "bulk" in OPTS:
        a(f"""
        s_mov_b32 s64, s{S_W}
        s_and_b32 s65, s{S_W+1}, 0xffff
        s_mov_b32 s66, {1024*6144}
        s_mov_b32 s67, 0x20000
        s_mov_b32 s72, s{S_W1}
        s_and_b32 s73, s{S_W1+1}, 0xffff
        s_mov_b32 s74, {1024*7168}
        s_mov_b32 s75, 0x20000
        s_mul_i32 s81, s80, 3072
        s_lshl_b32 s80, s80, 12
        """)
        for i in range(3):
            a(f"buffer_load_dwordx4 {vr(V_HF)}, v{V_L16}, s[64:67], s81 offen offset:{1024*i}")
        for i in range(4):
            a(f"buffer_load_dwordx4 {vr(V_HF)}, v{V_L16}, s[72:75], s80 offen offset:{1024*i}")
    a(f"""
    s_add_u32 s{SRD_X}, s{S_X if FUSE else S_WS}, {0 if FUSE else XN_OFF}
    s_addc_u32 s{SRD_X+1}, s{(S_X if FUSE else S_WS)+1}, 0
    s_and_b32 s{SRD_X+1}, s{SRD_X+1}, 0xffff
    s_mov_b32 s{SRD_X+2}, {2048*2048}
    s_mov_b32 s{SRD_X+3}, 0x20000
    s_mov_b32 s{SRD_XA}, s{SRD_X}
    s_mov_b32 s{SRD_XA+1}, s{SRD_X+1}
    s_mov_b32 s{SRD_XA+2}, {2048*2048}
    s_mov_b32 s{SRD_XA+3}, 0x20000
    s_mov_b32 s{SRD_O}, s{S_WS}
    s_and_b32 s{SRD_O+1}, s{S_WS+1}, 0xffff
    s_mov_b32 s{SRD_O+2}, {A2_BYTES}
    s_mov_b32 s{SRD_O+3}, 0x20000
    s_lshl_b32 s{S_TMP2}, s{S_TMP2}, 1
    s_add_u32 s{S_TMP2}, s{S_TMP2}, s{S_TMP3}
    """)
    if FUSE:
        a(f"""
        s_cmp_lg_u32 s2, 255
        s_cbranch_scc1 g1_noz
        s_add_u32 s64, s{S_WS}, {30 << 20}
        s_addc_u32 s65, s{S_WS+1}, 0
        s_and_b32 s65, s65, 0xffff
        s_mov_b32 s66, 8192
        s_mov_b32 s67, 0x20000
        v_lshlrev_b32 v{V_T}, 4, v0
        v_mov_b32 v4, 0
        v_mov_b32 v5, 0
        v_mov_b32 v6, 0
        v_mov_b32 v7, 0
        buffer_store_dwordx4 v[4:7], v{V_T}, s[64:67], 0 offen
        """)
        a.label("g1_noz")
    a(f"""
    s_cmp_eq_u32 s{S_TMP2}, 0
    s_cbranch_scc1 g1_00
    s_cmp_eq_u32 s{S_TMP2}, 1
    s_cbranch_scc1 g1_01
    s_cmp_eq_u32 s{S_TMP2}, 2
    s_cbranch_scc1 g1_10
    s_branch g1_11
    """)
    a.label("g1_exit")
    a("s_endpgm")
    for typ in range(2):
        for G in range(2):
            g1_path(a, typ, G)
    g1_attn(a)
    a.label("g1_end")
    a("s_endpgm")

def gen_k0(a):
    a.raw("""
.globl k0_kernel
.p2align 8
.type k0_kernel,@function
k0_kernel:""")
    DPP = "row_mask:0xf bank_mask:0xf"
    def reduce64(v, t):
        a(f"""
        s_nop 1
        v_add_f32_dpp v{t}, v{v}, v{v} quad_perm:[1,0,3,2] {DPP}
        s_nop 1
        v_add_f32_dpp v{v}, v{t}, v{t} quad_perm:[2,3,0,1] {DPP}
        s_nop 1
        v_add_f32_dpp v{t}, v{v}, v{v} row_half_mirror {DPP}
        s_nop 1
        v_add_f32_dpp v{v}, v{t}, v{t} row_mirror {DPP}
        """)
        xlane_sum(a, v, t)
    a(f"""
    s_cmp_ge_u32 s2, 256
    s_cbranch_scc1 k0_exit
    s_load_dwordx4 s[4:7], s[0:1], 0          ; x, wqkv
    s_load_dwordx2 s[8:9], s[0:1], 32         ; w1
    s_load_dwordx2 s[10:11], s[0:1], 64       ; ws
    v_lshrrev_b32 v1, 6, v0
    v_and_b32 v0, 63, v0
    v_lshlrev_b32 v2, 4, v0                   ; lane*16
    v_readfirstlane_b32 s3, v1
    s_lshl_b32 s28, s2, 3
    s_nop 2
    s_add_u32 s28, s28, s3
    s_lshl_b32 s29, s28, 11
    s_waitcnt lgkmcnt(0)
    s_mov_b32 s12, s4
    s_and_b32 s13, s5, 0xffff
    s_mov_b32 s14, {2048*2048}
    s_mov_b32 s15, 0x20000
    buffer_load_dwordx4 v[4:7], v2, s[12:15], s29 offen
    buffer_load_dwordx4 v[8:11], v2, s[12:15], s29 offen offset:1024
    s_mov_b32 s16, s6
    s_and_b32 s17, s7, 0xffff
    s_mov_b32 s18, {1024*6144}
    s_mov_b32 s19, 0x20000
    s_mov_b32 s20, s8
    s_and_b32 s21, s9, 0xffff
    s_mov_b32 s22, {1024*7168}
    s_mov_b32 s23, 0x20000
    s_add_u32 s24, s10, {XN_OFF}
    s_addc_u32 s25, s11, 0
    s_and_b32 s25, s25, 0xffff
    s_mov_b32 s26, {2048*2048}
    s_mov_b32 s27, 0x20000
    s_cmp_lg_u32 s2, 0
    s_cbranch_scc1 k0_noz
    s_add_u32 s32, s10, {30 << 20}
    s_addc_u32 s33, s11, 0
    s_and_b32 s33, s33, 0xffff
    s_mov_b32 s34, 8192
    s_mov_b32 s35, 0x20000
    s_lshl_b32 s30, s3, 10
    v_mov_b32 v60, 0
    v_mov_b32 v61, 0
    v_mov_b32 v62, 0
    v_mov_b32 v63, 0
    buffer_store_dwordx4 v[60:63], v2, s[32:35], s30 offen
    s_waitcnt vmcnt(0)
k0_noz:
    s_mul_i32 s30, s28, 3072
    s_lshl_b32 s31, s28, 12
    """)
    nw = 0
    if "nowarm1" not in OPTS:
        a(f"""
        s_mov_b32 s18, {256*6144}
        s_mov_b32 s22, {256*7168}
        s_lshl_b32 s30, s28, 10
        buffer_load_dwordx4 v[32:35], v2, s[16:19], s30 offen
        buffer_load_dwordx4 v[36:39], v2, s[20:23], s30 offen
        """)
        nw = 2
    a(f"s_waitcnt vmcnt({nw})")
    for r in range(8):
        a(f"""
        v_lshlrev_b32 v{12+2*r}, 16, v{4+r}
        v_and_b32 v{13+2*r}, 0xffff0000, v{4+r}
        """)
    a("v_add_f32 v28, v12, v13")
    for r in range(14, 28):
        a(f"v_add_f32 v28, v28, v{r}")
    reduce64(28, 29)
    a("v_mul_f32 v28, 0x3a800000, v28")
    a("""
    v_sub_f32 v30, v12, v28
    v_mul_f32 v31, v30, v30
    """)
    for r in range(13, 28):
        a(f"""
        v_sub_f32 v30, v{r}, v28
        v_fmac_f32 v31, v30, v30
        """)
    reduce64(31, 29)
    a(f"""
    v_mul_f32 v31, 0x3a800000, v31            ; var
    v_cvt_pk_bf16_f32 v29, v28, v31
    v_lshlrev_b32 v28, 16, v29                ; m_b
    v_and_b32 v31, 0xffff0000, v29            ; v_b
    v_add_f32 v31, 0x3727c5ac, v31
    v_cvt_pk_bf16_f32 v31, v31, v31
    v_and_b32 v31, 0xffff0000, v31
    v_sqrt_f32 v31, v31
    s_nop 0
    v_cvt_pk_bf16_f32 v31, v31, v31
    v_and_b32 v31, 0xffff0000, v31
    v_rcp_f32 v31, v31
    s_nop 0
    """)
    for r in range(8):
        a(f"""
        v_sub_f32 v{12+2*r}, v{12+2*r}, v28
        v_sub_f32 v{13+2*r}, v{13+2*r}, v28
        v_cvt_pk_bf16_f32 v29, v{12+2*r}, v{13+2*r}
        v_lshlrev_b32 v{12+2*r}, 16, v29
        v_and_b32 v{13+2*r}, 0xffff0000, v29
        v_mul_f32 v{12+2*r}, v{12+2*r}, v31
        v_mul_f32 v{13+2*r}, v{13+2*r}, v31
        v_cvt_pk_bf16_f32 v{4+r}, v{12+2*r}, v{13+2*r}
        """)
    a("""
    buffer_store_dwordx4 v[4:7], v2, s[24:27], s29 offen
    buffer_store_dwordx4 v[8:11], v2, s[24:27], s29 offen offset:1024
    """)
    a.label("k0_exit")
    a("s_endpgm")

G2_NB = 6
G2_LDS = G2_NB * 16384
def code_prefetch(a, vtmp, vlane, stmp, start_label, end_label, nbytes, vdst):
    a(f"""
    s_getpc_b64 {sr(stmp)}
    """)
    a.label(start_label + "_pc")
    a(f"""
    s_add_u32 s{stmp}, s{stmp}, {start_label}-{start_label}_pc
    s_addc_u32 s{stmp+1}, s{stmp+1}, -1
    v_lshlrev_b32 v{vtmp}, 7, v{vlane}
    """)
    for i in range((nbytes + 8191) // 8192):
        if i: a(f"v_add_u32 v{vtmp}, 0x2000, v{vtmp}")
        a(f"""
        v_min_u32 v{vtmp+1}, {end_label}-{start_label}-4, v{vtmp}
        global_load_dword v{vdst}, v{vtmp+1}, {sr(stmp)}
        """)

def gen_g2(a):
    NBUF = G2_NB; D = NBUF - 1
    NTB = "nt " if "g2ntB" in OPTS else ""
    SRD_A = 12; SRD_B = 16; SRD_XX = 20; SRD_OUT = 24
    S_WO = 4; S_W2 = 6; S_XP = 8; S_OUTP = 10; S_WSP = 28
    S_WV = 30; S_GK = 31; S_MW2 = 32; S_MT2 = 33; S_NT = 34; S_TRIP = 35
    S_KAA = 36; S_KBB = 37; S_MB0 = 38; S_T = 39; S_T2 = 40; S_T3 = 41; S_PC = 42; S_P = 44; S_KA0 = 45; S_WOL = 46; S_WOH = 47; S_SZ = 48; S_CNT = 49
    V_AB = 0
    V_W = V_AB + NBUF * 16
    V_AC = V_W + 64
    V_XR = V_AC + 32
    V_AA = V_XR + 8
    V_DBB = V_AA + 2
    V_RBB = V_DBB + 2
    T = V_RBB + 8
    VL = T + 14; VT = T + 15; VG = T + 16
    global G2_VGPRS
    G2_VGPRS = 256 if STAMP else VG + 2
    def ab(u, tb, kk): return V_AB + u * 16 + (tb * 2 + kk) * 4
    def w(par, s, kk): return V_W + par * 32 + (s * 2 + kk) * 4
    def ac(s, tb): return V_AC + (s * 2 + tb) * 4
    a.raw("""
.globl g2_kernel
.p2align 8
.type g2_kernel,@function
g2_kernel:""")
    a(f"""
    s_cmp_ge_u32 s2, 256
    s_cbranch_scc1 g2_exit
    s_load_dwordx2 s[{S_XP}:{S_XP+1}], s[0:1], 0
    s_load_dwordx2 s[{S_WO}:{S_WO+1}], s[0:1], 16
    s_load_dwordx2 s[{S_W2}:{S_W2+1}], s[0:1], 40
    s_load_dwordx2 s[{S_OUTP}:{S_OUTP+1}], s[0:1], 48
    s_load_dwordx2 s[{S_WSP}:{S_WSP+1}], s[0:1], 64
    v_and_b32 v{VL}, 63, v0
    v_lshrrev_b32 v{T}, 6, v0
    v_and_b32 v{VT}, 15, v0
    v_readfirstlane_b32 s{S_WV}, v{T}
    v_bfe_u32 v{VG}, v0, 4, 2
    """)
    if STAMP: a(f"v_mov_b32 v{V_STAMP}, 0")
    stamp_now(a, 32); stamp_now(a, 50, True)
    npf = 0
    if "nocodepf" not in OPTS:
        code_prefetch(a, T + 12, VL, S_PC, "g2_kernel", "g2_exit", 4096, VG + 1); npf = 1
    a(f"""
    s_and_b32 s{S_T}, s2, 7
    s_lshr_b32 s{S_T2}, s2, 3
    s_lshr_b32 s{S_MT2}, s{S_T}, 1
    s_lshl_b32 s{S_MT2}, s{S_MT2}, 2
    s_and_b32 s{S_T3}, s{S_T2}, 3
    s_add_u32 s{S_MT2}, s{S_MT2}, s{S_T3}     ; mt 0..15
    s_and_b32 s{S_NT}, s{S_T}, 1
    s_lshl_b32 s{S_NT}, s{S_NT}, 3
    s_lshr_b32 s{S_T2}, s{S_T2}, 2
    s_add_u32 s{S_NT}, s{S_NT}, s{S_T2}       ; nt 0..15
    s_lshr_b32 s{S_GK}, s{S_WV}, 2
    s_and_b32 s{S_MW2}, s{S_WV}, 3
    ; A voffsets
    s_lshl_b32 s{S_T}, s{S_MT2}, 3
    s_lshl_b32 s{S_T2}, s{S_MW2}, 1
    s_add_u32 s{S_T}, s{S_T}, s{S_T2}         ; mblk0
    s_mul_i32 s{S_T}, s{S_T}, {MBLK_PITCH}
    v_lshl_add_u32 v{V_AA}, v{VL}, 4, s{S_T}
    v_add_u32 v{V_AA+1}, {MBLK_PITCH}, v{V_AA}
    s_lshl_b32 s{S_KAA}, s{S_GK}, 11          ; K-step * 2048
    v_lshrrev_b32 v{T}, 3, v{VL}
    s_lshl_b32 s{S_T}, s{S_WV}, 4
    v_add_u32 v{T+1}, s{S_T}, v{T}            ; row (e=0)
    v_lshlrev_b32 v{T+1}, 11, v{T+1}
    s_lshl_b32 s{S_T}, s{S_NT}, 7
    v_add_u32 v{T+1}, s{S_T}, v{T+1}
    v_and_b32 v{T+2}, 1, v{VL}
    v_lshl_add_u32 v{T+1}, v{T+2}, 4, v{T+1}  ; + (c'&1)*16
    v_bfe_u32 v{T+2}, v{VL}, 1, 2             ; unit'
    v_bfe_u32 v{T+3}, v{VL}, 4, 1             ; bit1(l>>3)
    v_xor_b32 v{T+2}, v{T+2}, v{T+3}
    v_lshl_add_u32 v{V_DBB}, v{T+2}, 5, v{T+1}
    v_xor_b32 v{T+2}, 2, v{T+2}
    v_lshl_add_u32 v{V_DBB+1}, v{T+2}, 5, v{T+1}
    v_add_u32 v{V_DBB+1}, {8*2048}, v{V_DBB+1}
    s_lshl_b32 s{S_MB0}, s{S_WV}, 11
    s_mov_b32 s{S_KBB}, 0
    s_waitcnt lgkmcnt(0)
    s_mov_b32 s{SRD_A}, s{S_WSP}
    s_and_b32 s{SRD_A+1}, s{S_WSP+1}, 0xffff
    s_mov_b32 s{SRD_A+2}, {A2_BYTES}
    s_mov_b32 s{SRD_A+3}, 0x20000
    s_mov_b32 s{SRD_B}, s{S_WO}
    s_and_b32 s{SRD_B+1}, s{S_WO+1}, 0xffff
    s_mov_b32 s{SRD_B+2}, {1024*2048}
    s_mov_b32 s{SRD_B+3}, 0x20000
    """)
    def prefetch(u):
        for e in range(2):
            if "g2noB" in OPTS:
                a(f"buffer_load_dword v{T+12}, off, {sr(SRD_B,4)}, 0")
                continue
            a(f"""
            s_add_u32 m0, s{S_MB0}, {u*16384 + e*1024}
            s_nop 0
            buffer_load_dwordx4 v{V_DBB+e}, {sr(SRD_B,4)}, s{S_KBB} offen {NTB}lds
            """)
        for tb in range(2):
            for kk in range(2):
                if "g2noA" in OPTS:
                    a(f"buffer_load_dword v{T+12}, off, {sr(SRD_B,4)}, 0")
                    continue
                a(f"buffer_load_dwordx4 {vr(ab(u,tb,kk))}, v{V_AA+tb}, {sr(SRD_A,4)}, s{S_KAA} offen offset:{kk*1024}" + (" nt" if "g2ntA" in OPTS else ""))
        advance()
    def advance():
        a(f"""
        s_add_u32 s{S_P}, s{S_P}, 1
        s_cmp_eq_u32 s{S_P}, 36
        s_cselect_b32 s{S_P}, 0, s{S_P}
        s_add_u32 s{S_CNT}, s{S_CNT}, 1
        """)
        setpos()
    def setpos():
        a(f"""
        s_lshl_b32 s{S_KAA}, s{S_P}, 12
        s_add_u32 s{S_KAA}, s{S_KAA}, s{S_KA0}
        s_cmp_lt_u32 s{S_P}, 8
        s_cselect_b32 s{SRD_B}, s{S_WOL}, s{S_W2}
        s_cselect_b32 s{SRD_B+1}, s{S_WOH}, s{S_W2+1}
        s_cselect_b32 s{SRD_B+2}, {1024*2048}, s{S_SZ}
        s_cselect_b32 s{S_T}, 0, 8
        s_sub_u32 s{S_T}, s{S_P}, s{S_T}
        s_lshl_b32 s{S_KBB}, s{S_T}, 18
        s_cmp_ge_u32 s{S_CNT}, 36
        s_cselect_b32 s{SRD_B+2}, 0, s{SRD_B+2}
        s_cselect_b32 s{SRD_A+2}, 0, s{SRD_A+2}
        s_cselect_b32 s{S_MB0}, {G2_LDS}, s{S_MB0}
        """)
    rotmul = (1, 2)
    for o in OPTS:
        if o.startswith("rot="): rotmul = tuple(int(x) for x in o[4:].split(","))
    a(f"""
    s_and_b32 s{S_W2+1}, s{S_W2+1}, 0xffff
    s_mov_b32 s{S_WOL}, s{S_WO}
    s_and_b32 s{S_WOH}, s{S_WO+1}, 0xffff
    s_mov_b32 s{S_SZ}, {3584*2048}
    s_mov_b32 s{S_KA0}, s{S_KAA}
    s_mov_b32 s{S_CNT}, 0
    s_and_b32 s{S_T}, s{S_NT}, 7
    s_mul_i32 s{S_T}, s{S_T}, {rotmul[0]}
    s_and_b32 s{S_T2}, s{S_MT2}, 3
    s_mul_i32 s{S_T2}, s{S_T2}, {rotmul[1]}
    s_add_u32 s{S_P}, s{S_T}, s{S_T2}
    """)
    setpos()
    if "g2tlb" in OPTS:
        a(f"""
        s_lshr_b32 s{S_T}, s2, 3
        s_lshl_b32 s{S_T}, s{S_T}, 3
        s_add_u32 s{S_T}, s{S_T}, s{S_WV}          ; j
        s_lshl_b32 s{S_T2}, s{S_T}, 18             ; j*64 pages*4096
        v_lshl_add_u32 v{T+12}, v{VL}, 12, s{S_T2}
        s_cmp_lt_u32 s{S_T}, 18
        s_cbranch_scc0 g2_tlb1
        s_and_b32 s{S_T3}, s{S_MT2}, 12
        s_mul_i32 s{S_T3}, s{S_T3}, {8*MBLK_PITCH}
        buffer_load_dword v{T+13}, v{T+12}, {sr(SRD_A,4)}, s{S_T3} offen
        s_branch g2_tlb3
        """)
        a.label("g2_tlb1")
        a(f"""
        s_cmp_lt_u32 s{S_T}, 26
        s_cbranch_scc0 g2_tlb2
        v_subrev_u32 v{T+12}, {18<<18}, v{T+12}
        global_load_dword v{T+13}, v{T+12}, s[{S_WO}:{S_WO+1}]
        s_branch g2_tlb3
        """)
        a.label("g2_tlb2")
        a(f"""
        s_cmp_lt_u32 s{S_T}, 54
        s_cbranch_scc0 g2_tlb3
        v_subrev_u32 v{T+12}, {26<<18}, v{T+12}
        global_load_dword v{T+13}, v{T+12}, s[{S_W2}:{S_W2+1}]
        """)
        a.label("g2_tlb3")
    for u in range(D):
        prefetch(u)
    V_XA = T + 4; V_OA = T + 5
    a(f"""
    s_mov_b32 s{SRD_XX}, s{S_XP}
    s_and_b32 s{SRD_XX+1}, s{S_XP+1}, 0xffff
    s_mov_b32 s{SRD_XX+2}, {2048*2048}
    s_mov_b32 s{SRD_XX+3}, 0x20000
    s_mov_b32 s{SRD_OUT}, s{S_OUTP}
    s_and_b32 s{SRD_OUT+1}, s{S_OUTP+1}, 0xffff
    s_mov_b32 s{SRD_OUT+2}, {2048*2048}
    s_mov_b32 s{SRD_OUT+3}, 0x20000
    v_lshrrev_b32 v{T}, 2, v{VT}              ; r
    v_lshl_add_u32 v{T+1}, v{VG}, 3, v{T}
    v_lshlrev_b32 v{T+1}, 7, v{T+1}
    s_lshl_b32 s{S_T}, s{S_GK}, 13
    v_add_u32 v{T+1}, s{S_T}, v{T+1}
    v_and_b32 v{T+2}, 3, v{VL}
    v_lshl_add_u32 v{T+1}, v{T+2}, 3, v{T+1}
    v_and_b32 v{T+2}, 1, v{VG}
    v_lshrrev_b32 v{T+3}, 1, v{T}
    v_lshl_or_b32 v{T+2}, v{T+2}, 1, v{T+3}   ; f
    s_lshl_b32 s{S_T}, s{S_GK}, 1
    v_xor_b32 v{T+2}, s{S_T}, v{T+2}          ; f ^ 2Gk
    """)
    for s in range(4):
        a(f"""
        v_xor_b32 v{T+3}, {s}, v{T+2}
        v_lshl_add_u32 v{V_RBB+s}, v{T+3}, 5, v{T+1}
        v_add_u32 v{V_RBB+4+s}, 0xc000, v{V_RBB+s}
        """)
    a(f"""
    s_lshl_b32 s{S_T}, s{S_MT2}, 7
    s_lshl_b32 s{S_T2}, s{S_MW2}, 5
    s_add_u32 s{S_T}, s{S_T}, s{S_T2}
    v_add_u32 v{T}, s{S_T}, v{VT}
    v_lshlrev_b32 v{T}, 11, v{T}
    s_lshl_b32 s{S_T}, s{S_NT}, 7
    s_lshl_b32 s{S_T2}, s{S_GK}, 6
    s_add_u32 s{S_T}, s{S_T}, s{S_T2}
    v_add_u32 v{T}, s{S_T}, v{T}
    v_lshl_add_u32 v{V_XA}, v{VG}, 3, v{T}    ; + g*8
    v_and_b32 v{T+1}, 1, v{VG}
    v_lshrrev_b32 v{T+2}, 1, v{VG}
    v_lshl_or_b32 v{T+1}, v{T+1}, 1, v{T+2}   ; sigma
    v_lshl_add_u32 v{V_OA}, v{T+1}, 4, v{T}
    """)
    for r in range(V_AC, V_AC + 32):
        a(f"v_mov_b32 v{r}, 0")
    def reads(u, par):
        hi = 4 if u >= 3 else 0
        uo = (u - 3 if u >= 3 else u) * 16384
        for kk in range(2):
            for s in range(4):
                for h in range(2):
                    if "g2nocomp" in OPTS: continue
                    a(f"ds_read_b64_tr_b16 {vr(w(par,s,kk)+2*h,2)}, v{V_RBB+hi+s} offset:{uo + kk*4096 + h*512}")
    a(f"""
    s_mov_b32 s{S_TRIP}, 0
    s_waitcnt vmcnt({4 + 6*(D-1)})
    s_barrier
    """)
    reads(0, 0)
    stamp_now(a, 33)
    def body(u):
        par = u & 1
        a(f"""
        s_waitcnt vmcnt({4 + 6*(D-2)})
        s_barrier
        """)
        prefetch((u + D) % NBUF)
        a("s_waitcnt lgkmcnt(0)")
        reads((u + 1) % NBUF, par ^ 1)
        for kk in range(2):
            for s in range(4):
                for tb in range(2):
                    if "g2nocomp" in OPTS: continue
                    a(f"v_mfma_f32_16x16x32_bf16 {vr(ac(s,tb))}, {vr(w(par,s,kk))}, {vr(ab(u,tb,kk))}, {vr(ac(s,tb))}")
    a.raw(".p2align 6")
    a.label("g2_loop")
    for u in range(NBUF):
        body(u)
    a(f"""
    s_add_u32 s{S_TRIP}, s{S_TRIP}, 1
    s_cmp_lt_u32 s{S_TRIP}, {36 // NBUF}
    s_cbranch_scc1 g2_loop
    s_mov_b32 s{S_T}, {16*2048}
    """)
    stamp_now(a, 34)
    for tb in range(2):
        for e in range(2):
            so = "0" if tb == 0 else f"s{S_T}"
            a(f"buffer_load_dwordx2 {vr(V_XR+(tb*2+e)*2,2)}, v{V_XA}, {sr(SRD_XX,4)}, {so} offen offset:{e*32}")
    a(f"""
    s_waitcnt vmcnt(4) lgkmcnt(0)
    s_barrier
    s_lshl_b32 s{S_T}, s{S_WV}, 12
    v_lshl_add_u32 v{T}, v{VL}, 4, s{S_T}
    v_xor_b32 v{T+1}, 16384, v{T}
    """)
    for s in range(2):
        for tb in range(2):
            a(f"ds_write_b128 v{T}, {vr(ac(2+s,tb))} offset:{(s*2+tb)*1024}")
    a("""
    s_waitcnt lgkmcnt(0)
    s_barrier
    """)
    for s in range(2):
        for tb in range(2):
            a(f"ds_read_b128 {vr(V_W+(s*2+tb)*4)}, v{T+1} offset:{(s*2+tb)*1024}")
    a("s_waitcnt vmcnt(0) lgkmcnt(0)")
    for tb in range(2):
        o = V_AB + tb * 4
        for s in range(2):
            c = ac(s, tb); p = V_W + (s * 2 + tb) * 4; xr = V_XR + (tb * 2 + s) * 2
            a(f"""
            v_lshlrev_b32 v{T+8}, 16, v{xr}
            v_and_b32 v{T+9}, 0xffff0000, v{xr}
            v_lshlrev_b32 v{T+10}, 16, v{xr+1}
            v_and_b32 v{T+11}, 0xffff0000, v{xr+1}
            v_pk_add_f32 {vr(c,2)}, {vr(c,2)}, {vr(p,2)}
            v_pk_add_f32 {vr(c+2,2)}, {vr(c+2,2)}, {vr(p+2,2)}
            v_pk_add_f32 {vr(c,2)}, {vr(c,2)}, {vr(T+8,2)}
            v_pk_add_f32 {vr(c+2,2)}, {vr(c+2,2)}, {vr(T+10,2)}
            v_cvt_pk_bf16_f32 v{o+2*s}, v{c}, v{c+1}
            v_cvt_pk_bf16_f32 v{o+2*s+1}, v{c+2}, v{c+3}
            """)
        so = "0" if tb == 0 else f"s{S_T2}"
        a(f"""
        s_mov_b32 s{S_T2}, {16*2048}
        s_nop 0
        v_permlane16_swap_b32 v{o}, v{o+2}
        v_permlane16_swap_b32 v{o+1}, v{o+3}
        s_nop 1
        buffer_store_dwordx4 {vr(o)}, v{V_OA}, {sr(SRD_OUT,4)}, {so} offen
        """)
    stamp_now(a, 51, True)
    stamp_dump(a, S_WSP, S_WV, 40 << 20)
    a.label("g2_exit")
    a("s_endpgm")

C_ASLOT = 16384; C_NA = 3
C_BSLOT = 16384; C_NBS = 4
C_BBASE = 2 * C_NA * C_ASLOT
G2C_LDS = C_BBASE + C_NBS * C_BSLOT
SLAB_OFF = 64 << 20
FLAG_OFF = 30 << 20
SLAB_BYTES = 64 * 4 * 131072
NKS = 18
PUBF = "sc1" if "pubsc1" in OPTS else ("sc0 sc1 nt" if "pubnt" in OPTS else "sc0 sc1")
GETF = "sc1" if "pubsc1" in OPTS else "sc0 sc1"
def gen_g2c(a):
    XF = 64; WF = 96
    def acc(c, t): return (c * 4 + t) * 4
    def xf(t, kk): return XF + (t * 2 + kk) * 4
    def wf(c, kk): return WF + (c * 2 + kk) * 4
    V_RA = 128; V_RB = 129; V_DA = 133; V_DB = 134; VL = 135; VT = 136; VG = 137; T = 138
    VPF = 152; VH = 153; VHA = 154; VHL = 156
    S_XP = 4; S_WO = 6; S_W2 = 8; S_OUTP = 10; S_DBG = 28; S_WSP = 30
    SRD_A = 12; SRD_B = 16; SRD_S = 20; SRD_X = 24; SRD_O = 32; SRD_F = 36
    S_WV = 40; S_MW = 41; S_NW = 42; S_WQ = 43; S_MT = 44; S_NT = 45; S_KQ = 46; S_J = 47
    S_KA = 48; S_PA = 49; S_PB = 50; S_MA = 51; S_MB = 52; S_MAE = 53; S_MBE = 54; S_ASL = 55; S_BSL = 56
    S_RAS = 57; S_RBS = 58; S_T = 59; S_T2 = 60; S_T3 = 61; S_KB = 62; S_SZ2 = 63; S_CUR = 64; S_DONE = 65
    S_TILE = 66; S_G = 67; S_CNT = 68; S_ARR = 69; S_PC = 70; S_DA = 72; S_DB = 73; S_Q = 74; S_ASZ = 75; S_XCC = 76; S_FB = 77; S_LOC = 78
    MAPK = f"""
    s_and_b32 s{S_KQ}, s2, 3
    s_bfe_u32 s{S_T}, s2, 0x10002             ; M half
    s_lshr_b32 s{S_T2}, s2, 3                 ; idx
    s_and_b32 s{S_MT}, s{S_T2}, 3
    s_lshl_b32 s{S_T}, s{S_T}, 2
    s_add_u32 s{S_MT}, s{S_MT}, s{S_T}        ; mt 0..7
    s_lshr_b32 s{S_NT}, s{S_T2}, 2            ; nt 0..7
"""
    MAPL = f"""
    s_lshr_b32 s{S_T2}, s2, 3                 ; idx
    s_and_b32 s{S_KQ}, s{S_T2}, 3
    s_bfe_u32 s{S_T}, s2, 0x20001             ; xcd >> 1
    s_lshl_b32 s{S_MT}, s{S_T}, 1
    s_bfe_u32 s{S_T}, s{S_T2}, 0x10002
    s_add_u32 s{S_MT}, s{S_MT}, s{S_T}        ; mt 0..7
    s_and_b32 s{S_NT}, s2, 1
    s_lshl_b32 s{S_NT}, s{S_NT}, 2
    s_lshr_b32 s{S_T}, s{S_T2}, 3
    s_add_u32 s{S_NT}, s{S_NT}, s{S_T}        ; nt 0..7
"""
    XF_ = "" if "xloc" in OPTS else "sc0 sc1"
    a.raw("""
.globl g2_kernel
.p2align 8
.type g2_kernel,@function
g2_kernel:""")
    a(f"""
    s_cmp_ge_u32 s2, 256
    s_cbranch_scc1 g2_exit
    s_load_dwordx2 s[{S_XP}:{S_XP+1}], s[0:1], 0
    s_load_dwordx2 s[{S_WO}:{S_WO+1}], s[0:1], 16
    s_load_dwordx4 s[{S_W2}:{S_W2+3}], s[0:1], 40      ; w2, out
    s_load_dwordx4 s[{S_DBG}:{S_DBG+3}], s[0:1], 56
    v_and_b32 v{VL}, 63, v0
    v_lshrrev_b32 v{T}, 6, v0
    v_and_b32 v{VT}, 15, v0
    v_readfirstlane_b32 s{S_WV}, v{T}
    v_bfe_u32 v{VG}, v0, 4, 2
    """)
    if STAMP: a(f"v_mov_b32 v{V_STAMP}, 0")
    stamp_now(a, 32); stamp_now(a, 50, True)
    a(f"""
    s_nop 2
    s_cmp_lg_u32 s{S_WV}, 7
    s_cbranch_scc1 g2_nopf
    """)
    code_prefetch(a, T, VL, S_PC, "g2_kernel", "g2_exit", 8192, VPF)
    a.label("g2_nopf")
    a(f"""
    """)
    a(MAPL if "xloc" in OPTS else MAPK)
    a(f"""
    s_lshl_b32 s{S_TILE}, s{S_MT}, 3
    s_add_u32 s{S_TILE}, s{S_TILE}, s{S_NT}
    s_lshr_b32 s{S_G}, s{S_WV}, 2
    s_and_b32 s{S_WQ}, s{S_WV}, 3
    s_and_b32 s{S_NW}, s{S_WV}, 1
    s_bfe_u32 s{S_MW}, s{S_WV}, 0x10001
    s_lshr_b32 s{S_Q}, s{S_WV}, 1
    s_xor_b32 s{S_T}, s{S_G}, 1
    s_lshl_b32 s{S_T2}, s{S_T}, 3
    s_lshl_b32 s{S_T3}, s{S_MT}, 4
    s_add_u32 s{S_T2}, s{S_T2}, s{S_T3}
    s_lshl_b32 s{S_T3}, s{S_WQ}, 1
    s_add_u32 s{S_T2}, s{S_T2}, s{S_T3}
    s_mul_i32 s{S_T2}, s{S_T2}, {MBLK_PITCH}
    v_lshl_add_u32 v{V_DA}, v{VL}, 4, s{S_T2}
    s_mul_i32 s{S_DA}, s{S_T}, {C_NA*C_ASLOT}
    s_lshl_b32 s{S_T3}, s{S_WQ}, 12
    s_add_u32 s{S_DA}, s{S_DA}, s{S_T3}
    v_lshrrev_b32 v{T}, 4, v{VL}
    s_lshl_b32 s{S_T}, s{S_WV}, 3
    v_add_u32 v{T+1}, s{S_T}, v{T}
    v_lshlrev_b32 v{T+1}, 11, v{T+1}
    s_lshl_b32 s{S_T}, s{S_NT}, 8
    v_add_u32 v{T+1}, s{S_T}, v{T+1}
    v_and_b32 v{T+2}, 1, v{VL}
    v_lshl_add_u32 v{T+1}, v{T+2}, 4, v{T+1}
    v_bfe_u32 v{T+2}, v{VL}, 1, 3
    s_lshl_b32 s{S_T}, s{S_NW}, 2
    v_or_b32 v{T}, s{S_T}, v{T}
    v_xor_b32 v{T+2}, v{T+2}, v{T}
    v_lshl_add_u32 v{V_DB}, v{T+2}, 5, v{T+1}
    s_lshl_b32 s{S_DB}, s{S_WV}, 11
    s_add_u32 s{S_DB}, s{S_DB}, {C_BBASE}
    s_waitcnt lgkmcnt(0)
    """)
    stamp_now(a, 41)
    a(f"""
    s_mov_b32 s{SRD_A}, s{S_WSP}
    s_and_b32 s{SRD_A+1}, s{S_WSP+1}, 0xffff
    s_mov_b32 s{SRD_A+3}, 0x20000
    s_mov_b32 s{SRD_B+3}, 0x20000
    s_and_b32 s{S_WO+1}, s{S_WO+1}, 0xffff
    s_and_b32 s{S_W2+1}, s{S_W2+1}, 0xffff
    s_mov_b32 s{S_SZ2}, {3584*2048}
    s_mov_b32 s{S_ASZ}, {A2_BYTES}
    s_mov_b32 s{S_CUR}, s{S_KQ}
    s_lshl_b32 s{S_DONE}, s{S_KQ}, 3
    s_lshl_b32 s{S_DONE}, 1, s{S_DONE}
    s_mov_b32 s{S_ARR}, 0
    s_mov_b32 s{S_LOC}, 0
    s_add_u32 s{SRD_S}, s{S_WSP}, {SLAB_OFF}
    s_addc_u32 s{SRD_S+1}, s{S_WSP+1}, 0
    s_and_b32 s{SRD_S+1}, s{SRD_S+1}, 0xffff
    s_mov_b32 s{SRD_S+2}, {SLAB_BYTES}
    s_mov_b32 s{SRD_S+3}, 0x20000
    s_add_u32 s{SRD_F}, s{S_WSP}, {FLAG_OFF}
    s_addc_u32 s{SRD_F+1}, s{S_WSP+1}, 0
    s_and_b32 s{SRD_F+1}, s{SRD_F+1}, 0xffff
    s_mov_b32 s{SRD_F+2}, {64*128}
    s_mov_b32 s{SRD_F+3}, 0x20000
    s_lshl_b32 s{S_FB}, s{S_TILE}, 7
    s_lshl_b32 s{S_T}, s{S_TILE}, 2
    s_add_u32 s{S_T}, s{S_T}, s{S_KQ}
    s_lshl_b32 s{S_T}, s{S_T}, 3
    s_add_u32 s{S_T}, s{S_T}, s{S_WV}
    s_lshl_b32 s{S_FB+1}, s{S_T}, 13
    v_lshlrev_b32 v155, 4, v{VL}
    s_mov_b32 s{SRD_X}, s{S_XP}
    s_and_b32 s{SRD_X+1}, s{S_XP+1}, 0xffff
    s_mov_b32 s{SRD_X+2}, {2048*2048}
    s_mov_b32 s{SRD_X+3}, 0x20000
    s_mov_b32 s{SRD_O}, s{S_OUTP}
    s_and_b32 s{SRD_O+1}, s{S_OUTP+1}, 0xffff
    s_mov_b32 s{SRD_O+2}, {2048*2048}
    s_mov_b32 s{SRD_O+3}, 0x20000
    """)
    def setA():
        a(f"""
        s_mul_i32 s{S_T}, s{S_CUR}, {NKS}
        s_add_u32 s{S_T}, s{S_T}, s{S_PA}
        s_lshl_b32 s{S_KA}, s{S_T}, 11
        s_cmp_ge_u32 s{S_PA}, {NKS}
        s_cselect_b32 s{SRD_A+2}, 0, s{S_ASZ}
        s_cselect_b32 s{S_MAE}, {LDS_DUMP}, s{S_MA}
        """)
    def setB():
        a(f"""
        s_mul_i32 s{S_T}, s{S_CUR}, {NKS}
        s_add_u32 s{S_T}, s{S_T}, s{S_PB}
        s_cmp_lt_u32 s{S_T}, 16
        s_cselect_b32 s{SRD_B}, s{S_WO}, s{S_W2}
        s_cselect_b32 s{SRD_B+1}, s{S_WO+1}, s{S_W2+1}
        s_cselect_b32 s{SRD_B+2}, {1024*2048}, s{S_SZ2}
        s_cselect_b32 s{S_T2}, 0, 16
        s_sub_u32 s{S_T}, s{S_T}, s{S_T2}
        s_lshl_b32 s{S_KB}, s{S_T}, 17
        s_cmp_ge_u32 s{S_PB}, {NKS}
        s_cselect_b32 s{SRD_B+2}, 0, s{SRD_B+2}
        s_cselect_b32 s{S_MBE}, {LDS_DUMP}, s{S_MB}
        """)
    def dmaA_list():
        L = []
        for e in range(2):
            L.append(f"""
            s_add_u32 m0, s{S_MAE}, {e*2048}
            s_add_u32 s{S_T3}, s{S_KA}, {e*MBLK_PITCH}
            buffer_load_dwordx4 v{V_DA}, {sr(SRD_A,4)}, s{S_T3} offen lds
            """)
            L.append(f"buffer_load_dwordx4 v{V_DA}, {sr(SRD_A,4)}, s{S_T3} offen offset:1024 lds")
        return L
    def dmaB_list():
        L = []
        for e in range(2):
            L.append(f"""
            s_add_u32 m0, s{S_MBE}, {e*1024}
            s_add_u32 s{S_T3}, s{S_KB}, {e*8192}
            buffer_load_dwordx4 v{V_DB}, {sr(SRD_B,4)}, s{S_T3} offen lds
            """)
        return L
    def advA():
        a(f"""
        s_add_u32 s{S_PA}, s{S_PA}, 1
        s_add_u32 s{S_ASL}, s{S_ASL}, 1
        s_add_u32 s{S_MA}, s{S_MA}, {C_ASLOT}
        s_cmp_eq_u32 s{S_ASL}, {C_NA}
        s_cselect_b32 s{S_ASL}, 0, s{S_ASL}
        s_cselect_b32 s{S_MA}, s{S_DA}, s{S_MA}
        """)
        setA()
    def advB():
        a(f"""
        s_add_u32 s{S_PB}, s{S_PB}, 1
        s_add_u32 s{S_BSL}, s{S_BSL}, 1
        s_add_u32 s{S_MB}, s{S_MB}, {C_BSLOT}
        s_cmp_eq_u32 s{S_BSL}, {C_NBS}
        s_cselect_b32 s{S_BSL}, 0, s{S_BSL}
        s_cselect_b32 s{S_MB}, s{S_DB}, s{S_MB}
        """)
        setB()
    def doA():
        for d in dmaA_list(): a(d)
        advA()
    def doB():
        for d in dmaB_list(): a(d)
        advB()
    a.label("g2_gemm")
    a(f"""
    s_mov_b32 s{S_PA}, 0
    s_mov_b32 s{S_PB}, 0
    s_mov_b32 s{S_ASL}, 0
    s_mov_b32 s{S_BSL}, 0
    s_mov_b32 s{S_MA}, s{S_DA}
    s_mov_b32 s{S_MB}, s{S_DB}
    """)
    setA(); setB()
    stamp_now(a, 42)
    a(f"""
    s_cmp_eq_u32 s{S_G}, 0
    s_cbranch_scc0 g2_pro1
    """)
    doB(); doA(); doB(); doA(); doB()
    a("s_branch g2_pro2")
    a.label("g2_pro1")
    doA(); doB(); doA(); doB(); doA(); doB()
    a.label("g2_pro2")
    stamp_now(a, 43)
    a(f"""
    s_cmp_eq_u32 s{S_CUR}, s{S_KQ}
    s_cbranch_scc0 g2_nozero
    """)
    for r in range(64):
        a(f"v_mov_b32 v{r}, 0")
    a.label("g2_nozero")
    a(f"""
    s_mul_i32 s{S_T}, s{S_G}, {C_NA*C_ASLOT}
    s_lshl_b32 s{S_T2}, s{S_MW}, 13
    s_add_u32 s{S_T}, s{S_T}, s{S_T2}
    v_lshl_add_u32 v{V_RA}, v{VL}, 4, s{S_T}
    v_lshrrev_b32 v{T}, 2, v{VT}              ; r
    v_lshl_add_u32 v{T+1}, v{VG}, 3, v{T}
    v_lshlrev_b32 v{T+1}, 8, v{T+1}
    v_and_b32 v{T+2}, 3, v{VL}
    v_lshl_add_u32 v{T+1}, v{T+2}, 3, v{T+1}
    v_add_u32 v{T+1}, {C_BBASE}, v{T+1}
    v_and_b32 v{T+2}, 1, v{VG}
    v_lshl_or_b32 v{T+2}, v{T+2}, 2, v{T}     ; f = r | (g&1)<<2
    s_lshl_b32 s{S_T}, s{S_NW}, 2
    v_xor_b32 v{T+2}, s{S_T}, v{T+2}
    """)
    for c in range(4):
        a(f"""
        v_xor_b32 v{T+3}, {c}, v{T+2}
        v_lshl_add_u32 v{V_RB+c}, v{T+3}, 5, v{T+1}
        """)
    a(f"""
    s_mov_b32 s{S_J}, 0
    s_mov_b32 s{S_RAS}, 0
    s_mov_b32 s{S_RBS}, 0
    """)
    stamp_now(a, 44)
    a("s_waitcnt vmcnt(12)")
    stamp_now(a, 45)
    a("s_barrier")
    stamp_now(a, 33)
    a(f"""
    s_cmp_eq_u32 s{S_G}, 0
    s_cbranch_scc1 g2_loop
    s_barrier
    """)
    reads = []
    for kk in range(2):
        for t in range(4):
            reads.append(f"ds_read_b128 {vr(xf(t,kk))}, v{V_RA} offset:{(t*2+kk)*1024}")
        for c in range(4):
            for h in range(2):
                reads.append(f"ds_read_b64_tr_b16 {vr(wf(c,kk)+2*h,2)}, v{V_RB+c} offset:{(32*kk+4*h)*256}")
    a.raw(".p2align 6")
    a.label("g2_loop")
    if "pretouch" in OPTS:
        a(f"""
        s_sub_u32 s{S_T}, s{S_J}, 4
        s_cmp_lt_u32 s{S_T}, 8
        s_cbranch_scc0 g2_nopt
        s_lshl_b32 s{S_T}, s{S_T}, 10
        s_add_u32 s{S_T}, s{S_T}, s{S_FB+1}
        buffer_load_dwordx4 v[156:159], v155, {sr(SRD_S,4)}, s{S_T} offen
        """)
        a.label("g2_nopt")
    dl = dmaA_list() + dmaB_list()
    di = 0
    for n_, r in enumerate(reads):
        a(r)
        if (n_ % 4 == 1 if 'g2d3' not in OPTS else n_ % 3 == 0) and di < len(dl):
            a(dl[di]); di += 1
    assert di == len(dl)
    a("""
    s_waitcnt vmcnt(12) lgkmcnt(0)
    s_barrier
    s_setprio 1
    """)
    real = a; a = bk = Collect()
    def _adv():
        pass
    bk(f"""
    s_add_u32 s{S_PA}, s{S_PA}, 1
    s_add_u32 s{S_ASL}, s{S_ASL}, 1
    s_add_u32 s{S_MA}, s{S_MA}, {C_ASLOT}
    s_cmp_eq_u32 s{S_ASL}, {C_NA}
    s_cselect_b32 s{S_ASL}, 0, s{S_ASL}
    s_cselect_b32 s{S_MA}, s{S_DA}, s{S_MA}
    s_add_u32 s{S_KA}, s{S_KA}, 2048
    s_cmp_ge_u32 s{S_PA}, {NKS}
    s_cselect_b32 s{SRD_A+2}, 0, s{S_ASZ}
    s_cselect_b32 s{S_MAE}, {LDS_DUMP}, s{S_MA}
    s_add_u32 s{S_PB}, s{S_PB}, 1
    s_add_u32 s{S_BSL}, s{S_BSL}, 1
    s_add_u32 s{S_MB}, s{S_MB}, {C_BSLOT}
    s_cmp_eq_u32 s{S_BSL}, {C_NBS}
    s_cselect_b32 s{S_BSL}, 0, s{S_BSL}
    s_cselect_b32 s{S_MB}, s{S_DB}, s{S_MB}
    s_add_u32 s{S_KB}, s{S_KB}, {1<<17}
    s_lshl_b32 s{S_T}, s{S_CUR}, 8
    s_add_u32 s{S_T}, s{S_T}, s{S_PB}
    s_cmp_eq_u32 s{S_T}, 16
    s_cselect_b32 s{SRD_B}, s{S_W2}, s{SRD_B}
    s_cselect_b32 s{SRD_B+1}, s{S_W2+1}, s{SRD_B+1}
    s_cselect_b32 s{SRD_B+2}, s{S_SZ2}, s{SRD_B+2}
    s_cselect_b32 s{S_KB}, 0, s{S_KB}
    s_cmp_ge_u32 s{S_PB}, {NKS}
    s_cselect_b32 s{SRD_B+2}, 0, s{SRD_B+2}
    s_cselect_b32 s{S_MBE}, {LDS_DUMP}, s{S_MB}
    s_add_u32 s{S_RAS}, s{S_RAS}, 1
    s_cmp_eq_u32 s{S_RAS}, {C_NA}
    s_cselect_b32 s{S_RAS}, 0, s{S_RAS}
    s_cselect_b32 s{S_T}, {C_NA*C_ASLOT}, 0
    s_sub_u32 s{S_T}, {C_ASLOT}, s{S_T}
    v_add_u32 v{V_RA}, s{S_T}, v{V_RA}
    s_add_u32 s{S_RBS}, s{S_RBS}, 1
    s_cmp_eq_u32 s{S_RBS}, {C_NBS}
    s_cselect_b32 s{S_RBS}, 0, s{S_RBS}
    s_cselect_b32 s{S_T}, {C_NBS*C_BSLOT}, 0
    s_sub_u32 s{S_T}, {C_BSLOT}, s{S_T}
    """)
    for c in range(4):
        bk(f"v_add_u32 v{V_RB+c}, s{S_T}, v{V_RB+c}")
    a = real
    mf = []
    for kk in range(2):
        for c in range(4):
            for t in range(4):
                mf.append(f"v_mfma_f32_16x16x32_bf16 {vr(acc(c,t))}, {vr(wf(c,kk))}, {vr(xf(t,kk))}, {vr(acc(c,t))}")
    interleave(a, mf, bk.L, start=(0 if 'g2bk3' in OPTS else 1), per=(3 if 'g2bk3' in OPTS else 2))
    a(f"""
    s_setprio 0
    s_add_u32 s{S_J}, s{S_J}, 1
    s_lshl_b32 s{S_T}, s{S_G}, 8
    s_add_u32 s{S_T}, s{S_T}, s{S_J}
    s_cmp_eq_u32 s{S_T}, {256 + NKS}
    s_cbranch_scc1 g2_post
    s_cmp_lt_u32 s{S_J}, {NKS}
    s_barrier
    s_cbranch_scc1 g2_loop
    """)
    a.label("g2_post")
    stamp_now(a, 34)
    V_XR = XF; V_XA = T + 1; V_OA = T + 2; PK = WF
    a(f"""
    v_lshlrev_b32 v{T}, 4, v{VL}
    s_cmp_eq_u32 s{S_Q}, s{S_KQ}
    s_cbranch_scc1 g2_own
    s_cmp_eq_u32 s{S_CUR}, s{S_KQ}
    s_cbranch_scc0 g2_pub_done
    s_lshl_b32 s{S_T}, s{S_TILE}, 2
    s_add_u32 s{S_T}, s{S_T}, s{S_KQ}
    s_lshl_b32 s{S_T}, s{S_T}, 3
    s_add_u32 s{S_T}, s{S_T}, s{S_WV}
    s_lshl_b32 s{S_T}, s{S_T}, 13
    s_add_u32 s{S_T2}, s{S_T}, 4096
    """)
    for bp in range(8):
        o = PK + 4 * bp
        for h in range(2):
            b = acc(bp >> 1, (bp & 1) * 2 + h)
            a(f"""
            v_cvt_pk_bf16_f32 v{o+2*h}, v{b}, v{b+1}
            v_cvt_pk_bf16_f32 v{o+2*h+1}, v{b+2}, v{b+3}
            """)
        a(f"buffer_store_dwordx4 {vr(o)}, v{T}, {sr(SRD_S,4)}, s{S_T if bp < 4 else S_T2} offen offset:{(bp%4)*1024} {XF_}")
    a("s_branch g2_pub_done")
    a.label("g2_own")
    a(f"""
    s_lshl_b32 s{S_T}, s{S_NW}, 14
    v_add_u32 v{T+3}, s{S_T}, v{T}
    """)
    for b in range(16):
        a(f"ds_write_b128 v{T+3}, {vr(4*b)} offset:{b*1024}")
    a.label("g2_pub_done")
    a(f"""
    s_lshl_b32 s{S_T}, s{S_MT}, 8
    s_lshl_b32 s{S_T2}, s{S_KQ}, 6
    s_add_u32 s{S_T}, s{S_T}, s{S_T2}
    s_lshl_b32 s{S_T2}, s{S_G}, 5
    s_add_u32 s{S_T}, s{S_T}, s{S_T2}
    v_add_u32 v{T+3}, s{S_T}, v{VT}
    v_lshlrev_b32 v{T+3}, 11, v{T+3}
    s_lshl_b32 s{S_T}, s{S_NT}, 8
    s_lshl_b32 s{S_T2}, s{S_NW}, 7
    s_add_u32 s{S_T}, s{S_T}, s{S_T2}
    s_lshl_b32 s{S_T2}, s{S_MW}, 6
    s_add_u32 s{S_T}, s{S_T}, s{S_T2}
    v_add_u32 v{T+3}, s{S_T}, v{T+3}
    v_lshl_add_u32 v{V_XA}, v{VG}, 3, v{T+3}
    v_and_b32 v{T+4}, 1, v{VG}
    v_lshrrev_b32 v{T+5}, 1, v{VG}
    v_lshl_or_b32 v{T+4}, v{T+4}, 1, v{T+5}
    v_lshl_add_u32 v{V_OA}, v{T+4}, 4, v{T+3}
    s_mov_b32 s{S_T}, {16*2048}
    """)
    for t in range(2):
        for e in range(2):
            so = "0" if t == 0 else f"s{S_T}"
            a(f"buffer_load_dwordx2 {vr(V_XR+(t*2+e)*2,2)}, v{V_XA}, {sr(SRD_X,4)}, {so} offen offset:{e*32}")
    a("s_waitcnt vmcnt(4) lgkmcnt(0)")
    stamp_now(a, 36)
    a(f"""
    s_barrier
    s_cmp_eq_u32 s{S_CUR}, s{S_KQ}
    s_cbranch_scc0 g2_after_publish
    s_cmp_eq_u32 s{S_WV}, 0
    s_cbranch_scc0 g2_wait_done
    s_lshl_b32 s{S_T}, s{S_KQ}, 2
    v_mov_b32 v{T+3}, s{S_DONE}
    v_mov_b32 v{T+4}, s{S_T}
    s_mov_b64 exec, 1
    buffer_store_dword v{T+3}, v{T+4}, {sr(SRD_F,4)}, s{S_FB} offen sc0 sc1
    s_mov_b32 s{S_CNT}, 0
    """)
    a.label("g2_poll")
    a(f"""
    buffer_load_dwordx4 {vr(T+6)}, off, {sr(SRD_F,4)}, s{S_FB} sc0 sc1
    s_waitcnt vmcnt(0)
    v_or_b32 v{T+6}, v{T+6}, v{T+7}
    v_or3_b32 v{T+5}, v{T+6}, v{T+8}, v{T+9}
    s_add_u32 s{S_CNT}, s{S_CNT}, 1
    v_readfirstlane_b32 s{S_ARR}, v{T+5}
    s_nop 3
    s_cmp_eq_u32 s{S_ARR}, {0x77 if "forcefb" in OPTS else 0x01010101}
    s_cbranch_scc1 g2_poll_end
    s_cmp_lt_u32 s{S_CNT}, {64 if "forcefb" in OPTS else 20000}
    s_cbranch_scc1 g2_poll
    """)
    a.label("g2_poll_end")
    if STAMP:
        a(f"v_writelane_b32 v{V_STAMP}, s{S_CNT}, 39")
    if "forcefb" in OPTS:
        a(f"s_and_b32 s{S_ARR}, s{S_ARR}, 0x00010001")
    a(f"""
    v_mov_b32 v{T+5}, s{S_ARR}
    v_mov_b32 v{T+4}, {65536}
    ds_write_b32 v{T+4}, v{T+5}
    s_mov_b64 exec, -1
    s_waitcnt lgkmcnt(0)
    """)
    a.label("g2_wait_done")
    a(f"""
    s_barrier
    v_mov_b32 v{T+4}, {65536}
    ds_read_b32 v{T+5}, v{T+4}
    s_waitcnt lgkmcnt(0)
    v_readfirstlane_b32 s{S_ARR}, v{T+5}
    s_nop 3
    """)
    a.label("g2_after_publish")
    a(f"""
    s_or_b32 s{S_T}, s{S_ARR}, s{S_DONE}
    s_cmp_eq_u32 s{S_T}, 0x01010101
    s_cbranch_scc1 g2_final
    s_andn2_b32 s{S_T}, 0x01010101, s{S_T}
    s_ff1_i32_b32 s{S_T}, s{S_T}
    s_lshl_b32 s{S_T2}, 1, s{S_T}
    s_or_b32 s{S_DONE}, s{S_DONE}, s{S_T2}
    s_lshr_b32 s{S_CUR}, s{S_T}, 3
    s_waitcnt vmcnt(0)
    s_barrier
    s_branch g2_gemm
    """)
    a.label("g2_final")
    stamp_now(a, 35)
    R0 = WF
    a(f"""
    s_andn2_b32 s{S_ARR}, s{S_ARR}, s{S_DONE}
    s_lshl_b32 s{S_T}, s{S_MW}, 2
    s_add_u32 s{S_T}, s{S_T}, s{S_G}
    s_lshl_b32 s{S_T}, s{S_T}, 10             ; pair0 * 1024
    s_lshl_b32 s{S_T2}, s{S_NW}, 13
    s_add_u32 s{S_T3}, s{S_T}, s{S_T2}
    """)
    for src in range(4):
        a(f"""
        s_bitcmp1_b32 s{S_ARR}, {8*src}
        s_cbranch_scc1 g2_ld{src}
        """)
        for r in range(8):
            a(f"v_mov_b32 v{8*src+r}, 0")
        a(f"s_branch g2_ld{src}_done")
        a.label(f"g2_ld{src}")
        a(f"""
        s_lshl_b32 s{S_T}, s{S_TILE}, 2
        s_add_u32 s{S_T}, s{S_T}, {src}
        s_lshl_b32 s{S_T}, s{S_T}, 2
        s_add_u32 s{S_T}, s{S_T}, s{S_KQ}
        s_lshl_b32 s{S_T}, s{S_T}, 14
        s_add_u32 s{S_T}, s{S_T}, s{S_T3}
        """)
        for e in range(2):
            a(f"buffer_load_dwordx4 {vr(8*src+4*e)}, v{T}, {sr(SRD_S,4)}, s{S_T} offen offset:{e*2048} {XF_}")
        a.label(f"g2_ld{src}_done")
    a(f"""
    s_lshl_b32 s{S_T}, s{S_MW}, 3
    s_lshl_b32 s{S_T2}, s{S_G}, 1
    s_add_u32 s{S_T}, s{S_T}, s{S_T2}
    s_lshl_b32 s{S_T}, s{S_T}, 10
    s_lshl_b32 s{S_T2}, s{S_NW}, 14
    s_add_u32 s{S_T}, s{S_T}, s{S_T2}
    v_add_u32 v{T+3}, s{S_T}, v{T}
    """)
    for e in range(2):
        for t in range(2):
            a(f"ds_read_b128 {vr(R0+(e*2+t)*4)}, v{T+3} offset:{e*4096 + t*1024}")
    a("s_waitcnt vmcnt(0) lgkmcnt(0)")
    stamp_now(a, 37)
    for t in range(2):
        o = XF + 16 + t * 4
        for e in range(2):
            c = R0 + (e * 2 + t) * 4
            srcs = [8 * src + 4 * e + 2 * t for src in range(4)] + [V_XR + (t * 2 + e) * 2]
            for p in srcs:
                a(f"""
                v_lshlrev_b32 v{T+8}, 16, v{p}
                v_and_b32 v{T+9}, 0xffff0000, v{p}
                v_lshlrev_b32 v{T+10}, 16, v{p+1}
                v_and_b32 v{T+11}, 0xffff0000, v{p+1}
                v_pk_add_f32 {vr(c,2)}, {vr(c,2)}, {vr(T+8,2)}
                v_pk_add_f32 {vr(c+2,2)}, {vr(c+2,2)}, {vr(T+10,2)}
                """)
            a(f"""
            v_cvt_pk_bf16_f32 v{o+2*e}, v{c}, v{c+1}
            v_cvt_pk_bf16_f32 v{o+2*e+1}, v{c+2}, v{c+3}
            """)
        so = "0" if t == 0 else f"s{S_T2}"
        a(f"""
        s_mov_b32 s{S_T2}, {16*2048}
        s_nop 0
        v_permlane16_swap_b32 v{o}, v{o+2}
        v_permlane16_swap_b32 v{o+1}, v{o+3}
        s_nop 1
        buffer_store_dwordx4 {vr(o)}, v{V_OA}, {sr(SRD_O,4)}, {so} offen
        """)
    stamp_now(a, 51, True)
    stamp_dump(a, S_WSP, S_WV, 40 << 20)
    a.label("g2_exit")
    a("s_endpgm")
    global G2_VGPRS
    G2_VGPRS = 256 if STAMP else 160

HEADER = f"""; mblk_pitch={MBLK_PITCH}
{"; (LayerNorm statistics and column sums are exchanged between workgroups of kernel 1; local recompute as fallback)" if FUSE else "; @launch kernel=k0_kernel grid=(256,1,1) block=(512,1,1) lds=0"}
; @launch kernel=g1_kernel grid=(256,1,1) block=(512,1,1) lds={G1_LDS}
; @launch kernel=g2_kernel grid=(256,1,1) block=(512,1,1) lds={G2_LDS if 'g2a' in OPTS else G2C_LDS}
.amdgcn_target "amdgcn-amd-amdhsa--gfx950"
.text
"""

def kd(name, vgpr, sgpr):
    return f"""
.amdhsa_kernel {name}
  .amdhsa_next_free_vgpr {vgpr}
  .amdhsa_next_free_sgpr {sgpr}
  .amdhsa_accum_offset {(vgpr + 3) // 4 * 4}
  .amdhsa_group_segment_fixed_size 0
  .amdhsa_kernarg_size 72
  .amdhsa_user_sgpr_count 2
  .amdhsa_user_sgpr_kernarg_segment_ptr 1
  .amdhsa_system_sgpr_workgroup_id_x 1
.end_amdhsa_kernel
"""

def main():
    global STAMP
    if "stamp" in sys.argv[2:]: STAMP = True
    a = Asm()
    if not FUSE: gen_k0(a)
    gen_g1(a)
    (gen_g2 if 'g2a' in OPTS else gen_g2c)(a)
    s = HEADER + a.text() + '.section .rodata,"a"\n.p2align 6\n' + ("" if FUSE else kd("k0_kernel", 64, 40) + ".p2align 6\n") + kd("g1_kernel", 256, 102) + ".p2align 6\n" + kd("g2_kernel", G2_VGPRS, 102 if STAMP else 80)
    out = sys.argv[1] if len(sys.argv) > 1 else OUT
    open(out, "w").write(s)

main()
```
